```python
import torch

def _softmax(x, axis=-1):
    return torch.softmax(x, dim=axis)
def _gelu(x):
    return torch.nn.functional.gelu(x, approximate="tanh")
def _silu(x):
    return torch.nn.functional.silu(x)
def _sigmoid(x):
    return torch.sigmoid(x)
def _layernorm(x, axis=-1, eps=1e-5):
    m = x.mean(dim=axis, keepdim=True)
    v = x.var(dim=axis, keepdim=True, unbiased=False)
    return (x - m) / torch.sqrt(v + eps)
def _scatter_add(tgt, idx, src, axis=0):
    return tgt.clone().index_add_(axis, idx, src)
def _segment_sum(src, seg, n):
    out = torch.zeros((n,) + src.shape[1:], dtype=src.dtype)
    return out.index_add_(0, seg, src)
def _pad(x, pw):
    flat = tuple(v for pair in reversed(pw) for v in pair)
    return torch.nn.functional.pad(x, flat)

kernel_name = 'recurrent_scan__linear_attn_block__dense_activation_gelu__prompt'

def setup_inputs():

    _w = (lambda a: (lambda t: t.to(torch.bfloat16) if t.is_floating_point() else t)(torch.as_tensor(a)))
    def _A_setup():
        B, S, D = 1, 2048, 512
        return {
            "x": _w((lambda *s: torch.randn(*s, dtype=torch.bfloat16) * 0.05)(B, S, D)),
            "wqkv": _w((lambda *s: torch.randn(*s, dtype=torch.bfloat16) * 0.2)(D, 3 * D)),
            "wo": _w((lambda *s: torch.randn(*s, dtype=torch.bfloat16) * 0.2)(D, D)),
        }
    _A_in = _A_setup()

    def _B_setup():
        B, S, D, F = 1, 2048, 512, 1376
        return {
            "x": _w((lambda *s: torch.randn(*s, dtype=torch.bfloat16) * 0.05)(B, S, D)),
            "w1": _w((lambda *s: torch.randn(*s, dtype=torch.bfloat16) * 0.4)(D, F) * (D ** -0.5)),
            "b1": _w((lambda *s: torch.randn(*s, dtype=torch.bfloat16) * 12.8)(F) * 0.01),
            "w2": _w((lambda *s: torch.randn(*s, dtype=torch.bfloat16) * 0.2)(F, D) * (F ** -0.5)),
            "b2": _w((lambda *s: torch.randn(*s, dtype=torch.bfloat16) * 3.2)(D) * 0.01),
        }
    _B_in = _B_setup()

    return {
        "A_x": _A_in["x"],
        "A_wqkv": _A_in["wqkv"],
        "A_wo": _A_in["wo"],
        "B_x": _B_in["x"],
        "B_w1": _B_in["w1"],
        "B_b1": _B_in["b1"],
        "B_w2": _B_in["w2"],
        "B_b2": _B_in["b2"],
    }

def reference(A_x, A_wqkv, A_wo, B_x, B_w1, B_b1, B_w2, B_b2):
    def _A_ref(x, wqkv, wo):
        B, S, D = x.shape
        H = 32; Dh = D // H
        qkv = (lambda x, *d: x.permute(*d))((x @ wqkv).reshape(B, S, 3, H, Dh), 2, 0, 3, 1, 4)
        q, k, v = qkv[0], qkv[1], qkv[2]
        phi = lambda t: torch.where(t > 0, t + 1, torch.exp(t)) + 1e-6
        pq, pk = phi(q), phi(k)
        kv = torch.einsum("bhsd,bhse->bhde", pk, v)
        z = torch.einsum("bhsd->bhd", pk)
        num = torch.einsum("bhqd,bhde->bhqe", pq, kv)
        den = torch.einsum("bhqd,bhd->bhq", pq, z)[..., None] + 1e-6
        o = num / den
        return (lambda x, *d: x.permute(*d))(o, 0, 2, 1, 3).reshape(B, S, D) @ wo

    def _B_ref(x, w1, b1, w2, b2):
        h = torch.einsum("bsd,df->bsf", x, w1) + b1
        h = _gelu(h)
        return torch.einsum("bsf,fd->bsd", h, w2) + b2

    x = A_x
    xn = _layernorm(x, axis=-1)
    s = _A_ref(xn, A_wqkv, A_wo)
    g = _silu(_B_ref(xn, B_w1, B_b1, B_w2, B_b2))
    return x + s * g
```

```python
import re

def v(a, n=1): return f"v{a}" if n == 1 else f"v[{a}:{a+n-1}]"
def s(a, n=1): return f"s{a}" if n == 1 else f"s[{a}:{a+n-1}]"

_reg = re.compile(r"^(-|abs\()?([vsa])(?:(\d+)|\[(\d+):(\d+)\])\)?$")
def regs_of(tok):
    tok = tok.strip()
    if tok.startswith("-"): tok = tok[1:]
    if tok.startswith("abs(") and tok.endswith(")"): tok = tok[4:-1]
    if tok.startswith("|") and tok.endswith("|"): tok = tok[1:-1]
    if tok == "vcc": return {"vcc"}
    if tok in ("vcc_lo", "vcc_hi"): return {"vcc"}
    if tok in ("exec", "exec_lo", "exec_hi"): return {"exec"}
    if tok == "m0": return {"m0"}
    m = _reg.match(tok)
    if not m: return set()
    k = m.group(2)
    if m.group(3) is not None: return {f"{k}{m.group(3)}"}
    return {f"{k}{i}" for i in range(int(m.group(4)), int(m.group(5)) + 1)}

TRANS = ("v_exp_f32", "v_log_f32", "v_rcp_f32", "v_rsq_f32", "v_sqrt_f32", "v_sin_f32", "v_cos_f32")

class Ins:
    __slots__ = ("text", "op", "kind", "w", "r", "passes", "srcC", "dst", "ab", "storedata", "trans", "dpp", "ws", "lds_dma", "smem_r")
    def __init__(self, text):
        self.text = text
        t = text.split(";")[0].strip()
        parts = t.split(None, 1)
        op = parts[0]
        for suf in ("_e32", "_e64", "_dpp", "_sdwa"):
            if op.endswith(suf): op = op[: -len(suf)]
        self.op = op
        rest = parts[1] if len(parts) > 1 else ""
        toks, depth, cur = [], 0, ""
        for c in rest:
            if c == "[": depth += 1
            if c == "]": depth -= 1
            if c == "," and depth == 0: toks.append(cur.strip()); cur = ""
            else: cur += c
        if cur.strip(): toks.append(cur.strip())
        mods = ""
        if toks:
            last = toks[-1].split()
            toks[-1] = last[0]; mods = " ".join(last[1:])
        self.w, self.r = set(), set()
        self.passes = 0; self.srcC = set(); self.dst = set(); self.ab = set(); self.storedata = set()
        self.trans = op in TRANS; self.dpp = ("dpp" in parts[0]) or ("row_" in mods) or ("quad_perm" in mods)
        self.ws = 1; self.lds_dma = False
        R = [regs_of(x) for x in toks]
        if op.startswith("v_mfma"):
            self.kind = "mfma"
            self.passes = 8 if "32x32" in op else 4
            self.dst = R[0]; self.w = set(R[0]); self.ab = R[1] | R[2]; self.srcC = R[3]; self.r = self.ab | self.srcC
        elif op.startswith("v_"):
            self.kind = "valu"
            if op.startswith("v_cmp"):
                self.w = set(R[0]); self.r = set().union(*R[1:])
                if op.startswith("v_cmpx"): self.w |= {"exec"}
            elif op.startswith("v_permlane"):
                self.w = R[0] | R[1]; self.r = R[0] | R[1]
            elif op in ("v_add_co_u32", "v_sub_co_u32", "v_addc_co_u32"):
                self.w = R[0] | R[1]; self.r = set().union(*R[2:])
            elif op == "v_nop":
                pass
            else:
                self.w = set(R[0]); self.r = set().union(*R[1:]) if len(R) > 1 else set()
                if op in ("v_fmac_f32", "v_dot2c_f32_bf16", "v_writelane_b32") or self.dpp: self.r |= R[0]
        elif op.startswith("buffer_") or op.startswith("global_"):
            self.kind = "vmem"
            isload = "load" in op
            if "lds" in mods.split():
                self.lds_dma = True; self.r = set().union(*R) | {"m0"}
            elif isload:
                self.w = set(R[0]); self.r = set().union(*R[1:])
                if "d16" in op: self.r |= R[0]
            elif op in ("buffer_wbl2", "buffer_inv"):
                pass
            else:
                self.r = set().union(*R)
                d = R[0] if op.startswith("buffer_") else R[1]
                if len(d) >= 3: self.storedata = set(d)
                if "atomic" in op and "sc0" in mods.split(): self.w = set(R[0])
        elif op.startswith("ds_"):
            self.kind = "ds"
            if op.startswith("ds_read") or "permute" in op or "swizzle" in op or "rtn" in op:
                self.w = set(R[0]); self.r = set().union(*R[1:])
            else:
                self.r = set().union(*R)
        elif op.startswith("s_"):
            self.kind = "salu"
            if op == "s_nop": self.ws = int(toks[0], 0) + 1
            elif op.startswith("s_cmp") or op.startswith("s_cbranch") or op in ("s_branch", "s_barrier", "s_waitcnt", "s_sleep", "s_setprio", "s_endpgm", "s_bitcmp0_b32", "s_bitcmp1_b32"):
                self.r = set().union(*R) if R else set()
            else:
                self.w = set(R[0]) if R else set(); self.r = set().union(*R[1:]) if len(R) > 1 else set()
                if "saveexec" in op: self.w |= {"exec"}; self.r |= {"exec"}
                if op.startswith("s_load") or op.startswith("s_mem") or op.startswith("s_buffer_load"): self.kind = "smem"
        else:
            raise ValueError("unknown instr " + text)

def need(p, c):
    n = 0
    isv = lambda S: {x for x in S if x[0] in "va" and x != "vcc"}
    iss = lambda S: {x for x in S if x[0] == "s" or x == "vcc"}
    if p.kind == "valu":
        pv, ps = isv(p.w), iss(p.w)
        if c.kind == "mfma" and pv & c.r: n = max(n, 2)
        if c.kind == "mfma" and "exec" in p.w: n = max(n, 4)
        if c.kind == "valu":
            if c.dpp and pv & c.r: n = max(n, 2)
            if c.dpp and "exec" in p.w: n = max(n, 5)
            if c.op.startswith("v_permlane") and pv & c.r: n = max(n, 2)
            if c.op in ("v_readlane_b32", "v_readfirstlane_b32") and pv & c.r: n = max(n, 1)
            if ps & c.r: n = max(n, 4 if c.op in ("v_readlane_b32", "v_writelane_b32") else 2)
            if p.trans and not c.trans and pv & c.r: n = max(n, 1)
            if p.trans and c.trans and pv & c.r: n = max(n, 1)
            if "exec" in p.w and c.op in ("v_readlane_b32", "v_readfirstlane_b32", "v_writelane_b32"): n = max(n, 4)
        if c.kind == "vmem" and ps & c.r: n = max(n, 5)
        if c.kind in ("salu", "smem") and ps & c.r: n = max(n, 1)
    if p.kind == "salu" and "m0" in p.w and c.lds_dma: n = max(n, 1)
    if p.kind == "vmem" and p.storedata and (p.storedata & c.w): n = max(n, 2)
    if p.kind == "mfma":
        big = {4: 8, 8: 12}[p.passes]; ovl = {4: 6, 8: 10}[p.passes]; war = {4: 3, 8: 7}[p.passes]
        if c.kind == "mfma":
            if p.dst & c.ab: n = max(n, big)
            if p.dst & c.srcC:
                if not (p.dst == c.srcC and p.passes == c.passes): n = max(n, ovl)
            elif p.dst & c.dst: n = max(n, ovl)
        elif c.kind in ("valu", "vmem", "ds"):
            if p.dst & (c.r | c.w): n = max(n, big)
            if c.kind == "valu" and p.srcC & c.w: n = max(n, war)
    return n

class Asm:
    def __init__(self):
        self.items = []
    def __call__(self, text):
        for line in text.strip("\n").split("\n"):
            line = line.strip()
            if line: self.items.append(line)
    def label(self, name): self.items.append(name + ":")
    def nop(self, n): self.items.append(f"s_nop {n-1}")

    def finalize(self, verbose=False):
        out = []; hist = []; nins = 0
        parsed = []
        for it in self.items:
            if it.endswith(":") or it.startswith(".") or it.startswith(";"):
                parsed.append((it, None))
            else:
                parsed.append((it, Ins(it)))
        def req(hist, c):
            d = 0; n = 0
            for p in reversed(hist):
                k = need(p, c) - d
                if k > n: n = k
                d += p.ws
                if d > 24: break
            return n
        seq = []
        for it, ins in parsed:
            if ins is None:
                seq.append((it, None)); continue
            n = req(hist, ins)
            while n > 0:
                k = min(n, 16); nop = Ins(f"s_nop {k-1}"); seq.append((nop.text, nop)); hist.append(nop); n -= k; nins += 1
            seq.append((it, ins)); hist.append(ins)
            if ins.op in ("s_branch", "s_endpgm"): hist = []
            if len(hist) > 40: hist = hist[-30:]
        labels = {it[:-1]: k for k, (it, ins) in enumerate(seq) if ins is None and it.endswith(":")}
        for k, (it, ins) in enumerate(seq):
            if ins is not None and (ins.op.startswith("s_cbranch") or ins.op == "s_branch"):
                tgt = it.split()[1]
                h = [x for _, x in seq[max(0, k - 30): k + 1] if x is not None]
                j = labels[tgt]; cnt = 0
                while j < len(seq) and cnt < 24:
                    c = seq[j][1]
                    if c is not None:
                        if req(h, c) > 0: raise RuntimeError(f"hazard across branch {it} -> {c.text}")
                        h.append(c); cnt += c.ws
                        if c.op in ("s_branch", "s_endpgm"): break
                    j += 1
        if verbose: print("inserted nops:", nins, "instructions:", sum(1 for _, i in seq if i is not None))
        return "\n".join(it if (ins is None) else "  " + it for it, ins in seq) + "\n"
```

```python
import sys, struct
from asmlib import Asm, v, s

KN = "recurrent_scan__linear_attn_block__dense_activation_gelu__prompt_kernel"
def f2u(x): return struct.unpack("<I", struct.pack("<f", x))[0]
def hx(x): return f"0x{x & 0xffffffff:08x}"
def fl(x): return hx(f2u(x))

WS_HO = 0
WS_KV = 8 << 20
WS_ST = 9 << 20
WS_FH = 10 << 20
WS_FO = WS_FH + 0x8000
WS_FK = WS_FH + 0x10000
WS_TS = 12 << 20
WS_SIZE = 268435456
OOB = 0x80000000
SLOT = [0, 40960, 81920]
R0 = 122880
SCR = 151552
SC_NONCE = SCR
SC_FLAG = SCR + 64
SC_CS = SCR + 256
SC_R = SCR + 2048
SC_KVX = SCR + 4096
LDS_SIZE = 163840
def b_lds(sig):
    if sig < 7: return R0 + sig * 4096
    if sig < 17: return SLOT[2] + (sig - 7) * 4096
    if sig < 27: return SLOT[0] + (sig - 17) * 4096
    if sig < 37: return SLOT[1] + (sig - 27) * 4096
    return b_lds(sig - 37)
XCH_Y = SLOT[1]
XCH_S = SLOT[1] + 16384
ORDER = []
for p in range(3):
    for g in range(8):
        for ch in range(2):
            f = 6 * g + 2 * p + ch
            if f < 43: ORDER.append(("w2", f))
ORDER += [("wo", f) for f in range(16)]
assert len(ORDER) == 59
SIG0 = [0, 15, 29]
SPIN_MAX = 1 << 18

sX, sW, sW2, sWO, sWS, sDBG, sOUT, sB1, sB2 = 28, 32, 36, 40, 44, 48, 52, 56, 60
sWAVE, sI, sG, sTYPE, sHF, sCT, sKST, sRH, sCH, sNONCE, sSTR = 64, 65, 66, 67, 68, 69, 70, 71, 72, 73, 74
sT0, sT1, sT2, sT3, sT4, sT5 = 75, 76, 77, 78, 79, 80
sC0 = 81
sSPIN = 84
sM = 86
sTS = 88

class Cnt:
    def __init__(self, a, name, mx): self.a, self.name, self.mx, self.q = a, name, mx, []
    def issue(self, tag): self.q.append(tag)
    def wait(self, tag):
        if tag not in self.q: return
        k = len(self.q) - 1 - max(i for i, t in enumerate(self.q) if t == tag)
        k = min(k, self.mx)
        self.a(f"s_waitcnt {self.name}({k})")
        self.q = self.q[len(self.q) - k:] if k else []
    def wait_all(self):
        self.a(f"s_waitcnt {self.name}(0)"); self.q = []

class Gen:
    def __init__(self, diag=False, stop=None):
        self.a = Asm(); self.diag = diag; self.stop = stop; self.uid = 0; self.tail = []
    def lab(self, n): self.uid += 1; return f"L{n}_{self.uid}"
    def ts(self, k):
        if self.diag: self.a(f"s_memrealtime {s(sTS + 2 * k, 2)}")
    def ts_flush(self):
        if not self.diag: return
        a = self.a
        a("s_waitcnt lgkmcnt(0)")
        a(f"s_lshl_b32 {s(sT0)}, s2, 3\ns_add_u32 {s(sT0)}, {s(sT0)}, {s(sWAVE)}\ns_lshl_b32 {s(sT0)}, {s(sT0)}, 5\ns_add_u32 {s(sT0)}, {s(sT0)}, {WS_TS}")
        for k in range(7): a(f"v_mov_b32 v{8+k}, {s(sTS+2*k)}")
        a("v_mov_b32 v15, 0\nv_mov_b32 v7, 0")
        a("s_mov_b64 exec, 1")
        a(f"buffer_store_dwordx4 v[8:11], v7, {s(sWS,4)}, {s(sT0)} offen")
        a(f"buffer_store_dwordx4 v[12:15], v7, {s(sWS,4)}, {s(sT0)} offen offset:16")
        a("s_mov_b64 exec, -1")

    def srd(self, d, ptr, size):
        self.a(f"s_mov_b32 {s(d)}, {s(ptr)}\ns_mov_b32 {s(d+1)}, {s(ptr+1)}\ns_mov_b32 {s(d+2)}, {size}\ns_mov_b32 {s(d+3)}, 0x00020000")

    def poll(self, vaddr, vtmp, soff):
        a = self.a; L = self.lab("poll"); X = self.lab("pollx")
        a(f"s_mov_b32 {s(sSPIN)}, 0")
        a.label(L)
        a(f"buffer_load_dword {v(vtmp)}, {v(vaddr)}, {s(sWS,4)}, {s(soff)} offen sc1")
        a(f"s_add_u32 {s(sSPIN)}, {s(sSPIN)}, 1\ns_cmp_gt_u32 {s(sSPIN)}, {SPIN_MAX}\ns_cbranch_scc1 {X}")
        a(f"s_waitcnt vmcnt(0)\nv_cmp_ne_u32 vcc, {s(sNONCE)}, {v(vtmp)}\ns_cbranch_vccnz {L}")
        a.label(X)
        a("s_waitcnt vmcnt(0)")

    def prologue(self):
        a = self.a
        a("s_cmp_ge_u32 s2, 256\ns_cbranch_scc1 L_end")
        a("s_load_dwordx16 s[4:19], s[0:1], 0\ns_load_dwordx4 s[20:23], s[0:1], 64\ns_load_dwordx2 s[24:25], s[0:1], 80")
        self.ts(0)
        a("v_lshrrev_b32 v2, 6, v0\nv_and_b32 v1, 63, v0")
        a(f"s_and_b32 {s(sT0)}, s2, 3")
        a(f"v_readfirstlane_b32 {s(sWAVE)}, v2")
        a(f"s_bfe_u32 {s(sHF)}, s2, 0x10002")
        a(f"s_bfe_u32 {s(sCT)}, s2, 0x30003")
        a(f"s_lshr_b32 {s(sI)}, s2, 6\ns_lshl_b32 {s(sI)}, {s(sI)}, 2\ns_add_u32 {s(sI)}, {s(sI)}, {s(sT0)}")
        a(f"s_lshr_b32 {s(sTYPE)}, {s(sCT)}, 2")
        a(f"s_and_b32 {s(sG)}, {s(sCT)}, 3\ns_lshl_b32 {s(sT0)}, {s(sHF)}, 2\ns_add_u32 {s(sG)}, {s(sG)}, {s(sT0)}")
        a(f"s_lshr_b32 {s(sKST)}, {s(sI)}, 1\ns_add_u32 {s(sKST)}, {s(sKST)}, {s(sCT)}\ns_and_b32 {s(sKST)}, {s(sKST)}, 7")
        a(f"s_bfe_u32 {s(sRH)}, {s(sWAVE)}, 0x10001\ns_and_b32 {s(sCH)}, {s(sWAVE)}, 1")
        a(f"s_lshl_b32 {s(sT0)}, {s(sG)}, 7\ns_mul_i32 {s(sT1)}, {s(sG)}, 384")
        a(f"s_add_u32 {s(sT2)}, {s(sT0)}, 1024\ns_add_u32 {s(sT3)}, {s(sT0)}, 2048\ns_add_u32 {s(sT4)}, {s(sT1)}, 128\ns_add_u32 {s(sT5)}, {s(sT1)}, 256")
        a(f"s_cmp_eq_u32 {s(sTYPE)}, 0")
        a(f"s_movk_i32 {s(sSTR)}, 2752\ns_cselect_b32 {s(sSTR)}, 3072, {s(sSTR)}")
        a(f"s_cselect_b32 {s(sC0)}, {s(sT2)}, {s(sT1)}\ns_cselect_b32 {s(sC0+1)}, {s(sT3)}, {s(sT4)}\ns_cselect_b32 {s(sC0+2)}, {s(sT0)}, {s(sT5)}")
        a(f"s_cmp_ge_u32 {s(sWAVE)}, 4\ns_cbranch_scc0 L_compute")

    def srds(self, which):
        a = self.a
        a("s_waitcnt lgkmcnt(0)")
        self.srd(sX, 4, 2097152)
        if which == "loader":
            a(f"s_cmp_eq_u32 {s(sTYPE)}, 0")
            a(f"s_cselect_b32 {s(sW)}, s6, s12\ns_cselect_b32 {s(sW+1)}, s7, s13\ns_lshl_b32 {s(sW+2)}, {s(sSTR)}, 9\ns_mov_b32 {s(sW+3)}, 0x00020000")

    def loader(self):
        a = self.a
        vX, vW, vB, vP, vT = 10, 14, 20, 21, 22
        sWK, sKX, sKW, sXB, sF = 85, 26, 27, 3, sT5
        a(f"s_and_b32 {s(sWK)}, {s(sWAVE)}, 3")
        a("v_lshrrev_b32 v2, 3, v1\nv_and_b32 v3, 7, v1\nv_lshrrev_b32 v4, 4, v1")
        a(f"s_and_b32 {s(sT0)}, {s(sWK)}, 1\ns_lshl_b32 {s(sT0)}, {s(sT0)}, 2\ns_lshl_b32 {s(sT1)}, {s(sWK)}, 3")
        a(f"v_add_u32 v5, {s(sT0)}, v4\nv_xor_b32 v5, v3, v5\nv_lshlrev_b32 v5, 4, v5")
        a(f"v_add_u32 v6, {s(sT1)}, v2")
        a(f"v_lshl_add_u32 {v(vX)}, v6, 10, v5")
        for m in range(1, 4): a(f"v_add_u32 {v(vX+m)}, {m*32768}, {v(vX)}")
        a("v_and_b32 v7, 1, v4\nv_lshlrev_b32 v7, 2, v7\nv_xor_b32 v7, v3, v7\nv_lshlrev_b32 v7, 4, v7")
        a(f"v_mul_u32_u24 v8, {s(sSTR)}, v6")
        a(f"s_lshl_b32 {s(sT2)}, {s(sSTR)}, 5\nv_mov_b32 v2, {hx(OOB)}")
        for p in range(3):
            a(f"v_add_u32 v9, {s(sC0+p)}, v7\nv_cmp_gt_u32 vcc, {s(sSTR)}, v9\nv_add_u32 v9, v8, v9\nv_add_u32 v3, {s(sT2)}, v9")
            a(f"v_cndmask_b32 {v(vW+2*p)}, v2, v9, vcc\nv_cndmask_b32 {v(vW+2*p+1)}, v2, v3, vcc")
        a(f"s_lshl_b32 {s(sWK)}, {s(sWK)}, 10\ns_lshl_b32 {s(sXB)}, {s(sI)}, 17\ns_lshl_b32 {s(sT3)}, {s(sSTR)}, 6")
        self.srds("loader")
        vm = Cnt(a, "vmcnt", 63)
        def stage(st):
            base = SLOT[st % 3]
            a(f"s_lshl_b32 {s(sKX)}, {s(sKST)}, 7\ns_add_u32 {s(sKX)}, {s(sKX)}, {s(sXB)}\ns_mul_i32 {s(sKW)}, {s(sKST)}, {s(sT3)}")
            for m in range(2):
                for p in range(3):
                    a(f"s_add_u32 m0, {s(sWK)}, {base + 16384 + p*8192 + m*4096}")
                    a(f"buffer_load_dwordx4 {v(vW+2*p+m)}, {s(sW,4)}, {s(sKW)} offen lds"); vm.issue(("S", st))
                for q in range(2):
                    mm = 2 * m + q
                    a(f"s_add_u32 m0, {s(sWK)}, {base + mm*4096}")
                    a(f"buffer_load_dwordx4 {v(vX+mm)}, {s(sX,4)}, {s(sKX)} offen lds"); vm.issue(("S", st))
            a(f"s_add_u32 {s(sKST)}, {s(sKST)}, 1\ns_and_b32 {s(sKST)}, {s(sKST)}, 7")
        def bstep(sig):
            mat, f = ORDER[sig]
            a(f"s_add_u32 m0, {s(sWK)}, {b_lds(sig)}\ns_mov_b32 {s(sF)}, {f*32768}")
            a(f"buffer_load_dwordx4 {v(vB)}, {s(sW2 if mat=='w2' else sWO,4)}, {s(sF)} offen lds"); vm.issue(("B", sig))
        stage(0); stage(1); stage(2)
        self.srd(sW2, 16, 1409024); self.srd(sWO, 8, 524288); self.srd(sWS, 24, WS_SIZE)
        a(f"s_lshl_b32 {s(sT0)}, {s(sCT)}, 7\nv_lshl_add_u32 {v(vB)}, v6, 10, v7\nv_add_u32 {v(vB)}, {s(sT0)}, {v(vB)}")
        a(f"v_and_b32 {v(vP)}, 15, v1\nv_lshlrev_b32 {v(vP)}, 2, {v(vP)}")
        for k in range(8):
            vm.wait(("S", k)); a("s_barrier")
            if k == 0: self.ts(1)
            if 1 <= k <= 5: stage(k + 2)
            if k == 6:
                for sig in range(0, 7): bstep(sig)
            if k == 7:
                for sig in range(7, 15): bstep(sig)
        a("s_barrier")
        self.ts(2)
        for sig in range(15, 37): bstep(sig)
        a(f"v_mov_b32 {v(vT)}, {SC_NONCE}\nds_read_b32 {v(vT)}, {v(vT)}\ns_waitcnt lgkmcnt(0)\nv_readfirstlane_b32 {s(sNONCE)}, {v(vT)}")
        sFH, sFO = 26, 27
        a(f"s_lshl_b32 {s(sT0)}, {s(sI)}, 1\ns_add_u32 {s(sT0)}, {s(sT0)}, {s(sHF)}")
        a(f"s_mul_i32 {s(sFH)}, {s(sT0)}, 384\ns_add_u32 {s(sFH)}, {s(sFH)}, {WS_FH}")
        a(f"s_lshl_b32 {s(sFO)}, {s(sT0)}, 7\ns_add_u32 {s(sFO)}, {s(sFO)}, {WS_FO}")
        vm.wait_all()
        self.ts(3)
        if self.stop == "p1":
            self.ts_flush(); a("s_endpgm"); return
        def pollw0(soff):
            L = self.lab("nopoll")
            a(f"s_cmp_lg_u32 {s(sWK)}, 0\ns_cbranch_scc1 {L}")
            self.poll(vP, vT, soff)
            a.label(L)
        pollw0(sFH); a("s_barrier")
        self.ts(4)
        a(f"s_add_u32 {s(sFH)}, {s(sFH)}, 128"); pollw0(sFH); a("s_barrier")
        for sig in range(37, 44): bstep(sig)
        a(f"s_add_u32 {s(sFH)}, {s(sFH)}, 128"); pollw0(sFH); a("s_barrier")
        for sig in range(44, 54): bstep(sig)
        pollw0(sFO); vm.wait(("B", 43)); a("s_barrier")
        self.ts(5)
        for sig in range(54, 59): bstep(sig)
        vm.wait(("B", 53)); a("s_barrier")
        vm.wait_all(); a("s_barrier")
        a("s_barrier")
        self.ts(6)
        self.ts_flush()
        a("s_endpgm")

    ACC = 160
    XF = 16
    WF = 32
    CS = 56
    SEL = 68
    vXA, vXB, vWE, vWO = 72, 76, 80, 83
    GR = 88
    SG = 92
    B1 = 100
    IDN = 104
    XS = 108
    GC = 116
    vSTA, vSTG, vNZ = 120, 121, 122
    TMP = 124
    def acc(self, p, rb): return self.ACC + 32 * p + 16 * rb

    def compute_setup(self):
        a = self.a; G = self
        a.label("L_compute")
        a("v_and_b32 v2, 31, v1\nv_lshrrev_b32 v3, 5, v1\nv_lshrrev_b32 v4, 4, v1\nv_and_b32 v5, 15, v1")
        a(f"s_lshl_b32 {s(sT0)}, {s(sHF)}, 3\ns_add_u32 {s(sT0)}, {s(sT0)}, {s(sCT)}\ns_lshl_b32 {s(sT0)}, {s(sT0)}, 3")
        a(f"s_lshl_b32 {s(sT1)}, {s(sI)}, 7\ns_add_u32 {s(sT0)}, {s(sT0)}, {s(sT1)}\ns_lshl_b32 {s(sT2)}, {s(sWAVE)}, 1\ns_add_u32 {s(sT0)}, {s(sT0)}, {s(sT2)}")
        a(f"v_add_u32 v6, {s(sT0)}, v3\nv_lshlrev_b32 v7, 4, v2\nv_lshl_add_u32 v7, v6, 10, v7")
        a(f"v_mov_b32 {v(G.vNZ)}, 0")
        self.srds("compute")
        T = G.TMP
        a(f"buffer_load_dwordx4 {v(T,4)}, v7, {s(sX,4)}, 0 offen\nbuffer_load_dwordx4 {v(T+4,4)}, v7, {s(sX,4)}, 0 offen offset:512")
        self.srd(sDBG, 22, 256)
        L = self.lab("non")
        a(f"s_or_b32 {s(sT3)}, s2, {s(sWAVE)}\ns_cmp_lg_u32 {s(sT3)}, 0\ns_cbranch_scc1 {L}")
        a(f"s_memrealtime {s(sM,2)}")
        nt = sM
        a(f"s_waitcnt lgkmcnt(0)\ns_or_b32 {s(sT3)}, {s(nt)}, 1\nv_mov_b32 v8, {s(sT3)}\ns_mov_b64 exec, 1")
        a(f"buffer_store_dword v8, {v(G.vNZ)}, {s(sDBG,4)}, 0 offen sc1\ns_mov_b64 exec, -1")
        a.label(L)
        self.srd(sWS, 24, WS_SIZE); self.srd(sB1, 14, 2752)
        a(f"v_lshlrev_b32 v8, 4, v6\nv_mov_b32 v9, {hx(OOB)}\nv_cmp_eq_u32 vcc, 0, v2\nv_add_u32 v8, {WS_ST}, v8\nv_cndmask_b32 {v(G.vSTA)}, v9, v8, vcc")
        a(f"s_lshl_b32 {s(sT2)}, {s(sRH)}, 6\ns_add_u32 {s(sT1)}, {s(sT1)}, {s(sT2)}\nv_add_u32 v8, {s(sT1)}, v2\nv_lshlrev_b32 v8, 4, v8\nv_add_u32 {v(G.vSTG)}, {WS_ST}, v8")
        a(f"s_lshl_b32 {s(sT2)}, {s(sCH)}, 6\ns_lshl_b32 {s(sT3)}, {s(sTYPE)}, 31\ns_xor_b32 {s(sT3)}, {s(sT3)}, {hx(OOB)}\ns_or_b32 {s(sT2)}, {s(sT2)}, {s(sT3)}")
        a(f"v_lshl_add_u32 v8, v2, 1, {s(sT2)}")
        for p in range(3):
            a(f"v_add_u32 v9, {s(sC0+p)}, v8\nbuffer_load_ushort {v(G.B1+p)}, v9, {s(sB1,4)}, 0 offen")
        a("v_bfe_u32 v8, v1, 1, 3")
        a(f"s_lshl_b32 {s(sT2)}, {s(sRH)}, 13\nv_lshl_add_u32 v9, v2, 7, {s(sT2)}")
        for tau in range(4):
            a(f"s_xor_b32 {s(sT3)}, {s(sRH)}, {tau}\ns_lshl_b32 {s(sT3)}, {s(sT3)}, 1")
            a(f"v_add_u32 v10, {s(sT3)}, v3\nv_xor_b32 v10, v10, v8\nv_lshl_add_u32 {v(G.vXA+tau)}, v10, 4, v9\nv_add_u32 {v(G.vXB+tau)}, {SLOT[2]}, {v(G.vXA+tau)}")
        a("v_lshrrev_b32 v8, 2, v5\nv_lshl_add_u32 v8, v3, 3, v8\nv_lshlrev_b32 v8, 7, v8")
        a("v_and_b32 v9, 1, v4\nv_lshlrev_b32 v9, 1, v9\nv_bfe_u32 v10, v5, 1, 1\nv_add_u32 v9, v9, v10")
        a("v_lshrrev_b32 v10, 3, v5\nv_lshlrev_b32 v10, 2, v10\nv_xor_b32 v9, v9, v10")
        a("v_and_b32 v10, 1, v5\nv_lshlrev_b32 v10, 3, v10\nv_add_u32 v8, v8, v10")
        a(f"s_xor_b32 {s(sT3)}, {s(sTYPE)}, 1\ns_and_b32 {s(sT3)}, {s(sT3)}, {s(sRH)}\ns_lshl_b32 {s(sT3)}, {s(sT3)}, 1")
        a(f"s_lshl_b32 {s(sT2)}, {s(sCH)}, 2\ns_or_b32 {s(sT2)}, {s(sT2)}, {s(sT3)}\nv_xor_b32 v10, {s(sT2)}, v9\nv_lshl_add_u32 v10, v10, 4, v8")
        a(f"s_lshl_b32 {s(sT2)}, {s(sRH)}, 11")
        for sl in range(3):
            a(f"s_add_u32 {s(sT4)}, {s(sT2)}, {SLOT[sl]+16384}\ns_sub_u32 {s(sT5)}, {SLOT[sl]+16384}, {s(sT2)}")
            a(f"v_add_u32 {v(G.vWE+sl)}, {s(sT4)}, v10\nv_add_u32 {v(G.vWO+sl)}, {s(sT5)}, v10")
        a(f"v_lshrrev_b32 v8, 2, v5\nv_xor_b32 v8, v8, v4\nv_and_b32 v8, 1, v8\nv_cmp_eq_u32 vcc, 0, v8\nv_mov_b32 v9, 0x3f803f80")
        for q in range(4): a(f"v_cndmask_b32 {v(G.SEL+q)}, 0, v9, vcc")
        a("v_lshlrev_b32 v8, 2, v3\nv_sub_u32 v8, v2, v8\nv_mov_b32 v9, 0x3f80\nv_mov_b32 v10, 0x3f800000")
        for q, e in enumerate((0, 2, 8, 10)):
            a(f"v_cmp_eq_u32 vcc, {e}, v8\nv_cndmask_b32 v11, 0, v9, vcc\nv_cmp_eq_u32 vcc, {e+1}, v8\nv_cndmask_b32 {v(G.IDN+q)}, v11, v10, vcc")
        a(f"v_lshlrev_b32 v8, 2, v5\nv_add_u32 v8, {SC_FLAG}, v8\nds_write_b32 v8, {v(G.vNZ)}")
        a(f"buffer_load_dword {v(G.GR+3)}, {v(G.vNZ)}, {s(sDBG,4)}, 0 offen sc1")
        a("s_waitcnt vmcnt(4)")
        U = T + 8
        for q in range(8):
            a(f"v_lshlrev_b32 {v(U+2*q)}, 16, {v(T+q)}\nv_and_b32 {v(U+2*q+1)}, 0xffff0000, {v(T+q)}")
        for q in range(8): a(f"v_add_f32 {v(T+q)}, {v(U+2*q)}, {v(U+2*q+1)}")
        for w in (4, 2, 1):
            for q in range(w): a(f"v_add_f32 {v(T+q)}, {v(T+q)}, {v(T+q+w)}")
        def red32(r, t):
            for m in ("quad_perm:[1,0,3,2]", "quad_perm:[2,3,0,1]", "row_half_mirror", "row_mirror"):
                a(f"v_add_f32_dpp {v(r)}, {v(r)}, {v(r)} {m} row_mask:0xf bank_mask:0xf")
            a(f"v_mov_b32 {v(t)}, {v(r)}\nv_permlane16_swap_b32 {v(r)}, {v(t)}\nv_add_f32 {v(r)}, {v(r)}, {v(t)}")
        red32(T, T + 1)
        a(f"v_mul_f32 {v(G.GR)}, {fl(1/512)}, {v(T)}")
        for q in range(16): a(f"v_sub_f32 {v(U+q)}, {v(U+q)}, {v(G.GR)}")
        for q in range(4): a(f"v_mul_f32 {v(T+q)}, {v(U+q)}, {v(U+q)}")
        for q in range(4, 16): a(f"v_fmac_f32 {v(T+q%4)}, {v(U+q)}, {v(U+q)}")
        a(f"v_add_f32 {v(T)}, {v(T)}, {v(T+1)}\nv_add_f32 {v(T+2)}, {v(T+2)}, {v(T+3)}\nv_add_f32 {v(T)}, {v(T)}, {v(T+2)}")
        red32(T, T + 1)
        a(f"v_mov_b32 {v(T+1)}, {fl(1e-5)}\nv_fmac_f32 {v(T+1)}, {fl(1/512)}, {v(T)}")
        a(f"v_rsq_f32 {v(G.GR+1)}, {v(T+1)}\nv_mul_f32 {v(G.GR+2)}, {v(T+1)}, {v(G.GR+1)}")
        a(f"s_cmp_eq_u32 {s(sTYPE)}, 0\ns_cbranch_scc0 L_typeB")

    def reads(self, gi):
        G = self; st, tau = divmod(gi, 4); b = gi & 1; sl = st % 3
        out = []
        xa = (G.vXB if sl == 2 else G.vXA) + tau; xo = SLOT[1] if sl == 1 else 0
        wa = (G.vWO if tau & 1 else G.vWE) + sl
        def wr(p): return [f"ds_read_b64_tr_b16 {v(G.WF+12*b+4*p+2*q,2)}, {v(wa)} offset:{p*8192+tau*2048+q*512}" for q in range(2)]
        def xr(rb): return [f"ds_read_b128 {v(G.XF+8*b+4*rb,4)}, {v(xa)} offset:{xo+rb*4096}"]
        return xr(0) + wr(0) + xr(1) + wr(1) + wr(2)

    def mainloop(self, typ):
        a = self.a; G = self; T = G.TMP
        a("s_waitcnt lgkmcnt(0)\ns_barrier")
        self.ts(1)
        for r in self.reads(0): a(r)
        for gi in range(32):
            st, tau = divmod(gi, 4); b = gi & 1
            mf = []
            for p in range(3):
                for rb in range(2):
                    x = v(G.XF + 8*b + 4*rb, 4); w = v(G.WF + 12*b + 4*p, 4); c = v(G.acc(p, rb), 16)
                    A, B = (x, w) if (typ == "A" and p < 2) else (w, x)
                    mf.append(f"v_mfma_f32_32x32x16_bf16 {c}, {A}, {B}, {c if gi else 0}")
            cs = []
            if tau % 2 == 0:
                cs = [f"v_mfma_f32_16x16x32_bf16 {v(G.CS+4*p,4)}, {v(G.SEL,4)}, {v(G.WF+12*b+4*p,4)}, {v(G.CS+4*p,4) if gi else 0}" for p in range(3)]
            rd = self.reads(gi + 1) if gi < 31 else []
            fill = self.fillers(typ, gi)
            a("s_waitcnt lgkmcnt(0)")
            a(mf[0])
            if gi == 31:
                a(f"v_lshlrev_b32 v9, 2, v2\ns_mul_i32 {s(sT0)}, {s(sWAVE)}, 384\ns_add_u32 {s(sT0)}, {s(sT0)}, {SC_CS}\nv_add_u32 v8, {s(sT0)}, v9")
                for p in range(3): a(f"ds_write_b32 v8, {v(G.CS+4*p)} offset:{128*p}")
                a(f"s_xor_b32 {s(sT0)}, {s(sWAVE)}, 2\ns_mul_i32 {s(sT0)}, {s(sT0)}, 384\ns_add_u32 {s(sT0)}, {s(sT0)}, {SC_CS}")
                if typ == "A": a("v_xor_b32 v9, 64, v9")
                a(f"v_add_u32 v8, {s(sT0)}, v9")
                a(mf[1])
                a("s_waitcnt lgkmcnt(0)\ns_barrier")
                for p in range(3): a(f"ds_read_b32 {v(G.CS+4*p+1)}, v8 offset:{128*p}")
                for m in mf[2:]: a(m)
                continue
            if tau == 3: a("s_barrier")
            slots = [rd[0:3], rd[3:6], rd[6:8], [], []]
            nf = len(fill); per = (nf + 4) // 5
            for k in range(5):
                for r in slots[k]: a(r)
                for f in fill[k*per:(k+1)*per]: a(f)
                if k == 3:
                    for c in cs: a(c)
                a(mf[k + 1])
        self.ts(2)

    def fillers(self, typ, gi):
        G = self; T = G.TMP; out = []
        if gi == 5:
            L = self.lab("nonce"); R = self.lab("nonceok")
            out += [f"s_waitcnt vmcnt(0)\nv_readfirstlane_b32 {s(sNONCE)}, {v(G.GR+3)}\ns_cmp_eq_u32 {s(sNONCE)}, 0\ns_cbranch_scc1 {L}\n{R}:",
                    f"buffer_store_dwordx4 {v(G.GR,4)}, {v(G.vSTA)}, {s(sWS,4)}, 0 offen sc1",
                    f"v_mov_b32 v8, {SC_NONCE}\nds_write_b32 v8, {v(G.GR+3)}"]
            X = self.lab("noncex")
            self.tail.append(f"""{L}:
s_mov_b32 {s(sSPIN)}, 0
{X}:
buffer_load_dword {v(G.GR+3)}, {v(G.vNZ)}, {s(sDBG,4)}, 0 offen sc1
s_add_u32 {s(sSPIN)}, {s(sSPIN)}, 1
s_waitcnt vmcnt(0)
v_readfirstlane_b32 {s(sNONCE)}, {v(G.GR+3)}
s_cmp_gt_u32 {s(sSPIN)}, {SPIN_MAX}
s_cbranch_scc1 {R}
s_cmp_eq_u32 {s(sNONCE)}, 0
s_cbranch_scc1 {X}
s_branch {R}""")
        if gi == 20:
            out += [f"buffer_load_dwordx4 {v(G.SG+4*rb,4)}, {v(G.vSTG)}, {s(sWS,4)}, 0 offen offset:{512*rb} sc1" for rb in range(2)]
        if gi == 25:
            L = self.lab("st"); R = self.lab("stok")
            chk = f"v_cmp_ne_u32 vcc, {s(sNONCE)}, {v(G.SG+3)}\nv_cmp_ne_u32 {s(sM,2)}, {s(sNONCE)}, {v(G.SG+7)}\ns_or_b64 vcc, vcc, {s(sM,2)}"
            out += [f"s_waitcnt vmcnt(0)\n{chk}\ns_cbranch_vccnz {L}\n{R}:"]
            X = self.lab("stx")
            self.tail.append(f"""{L}:
s_mov_b32 {s(sSPIN)}, 0
{X}:
buffer_load_dwordx4 {v(G.SG,4)}, {v(G.vSTG)}, {s(sWS,4)}, 0 offen sc1
buffer_load_dwordx4 {v(G.SG+4,4)}, {v(G.vSTG)}, {s(sWS,4)}, 0 offen offset:512 sc1
s_add_u32 {s(sSPIN)}, {s(sSPIN)}, 1
s_cmp_gt_u32 {s(sSPIN)}, {SPIN_MAX}
s_waitcnt vmcnt(0)
s_cbranch_scc1 {R}
{chk}
s_cbranch_vccnz {X}
s_branch {R}""")
        if gi in (26, 27):
            rb = gi - 26; mu, r, sd = G.SG + 4*rb, G.SG + 4*rb + 1, G.SG + 4*rb + 2; X = G.XS + 4*rb
            out += [f"v_cvt_pk_bf16_f32 {v(T)}, -{v(mu)}, -{v(mu)}",
                    f"v_cvt_pk_bf16_f32 {v(T+1)}, {v(sd)}, {v(sd)}",
                    f"v_and_b32 {v(T+2)}, 0xffff0000, {v(T)}",
                    f"v_and_b32 {v(T+3)}, 0xffff0000, {v(T+1)}",
                    f"v_cmp_gt_u32 vcc, 32, v1",
                    f"v_sub_f32 {v(T+2)}, -{v(mu)}, {v(T+2)}",
                    f"v_sub_f32 {v(T+4)}, {v(sd)}, {v(T+3)}",
                    f"v_cvt_pk_bf16_f32 {v(T+2)}, {v(T+2)}, {v(T+3)}",
                    f"v_cvt_pk_bf16_f32 {v(T+4)}, {v(T+4)}, 0",
                    f"v_cndmask_b32 {v(X)}, 0, {v(T)}, vcc",
                    f"v_cndmask_b32 {v(X+1)}, 0, {v(T+2)}, vcc",
                    f"v_cndmask_b32 {v(X+2)}, 0, {v(T+4)}, vcc",
                    f"v_mov_b32 {v(X+3)}, 0"]
        if gi == 28:
            k0 = -2.0 * 1.4426950408889634 * 0.7978845608028654
            for rb in range(2):
                r, sd = G.SG + 4*rb + 1, G.SG + 4*rb + 2
                if typ == "B":
                    out += [f"v_mul_f32 {v(G.GC+rb)}, {fl(k0)}, {v(r)}", f"v_mul_f32 {v(T)}, {v(r)}, {v(r)}",
                            f"v_mul_f32 {v(T)}, {fl(0.044715)}, {v(T)}", f"v_mul_f32 {v(G.GC+2+rb)}, {v(T)}, {v(G.GC+rb)}"]
                else:
                    out += [f"v_mul_f32 {v(G.GC+rb)}, {fl(1.4426950408889634)}, {v(r)}", f"v_mul_f32 {v(G.GC+2+rb)}, {fl(1e-6)}, {v(sd)}"]
            if typ == "A":
                out += [f"s_lshl_b32 {s(sT0)}, {s(sWAVE)}, 8\ns_add_u32 {s(sT0)}, {s(sT0)}, {SC_R}\nv_lshl_add_u32 v8, v2, 2, {s(sT0)}",
                        f"ds_write_b32 v8, {v(G.SG+1)}", f"ds_write_b32 v8, {v(G.SG+5)} offset:128"]
            else:
                out += [f"v_lshlrev_b32 {v(G.B1+p)}, 16, {v(G.B1+p)}" for p in range(3)]
        return out

    def fixup(self, typ):
        a = self.a; G = self; T = G.TMP
        a("s_waitcnt lgkmcnt(0)")
        for p in range(3):
            c = G.CS + 4*p; F = T + 4*p
            a(f"v_add_f32 {v(c)}, {v(c)}, {v(c+1)}")
            a(f"v_cvt_pk_bf16_f32 {v(c+1)}, {v(c)}, {v(c)}")
            a(f"v_and_b32 {v(c+1)}, 0xffff0000, {v(c+1)}")
            a(f"v_sub_f32 {v(c+2)}, {v(c)}, {v(c+1)}")
            a(f"v_cvt_pk_bf16_f32 {v(F)}, {v(c+1)}, {v(c+2)}")
            if typ == "B":
                a(f"v_cvt_pk_bf16_f32 {v(F+1)}, {v(c+1)}, {v(G.B1+p)}\nv_cvt_pk_bf16_f32 {v(F+2)}, {v(G.B1+p)}, 0")
            else:
                a(f"v_cvt_pk_bf16_f32 {v(F+1)}, {v(c+1)}, 0\nv_mov_b32 {v(F+2)}, 0")
            a(f"v_mov_b32 {v(F+3)}, 0")
            for rb in range(2):
                x = v(G.XS + 4*rb, 4); w = v(F, 4); cc = v(G.acc(p, rb), 16)
                A, B = (x, w) if (typ == "A" and p < 2) else (w, x)
                a(f"v_mfma_f32_32x32x16_bf16 {cc}, {A}, {B}, {cc}")

    def ho_base(self, dst, sig_imm):
        a = self.a
        a(f"s_lshl_b32 {s(dst)}, {s(sI)}, 1\ns_add_u32 {s(dst)}, {s(dst)}, {s(sRH)}\ns_mul_i32 {s(dst)}, {s(dst)}, {4*59}")
        a(f"s_lshl_b32 {s(sT0)}, {s(sG)}, 1\ns_add_u32 {s(sT0)}, {s(sT0)}, {s(sCH)}\ns_add_u32 {s(dst)}, {s(dst)}, {s(sT0)}")
        a(f"s_add_u32 {s(dst)}, {s(dst)}, {sig_imm}\ns_lshl_b32 {s(dst)}, {s(dst)}, 10")

    def flag_store(self, soff, vt):
        a = self.a
        a(f"v_mov_b32 {v(vt)}, {s(sNONCE)}\ns_mov_b64 exec, 1\nbuffer_store_dword {v(vt)}, {v(self.vNZ)}, {s(sWS,4)}, {s(soff)} offen sc1\ns_mov_b64 exec, -1")

    def epilogue_B(self):
        a = self.a; G = self; T = G.TMP
        sHB, sFL, sO = 26, 27, 3
        vO = 8
        self.fixup("B")
        self.ho_base(sHB, 0)
        a(f"s_lshl_b32 {s(sT1)}, {s(sI)}, 1\ns_add_u32 {s(sT1)}, {s(sT1)}, {s(sRH)}\ns_mul_i32 {s(sFL)}, {s(sT1)}, 384\ns_lshl_b32 {s(sT1)}, {s(sT0)}, 2\ns_add_u32 {s(sFL)}, {s(sFL)}, {s(sT1)}\ns_add_u32 {s(sFL)}, {s(sFL)}, {WS_FH}")
        a(f"s_mul_i32 {s(sT1)}, {s(sG)}, 6\ns_add_u32 {s(sT1)}, {s(sT1)}, {s(sCH)}\nv_lshlrev_b32 v11, 4, v1")
        for p in range(3):
            a(f"s_cmp_lt_u32 {s(sT1)}, {43-2*p}\ns_cselect_b32 {s(sT2)}, 0, {hx(OOB)}\nv_or_b32 {v(vO+p)}, {s(sT2)}, v11")
        vm = Cnt(a, "vmcnt", 63)
        t = T + 12; pk = [T + 20, T + 24]; n = 0
        for p in range(3):
            for rb in range(2):
                A, B, sd = G.GC + rb, G.GC + 2 + rb, G.SG + 4*rb + 2
                for kh in range(2):
                    c = G.acc(p, rb) + 8*kh; P = pk[n & 1]; n += 1
                    for j in range(8): a(f"v_mul_f32 {v(t+j)}, {v(c+j)}, {v(c+j)}")
                    for j in range(8): a(f"v_fma_f32 {v(t+j)}, {v(t+j)}, {v(B)}, {v(A)}")
                    for j in range(8): a(f"v_mul_f32 {v(t+j)}, {v(c+j)}, {v(t+j)}")
                    for j in range(8): a(f"v_exp_f32 {v(t+j)}, {v(t+j)}")
                    for j in range(8): a(f"v_fma_f32 {v(t+j)}, {v(t+j)}, {v(sd)}, {v(sd)}")
                    for j in range(8): a(f"v_rcp_f32 {v(t+j)}, {v(t+j)}")
                    for j in range(8): a(f"v_mul_f32 {v(t+j)}, {v(c+j)}, {v(t+j)}")
                    for j in range(4): a(f"v_cvt_pk_bf16_f32 {v(P+j)}, {v(t+2*j)}, {v(t+2*j+1)}")
                    a(f"s_add_u32 {s(sO)}, {s(sHB)}, {(SIG0[p] + (2*rb+kh)*59)*1024}")
                    a(f"buffer_store_dwordx4 {v(P,4)}, {v(vO+p)}, {s(sWS,4)}, {s(sO)} offen sc1"); vm.issue(("h", p))
                    if p > 0 and rb == 1 and kh == 0:
                        vm.wait(("h", p - 1)); self.flag_store(sFL, 11); vm.issue("f")
                        a(f"s_add_u32 {s(sFL)}, {s(sFL)}, 128")
        self.ts(3)
        self.p2_setup()
        a("s_waitcnt vmcnt(8)"); self.flag_store(sFL, 11)

    def pair_recv(self, kind, reads):
        a = self.a; L = self.lab("pw"); X = self.lab("pwx")
        a(f"s_xor_b32 {s(sT0)}, {s(sWAVE)}, 2\ns_lshl_b32 {s(sT0)}, {s(sT0)}, 3\ns_add_u32 {s(sT0)}, {s(sT0)}, {SC_FLAG+4*kind}\nv_mov_b32 v12, {s(sT0)}\ns_mov_b32 {s(sSPIN)}, 0")
        a.label(L)
        a("ds_read_b32 v13, v12")
        for r in reads: a(r)
        a(f"s_add_u32 {s(sSPIN)}, {s(sSPIN)}, 1\ns_cmp_gt_u32 {s(sSPIN)}, {SPIN_MAX}\ns_waitcnt lgkmcnt(0)\ns_cbranch_scc1 {X}")
        a(f"v_cmp_eq_u32 vcc, 0, v13\ns_cbranch_vccnz {L}")
        a.label(X)
    def pair_send(self, kind):
        a = self.a
        a(f"s_lshl_b32 {s(sT0)}, {s(sWAVE)}, 3\ns_add_u32 {s(sT0)}, {s(sT0)}, {SC_FLAG+4*kind}\nv_mov_b32 v12, {s(sT0)}\nv_mov_b32 v13, 1\nds_write_b32 v12, v13")

    def epilogue_A(self):
        a = self.a; G = self; T = G.TMP
        RR = G.XF
        a(f"s_lshl_b32 {s(sT0)}, {s(sWAVE)}, 8\ns_add_u32 {s(sT0)}, {s(sT0)}, {SC_R}\nv_lshl_add_u32 v9, v3, 4, {s(sT0)}")
        self.fixup("A")
        for rb in range(2):
            for q in range(4): a(f"ds_read_b128 {v(RR+16*rb+4*q,4)}, v9 offset:{128*rb+32*q}")
        ON = 84
        for q in range(4): a(f"v_mov_b32 {v(ON+q)}, 0x3f803f80")
        a(f"v_mov_b32 v10, {fl(1e-6)}\nv_mov_b32 v11, {fl(1.4426950408889634)}")
        a("s_waitcnt lgkmcnt(0)")
        t = T + 16; u = T + 24
        PK, PV = 48, 72
        KV, Z = G.acc(0, 0), G.acc(1, 0)
        n = 0
        mf = []
        for rb in range(2):
            for kh in range(2):
                c = G.acc(0, rb) + 8*kh; cv = G.acc(1, rb) + 8*kh; r = RR + 16*rb + 8*kh
                P = PK + 4*(n & 1); Q = PV + 4*(n & 1)
                for j in range(8): a(f"v_mul_f32 {v(t+j)}, {v(c+j)}, {v(r+j)}")
                for j in range(8): a(f"v_mul_f32 {v(u+j)}, v11, {v(t+j)}")
                for j in range(8): a(f"v_exp_f32 {v(u+j)}, {v(u+j)} clamp")
                for j in range(8): a(f"v_max_f32 {v(t+j)}, v10, {v(t+j)}")
                for j in range(8): a(f"v_add_f32 {v(t+j)}, {v(t+j)}, {v(u+j)}")
                for j in range(8): a(f"v_mul_f32 {v(u+j)}, {v(cv+j)}, {v(r+j)}")
                for j in range(4): a(f"v_cvt_pk_bf16_f32 {v(P+j)}, {v(t+2*j)}, {v(t+2*j+1)}")
                for j in range(4): a(f"v_cvt_pk_bf16_f32 {v(Q+j)}, {v(u+2*j)}, {v(u+2*j+1)}")
                n += 1
                a(f"v_mfma_f32_32x32x16_bf16 {v(G.KVA,16)}, {v(P,4)}, {v(Q,4)}, {v(G.KVA,16) if n>1 else 0}")
                a(f"v_mfma_f32_32x32x16_bf16 {v(G.ZZ,16)}, {v(P,4)}, {v(ON,4)}, {v(G.ZZ,16) if n>1 else 0}")
        sREC, sFL, sHD = 26, 27, 3
        a(f"s_lshl_b32 {s(sHD)}, {s(sG)}, 1\ns_add_u32 {s(sHD)}, {s(sHD)}, {s(sCH)}\ns_lshl_b32 {s(sHD)}, {s(sHD)}, 1\ns_add_u32 {s(sHD)}, {s(sHD)}, {s(sRH)}")
        a(f"s_mul_i32 {s(sREC)}, {s(sHD)}, 10240\ns_add_u32 {s(sREC)}, {s(sREC)}, {WS_KV}")
        a(f"s_lshl_b32 {s(sFL)}, {s(sHD)}, 7\ns_add_u32 {s(sFL)}, {s(sFL)}, {WS_FK}")
        a(f"v_cmp_gt_u32 {s(sM,2)}, 16, v2")
        a("v_lshl_add_u32 v8, v3, 4, v2\nv_lshlrev_b32 v8, 4, v8\nv_lshlrev_b32 v9, 4, v3\nv_add_u32 v9, 512, v9")
        a(f"v_cndmask_b32 v14, v9, v8, {s(sM,2)}")
        a(f"v_mov_b32 v8, {hx(OOB)}\nv_cmp_ge_u32 vcc, 16, v2\nv_cndmask_b32 v15, v8, v14, vcc")
        a(f"s_lshl_b32 {s(sT0)}, {s(sWAVE)}, 11\ns_add_u32 {s(sT0)}, {s(sT0)}, {SC_KVX}\nv_xor_b32 v8, 16, v1\nv_lshl_add_u32 v8, v8, 4, {s(sT0)}")
        a(f"s_xor_b32 {s(sT0)}, {s(sT0)}, 4096\nv_lshl_add_u32 v9, v1, 4, {s(sT0)}")
        for j in range(8): a(f"v_cndmask_b32 {v(u+j)}, {v(G.KVA+8+j)}, {v(G.ZZ+8+j)}, {s(sM,2)}")
        a(f"ds_write_b128 v8, {v(u,4)}\nds_write_b128 v8, {v(u+4,4)} offset:1024")
        self.pair_send(0)
        for j in range(8): a(f"v_cndmask_b32 {v(t+j)}, {v(G.ZZ+j)}, {v(G.KVA+j)}, {s(sM,2)}")
        self.pair_recv(0, [f"ds_read_b128 {v(u,4)}, v9", f"ds_read_b128 {v(u+4,4)}, v9 offset:1024"])
        for j in range(8): a(f"v_add_f32 {v(t+j)}, {v(t+j)}, {v(u+j)}")
        for j in range(4): a(f"v_cvt_pk_bf16_f32 {v(PK+j)}, {v(t+2*j)}, {v(t+2*j+1)}")
        a(f"s_mul_i32 {s(sT1)}, {s(sI)}, 640\ns_add_u32 {s(sT1)}, {s(sT1)}, {s(sREC)}")
        a(f"buffer_store_dwordx4 {v(PK,4)}, v15, {s(sWS,4)}, {s(sT1)} offen sc1")
        PQ = RR
        for rb in range(2):
            rl, ep, r = G.GC + rb, G.GC + 2 + rb, G.SG + 4*rb + 1
            for hh in range(2):
                c = G.acc(2, rb) + 8*hh
                for j in range(8): a(f"v_mul_f32 {v(u+j)}, {v(rl)}, {v(c+j)}")
                for j in range(8): a(f"v_exp_f32 {v(u+j)}, {v(u+j)} clamp")
                for j in range(8): a(f"v_max_f32 {v(t+j)}, {v(ep)}, {v(c+j)}")
                for j in range(8): a(f"v_fmac_f32 {v(u+j)}, {v(t+j)}, {v(r)}")
                for j in range(4): a(f"v_cvt_pk_bf16_f32 {v(PQ+8*rb+4*hh+j)}, {v(u+2*j)}, {v(u+2*j+1)}")
        a(f"s_lshl_b32 {s(sT1)}, {s(sI)}, 2\ns_add_u32 {s(sT1)}, {s(sT1)}, {s(sFL)}")
        a("s_waitcnt vmcnt(0)")
        self.flag_store(sT1, 11)
        self.ts(3)
        a("v_lshlrev_b32 v8, 2, v5")
        self.poll(8, 11, sFL)
        GA = G.ACC
        for p in range(16):
            if p % 4 == 0 and p: a(f"s_add_u32 {s(sREC)}, {s(sREC)}, 2560")
            a(f"buffer_load_dwordx4 {v(GA+4*p,4)}, v14, {s(sWS,4)}, {s(sREC)} offen offset:{640*(p%4)} sc1")
        self.ho_base(sREC, 43)
        a(f"s_lshl_b32 {s(sT1)}, {s(sI)}, 1\ns_add_u32 {s(sT1)}, {s(sT1)}, {s(sRH)}\ns_lshl_b32 {s(sFL)}, {s(sT1)}, 7\ns_lshl_b32 {s(sT1)}, {s(sT0)}, 2\ns_add_u32 {s(sFL)}, {s(sFL)}, {s(sT1)}\ns_add_u32 {s(sFL)}, {s(sFL)}, {WS_FO}")
        for p in range(16):
            a(f"s_waitcnt vmcnt({15-p})")
            a(f"v_mfma_f32_32x32x16_bf16 {v(G.KVA,16)}, {v(G.IDN,4)}, {v(GA+4*p,4)}, {v(G.KVA,16) if p else 0}")
        F = [PK, PK + 4]
        a("v_lshlrev_b32 v10, 4, v1\nv_xor_b32 v8, 4096, v9")
        for j in range(4): a(f"v_cvt_pk_bf16_f32 {v(F[0]+j)}, {v(G.KVA+2*j)}, {v(G.KVA+2*j+1)}")
        a(f"ds_write_b128 v9, {v(F[0],4)}")
        self.pair_send(1)
        O = [G.ACC + 16*k for k in range(4)]
        for rb in range(2): a(f"v_mfma_f32_32x32x16_bf16 {v(O[2*rb],16)}, {v(F[0],4)}, {v(PQ+8*rb,4)}, 0")
        self.pair_recv(1, [f"ds_read_b128 {v(F[1],4)}, v8"])
        for rb in range(2): a(f"v_mfma_f32_32x32x16_bf16 {v(O[2*rb+1],16)}, {v(F[1],4)}, {v(PQ+8*rb+4,4)}, 0")
        a(f"s_mul_i32 {s(sT2)}, {s(sRH)}, {59*1024}\ns_xor_b32 {s(sT3)}, {s(sRH)}, 1\ns_mul_i32 {s(sT3)}, {s(sT3)}, {59*1024}")
        a(f"s_add_u32 {s(sT2)}, {s(sT2)}, {s(sREC)}\ns_add_u32 {s(sT3)}, {s(sT3)}, {s(sREC)}")
        n = 0
        for hh in range(2):
            for rb in range(2):
                o = O[2*rb+hh]; P = PV + 4*(n & 1); n += 1
                a(f"v_add_f32 {v(t)}, {fl(1e-6)}, {v(o+8)}\nv_rcp_f32 {v(t)}, {v(t)}")
                a(f"s_add_u32 {s(sT4)}, {s(sT2+hh)}, {rb*118*1024}")
                for j in range(8): a(f"v_mul_f32 {v(o+j)}, {v(t)}, {v(o+j)}")
                for j in range(4): a(f"v_cvt_pk_bf16_f32 {v(P+j)}, {v(o+2*j)}, {v(o+2*j+1)}")
                a(f"buffer_store_dwordx4 {v(P,4)}, v10, {s(sWS,4)}, {s(sT4)} offen sc1")
        self.p2_setup()
        a("s_waitcnt vmcnt(8)")
        self.flag_store(sFL, 11)
    KVA = 56
    ZZ = 124

    Y, S2 = 160, 192
    AR = 16; D = 8
    BF = 48
    vBA = 72
    vA, vXC, vXP, vOUT = 78, 79, 80, 81
    XR = 224; B2 = 232
    def p2_setup(self):
        a = self.a; G = self
        self.srd(sOUT, 20, 2097152); self.srd(sB2, 18, 1024)
        sA = sKST
        a(f"s_lshl_b32 {s(sT1)}, {s(sI)}, 1\ns_add_u32 {s(sT1)}, {s(sT1)}, {s(sHF)}\ns_lshl_b32 {s(sT2)}, {s(sT1)}, 2\ns_add_u32 {s(sT2)}, {s(sT2)}, {s(sWAVE)}\ns_mul_i32 {s(sA)}, {s(sT2)}, {59*1024}")
        a(f"v_lshlrev_b32 {v(G.vA)}, 4, v1")
        a(f"v_lshrrev_b32 v8, 2, v5\nv_lshl_add_u32 v8, v3, 2, v8\ns_lshl_b32 {s(sT2)}, {s(sCH)}, 4\nv_add_u32 v8, {s(sT2)}, v8\nv_lshlrev_b32 v8, 7, v8")
        a("v_and_b32 v9, 1, v5\nv_lshl_add_u32 v8, v9, 3, v8")
        a("v_and_b32 v9, 1, v4\nv_lshlrev_b32 v9, 1, v9\nv_bfe_u32 v12, v5, 1, 1\nv_add_u32 v9, v9, v12\nv_lshrrev_b32 v12, 3, v5\nv_lshlrev_b32 v12, 2, v12\nv_xor_b32 v9, v9, v12")
        a(f"s_lshl_b32 {s(sT2)}, {s(sCH)}, 2\nv_xor_b32 v9, {s(sT2)}, v9")
        a(f"v_lshl_add_u32 {v(G.vBA)}, v9, 4, v8\nv_xor_b32 v9, 4, v9\nv_lshl_add_u32 {v(G.vBA+1)}, v9, 4, v8")
        for w in (1, 2):
            for cb in range(2): a(f"v_add_u32 {v(G.vBA+2*w+cb)}, {65536*w}, {v(G.vBA+cb)}")
        a(f"s_lshl_b32 {s(sT2)}, {s(sWAVE)}, 12\ns_add_u32 {s(sT2)}, {s(sT2)}, {XCH_Y}\nv_add_u32 {v(G.vXC)}, {s(sT2)}, {v(G.vA)}")
        a(f"s_xor_b32 {s(sT2)}, {s(sWAVE)}, 1\ns_lshl_b32 {s(sT2)}, {s(sT2)}, 12\ns_add_u32 {s(sT2)}, {s(sT2)}, {XCH_Y}\nv_add_u32 {v(G.vXP)}, {s(sT2)}, {v(G.vA)}")
        a(f"s_lshl_b32 {s(sT1)}, {s(sT1)}, 1\ns_add_u32 {s(sT1)}, {s(sT1)}, {s(sRH)}\ns_lshl_b32 {s(sT1)}, {s(sT1)}, 15")
        a(f"s_lshl_b32 {s(sT2)}, {s(sCT)}, 1\ns_add_u32 {s(sT2)}, {s(sT2)}, {s(sCH)}\ns_lshl_b32 {s(sT2)}, {s(sT2)}, 6\ns_add_u32 {s(sT1)}, {s(sT1)}, {s(sT2)}")
        a(f"v_lshl_add_u32 v8, v2, 10, {s(sT1)}\nv_lshl_add_u32 v9, v3, 3, v8\nv_lshl_add_u32 {v(G.vOUT)}, v3, 4, v8\nv_lshl_add_u32 v12, v3, 3, {s(sT2)}")
        for q in range(4): a(f"buffer_load_dwordx2 {v(G.XR+2*q,2)}, v9, {s(sX,4)}, 0 offen offset:{16*q}")
        for q in range(4): a(f"buffer_load_dwordx2 {v(G.B2+2*q,2)}, v12, {s(sB2,4)}, 0 offen offset:{16*q}")

    def phase2(self):
        a = self.a; G = self; D = G.D; sA = sKST
        a.label("L_phase2")
        vm = Cnt(a, "vmcnt", 63); lg = Cnt(a, "lgkmcnt", 15)
        def aload(sig):
            if sig >= 59: return
            if sig % 4 == 0 and sig: a(f"s_add_u32 {s(sA)}, {s(sA)}, 4096")
            a(f"buffer_load_dwordx4 {v(G.AR+4*(sig%D),4)}, {v(G.vA)}, {s(sWS,4)}, {s(sA)} offen offset:{1024*(sig%4)} sc1"); vm.issue(("A", sig))
        def breads(sig):
            if sig >= 59: return []
            base = b_lds(sig); w = base >> 16; off = base & 0xffff
            return [f"ds_read_b64_tr_b16 {v(G.BF+8*(sig%3)+4*cb+2*q,2)}, {v(G.vBA+2*w+cb)} offset:{off+1024*q}" for cb in range(2) for q in range(2)]
        def ds(x, tag): a(x); lg.issue(tag)
        self.ts(4)
        a("s_barrier")
        for sig in range(D): aload(sig)
        for sig in range(2):
            for r in breads(sig): ds(r, ("B", sig))
        T = 96; YK = 112; BB = 128; XX = 144
        work = []
        for q in range(8):
            work += [f"v_lshlrev_b32 {v(BB+2*q)}, 16, {v(G.B2+q)}", f"v_and_b32 {v(BB+2*q+1)}, 0xffff0000, {v(G.B2+q)}"]
        for q in range(8):
            work += [f"v_lshlrev_b32 {v(XX+2*q)}, 16, {v(G.XR+q)}", f"v_and_b32 {v(XX+2*q+1)}, 0xffff0000, {v(G.XR+q)}"]
        gw = []
        for half in range(2):
            o = 8 * half
            gw += [f"v_add_f32 {v(YK+o+j)}, {v(T+o+j)}, {v(G.Y+o+j)}" for j in range(8)]
            gw += [f"v_add_f32 {v(YK+o+j)}, {v(YK+o+j)}, {v(BB+o+j)}" for j in range(8)]
            gw += [f"v_mul_f32 {v(T+o+j)}, {fl(-1.4426950408889634)}, {v(YK+o+j)}" for j in range(8)]
            gw += [f"v_exp_f32 {v(T+o+j)}, {v(T+o+j)}" for j in range(8)]
            gw += [f"v_add_f32 {v(T+o+j)}, 1.0, {v(T+o+j)}" for j in range(8)]
            gw += [f"v_rcp_f32 {v(T+o+j)}, {v(T+o+j)}" for j in range(8)]
            gw += [f"v_mul_f32 {v(YK+o+j)}, {v(YK+o+j)}, {v(T+o+j)}" for j in range(8)]
        for sig in range(59):
            acc = G.Y if sig < 43 else G.S2; first = sig in (0, 43)
            lg.wait(("B", sig)); vm.wait(("A", sig))
            A = v(G.AR + 4*(sig % D), 4)
            m = [f"v_mfma_f32_32x32x16_bf16 {v(acc+16*cb,16)}, {v(G.BF+8*(sig%3)+4*cb,4)}, {A}, {0 if first else v(acc+16*cb,16)}" for cb in range(2)]
            a(m[0])
            if sig in (6, 21, 35, 42): a("s_barrier")
            if sig == 47:
                lg.wait("yw"); a("s_barrier")
                for q in range(4): ds(f"ds_read_b128 {v(T+4*q,4)}, {v(G.vXP)} offset:{1024*q}", "yr")
            rd = breads(sig + 2)
            for r in rd[:2]: ds(r, ("B", sig + 2))
            fill = []
            if 1 <= sig <= 8: fill = work[4*(sig-1): 4*sig]
            if sig == 49: lg.wait("yr")
            if 49 <= sig <= 58: fill = gw[12*(sig-49): 12*(sig-48)]
            h = len(fill) // 2
            for f in fill[:h]: a(f)
            a(m[1])
            for r in rd[2:]: ds(r, ("B", sig + 2))
            aload(sig + D)
            for f in fill[h:]: a(f)
            if sig == 44:
                for q in range(4): ds(f"ds_write_b128 {v(G.vXC)}, {v(G.Y+16+4*q,4)} offset:{1024*q}", "yw")
        self.ts(5)
        for q in range(4): a(f"ds_write_b128 {v(G.vXC)}, {v(G.S2+16+4*q,4)} offset:{16384+1024*q}")
        a("s_waitcnt lgkmcnt(0)\ns_barrier")
        for q in range(4): a(f"ds_read_b128 {v(T+4*q,4)}, {v(G.vXP)} offset:{16384+1024*q}")
        for j in range(16): a(f"v_fmac_f32 {v(XX+j)}, {v(G.S2+j)}, {v(YK+j)}")
        for half in range(2):
            a(f"s_waitcnt lgkmcnt({2-2*half})")
            o = 8 * half; P = BB + 4 * half
            for j in range(8): a(f"v_fmac_f32 {v(XX+o+j)}, {v(T+o+j)}, {v(YK+o+j)}")
            for j in range(4): a(f"v_cvt_pk_bf16_f32 {v(P+j)}, {v(XX+o+2*j)}, {v(XX+o+2*j+1)}")
            a(f"v_permlane32_swap_b32 {v(P)}, {v(P+2)}\nv_permlane32_swap_b32 {v(P+1)}, {v(P+3)}")
            a(f"buffer_store_dwordx4 {v(P,4)}, {v(G.vOUT)}, {s(sOUT,4)}, 0 offen offset:{32*half}")
        self.ts(6)
        self.ts_flush()

    def build(self):
        a = self.a
        self.prologue()
        self.loader()
        self.compute_setup()
        self.mainloop("A"); self.epilogue_A()
        if self.stop == "p1": self.ts_flush(); a("s_endpgm")
        else: a("s_branch L_phase2")
        a.label("L_typeB")
        self.mainloop("B"); self.epilogue_B()
        if self.stop == "p1": self.ts_flush(); a("s_endpgm")
        else: self.phase2()
        a.label("L_end")
        a("s_endpgm")
        for t in self.tail: a(t)
        body = a.finalize(verbose=True)
        head = open("cdna_kernels/" + KN[:-7] + ".s.ref").read().split("; Override launch")[0]
        return head + f"""; @launch grid=(256,1,1) block=(512,1,1) lds={LDS_SIZE}
.amdgcn_target "amdgcn-amd-amdhsa--gfx950"
.text
.globl {KN}
.p2align 8
.type {KN},@function
{KN}:
{body}
.section .rodata,"a"
.p2align 6
.amdhsa_kernel {KN}
  .amdhsa_next_free_vgpr 256
  .amdhsa_next_free_sgpr 102
  .amdhsa_accum_offset 256
  .amdhsa_group_segment_fixed_size 0
  .amdhsa_kernarg_size 88
  .amdhsa_user_sgpr_count 2
  .amdhsa_user_sgpr_kernarg_segment_ptr 1
  .amdhsa_system_sgpr_workgroup_id_x 1
.end_amdhsa_kernel
"""

if __name__ == "__main__":
    import argparse
    ap = argparse.ArgumentParser()
    ap.add_argument("out"); ap.add_argument("--diag", action="store_true"); ap.add_argument("--stop")
    x = ap.parse_args()
    open(x.out, "w").write(Gen(diag=x.diag, stop=x.stop).build())
```

```python
import sys, struct
from asmlib import Asm, v, s

KN = "recurrent_scan__linear_attn_block__dense_activation_gelu__prompt_kernel"
def f2u(x): return struct.unpack("<I", struct.pack("<f", x))[0]
def hx(x): return f"0x{x & 0xffffffff:08x}"
def fl(x): return hx(f2u(x))

WS_HO = 0
WS_KV = 8 << 20
WS_ST = 9 << 20
WS_FH = 10 << 20
WS_FO = WS_FH + 0x8000
WS_FK = WS_FH + 0x10000
WS_TS = 12 << 20
WS_SIZE = 268435456
OOB = 0x80000000
SLOT = [0, 40960, 81920]
R0 = 122880
SCR = 151552
SC_NONCE = SCR
SC_FLAG = SCR + 64
SC_CS = SCR + 256
SC_R = SCR + 2048
SC_KVX = SCR + 4096
LDS_SIZE = 163840
def b_lds(sig):
    if sig < 7: return R0 + sig * 4096
    if sig < 17: return SLOT[2] + (sig - 7) * 4096
    if sig < 27: return SLOT[0] + (sig - 17) * 4096
    if sig < 37: return SLOT[1] + (sig - 27) * 4096
    return b_lds(sig - 37)
XCH_Y = SLOT[1]
XCH_S = SLOT[1] + 16384
ORDER = []
for p in range(3):
    for g in range(8):
        for ch in range(2):
            f = 6 * g + 2 * p + ch
            if f < 43: ORDER.append(("w2", f))
ORDER += [("wo", f) for f in range(16)]
assert len(ORDER) == 59
SIG0 = [0, 15, 29]
SPIN_MAX = 1 << 18

sX, sW, sW2, sWO, sWS, sDBG, sOUT, sB1, sB2 = 28, 32, 36, 40, 44, 48, 52, 56, 60
sWAVE, sI, sG, sTYPE, sHF, sCT, sKST, sRH, sCH, sNONCE, sSTR = 64, 65, 66, 67, 68, 69, 70, 71, 72, 73, 74
sT0, sT1, sT2, sT3, sT4, sT5 = 75, 76, 77, 78, 79, 80
sC0 = 81
sSPIN = 84
sM = 86
sTS = 88

class Cnt:
    def __init__(self, a, name, mx): self.a, self.name, self.mx, self.q = a, name, mx, []
    def issue(self, tag): self.q.append(tag)
    def wait(self, tag):
        if tag not in self.q: return
        k = len(self.q) - 1 - max(i for i, t in enumerate(self.q) if t == tag)
        k = min(k, self.mx)
        self.a(f"s_waitcnt {self.name}({k})")
        self.q = self.q[len(self.q) - k:] if k else []
    def wait_all(self):
        self.a(f"s_waitcnt {self.name}(0)"); self.q = []

class Gen:
    def __init__(self, diag=False, stop=None, dbgout=False):
        self.dbgout = dbgout
        self.a = Asm(); self.diag = diag; self.stop = stop; self.uid = 0; self.tail = []
    def lab(self, n): self.uid += 1; return f"L{n}_{self.uid}"
    def ts(self, k):
        if self.diag: self.a(f"{'s_memtime' if self.diag == 'cyc' else 's_memrealtime'} {s(sTS + 2 * k, 2)}")
    def ts_flush(self):
        if not self.diag: return
        a = self.a
        a("s_waitcnt lgkmcnt(0)")
        a(f"s_lshl_b32 {s(sT0)}, s2, 3\ns_add_u32 {s(sT0)}, {s(sT0)}, {s(sWAVE)}\ns_lshl_b32 {s(sT0)}, {s(sT0)}, 5\ns_add_u32 {s(sT0)}, {s(sT0)}, {WS_TS}")
        for k in range(7): a(f"v_mov_b32 v{8+k}, {s(sTS+2*k)}")
        a("v_mov_b32 v15, 0\nv_mov_b32 v7, 0")
        a("s_mov_b64 exec, 1")
        a(f"buffer_store_dwordx4 v[8:11], v7, {s(sWS,4)}, {s(sT0)} offen")
        a(f"buffer_store_dwordx4 v[12:15], v7, {s(sWS,4)}, {s(sT0)} offen offset:16")
        if self.dbgout:
            L = self.lab("dbgo")
            self.srd(sDBG, 22, 256)
            a(f"s_cmp_lg_u32 {s(sWAVE)}, 0\ns_cbranch_scc1 {L}\ns_and_b32 {s(sT0)}, s2, 0xdf\ns_cmp_lg_u32 {s(sT0)}, 0\ns_cbranch_scc1 {L}")
            for k in range(6, -1, -1): a(f"v_subrev_u32 v{8+k}, {s(sTS)}, v{8+k}")
            a(f"s_add_u32 {s(sT0)}, s2, 4")
            a(f"buffer_store_dwordx4 v[9:12], v7, {s(sDBG,4)}, {s(sT0)} offen".replace("v[9:12]", "v[8:11]"))
            a(f"buffer_store_dwordx3 v[12:14], v7, {s(sDBG,4)}, {s(sT0)} offen offset:16")
            a.label(L)
        a("s_mov_b64 exec, -1")

    def srd(self, d, ptr, size):
        self.a(f"s_mov_b32 {s(d)}, {s(ptr)}\ns_mov_b32 {s(d+1)}, {s(ptr+1)}\ns_mov_b32 {s(d+2)}, {size}\ns_mov_b32 {s(d+3)}, 0x00020000")

    def poll(self, vaddr, vtmp, soff):
        a = self.a; L = self.lab("poll"); X = self.lab("pollx")
        a(f"s_mov_b32 {s(sSPIN)}, 0")
        a.label(L)
        a(f"buffer_load_dword {v(vtmp)}, {v(vaddr)}, {s(sWS,4)}, {s(soff)} offen sc1")
        a(f"s_add_u32 {s(sSPIN)}, {s(sSPIN)}, 1\ns_cmp_gt_u32 {s(sSPIN)}, {SPIN_MAX}\ns_cbranch_scc1 {X}")
        a(f"s_waitcnt vmcnt(0)\nv_cmp_ne_u32 vcc, {s(sNONCE)}, {v(vtmp)}\ns_cbranch_vccnz {L}")
        a.label(X)
        a("s_waitcnt vmcnt(0)")

    def prologue(self):
        a = self.a
        a("s_cmp_ge_u32 s2, 256\ns_cbranch_scc1 L_end")
        a("s_load_dwordx16 s[4:19], s[0:1], 0\ns_load_dwordx4 s[20:23], s[0:1], 64\ns_load_dwordx2 s[24:25], s[0:1], 80")
        self.ts(0)
        a("v_lshrrev_b32 v2, 6, v0\nv_and_b32 v1, 63, v0")
        a(f"s_and_b32 {s(sT0)}, s2, 3")
        a(f"v_readfirstlane_b32 {s(sWAVE)}, v2")
        a(f"s_bfe_u32 {s(sHF)}, s2, 0x10002")
        a(f"s_bfe_u32 {s(sCT)}, s2, 0x30003")
        a(f"s_lshr_b32 {s(sI)}, s2, 6\ns_lshl_b32 {s(sI)}, {s(sI)}, 2\ns_add_u32 {s(sI)}, {s(sI)}, {s(sT0)}")
        a(f"s_lshr_b32 {s(sTYPE)}, {s(sCT)}, 2")
        a(f"s_and_b32 {s(sG)}, {s(sCT)}, 3\ns_lshl_b32 {s(sT0)}, {s(sHF)}, 2\ns_add_u32 {s(sG)}, {s(sG)}, {s(sT0)}")
        a(f"s_lshr_b32 {s(sKST)}, {s(sI)}, 1\ns_add_u32 {s(sKST)}, {s(sKST)}, {s(sCT)}\ns_and_b32 {s(sKST)}, {s(sKST)}, 7")
        a(f"s_bfe_u32 {s(sRH)}, {s(sWAVE)}, 0x10001\ns_and_b32 {s(sCH)}, {s(sWAVE)}, 1")
        a(f"s_lshl_b32 {s(sT0)}, {s(sG)}, 7\ns_mul_i32 {s(sT1)}, {s(sG)}, 384")
        a(f"s_add_u32 {s(sT2)}, {s(sT0)}, 1024\ns_add_u32 {s(sT3)}, {s(sT0)}, 2048\ns_add_u32 {s(sT4)}, {s(sT1)}, 128\ns_add_u32 {s(sT5)}, {s(sT1)}, 256")
        a(f"s_cmp_eq_u32 {s(sTYPE)}, 0")
        a(f"s_movk_i32 {s(sSTR)}, 2752\ns_cselect_b32 {s(sSTR)}, 3072, {s(sSTR)}")
        a(f"s_cselect_b32 {s(sC0)}, {s(sT2)}, {s(sT1)}\ns_cselect_b32 {s(sC0+1)}, {s(sT3)}, {s(sT4)}\ns_cselect_b32 {s(sC0+2)}, {s(sT0)}, {s(sT5)}")
        a(f"s_cmp_ge_u32 {s(sWAVE)}, 4\ns_cbranch_scc0 L_compute")

    def srds(self, which):
        a = self.a
        a("s_waitcnt lgkmcnt(0)")
        self.srd(sX, 4, 2097152)
        if which == "loader":
            a(f"s_cmp_eq_u32 {s(sTYPE)}, 0")
            a(f"s_cselect_b32 {s(sW)}, s6, s12\ns_cselect_b32 {s(sW+1)}, s7, s13\ns_lshl_b32 {s(sW+2)}, {s(sSTR)}, 9\ns_mov_b32 {s(sW+3)}, 0x00020000")

    def loader(self):
        a = self.a
        vX, vW, vB, vP, vT = 10, 14, 20, 21, 22
        sWK, sKX, sKW, sXB, sF = 85, 26, 27, 3, sT5
        a(f"s_and_b32 {s(sWK)}, {s(sWAVE)}, 3")
        a("v_lshrrev_b32 v2, 3, v1\nv_and_b32 v3, 7, v1\nv_lshrrev_b32 v4, 4, v1")
        a(f"s_and_b32 {s(sT0)}, {s(sWK)}, 1\ns_lshl_b32 {s(sT0)}, {s(sT0)}, 2\ns_lshl_b32 {s(sT1)}, {s(sWK)}, 3")
        a(f"v_add_u32 v5, {s(sT0)}, v4\nv_xor_b32 v5, v3, v5\nv_lshlrev_b32 v5, 4, v5")
        a(f"v_add_u32 v6, {s(sT1)}, v2")
        a(f"v_lshl_add_u32 {v(vX)}, v6, 10, v5")
        for m in range(1, 4): a(f"v_add_u32 {v(vX+m)}, {m*32768}, {v(vX)}")
        a("v_and_b32 v7, 1, v4\nv_lshlrev_b32 v7, 2, v7\nv_xor_b32 v7, v3, v7\nv_lshlrev_b32 v7, 4, v7")
        a(f"v_mul_u32_u24 v8, {s(sSTR)}, v6")
        a(f"s_lshl_b32 {s(sT2)}, {s(sSTR)}, 5\nv_mov_b32 v2, {hx(OOB)}")
        for p in range(3):
            a(f"v_add_u32 v9, {s(sC0+p)}, v7\nv_cmp_gt_u32 vcc, {s(sSTR)}, v9\nv_add_u32 v9, v8, v9\nv_add_u32 v3, {s(sT2)}, v9")
            a(f"v_cndmask_b32 {v(vW+2*p)}, v2, v9, vcc\nv_cndmask_b32 {v(vW+2*p+1)}, v2, v3, vcc")
        a(f"s_lshl_b32 {s(sWK)}, {s(sWK)}, 10\ns_lshl_b32 {s(sXB)}, {s(sI)}, 17\ns_lshl_b32 {s(sT3)}, {s(sSTR)}, 6")
        self.srds("loader")
        vm = Cnt(a, "vmcnt", 63)
        def stage(st):
            base = SLOT[st % 3]
            a(f"s_lshl_b32 {s(sKX)}, {s(sKST)}, 7\ns_add_u32 {s(sKX)}, {s(sKX)}, {s(sXB)}\ns_mul_i32 {s(sKW)}, {s(sKST)}, {s(sT3)}")
            for m in range(2):
                for p in range(3):
                    a(f"s_add_u32 m0, {s(sWK)}, {base + 16384 + p*8192 + m*4096}")
                    a(f"buffer_load_dwordx4 {v(vW+2*p+m)}, {s(sW,4)}, {s(sKW)} offen lds"); vm.issue(("S", st))
                for q in range(2):
                    mm = 2 * m + q
                    a(f"s_add_u32 m0, {s(sWK)}, {base + mm*4096}")
                    a(f"buffer_load_dwordx4 {v(vX+mm)}, {s(sX,4)}, {s(sKX)} offen lds"); vm.issue(("S", st))
            a(f"s_add_u32 {s(sKST)}, {s(sKST)}, 1\ns_and_b32 {s(sKST)}, {s(sKST)}, 7")
        def bstep(sig):
            mat, f = ORDER[sig]
            a(f"s_add_u32 m0, {s(sWK)}, {b_lds(sig)}\ns_mov_b32 {s(sF)}, {f*32768}")
            a(f"buffer_load_dwordx4 {v(vB)}, {s(sW2 if mat=='w2' else sWO,4)}, {s(sF)} offen lds"); vm.issue(("B", sig))
        stage(0); stage(1); stage(2)
        self.srd(sW2, 16, 1409024); self.srd(sWO, 8, 524288); self.srd(sWS, 24, WS_SIZE)
        a(f"s_lshl_b32 {s(sT0)}, {s(sCT)}, 7\nv_lshl_add_u32 {v(vB)}, v6, 10, v7\nv_add_u32 {v(vB)}, {s(sT0)}, {v(vB)}")
        a(f"v_and_b32 {v(vP)}, 15, v1\nv_lshlrev_b32 {v(vP)}, 2, {v(vP)}")
        for k in range(8):
            vm.wait(("S", k)); a("s_barrier")
            if k == 0: self.ts(1)
            if 1 <= k <= 5: stage(k + 2)
            if k == 6:
                for sig in range(0, 7): bstep(sig)
            if k == 7:
                for sig in range(7, 15): bstep(sig)
        a("s_barrier")
        self.ts(2)
        for sig in range(15, 37): bstep(sig)
        a(f"v_mov_b32 {v(vT)}, {SC_NONCE}\nds_read_b32 {v(vT)}, {v(vT)}\ns_waitcnt lgkmcnt(0)\nv_readfirstlane_b32 {s(sNONCE)}, {v(vT)}")
        sFH, sFO = 26, 27
        a(f"s_lshl_b32 {s(sT0)}, {s(sI)}, 1\ns_add_u32 {s(sT0)}, {s(sT0)}, {s(sHF)}")
        a(f"s_mul_i32 {s(sFH)}, {s(sT0)}, 384\ns_add_u32 {s(sFH)}, {s(sFH)}, {WS_FH}")
        a(f"s_lshl_b32 {s(sFO)}, {s(sT0)}, 7\ns_add_u32 {s(sFO)}, {s(sFO)}, {WS_FO}")
        vm.wait_all()
        self.ts(3)
        if self.stop == "p1":
            self.ts_flush(); a("s_endpgm"); return
        def pollw0(soff):
            L = self.lab("nopoll")
            a(f"s_cmp_lg_u32 {s(sWK)}, 0\ns_cbranch_scc1 {L}")
            self.poll(vP, vT, soff)
            a.label(L)
        pollw0(sFH); a("s_barrier")
        self.ts(4)
        a(f"s_add_u32 {s(sFH)}, {s(sFH)}, 128"); pollw0(sFH); a("s_barrier")
        for sig in range(37, 44): bstep(sig)
        a(f"s_add_u32 {s(sFH)}, {s(sFH)}, 128"); pollw0(sFH); a("s_barrier")
        for sig in range(44, 54): bstep(sig)
        pollw0(sFO); vm.wait(("B", 43)); a("s_barrier")
        self.ts(5)
        for sig in range(54, 59): bstep(sig)
        vm.wait(("B", 53)); a("s_barrier")
        vm.wait_all(); a("s_barrier")
        a("s_barrier")
        self.ts(6)
        self.ts_flush()
        a("s_endpgm")

    ACC = 160
    XF = 16
    WF = 32
    CS = 56
    SEL = 68
    vXA, vXB, vWE, vWO = 72, 76, 80, 83
    GR = 88
    SG = 92
    B1 = 100
    IDN = 104
    XS = 108
    GC = 116
    vSTA, vSTG, vNZ = 120, 121, 122
    TMP = 124
    def acc(self, p, rb): return self.ACC + 32 * p + 16 * rb

    def compute_setup(self):
        a = self.a; G = self
        a.label("L_compute")
        a("v_and_b32 v2, 31, v1\nv_lshrrev_b32 v3, 5, v1\nv_lshrrev_b32 v4, 4, v1\nv_and_b32 v5, 15, v1")
        a(f"s_lshl_b32 {s(sT0)}, {s(sHF)}, 3\ns_add_u32 {s(sT0)}, {s(sT0)}, {s(sCT)}\ns_lshl_b32 {s(sT0)}, {s(sT0)}, 3")
        a(f"s_lshl_b32 {s(sT1)}, {s(sI)}, 7\ns_add_u32 {s(sT0)}, {s(sT0)}, {s(sT1)}\ns_lshl_b32 {s(sT2)}, {s(sWAVE)}, 1\ns_add_u32 {s(sT0)}, {s(sT0)}, {s(sT2)}")
        a(f"v_add_u32 v6, {s(sT0)}, v3\nv_lshlrev_b32 v7, 4, v2\nv_lshl_add_u32 v7, v6, 10, v7")
        a(f"v_mov_b32 {v(G.vNZ)}, 0")
        self.srds("compute")
        T = G.TMP
        a(f"buffer_load_dwordx4 {v(T,4)}, v7, {s(sX,4)}, 0 offen\nbuffer_load_dwordx4 {v(T+4,4)}, v7, {s(sX,4)}, 0 offen offset:512")
        self.srd(sDBG, 22, 256)
        L = self.lab("non")
        a(f"s_or_b32 {s(sT3)}, s2, {s(sWAVE)}\ns_cmp_lg_u32 {s(sT3)}, 0\ns_cbranch_scc1 {L}")
        a(f"s_memrealtime {s(sM,2)}")
        nt = sM
        a(f"s_waitcnt lgkmcnt(0)\ns_or_b32 {s(sT3)}, {s(nt)}, 1\nv_mov_b32 v8, {s(sT3)}\ns_mov_b64 exec, 1")
        a(f"buffer_store_dword v8, {v(G.vNZ)}, {s(sDBG,4)}, 0 offen sc1\ns_mov_b64 exec, -1")
        a.label(L)
        self.srd(sWS, 24, WS_SIZE); self.srd(sB1, 14, 2752)
        a(f"v_lshlrev_b32 v8, 4, v6\nv_mov_b32 v9, {hx(OOB)}\nv_cmp_eq_u32 vcc, 0, v2\nv_add_u32 v8, {WS_ST}, v8\nv_cndmask_b32 {v(G.vSTA)}, v9, v8, vcc")
        a(f"s_lshl_b32 {s(sT2)}, {s(sRH)}, 6\ns_add_u32 {s(sT1)}, {s(sT1)}, {s(sT2)}\nv_add_u32 v8, {s(sT1)}, v2\nv_lshlrev_b32 v8, 4, v8\nv_add_u32 {v(G.vSTG)}, {WS_ST}, v8")
        a(f"s_lshl_b32 {s(sT2)}, {s(sCH)}, 6\ns_lshl_b32 {s(sT3)}, {s(sTYPE)}, 31\ns_xor_b32 {s(sT3)}, {s(sT3)}, {hx(OOB)}\ns_or_b32 {s(sT2)}, {s(sT2)}, {s(sT3)}")
        a(f"v_lshl_add_u32 v8, v2, 1, {s(sT2)}")
        for p in range(3):
            a(f"v_add_u32 v9, {s(sC0+p)}, v8\nbuffer_load_ushort {v(G.B1+p)}, v9, {s(sB1,4)}, 0 offen")
        a("v_bfe_u32 v8, v1, 1, 3")
        a(f"s_lshl_b32 {s(sT2)}, {s(sRH)}, 13\nv_lshl_add_u32 v9, v2, 7, {s(sT2)}")
        for tau in range(4):
            a(f"s_xor_b32 {s(sT3)}, {s(sRH)}, {tau}\ns_lshl_b32 {s(sT3)}, {s(sT3)}, 1")
            a(f"v_add_u32 v10, {s(sT3)}, v3\nv_xor_b32 v10, v10, v8\nv_lshl_add_u32 {v(G.vXA+tau)}, v10, 4, v9\nv_add_u32 {v(G.vXB+tau)}, {SLOT[2]}, {v(G.vXA+tau)}")
        a("v_lshrrev_b32 v8, 2, v5\nv_lshl_add_u32 v8, v3, 3, v8\nv_lshlrev_b32 v8, 7, v8")
        a("v_and_b32 v9, 1, v4\nv_lshlrev_b32 v9, 1, v9\nv_bfe_u32 v10, v5, 1, 1\nv_add_u32 v9, v9, v10")
        a("v_lshrrev_b32 v10, 3, v5\nv_lshlrev_b32 v10, 2, v10\nv_xor_b32 v9, v9, v10")
        a("v_and_b32 v10, 1, v5\nv_lshlrev_b32 v10, 3, v10\nv_add_u32 v8, v8, v10")
        a(f"s_xor_b32 {s(sT3)}, {s(sTYPE)}, 1\ns_and_b32 {s(sT3)}, {s(sT3)}, {s(sRH)}\ns_lshl_b32 {s(sT3)}, {s(sT3)}, 1")
        a(f"s_lshl_b32 {s(sT2)}, {s(sCH)}, 2\ns_or_b32 {s(sT2)}, {s(sT2)}, {s(sT3)}\nv_xor_b32 v10, {s(sT2)}, v9\nv_lshl_add_u32 v10, v10, 4, v8")
        a(f"s_lshl_b32 {s(sT2)}, {s(sRH)}, 11")
        for sl in range(3):
            a(f"s_add_u32 {s(sT4)}, {s(sT2)}, {SLOT[sl]+16384}\ns_sub_u32 {s(sT5)}, {SLOT[sl]+16384}, {s(sT2)}")
            a(f"v_add_u32 {v(G.vWE+sl)}, {s(sT4)}, v10\nv_add_u32 {v(G.vWO+sl)}, {s(sT5)}, v10")
        a(f"v_lshrrev_b32 v8, 2, v5\nv_xor_b32 v8, v8, v4\nv_and_b32 v8, 1, v8\nv_cmp_eq_u32 vcc, 0, v8\nv_mov_b32 v9, 0x3f803f80")
        for q in range(4): a(f"v_cndmask_b32 {v(G.SEL+q)}, 0, v9, vcc")
        a("v_lshlrev_b32 v8, 2, v3\nv_sub_u32 v8, v2, v8\nv_mov_b32 v9, 0x3f80\nv_mov_b32 v10, 0x3f800000")
        for q, e in enumerate((0, 2, 8, 10)):
            a(f"v_cmp_eq_u32 vcc, {e}, v8\nv_cndmask_b32 v11, 0, v9, vcc\nv_cmp_eq_u32 vcc, {e+1}, v8\nv_cndmask_b32 {v(G.IDN+q)}, v11, v10, vcc")
        a(f"v_lshlrev_b32 v8, 2, v5\nv_add_u32 v8, {SC_FLAG}, v8\nds_write_b32 v8, {v(G.vNZ)}")
        a(f"buffer_load_dword {v(G.GR+3)}, {v(G.vNZ)}, {s(sDBG,4)}, 0 offen sc1")
        a("s_waitcnt vmcnt(4)")
        U = T + 8
        for q in range(8):
            a(f"v_lshlrev_b32 {v(U+2*q)}, 16, {v(T+q)}\nv_and_b32 {v(U+2*q+1)}, 0xffff0000, {v(T+q)}")
        for q in range(8): a(f"v_add_f32 {v(T+q)}, {v(U+2*q)}, {v(U+2*q+1)}")
        for w in (4, 2, 1):
            for q in range(w): a(f"v_add_f32 {v(T+q)}, {v(T+q)}, {v(T+q+w)}")
        def red32(r, t):
            for m in ("quad_perm:[1,0,3,2]", "quad_perm:[2,3,0,1]", "row_half_mirror", "row_mirror"):
                a(f"v_add_f32_dpp {v(r)}, {v(r)}, {v(r)} {m} row_mask:0xf bank_mask:0xf")
            a(f"v_mov_b32 {v(t)}, {v(r)}\nv_permlane16_swap_b32 {v(r)}, {v(t)}\nv_add_f32 {v(r)}, {v(r)}, {v(t)}")
        red32(T, T + 1)
        a(f"v_mul_f32 {v(G.GR)}, {fl(1/512)}, {v(T)}")
        for q in range(16): a(f"v_sub_f32 {v(U+q)}, {v(U+q)}, {v(G.GR)}")
        for q in range(4): a(f"v_mul_f32 {v(T+q)}, {v(U+q)}, {v(U+q)}")
        for q in range(4, 16): a(f"v_fmac_f32 {v(T+q%4)}, {v(U+q)}, {v(U+q)}")
        a(f"v_add_f32 {v(T)}, {v(T)}, {v(T+1)}\nv_add_f32 {v(T+2)}, {v(T+2)}, {v(T+3)}\nv_add_f32 {v(T)}, {v(T)}, {v(T+2)}")
        red32(T, T + 1)
        a(f"v_mov_b32 {v(T+1)}, {fl(1e-5)}\nv_fmac_f32 {v(T+1)}, {fl(1/512)}, {v(T)}")
        a(f"v_rsq_f32 {v(G.GR+1)}, {v(T+1)}\nv_mul_f32 {v(G.GR+2)}, {v(T+1)}, {v(G.GR+1)}")
        a(f"s_cmp_eq_u32 {s(sTYPE)}, 0\ns_cbranch_scc0 L_typeB")

    def reads(self, gi):
        G = self; st, tau = divmod(gi, 4); b = gi & 1; sl = st % 3
        out = []
        xa = (G.vXB if sl == 2 else G.vXA) + tau; xo = SLOT[1] if sl == 1 else 0
        wa = (G.vWO if tau & 1 else G.vWE) + sl
        def wr(p): return [f"ds_read_b64_tr_b16 {v(G.WF+12*b+4*p+2*q,2)}, {v(wa)} offset:{p*8192+tau*2048+q*512}" for q in range(2)]
        def xr(rb): return [f"ds_read_b128 {v(G.XF+8*b+4*rb,4)}, {v(xa)} offset:{xo+rb*4096}"]
        return xr(0) + wr(0) + xr(1) + wr(1) + wr(2)

    def mainloop(self, typ):
        a = self.a; G = self; T = G.TMP
        a("s_waitcnt lgkmcnt(0)\ns_barrier")
        self.ts(1)
        for r in self.reads(0): a(r)
        for gi in range(32):
            st, tau = divmod(gi, 4); b = gi & 1
            mf = []
            for p in range(3):
                for rb in range(2):
                    x = v(G.XF + 8*b + 4*rb, 4); w = v(G.WF + 12*b + 4*p, 4); c = v(G.acc(p, rb), 16)
                    A, B = (x, w) if (typ == "A" and p < 2) else (w, x)
                    mf.append(f"v_mfma_f32_32x32x16_bf16 {c}, {A}, {B}, {c if gi else 0}")
            cs = []
            if tau % 2 == 0:
                cs = [f"v_mfma_f32_16x16x32_bf16 {v(G.CS+4*p,4)}, {v(G.SEL,4)}, {v(G.WF+12*b+4*p,4)}, {v(G.CS+4*p,4) if gi else 0}" for p in range(3)]
            rd = self.reads(gi + 1) if gi < 31 else []
            fill = self.fillers(typ, gi)
            a("s_waitcnt lgkmcnt(0)")
            a(mf[0])
            if gi == 31:
                a(f"v_lshlrev_b32 v9, 2, v2\ns_mul_i32 {s(sT0)}, {s(sWAVE)}, 384\ns_add_u32 {s(sT0)}, {s(sT0)}, {SC_CS}\nv_add_u32 v8, {s(sT0)}, v9")
                for p in range(3): a(f"ds_write_b32 v8, {v(G.CS+4*p)} offset:{128*p}")
                a(f"s_xor_b32 {s(sT0)}, {s(sWAVE)}, 2\ns_mul_i32 {s(sT0)}, {s(sT0)}, 384\ns_add_u32 {s(sT0)}, {s(sT0)}, {SC_CS}")
                if typ == "A": a("v_xor_b32 v9, 64, v9")
                a(f"v_add_u32 v8, {s(sT0)}, v9")
                a(mf[1])
                a("s_waitcnt lgkmcnt(0)\ns_barrier")
                for p in range(3): a(f"ds_read_b32 {v(G.CS+4*p+1)}, v8 offset:{128*p}")
                for m in mf[2:]: a(m)
                continue
            if tau == 3: a("s_barrier")
            slots = [rd[0:3], rd[3:6], rd[6:8], [], []]
            nf = len(fill); per = (nf + 4) // 5
            for k in range(5):
                for r in slots[k]: a(r)
                for f in fill[k*per:(k+1)*per]: a(f)
                if k == 3:
                    for c in cs: a(c)
                a(mf[k + 1])
        self.ts(2)

    def fillers(self, typ, gi):
        G = self; T = G.TMP; out = []
        if gi == 5:
            L = self.lab("nonce"); R = self.lab("nonceok")
            out += [f"s_waitcnt vmcnt(0)\nv_readfirstlane_b32 {s(sNONCE)}, {v(G.GR+3)}\ns_cmp_eq_u32 {s(sNONCE)}, 0\ns_cbranch_scc1 {L}\n{R}:",
                    f"buffer_store_dwordx4 {v(G.GR,4)}, {v(G.vSTA)}, {s(sWS,4)}, 0 offen sc1",
                    f"v_mov_b32 v8, {SC_NONCE}\nds_write_b32 v8, {v(G.GR+3)}"]
            X = self.lab("noncex")
            self.tail.append(f"""{L}:
s_mov_b32 {s(sSPIN)}, 0
{X}:
buffer_load_dword {v(G.GR+3)}, {v(G.vNZ)}, {s(sDBG,4)}, 0 offen sc1
s_add_u32 {s(sSPIN)}, {s(sSPIN)}, 1
s_waitcnt vmcnt(0)
v_readfirstlane_b32 {s(sNONCE)}, {v(G.GR+3)}
s_cmp_gt_u32 {s(sSPIN)}, {SPIN_MAX}
s_cbranch_scc1 {R}
s_cmp_eq_u32 {s(sNONCE)}, 0
s_cbranch_scc1 {X}
s_branch {R}""")
        if gi == 20:
            out += [f"buffer_load_dwordx4 {v(G.SG+4*rb,4)}, {v(G.vSTG)}, {s(sWS,4)}, 0 offen offset:{512*rb} sc1" for rb in range(2)]
        if gi == 25:
            L = self.lab("st"); R = self.lab("stok")
            chk = f"v_cmp_ne_u32 vcc, {s(sNONCE)}, {v(G.SG+3)}\nv_cmp_ne_u32 {s(sM,2)}, {s(sNONCE)}, {v(G.SG+7)}\ns_or_b64 vcc, vcc, {s(sM,2)}"
            out += [f"s_waitcnt vmcnt(0)\n{chk}\ns_cbranch_vccnz {L}\n{R}:"]
            X = self.lab("stx")
            self.tail.append(f"""{L}:
s_mov_b32 {s(sSPIN)}, 0
{X}:
buffer_load_dwordx4 {v(G.SG,4)}, {v(G.vSTG)}, {s(sWS,4)}, 0 offen sc1
buffer_load_dwordx4 {v(G.SG+4,4)}, {v(G.vSTG)}, {s(sWS,4)}, 0 offen offset:512 sc1
s_add_u32 {s(sSPIN)}, {s(sSPIN)}, 1
s_cmp_gt_u32 {s(sSPIN)}, {SPIN_MAX}
s_waitcnt vmcnt(0)
s_cbranch_scc1 {R}
{chk}
s_cbranch_vccnz {X}
s_branch {R}""")
        if gi in (26, 27):
            rb = gi - 26; mu, r, sd = G.SG + 4*rb, G.SG + 4*rb + 1, G.SG + 4*rb + 2; X = G.XS + 4*rb
            out += [f"v_cvt_pk_bf16_f32 {v(T)}, -{v(mu)}, -{v(mu)}",
                    f"v_cvt_pk_bf16_f32 {v(T+1)}, {v(sd)}, {v(sd)}",
                    f"v_and_b32 {v(T+2)}, 0xffff0000, {v(T)}",
                    f"v_and_b32 {v(T+3)}, 0xffff0000, {v(T+1)}",
                    f"v_cmp_gt_u32 vcc, 32, v1",
                    f"v_sub_f32 {v(T+2)}, -{v(mu)}, {v(T+2)}",
                    f"v_sub_f32 {v(T+4)}, {v(sd)}, {v(T+3)}",
                    f"v_cvt_pk_bf16_f32 {v(T+2)}, {v(T+2)}, {v(T+3)}",
                    f"v_cvt_pk_bf16_f32 {v(T+4)}, {v(T+4)}, 0",
                    f"v_cndmask_b32 {v(X)}, 0, {v(T)}, vcc",
                    f"v_cndmask_b32 {v(X+1)}, 0, {v(T+2)}, vcc",
                    f"v_cndmask_b32 {v(X+2)}, 0, {v(T+4)}, vcc",
                    f"v_mov_b32 {v(X+3)}, 0"]
        if gi == 28:
            k0 = -2.0 * 1.4426950408889634 * 0.7978845608028654
            for rb in range(2):
                r, sd = G.SG + 4*rb + 1, G.SG + 4*rb + 2
                if typ == "B":
                    out += [f"v_mul_f32 {v(G.GC+rb)}, {fl(k0)}, {v(r)}", f"v_mul_f32 {v(T)}, {v(r)}, {v(r)}",
                            f"v_mul_f32 {v(T)}, {fl(0.044715)}, {v(T)}", f"v_mul_f32 {v(G.GC+2+rb)}, {v(T)}, {v(G.GC+rb)}"]
                else:
                    out += [f"v_mul_f32 {v(G.GC+rb)}, {fl(1.4426950408889634)}, {v(r)}", f"v_mul_f32 {v(G.GC+2+rb)}, {fl(1e-6)}, {v(sd)}"]
            if typ == "A":
                out += [f"s_lshl_b32 {s(sT0)}, {s(sWAVE)}, 8\ns_add_u32 {s(sT0)}, {s(sT0)}, {SC_R}\nv_lshl_add_u32 v8, v2, 2, {s(sT0)}",
                        f"ds_write_b32 v8, {v(G.SG+1)}", f"ds_write_b32 v8, {v(G.SG+5)} offset:128"]
            else:
                out += [f"v_lshlrev_b32 {v(G.B1+p)}, 16, {v(G.B1+p)}" for p in range(3)]
        return out

    def fixup(self, typ):
        a = self.a; G = self; T = G.TMP
        a("s_waitcnt lgkmcnt(0)")
        for p in range(3):
            c = G.CS + 4*p; F = T + 4*p
            a(f"v_add_f32 {v(c)}, {v(c)}, {v(c+1)}")
            a(f"v_cvt_pk_bf16_f32 {v(c+1)}, {v(c)}, {v(c)}")
            a(f"v_and_b32 {v(c+1)}, 0xffff0000, {v(c+1)}")
            a(f"v_sub_f32 {v(c+2)}, {v(c)}, {v(c+1)}")
            a(f"v_cvt_pk_bf16_f32 {v(F)}, {v(c+1)}, {v(c+2)}")
            if typ == "B":
                a(f"v_cvt_pk_bf16_f32 {v(F+1)}, {v(c+1)}, {v(G.B1+p)}\nv_cvt_pk_bf16_f32 {v(F+2)}, {v(G.B1+p)}, 0")
            else:
                a(f"v_cvt_pk_bf16_f32 {v(F+1)}, {v(c+1)}, 0\nv_mov_b32 {v(F+2)}, 0")
            a(f"v_mov_b32 {v(F+3)}, 0")
            for rb in range(2):
                x = v(G.XS + 4*rb, 4); w = v(F, 4); cc = v(G.acc(p, rb), 16)
                A, B = (x, w) if (typ == "A" and p < 2) else (w, x)
                a(f"v_mfma_f32_32x32x16_bf16 {cc}, {A}, {B}, {cc}")

    def ho_base(self, dst, sig_imm):
        a = self.a
        a(f"s_lshl_b32 {s(dst)}, {s(sI)}, 1\ns_add_u32 {s(dst)}, {s(dst)}, {s(sRH)}\ns_mul_i32 {s(dst)}, {s(dst)}, {4*59}")
        a(f"s_lshl_b32 {s(sT0)}, {s(sG)}, 1\ns_add_u32 {s(sT0)}, {s(sT0)}, {s(sCH)}\ns_add_u32 {s(dst)}, {s(dst)}, {s(sT0)}")
        a(f"s_add_u32 {s(dst)}, {s(dst)}, {sig_imm}\ns_lshl_b32 {s(dst)}, {s(dst)}, 10")

    def flag_store(self, soff, vt):
        a = self.a
        a(f"v_mov_b32 {v(vt)}, {s(sNONCE)}\ns_mov_b64 exec, 1\nbuffer_store_dword {v(vt)}, {v(self.vNZ)}, {s(sWS,4)}, {s(soff)} offen sc1\ns_mov_b64 exec, -1")

    def epilogue_B(self):
        a = self.a; G = self; T = G.TMP
        sHB, sFL, sO = 26, 27, 3
        vO = 8
        self.fixup("B")
        self.ho_base(sHB, 0)
        a(f"s_lshl_b32 {s(sT1)}, {s(sI)}, 1\ns_add_u32 {s(sT1)}, {s(sT1)}, {s(sRH)}\ns_mul_i32 {s(sFL)}, {s(sT1)}, 384\ns_lshl_b32 {s(sT1)}, {s(sT0)}, 2\ns_add_u32 {s(sFL)}, {s(sFL)}, {s(sT1)}\ns_add_u32 {s(sFL)}, {s(sFL)}, {WS_FH}")
        a(f"s_mul_i32 {s(sT1)}, {s(sG)}, 6\ns_add_u32 {s(sT1)}, {s(sT1)}, {s(sCH)}\nv_lshlrev_b32 v11, 4, v1")
        for p in range(3):
            a(f"s_cmp_lt_u32 {s(sT1)}, {43-2*p}\ns_cselect_b32 {s(sT2)}, 0, {hx(OOB)}\nv_or_b32 {v(vO+p)}, {s(sT2)}, v11")
        vm = Cnt(a, "vmcnt", 63)
        t = T + 12; pk = [T + 20, T + 24]; n = 0
        for p in range(3):
            for rb in range(2):
                A, B, sd = G.GC + rb, G.GC + 2 + rb, G.SG + 4*rb + 2
                for kh in range(2):
                    c = G.acc(p, rb) + 8*kh; P = pk[n & 1]; n += 1
                    for j in range(8): a(f"v_mul_f32 {v(t+j)}, {v(c+j)}, {v(c+j)}")
                    for j in range(8): a(f"v_fma_f32 {v(t+j)}, {v(t+j)}, {v(B)}, {v(A)}")
                    for j in range(8): a(f"v_mul_f32 {v(t+j)}, {v(c+j)}, {v(t+j)}")
                    for j in range(8): a(f"v_exp_f32 {v(t+j)}, {v(t+j)}")
                    for j in range(8): a(f"v_fma_f32 {v(t+j)}, {v(t+j)}, {v(sd)}, {v(sd)}")
                    for j in range(8): a(f"v_rcp_f32 {v(t+j)}, {v(t+j)}")
                    for j in range(8): a(f"v_mul_f32 {v(t+j)}, {v(c+j)}, {v(t+j)}")
                    for j in range(4): a(f"v_cvt_pk_bf16_f32 {v(P+j)}, {v(t+2*j)}, {v(t+2*j+1)}")
                    a(f"s_add_u32 {s(sO)}, {s(sHB)}, {(SIG0[p] + (2*rb+kh)*59)*1024}")
                    a(f"buffer_store_dwordx4 {v(P,4)}, {v(vO+p)}, {s(sWS,4)}, {s(sO)} offen sc1"); vm.issue(("h", p))
                    if p > 0 and rb == 1 and kh == 0:
                        vm.wait(("h", p - 1)); self.flag_store(sFL, 11); vm.issue("f")
                        a(f"s_add_u32 {s(sFL)}, {s(sFL)}, 128")
        self.ts(3)
        self.p2_setup()
        a("s_waitcnt vmcnt(8)"); self.flag_store(sFL, 11)

    def pair_recv(self, kind, reads):
        a = self.a; L = self.lab("pw"); X = self.lab("pwx")
        a(f"s_xor_b32 {s(sT0)}, {s(sWAVE)}, 2\ns_lshl_b32 {s(sT0)}, {s(sT0)}, 3\ns_add_u32 {s(sT0)}, {s(sT0)}, {SC_FLAG+4*kind}\nv_mov_b32 v12, {s(sT0)}\ns_mov_b32 {s(sSPIN)}, 0")
        a.label(L)
        a("ds_read_b32 v13, v12")
        for r in reads: a(r)
        a(f"s_add_u32 {s(sSPIN)}, {s(sSPIN)}, 1\ns_cmp_gt_u32 {s(sSPIN)}, {SPIN_MAX}\ns_waitcnt lgkmcnt(0)\ns_cbranch_scc1 {X}")
        a(f"v_cmp_eq_u32 vcc, 0, v13\ns_cbranch_vccnz {L}")
        a.label(X)
    def pair_send(self, kind):
        a = self.a
        a(f"s_lshl_b32 {s(sT0)}, {s(sWAVE)}, 3\ns_add_u32 {s(sT0)}, {s(sT0)}, {SC_FLAG+4*kind}\nv_mov_b32 v12, {s(sT0)}\nv_mov_b32 v13, 1\nds_write_b32 v12, v13")

    def epilogue_A(self):
        a = self.a; G = self; T = G.TMP
        RR = G.XF
        a(f"s_lshl_b32 {s(sT0)}, {s(sWAVE)}, 8\ns_add_u32 {s(sT0)}, {s(sT0)}, {SC_R}\nv_lshl_add_u32 v9, v3, 4, {s(sT0)}")
        self.fixup("A")
        for rb in range(2):
            for q in range(4): a(f"ds_read_b128 {v(RR+16*rb+4*q,4)}, v9 offset:{128*rb+32*q}")
        ON = 84
        for q in range(4): a(f"v_mov_b32 {v(ON+q)}, 0x3f803f80")
        a(f"v_mov_b32 v10, {fl(1e-6)}\nv_mov_b32 v11, {fl(1.4426950408889634)}")
        a("s_waitcnt lgkmcnt(0)")
        t = T + 16; u = T + 24
        PK, PV = 48, 72
        KV, Z = G.acc(0, 0), G.acc(1, 0)
        n = 0
        mf = []
        for rb in range(2):
            for kh in range(2):
                c = G.acc(0, rb) + 8*kh; cv = G.acc(1, rb) + 8*kh; r = RR + 16*rb + 8*kh
                P = PK + 4*(n & 1); Q = PV + 4*(n & 1)
                for j in range(8): a(f"v_mul_f32 {v(t+j)}, {v(c+j)}, {v(r+j)}")
                for j in range(8): a(f"v_mul_f32 {v(u+j)}, v11, {v(t+j)}")
                for j in range(8): a(f"v_exp_f32 {v(u+j)}, {v(u+j)} clamp")
                for j in range(8): a(f"v_max_f32 {v(t+j)}, v10, {v(t+j)}")
                for j in range(8): a(f"v_add_f32 {v(t+j)}, {v(t+j)}, {v(u+j)}")
                for j in range(8): a(f"v_mul_f32 {v(u+j)}, {v(cv+j)}, {v(r+j)}")
                for j in range(4): a(f"v_cvt_pk_bf16_f32 {v(P+j)}, {v(t+2*j)}, {v(t+2*j+1)}")
                for j in range(4): a(f"v_cvt_pk_bf16_f32 {v(Q+j)}, {v(u+2*j)}, {v(u+2*j+1)}")
                n += 1
                a(f"v_mfma_f32_32x32x16_bf16 {v(G.KVA,16)}, {v(P,4)}, {v(Q,4)}, {v(G.KVA,16) if n>1 else 0}")
                a(f"v_mfma_f32_32x32x16_bf16 {v(G.ZZ,16)}, {v(P,4)}, {v(ON,4)}, {v(G.ZZ,16) if n>1 else 0}")
        sREC, sFL, sHD = 26, 27, 3
        a(f"s_lshl_b32 {s(sHD)}, {s(sG)}, 1\ns_add_u32 {s(sHD)}, {s(sHD)}, {s(sCH)}\ns_lshl_b32 {s(sHD)}, {s(sHD)}, 1\ns_add_u32 {s(sHD)}, {s(sHD)}, {s(sRH)}")
        a(f"s_mul_i32 {s(sREC)}, {s(sHD)}, 10240\ns_add_u32 {s(sREC)}, {s(sREC)}, {WS_KV}")
        a(f"s_lshl_b32 {s(sFL)}, {s(sHD)}, 7\ns_add_u32 {s(sFL)}, {s(sFL)}, {WS_FK}")
        a(f"v_cmp_gt_u32 {s(sM,2)}, 16, v2")
        a("v_lshl_add_u32 v8, v3, 4, v2\nv_lshlrev_b32 v8, 4, v8\nv_lshlrev_b32 v9, 4, v3\nv_add_u32 v9, 512, v9")
        a(f"v_cndmask_b32 v14, v9, v8, {s(sM,2)}")
        a(f"v_mov_b32 v8, {hx(OOB)}\nv_cmp_ge_u32 vcc, 16, v2\nv_cndmask_b32 v15, v8, v14, vcc")
        a(f"s_lshl_b32 {s(sT0)}, {s(sWAVE)}, 11\ns_add_u32 {s(sT0)}, {s(sT0)}, {SC_KVX}\nv_xor_b32 v8, 16, v1\nv_lshl_add_u32 v8, v8, 4, {s(sT0)}")
        a(f"s_xor_b32 {s(sT0)}, {s(sT0)}, 4096\nv_lshl_add_u32 v9, v1, 4, {s(sT0)}")
        for j in range(8): a(f"v_cndmask_b32 {v(u+j)}, {v(G.KVA+8+j)}, {v(G.ZZ+8+j)}, {s(sM,2)}")
        a(f"ds_write_b128 v8, {v(u,4)}\nds_write_b128 v8, {v(u+4,4)} offset:1024")
        self.pair_send(0)
        for j in range(8): a(f"v_cndmask_b32 {v(t+j)}, {v(G.ZZ+j)}, {v(G.KVA+j)}, {s(sM,2)}")
        self.pair_recv(0, [f"ds_read_b128 {v(u,4)}, v9", f"ds_read_b128 {v(u+4,4)}, v9 offset:1024"])
        for j in range(8): a(f"v_add_f32 {v(t+j)}, {v(t+j)}, {v(u+j)}")
        for j in range(4): a(f"v_cvt_pk_bf16_f32 {v(PK+j)}, {v(t+2*j)}, {v(t+2*j+1)}")
        a(f"s_mul_i32 {s(sT1)}, {s(sI)}, 640\ns_add_u32 {s(sT1)}, {s(sT1)}, {s(sREC)}")
        a(f"buffer_store_dwordx4 {v(PK,4)}, v15, {s(sWS,4)}, {s(sT1)} offen sc1")
        PQ = RR
        for rb in range(2):
            rl, ep, r = G.GC + rb, G.GC + 2 + rb, G.SG + 4*rb + 1
            for hh in range(2):
                c = G.acc(2, rb) + 8*hh
                for j in range(8): a(f"v_mul_f32 {v(u+j)}, {v(rl)}, {v(c+j)}")
                for j in range(8): a(f"v_exp_f32 {v(u+j)}, {v(u+j)} clamp")
                for j in range(8): a(f"v_max_f32 {v(t+j)}, {v(ep)}, {v(c+j)}")
                for j in range(8): a(f"v_fmac_f32 {v(u+j)}, {v(t+j)}, {v(r)}")
                for j in range(4): a(f"v_cvt_pk_bf16_f32 {v(PQ+8*rb+4*hh+j)}, {v(u+2*j)}, {v(u+2*j+1)}")
        a(f"s_lshl_b32 {s(sT1)}, {s(sI)}, 2\ns_add_u32 {s(sT1)}, {s(sT1)}, {s(sFL)}")
        a("s_waitcnt vmcnt(0)")
        self.flag_store(sT1, 11)
        self.ts(3)
        a("v_lshlrev_b32 v8, 2, v5")
        self.poll(8, 11, sFL)
        GA = G.ACC
        for p in range(16):
            if p % 4 == 0 and p: a(f"s_add_u32 {s(sREC)}, {s(sREC)}, 2560")
            a(f"buffer_load_dwordx4 {v(GA+4*p,4)}, v14, {s(sWS,4)}, {s(sREC)} offen offset:{640*(p%4)} sc1")
        self.ho_base(sREC, 43)
        a(f"s_lshl_b32 {s(sT1)}, {s(sI)}, 1\ns_add_u32 {s(sT1)}, {s(sT1)}, {s(sRH)}\ns_lshl_b32 {s(sFL)}, {s(sT1)}, 7\ns_lshl_b32 {s(sT1)}, {s(sT0)}, 2\ns_add_u32 {s(sFL)}, {s(sFL)}, {s(sT1)}\ns_add_u32 {s(sFL)}, {s(sFL)}, {WS_FO}")
        for p in range(16):
            a(f"s_waitcnt vmcnt({15-p})")
            a(f"v_mfma_f32_32x32x16_bf16 {v(G.KVA,16)}, {v(G.IDN,4)}, {v(GA+4*p,4)}, {v(G.KVA,16) if p else 0}")
        F = [PK, PK + 4]
        a("v_lshlrev_b32 v10, 4, v1\nv_xor_b32 v8, 4096, v9")
        for j in range(4): a(f"v_cvt_pk_bf16_f32 {v(F[0]+j)}, {v(G.KVA+2*j)}, {v(G.KVA+2*j+1)}")
        a(f"ds_write_b128 v9, {v(F[0],4)}")
        self.pair_send(1)
        O = [G.ACC + 16*k for k in range(4)]
        for rb in range(2): a(f"v_mfma_f32_32x32x16_bf16 {v(O[2*rb],16)}, {v(F[0],4)}, {v(PQ+8*rb,4)}, 0")
        self.pair_recv(1, [f"ds_read_b128 {v(F[1],4)}, v8"])
        for rb in range(2): a(f"v_mfma_f32_32x32x16_bf16 {v(O[2*rb+1],16)}, {v(F[1],4)}, {v(PQ+8*rb+4,4)}, 0")
        a(f"s_mul_i32 {s(sT2)}, {s(sRH)}, {59*1024}\ns_xor_b32 {s(sT3)}, {s(sRH)}, 1\ns_mul_i32 {s(sT3)}, {s(sT3)}, {59*1024}")
        a(f"s_add_u32 {s(sT2)}, {s(sT2)}, {s(sREC)}\ns_add_u32 {s(sT3)}, {s(sT3)}, {s(sREC)}")
        n = 0
        for hh in range(2):
            for rb in range(2):
                o = O[2*rb+hh]; P = PV + 4*(n & 1); n += 1
                a(f"v_add_f32 {v(t)}, {fl(1e-6)}, {v(o+8)}\nv_rcp_f32 {v(t)}, {v(t)}")
                a(f"s_add_u32 {s(sT4)}, {s(sT2+hh)}, {rb*118*1024}")
                for j in range(8): a(f"v_mul_f32 {v(o+j)}, {v(t)}, {v(o+j)}")
                for j in range(4): a(f"v_cvt_pk_bf16_f32 {v(P+j)}, {v(o+2*j)}, {v(o+2*j+1)}")
                a(f"buffer_store_dwordx4 {v(P,4)}, v10, {s(sWS,4)}, {s(sT4)} offen sc1")
        self.p2_setup()
        a("s_waitcnt vmcnt(8)")
        self.flag_store(sFL, 11)
    KVA = 56
    ZZ = 124

    Y, S2 = 160, 192
    AR = 16; D = 8
    BF = 48
    vBA = 72
    vA, vXC, vXP, vOUT = 78, 79, 80, 81
    XR = 224; B2 = 232
    def p2_setup(self):
        a = self.a; G = self
        self.srd(sOUT, 20, 2097152); self.srd(sB2, 18, 1024)
        sA = sKST
        a(f"s_lshl_b32 {s(sT1)}, {s(sI)}, 1\ns_add_u32 {s(sT1)}, {s(sT1)}, {s(sHF)}\ns_lshl_b32 {s(sT2)}, {s(sT1)}, 2\ns_add_u32 {s(sT2)}, {s(sT2)}, {s(sWAVE)}\ns_mul_i32 {s(sA)}, {s(sT2)}, {59*1024}")
        a(f"v_lshlrev_b32 {v(G.vA)}, 4, v1")
        a(f"v_lshrrev_b32 v8, 2, v5\nv_lshl_add_u32 v8, v3, 2, v8\ns_lshl_b32 {s(sT2)}, {s(sCH)}, 4\nv_add_u32 v8, {s(sT2)}, v8\nv_lshlrev_b32 v8, 7, v8")
        a("v_and_b32 v9, 1, v5\nv_lshl_add_u32 v8, v9, 3, v8")
        a("v_and_b32 v9, 1, v4\nv_lshlrev_b32 v9, 1, v9\nv_bfe_u32 v12, v5, 1, 1\nv_add_u32 v9, v9, v12\nv_lshrrev_b32 v12, 3, v5\nv_lshlrev_b32 v12, 2, v12\nv_xor_b32 v9, v9, v12")
        a(f"s_lshl_b32 {s(sT2)}, {s(sCH)}, 2\nv_xor_b32 v9, {s(sT2)}, v9")
        a(f"v_lshl_add_u32 {v(G.vBA)}, v9, 4, v8\nv_xor_b32 v9, 4, v9\nv_lshl_add_u32 {v(G.vBA+1)}, v9, 4, v8")
        for w in (1, 2):
            for cb in range(2): a(f"v_add_u32 {v(G.vBA+2*w+cb)}, {65536*w}, {v(G.vBA+cb)}")
        a(f"s_lshl_b32 {s(sT2)}, {s(sWAVE)}, 12\ns_add_u32 {s(sT2)}, {s(sT2)}, {XCH_Y}\nv_add_u32 {v(G.vXC)}, {s(sT2)}, {v(G.vA)}")
        a(f"s_xor_b32 {s(sT2)}, {s(sWAVE)}, 1\ns_lshl_b32 {s(sT2)}, {s(sT2)}, 12\ns_add_u32 {s(sT2)}, {s(sT2)}, {XCH_Y}\nv_add_u32 {v(G.vXP)}, {s(sT2)}, {v(G.vA)}")
        a(f"s_lshl_b32 {s(sT1)}, {s(sT1)}, 1\ns_add_u32 {s(sT1)}, {s(sT1)}, {s(sRH)}\ns_lshl_b32 {s(sT1)}, {s(sT1)}, 15")
        a(f"s_lshl_b32 {s(sT2)}, {s(sCT)}, 1\ns_add_u32 {s(sT2)}, {s(sT2)}, {s(sCH)}\ns_lshl_b32 {s(sT2)}, {s(sT2)}, 6\ns_add_u32 {s(sT1)}, {s(sT1)}, {s(sT2)}")
        a(f"v_lshl_add_u32 v8, v2, 10, {s(sT1)}\nv_lshl_add_u32 v9, v3, 3, v8\nv_lshl_add_u32 {v(G.vOUT)}, v3, 4, v8\nv_lshl_add_u32 v12, v3, 3, {s(sT2)}")
        for q in range(4): a(f"buffer_load_dwordx2 {v(G.XR+2*q,2)}, v9, {s(sX,4)}, 0 offen offset:{16*q}")
        for q in range(4): a(f"buffer_load_dwordx2 {v(G.B2+2*q,2)}, v12, {s(sB2,4)}, 0 offen offset:{16*q}")

    def phase2(self):
        a = self.a; G = self; D = G.D; sA = sKST
        a.label("L_phase2")
        vm = Cnt(a, "vmcnt", 63); lg = Cnt(a, "lgkmcnt", 15)
        def aload(sig):
            if sig >= 59: return
            if sig % 4 == 0 and sig: a(f"s_add_u32 {s(sA)}, {s(sA)}, 4096")
            a(f"buffer_load_dwordx4 {v(G.AR+4*(sig%D),4)}, {v(G.vA)}, {s(sWS,4)}, {s(sA)} offen offset:{1024*(sig%4)} sc1"); vm.issue(("A", sig))
        def breads(sig):
            if sig >= 59: return []
            base = b_lds(sig); w = base >> 16; off = base & 0xffff
            return [f"ds_read_b64_tr_b16 {v(G.BF+8*(sig%3)+4*cb+2*q,2)}, {v(G.vBA+2*w+cb)} offset:{off+1024*q}" for cb in range(2) for q in range(2)]
        def ds(x, tag): a(x); lg.issue(tag)
        self.ts(4)
        a("s_barrier")
        for sig in range(D): aload(sig)
        for sig in range(2):
            for r in breads(sig): ds(r, ("B", sig))
        T = 96; YK = 112; BB = 128; XX = 144
        work = []
        for q in range(8):
            work += [f"v_lshlrev_b32 {v(BB+2*q)}, 16, {v(G.B2+q)}", f"v_and_b32 {v(BB+2*q+1)}, 0xffff0000, {v(G.B2+q)}"]
        for q in range(8):
            work += [f"v_lshlrev_b32 {v(XX+2*q)}, 16, {v(G.XR+q)}", f"v_and_b32 {v(XX+2*q+1)}, 0xffff0000, {v(G.XR+q)}"]
        gw = []
        for half in range(2):
            o = 8 * half
            gw += [f"v_add_f32 {v(YK+o+j)}, {v(T+o+j)}, {v(G.Y+o+j)}" for j in range(8)]
            gw += [f"v_add_f32 {v(YK+o+j)}, {v(YK+o+j)}, {v(BB+o+j)}" for j in range(8)]
            gw += [f"v_mul_f32 {v(T+o+j)}, {fl(-1.4426950408889634)}, {v(YK+o+j)}" for j in range(8)]
            gw += [f"v_exp_f32 {v(T+o+j)}, {v(T+o+j)}" for j in range(8)]
            gw += [f"v_add_f32 {v(T+o+j)}, 1.0, {v(T+o+j)}" for j in range(8)]
            gw += [f"v_rcp_f32 {v(T+o+j)}, {v(T+o+j)}" for j in range(8)]
            gw += [f"v_mul_f32 {v(YK+o+j)}, {v(YK+o+j)}, {v(T+o+j)}" for j in range(8)]
        for sig in range(59):
            acc = G.Y if sig < 43 else G.S2; first = sig in (0, 43)
            lg.wait(("B", sig)); vm.wait(("A", sig))
            A = v(G.AR + 4*(sig % D), 4)
            m = [f"v_mfma_f32_32x32x16_bf16 {v(acc+16*cb,16)}, {v(G.BF+8*(sig%3)+4*cb,4)}, {A}, {0 if first else v(acc+16*cb,16)}" for cb in range(2)]
            a(m[0])
            if sig in (6, 21, 35, 42): a("s_barrier")
            if sig == 47:
                lg.wait("yw"); a("s_barrier")
                for q in range(4): ds(f"ds_read_b128 {v(T+4*q,4)}, {v(G.vXP)} offset:{1024*q}", "yr")
            rd = breads(sig + 2)
            for r in rd[:2]: ds(r, ("B", sig + 2))
            fill = []
            if 1 <= sig <= 8: fill = work[4*(sig-1): 4*sig]
            if sig == 49: lg.wait("yr")
            if 49 <= sig <= 58: fill = gw[12*(sig-49): 12*(sig-48)]
            h = len(fill) // 2
            for f in fill[:h]: a(f)
            a(m[1])
            for r in rd[2:]: ds(r, ("B", sig + 2))
            aload(sig + D)
            for f in fill[h:]: a(f)
            if sig == 44:
                for q in range(4): ds(f"ds_write_b128 {v(G.vXC)}, {v(G.Y+16+4*q,4)} offset:{1024*q}", "yw")
        self.ts(5)
        for q in range(4): a(f"ds_write_b128 {v(G.vXC)}, {v(G.S2+16+4*q,4)} offset:{16384+1024*q}")
        a("s_waitcnt lgkmcnt(0)\ns_barrier")
        for q in range(4): a(f"ds_read_b128 {v(T+4*q,4)}, {v(G.vXP)} offset:{16384+1024*q}")
        for j in range(16): a(f"v_fmac_f32 {v(XX+j)}, {v(G.S2+j)}, {v(YK+j)}")
        for half in range(2):
            a(f"s_waitcnt lgkmcnt({2-2*half})")
            o = 8 * half; P = BB + 4 * half
            for j in range(8): a(f"v_fmac_f32 {v(XX+o+j)}, {v(T+o+j)}, {v(YK+o+j)}")
            for j in range(4): a(f"v_cvt_pk_bf16_f32 {v(P+j)}, {v(XX+o+2*j)}, {v(XX+o+2*j+1)}")
            a(f"v_permlane32_swap_b32 {v(P)}, {v(P+2)}\nv_permlane32_swap_b32 {v(P+1)}, {v(P+3)}")
            a(f"buffer_store_dwordx4 {v(P,4)}, {v(G.vOUT)}, {s(sOUT,4)}, 0 offen offset:{32*half}")
        self.ts(6)
        self.ts_flush()

    def build(self):
        a = self.a
        self.prologue()
        self.loader()
        self.compute_setup()
        self.mainloop("A"); self.epilogue_A()
        if self.stop == "p1": self.ts_flush(); a("s_endpgm")
        else: a("s_branch L_phase2")
        a.label("L_typeB")
        self.mainloop("B"); self.epilogue_B()
        if self.stop == "p1": self.ts_flush(); a("s_endpgm")
        else: self.phase2()
        a.label("L_end")
        a("s_endpgm")
        for t in self.tail: a(t)
        body = a.finalize(verbose=True)
        head = open("cdna_kernels/" + KN[:-7] + ".s.ref").read().split("; Override launch")[0]
        return head + f"""; @launch grid=(256,1,1) block=(512,1,1) lds={LDS_SIZE}
.amdgcn_target "amdgcn-amd-amdhsa--gfx950"
.text
.globl {KN}
.p2align 8
.type {KN},@function
{KN}:
{body}
.section .rodata,"a"
.p2align 6
.amdhsa_kernel {KN}
  .amdhsa_next_free_vgpr 256
  .amdhsa_next_free_sgpr 102
  .amdhsa_accum_offset 256
  .amdhsa_group_segment_fixed_size 0
  .amdhsa_kernarg_size 88
  .amdhsa_user_sgpr_count 2
  .amdhsa_user_sgpr_kernarg_segment_ptr 1
  .amdhsa_system_sgpr_workgroup_id_x 1
.end_amdhsa_kernel
"""

if __name__ == "__main__":
    import argparse
    ap = argparse.ArgumentParser()
    ap.add_argument("out"); ap.add_argument("--diag", nargs="?", const="rt"); ap.add_argument("--stop"); ap.add_argument("--dbgout", action="store_true")
    x = ap.parse_args()
    open(x.out, "w").write(Gen(diag=x.diag, stop=x.stop, dbgout=x.dbgout).build())
```

```python
import sys, struct
from asmlib import Asm, v, s

KN = "recurrent_scan__linear_attn_block__dense_activation_gelu__prompt_kernel"
def f2u(x): return struct.unpack("<I", struct.pack("<f", x))[0]
def hx(x): return f"0x{x & 0xffffffff:08x}"
def fl(x): return hx(f2u(x))

WS_HO = 0
WS_KV = 8 << 20
WS_ST = 9 << 20
WS_FH = 10 << 20
WS_FO = WS_FH + 0x8000
WS_FK = WS_FH + 0x10000
WS_TS = 12 << 20
WS_SIZE = 268435456
OOB = 0x80000000
SLOT = [0, 40960, 81920]
R0 = 122880
SCR = 151552
SC_NONCE = SCR
SC_FLAG = SCR + 64
SC_CS = SCR + 256
SC_R = SCR + 2048
SC_KVX = SCR + 4096
LDS_SIZE = 163840
def b_lds(sig):
    if sig < 7: return R0 + sig * 4096
    if sig < 17: return SLOT[2] + (sig - 7) * 4096
    if sig < 27: return SLOT[0] + (sig - 17) * 4096
    if sig < 37: return SLOT[1] + (sig - 27) * 4096
    return b_lds(sig - 37)
XCH_Y = SLOT[1]
XCH_S = SLOT[1] + 16384
ORDER = []
for p in range(3):
    for g in range(8):
        for ch in range(2):
            f = 6 * g + 2 * p + ch
            if f < 43: ORDER.append(("w2", f))
ORDER += [("wo", f) for f in range(16)]
assert len(ORDER) == 59
SIG0 = [0, 15, 29]
SPIN_MAX = 1 << 18

sX, sW, sW2, sWO, sWS, sDBG, sOUT, sB1, sB2 = 28, 32, 36, 40, 44, 48, 52, 56, 60
sWAVE, sI, sG, sTYPE, sHF, sCT, sKST, sRH, sCH, sNONCE, sSTR = 64, 65, 66, 67, 68, 69, 70, 71, 72, 73, 74
sT0, sT1, sT2, sT3, sT4, sT5 = 75, 76, 77, 78, 79, 80
sC0 = 81
sSPIN = 84
sM = 86
sTS = 88

class Cnt:
    def __init__(self, a, name, mx): self.a, self.name, self.mx, self.q = a, name, mx, []
    def issue(self, tag): self.q.append(tag)
    def wait(self, tag):
        if tag not in self.q: return
        k = len(self.q) - 1 - max(i for i, t in enumerate(self.q) if t == tag)
        k = min(k, self.mx)
        self.a(f"s_waitcnt {self.name}({k})")
        self.q = self.q[len(self.q) - k:] if k else []
    def wait_all(self):
        self.a(f"s_waitcnt {self.name}(0)"); self.q = []

class Gen:
    def __init__(self, diag=False, stop=None, dbgout=False, marks=None, opts=None, probe=None):
        self.probe = tuple(int(x) for x in probe.split(',')) if probe else None
        self.o = dict(rot=0, cpf=1, thr=0)
        for kv in (opts or '').split(','):
            if kv: k, x = kv.split('='); assert k in self.o, k; self.o[k] = int(x)
        self.dbgout = dbgout
        self.marks = {"start": 0}
        for grp in (marks or "c_bar0,c_main,cA_q|cB_gelu,c_p0,c_loop,c_end;l_bar0,l_bar8,l_bland,l_p0,l_p3,l_end").split(";"):
            for k, nm in enumerate(grp.split(",")):
                for x in nm.split("|"): self.marks[x] = k + 1
        self.a = Asm(); self.diag = diag; self.stop = stop; self.uid = 0; self.tail = []
    def lab(self, n): self.uid += 1; return f"L{n}_{self.uid}"
    def ts(self, name):
        if not self.diag or name not in self.marks: return
        k = self.marks[name]
        self.a(f"{'s_memtime' if self.diag == 'cyc' else 's_memrealtime'} {s(sTS + 2 * k, 2)}")
    def ts_flush(self):
        if not self.diag: return
        a = self.a
        if self.probe:
            pa, pb = self.probe
            L = self.lab("probe"); X = self.lab("probex")
            op = 's_memtime' if self.diag == 'cyc' else 's_memrealtime'
            a(f"s_cmp_ge_u32 {s(sWAVE)}, 4\ns_cbranch_scc1 {X}")
            a(f"{op} {s(sM,2)}\ns_waitcnt lgkmcnt(0)")
            if pa < 0: a(f"s_mov_b32 {s(sT0)}, {pb}")
            else: a(f"s_sub_u32 {s(sT0)}, {s(sTS+2*pb)}, {s(sTS+2*pa)}\ns_lshl_b32 {s(sT0)}, {s(sT0)}, 2")
            a(f"s_min_u32 {s(sT0)}, {s(sT0)}, 400000\ns_mov_b32 {s(sT1)}, {s(sM)}")
            a.label(L)
            a(f"{op} {s(sM,2)}\ns_waitcnt lgkmcnt(0)\ns_sub_u32 {s(sT2)}, {s(sM)}, {s(sT1)}\ns_cmp_lt_u32 {s(sT2)}, {s(sT0)}\ns_cbranch_scc1 {L}")
            a.label(X)
            return
        a("s_waitcnt lgkmcnt(0)")
        a(f"s_lshl_b32 {s(sT0)}, s2, 3\ns_add_u32 {s(sT0)}, {s(sT0)}, {s(sWAVE)}\ns_lshl_b32 {s(sT0)}, {s(sT0)}, 5\ns_add_u32 {s(sT0)}, {s(sT0)}, {WS_TS}")
        for k in range(7): a(f"v_mov_b32 v{8+k}, {s(sTS+2*k)}")
        a("v_mov_b32 v15, 0\nv_mov_b32 v7, 0")
        a("s_mov_b64 exec, 1")
        a(f"buffer_store_dwordx4 v[8:11], v7, {s(sWS,4)}, {s(sT0)} offen")
        a(f"buffer_store_dwordx4 v[12:15], v7, {s(sWS,4)}, {s(sT0)} offen offset:16")
        if self.dbgout:
            L = self.lab("dbgo")
            self.srd(sDBG, 22, 256)
            a(f"s_cmp_lg_u32 {s(sWAVE)}, 0\ns_cbranch_scc1 {L}\ns_and_b32 {s(sT0)}, s2, 0xdf\ns_cmp_lg_u32 {s(sT0)}, 0\ns_cbranch_scc1 {L}")
            for k in range(6, -1, -1): a(f"v_subrev_u32 v{8+k}, {s(sTS)}, v{8+k}")
            a(f"s_add_u32 {s(sT0)}, s2, 4")
            a(f"buffer_store_dwordx4 v[9:12], v7, {s(sDBG,4)}, {s(sT0)} offen".replace("v[9:12]", "v[8:11]"))
            a(f"buffer_store_dwordx3 v[12:14], v7, {s(sDBG,4)}, {s(sT0)} offen offset:16")
            a.label(L)
        a("s_mov_b64 exec, -1")

    def srd(self, d, ptr, size):
        self.a(f"s_mov_b32 {s(d)}, {s(ptr)}\ns_mov_b32 {s(d+1)}, {s(ptr+1)}\ns_mov_b32 {s(d+2)}, {size}\ns_mov_b32 {s(d+3)}, 0x00020000")

    def poll(self, vaddr, vtmp, soff):
        a = self.a; L = self.lab("poll"); X = self.lab("pollx")
        a(f"s_mov_b32 {s(sSPIN)}, 0")
        a.label(L)
        a(f"buffer_load_dword {v(vtmp)}, {v(vaddr)}, {s(sWS,4)}, {s(soff)} offen sc1")
        a(f"s_add_u32 {s(sSPIN)}, {s(sSPIN)}, 1\ns_cmp_gt_u32 {s(sSPIN)}, {SPIN_MAX}\ns_cbranch_scc1 {X}")
        a(f"s_waitcnt vmcnt(0)\nv_cmp_ne_u32 vcc, {s(sNONCE)}, {v(vtmp)}\ns_cbranch_vccnz {L}")
        a.label(X)
        a("s_waitcnt vmcnt(0)")

    def prologue(self):
        a = self.a
        a("s_cmp_ge_u32 s2, 256\ns_cbranch_scc1 L_end")
        a("s_load_dwordx16 s[4:19], s[0:1], 0\ns_load_dwordx4 s[20:23], s[0:1], 64\ns_load_dwordx2 s[24:25], s[0:1], 80")
        if self.diag:
            for k in range(1, 7): a(f"s_mov_b32 {s(sTS+2*k)}, 0")
        self.ts("start")
        if self.o["cpf"]:
            a("s_getpc_b64 s[26:27]\nL_pc:\nv_lshlrev_b32 v3, 6, v0\nv_min_u32 v3, L_last-L_pc, v3\nglobal_load_dword v123, v3, s[26:27]")
        a("v_lshrrev_b32 v2, 6, v0\nv_and_b32 v1, 63, v0")
        a(f"s_and_b32 {s(sT0)}, s2, 3")
        a(f"v_readfirstlane_b32 {s(sWAVE)}, v2")
        a(f"s_bfe_u32 {s(sHF)}, s2, 0x10002")
        a(f"s_bfe_u32 {s(sCT)}, s2, 0x30003")
        a(f"s_lshr_b32 {s(sI)}, s2, 6\ns_lshl_b32 {s(sI)}, {s(sI)}, 2\ns_add_u32 {s(sI)}, {s(sI)}, {s(sT0)}")
        a(f"s_lshr_b32 {s(sTYPE)}, {s(sCT)}, 2")
        a(f"s_and_b32 {s(sG)}, {s(sCT)}, 3\ns_lshl_b32 {s(sT0)}, {s(sHF)}, 2\ns_add_u32 {s(sG)}, {s(sG)}, {s(sT0)}")
        if self.o["rot"]: a(f"s_lshr_b32 {s(sKST)}, {s(sI)}, 1\ns_add_u32 {s(sKST)}, {s(sKST)}, {s(sCT)}\ns_and_b32 {s(sKST)}, {s(sKST)}, 7")
        else: a(f"s_mov_b32 {s(sKST)}, 0")
        a(f"s_bfe_u32 {s(sRH)}, {s(sWAVE)}, 0x10001\ns_and_b32 {s(sCH)}, {s(sWAVE)}, 1")
        a(f"s_lshl_b32 {s(sT0)}, {s(sG)}, 7\ns_mul_i32 {s(sT1)}, {s(sG)}, 384")
        a(f"s_add_u32 {s(sT2)}, {s(sT0)}, 1024\ns_add_u32 {s(sT3)}, {s(sT0)}, 2048\ns_add_u32 {s(sT4)}, {s(sT1)}, 128\ns_add_u32 {s(sT5)}, {s(sT1)}, 256")
        a(f"s_cmp_eq_u32 {s(sTYPE)}, 0")
        a(f"s_movk_i32 {s(sSTR)}, 2752\ns_cselect_b32 {s(sSTR)}, 3072, {s(sSTR)}")
        a(f"s_cselect_b32 {s(sC0)}, {s(sT2)}, {s(sT1)}\ns_cselect_b32 {s(sC0+1)}, {s(sT3)}, {s(sT4)}\ns_cselect_b32 {s(sC0+2)}, {s(sT0)}, {s(sT5)}")
        a(f"s_cmp_ge_u32 {s(sWAVE)}, 4\ns_cbranch_scc0 L_compute")

    def srds(self, which):
        a = self.a
        a("s_waitcnt lgkmcnt(0)")
        self.srd(sX, 4, 2097152)
        if which == "loader":
            a(f"s_cmp_eq_u32 {s(sTYPE)}, 0")
            a(f"s_cselect_b32 {s(sW)}, s6, s12\ns_cselect_b32 {s(sW+1)}, s7, s13\ns_lshl_b32 {s(sW+2)}, {s(sSTR)}, 9\ns_mov_b32 {s(sW+3)}, 0x00020000")

    def loader(self):
        a = self.a
        vX, vW, vB, vP, vT = 10, 14, 20, 21, 22
        sWK, sKX, sKW, sXB, sF = 85, 26, 27, 3, sT5
        a(f"s_and_b32 {s(sWK)}, {s(sWAVE)}, 3")
        a("v_lshrrev_b32 v2, 3, v1\nv_and_b32 v3, 7, v1\nv_lshrrev_b32 v4, 4, v1")
        a(f"s_and_b32 {s(sT0)}, {s(sWK)}, 1\ns_lshl_b32 {s(sT0)}, {s(sT0)}, 2\ns_lshl_b32 {s(sT1)}, {s(sWK)}, 3")
        a(f"v_add_u32 v5, {s(sT0)}, v4\nv_xor_b32 v5, v3, v5\nv_lshlrev_b32 v5, 4, v5")
        a(f"v_add_u32 v6, {s(sT1)}, v2")
        a(f"v_lshl_add_u32 {v(vX)}, v6, 10, v5")
        for m in range(1, 4): a(f"v_add_u32 {v(vX+m)}, {m*32768}, {v(vX)}")
        a("v_and_b32 v7, 1, v4\nv_lshlrev_b32 v7, 2, v7\nv_xor_b32 v7, v3, v7\nv_lshlrev_b32 v7, 4, v7")
        a(f"v_mul_u32_u24 v8, {s(sSTR)}, v6")
        a(f"s_lshl_b32 {s(sT2)}, {s(sSTR)}, 5\nv_mov_b32 v2, {hx(OOB)}")
        for p in range(3):
            a(f"v_add_u32 v9, {s(sC0+p)}, v7\nv_cmp_gt_u32 vcc, {s(sSTR)}, v9\nv_add_u32 v9, v8, v9\nv_add_u32 v3, {s(sT2)}, v9")
            a(f"v_cndmask_b32 {v(vW+2*p)}, v2, v9, vcc\nv_cndmask_b32 {v(vW+2*p+1)}, v2, v3, vcc")
        a(f"s_lshl_b32 {s(sWK)}, {s(sWK)}, 10\ns_lshl_b32 {s(sXB)}, {s(sI)}, 17\ns_lshl_b32 {s(sT3)}, {s(sSTR)}, 6")
        self.ts("l_pre")
        self.srds("loader")
        self.ts("l_karg")
        vm = Cnt(a, "vmcnt", 63)
        def stage(st):
            base = SLOT[st % 3]
            a(f"s_lshl_b32 {s(sKX)}, {s(sKST)}, 7\ns_add_u32 {s(sKX)}, {s(sKX)}, {s(sXB)}\ns_mul_i32 {s(sKW)}, {s(sKST)}, {s(sT3)}")
            for m in range(2):
                for p in range(3):
                    a(f"s_add_u32 m0, {s(sWK)}, {base + 16384 + p*8192 + m*4096}")
                    a(f"buffer_load_dwordx4 {v(vW+2*p+m)}, {s(sW,4)}, {s(sKW)} offen lds"); vm.issue(("S", st))
                for q in range(2):
                    mm = 2 * m + q
                    a(f"s_add_u32 m0, {s(sWK)}, {base + mm*4096}")
                    a(f"buffer_load_dwordx4 {v(vX+mm)}, {s(sX,4)}, {s(sKX)} offen lds"); vm.issue(("S", st))
            a(f"s_add_u32 {s(sKST)}, {s(sKST)}, 1\ns_and_b32 {s(sKST)}, {s(sKST)}, 7")
        def bstep(sig):
            mat, f = ORDER[sig]
            a(f"s_add_u32 m0, {s(sWK)}, {b_lds(sig)}\ns_mov_b32 {s(sF)}, {f*32768}")
            a(f"buffer_load_dwordx4 {v(vB)}, {s(sW2 if mat=='w2' else sWO,4)}, {s(sF)} offen lds"); vm.issue(("B", sig))
        stage(0); self.ts("l_s0"); stage(1); self.ts("l_s2")
        self.srd(sW2, 16, 1409024); self.srd(sWO, 8, 524288); self.srd(sWS, 24, WS_SIZE)
        a(f"s_lshl_b32 {s(sT0)}, {s(sCT)}, 7\nv_lshl_add_u32 {v(vB)}, v6, 10, v7\nv_add_u32 {v(vB)}, {s(sT0)}, {v(vB)}")
        a(f"v_and_b32 {v(vP)}, 15, v1\nv_lshlrev_b32 {v(vP)}, 2, {v(vP)}")
        for k in range(8):
            vm.wait(("S", k)); self.ts(f"l_land{k}"); a("s_barrier")
            self.ts(f"l_bar{k}")
            if k <= 5: stage(k + 2)
            if k == 6:
                for sig in range(0, 7): bstep(sig)
            if k == 7:
                for sig in range(7, 15): bstep(sig)
        a("s_barrier")
        self.ts("l_bar8")
        for sig in range(15, 37):
            bstep(sig)
            if self.o["thr"]: vm.wait(("B", sig - self.o["thr"]))
        self.ts("l_bissue")
        a(f"v_mov_b32 {v(vT)}, {SC_NONCE}\nds_read_b32 {v(vT)}, {v(vT)}\ns_waitcnt lgkmcnt(0)\nv_readfirstlane_b32 {s(sNONCE)}, {v(vT)}")
        sFH, sFO = 26, 27
        a(f"s_lshl_b32 {s(sT0)}, {s(sI)}, 1\ns_add_u32 {s(sT0)}, {s(sT0)}, {s(sHF)}")
        a(f"s_mul_i32 {s(sFH)}, {s(sT0)}, 384\ns_add_u32 {s(sFH)}, {s(sFH)}, {WS_FH}")
        a(f"s_lshl_b32 {s(sFO)}, {s(sT0)}, 7\ns_add_u32 {s(sFO)}, {s(sFO)}, {WS_FO}")
        vm.wait_all()
        self.ts("l_bland")
        if self.stop == "p1":
            self.ts_flush(); a("s_endpgm"); return
        def pollw0(soff):
            L = self.lab("nopoll")
            a(f"s_cmp_lg_u32 {s(sWK)}, 0\ns_cbranch_scc1 {L}")
            self.poll(vP, vT, soff)
            a.label(L)
        pollw0(sFH); self.ts("l_h0"); a("s_barrier")
        self.ts("l_p0")
        a(f"s_add_u32 {s(sFH)}, {s(sFH)}, 128"); pollw0(sFH); self.ts("l_h1"); a("s_barrier"); self.ts("l_p1")
        for sig in range(37, 44): bstep(sig)
        a(f"s_add_u32 {s(sFH)}, {s(sFH)}, 128"); pollw0(sFH); self.ts("l_h2"); a("s_barrier"); self.ts("l_p2")
        for sig in range(44, 54): bstep(sig)
        pollw0(sFO); vm.wait(("B", 43)); self.ts("l_o"); a("s_barrier")
        self.ts("l_p3")
        for sig in range(54, 59): bstep(sig)
        vm.wait(("B", 53)); a("s_barrier")
        vm.wait_all(); a("s_barrier")
        a("s_barrier")
        self.ts("l_end")
        self.ts_flush()
        a("s_endpgm")

    ACC = 160
    XF = 16
    WF = 32
    CS = 56
    SEL = 68
    vXA, vXB, vWE, vWO = 72, 76, 80, 83
    GR = 88
    SG = 92
    B1 = 100
    IDN = 104
    XS = 108
    GC = 116
    vSTA, vSTG, vNZ = 120, 121, 122
    TMP = 124
    def acc(self, p, rb): return self.ACC + 32 * p + 16 * rb

    def compute_setup(self):
        a = self.a; G = self
        a.label("L_compute")
        a("v_and_b32 v2, 31, v1\nv_lshrrev_b32 v3, 5, v1\nv_lshrrev_b32 v4, 4, v1\nv_and_b32 v5, 15, v1")
        a(f"s_lshl_b32 {s(sT0)}, {s(sHF)}, 3\ns_add_u32 {s(sT0)}, {s(sT0)}, {s(sCT)}\ns_lshl_b32 {s(sT0)}, {s(sT0)}, 3")
        a(f"s_lshl_b32 {s(sT1)}, {s(sI)}, 7\ns_add_u32 {s(sT0)}, {s(sT0)}, {s(sT1)}\ns_lshl_b32 {s(sT2)}, {s(sWAVE)}, 1\ns_add_u32 {s(sT0)}, {s(sT0)}, {s(sT2)}")
        a(f"v_add_u32 v6, {s(sT0)}, v3\nv_lshlrev_b32 v7, 4, v2\nv_lshl_add_u32 v7, v6, 10, v7")
        a(f"v_mov_b32 {v(G.vNZ)}, 0")
        self.srds("compute")
        self.ts("c_karg")
        T = G.TMP
        a(f"buffer_load_dwordx4 {v(T,4)}, v7, {s(sX,4)}, 0 offen\nbuffer_load_dwordx4 {v(T+4,4)}, v7, {s(sX,4)}, 0 offen offset:512")
        self.srd(sDBG, 22, 256)
        L = self.lab("non")
        a(f"s_or_b32 {s(sT3)}, s2, {s(sWAVE)}\ns_cmp_lg_u32 {s(sT3)}, 0\ns_cbranch_scc1 {L}")
        a(f"s_memrealtime {s(sM,2)}")
        nt = sM
        a(f"s_waitcnt lgkmcnt(0)\ns_or_b32 {s(sT3)}, {s(nt)}, 1\nv_mov_b32 v8, {s(sT3)}\ns_mov_b64 exec, 1")
        a(f"buffer_store_dword v8, {v(G.vNZ)}, {s(sDBG,4)}, 0 offen sc1\ns_mov_b64 exec, -1")
        a.label(L)
        self.srd(sWS, 24, WS_SIZE); self.srd(sB1, 14, 2752)
        a(f"v_lshlrev_b32 v8, 4, v6\nv_mov_b32 v9, {hx(OOB)}\nv_cmp_eq_u32 vcc, 0, v2\nv_add_u32 v8, {WS_ST}, v8\nv_cndmask_b32 {v(G.vSTA)}, v9, v8, vcc")
        a(f"s_lshl_b32 {s(sT2)}, {s(sRH)}, 6\ns_add_u32 {s(sT1)}, {s(sT1)}, {s(sT2)}\nv_add_u32 v8, {s(sT1)}, v2\nv_lshlrev_b32 v8, 4, v8\nv_add_u32 {v(G.vSTG)}, {WS_ST}, v8")
        a(f"s_lshl_b32 {s(sT2)}, {s(sCH)}, 6\ns_lshl_b32 {s(sT3)}, {s(sTYPE)}, 31\ns_xor_b32 {s(sT3)}, {s(sT3)}, {hx(OOB)}\ns_or_b32 {s(sT2)}, {s(sT2)}, {s(sT3)}")
        a(f"v_lshl_add_u32 v8, v2, 1, {s(sT2)}")
        for p in range(3):
            a(f"v_add_u32 v9, {s(sC0+p)}, v8\nbuffer_load_ushort {v(G.B1+p)}, v9, {s(sB1,4)}, 0 offen")
        a("v_bfe_u32 v8, v1, 1, 3")
        a(f"s_lshl_b32 {s(sT2)}, {s(sRH)}, 13\nv_lshl_add_u32 v9, v2, 7, {s(sT2)}")
        for tau in range(4):
            a(f"s_xor_b32 {s(sT3)}, {s(sRH)}, {tau}\ns_lshl_b32 {s(sT3)}, {s(sT3)}, 1")
            a(f"v_add_u32 v10, {s(sT3)}, v3\nv_xor_b32 v10, v10, v8\nv_lshl_add_u32 {v(G.vXA+tau)}, v10, 4, v9\nv_add_u32 {v(G.vXB+tau)}, {SLOT[2]}, {v(G.vXA+tau)}")
        a("v_lshrrev_b32 v8, 2, v5\nv_lshl_add_u32 v8, v3, 3, v8\nv_lshlrev_b32 v8, 7, v8")
        a("v_and_b32 v9, 1, v4\nv_lshlrev_b32 v9, 1, v9\nv_bfe_u32 v10, v5, 1, 1\nv_add_u32 v9, v9, v10")
        a("v_lshrrev_b32 v10, 3, v5\nv_lshlrev_b32 v10, 2, v10\nv_xor_b32 v9, v9, v10")
        a("v_and_b32 v10, 1, v5\nv_lshlrev_b32 v10, 3, v10\nv_add_u32 v8, v8, v10")
        a(f"s_xor_b32 {s(sT3)}, {s(sTYPE)}, 1\ns_and_b32 {s(sT3)}, {s(sT3)}, {s(sRH)}\ns_lshl_b32 {s(sT3)}, {s(sT3)}, 1")
        a(f"s_lshl_b32 {s(sT2)}, {s(sCH)}, 2\ns_or_b32 {s(sT2)}, {s(sT2)}, {s(sT3)}\nv_xor_b32 v10, {s(sT2)}, v9\nv_lshl_add_u32 v10, v10, 4, v8")
        a(f"s_lshl_b32 {s(sT2)}, {s(sRH)}, 11")
        for sl in range(3):
            a(f"s_add_u32 {s(sT4)}, {s(sT2)}, {SLOT[sl]+16384}\ns_sub_u32 {s(sT5)}, {SLOT[sl]+16384}, {s(sT2)}")
            a(f"v_add_u32 {v(G.vWE+sl)}, {s(sT4)}, v10\nv_add_u32 {v(G.vWO+sl)}, {s(sT5)}, v10")
        a(f"v_lshrrev_b32 v8, 2, v5\nv_xor_b32 v8, v8, v4\nv_and_b32 v8, 1, v8\nv_cmp_eq_u32 vcc, 0, v8\nv_mov_b32 v9, 0x3f803f80")
        for q in range(4): a(f"v_cndmask_b32 {v(G.SEL+q)}, 0, v9, vcc")
        a("v_lshlrev_b32 v8, 2, v3\nv_sub_u32 v8, v2, v8\nv_mov_b32 v9, 0x3f80\nv_mov_b32 v10, 0x3f800000")
        for q, e in enumerate((0, 2, 8, 10)):
            a(f"v_cmp_eq_u32 vcc, {e}, v8\nv_cndmask_b32 v11, 0, v9, vcc\nv_cmp_eq_u32 vcc, {e+1}, v8\nv_cndmask_b32 {v(G.IDN+q)}, v11, v10, vcc")
        a(f"v_lshlrev_b32 v8, 2, v5\nv_add_u32 v8, {SC_FLAG}, v8\nds_write_b32 v8, {v(G.vNZ)}")
        a(f"buffer_load_dword {v(G.GR+3)}, {v(G.vNZ)}, {s(sDBG,4)}, 0 offen sc1")
        self.ts("c_setup")
        a("s_waitcnt vmcnt(4)")
        self.ts("c_xst")
        U = T + 8
        for q in range(8):
            a(f"v_lshlrev_b32 {v(U+2*q)}, 16, {v(T+q)}\nv_and_b32 {v(U+2*q+1)}, 0xffff0000, {v(T+q)}")
        for q in range(8): a(f"v_add_f32 {v(T+q)}, {v(U+2*q)}, {v(U+2*q+1)}")
        for w in (4, 2, 1):
            for q in range(w): a(f"v_add_f32 {v(T+q)}, {v(T+q)}, {v(T+q+w)}")
        def red32(r, t):
            for m in ("quad_perm:[1,0,3,2]", "quad_perm:[2,3,0,1]", "row_half_mirror", "row_mirror"):
                a(f"v_add_f32_dpp {v(r)}, {v(r)}, {v(r)} {m} row_mask:0xf bank_mask:0xf")
            a(f"v_mov_b32 {v(t)}, {v(r)}\nv_permlane16_swap_b32 {v(r)}, {v(t)}\nv_add_f32 {v(r)}, {v(r)}, {v(t)}")
        red32(T, T + 1)
        a(f"v_mul_f32 {v(G.GR)}, {fl(1/512)}, {v(T)}")
        for q in range(16): a(f"v_sub_f32 {v(U+q)}, {v(U+q)}, {v(G.GR)}")
        for q in range(4): a(f"v_mul_f32 {v(T+q)}, {v(U+q)}, {v(U+q)}")
        for q in range(4, 16): a(f"v_fmac_f32 {v(T+q%4)}, {v(U+q)}, {v(U+q)}")
        a(f"v_add_f32 {v(T)}, {v(T)}, {v(T+1)}\nv_add_f32 {v(T+2)}, {v(T+2)}, {v(T+3)}\nv_add_f32 {v(T)}, {v(T)}, {v(T+2)}")
        red32(T, T + 1)
        a(f"v_mov_b32 {v(T+1)}, {fl(1e-5)}\nv_fmac_f32 {v(T+1)}, {fl(1/512)}, {v(T)}")
        a(f"v_rsq_f32 {v(G.GR+1)}, {v(T+1)}\nv_mul_f32 {v(G.GR+2)}, {v(T+1)}, {v(G.GR+1)}")
        a(f"s_cmp_eq_u32 {s(sTYPE)}, 0\ns_cbranch_scc0 L_typeB")

    def reads(self, gi):
        G = self; st, tau = divmod(gi, 4); b = gi & 1; sl = st % 3
        out = []
        xa = (G.vXB if sl == 2 else G.vXA) + tau; xo = SLOT[1] if sl == 1 else 0
        wa = (G.vWO if tau & 1 else G.vWE) + sl
        def wr(p): return [f"ds_read_b64_tr_b16 {v(G.WF+12*b+4*p+2*q,2)}, {v(wa)} offset:{p*8192+tau*2048+q*512}" for q in range(2)]
        def xr(rb): return [f"ds_read_b128 {v(G.XF+8*b+4*rb,4)}, {v(xa)} offset:{xo+rb*4096}"]
        return xr(0) + wr(0) + xr(1) + wr(1) + wr(2)

    def mainloop(self, typ):
        a = self.a; G = self; T = G.TMP
        self.ts("c_pre0")
        a("s_waitcnt lgkmcnt(0)\ns_barrier")
        self.ts("c_bar0")
        for r in self.reads(0): a(r)
        for gi in range(32):
            st, tau = divmod(gi, 4); b = gi & 1
            mf = []
            for p in range(3):
                for rb in range(2):
                    x = v(G.XF + 8*b + 4*rb, 4); w = v(G.WF + 12*b + 4*p, 4); c = v(G.acc(p, rb), 16)
                    A, B = (x, w) if (typ == "A" and p < 2) else (w, x)
                    mf.append(f"v_mfma_f32_32x32x16_bf16 {c}, {A}, {B}, {c if gi else 0}")
            cs = []
            if tau % 2 == 0:
                cs = [f"v_mfma_f32_16x16x32_bf16 {v(G.CS+4*p,4)}, {v(G.SEL,4)}, {v(G.WF+12*b+4*p,4)}, {v(G.CS+4*p,4) if gi else 0}" for p in range(3)]
            rd = self.reads(gi + 1) if gi < 31 else []
            fill = self.fillers(typ, gi)
            a("s_waitcnt lgkmcnt(0)")
            a(mf[0])
            if gi == 31:
                a(f"v_lshlrev_b32 v9, 2, v2\ns_mul_i32 {s(sT0)}, {s(sWAVE)}, 384\ns_add_u32 {s(sT0)}, {s(sT0)}, {SC_CS}\nv_add_u32 v8, {s(sT0)}, v9")
                for p in range(3): a(f"ds_write_b32 v8, {v(G.CS+4*p)} offset:{128*p}")
                a(f"s_xor_b32 {s(sT0)}, {s(sWAVE)}, 2\ns_mul_i32 {s(sT0)}, {s(sT0)}, 384\ns_add_u32 {s(sT0)}, {s(sT0)}, {SC_CS}")
                if typ == "A": a("v_xor_b32 v9, 64, v9")
                a(f"v_add_u32 v8, {s(sT0)}, v9")
                a(mf[1])
                a("s_waitcnt lgkmcnt(0)\ns_barrier")
                for p in range(3): a(f"ds_read_b32 {v(G.CS+4*p+1)}, v8 offset:{128*p}")
                for m in mf[2:]: a(m)
                continue
            if tau == 3: a("s_barrier"); self.ts(f"c_bar{st+1}")
            slots = [rd[0:3], rd[3:6], rd[6:8], [], []]
            nf = len(fill); per = (nf + 4) // 5
            for k in range(5):
                for r in slots[k]: a(r)
                for f in fill[k*per:(k+1)*per]: a(f)
                if k == 3:
                    for c in cs: a(c)
                a(mf[k + 1])
        self.ts("c_main")

    def fillers(self, typ, gi):
        G = self; T = G.TMP; out = []
        if gi == 5:
            L = self.lab("nonce"); R = self.lab("nonceok")
            out += [f"s_waitcnt vmcnt(0)\nv_readfirstlane_b32 {s(sNONCE)}, {v(G.GR+3)}\ns_cmp_eq_u32 {s(sNONCE)}, 0\ns_cbranch_scc1 {L}\n{R}:",
                    f"buffer_store_dwordx4 {v(G.GR,4)}, {v(G.vSTA)}, {s(sWS,4)}, 0 offen sc1",
                    f"v_mov_b32 v8, {SC_NONCE}\nds_write_b32 v8, {v(G.GR+3)}"]
            X = self.lab("noncex")
            self.tail.append(f"""{L}:
s_mov_b32 {s(sSPIN)}, 0
{X}:
buffer_load_dword {v(G.GR+3)}, {v(G.vNZ)}, {s(sDBG,4)}, 0 offen sc1
s_add_u32 {s(sSPIN)}, {s(sSPIN)}, 1
s_waitcnt vmcnt(0)
v_readfirstlane_b32 {s(sNONCE)}, {v(G.GR+3)}
s_cmp_gt_u32 {s(sSPIN)}, {SPIN_MAX}
s_cbranch_scc1 {R}
s_cmp_eq_u32 {s(sNONCE)}, 0
s_cbranch_scc1 {X}
s_branch {R}""")
        if gi == 20:
            out += [f"buffer_load_dwordx4 {v(G.SG+4*rb,4)}, {v(G.vSTG)}, {s(sWS,4)}, 0 offen offset:{512*rb} sc1" for rb in range(2)]
        if gi == 25:
            L = self.lab("st"); R = self.lab("stok")
            chk = f"v_cmp_ne_u32 vcc, {s(sNONCE)}, {v(G.SG+3)}\nv_cmp_ne_u32 {s(sM,2)}, {s(sNONCE)}, {v(G.SG+7)}\ns_or_b64 vcc, vcc, {s(sM,2)}"
            out += [f"s_waitcnt vmcnt(0)\n{chk}\ns_cbranch_vccnz {L}\n{R}:"]
            X = self.lab("stx")
            self.tail.append(f"""{L}:
s_mov_b32 {s(sSPIN)}, 0
{X}:
buffer_load_dwordx4 {v(G.SG,4)}, {v(G.vSTG)}, {s(sWS,4)}, 0 offen sc1
buffer_load_dwordx4 {v(G.SG+4,4)}, {v(G.vSTG)}, {s(sWS,4)}, 0 offen offset:512 sc1
s_add_u32 {s(sSPIN)}, {s(sSPIN)}, 1
s_cmp_gt_u32 {s(sSPIN)}, {SPIN_MAX}
s_waitcnt vmcnt(0)
s_cbranch_scc1 {R}
{chk}
s_cbranch_vccnz {X}
s_branch {R}""")
        if gi in (26, 27):
            rb = gi - 26; mu, r, sd = G.SG + 4*rb, G.SG + 4*rb + 1, G.SG + 4*rb + 2; X = G.XS + 4*rb
            out += [f"v_cvt_pk_bf16_f32 {v(T)}, -{v(mu)}, -{v(mu)}",
                    f"v_cvt_pk_bf16_f32 {v(T+1)}, {v(sd)}, {v(sd)}",
                    f"v_and_b32 {v(T+2)}, 0xffff0000, {v(T)}",
                    f"v_and_b32 {v(T+3)}, 0xffff0000, {v(T+1)}",
                    f"v_cmp_gt_u32 vcc, 32, v1",
                    f"v_sub_f32 {v(T+2)}, -{v(mu)}, {v(T+2)}",
                    f"v_sub_f32 {v(T+4)}, {v(sd)}, {v(T+3)}",
                    f"v_cvt_pk_bf16_f32 {v(T+2)}, {v(T+2)}, {v(T+3)}",
                    f"v_cvt_pk_bf16_f32 {v(T+4)}, {v(T+4)}, 0",
                    f"v_cndmask_b32 {v(X)}, 0, {v(T)}, vcc",
                    f"v_cndmask_b32 {v(X+1)}, 0, {v(T+2)}, vcc",
                    f"v_cndmask_b32 {v(X+2)}, 0, {v(T+4)}, vcc",
                    f"v_mov_b32 {v(X+3)}, 0"]
        if gi == 28:
            k0 = -2.0 * 1.4426950408889634 * 0.7978845608028654
            for rb in range(2):
                r, sd = G.SG + 4*rb + 1, G.SG + 4*rb + 2
                if typ == "B":
                    out += [f"v_mul_f32 {v(G.GC+rb)}, {fl(k0)}, {v(r)}", f"v_mul_f32 {v(T)}, {v(r)}, {v(r)}",
                            f"v_mul_f32 {v(T)}, {fl(0.044715)}, {v(T)}", f"v_mul_f32 {v(G.GC+2+rb)}, {v(T)}, {v(G.GC+rb)}"]
                else:
                    out += [f"v_mul_f32 {v(G.GC+rb)}, {fl(1.4426950408889634)}, {v(r)}", f"v_mul_f32 {v(G.GC+2+rb)}, {fl(1e-6)}, {v(sd)}"]
            if typ == "A":
                out += [f"s_lshl_b32 {s(sT0)}, {s(sWAVE)}, 8\ns_add_u32 {s(sT0)}, {s(sT0)}, {SC_R}\nv_lshl_add_u32 v8, v2, 2, {s(sT0)}",
                        f"ds_write_b32 v8, {v(G.SG+1)}", f"ds_write_b32 v8, {v(G.SG+5)} offset:128"]
            else:
                out += [f"v_lshlrev_b32 {v(G.B1+p)}, 16, {v(G.B1+p)}" for p in range(3)]
        return out

    def fixup(self, typ):
        a = self.a; G = self; T = G.TMP
        a("s_waitcnt lgkmcnt(0)")
        for p in range(3):
            c = G.CS + 4*p; F = T + 4*p
            a(f"v_add_f32 {v(c)}, {v(c)}, {v(c+1)}")
            a(f"v_cvt_pk_bf16_f32 {v(c+1)}, {v(c)}, {v(c)}")
            a(f"v_and_b32 {v(c+1)}, 0xffff0000, {v(c+1)}")
            a(f"v_sub_f32 {v(c+2)}, {v(c)}, {v(c+1)}")
            a(f"v_cvt_pk_bf16_f32 {v(F)}, {v(c+1)}, {v(c+2)}")
            if typ == "B":
                a(f"v_cvt_pk_bf16_f32 {v(F+1)}, {v(c+1)}, {v(G.B1+p)}\nv_cvt_pk_bf16_f32 {v(F+2)}, {v(G.B1+p)}, 0")
            else:
                a(f"v_cvt_pk_bf16_f32 {v(F+1)}, {v(c+1)}, 0\nv_mov_b32 {v(F+2)}, 0")
            a(f"v_mov_b32 {v(F+3)}, 0")
            for rb in range(2):
                x = v(G.XS + 4*rb, 4); w = v(F, 4); cc = v(G.acc(p, rb), 16)
                A, B = (x, w) if (typ == "A" and p < 2) else (w, x)
                a(f"v_mfma_f32_32x32x16_bf16 {cc}, {A}, {B}, {cc}")

    def ho_base(self, dst, sig_imm):
        a = self.a
        a(f"s_lshl_b32 {s(dst)}, {s(sI)}, 1\ns_add_u32 {s(dst)}, {s(dst)}, {s(sRH)}\ns_mul_i32 {s(dst)}, {s(dst)}, {4*59}")
        a(f"s_lshl_b32 {s(sT0)}, {s(sG)}, 1\ns_add_u32 {s(sT0)}, {s(sT0)}, {s(sCH)}\ns_add_u32 {s(dst)}, {s(dst)}, {s(sT0)}")
        a(f"s_add_u32 {s(dst)}, {s(dst)}, {sig_imm}\ns_lshl_b32 {s(dst)}, {s(dst)}, 10")

    def flag_store(self, soff, vt):
        a = self.a
        a(f"v_mov_b32 {v(vt)}, {s(sNONCE)}\ns_mov_b64 exec, 1\nbuffer_store_dword {v(vt)}, {v(self.vNZ)}, {s(sWS,4)}, {s(soff)} offen sc1\ns_mov_b64 exec, -1")

    def epilogue_B(self):
        a = self.a; G = self; T = G.TMP
        sHB, sFL, sO = 26, 27, 3
        vO = 8
        self.fixup("B")
        self.ts("cB_fix")
        self.ho_base(sHB, 0)
        a(f"s_lshl_b32 {s(sT1)}, {s(sI)}, 1\ns_add_u32 {s(sT1)}, {s(sT1)}, {s(sRH)}\ns_mul_i32 {s(sFL)}, {s(sT1)}, 384\ns_lshl_b32 {s(sT1)}, {s(sT0)}, 2\ns_add_u32 {s(sFL)}, {s(sFL)}, {s(sT1)}\ns_add_u32 {s(sFL)}, {s(sFL)}, {WS_FH}")
        a(f"s_mul_i32 {s(sT1)}, {s(sG)}, 6\ns_add_u32 {s(sT1)}, {s(sT1)}, {s(sCH)}\nv_lshlrev_b32 v11, 4, v1")
        for p in range(3):
            a(f"s_cmp_lt_u32 {s(sT1)}, {43-2*p}\ns_cselect_b32 {s(sT2)}, 0, {hx(OOB)}\nv_or_b32 {v(vO+p)}, {s(sT2)}, v11")
        vm = Cnt(a, "vmcnt", 63)
        t = T + 12; pk = [T + 20, T + 24]; n = 0
        for p in range(3):
            for rb in range(2):
                A, B, sd = G.GC + rb, G.GC + 2 + rb, G.SG + 4*rb + 2
                for kh in range(2):
                    c = G.acc(p, rb) + 8*kh; P = pk[n & 1]; n += 1
                    for j in range(8): a(f"v_mul_f32 {v(t+j)}, {v(c+j)}, {v(c+j)}")
                    for j in range(8): a(f"v_fma_f32 {v(t+j)}, {v(t+j)}, {v(B)}, {v(A)}")
                    for j in range(8): a(f"v_mul_f32 {v(t+j)}, {v(c+j)}, {v(t+j)}")
                    for j in range(8): a(f"v_exp_f32 {v(t+j)}, {v(t+j)}")
                    for j in range(8): a(f"v_fma_f32 {v(t+j)}, {v(t+j)}, {v(sd)}, {v(sd)}")
                    for j in range(8): a(f"v_rcp_f32 {v(t+j)}, {v(t+j)}")
                    for j in range(8): a(f"v_mul_f32 {v(t+j)}, {v(c+j)}, {v(t+j)}")
                    for j in range(4): a(f"v_cvt_pk_bf16_f32 {v(P+j)}, {v(t+2*j)}, {v(t+2*j+1)}")
                    a(f"s_add_u32 {s(sO)}, {s(sHB)}, {(SIG0[p] + (2*rb+kh)*59)*1024}")
                    a(f"buffer_store_dwordx4 {v(P,4)}, {v(vO+p)}, {s(sWS,4)}, {s(sO)} offen sc1"); vm.issue(("h", p))
                    if p > 0 and rb == 1 and kh == 0:
                        vm.wait(("h", p - 1)); self.flag_store(sFL, 11); vm.issue("f")
                        a(f"s_add_u32 {s(sFL)}, {s(sFL)}, 128")
                        self.ts(f"cB_flag{p-1}")
            self.ts(f"cB_p{p}")
        self.ts("cB_gelu")
        self.p2_setup()
        a("s_waitcnt vmcnt(8)"); self.flag_store(sFL, 11)

    def pair_recv(self, kind, reads):
        a = self.a; L = self.lab("pw"); X = self.lab("pwx")
        a(f"s_xor_b32 {s(sT0)}, {s(sWAVE)}, 2\ns_lshl_b32 {s(sT0)}, {s(sT0)}, 3\ns_add_u32 {s(sT0)}, {s(sT0)}, {SC_FLAG+4*kind}\nv_mov_b32 v12, {s(sT0)}\ns_mov_b32 {s(sSPIN)}, 0")
        a.label(L)
        a("ds_read_b32 v13, v12")
        for r in reads: a(r)
        a(f"s_add_u32 {s(sSPIN)}, {s(sSPIN)}, 1\ns_cmp_gt_u32 {s(sSPIN)}, {SPIN_MAX}\ns_waitcnt lgkmcnt(0)\ns_cbranch_scc1 {X}")
        a(f"v_cmp_eq_u32 vcc, 0, v13\ns_cbranch_vccnz {L}")
        a.label(X)
    def pair_send(self, kind):
        a = self.a
        a(f"s_lshl_b32 {s(sT0)}, {s(sWAVE)}, 3\ns_add_u32 {s(sT0)}, {s(sT0)}, {SC_FLAG+4*kind}\nv_mov_b32 v12, {s(sT0)}\nv_mov_b32 v13, 1\nds_write_b32 v12, v13")

    def epilogue_A(self):
        a = self.a; G = self; T = G.TMP
        RR = G.XF
        a(f"s_lshl_b32 {s(sT0)}, {s(sWAVE)}, 8\ns_add_u32 {s(sT0)}, {s(sT0)}, {SC_R}\nv_lshl_add_u32 v9, v3, 4, {s(sT0)}")
        self.fixup("A")
        for rb in range(2):
            for q in range(4): a(f"ds_read_b128 {v(RR+16*rb+4*q,4)}, v9 offset:{128*rb+32*q}")
        ON = 84
        for q in range(4): a(f"v_mov_b32 {v(ON+q)}, 0x3f803f80")
        a(f"v_mov_b32 v10, {fl(1e-6)}\nv_mov_b32 v11, {fl(1.4426950408889634)}")
        a("s_waitcnt lgkmcnt(0)")
        t = T + 16; u = T + 24
        PK, PV = 48, 72
        KV, Z = G.acc(0, 0), G.acc(1, 0)
        n = 0
        mf = []
        for rb in range(2):
            for kh in range(2):
                c = G.acc(0, rb) + 8*kh; cv = G.acc(1, rb) + 8*kh; r = RR + 16*rb + 8*kh
                P = PK + 4*(n & 1); Q = PV + 4*(n & 1)
                for j in range(8): a(f"v_mul_f32 {v(t+j)}, {v(c+j)}, {v(r+j)}")
                for j in range(8): a(f"v_mul_f32 {v(u+j)}, v11, {v(t+j)}")
                for j in range(8): a(f"v_exp_f32 {v(u+j)}, {v(u+j)} clamp")
                for j in range(8): a(f"v_max_f32 {v(t+j)}, v10, {v(t+j)}")
                for j in range(8): a(f"v_add_f32 {v(t+j)}, {v(t+j)}, {v(u+j)}")
                for j in range(8): a(f"v_mul_f32 {v(u+j)}, {v(cv+j)}, {v(r+j)}")
                for j in range(4): a(f"v_cvt_pk_bf16_f32 {v(P+j)}, {v(t+2*j)}, {v(t+2*j+1)}")
                for j in range(4): a(f"v_cvt_pk_bf16_f32 {v(Q+j)}, {v(u+2*j)}, {v(u+2*j+1)}")
                n += 1
                a(f"v_mfma_f32_32x32x16_bf16 {v(G.KVA,16)}, {v(P,4)}, {v(Q,4)}, {v(G.KVA,16) if n>1 else 0}")
                a(f"v_mfma_f32_32x32x16_bf16 {v(G.ZZ,16)}, {v(P,4)}, {v(ON,4)}, {v(G.ZZ,16) if n>1 else 0}")
        self.ts("cA_kv")
        sREC, sFL, sHD = 26, 27, 3
        a(f"s_lshl_b32 {s(sHD)}, {s(sG)}, 1\ns_add_u32 {s(sHD)}, {s(sHD)}, {s(sCH)}\ns_lshl_b32 {s(sHD)}, {s(sHD)}, 1\ns_add_u32 {s(sHD)}, {s(sHD)}, {s(sRH)}")
        a(f"s_mul_i32 {s(sREC)}, {s(sHD)}, 10240\ns_add_u32 {s(sREC)}, {s(sREC)}, {WS_KV}")
        a(f"s_lshl_b32 {s(sFL)}, {s(sHD)}, 7\ns_add_u32 {s(sFL)}, {s(sFL)}, {WS_FK}")
        a(f"v_cmp_gt_u32 {s(sM,2)}, 16, v2")
        a("v_lshl_add_u32 v8, v3, 4, v2\nv_lshlrev_b32 v8, 4, v8\nv_lshlrev_b32 v9, 4, v3\nv_add_u32 v9, 512, v9")
        a(f"v_cndmask_b32 v14, v9, v8, {s(sM,2)}")
        a(f"v_mov_b32 v8, {hx(OOB)}\nv_cmp_ge_u32 vcc, 16, v2\nv_cndmask_b32 v15, v8, v14, vcc")
        a(f"s_lshl_b32 {s(sT0)}, {s(sWAVE)}, 11\ns_add_u32 {s(sT0)}, {s(sT0)}, {SC_KVX}\nv_xor_b32 v8, 16, v1\nv_lshl_add_u32 v8, v8, 4, {s(sT0)}")
        a(f"s_xor_b32 {s(sT0)}, {s(sT0)}, 4096\nv_lshl_add_u32 v9, v1, 4, {s(sT0)}")
        for j in range(8): a(f"v_cndmask_b32 {v(u+j)}, {v(G.KVA+8+j)}, {v(G.ZZ+8+j)}, {s(sM,2)}")
        a(f"ds_write_b128 v8, {v(u,4)}\nds_write_b128 v8, {v(u+4,4)} offset:1024")
        self.pair_send(0)
        for j in range(8): a(f"v_cndmask_b32 {v(t+j)}, {v(G.ZZ+j)}, {v(G.KVA+j)}, {s(sM,2)}")
        self.pair_recv(0, [f"ds_read_b128 {v(u,4)}, v9", f"ds_read_b128 {v(u+4,4)}, v9 offset:1024"])
        for j in range(8): a(f"v_add_f32 {v(t+j)}, {v(t+j)}, {v(u+j)}")
        for j in range(4): a(f"v_cvt_pk_bf16_f32 {v(PK+j)}, {v(t+2*j)}, {v(t+2*j+1)}")
        a(f"s_mul_i32 {s(sT1)}, {s(sI)}, 640\ns_add_u32 {s(sT1)}, {s(sT1)}, {s(sREC)}")
        a(f"buffer_store_dwordx4 {v(PK,4)}, v15, {s(sWS,4)}, {s(sT1)} offen sc1")
        self.ts("cA_pub")
        PQ = RR
        for rb in range(2):
            rl, ep, r = G.GC + rb, G.GC + 2 + rb, G.SG + 4*rb + 1
            for hh in range(2):
                c = G.acc(2, rb) + 8*hh
                for j in range(8): a(f"v_mul_f32 {v(u+j)}, {v(rl)}, {v(c+j)}")
                for j in range(8): a(f"v_exp_f32 {v(u+j)}, {v(u+j)} clamp")
                for j in range(8): a(f"v_max_f32 {v(t+j)}, {v(ep)}, {v(c+j)}")
                for j in range(8): a(f"v_fmac_f32 {v(u+j)}, {v(t+j)}, {v(r)}")
                for j in range(4): a(f"v_cvt_pk_bf16_f32 {v(PQ+8*rb+4*hh+j)}, {v(u+2*j)}, {v(u+2*j+1)}")
        a(f"s_lshl_b32 {s(sT1)}, {s(sI)}, 2\ns_add_u32 {s(sT1)}, {s(sT1)}, {s(sFL)}")
        self.ts("cA_q")
        a("s_waitcnt vmcnt(0)")
        self.flag_store(sT1, 11)
        self.ts("cA_flag")
        a("v_lshlrev_b32 v8, 2, v5")
        self.poll(8, 11, sFL)
        self.ts("cA_poll")
        GA = G.ACC
        for p in range(16):
            if p % 4 == 0 and p: a(f"s_add_u32 {s(sREC)}, {s(sREC)}, 2560")
            a(f"buffer_load_dwordx4 {v(GA+4*p,4)}, v14, {s(sWS,4)}, {s(sREC)} offen offset:{640*(p%4)} sc1")
        self.ho_base(sREC, 43)
        a(f"s_lshl_b32 {s(sT1)}, {s(sI)}, 1\ns_add_u32 {s(sT1)}, {s(sT1)}, {s(sRH)}\ns_lshl_b32 {s(sFL)}, {s(sT1)}, 7\ns_lshl_b32 {s(sT1)}, {s(sT0)}, 2\ns_add_u32 {s(sFL)}, {s(sFL)}, {s(sT1)}\ns_add_u32 {s(sFL)}, {s(sFL)}, {WS_FO}")
        for p in range(16):
            a(f"s_waitcnt vmcnt({15-p})")
            a(f"v_mfma_f32_32x32x16_bf16 {v(G.KVA,16)}, {v(G.IDN,4)}, {v(GA+4*p,4)}, {v(G.KVA,16) if p else 0}")
        self.ts("cA_gath")
        F = [PK, PK + 4]
        a("v_lshlrev_b32 v10, 4, v1\nv_xor_b32 v8, 4096, v9")
        for j in range(4): a(f"v_cvt_pk_bf16_f32 {v(F[0]+j)}, {v(G.KVA+2*j)}, {v(G.KVA+2*j+1)}")
        a(f"ds_write_b128 v9, {v(F[0],4)}")
        self.pair_send(1)
        O = [G.ACC + 16*k for k in range(4)]
        for rb in range(2): a(f"v_mfma_f32_32x32x16_bf16 {v(O[2*rb],16)}, {v(F[0],4)}, {v(PQ+8*rb,4)}, 0")
        self.pair_recv(1, [f"ds_read_b128 {v(F[1],4)}, v8"])
        for rb in range(2): a(f"v_mfma_f32_32x32x16_bf16 {v(O[2*rb+1],16)}, {v(F[1],4)}, {v(PQ+8*rb+4,4)}, 0")
        a(f"s_mul_i32 {s(sT2)}, {s(sRH)}, {59*1024}\ns_xor_b32 {s(sT3)}, {s(sRH)}, 1\ns_mul_i32 {s(sT3)}, {s(sT3)}, {59*1024}")
        a(f"s_add_u32 {s(sT2)}, {s(sT2)}, {s(sREC)}\ns_add_u32 {s(sT3)}, {s(sT3)}, {s(sREC)}")
        n = 0
        for hh in range(2):
            for rb in range(2):
                o = O[2*rb+hh]; P = PV + 4*(n & 1); n += 1
                a(f"v_add_f32 {v(t)}, {fl(1e-6)}, {v(o+8)}\nv_rcp_f32 {v(t)}, {v(t)}")
                a(f"s_add_u32 {s(sT4)}, {s(sT2+hh)}, {rb*118*1024}")
                for j in range(8): a(f"v_mul_f32 {v(o+j)}, {v(t)}, {v(o+j)}")
                for j in range(4): a(f"v_cvt_pk_bf16_f32 {v(P+j)}, {v(o+2*j)}, {v(o+2*j+1)}")
                a(f"buffer_store_dwordx4 {v(P,4)}, v10, {s(sWS,4)}, {s(sT4)} offen sc1")
        self.ts("cA_o")
        self.p2_setup()
        a("s_waitcnt vmcnt(8)")
        self.flag_store(sFL, 11)
    KVA = 56
    ZZ = 124

    Y, S2 = 160, 192
    AR = 16; D = 8
    BF = 48
    vBA = 72
    vA, vXC, vXP, vOUT = 78, 79, 80, 81
    XR = 224; B2 = 232
    def p2_setup(self):
        a = self.a; G = self
        self.srd(sOUT, 20, 2097152); self.srd(sB2, 18, 1024)
        sA = sKST
        a(f"s_lshl_b32 {s(sT1)}, {s(sI)}, 1\ns_add_u32 {s(sT1)}, {s(sT1)}, {s(sHF)}\ns_lshl_b32 {s(sT2)}, {s(sT1)}, 2\ns_add_u32 {s(sT2)}, {s(sT2)}, {s(sWAVE)}\ns_mul_i32 {s(sA)}, {s(sT2)}, {59*1024}")
        a(f"v_lshlrev_b32 {v(G.vA)}, 4, v1")
        a(f"v_lshrrev_b32 v8, 2, v5\nv_lshl_add_u32 v8, v3, 2, v8\ns_lshl_b32 {s(sT2)}, {s(sCH)}, 4\nv_add_u32 v8, {s(sT2)}, v8\nv_lshlrev_b32 v8, 7, v8")
        a("v_and_b32 v9, 1, v5\nv_lshl_add_u32 v8, v9, 3, v8")
        a("v_and_b32 v9, 1, v4\nv_lshlrev_b32 v9, 1, v9\nv_bfe_u32 v12, v5, 1, 1\nv_add_u32 v9, v9, v12\nv_lshrrev_b32 v12, 3, v5\nv_lshlrev_b32 v12, 2, v12\nv_xor_b32 v9, v9, v12")
        a(f"s_lshl_b32 {s(sT2)}, {s(sCH)}, 2\nv_xor_b32 v9, {s(sT2)}, v9")
        a(f"v_lshl_add_u32 {v(G.vBA)}, v9, 4, v8\nv_xor_b32 v9, 4, v9\nv_lshl_add_u32 {v(G.vBA+1)}, v9, 4, v8")
        for w in (1, 2):
            for cb in range(2): a(f"v_add_u32 {v(G.vBA+2*w+cb)}, {65536*w}, {v(G.vBA+cb)}")
        a(f"s_lshl_b32 {s(sT2)}, {s(sWAVE)}, 12\ns_add_u32 {s(sT2)}, {s(sT2)}, {XCH_Y}\nv_add_u32 {v(G.vXC)}, {s(sT2)}, {v(G.vA)}")
        a(f"s_xor_b32 {s(sT2)}, {s(sWAVE)}, 1\ns_lshl_b32 {s(sT2)}, {s(sT2)}, 12\ns_add_u32 {s(sT2)}, {s(sT2)}, {XCH_Y}\nv_add_u32 {v(G.vXP)}, {s(sT2)}, {v(G.vA)}")
        a(f"s_lshl_b32 {s(sT1)}, {s(sT1)}, 1\ns_add_u32 {s(sT1)}, {s(sT1)}, {s(sRH)}\ns_lshl_b32 {s(sT1)}, {s(sT1)}, 15")
        a(f"s_lshl_b32 {s(sT2)}, {s(sCT)}, 1\ns_add_u32 {s(sT2)}, {s(sT2)}, {s(sCH)}\ns_lshl_b32 {s(sT2)}, {s(sT2)}, 6\ns_add_u32 {s(sT1)}, {s(sT1)}, {s(sT2)}")
        a(f"v_lshl_add_u32 v8, v2, 10, {s(sT1)}\nv_lshl_add_u32 v9, v3, 3, v8\nv_lshl_add_u32 {v(G.vOUT)}, v3, 4, v8\nv_lshl_add_u32 v12, v3, 3, {s(sT2)}")
        for q in range(4): a(f"buffer_load_dwordx2 {v(G.XR+2*q,2)}, v9, {s(sX,4)}, 0 offen offset:{16*q}")
        for q in range(4): a(f"buffer_load_dwordx2 {v(G.B2+2*q,2)}, v12, {s(sB2,4)}, 0 offen offset:{16*q}")

    def phase2(self):
        a = self.a; G = self; D = G.D; sA = sKST
        a.label("L_phase2")
        vm = Cnt(a, "vmcnt", 63); lg = Cnt(a, "lgkmcnt", 15)
        def aload(sig):
            if sig >= 59: return
            if sig % 4 == 0 and sig: a(f"s_add_u32 {s(sA)}, {s(sA)}, 4096")
            a(f"buffer_load_dwordx4 {v(G.AR+4*(sig%D),4)}, {v(G.vA)}, {s(sWS,4)}, {s(sA)} offen offset:{1024*(sig%4)} sc1"); vm.issue(("A", sig))
        def breads(sig):
            if sig >= 59: return []
            base = b_lds(sig); w = base >> 16; off = base & 0xffff
            return [f"ds_read_b64_tr_b16 {v(G.BF+8*(sig%3)+4*cb+2*q,2)}, {v(G.vBA+2*w+cb)} offset:{off+1024*q}" for cb in range(2) for q in range(2)]
        def ds(x, tag): a(x); lg.issue(tag)
        self.ts("c_p0")
        a("s_barrier")
        self.ts("c_p0x")
        for sig in range(D): aload(sig)
        for sig in range(2):
            for r in breads(sig): ds(r, ("B", sig))
        T = 96; YK = 112; BB = 128; XX = 144
        work = []
        for q in range(8):
            work += [f"v_lshlrev_b32 {v(BB+2*q)}, 16, {v(G.B2+q)}", f"v_and_b32 {v(BB+2*q+1)}, 0xffff0000, {v(G.B2+q)}"]
        for q in range(8):
            work += [f"v_lshlrev_b32 {v(XX+2*q)}, 16, {v(G.XR+q)}", f"v_and_b32 {v(XX+2*q+1)}, 0xffff0000, {v(G.XR+q)}"]
        gw = []
        for half in range(2):
            o = 8 * half
            gw += [f"v_add_f32 {v(YK+o+j)}, {v(T+o+j)}, {v(G.Y+o+j)}" for j in range(8)]
            gw += [f"v_add_f32 {v(YK+o+j)}, {v(YK+o+j)}, {v(BB+o+j)}" for j in range(8)]
            gw += [f"v_mul_f32 {v(T+o+j)}, {fl(-1.4426950408889634)}, {v(YK+o+j)}" for j in range(8)]
            gw += [f"v_exp_f32 {v(T+o+j)}, {v(T+o+j)}" for j in range(8)]
            gw += [f"v_add_f32 {v(T+o+j)}, 1.0, {v(T+o+j)}" for j in range(8)]
            gw += [f"v_rcp_f32 {v(T+o+j)}, {v(T+o+j)}" for j in range(8)]
            gw += [f"v_mul_f32 {v(YK+o+j)}, {v(YK+o+j)}, {v(T+o+j)}" for j in range(8)]
        for sig in range(59):
            acc = G.Y if sig < 43 else G.S2; first = sig in (0, 43)
            lg.wait(("B", sig)); vm.wait(("A", sig))
            A = v(G.AR + 4*(sig % D), 4)
            m = [f"v_mfma_f32_32x32x16_bf16 {v(acc+16*cb,16)}, {v(G.BF+8*(sig%3)+4*cb,4)}, {A}, {0 if first else v(acc+16*cb,16)}" for cb in range(2)]
            self.ts(f"c_s{sig}")
            a(m[0])
            if sig in (6, 21, 35, 42): a("s_barrier")
            if sig == 47:
                lg.wait("yw"); a("s_barrier")
                for q in range(4): ds(f"ds_read_b128 {v(T+4*q,4)}, {v(G.vXP)} offset:{1024*q}", "yr")
            rd = breads(sig + 2)
            for r in rd[:2]: ds(r, ("B", sig + 2))
            fill = []
            if 1 <= sig <= 8: fill = work[4*(sig-1): 4*sig]
            if sig == 49: lg.wait("yr")
            if 49 <= sig <= 58: fill = gw[12*(sig-49): 12*(sig-48)]
            h = len(fill) // 2
            for f in fill[:h]: a(f)
            a(m[1])
            for r in rd[2:]: ds(r, ("B", sig + 2))
            aload(sig + D)
            for f in fill[h:]: a(f)
            if sig == 44:
                for q in range(4): ds(f"ds_write_b128 {v(G.vXC)}, {v(G.Y+16+4*q,4)} offset:{1024*q}", "yw")
        self.ts("c_loop")
        for q in range(4): a(f"ds_write_b128 {v(G.vXC)}, {v(G.S2+16+4*q,4)} offset:{16384+1024*q}")
        a("s_waitcnt lgkmcnt(0)\ns_barrier")
        for q in range(4): a(f"ds_read_b128 {v(T+4*q,4)}, {v(G.vXP)} offset:{16384+1024*q}")
        for j in range(16): a(f"v_fmac_f32 {v(XX+j)}, {v(G.S2+j)}, {v(YK+j)}")
        for half in range(2):
            a(f"s_waitcnt lgkmcnt({2-2*half})")
            o = 8 * half; P = BB + 4 * half
            for j in range(8): a(f"v_fmac_f32 {v(XX+o+j)}, {v(T+o+j)}, {v(YK+o+j)}")
            for j in range(4): a(f"v_cvt_pk_bf16_f32 {v(P+j)}, {v(XX+o+2*j)}, {v(XX+o+2*j+1)}")
            a(f"v_permlane32_swap_b32 {v(P)}, {v(P+2)}\nv_permlane32_swap_b32 {v(P+1)}, {v(P+3)}")
            a(f"buffer_store_dwordx4 {v(P,4)}, {v(G.vOUT)}, {s(sOUT,4)}, 0 offen offset:{32*half}")
        self.ts("c_end")
        self.ts_flush()

    def build(self):
        a = self.a
        self.prologue()
        self.loader()
        self.compute_setup()
        self.mainloop("A"); self.epilogue_A()
        if self.stop == "p1": self.ts_flush(); a("s_endpgm")
        else: a("s_branch L_phase2")
        a.label("L_typeB")
        self.mainloop("B"); self.epilogue_B()
        if self.stop == "p1": self.ts_flush(); a("s_endpgm")
        else: self.phase2()
        a.label("L_end")
        a("s_endpgm")
        for t in self.tail: a(t)
        a("L_last:\ns_endpgm")
        body = a.finalize(verbose=True)
        head = open("cdna_kernels/" + KN[:-7] + ".s.ref").read().split("; Override launch")[0]
        return head + f"""; @launch grid=(256,1,1) block=(512,1,1) lds={LDS_SIZE}
.amdgcn_target "amdgcn-amd-amdhsa--gfx950"
.text
.globl {KN}
.p2align 8
.type {KN},@function
{KN}:
{body}
.section .rodata,"a"
.p2align 6
.amdhsa_kernel {KN}
  .amdhsa_next_free_vgpr 256
  .amdhsa_next_free_sgpr 102
  .amdhsa_accum_offset 256
  .amdhsa_group_segment_fixed_size 0
  .amdhsa_kernarg_size 88
  .amdhsa_user_sgpr_count 2
  .amdhsa_user_sgpr_kernarg_segment_ptr 1
  .amdhsa_system_sgpr_workgroup_id_x 1
.end_amdhsa_kernel
"""

if __name__ == "__main__":
    import argparse
    ap = argparse.ArgumentParser()
    ap.add_argument("out"); ap.add_argument("--diag", nargs="?", const="rt"); ap.add_argument("--stop"); ap.add_argument("--dbgout", action="store_true"); ap.add_argument("--marks"); ap.add_argument("--opts"); ap.add_argument("--probe")
    x = ap.parse_args()
    open(x.out, "w").write(Gen(diag=x.diag, stop=x.stop, dbgout=x.dbgout, marks=x.marks, opts=x.opts, probe=x.probe).build())
```

```python
import sys, struct
from asmlib import Asm, v, s

KN = "recurrent_scan__linear_attn_block__dense_activation_gelu__prompt_kernel"
def f2u(x): return struct.unpack("<I", struct.pack("<f", x))[0]
def hx(x): return f"0x{x & 0xffffffff:08x}"
def fl(x): return hx(f2u(x))

WS_HO = 0
WS_KV = 8 << 20
WS_ST = 9 << 20
FS = 7
FG = 16 << FS
WS_FH = 10 << 20
WS_FO = WS_FH + 96 * FG
WS_FK = WS_FO + 32 * FG
WS_TS = 12 << 20
WS_SIZE = 268435456
OOB = 0x80000000
SLOT = [0, 40960, 81920]
R0 = 122880
SCR = 151552
SC_NONCE = SCR
SC_FLAG = SCR + 64
SC_PROG = SC_FLAG + 64
SC_CS = SCR + 256
SC_R = SCR + 2048
SC_KVX = SCR + 4096
LDS_SIZE = 163840
def b_lds(sig):
    if sig < 7: return R0 + sig * 4096
    if sig < 17: return SLOT[2] + (sig - 7) * 4096
    if sig < 27: return SLOT[0] + (sig - 17) * 4096
    if sig < 37: return SLOT[1] + (sig - 27) * 4096
    return b_lds(sig - 37)
XCH_Y = SLOT[1]
XCH_S = SLOT[1] + 16384
XT = SLOT[1] + 32768
ORDER = []
for p in range(3):
    for g in range(8):
        for ch in range(2):
            f = 6 * g + 2 * p + ch
            if f < 43: ORDER.append(("w2", f))
ORDER += [("wo", f) for f in range(16)]
assert len(ORDER) == 59
SIG0 = [0, 15, 29]
SPIN_MAX = 1 << 18

sX, sW, sW2, sWO, sWS, sDBG, sOUT, sB1, sB2 = 28, 32, 36, 40, 44, 48, 52, 56, 60
sWAVE, sI, sG, sTYPE, sHF, sCT, sKST, sRH, sCH, sNONCE, sSTR = 64, 65, 66, 67, 68, 69, 70, 71, 72, 73, 74
sT0, sT1, sT2, sT3, sT4, sT5 = 75, 76, 77, 78, 79, 80
sC0 = 81
sSPIN = 84
sM = 86
sLM = 60
sWD = 10
sWB = 56
sTS = 88

class Cnt:
    def __init__(self, a, name, mx): self.a, self.name, self.mx, self.q = a, name, mx, []
    def issue(self, tag): self.q.append(tag)
    def wait(self, tag):
        if tag not in self.q: return
        k = len(self.q) - 1 - max(i for i, t in enumerate(self.q) if t == tag)
        k = min(k, self.mx)
        self.a(f"s_waitcnt {self.name}({k})")
        self.q = self.q[len(self.q) - k:] if k else []
    def wait_all(self):
        self.a(f"s_waitcnt {self.name}(0)"); self.q = []

class Gen:
    def __init__(self, diag=False, stop=None, dbgout=False, marks=None, opts=None, probe=None):
        self.probe = tuple(int(x) for x in probe.split(',')) if probe else None
        self.o = dict(cpf=1, twoA=0, twoB=0, park=1, wt=1, w2t=1, bud2=70, fpos=4, hbar=0, psc=0, fsc=0, pk=1, kpoll=4, early=0, thr=0, D=8, asc=1, ws=3, xl=1, mp=1, grp=11111111, ga=19, gc=25, bud=22, b6=4, b7=7, pA=0, pB=0, pk0=2, seg=0, t1=15, t2=1, tb=0, tbs=2, hbarA=0, nA=24, nB=15)
        for kv in (opts or '').split(','):
            if kv: k, x = kv.split('='); assert k in self.o, k; self.o[k] = int(x)
        self.dbgout = dbgout; self.verbose = True
        self.marks = {"start": 0}
        for grp in (marks or "c_bar0,c_main,cA_q|cB_gelu,c_p0,c_loop,c_end;l_bar0,l_bar8,l_bland,l_p0,l_p3,l_end").split(";"):
            for k, nm in enumerate(grp.split(",")):
                for x in nm.split("|"): self.marks[x] = k + 1
        self.a = Asm(); self.diag = diag; self.stop = stop; self.uid = 0; self.tail = []
    def lab(self, n): self.uid += 1; return f"L{n}_{self.uid}"
    def ts(self, name):
        if not self.diag or name not in self.marks: return
        k = self.marks[name]
        if self.diag == "both":
            if k == 0: self.a(f"s_memrealtime {s(sTS, 2)}")
            elif k <= 3: self.a(f"s_memrealtime {s(sTS + 2 * k, 2)}\ns_memtime {s(sTS + 2 * k + 6, 2)}")
            return
        self.a(f"{'s_memtime' if self.diag == 'cyc' else 's_memrealtime'} {s(sTS + 2 * k, 2)}")
    def ts_flush(self):
        if not self.diag: return
        a = self.a
        if self.probe:
            pa, pb = self.probe
            L = self.lab("probe"); X = self.lab("probex")
            op = 's_memtime' if self.diag == 'cyc' else 's_memrealtime'
            a(f"s_cmp_ge_u32 {s(sWAVE)}, 4\ns_cbranch_scc1 {X}")
            a(f"{op} {s(sM,2)}\ns_waitcnt lgkmcnt(0)")
            if pa < 0: a(f"s_mov_b32 {s(sT0)}, {pb}")
            else: a(f"s_sub_u32 {s(sT0)}, {s(sTS+2*pb)}, {s(sTS+2*pa)}\ns_lshl_b32 {s(sT0)}, {s(sT0)}, 2")
            a(f"s_min_u32 {s(sT0)}, {s(sT0)}, 400000\ns_mov_b32 {s(sT1)}, {s(sM)}")
            a.label(L)
            a(f"{op} {s(sM,2)}\ns_waitcnt lgkmcnt(0)\ns_sub_u32 {s(sT2)}, {s(sM)}, {s(sT1)}\ns_cmp_lt_u32 {s(sT2)}, {s(sT0)}\ns_cbranch_scc1 {L}")
            a.label(X)
            return
        a("s_waitcnt lgkmcnt(0)")
        a(f"s_lshl_b32 {s(sT0)}, s2, 3\ns_add_u32 {s(sT0)}, {s(sT0)}, {s(sWAVE)}\ns_lshl_b32 {s(sT0)}, {s(sT0)}, 5\ns_add_u32 {s(sT0)}, {s(sT0)}, {WS_TS}")
        for k in range(7): a(f"v_mov_b32 v{8+k}, {s(sTS+2*k)}")
        a("v_mov_b32 v15, 0\nv_mov_b32 v7, 0")
        a("s_mov_b64 exec, 1")
        a(f"buffer_store_dwordx4 v[8:11], v7, {s(sWS,4)}, {s(sT0)} offen")
        a(f"buffer_store_dwordx4 v[12:15], v7, {s(sWS,4)}, {s(sT0)} offen offset:16")
        if self.dbgout:
            L = self.lab("dbgo")
            self.srd(sDBG, 22, 256)
            a(f"s_cmp_lg_u32 {s(sWAVE)}, 0\ns_cbranch_scc1 {L}\ns_and_b32 {s(sT0)}, s2, 0xdf\ns_cmp_lg_u32 {s(sT0)}, 0\ns_cbranch_scc1 {L}")
            for k in range(6, -1, -1): a(f"v_subrev_u32 v{8+k}, {s(sTS)}, v{8+k}")
            a(f"s_add_u32 {s(sT0)}, s2, 4")
            a(f"buffer_store_dwordx4 v[9:12], v7, {s(sDBG,4)}, {s(sT0)} offen".replace("v[9:12]", "v[8:11]"))
            a(f"buffer_store_dwordx3 v[12:14], v7, {s(sDBG,4)}, {s(sT0)} offen offset:16")
            a.label(L)
        a("s_mov_b64 exec, -1")

    def srd(self, d, ptr, size):
        self.a(f"s_mov_b32 {s(d)}, {s(ptr)}\ns_mov_b32 {s(d+1)}, {s(ptr+1)}\ns_mov_b32 {s(d+2)}, {size}\ns_mov_b32 {s(d+3)}, 0x00020000")

    def poll_text(self, vaddr, vtmp, soff, L, X):
        if self.o["mp"]:
            return (f"s_mov_b32 {s(sSPIN)}, 0\ns_mov_b64 exec, 0xffff\n{L}:\n"
                    f"buffer_load_dword {v(vtmp)}, {v(vaddr)}, {s(sWS,4)}, {s(soff)} offen sc1\n"
                    f"s_add_u32 {s(sSPIN)}, {s(sSPIN)}, 1\ns_cmp_gt_u32 {s(sSPIN)}, {SPIN_MAX}\ns_waitcnt vmcnt(0)\ns_cbranch_scc1 {X}\n"
                    f"v_cmp_ne_u32 vcc, {s(sNONCE)}, {v(vtmp)}\ns_and_b64 exec, exec, vcc\ns_cbranch_execnz {L}\n{X}:\ns_mov_b64 exec, -1")
        return (f"s_mov_b32 {s(sSPIN)}, 0\n{L}:\n"
                f"buffer_load_dword {v(vtmp)}, {v(vaddr)}, {s(sWS,4)}, {s(soff)} offen sc1\n"
                f"s_add_u32 {s(sSPIN)}, {s(sSPIN)}, 1\ns_cmp_gt_u32 {s(sSPIN)}, {SPIN_MAX}\ns_waitcnt vmcnt(0)\ns_cbranch_scc1 {X}\n"
                f"v_cmp_ne_u32 vcc, {s(sNONCE)}, {v(vtmp)}\ns_cbranch_vccnz {L}\n{X}:")
    def poll(self, vaddr, vtmp, soff):
        self.a(self.poll_text(vaddr, vtmp, soff, self.lab("poll"), self.lab("pollx")))

    def prologue(self):
        a = self.a
        a("s_cmp_ge_u32 s2, 256\ns_cbranch_scc1 L_end")
        a("s_load_dwordx16 s[4:19], s[0:1], 0\ns_load_dwordx4 s[20:23], s[0:1], 64\ns_load_dwordx2 s[24:25], s[0:1], 80")
        if self.diag:
            for k in range(1, 7): a(f"s_mov_b32 {s(sTS+2*k)}, 0")
        self.ts("start")
        if self.o["cpf"]:
            a(f"s_getpc_b64 s[26:27]\nL_pc:\nv_lshlrev_b32 v3, 7, v0\nv_min_u32 v3, L_last-L_pc, v3\nglobal_load_dword {v(self.vDUM)}, v3, s[26:27]")
        a("v_lshrrev_b32 v2, 6, v0\nv_and_b32 v1, 63, v0")
        a(f"s_and_b32 {s(sT0)}, s2, 3")
        a(f"v_readfirstlane_b32 {s(sWAVE)}, v2")
        a(f"s_bfe_u32 {s(sHF)}, s2, 0x10002")
        a(f"s_bfe_u32 {s(sCT)}, s2, 0x30003")
        a(f"s_lshr_b32 {s(sI)}, s2, 6\ns_lshl_b32 {s(sI)}, {s(sI)}, 2\ns_add_u32 {s(sI)}, {s(sI)}, {s(sT0)}")
        if self.o["seg"]: a(f"s_mov_b32 {s(sTYPE)}, {s(sHF)}\ns_mov_b32 {s(sG)}, {s(sCT)}")
        else:
            a(f"s_lshr_b32 {s(sTYPE)}, {s(sCT)}, 2")
            a(f"s_and_b32 {s(sG)}, {s(sCT)}, 3\ns_lshl_b32 {s(sT0)}, {s(sHF)}, 2\ns_add_u32 {s(sG)}, {s(sG)}, {s(sT0)}")
        a(f"s_lshl_b32 {s(sT0)}, {s(sG)}, 7\ns_mul_i32 {s(sT1)}, {s(sG)}, 384")
        a(f"s_add_u32 {s(sT2)}, {s(sT0)}, 1024\ns_add_u32 {s(sT3)}, {s(sT0)}, 2048\ns_add_u32 {s(sT4)}, {s(sT1)}, 128\ns_add_u32 {s(sT5)}, {s(sT1)}, 256")
        a(f"s_cmp_eq_u32 {s(sTYPE)}, 0")
        a(f"s_movk_i32 {s(sSTR)}, 2752\ns_cselect_b32 {s(sSTR)}, 3072, {s(sSTR)}")
        a(f"s_cselect_b32 {s(sC0)}, {s(sT2)}, {s(sT1)}\ns_cselect_b32 {s(sC0+1)}, {s(sT3)}, {s(sT4)}\ns_cselect_b32 {s(sC0+2)}, {s(sT0)}, {s(sT5)}")
        a(f"s_cmp_ge_u32 {s(sWAVE)}, 4\ns_cbranch_scc0 L_compute")

    def passes(self, typ):
        two = self.o["twoA"] if typ == "A" else self.o["twoB"]
        return ([(0, 1), (2,)], 1) if two else ([(0, 1, 2)], 0)

    def loader(self):
        a = self.a
        vX, vW, vB, vP, vT, vL, PARK = 10, 14, 20, 21, 22, 24, 32
        sWK, sKX, sKW, sXB, sF = 85, 26, 27, 3, sT5
        a(f"s_and_b32 {s(sWK)}, {s(sWAVE)}, 3")
        a("v_lshrrev_b32 v2, 3, v1\nv_and_b32 v3, 7, v1\nv_lshrrev_b32 v4, 4, v1")
        a(f"s_and_b32 {s(sT0)}, {s(sWK)}, 1\ns_lshl_b32 {s(sT0)}, {s(sT0)}, 2\ns_lshl_b32 {s(sT1)}, {s(sWK)}, 3")
        a(f"v_add_u32 v5, {s(sT0)}, v4\nv_xor_b32 v5, v3, v5\nv_lshlrev_b32 v5, 4, v5")
        a(f"v_add_u32 v6, {s(sT1)}, v2")
        a(f"v_lshl_add_u32 {v(vX)}, v6, 10, v5")
        for m in range(1, 4): a(f"v_add_u32 {v(vX+m)}, {m*32768}, {v(vX)}")
        a("v_and_b32 v7, 1, v4\nv_lshlrev_b32 v7, 2, v7\nv_xor_b32 v7, v3, v7\nv_lshlrev_b32 v7, 4, v7")
        a(f"v_mul_u32_u24 v8, {s(sSTR)}, v6")
        a(f"s_lshl_b32 {s(sT2)}, {s(sSTR)}, 5\nv_mov_b32 v2, {hx(OOB)}")
        for p in range(3):
            a(f"v_add_u32 v9, {s(sC0+p)}, v7\nv_cmp_gt_u32 vcc, {s(sSTR)}, v9\nv_add_u32 v9, v8, v9\nv_add_u32 v3, {s(sT2)}, v9")
            a(f"v_cndmask_b32 {v(vW+2*p)}, v2, v9, vcc\nv_cndmask_b32 {v(vW+2*p+1)}, v2, v3, vcc")
        a(f"s_lshl_b32 {s(sWK)}, {s(sWK)}, 10\ns_lshl_b32 {s(sXB)}, {s(sI)}, 17\ns_lshl_b32 {s(sT3)}, {s(sSTR)}, 6")
        self.ts("l_pre")
        a("s_waitcnt lgkmcnt(0)")
        self.srd(sX, 4, 2097152)
        a(f"s_lshl_b32 {s(sW+2)}, {s(sSTR)}, 9\ns_mov_b32 {s(sW+3)}, 0x00020000\ns_cmp_eq_u32 {s(sTYPE)}, 0")
        a(f"s_cselect_b32 {s(sW)}, s6, s12\ns_cselect_b32 {s(sW+1)}, s7, s13")
        self.ts("l_karg")
        same = self.passes("A") == self.passes("B") and not self.o["hbar"] and not self.o["hbarA"] and self.o["pA"] == self.o["pB"]
        if not same: a("s_cbranch_scc0 L_loadB")
        def bsrc(sig):
            mat, f = ORDER[sig]
            a(f"s_mov_b32 {s(sF)}, {f*32768}")
            return s(sW2 if mat == 'w2' else sWO, 4)
        for typ in (("A",) if same else ("A", "B")):
            if typ == "B": a.label("L_loadB")
            vm = Cnt(a, "vmcnt", 63)
            ps, off = self.passes(typ)
            stages = [(pn, k) for pn in ps for k in range(8)]; N = len(stages)
            def stage(st):
                pn, k = stages[st]; base = SLOT[(st + off) % 3]
                gs = [int(c) for c in str(self.o["grp"])]; assert sum(gs) == 8
                g0 = 0
                for n in gs:
                    if k < g0 + n: break
                    g0 += n
                if n == 1:
                    a(f"s_add_u32 {s(sKX)}, {s(sXB)}, {128*k}\ns_mul_i32 {s(sKW)}, {s(sT3)}, {k}")
                else:
                    if k == g0:
                        a(f"s_lshr_b32 {s(sKST)}, s2, 6\ns_mul_i32 {s(sKST)}, {s(sKST)}, {max(1, (n+1)//4)}\ns_add_u32 {s(sKST)}, {s(sKST)}, {s(sCT)}")
                        a(f"s_mul_i32 {s(sT0)}, {s(sKST)}, {-(-256//n)}\ns_lshr_b32 {s(sT0)}, {s(sT0)}, 8\ns_mul_i32 {s(sT0)}, {s(sT0)}, {n}\ns_sub_u32 {s(sKST)}, {s(sKST)}, {s(sT0)}\ns_add_u32 {s(sKST)}, {s(sKST)}, {g0}")
                    else:
                        a(f"s_add_u32 {s(sKST)}, {s(sKST)}, 1\ns_cmp_eq_u32 {s(sKST)}, {g0+n}\ns_cselect_b32 {s(sKST)}, {g0}, {s(sKST)}")
                    a(f"s_lshl_b32 {s(sKX)}, {s(sKST)}, 7\ns_add_u32 {s(sKX)}, {s(sKX)}, {s(sXB)}\ns_mul_i32 {s(sKW)}, {s(sKST)}, {s(sT3)}")
                for m in range(2):
                    for p in pn:
                        a(f"s_add_u32 m0, {s(sWK)}, {base + 16384 + p*8192 + m*4096}")
                        a(f"buffer_load_dwordx4 {v(vW+2*p+m)}, {s(sW,4)}, {s(sKW)} offen lds"); vm.issue(("S", st))
                    for q in range(2):
                        mm = 2 * m + q
                        a(f"s_add_u32 m0, {s(sWK)}, {base + mm*4096}")
                        a(f"buffer_load_dwordx4 {v(vX+mm)}, {s(sX,4)}, {s(sKX)} offen lds"); vm.issue(("S", st))
            def bstep(sig):
                a(f"s_add_u32 m0, {s(sWK)}, {b_lds(sig)}")
                srd = bsrc(sig)
                a(f"buffer_load_dwordx4 {v(vB)}, {srd}, {s(sF)} offen lds"); vm.issue(("B", sig))
            def park(sig):
                srd = bsrc(sig)
                a(f"buffer_load_dwordx4 {v(PARK+4*(sig-37),4)}, {v(vB)}, {srd}, {s(sF)} offen"); vm.issue(("B", sig))
            nxt = 58
            stage(0); self.ts("l_s0"); stage(1); self.ts("l_s2")
            self.srd(sW2, 16, 1409024); self.srd(sWO, 8, 524288); self.srd(sWS, 24, WS_SIZE)
            a(f"s_lshl_b32 {s(sT0)}, {s(sCT)}, 7\nv_lshl_add_u32 {v(vB)}, v6, 10, v7\nv_add_u32 {v(vB)}, {s(sT0)}, {v(vB)}")
            a(f"v_and_b32 {v(vP)}, 15, v1\nv_lshlrev_b32 {v(vP)}, {FS}, {v(vP)}")
            a(f"v_lshl_add_u32 {v(vL)}, v1, 4, {s(sWK)}\nv_add_u32 {v(vL+1)}, 65536, {v(vL)}\nv_add_u32 {v(vL+2)}, 131072, {v(vL)}")
            for k in range(N):
                vm.wait(("S", k)); self.ts(f"l_land{k}"); a("s_barrier")
                self.ts(f"l_bar{k}")
                if k + 2 < N: stage(k + 2); self.ts(f"l_iss{k+2}")
                if self.o["pk0"] <= k < N:
                    for _ in range(self.o["p" + typ]):
                        if nxt >= 37: park(nxt); nxt -= 1
                if k == N - 2:
                    for sig in range(0, self.o['b6']): bstep(sig)
                if k == N - 1:
                    for sig in range(self.o['b6'], self.o['b7']): bstep(sig)
            a("s_barrier")
            self.ts("l_barN")
            vPG = 28
            a(f"s_lshr_b32 {s(sT0)}, {s(sWK)}, 8\ns_add_u32 {s(sT0)}, {s(sT0)}, {SC_PROG}\nv_mov_b32 {v(vPG)}, {s(sT0)}")
            def prog(lv): a(f"v_mov_b32 {v(vT)}, {lv}\nds_write_b32 {v(vPG)}, {v(vT)}")
            seq = list(range(self.o['b7'], nxt + 1)); lvl = [(14, 1), (22, 2), (36, 3)]
            for n_, sig in enumerate(seq):
                if self.o["hbar" if typ == "B" else "hbarA"] and sig == self.o["n" + typ]:
                    while lvl and lvl[0][0] < sig: vm.wait(("B", lvl[0][0])); prog(lvl.pop(0)[1])
                    a("s_barrier"); self.ts("l_gate")
                if sig < 37: bstep(sig)
                else: park(sig)
                if self.o["thr"]: vm.wait(("B", sig - self.o["thr"]))
                if lvl and sig >= lvl[0][0] + 6: vm.wait(("B", lvl[0][0])); prog(lvl.pop(0)[1])
            left_lvl = list(lvl)
            XP = PARK + 88
            if self.o["xl"]:
                a(f"s_lshl_b32 {s(sT0)}, {s(sI)}, 1\ns_add_u32 {s(sT0)}, {s(sT0)}, {s(sHF)}\ns_lshl_b32 {s(sT0)}, {s(sT0)}, 16\ns_lshl_b32 {s(sT1)}, {s(sCT)}, 7\ns_add_u32 {s(sT0)}, {s(sT0)}, {s(sT1)}")
                for m in range(2): a(f"buffer_load_dwordx4 {v(XP+4*m,4)}, {v(vX+m)}, {s(sX,4)}, {s(sT0)} offen"); vm.issue("xt")
            self.ts("l_bissue")
            for sg, lv in left_lvl: vm.wait(("B", sg)); prog(lv)
            vm.wait_all()
            self.ts("l_bland")
            if typ == "A" and not same: a("s_branch L_loadC")
        a.label("L_loadC")
        vDN = 29
        a(f"v_and_b32 {v(vDN)}, 3, v1\nv_lshlrev_b32 {v(vDN)}, 2, {v(vDN)}\nv_add_u32 {v(vDN)}, {SC_PROG+16}, {v(vDN)}")
        def done(lv):
            L = self.lab("dw"); X = self.lab("dwx")
            a(f"s_mov_b32 {s(sSPIN)}, 0")
            a.label(L)
            a(f"ds_read_b32 {v(vP)}, {v(vDN)}\ns_add_u32 {s(sSPIN)}, {s(sSPIN)}, 1\ns_cmp_gt_u32 {s(sSPIN)}, {SPIN_MAX*8}\ns_waitcnt lgkmcnt(0)\ns_cbranch_scc1 {X}")
            a(f"v_cmp_gt_u32 vcc, {lv}, {v(vP)}\ns_cbranch_vccnz {L}")
            a.label(X)
        if self.stop == "p1":
            vm.wait_all(); self.ts_flush(); a("s_endpgm"); return
        for lv, (lo, hi) in enumerate(((37, 44), (44, 54), (54, 59))):
            done(lv + 1)
            for sig in range(lo, hi):
                base = b_lds(sig); w = base >> 16
                a(f"ds_write_b128 {v(vL+w)}, {v(PARK+4*(sig-37),4)} offset:{base-65536*w}")
            prog(4 + lv)
            self.ts(f"l_ref{lv}")
        if self.o["xl"]:
            done(4)
            a(f"ds_write_b128 {v(vL+1)}, {v(XP,4)} offset:{XT-65536}\nds_write_b128 {v(vL+1)}, {v(XP+4,4)} offset:{XT-65536+4096}")
            prog(7)
        a("s_waitcnt lgkmcnt(0)")
        self.ts("l_end")
        self.ts_flush()
        a("s_endpgm")

    ACC = 160
    XF = 16
    WF = 32
    CS = 56
    SEL = 68
    vXA, vXB, vWE, vWO = 72, 76, 80, 83
    KVA = 86
    GR = 88
    B1 = 92
    vT0, vT1, vT2 = 96, 97, 98
    SG = 102
    IDN = 110
    XS = 114
    GC = 122
    vSTA, vSTG, vNZ, vDUM = 126, 127, 128, 129
    vFL = 7
    TMP = 130
    def acc(self, p, rb): return self.ACC + 32 * p + 16 * rb

    def it(self, text):
        cost = 0
        for ln in text.split("\n"):
            op = ln.split()[0]
            if op.endswith(":"): continue
            cost += 32 if op.startswith("v_mfma") else 8 if op in ("v_exp_f32", "v_rcp_f32", "v_rsq_f32") else 5 if (op.startswith(("ds_", "buffer_", "v_fma_", "v_cvt_pk", "v_cndmask", "v_lshl_add")) or "0x" in ln) else 4
        return (cost, lambda: self.a(text))
    def its(self, lst): return [self.it(x) for x in lst]
    def vmi(self, text, tag): return (6, lambda: (self.a(text), self.vm.issue(tag)))
    def vmw(self, tag): return (4, lambda: self.vm.wait(tag))
    def tsi(self, name): return (0, lambda: self.ts(name))
    def flush(self, q):
        while q:
            x = q.pop(0)
            if x == "NEXT": self.a("s_waitcnt lgkmcnt(0)")
            elif x == "BAR": raise RuntimeError("barrier marker left over")
            elif x[0] == "GI": continue
            else: x[1]()

    def compute_setup(self):
        a = self.a; G = self; T = G.TMP
        a.label("L_compute")
        self.vm = vm = Cnt(a, "vmcnt", 63)
        a(f"s_bfe_u32 {s(sRH)}, {s(sWAVE)}, 0x10001\ns_and_b32 {s(sCH)}, {s(sWAVE)}, 1")
        a("v_and_b32 v2, 31, v1\nv_lshrrev_b32 v3, 5, v1\nv_lshrrev_b32 v4, 4, v1\nv_and_b32 v5, 15, v1")
        a(f"v_mov_b32 {v(G.vNZ)}, 0")
        L = self.lab("non")
        a(f"s_or_b32 {s(sT3)}, s2, {s(sWAVE)}\ns_cmp_lg_u32 {s(sT3)}, 0\ns_cbranch_scc1 {L}")
        a(f"s_memrealtime {s(sM,2)}\ns_waitcnt lgkmcnt(0)")
        self.srd(sDBG, 22, 256)
        a(f"s_or_b32 {s(sT3)}, {s(sM)}, 1\nv_mov_b32 v8, {s(sT3)}\ns_mov_b64 exec, 1")
        a(f"buffer_store_dword v8, {v(G.vNZ)}, {s(sDBG,4)}, 0 offen sc1\ns_mov_b64 exec, -1")
        a.label(L)
        a("v_bfe_u32 v8, v1, 1, 3")
        a(f"s_lshl_b32 {s(sT2)}, {s(sRH)}, 13\nv_lshl_add_u32 v9, v2, 7, {s(sT2)}")
        for tau in range(4):
            a(f"s_xor_b32 {s(sT3)}, {s(sRH)}, {tau}\ns_lshl_b32 {s(sT3)}, {s(sT3)}, 1")
            a(f"v_add_u32 v10, {s(sT3)}, v3\nv_xor_b32 v10, v10, v8\nv_lshl_add_u32 {v(G.vXA+tau)}, v10, 4, v9\nv_add_u32 {v(G.vXB+tau)}, {SLOT[2]}, {v(G.vXA+tau)}")
        a("v_lshrrev_b32 v8, 2, v5\nv_lshl_add_u32 v8, v3, 3, v8\nv_lshlrev_b32 v8, 7, v8")
        a("v_and_b32 v9, 1, v4\nv_lshlrev_b32 v9, 1, v9\nv_bfe_u32 v10, v5, 1, 1\nv_add_u32 v9, v9, v10")
        a("v_lshrrev_b32 v10, 3, v5\nv_lshlrev_b32 v10, 2, v10\nv_xor_b32 v9, v9, v10")
        a("v_and_b32 v10, 1, v5\nv_lshlrev_b32 v10, 3, v10\nv_add_u32 v8, v8, v10")
        a(f"s_xor_b32 {s(sT3)}, {s(sTYPE)}, 1\ns_and_b32 {s(sT3)}, {s(sT3)}, {s(sRH)}\ns_lshl_b32 {s(sT3)}, {s(sT3)}, 1")
        a(f"s_lshl_b32 {s(sT2)}, {s(sCH)}, 2\ns_or_b32 {s(sT2)}, {s(sT2)}, {s(sT3)}\nv_xor_b32 v10, {s(sT2)}, v9\nv_lshl_add_u32 v10, v10, 4, v8")
        a(f"s_lshl_b32 {s(sT2)}, {s(sRH)}, 11")
        for sl in range(3):
            a(f"s_add_u32 {s(sT4)}, {s(sT2)}, {SLOT[sl]+16384}\ns_sub_u32 {s(sT5)}, {SLOT[sl]+16384}, {s(sT2)}")
            a(f"v_add_u32 {v(G.vWE+sl)}, {s(sT4)}, v10\nv_add_u32 {v(G.vWO+sl)}, {s(sT5)}, v10")
        a(f"v_lshrrev_b32 v8, 2, v5\nv_xor_b32 v8, v8, v4\nv_and_b32 v8, 1, v8\nv_cmp_eq_u32 vcc, 0, v8\nv_mov_b32 v9, 0x3f803f80")
        for q in range(4): a(f"v_cndmask_b32 {v(G.SEL+q)}, 0, v9, vcc")
        a(f"v_lshlrev_b32 v8, 2, v2\nv_add_u32 v8, {SC_FLAG}, v8\nds_write_b32 v8, {v(G.vNZ)}")
        a(f"s_lshl_b32 {s(sT0)}, {s(sHF)}, 3\ns_add_u32 {s(sT0)}, {s(sT0)}, {s(sCT)}\ns_lshl_b32 {s(sT0)}, {s(sT0)}, 3")
        a(f"s_lshl_b32 {s(sT1)}, {s(sI)}, 7\ns_add_u32 {s(sT0)}, {s(sT0)}, {s(sT1)}\ns_lshl_b32 {s(sT2)}, {s(sWAVE)}, 1\ns_add_u32 {s(sT0)}, {s(sT0)}, {s(sT2)}")
        a(f"v_add_u32 v6, {s(sT0)}, v3\nv_lshlrev_b32 v11, 4, v2\nv_lshl_add_u32 v11, v6, 10, v11")
        a(f"v_lshlrev_b32 v8, 4, v6\nv_mov_b32 v9, {hx(OOB)}\nv_cmp_eq_u32 vcc, 0, v2\nv_add_u32 v8, {WS_ST}, v8\nv_cndmask_b32 {v(G.vSTA)}, v9, v8, vcc")
        a(f"v_cmp_eq_u32 vcc, 0, v1\nv_cndmask_b32 {v(G.vFL)}, v9, {v(G.vNZ)}, vcc")
        a(f"s_lshl_b32 {s(sT2)}, {s(sRH)}, 6\ns_add_u32 {s(sT1)}, {s(sT1)}, {s(sT2)}\nv_add_u32 v8, {s(sT1)}, v2\nv_lshlrev_b32 v8, 4, v8\nv_add_u32 {v(G.vSTG)}, {WS_ST}, v8")
        L = self.lab("vw"); X = self.lab("vwx")
        a(f"v_mov_b32 {v(G.vT0)}, v9\nv_mov_b32 {v(G.vT1)}, v9\nv_mov_b32 {v(G.vT2)}, v9\ns_waitcnt lgkmcnt(0)")
        self.ts("c_karg")
        a(f"s_cmp_ge_u32 {s(sWAVE)}, 2\ns_cbranch_scc1 {L}")
        a(f"s_cmp_eq_u32 {s(sTYPE)}, 0")
        a(f"s_cselect_b32 {s(sW)}, s6, s12\ns_cselect_b32 {s(sW+1)}, s7, s13\ns_lshl_b32 {s(sW+2)}, {s(sSTR)}, 9")
        a(f"s_lshl_b32 {s(sT2)}, {s(sI)}, 3\ns_add_u32 {s(sT2)}, {s(sT2)}, {s(sG)}")
        a(f"s_lshr_b32 {s(sT3)}, {s(sSTR)}, 1\ns_mul_i32 {s(sT2)}, {s(sT2)}, {s(sT3)}\ns_sub_u32 {s(sT3)}, {s(sT3)}, 4")
        a(f"v_lshlrev_b32 v12, 7, v5\nv_min_u32 v12, {s(sT3)}, v12\ns_lshl_b32 {s(sT3)}, {s(sWAVE)}, 2\ns_add_u32 {s(sT3)}, {s(sT3)}, {self.o['ws']}")
        a(f"v_add_u32 v13, {s(sT3)}, v4\nv_min_u32 v13, 7, v13\ns_lshl_b32 {s(sT3)}, {s(sSTR)}, 6\nv_mul_lo_u32 v13, v13, {s(sT3)}\nv_add3_u32 {v(G.vT0)}, v12, v13, {s(sT2)}")
        a(f"s_branch {X}")
        a.label(L)
        a(f"s_cmp_eq_u32 {s(sWAVE)}, 2")
        a(f"s_cselect_b32 {s(sW)}, s16, s8\ns_cselect_b32 {s(sW+1)}, s17, s9\ns_movk_i32 {s(sT3)}, 2048\ns_cselect_b32 {s(sT3)}, 5504, {s(sT3)}")
        a(f"s_lshl_b32 {s(sW+2)}, {s(sT3)}, 8\ns_mul_i32 {s(sT2)}, s2, {s(sT3)}\ns_sub_u32 {s(sT3)}, {s(sT3)}, 4")
        a(f"v_lshlrev_b32 v12, 7, v1\nv_min_u32 v12, {s(sT3)}, v12\nv_add_u32 {v(G.vT1)}, {s(sT2)}, v12")
        a(f"s_cmp_eq_u32 {s(sWAVE)}, 2\ns_cselect_b32 {s(sT3)}, 43, 16\ns_lshr_b32 {s(sT2)}, s2, 3\ns_mul_i32 {s(sT2)}, {s(sT2)}, {s(sT3)}")
        a(f"v_add_u32 v12, {s(sT2)}, v1\nv_lshlrev_b32 v12, 10, v12\nv_add_u32 v12, 384, v12\nv_cmp_gt_u32 vcc, {s(sT3)}, v1\nv_cndmask_b32 {v(G.vT2)}, {v(G.vT2)}, v12, vcc")
        a.label(X)
        a(f"s_mov_b32 {s(sW+3)}, 0x00020000")
        self.srd(sX, 4, 2097152); self.srd(sB1, 14, 2752); self.srd(sDBG, 22, 256); self.srd(sWS, 24, WS_SIZE)
        a(f"s_lshl_b32 {s(sT2)}, {s(sCH)}, 6\ns_lshl_b32 {s(sT3)}, {s(sTYPE)}, 31\ns_xor_b32 {s(sT3)}, {s(sT3)}, {hx(OOB)}\ns_or_b32 {s(sT2)}, {s(sT2)}, {s(sT3)}")
        a(f"v_lshl_add_u32 v8, v2, 1, {s(sT2)}")
        a(f"buffer_load_dwordx4 {v(T,4)}, v11, {s(sX,4)}, 0 offen\nbuffer_load_dwordx4 {v(T+4,4)}, v11, {s(sX,4)}, 0 offen offset:512"); vm.issue("xs"); vm.issue("xs")
        for p in range(3):
            a(f"v_add_u32 v9, {s(sC0+p)}, v8\nbuffer_load_ushort {v(G.B1+p)}, v9, {s(sB1,4)}, 0 offen"); vm.issue("b1")
        if self.o["t2"]:
            L = self.lab("t2")
            a(f"s_lshl_b32 {s(sT2)}, {s(sHF)}, 2\ns_or_b32 {s(sT2)}, {s(sT2)}, {s(sWAVE)}\ns_cmp_lg_u32 {s(sT2)}, 3\ns_cbranch_scc1 {L}")
            self.srd(sOUT, 6, 1572864)
            a(f"s_lshr_b32 {s(sT2)}, s2, 3\ns_mul_i32 {s(sT2)}, {s(sT2)}, 12\ns_add_u32 {s(sT2)}, {s(sT2)}, 128")
            a(f"v_min_u32 v12, 11, v5\nv_add_u32 v12, {s(sT2)}, v12\nv_mul_u32_u24 v12, 3072, v12\nv_min_u32 v13, 2, v4\nv_lshl_add_u32 v12, v13, 10, v12\nv_add_u32 v12, 384, v12")
            a(f"buffer_load_dword {v(G.vDUM)}, v12, {s(sOUT,4)}, 0 offen")
            a.label(L)
        if self.o["wt"] == 2: a(f"buffer_load_dword {v(G.vDUM)}, {v(G.vT0)}, {s(sW,4)}, 0 offen"); vm.issue("t")
        self.vm0 = list(vm.q)
        self.ts("c_setup")
        a(f"s_cmp_eq_u32 {s(sTYPE)}, 0\ns_cbranch_scc0 L_typeB")

    def q_stats(self, typ):
        G = self; T = G.TMP; U = T + 8; q = []
        two = len(self.passes(typ)[0]) == 2
        g = (dict(math=3, chk=8, w2=11, ga=23, gc=28) if two else dict(math=2, chk=6, w2=9, ga=self.o['ga'], gc=self.o['gc']))
        if self.o["wt"] == 1: q += [self.vmi(f"buffer_load_dword {v(G.vDUM)}, {v(G.vT0)}, {s(sW,4)}, 0 offen", "t")]
        q += [("GI", 1), self.vmi(f"buffer_load_dword {v(G.GR+3)}, {v(G.vNZ)}, {s(sDBG,4)}, 0 offen sc1", "nonce")]
        q += [("GI", g["math"]), self.vmw("xs")]
        w = []
        for k in range(8): w += [f"v_lshlrev_b32 {v(U+2*k)}, 16, {v(T+k)}", f"v_and_b32 {v(U+2*k+1)}, 0xffff0000, {v(T+k)}"]
        w += [f"v_add_f32 {v(T+k)}, {v(U+2*k)}, {v(U+2*k+1)}" for k in range(8)]
        for n in (4, 2, 1): w += [f"v_add_f32 {v(T+k)}, {v(T+k)}, {v(T+k+n)}" for k in range(n)]
        def red32(r, t):
            o = [f"v_add_f32_dpp {v(r)}, {v(r)}, {v(r)} {m} row_mask:0xf bank_mask:0xf" for m in ("quad_perm:[1,0,3,2]", "quad_perm:[2,3,0,1]", "row_half_mirror", "row_mirror")]
            return o + [f"v_mov_b32 {v(t)}, {v(r)}", f"v_permlane16_swap_b32 {v(r)}, {v(t)}", f"v_add_f32 {v(r)}, {v(r)}, {v(t)}"]
        w += red32(T, T + 1) + [f"v_mul_f32 {v(G.GR)}, {fl(1/512)}, {v(T)}"]
        w += [f"v_sub_f32 {v(U+k)}, {v(U+k)}, {v(G.GR)}" for k in range(16)]
        w += [f"v_mul_f32 {v(T+k)}, {v(U+k)}, {v(U+k)}" for k in range(4)]
        w += [f"v_fmac_f32 {v(T+k%4)}, {v(U+k)}, {v(U+k)}" for k in range(4, 16)]
        w += [f"v_add_f32 {v(T)}, {v(T)}, {v(T+1)}", f"v_add_f32 {v(T+2)}, {v(T+2)}, {v(T+3)}", f"v_add_f32 {v(T)}, {v(T)}, {v(T+2)}"]
        w += red32(T, T + 1) + [f"v_mov_b32 {v(T+1)}, {fl(1e-5)}", f"v_fmac_f32 {v(T+1)}, {fl(1/512)}, {v(T)}",
                                f"v_rsq_f32 {v(G.GR+1)}, {v(T+1)}", f"v_mul_f32 {v(G.GR+2)}, {v(T+1)}, {v(G.GR+1)}"]
        q += self.its(w)
        L = self.lab("nonce"); R = self.lab("nonceok"); X = self.lab("noncex")
        q += [("GI", g["chk"]), self.vmw("nonce"),
              self.it(f"v_readfirstlane_b32 {s(sNONCE)}, {v(G.GR+3)}\ns_cmp_eq_u32 {s(sNONCE)}, 0\ns_cbranch_scc1 {L}\n{R}:"),
              self.vmi(f"buffer_store_dwordx4 {v(G.GR,4)}, {v(G.vSTA)}, {s(sWS,4)}, 0 offen sc1", "st"),
              self.it(f"v_mov_b32 v8, {SC_NONCE}\nds_write_b32 v8, {v(G.GR+3)}"), self.tsi("c_stpub")]
        self.tail.append(f"""{L}:
s_mov_b32 {s(sSPIN)}, 0
{X}:
buffer_load_dword {v(G.GR+3)}, {v(G.vNZ)}, {s(sDBG,4)}, 0 offen sc1
s_add_u32 {s(sSPIN)}, {s(sSPIN)}, 1
s_waitcnt vmcnt(0)
v_readfirstlane_b32 {s(sNONCE)}, {v(G.GR+3)}
s_cmp_gt_u32 {s(sSPIN)}, {SPIN_MAX}
s_cbranch_scc1 {R}
s_cmp_eq_u32 {s(sNONCE)}, 0
s_cbranch_scc1 {X}
s_branch {R}""")
        if typ == "B": q += self.its([f"v_lshlrev_b32 {v(G.B1+p)}, 16, {v(G.B1+p)}" for p in range(3)])
        if self.o["w2t"]: q += [("GI", g["w2"]), self.vmi(f"buffer_load_dword {v(G.vDUM)}, {v(G.vT1)}, {s(sW,4)}, 0 offen", "t")]
        if self.o["t1"] and not self.o["tb"]: q += [("GI", self.o["t1"]), self.vmi(f"buffer_load_dword {v(G.vDUM)}, {v(G.vT2)}, {s(sW,4)}, 0 offen", "t")]
        tb = []
        if self.o["tb"]:
            q += [self.it(f"s_cmp_eq_u32 {s(sWAVE)}, 3\ns_cselect_b32 {s(sW)}, s8, s16\ns_cselect_b32 {s(sW+1)}, s9, s17"),
                  self.it(f"s_cmp_eq_u32 {s(sWAVE)}, 3\ns_movk_i32 {s(sT1)}, 344\ns_cselect_b32 {s(sT1)}, 128, {s(sT1)}\ns_lshl_b32 {s(sW+2)}, {s(sT1)}, 12"),
                  self.it(f"s_lshr_b32 {s(sT2)}, s2, 3\ns_mul_i32 {s(sT2)}, {s(sT2)}, {s(sT1)}\ns_sub_u32 {s(sT1)}, {s(sT1)}, 1"),
                  self.it(f"s_cmp_eq_u32 {s(sWAVE)}, 3\ns_cselect_b32 {s(sT3)}, 0, {s(sWAVE)}\ns_lshl_b32 {s(sT3)}, {s(sT3)}, 7"),
                  self.it(f"v_add_u32 v8, {s(sT3)}, v1"), self.it("v_add_u32 v9, 64, v8"),
                  self.it(f"v_min_u32 v8, {s(sT1)}, v8"), self.it(f"v_min_u32 v9, {s(sT1)}, v9"),
                  self.it(f"v_add_lshl_u32 {v(G.vT0)}, v8, {s(sT2)}, 7"), self.it(f"v_add_lshl_u32 {v(G.vT2)}, v9, {s(sT2)}, 7")]
            for site in range(8):
                L = self.lab("tb")
                tb.append((self.o["tb"] + self.o["tbs"] * site, self.it(f"s_cmp_lg_u32 {s(sWAVE)}, {site & 3}\ns_cbranch_scc1 {L}\nbuffer_load_dword {v(G.vDUM)}, {v(G.vT2 if site >> 2 else G.vT0)}, {s(sW,4)}, 0 offen\n{L}:")))
        while tb and tb[0][0] < g["ga"]: x = tb.pop(0); q += [("GI", x[0]), x[1]]
        q += [("GI", g["ga"])] + [self.vmi(f"buffer_load_dwordx4 {v(G.SG+4*rb,4)}, {v(G.vSTG)}, {s(sWS,4)}, 0 offen offset:{512*rb} sc1", "sg") for rb in range(2)]
        while tb and tb[0][0] < g["gc"]: x = tb.pop(0); q += [("GI", x[0]), x[1]]
        assert not tb
        L = self.lab("st"); R = self.lab("stok"); X = self.lab("stx")
        chk = f"v_cmp_ne_u32 vcc, {s(sNONCE)}, {v(G.SG+3)}\nv_cmp_ne_u32 {s(sM,2)}, {s(sNONCE)}, {v(G.SG+7)}\ns_or_b64 vcc, vcc, {s(sM,2)}"
        q += [("GI", g["gc"]), self.vmw("sg"), self.it(f"{chk}\ns_cbranch_vccnz {L}\n{R}:"), self.tsi("c_stok")]
        self.tail.append(f"""{L}:
s_mov_b32 {s(sSPIN)}, 0
{X}:
buffer_load_dwordx4 {v(G.SG,4)}, {v(G.vSTG)}, {s(sWS,4)}, 0 offen sc1
buffer_load_dwordx4 {v(G.SG+4,4)}, {v(G.vSTG)}, {s(sWS,4)}, 0 offen offset:512 sc1
s_add_u32 {s(sSPIN)}, {s(sSPIN)}, 1
s_cmp_gt_u32 {s(sSPIN)}, {SPIN_MAX}
s_waitcnt vmcnt(0)
s_cbranch_scc1 {R}
{chk}
s_cbranch_vccnz {X}
s_branch {R}""")
        for rb in range(2):
            mu, r, sd = G.SG + 4*rb, G.SG + 4*rb + 1, G.SG + 4*rb + 2; X = G.XS + 4*rb
            q += self.its([f"v_cvt_pk_bf16_f32 {v(T)}, -{v(mu)}, -{v(mu)}", f"v_cvt_pk_bf16_f32 {v(T+1)}, {v(sd)}, {v(sd)}",
                           f"v_and_b32 {v(T+2)}, 0xffff0000, {v(T)}", f"v_and_b32 {v(T+3)}, 0xffff0000, {v(T+1)}",
                           f"v_sub_f32 {v(T+2)}, -{v(mu)}, {v(T+2)}", f"v_sub_f32 {v(T+4)}, {v(sd)}, {v(T+3)}",
                           f"v_cvt_pk_bf16_f32 {v(T+2)}, {v(T+2)}, {v(T+3)}", f"v_cvt_pk_bf16_f32 {v(T+4)}, {v(T+4)}, 0",
                           f"v_cmp_gt_u32 vcc, 32, v1\nv_mov_b32 {v(X+3)}, 0\nv_cndmask_b32 {v(X)}, 0, {v(T)}, vcc\nv_cndmask_b32 {v(X+1)}, 0, {v(T+2)}, vcc\nv_cndmask_b32 {v(X+2)}, 0, {v(T+4)}, vcc"])
        k0 = -2.0 * 1.4426950408889634 * 0.7978845608028654
        for rb in range(2):
            r, sd = G.SG + 4*rb + 1, G.SG + 4*rb + 2
            if typ == "B":
                q += self.its([f"v_mul_f32 {v(G.GC+rb)}, {fl(k0)}, {v(r)}", f"v_mul_f32 {v(T)}, {v(r)}, {v(r)}",
                               f"v_mul_f32 {v(T)}, {fl(0.044715)}, {v(T)}", f"v_mul_f32 {v(G.GC+2+rb)}, {v(T)}, {v(G.GC+rb)}"])
            else:
                q += self.its([f"v_mul_f32 {v(G.GC+rb)}, {fl(1.4426950408889634)}, {v(r)}", f"v_mul_f32 {v(G.GC+2+rb)}, {fl(1e-6)}, {v(sd)}"])
        if typ == "A":
            q += self.its([f"s_lshl_b32 {s(sT0)}, {s(sWAVE)}, 8\ns_add_u32 {s(sT0)}, {s(sT0)}, {SC_R}\nv_lshl_add_u32 v8, v2, 2, {s(sT0)}\nv_lshl_add_u32 v6, v3, 4, {s(sT0)}",
                           f"ds_write_b32 v8, {v(G.GC)}", f"ds_write_b32 v8, {v(G.GC+1)} offset:128"])
        return q

    def reads(self, typ, G_i):
        G = self; ps, off = self.passes(typ)
        if G_i >= 32 * len(ps): return []
        pn = ps[G_i // 32]; st, tau = divmod(G_i, 4); b = G_i & 1; sl = (st + off) % 3
        xa = (G.vXB if sl == 2 else G.vXA) + tau; xo = SLOT[1] if sl == 1 else 0
        wa = (G.vWO if tau & 1 else G.vWE) + sl
        def wr(p): return [f"ds_read_b64_tr_b16 {v(G.WF+12*b+4*p+2*q,2)}, {v(wa)} offset:{p*8192+tau*2048+q*512}" for q in range(2)]
        def xr(rb): return [f"ds_read_b128 {v(G.XF+8*b+4*rb,4)}, {v(xa)} offset:{xo+rb*4096}"]
        out = xr(0) + wr(pn[0]) + xr(1)
        for p in pn[1:]: out += wr(p)
        return out

    def mainpass(self, typ, pi, q, budget):
        a = self.a; G = self; pn = self.passes(typ)[0][pi]
        if pi == 0:
            self.ts("c_pre0")
            a("s_waitcnt lgkmcnt(0)\ns_barrier")
            self.ts("c_bar0")
            for r in self.reads(typ, 0): a(r)
        hold = None; credit = 0
        for gi in range(32):
            G_i = 32 * pi + gi; st, tau = divmod(G_i, 4); b = G_i & 1
            mf = []
            for p in pn:
                for rb in range(2):
                    x = v(G.XF + 8*b + 4*rb, 4); w = v(G.WF + 12*b + 4*p, 4); c = v(G.acc(p, rb), 16)
                    A, B = (x, w) if (typ == "A" and p < 2) else (w, x)
                    mf.append(f"v_mfma_f32_32x32x16_bf16 {c}, {A}, {B}, {c if gi else 0}")
            cs = []
            if tau % 2 == 0:
                cs = [f"v_mfma_f32_16x16x32_bf16 {v(G.CS+4*p,4)}, {v(G.SEL,4)}, {v(G.WF+12*b+4*p,4)}, {v(G.CS+4*p,4) if gi else 0}" for p in pn]
            rd = self.reads(typ, G_i + 1)
            if hold == "NEXT": hold = None
            a("s_waitcnt lgkmcnt(0)")
            a(mf[0]); k0 = 1
            if gi == 31:
                a(f"v_lshlrev_b32 v9, 2, v2\ns_mul_i32 {s(sT0)}, {s(sWAVE)}, 384\ns_add_u32 {s(sT0)}, {s(sT0)}, {SC_CS}\nv_add_u32 v8, {s(sT0)}, v9")
                for p in pn: a(f"ds_write_b32 v8, {v(G.CS+4*p)} offset:{128*p}")
                a(f"s_xor_b32 {s(sT0)}, {s(sWAVE)}, 2\ns_mul_i32 {s(sT0)}, {s(sT0)}, 384\ns_add_u32 {s(sT0)}, {s(sT0)}, {SC_CS}")
                if typ == "A": a("v_xor_b32 v9, 64, v9")
                a(f"v_add_u32 v8, {s(sT0)}, v9")
                if len(mf) > 2: a(mf[1]); k0 = 2
                a("s_waitcnt lgkmcnt(0)")
            if tau == 3:
                a("s_barrier"); self.ts(f"c_bar{st+1}")
                if hold == "BAR": hold = None
            if gi == 31:
                for p in pn: a(f"ds_read_b32 {v(G.CS+4*p+1)}, v8 offset:{128*p}")
            ngap = len(mf) - k0 + 1
            per = -(-len(rd) // max(1, min(ngap - 1, 3)))
            for k in range(k0, len(mf) + 1):
                nr = len(rd[:per])
                for r in rd[:per]: a(r)
                rd = rd[per:]
                credit = min(credit + budget - 5 * nr, budget + 6)
                while q and hold is None and gi < 31:
                    x = q[0]
                    if x in ("NEXT", "BAR"): hold = x; q.pop(0); break
                    if x[0] == "GI":
                        if gi >= x[1]: q.pop(0); continue
                        break
                    if credit < min(x[0], 12): break
                    q.pop(0); x[1](); credit -= x[0]
                if k == max(k0, len(mf) - 2):
                    for c in cs: a(c)
                if k < len(mf): a(mf[k])
        assert hold != "BAR"
        assert not any(x[0] == "GI" for x in q if not isinstance(x, str)), "GI marker left"
        if self.verbose: print(typ, "pass", pi, "leftover cost", sum(x[0] for x in q if not isinstance(x, str)))
        if hold == "NEXT": q.insert(0, "NEXT")
        self.ts(f"c_pass{pi}")

    def q_fixup(self, typ, pn, mfma_only=False, mfma_only_prep=False):
        G = self; T = G.TMP; q = []
        for n, p in enumerate(pn):
            c = G.CS + 4*p; F = G.FX + 4*n
            if mfma_only:
                q += self.its([f"v_mfma_f32_32x32x16_bf16 {v(G.acc(p,rb),16)}, {v(F,4)}, {v(G.XS+4*rb,4)}, {v(G.acc(p,rb),16)}" for rb in range(2)])
                continue
            q += self.its([f"v_add_f32 {v(c)}, {v(c)}, {v(c+1)}", f"v_cvt_pk_bf16_f32 {v(c+1)}, {v(c)}, {v(c)}",
                           f"v_and_b32 {v(c+1)}, 0xffff0000, {v(c+1)}", f"v_sub_f32 {v(c+2)}, {v(c)}, {v(c+1)}", f"v_mov_b32 {v(F+3)}, 0"])
            if typ == "B":
                q += self.its([f"v_cvt_pk_bf16_f32 {v(F+1)}, {v(c+1)}, {v(G.B1+p)}", f"v_cvt_pk_bf16_f32 {v(F+2)}, {v(G.B1+p)}, 0"])
            else:
                q += self.its([f"v_cvt_pk_bf16_f32 {v(F+1)}, {v(c+1)}, 0", f"v_mov_b32 {v(F+2)}, 0"])
            q += self.its([f"v_cvt_pk_bf16_f32 {v(F)}, {v(c+1)}, {v(c+2)}"])
            for rb in range(0 if mfma_only_prep else 2):
                x = v(G.XS + 4*rb, 4); w = v(F, 4); cc = v(G.acc(p, rb), 16)
                A, B = (x, w) if (typ == "A" and p < 2) else (w, x)
                q += self.its([f"v_mfma_f32_32x32x16_bf16 {cc}, {A}, {B}, {cc}"])
        return q
    FX = 146

    def ho_base(self, dst, sig_imm):
        return (f"s_lshl_b32 {s(dst)}, {s(sI)}, 1\ns_add_u32 {s(dst)}, {s(dst)}, {s(sRH)}\ns_mul_i32 {s(dst)}, {s(dst)}, {4*59}\n"
                f"s_lshl_b32 {s(sT0)}, {s(sG)}, 1\ns_add_u32 {s(sT0)}, {s(sT0)}, {s(sCH)}\ns_add_u32 {s(dst)}, {s(dst)}, {s(sT0)}\n"
                f"s_add_u32 {s(dst)}, {s(dst)}, {sig_imm}\ns_lshl_b32 {s(dst)}, {s(dst)}, 10")

    def q_flag(self, soff):
        return [self.it(f"v_mov_b32 v11, {s(sNONCE)}"),
                self.vmi(f"buffer_store_dword v11, {v(self.vFL)}, {s(sWS,4)}, {s(soff)} offen {'sc0 sc1' if self.o['fsc'] else 'sc1'}", "f")]

    def q_gelu_setup(self):
        sHB, sFL = 26, 27; vO = 12
        q = [self.it(self.ho_base(sHB, 0) + f"\ns_lshl_b32 {s(sT1)}, {s(sI)}, 1\ns_add_u32 {s(sT1)}, {s(sT1)}, {s(sRH)}\ns_mul_i32 {s(sFL)}, {s(sT1)}, {3*FG}\ns_lshl_b32 {s(sT1)}, {s(sT0)}, {FS}\ns_add_u32 {s(sFL)}, {s(sFL)}, {s(sT1)}\ns_add_u32 {s(sFL)}, {s(sFL)}, {WS_FH}")]
        t = f"s_mul_i32 {s(sT1)}, {s(sG)}, 6\ns_add_u32 {s(sT1)}, {s(sT1)}, {s(sCH)}\nv_lshlrev_b32 v11, 4, v1"
        for p in range(3): t += f"\ns_cmp_lt_u32 {s(sT1)}, {43-2*p}\ns_cselect_b32 {s(sT2)}, 0, {hx(OOB)}\nv_or_b32 {v(vO+p)}, {s(sT2)}, v11"
        return q + [self.it(t)]
    def q_gelu(self, p):
        G = self; sHB, sFL, sO = 26, 27, 3; vO = 12; t = G.TMP; q = []; n = 0
        for rb in range(2):
            A, B, sd = G.GC + rb, G.GC + 2 + rb, G.SG + 4*rb + 2
            for kh in range(2):
                c = G.acc(p, rb) + 8*kh; P = t + 8 + 4*(n & 1); n += 1
                if self.o["pk"] and not self.o["twoB"]:
                    sel = rb
                    w = [f"v_pk_mul_f32 {v(t+j,2)}, {v(c+j,2)}, {v(c+j,2)}" for j in range(0, 8, 2)]
                    w += [f"v_pk_fma_f32 {v(t+j,2)}, {v(t+j,2)}, {v(G.GC+2,2)}, {v(G.GC,2)} op_sel:[0,{sel},{sel}] op_sel_hi:[1,{sel},{sel}]" for j in range(0, 8, 2)]
                    w += [f"v_pk_mul_f32 {v(t+j,2)}, {v(c+j,2)}, {v(t+j,2)}" for j in range(0, 8, 2)]
                    w += [f"v_exp_f32 {v(t+j)}, {v(t+j)}" for j in range(8)]
                    w += [f"v_pk_fma_f32 {v(t+j,2)}, {v(t+j,2)}, {v(sd,2)}, {v(sd,2)} op_sel:[0,0,0] op_sel_hi:[1,0,0]" for j in range(0, 8, 2)]
                    w += [f"v_rcp_f32 {v(t+j)}, {v(t+j)}" for j in range(8)]
                    w += [f"v_pk_mul_f32 {v(t+j,2)}, {v(c+j,2)}, {v(t+j,2)}" for j in range(0, 8, 2)]
                else:
                    w = [f"v_mul_f32 {v(t+j)}, {v(c+j)}, {v(c+j)}" for j in range(8)]
                    w += [f"v_fma_f32 {v(t+j)}, {v(t+j)}, {v(B)}, {v(A)}" for j in range(8)]
                    w += [f"v_mul_f32 {v(t+j)}, {v(c+j)}, {v(t+j)}" for j in range(8)]
                    w += [f"v_exp_f32 {v(t+j)}, {v(t+j)}" for j in range(8)]
                    w += [f"v_fma_f32 {v(t+j)}, {v(t+j)}, {v(sd)}, {v(sd)}" for j in range(8)]
                    w += [f"v_rcp_f32 {v(t+j)}, {v(t+j)}" for j in range(8)]
                    w += [f"v_mul_f32 {v(t+j)}, {v(c+j)}, {v(t+j)}" for j in range(8)]
                w += [f"v_cvt_pk_bf16_f32 {v(P+j)}, {v(t+2*j)}, {v(t+2*j+1)}" for j in range(4)]
                q += self.its(w)
                q += [self.vmi(f"s_add_u32 {s(sO)}, {s(sHB)}, {(SIG0[p] + (2*rb+kh)*59)*1024}\nbuffer_store_dwordx4 {v(P,4)}, {v(vO+p)}, {s(sWS,4)}, {s(sO)} offen sc1", ("h", p))]
                if p > 0 and n == self.o["fpos"]:
                    if p == 1: q += [(0, self.p2_setup)]
                    q += [self.vmw(("h", p - 1))] + self.q_flag(sFL) + [self.it(f"s_add_u32 {s(sFL)}, {s(sFL)}, {FG}"), self.tsi(f"cB_flag{p-1}")]
        return q + [self.tsi(f"cB_p{p}")]

    def typeB(self):
        a = self.a
        self.vm.q = list(self.vm0)
        ps = self.passes("B")[0]
        self.flush(self.q_gelu_setup())
        q = self.q_stats("B")
        self.mainpass("B", 0, q, self.o["bud"] if len(ps) == 1 else 70)
        if len(ps) == 2:
            q += self.q_fixup("B", ps[0]) + self.q_gelu(0) + self.q_gelu(1)
            self.mainpass("B", 1, q, self.o["bud2"])
            self.ts("c_main")
            q += ["NEXT"] + self.q_fixup("B", ps[1]) + [(0, self.p2_setup)] + self.q_gelu(2)
        else:
            self.ts("c_main")
            q += ["NEXT"] + self.q_fixup("B", ps[0]) + [self.tsi("cB_fix")] + self.q_gelu(0)
            if self.o["hbar"] == 1: q += [self.it("s_barrier")]
            q += self.q_gelu(1)
            if self.o["hbar"] == 2: q += [self.it("s_barrier")]
            q += self.q_gelu(2)
            if self.o["hbar"] == 3: q += [self.it("s_barrier")]
        self.flush(q)
        self.ts("cB_gelu")
        if self.stop == "p1": self.vm.wait(("h", 2)); self.flush(self.q_flag(27))

    def pair_recv(self, kind, reads):
        a = self.a; L = self.lab("pw"); X = self.lab("pwx")
        a(f"s_xor_b32 {s(sT0)}, {s(sWAVE)}, 2\ns_lshl_b32 {s(sT0)}, {s(sT0)}, 4\ns_add_u32 {s(sT0)}, {s(sT0)}, {SC_FLAG+4*kind}\nv_mov_b32 v12, {s(sT0)}\ns_mov_b32 {s(sSPIN)}, 0")
        a.label(L)
        a("ds_read_b32 v13, v12")
        for r in reads: a(r)
        a(f"s_add_u32 {s(sSPIN)}, {s(sSPIN)}, 1\ns_cmp_gt_u32 {s(sSPIN)}, {SPIN_MAX}\ns_waitcnt lgkmcnt(0)\ns_cbranch_scc1 {X}")
        a(f"v_cmp_eq_u32 vcc, 0, v13\ns_cbranch_vccnz {L}")
        a.label(X)
    def pair_send(self, kind):
        a = self.a
        a(f"s_lshl_b32 {s(sT0)}, {s(sWAVE)}, 4\ns_add_u32 {s(sT0)}, {s(sT0)}, {SC_FLAG+4*kind}\nv_mov_b32 v12, {s(sT0)}\nv_mov_b32 v13, 1\nds_write_b32 v12, v13")

    RR = (130, 86)
    ON = 154
    def q_kv_pre(self):
        G = self
        q = ["NEXT"] + self.its([f"ds_read_b128 {v(G.RR[rb]+4*k,4)}, v6 offset:{128*rb+32*k}" for rb in range(2) for k in range(4)])
        q += self.its([f"s_lshl_b32 {s(sT1)}, {s(sWAVE)}, 11\ns_add_u32 {s(sT1)}, {s(sT1)}, {SC_KVX}\ns_xor_b32 {s(sT1)}, {s(sT1)}, 4096", f"v_lshl_add_u32 v6, v1, 4, {s(sT1)}"])
        return q
    def q_kv(self):
        G = self; q = []
        KV, ZZ, u, ON = 16, 32, 48, G.ON
        pend = []
        for n, (rb, kh) in enumerate(((0, 0), (0, 1), (1, 0), (1, 1))):
            c = G.acc(0, rb) + 8*kh; cv = G.acc(1, rb) + 8*kh; r = G.RR[rb] + 8*kh
            w = [f"v_pk_mul_f32 {v(c+j,2)}, {v(c+j,2)}, {v(r+j,2)}" for j in range(0, 8, 2)]
            e = [f"v_exp_f32 {v(u+j)}, {v(c+j)} clamp" for j in range(8)]
            w += pend[:1] + e[:4] + pend[1:] + e[4:]
            w += [f"v_max_f32 {v(c+j)}, v10, {v(c+j)}" for j in range(8)]
            w += [f"v_pk_mul_f32 {v(cv+j,2)}, {v(cv+j,2)}, {v(r+j,2)}" for j in range(0, 8, 2)]
            w += [f"v_pk_fma_f32 {v(u+j,2)}, {v(c+j,2)}, v[10:11], {v(u+j,2)} op_sel:[0,1,0] op_sel_hi:[1,1,1]" for j in range(0, 8, 2)]
            w += [f"v_cvt_pk_bf16_f32 {v(cv+j)}, {v(cv+2*j)}, {v(cv+2*j+1)}" for j in range(4)]
            w += [f"v_cvt_pk_bf16_f32 {v(c+j)}, {v(u+2*j)}, {v(u+2*j+1)}" for j in range(4)]
            pend = [f"v_mfma_f32_32x32x16_bf16 {v(KV,16)}, {v(c,4)}, {v(cv,4)}, {v(KV,16) if n else 0}",
                    f"v_mfma_f32_32x32x16_bf16 {v(ZZ,16)}, {v(c,4)}, {v(ON,4)}, {v(ZZ,16) if n else 0}"]
            q += self.its(w)
        q += self.its(pend) + [self.tsi("cA_kv")]
        q += self.q_fixup("A", (2,), mfma_only_prep=True)
        q += self.its(["v_xor_b32 v12, 32, v159", "v_mov_b32 v13, 1"])
        q += self.its([f"v_cndmask_b32 {v(u+j)}, {v(KV+8+j)}, {v(ZZ+8+j)}, {s(sLM,2)}" for j in range(8)])
        q += self.its([f"ds_write_b128 v158, {v(u,4)}", f"ds_write_b128 v158, {v(u+4,4)} offset:1024", "ds_write_b32 v159, v13"])
        q += self.q_fixup("A", (2,), mfma_only=True)
        q += self.its([f"v_cndmask_b32 {v(ZZ+j)}, {v(ZZ+j)}, {v(KV+j)}, {s(sLM,2)}" for j in range(8)])
        rd = [f"ds_read_b128 {v(ZZ+8,4)}, v6", f"ds_read_b128 {v(ZZ+12,4)}, v6 offset:1024"]
        q += [(40, lambda: self.pair_spin(rd))]
        q += self.its([f"v_add_f32 {v(ZZ+j)}, {v(ZZ+j)}, {v(ZZ+8+j)}" for j in range(8)])
        q += self.its([f"v_mul_f32 {v(ZZ+j)}, v0, {v(ZZ+j)}" for j in range(8)])
        q += self.its([f"v_cvt_pk_bf16_f32 {v(u+j)}, {v(ZZ+2*j)}, {v(ZZ+2*j+1)}" for j in range(4)])
        q += [self.vmi(f"buffer_store_dwordx4 {v(u,4)}, v15, {s(sWS,4)}, s85 offen sc1", "kv"), self.tsi("cA_pub")]
        return q
    def pair_spin(self, reads, off=0):
        a = self.a; L = self.lab("pw"); X = self.lab("pwx")
        a(f"s_mov_b32 {s(sSPIN)}, 0")
        a.label(L)
        a(f"ds_read_b32 v13, v12 offset:{off}")
        for r in reads: a(r)
        a(f"s_add_u32 {s(sSPIN)}, {s(sSPIN)}, 1\ns_cmp_gt_u32 {s(sSPIN)}, {SPIN_MAX}\ns_waitcnt lgkmcnt(0)\ns_cbranch_scc1 {X}")
        a(f"v_cmp_eq_u32 vcc, 0, v13\ns_cbranch_vccnz {L}")
        a.label(X)
    def q_kvflag(self):
        sFL, sHD = 27, 3
        return [self.vmw("kv")] + self.q_flag(sHD) + [self.tsi("cA_flag")]
    def q_phiq(self):
        G = self; u = G.TMP; q = []
        for rb in range(2):
            rl, ep, r = G.GC + rb, G.GC + 2 + rb, G.SG + 4*rb + 1
            for hh in range(2):
                c = G.acc(2, rb) + 8*hh
                w = [f"v_mul_f32 {v(u+j)}, {v(rl)}, {v(c+j)}" for j in range(8)]
                w += [f"v_exp_f32 {v(u+j)}, {v(u+j)} clamp" for j in range(8)]
                w += [f"v_max_f32 {v(c+j)}, {v(ep)}, {v(c+j)}" for j in range(8)]
                w += [f"v_fmac_f32 {v(u+j)}, {v(c+j)}, {v(r)}" for j in range(8)]
                w += [f"v_cvt_pk_bf16_f32 {v(c+j)}, {v(u+2*j)}, {v(u+2*j+1)}" for j in range(4)]
                q += self.its(w)
        return q + [self.tsi("cA_q")]

    def typeA(self):
        a = self.a; G = self; T = G.TMP; vm = self.vm
        vm.q = list(self.vm0)
        ps = self.passes("A")[0]
        a("v_lshlrev_b32 v8, 2, v3\nv_sub_u32 v8, v2, v8\nv_mov_b32 v9, 0x3f80\nv_mov_b32 v10, 0x3f800000")
        for k, e in enumerate((0, 2, 8, 10)):
            a(f"v_cmp_eq_u32 vcc, {e}, v8\nv_cndmask_b32 v11, 0, v9, vcc\nv_cmp_eq_u32 vcc, {e+1}, v8\nv_cndmask_b32 {v(G.IDN+k)}, v11, v10, vcc")
        sREC, sFL, sHD = 26, 27, 3
        a(f"s_lshl_b32 {s(sHD)}, {s(sG)}, 1\ns_add_u32 {s(sHD)}, {s(sHD)}, {s(sCH)}\ns_lshl_b32 {s(sHD)}, {s(sHD)}, 1\ns_add_u32 {s(sHD)}, {s(sHD)}, {s(sRH)}")
        a(f"s_mul_i32 {s(sREC)}, {s(sHD)}, 10240\ns_add_u32 {s(sREC)}, {s(sREC)}, {WS_KV}\ns_lshl_b32 {s(sFL)}, {s(sHD)}, {FS+4}\ns_add_u32 {s(sFL)}, {s(sFL)}, {WS_FK}")
        a(f"s_lshl_b32 {s(sHD)}, {s(sI)}, {FS}\ns_add_u32 {s(sHD)}, {s(sHD)}, {s(sFL)}\ns_mul_i32 s85, {s(sI)}, 640\ns_add_u32 s85, s85, {s(sREC)}")
        a(f"v_cmp_gt_u32 {s(sLM,2)}, 16, v2\nv_lshl_add_u32 v12, v3, 4, v2\nv_lshlrev_b32 v12, 4, v12\nv_lshlrev_b32 v13, 4, v3\nv_add_u32 v13, 512, v13")
        a(f"v_cndmask_b32 v14, v13, v12, {s(sLM,2)}")
        a(f"v_mov_b32 v12, {hx(OOB)}\nv_cmp_ge_u32 vcc, 16, v2\nv_cndmask_b32 v15, v12, v14, vcc")
        a(f"v_mov_b32 v9, {fl(0.6931471805599453)}\nv_cndmask_b32 v0, 1.0, v9, {s(sLM,2)}")
        a(f"s_lshl_b32 {s(sT1)}, {s(sWAVE)}, 11\ns_add_u32 {s(sT1)}, {s(sT1)}, {SC_KVX}\nv_xor_b32 v10, 16, v1\nv_lshl_add_u32 v158, v10, 4, {s(sT1)}")
        a(f"s_lshl_b32 {s(sT1)}, {s(sWAVE)}, 4\ns_add_u32 {s(sT1)}, {s(sT1)}, {SC_FLAG}\nv_mov_b32 v159, {s(sT1)}")
        a(f"v_mov_b32 v10, {fl(1e-6*1.4426950408889634)}\nv_mov_b32 v11, v9")
        for k in range(4): a(f"v_mov_b32 {v(G.ON+k)}, 0x3f803f80")
        q = self.q_stats("A") + self.q_kv_pre()
        self.mainpass("A", 0, q, self.o["bud"])
        self.ts("c_main")
        q += ["NEXT"] + self.q_fixup("A", (0, 1)) + self.q_kv() + self.q_phiq() + self.q_kvflag() + ([self.it("s_barrier")] if self.o["hbarA"] == 1 else [])
        self.flush(q)
        self.p2_setup()
        sREC, sFL = 26, 27
        self.poll(G.vGP, 11, sFL); vm.q = []
        self.ts("cA_poll")
        GA = G.ACC
        for p in range(16):
            if p % 4 == 0 and p: a(f"s_add_u32 {s(sREC)}, {s(sREC)}, 2560")
            a(f"buffer_load_dwordx4 {v(GA+4*p,4)}, v14, {s(sWS,4)}, {s(sREC)} offen offset:{640*(p%4)} sc1")
        a(self.ho_base(sREC, 43))
        a(f"s_lshl_b32 {s(sT1)}, {s(sI)}, 1\ns_add_u32 {s(sT1)}, {s(sT1)}, {s(sRH)}\ns_lshl_b32 {s(sFL)}, {s(sT1)}, {FS+4}\ns_lshl_b32 {s(sT1)}, {s(sT0)}, {FS}\ns_add_u32 {s(sFL)}, {s(sFL)}, {s(sT1)}\ns_add_u32 {s(sFL)}, {s(sFL)}, {WS_FO}")
        a(f"s_mul_i32 {s(sT2)}, {s(sRH)}, {59*1024}\ns_xor_b32 {s(sT3)}, {s(sRH)}, 1\ns_mul_i32 {s(sT3)}, {s(sT3)}, {59*1024}")
        a(f"s_add_u32 {s(sT2)}, {s(sT2)}, {s(sREC)}\ns_add_u32 {s(sT3)}, {s(sT3)}, {s(sREC)}")
        a("v_lshlrev_b32 v10, 4, v1\nv_xor_b32 v8, 4096, v6")
        for p in range(16):
            a(f"s_waitcnt vmcnt({15-p})")
            a(f"v_mfma_f32_32x32x16_bf16 {v(G.KVA,16)}, {v(G.IDN,4)}, {v(GA+4*p,4)}, {v(G.KVA,16) if p else 0}")
        self.ts("cA_gath")
        if self.o["hbarA"] == 2: a("s_barrier")
        F = [T, T + 4]; t = T + 8; PV = T + 12
        for j in range(4): a(f"v_cvt_pk_bf16_f32 {v(F[0]+j)}, {v(G.KVA+2*j)}, {v(G.KVA+2*j+1)}")
        a(f"ds_write_b128 v6, {v(F[0],4)}")
        self.pair_send(1)
        O = [G.ACC + 16*k for k in range(4)]
        for rb in range(2): a(f"v_mfma_f32_32x32x16_bf16 {v(O[2*rb],16)}, {v(F[0],4)}, {v(G.acc(2,rb),4)}, 0")
        self.pair_recv(1, [f"ds_read_b128 {v(F[1],4)}, v8"])
        for rb in range(2): a(f"v_mfma_f32_32x32x16_bf16 {v(O[2*rb+1],16)}, {v(F[1],4)}, {v(G.acc(2,rb)+8,4)}, 0")
        n = 0
        for hh in range(2):
            for rb in range(2):
                o = O[2*rb+hh]; P = PV + 4*(n & 1); n += 1
                a(f"v_add_f32 {v(t)}, {fl(1e-6)}, {v(o+8)}\nv_rcp_f32 {v(t)}, {v(t)}")
                a(f"s_add_u32 {s(sT4)}, {s(sT2+hh)}, {rb*118*1024}")
                for j in range(8): a(f"v_mul_f32 {v(o+j)}, {v(t)}, {v(o+j)}")
                for j in range(4): a(f"v_cvt_pk_bf16_f32 {v(P+j)}, {v(o+2*j)}, {v(o+2*j+1)}")
                a(f"buffer_store_dwordx4 {v(P,4)}, v10, {s(sWS,4)}, {s(sT4)} offen sc1"); vm.issue("o")
        self.ts("cA_o")
        if self.stop == "p1": vm.wait("o"); self.flush(self.q_flag(sFL))

    Y, S2 = 160, 192
    AR = 16; D = 8
    BF = 48
    vBA = 72
    vA, vXC, vXP, vOUT = 78, 79, 80, 81
    vPW, vDW, vPF, vMF, vGP, vCK, vGF, vLV = 82, 83, 84, 85, 0, 159, 158, 9
    vXR, vB2 = 10, 12
    XR = 224; B2 = 232
    def p2_setup(self):
        a = self.a; G = self
        self.srd(sOUT, 20, 2097152); self.srd(sB2, 18, 1024)
        sA = sKST
        a(f"s_lshl_b32 {s(sT1)}, {s(sI)}, 1\ns_add_u32 {s(sT1)}, {s(sT1)}, {s(sHF)}\ns_lshl_b32 {s(sT2)}, {s(sT1)}, 2\ns_add_u32 {s(sT2)}, {s(sT2)}, {s(sWAVE)}\ns_mul_i32 {s(sA)}, {s(sT2)}, {59*1024}")
        a(f"v_lshlrev_b32 {v(G.vA)}, 4, v1")
        a(f"v_lshrrev_b32 v8, 2, v5\nv_lshl_add_u32 v8, v3, 2, v8\ns_lshl_b32 {s(sT2)}, {s(sCH)}, 4\nv_add_u32 v8, {s(sT2)}, v8\nv_lshlrev_b32 v8, 7, v8")
        a("v_and_b32 v9, 1, v5\nv_lshl_add_u32 v8, v9, 3, v8")
        a("v_and_b32 v9, 1, v4\nv_lshlrev_b32 v9, 1, v9\nv_bfe_u32 v0, v5, 1, 1\nv_add_u32 v9, v9, v0\nv_lshrrev_b32 v0, 3, v5\nv_lshlrev_b32 v0, 2, v0\nv_xor_b32 v9, v9, v0")
        a(f"s_lshl_b32 {s(sT2)}, {s(sCH)}, 2\nv_xor_b32 v9, {s(sT2)}, v9")
        a(f"v_lshl_add_u32 {v(G.vBA)}, v9, 4, v8\nv_xor_b32 v9, 4, v9\nv_lshl_add_u32 {v(G.vBA+1)}, v9, 4, v8")
        for w in (1, 2):
            for cb in range(2): a(f"v_add_u32 {v(G.vBA+2*w+cb)}, {65536*w}, {v(G.vBA+cb)}")
        a(f"s_lshl_b32 {s(sT2)}, {s(sWAVE)}, 12\ns_add_u32 {s(sT2)}, {s(sT2)}, {XCH_Y}\nv_add_u32 {v(G.vXC)}, {s(sT2)}, {v(G.vA)}")
        a(f"s_xor_b32 {s(sT2)}, {s(sWAVE)}, 1\ns_lshl_b32 {s(sT2)}, {s(sT2)}, 12\ns_add_u32 {s(sT2)}, {s(sT2)}, {XCH_Y}\nv_add_u32 {v(G.vXP)}, {s(sT2)}, {v(G.vA)}")
        a(f"v_and_b32 v8, 3, v1\nv_lshlrev_b32 v8, 2, v8\nv_add_u32 {v(G.vPW)}, {SC_PROG}, v8\nv_lshlrev_b32 {v(G.vGP)}, {FS}, v5")
        a(f"s_lshl_b32 {s(sT2)}, {s(sWAVE)}, 2\ns_add_u32 {s(sT2)}, {s(sT2)}, {SC_PROG+16}\nv_mov_b32 {v(G.vDW)}, {s(sT2)}")
        a(f"s_lshl_b32 {s(sT2)}, {s(sWAVE)}, 4\ns_add_u32 {s(sT2)}, {s(sT2)}, {SC_FLAG}\nv_mov_b32 {v(G.vMF)}, {s(sT2)}\ns_xor_b32 {s(sT2)}, {s(sT2)}, 16\nv_mov_b32 {v(G.vPF)}, {s(sT2)}")
        a(f"s_mul_i32 {s(sC0)}, {s(sT1)}, {3*FG}\ns_add_u32 {s(sC0)}, {s(sC0)}, {WS_FH}\ns_lshl_b32 {s(sC0+1)}, {s(sT1)}, {FS+4}\ns_add_u32 {s(sC0+1)}, {s(sC0+1)}, {WS_FO}")
        a(f"s_lshl_b32 {s(sT1)}, {s(sT1)}, 1\ns_add_u32 {s(sT1)}, {s(sT1)}, {s(sRH)}\ns_lshl_b32 {s(sT1)}, {s(sT1)}, 15")
        a(f"s_lshl_b32 {s(sT2)}, {s(sCT)}, 1\ns_add_u32 {s(sT2)}, {s(sT2)}, {s(sCH)}\ns_lshl_b32 {s(sT2)}, {s(sT2)}, 6\ns_add_u32 {s(sT1)}, {s(sT1)}, {s(sT2)}")
        a(f"v_lshl_add_u32 v8, v2, 10, {s(sT1)}\nv_lshl_add_u32 {v(G.vOUT)}, v3, 4, v8\ns_mov_b32 {s(sC0+2)}, {s(sT2)}")

    def phase2(self):
        a = self.a; G = self; D = self.o['D']; sA = sKST
        RING = [16 + 4*k for k in range(8)] + [86, 90, 144, 148, 152]
        a.label("L_phase2")
        vm = Cnt(a, "vmcnt", 63); lg = Cnt(a, "lgkmcnt", 15)
        def aload(sig):
            if sig >= 59: return
            if sig % 4 == 0 and sig: a(f"s_add_u32 {s(sA)}, {s(sA)}, 4096")
            a(f"buffer_load_dwordx4 {v(RING[sig%D],4)}, {v(G.vA)}, {s(sWS,4)}, {s(sA)} offen offset:{1024*(sig%4)} {['', 'sc1', 'sc0 sc1', 'nt sc1'][self.o['asc']]}"); vm.issue(("A", sig))
        def breads(sig):
            if sig >= 59: return []
            base = b_lds(sig); w = base >> 16; off = base & 0xffff
            return [f"ds_read_b64_tr_b16 {v(G.BF+8*(sig%3)+4*cb+2*q,2)}, {v(G.vBA+2*w+cb)} offset:{off+1024*q}" for cb in range(2) for q in range(2)]
        def ds(x, tag): a(x); lg.issue(tag)
        def lcheck(vaddr, off, lv, tag, extra=()):
            L = self.lab("lc"); R = self.lab("lcok"); X = self.lab("lcx")
            lg.wait(tag)
            a(f"v_cmp_gt_u32 vcc, {lv}, {v(G.vCK)}\ns_cbranch_vccnz {L}")
            a.label(R)
            ex = "".join(e + "\n" for e in extra)
            self.tail.append(f"""{L}:
s_mov_b32 {s(sSPIN)}, 0
{X}:
ds_read_b32 {v(G.vCK)}, {v(vaddr)} offset:{off}
{ex}s_add_u32 {s(sSPIN)}, {s(sSPIN)}, 1
s_cmp_gt_u32 {s(sSPIN)}, {SPIN_MAX*8}
s_waitcnt lgkmcnt(0)
s_cbranch_scc1 {R}
v_cmp_gt_u32 vcc, {lv}, {v(G.vCK)}
s_cbranch_vccnz {X}
s_branch {R}""")
        def lread(vaddr, off, tag): ds(f"ds_read_b32 {v(G.vCK)}, {v(vaddr)} offset:{off}", tag)
        def lsig(vaddr, off, lv): a(f"v_mov_b32 {v(G.vLV)}, {lv}"); ds(f"ds_write_b32 {v(vaddr)}, {v(G.vLV)} offset:{off}", "sig")
        def gload(soff): a(f"buffer_load_dword {v(G.vGF)}, {v(G.vGP)}, {s(sWS,4)}, {s(soff)} offen sc1"); vm.issue("gf")
        def gcheck(soff):
            L = self.lab("gc"); R = self.lab("gcok"); X = self.lab("gcx")
            vm.wait("gf")
            a(f"v_cmp_ne_u32 vcc, {s(sNONCE)}, {v(G.vGF)}\ns_cbranch_vccnz {L}")
            a.label(R)
            self.tail.append(f"{L}:\n" + self.poll_text(G.vGP, G.vGF, soff, X, self.lab("gcy")) + f"\ns_branch {R}")
        self.ts("c_p0")
        vm.issue("pub")
        gload(sC0)
        lread(G.vPW, 0, "ck")
        a(f"v_lshlrev_b32 {v(G.vXR)}, 3, v3\nv_add_u32 {v(G.vB2)}, {s(sC0+2)}, {v(G.vXR)}\nv_sub_u32 {v(G.vXR)}, {v(G.vOUT)}, {v(G.vXR)}\nv_mov_b32 v11, {s(sNONCE)}")
        if self.o["xl"]:
            a(f"v_bfe_u32 v8, v1, 1, 3\ns_lshl_b32 {s(sT0)}, {s(sCH)}, 2\nv_xor_b32 v8, {s(sT0)}, v8\nv_lshlrev_b32 v8, 4, v8\nv_lshl_add_u32 v8, v3, 3, v8")
            a(f"s_lshl_b32 {s(sT0)}, {s(sRH)}, 12\ns_add_u32 {s(sT0)}, {s(sT0)}, {XT}\nv_lshl_add_u32 v13, v2, 7, {s(sT0)}\nv_add_u32 {v(G.vXR)}, v8, v13")
        vm.wait("pub")
        a(f"buffer_store_dword v11, {v(G.vFL)}, {s(sWS,4)}, s27 offen sc1"); vm.issue("f")
        self.ts("c_pflag")
        gcheck(sC0)
        self.ts("c_p0x")
        for sig in range(D): aload(sig)
        if self.o["kpoll"] > 15 - D: a(f"s_add_u32 {s(sC0)}, {s(sC0)}, {FG}"); gload(sC0)
        lcheck(G.vPW, 0, 1, "ck")
        need_prog = {13: 2, 21: 3, 35: 4, 42: 5, 52: 6}
        if self.o["xl"]: need_prog = {13: 2, 21: 3, 35: 4, 42: 5, 46: 7}
        done_at = {6: 1, 16: 2, 21: 3, 36: 4}
        gat = {15 - D: sC0, 29 - D: sC0, 43 - D: sC0 + 1}
        yr = [f"ds_read_b128 {v(96+4*q,4)}, {v(G.vXP)} offset:{1024*q}" for q in range(4)]
        for sig in range(2):
            for r in breads(sig): ds(r, ("B", sig))
        T = 96; YK = 112; BB = 128; XX = 240
        work = []
        for q in range(8):
            work += [f"v_lshlrev_b32 {v(BB+2*q)}, 16, {v(G.B2+q)}", f"v_and_b32 {v(BB+2*q+1)}, 0xffff0000, {v(G.B2+q)}"]
        for q in range(8):
            work += [f"v_lshlrev_b32 {v(XX+2*q)}, 16, {v(G.XR+q)}", f"v_and_b32 {v(XX+2*q+1)}, 0xffff0000, {v(G.XR+q)}"]
        gw = []
        for half in range(2):
            o = 8 * half
            gw += [f"v_add_f32 {v(YK+o+j)}, {v(T+o+j)}, {v(G.Y+o+j)}" for j in range(8)]
            gw += [f"v_add_f32 {v(YK+o+j)}, {v(YK+o+j)}, {v(BB+o+j)}" for j in range(8)]
            gw += [f"v_mul_f32 {v(T+o+j)}, {fl(-1.4426950408889634)}, {v(YK+o+j)}" for j in range(8)]
            gw += [f"v_exp_f32 {v(T+o+j)}, {v(T+o+j)}" for j in range(8)]
            gw += [f"v_add_f32 {v(T+o+j)}, 1.0, {v(T+o+j)}" for j in range(8)]
            gw += [f"v_rcp_f32 {v(T+o+j)}, {v(T+o+j)}" for j in range(8)]
            gw += [f"v_mul_f32 {v(YK+o+j)}, {v(YK+o+j)}, {v(T+o+j)}" for j in range(8)]
        for sig in range(59):
            acc = G.Y if sig < 43 else G.S2; first = sig in (0, 43)
            lg.wait(("B", sig)); vm.wait(("A", sig))
            A = v(RING[sig % D], 4)
            m = [f"v_mfma_f32_32x32x16_bf16 {v(acc+16*cb,16)}, {v(G.BF+8*(sig%3)+4*cb,4)}, {A}, {0 if first else v(acc+16*cb,16)}" for cb in range(2)]
            self.ts(f"c_s{sig}")
            a(m[0])
            if sig in done_at: lsig(G.vDW, 0, done_at[sig])
            if sig in need_prog: lcheck(G.vPW, 0, need_prog[sig], "ck")
            if sig == 44:
                lcheck(G.vPW, 16, 4, "ck")
                for q in range(4): ds(f"ds_write_b128 {v(G.vXC)}, {v(G.Y+16+4*q,4)} offset:{1024*q}", "yw")
                lsig(G.vMF, 8, 1)
            if sig == 49: lcheck(G.vPF, 8, 1, "yr", yr)
            rd = breads(sig + 2)
            for r in rd[:2]: ds(r, ("B", sig + 2))
            fill = []
            if 12 <= sig <= (15 if self.o["xl"] else 19): fill = work[4*(sig-12): 4*(sig-11)]
            if self.o["xl"] and sig == 46:
                for q in range(4):
                    if q: a(f"v_xor_b32 v8, {16*q}, {v(G.vXR)}")
                    ds(f"ds_read_b64 {v(G.XR+2*q,2)}, {v(8 if q else G.vXR)}", "xr")
            if self.o["xl"] and sig == 48: lg.wait("xr"); fill = work[16:32]
            if 49 <= sig <= 58: fill = gw[12*(sig-49): 12*(sig-48)]
            h = len(fill) // 2
            for f in fill[:h]: a(f)
            a(m[1])
            for r in rd[2:]: ds(r, ("B", sig + 2))
            if sig + 1 in need_prog: lread(G.vPW, 0, "ck")
            if sig == 43: lread(G.vPW, 16, "ck")
            if sig == 47:
                lread(G.vPF, 8, "yr")
                for r in yr: ds(r, "yr")
            if sig in gat: gcheck(gat[sig]); self.ts(f"c_g{sig}")
            aload(sig + D)
            if sig < 4:
                if not self.o["xl"]: a(f"buffer_load_dwordx2 {v(G.XR+2*sig,2)}, {v(G.vXR)}, {s(sX,4)}, 0 offen offset:{16*sig}"); vm.issue("x")
                a(f"buffer_load_dwordx2 {v(G.B2+2*sig,2)}, {v(G.vB2)}, {s(sB2,4)}, 0 offen offset:{16*sig}"); vm.issue("x")
            if sig == 11: vm.wait("x")
            if sig + self.o["kpoll"] in gat:
                so = gat[sig + self.o["kpoll"]]
                if so == sC0: a(f"s_add_u32 {s(sC0)}, {s(sC0)}, {FG}")
                gload(so)
            for f in fill[h:]: a(f)
        self.ts("c_loop")
        for q in range(4): ds(f"ds_write_b128 {v(G.vXC)}, {v(G.S2+16+4*q,4)} offset:{16384+1024*q}", "sw")
        lsig(G.vMF, 12, 1)
        sr = [f"ds_read_b128 {v(T+4*q,4)}, {v(G.vXP)} offset:{16384+1024*q}" for q in range(4)]
        lread(G.vPF, 12, "sr")
        for r in sr: ds(r, "sr")
        for j in range(16): a(f"v_fmac_f32 {v(XX+j)}, {v(G.S2+j)}, {v(YK+j)}")
        lcheck(G.vPF, 12, 1, "sr", sr)
        for half in range(2):
            o = 8 * half; P = BB + 4 * half
            for j in range(8): a(f"v_fmac_f32 {v(XX+o+j)}, {v(T+o+j)}, {v(YK+o+j)}")
            for j in range(4): a(f"v_cvt_pk_bf16_f32 {v(P+j)}, {v(XX+o+2*j)}, {v(XX+o+2*j+1)}")
            a(f"v_permlane32_swap_b32 {v(P)}, {v(P+2)}\nv_permlane32_swap_b32 {v(P+1)}, {v(P+3)}")
            a(f"buffer_store_dwordx4 {v(P,4)}, {v(G.vOUT)}, {s(sOUT,4)}, 0 offen offset:{32*half}")
        self.ts("c_end")
        self.ts_flush()

    def build(self):
        a = self.a
        self.prologue()
        self.loader()
        self.compute_setup()
        self.typeA()
        if self.stop == "p1": self.ts_flush(); a("s_endpgm")
        else: a("s_branch L_phase2")
        a.label("L_typeB")
        self.typeB()
        if self.stop == "p1": self.ts_flush(); a("s_endpgm")
        else: self.phase2()
        a.label("L_end")
        a("s_endpgm")
        for t in self.tail: a(t)
        a("L_last:\ns_endpgm")
        body = a.finalize(verbose=True)
        head = open("cdna_kernels/" + KN[:-7] + ".s.ref").read().split("; Override launch")[0]
        return head + f"""; @launch grid=(256,1,1) block=(512,1,1) lds={LDS_SIZE}
.amdgcn_target "amdgcn-amd-amdhsa--gfx950"
.text
.globl {KN}
.p2align 8
.type {KN},@function
{KN}:
{body}
.section .rodata,"a"
.p2align 6
.amdhsa_kernel {KN}
  .amdhsa_next_free_vgpr 256
  .amdhsa_next_free_sgpr 102
  .amdhsa_accum_offset 256
  .amdhsa_group_segment_fixed_size 0
  .amdhsa_kernarg_size 88
  .amdhsa_user_sgpr_count 2
  .amdhsa_user_sgpr_kernarg_segment_ptr 1
  .amdhsa_system_sgpr_workgroup_id_x 1
.end_amdhsa_kernel
"""

if __name__ == "__main__":
    import argparse
    ap = argparse.ArgumentParser()
    ap.add_argument("out"); ap.add_argument("--diag", nargs="?", const="rt"); ap.add_argument("--stop"); ap.add_argument("--dbgout", action="store_true"); ap.add_argument("--marks"); ap.add_argument("--opts"); ap.add_argument("--probe")
    x = ap.parse_args()
    open(x.out, "w").write(Gen(diag=x.diag, stop=x.stop, dbgout=x.dbgout, marks=x.marks, opts=x.opts, probe=x.probe).build())
```

```python
import sys, struct
from asmlib import Asm, v, s

KN = "recurrent_scan__linear_attn_block__dense_activation_gelu__prompt_kernel"
def f2u(x): return struct.unpack("<I", struct.pack("<f", x))[0]
def hx(x): return f"0x{x & 0xffffffff:08x}"
def fl(x): return hx(f2u(x))

WS_HO = 0
WS_KV = 8 << 20
WS_ST = 9 << 20
FS = 7
FG = 16 << FS
WS_FH = 10 << 20
WS_FO = WS_FH + 96 * FG
WS_FK = WS_FO + 32 * FG
WS_TS = 12 << 20
WS_SIZE = 268435456
OOB = 0x80000000
WR = 131072
SCR = 155648
SC_NONCE = SCR
SC_FLAG = SCR + 64
SC_PROG = SC_FLAG + 64
SC_CS = SCR + 256
SC_R = SCR + 2048
SC_KVX = SCR + 3072
LDS_SIZE = 163840
NSLOT = 38
def b_lds(sig): return (sig % NSLOT) * 4096
XCH_Y = 21 * 4096
XT = 29 * 4096
ORDER = []
for p in range(3):
    for g in range(8):
        for ch in range(2):
            f = 6 * g + 2 * p + ch
            if f < 43: ORDER.append(("w2", f))
ORDER += [("wo", f) for f in range(16)]
assert len(ORDER) == 59
SIG0 = [0, 15, 29]
def hoff(sig, lay=0):
    if not lay: return sig * 1024
    par = int(sig >= 29); t = sig - 29 * par
    return (t >> 3) * 16384 + par * 8192 + (t & 7) * 1024
SPIN_MAX = 1 << 18

sX, sW, sW2, sWO, sWS, sDBG, sOUT, sB1, sB2 = 28, 32, 36, 40, 44, 48, 52, 56, 60
sWAVE, sI, sG, sTYPE, sHF, sCT, sKST, sRH, sCH, sNONCE, sSTR = 64, 65, 66, 67, 68, 69, 70, 71, 72, 73, 74
sT0, sT1, sT2, sT3, sT4, sT5 = 75, 76, 77, 78, 79, 80
sC0 = 81
sSPIN = 84
sM = 86
sLM = 60
sWD = 10
sP1, sP2 = 12, 13
sWB = 56
sTS = 88

class Cnt:
    def __init__(self, a, name, mx): self.a, self.name, self.mx, self.q = a, name, mx, []
    def issue(self, tag): self.q.append(tag)
    def wait(self, tag):
        if tag not in self.q: return
        k = len(self.q) - 1 - max(i for i, t in enumerate(self.q) if t == tag)
        k = min(k, self.mx)
        self.a(f"s_waitcnt {self.name}({k})")
        self.q = self.q[len(self.q) - k:] if k else []
    def wait_all(self):
        self.a(f"s_waitcnt {self.name}(0)"); self.q = []

class Gen:
    def __init__(self, diag=False, stop=None, dbgout=False, marks=None, opts=None, probe=None):
        self.probe = tuple(int(x) for x in probe.split(',')) if probe else None
        self.o = dict(cpf=1, wt=3, xe=1, w2t=8, t1=16, t2=1, pk=1, kpoll=4, D=8, asc=1, xl=1, mp=1, seg=0, fsc=0,
                      bud0=24, bud2=64, budA=24, nE=33, nL=0, pe0=14, nEA=33, nLA=12, pe0A=15, burst=10, fm=12, fmA=3, ga=20, gc=26, thr=0, fl=32, pre=1, chk=2, pf=6, g2h=3, lay=0, kfs=9, kfc=13, pqh=3, w2s=0, ld=1, t3=0, grp=1223, osc=0)
        for kv in (opts or '').split(','):
            if kv: k, x = kv.split('='); assert k in self.o, k; self.o[k] = int(x)
        self.dbgout = dbgout; self.verbose = True
        self.marks = {"start": 0}
        for grp in (marks or "c_bar0,c_main,cA_q|cB_gelu,c_p0,c_loop,c_end;l_bar0,l_bar8,l_bland,l_p0,l_p3,l_end").split(";"):
            for k, nm in enumerate(grp.split(",")):
                for x in nm.split("|"): self.marks[x] = k + 1
        self.a = Asm(); self.diag = diag; self.stop = stop; self.uid = 0; self.tail = []
    def lab(self, n): self.uid += 1; return f"L{n}_{self.uid}"
    def ts(self, name):
        if not self.diag or name not in self.marks: return
        k = self.marks[name]
        if self.diag == "both":
            if k == 0: self.a(f"s_memrealtime {s(sTS, 2)}")
            elif k <= 3: self.a(f"s_memrealtime {s(sTS + 2 * k, 2)}\ns_memtime {s(sTS + 2 * k + 6, 2)}")
            return
        self.a(f"{'s_memtime' if self.diag == 'cyc' else 's_memrealtime'} {s(sTS + 2 * k, 2)}")
    def ts_flush(self):
        if not self.diag: return
        a = self.a
        if self.probe:
            pa, pb = self.probe
            L = self.lab("probe"); X = self.lab("probex")
            op = 's_memtime' if self.diag == 'cyc' else 's_memrealtime'
            a(f"s_cmp_ge_u32 {s(sWAVE)}, 4\ns_cbranch_scc1 {X}")
            a(f"{op} {s(sM,2)}\ns_waitcnt lgkmcnt(0)")
            if pa < 0: a(f"s_mov_b32 {s(sT0)}, {pb}")
            else: a(f"s_sub_u32 {s(sT0)}, {s(sTS+2*pb)}, {s(sTS+2*pa)}\ns_lshl_b32 {s(sT0)}, {s(sT0)}, 2")
            a(f"s_min_u32 {s(sT0)}, {s(sT0)}, 400000\ns_mov_b32 {s(sT1)}, {s(sM)}")
            a.label(L)
            a(f"{op} {s(sM,2)}\ns_waitcnt lgkmcnt(0)\ns_sub_u32 {s(sT2)}, {s(sM)}, {s(sT1)}\ns_cmp_lt_u32 {s(sT2)}, {s(sT0)}\ns_cbranch_scc1 {L}")
            a.label(X)
            return
        a("s_waitcnt lgkmcnt(0)")
        a(f"s_lshl_b32 {s(sT0)}, s2, 3\ns_add_u32 {s(sT0)}, {s(sT0)}, {s(sWAVE)}\ns_lshl_b32 {s(sT0)}, {s(sT0)}, 5\ns_add_u32 {s(sT0)}, {s(sT0)}, {WS_TS}")
        for k in range(7): a(f"v_mov_b32 v{8+k}, {s(sTS+2*k)}")
        a("v_mov_b32 v15, 0\nv_mov_b32 v7, 0")
        a("s_mov_b64 exec, 1")
        a(f"buffer_store_dwordx4 v[8:11], v7, {s(sWS,4)}, {s(sT0)} offen")
        a(f"buffer_store_dwordx4 v[12:15], v7, {s(sWS,4)}, {s(sT0)} offen offset:16")
        if self.dbgout:
            L = self.lab("dbgo")
            self.srd(sDBG, 22, 256)
            a(f"s_cmp_lg_u32 {s(sWAVE)}, 0\ns_cbranch_scc1 {L}\ns_and_b32 {s(sT0)}, s2, 0xdf\ns_cmp_lg_u32 {s(sT0)}, 0\ns_cbranch_scc1 {L}")
            for k in range(6, -1, -1): a(f"v_subrev_u32 v{8+k}, {s(sTS)}, v{8+k}")
            a(f"s_add_u32 {s(sT0)}, s2, 4")
            a(f"buffer_store_dwordx4 v[9:12], v7, {s(sDBG,4)}, {s(sT0)} offen".replace("v[9:12]", "v[8:11]"))
            a(f"buffer_store_dwordx3 v[12:14], v7, {s(sDBG,4)}, {s(sT0)} offen offset:16")
            a.label(L)
        a("s_mov_b64 exec, -1")

    def srd(self, d, ptr, size):
        self.a(f"s_mov_b32 {s(d)}, {s(ptr)}\ns_mov_b32 {s(d+1)}, {s(ptr+1)}\ns_mov_b32 {s(d+2)}, {size}\ns_mov_b32 {s(d+3)}, 0x00020000")

    def poll_text(self, vaddr, vtmp, soff, L, X):
        if self.o["mp"]:
            return (f"s_mov_b32 {s(sSPIN)}, 0\ns_mov_b64 exec, 0xffff\n{L}:\n"
                    f"buffer_load_dword {v(vtmp)}, {v(vaddr)}, {s(sWS,4)}, {s(soff)} offen sc1\n"
                    f"s_add_u32 {s(sSPIN)}, {s(sSPIN)}, 1\ns_cmp_gt_u32 {s(sSPIN)}, {SPIN_MAX}\ns_waitcnt vmcnt(0)\ns_cbranch_scc1 {X}\n"
                    f"v_cmp_ne_u32 vcc, {s(sNONCE)}, {v(vtmp)}\ns_and_b64 exec, exec, vcc\ns_cbranch_execnz {L}\n{X}:\ns_mov_b64 exec, -1")
        return (f"s_mov_b32 {s(sSPIN)}, 0\n{L}:\n"
                f"buffer_load_dword {v(vtmp)}, {v(vaddr)}, {s(sWS,4)}, {s(soff)} offen sc1\n"
                f"s_add_u32 {s(sSPIN)}, {s(sSPIN)}, 1\ns_cmp_gt_u32 {s(sSPIN)}, {SPIN_MAX}\ns_waitcnt vmcnt(0)\ns_cbranch_scc1 {X}\n"
                f"v_cmp_ne_u32 vcc, {s(sNONCE)}, {v(vtmp)}\ns_cbranch_vccnz {L}\n{X}:")
    def poll(self, vaddr, vtmp, soff):
        self.a(self.poll_text(vaddr, vtmp, soff, self.lab("poll"), self.lab("pollx")))

    def prologue(self):
        a = self.a
        a("s_cmp_ge_u32 s2, 256\ns_cbranch_scc1 L_end")
        a("s_load_dwordx16 s[4:19], s[0:1], 0\ns_load_dwordx4 s[20:23], s[0:1], 64\ns_load_dwordx2 s[24:25], s[0:1], 80")
        if self.diag:
            for k in range(1, 7): a(f"s_mov_b32 {s(sTS+2*k)}, 0")
        self.ts("start")
        if self.o["cpf"]:
            a(f"s_getpc_b64 s[26:27]\nL_pc:\nv_lshlrev_b32 v3, 7, v0\nv_min_u32 v3, L_last-L_pc, v3\nglobal_load_dword {v(self.vDUM)}, v3, s[26:27]")
        a("v_lshrrev_b32 v2, 6, v0\nv_and_b32 v1, 63, v0")
        a(f"s_and_b32 {s(sT0)}, s2, 3")
        a(f"v_readfirstlane_b32 {s(sWAVE)}, v2")
        a(f"s_bfe_u32 {s(sHF)}, s2, 0x10002")
        a(f"s_bfe_u32 {s(sCT)}, s2, 0x30003")
        a(f"s_lshr_b32 {s(sI)}, s2, 6\ns_lshl_b32 {s(sI)}, {s(sI)}, 2\ns_add_u32 {s(sI)}, {s(sI)}, {s(sT0)}")
        if self.o["seg"]: a(f"s_mov_b32 {s(sTYPE)}, {s(sHF)}\ns_mov_b32 {s(sG)}, {s(sCT)}")
        else:
            a(f"s_lshr_b32 {s(sTYPE)}, {s(sCT)}, 2")
            a(f"s_and_b32 {s(sG)}, {s(sCT)}, 3\ns_lshl_b32 {s(sT0)}, {s(sHF)}, 2\ns_add_u32 {s(sG)}, {s(sG)}, {s(sT0)}")
        a(f"s_lshl_b32 {s(sT0)}, {s(sG)}, 7\ns_mul_i32 {s(sT1)}, {s(sG)}, 384")
        a(f"s_add_u32 {s(sT2)}, {s(sT0)}, 1024\ns_add_u32 {s(sT3)}, {s(sT0)}, 2048\ns_add_u32 {s(sT4)}, {s(sT1)}, 128\ns_add_u32 {s(sT5)}, {s(sT1)}, 256")
        a(f"s_cmp_eq_u32 {s(sTYPE)}, 0")
        a(f"s_movk_i32 {s(sSTR)}, 2752\ns_cselect_b32 {s(sSTR)}, 3072, {s(sSTR)}")
        a(f"s_cselect_b32 {s(sC0)}, {s(sT2)}, {s(sT1)}\ns_cselect_b32 {s(sC0+1)}, {s(sT3)}, {s(sT4)}\ns_cselect_b32 {s(sC0+2)}, {s(sT0)}, {s(sT5)}")
        a(f"s_cmp_ge_u32 {s(sWAVE)}, 4\ns_cbranch_scc0 L_compute")

    def loader(self):
        a = self.a
        vX, vW, vB, vP, vT, vL, PARK = 10, 14, 20, 21, 22, 24, 32
        sWK, sKX, sKW, sXB, sF = 85, 26, 27, 3, sT5
        a(f"s_and_b32 {s(sWK)}, {s(sWAVE)}, 3")
        a("v_lshrrev_b32 v2, 3, v1\nv_and_b32 v3, 7, v1\nv_lshrrev_b32 v4, 4, v1")
        a(f"s_and_b32 {s(sT0)}, {s(sWK)}, 1\ns_lshl_b32 {s(sT0)}, {s(sT0)}, 2\ns_lshl_b32 {s(sT1)}, {s(sWK)}, 3")
        a(f"v_add_u32 v5, {s(sT0)}, v4\nv_xor_b32 v5, v3, v5\nv_lshlrev_b32 v5, 4, v5")
        a(f"v_add_u32 v6, {s(sT1)}, v2")
        a(f"v_lshl_add_u32 {v(vX)}, v6, 10, v5")
        for m in range(1, 4): a(f"v_add_u32 {v(vX+m)}, {m*32768}, {v(vX)}")
        a("v_and_b32 v7, 1, v4\nv_lshlrev_b32 v7, 2, v7\nv_xor_b32 v7, v3, v7\nv_lshlrev_b32 v7, 4, v7")
        a(f"v_mul_u32_u24 v8, {s(sSTR)}, v6")
        a(f"s_lshl_b32 {s(sT2)}, {s(sSTR)}, 5\nv_mov_b32 v2, {hx(OOB)}")
        for p in range(3):
            a(f"v_add_u32 v9, {s(sC0+p)}, v7\nv_cmp_gt_u32 vcc, {s(sSTR)}, v9\nv_add_u32 v9, v8, v9\nv_add_u32 v3, {s(sT2)}, v9")
            a(f"v_cndmask_b32 {v(vW+2*p)}, v2, v9, vcc\nv_cndmask_b32 {v(vW+2*p+1)}, v2, v3, vcc")
        a(f"s_lshl_b32 {s(sWK)}, {s(sWK)}, 10\ns_lshl_b32 {s(sXB)}, {s(sI)}, 17\ns_lshl_b32 {s(sT3)}, {s(sSTR)}, 5")
        self.ts("l_pre")
        a("s_waitcnt lgkmcnt(0)")
        self.srd(sX, 4, 2097152)
        a(f"s_lshl_b32 {s(sW+2)}, {s(sSTR)}, 9\ns_mov_b32 {s(sW+3)}, 0x00020000\ns_cmp_eq_u32 {s(sTYPE)}, 0")
        a(f"s_cselect_b32 {s(sW)}, s6, s12\ns_cselect_b32 {s(sW+1)}, s7, s13")
        self.ts("l_karg")
        vm = Cnt(a, "vmcnt", 63)
        def bsrc(sig):
            mat, f = ORDER[sig]
            a(f"s_mov_b32 {s(sF)}, {f*32768}")
            return s(sW2 if mat == 'w2' else sWO, 4)
        gs = [int(c) for c in str(self.o["grp"])]; assert sum(gs) == 8
        grp_of = [(sum(gs[:n]), gs[n]) for n in range(len(gs)) for _ in range(gs[n])]
        rot = lambda pos: grp_of[pos][1] > 1
        sK0 = 56
        def ktable(lo, hi):
            for pos in range(lo, hi):
                g0, n = grp_of[pos]
                if n == 1: continue
                if pos == g0:
                    a(f"s_lshr_b32 {s(sT1)}, s2, 6\ns_mul_i32 {s(sT1)}, {s(sT1)}, {max(1, (n+1)//4)}\ns_add_u32 {s(sT1)}, {s(sT1)}, {s(sCT)}")
                    a(f"s_mul_i32 {s(sT0)}, {s(sT1)}, {-(-256//n)}\ns_lshr_b32 {s(sT0)}, {s(sT0)}, 8\ns_mul_i32 {s(sT0)}, {s(sT0)}, {n}\ns_sub_u32 {s(sT1)}, {s(sT1)}, {s(sT0)}\ns_add_u32 {s(sK0+pos)}, {s(sT1)}, {g0}")
                else:
                    a(f"s_add_u32 {s(sK0+pos)}, {s(sK0+pos-1)}, 1\ns_cmp_eq_u32 {s(sK0+pos)}, {g0+n}\ns_cselect_b32 {s(sK0+pos)}, {g0}, {s(sK0+pos)}")
        def wst(st):
            pos = st // 2 if st < 16 else st - 16
            if rot(pos):
                a(f"s_lshl_b32 {s(sKW)}, {s(sK0+pos)}, 1" + (f"\ns_add_u32 {s(sKW)}, {s(sKW)}, 1" if st < 16 and st & 1 else "") + f"\ns_mul_i32 {s(sKW)}, {s(sKW)}, {s(sT3)}")
            else: a(f"s_mul_i32 {s(sKW)}, {s(sT3)}, {st if st < 16 else 2*(st-16)}")
            for m in range(2):
                a(f"s_add_u32 m0, {s(sWK)}, {WR + (st % 3)*8192 + m*4096}")
                a(f"buffer_load_dwordx4 {v(vW + (2*m if st < 16 else 4+m))}, {s(sW,4)}, {s(sKW)} offen lds"); vm.issue(("S", st))
        def xpair(n):
            k = n >> 1
            if k >= 8: return
            if rot(k): a(f"s_lshl_b32 {s(sKX)}, {s(sK0+k)}, 7\ns_add_u32 {s(sKX)}, {s(sKX)}, {s(sXB)}")
            else: a(f"s_add_u32 {s(sKX)}, {s(sXB)}, {128*k}")
            for mm in (2*(n & 1), 2*(n & 1) + 1):
                a(f"s_add_u32 m0, {s(sWK)}, {k*16384 + mm*4096}")
                a(f"buffer_load_dwordx4 {v(vX+mm)}, {s(sX,4)}, {s(sKX)} offen lds"); vm.issue(("S", 2*k))
        st_ = dict(nE=0)
        preg = lambda sig: PARK + 4*sig if sig < st_["nE"] else PARK + 4*(st_["nE"] + sig - NSLOT)
        def bstep(sig):
            a(f"s_add_u32 m0, {s(sWK)}, {b_lds(sig)}")
            srd = bsrc(sig)
            a(f"buffer_load_dwordx4 {v(vB)}, {srd}, {s(sF)} offen lds"); vm.issue(("B", sig))
        def park(sig):
            srd = bsrc(sig)
            a(f"buffer_load_dwordx4 {v(preg(sig),4)}, {v(vB)}, {srd}, {s(sF)} offen"); vm.issue(("B", sig))
        def put(sig):
            base = b_lds(sig); w = base >> 16
            a(f"ds_write_b128 {v(vL+w)}, {v(preg(sig),4)} offset:{base-65536*w}")
        if self.o["ld"]: a("s_barrier")
        ktable(0, 1); wst(0); xpair(0); xpair(1); self.ts("l_s0"); wst(1); ktable(1, 8); xpair(2); self.ts("l_s2")
        vPG, vDN = 28, 29
        self.srd(sW2, 16, 1409024); self.srd(sWO, 8, 524288); self.srd(sWS, 24, WS_SIZE)
        a(f"s_lshl_b32 {s(sT0)}, {s(sCT)}, 7\nv_lshl_add_u32 {v(vB)}, v6, 10, v7\nv_add_u32 {v(vB)}, {s(sT0)}, {v(vB)}")
        a(f"v_lshl_add_u32 {v(vL)}, v1, 4, {s(sWK)}\nv_add_u32 {v(vL+1)}, 65536, {v(vL)}\nv_add_u32 {v(vL+2)}, 131072, {v(vL)}")
        a(f"s_lshr_b32 {s(sT0)}, {s(sWK)}, 8\ns_add_u32 {s(sT0)}, {s(sT0)}, {SC_PROG}\nv_mov_b32 {v(vPG)}, {s(sT0)}")
        a(f"v_and_b32 {v(vDN)}, 3, v1\nv_lshlrev_b32 {v(vDN)}, 2, {v(vDN)}\nv_add_u32 {v(vDN)}, {SC_PROG+16}, {v(vDN)}")
        def prog(lv): a(f"v_mov_b32 {v(vT)}, {lv}\nds_write_b32 {v(vPG)}, {v(vT)}")
        N = 24; KS = 12
        for k in range(KS):
            vm.wait(("S", k)); self.ts(f"l_land{k}"); a("s_barrier"); self.ts(f"l_bar{k}")
            wst(k + 2); xpair(k + 3)
        a(f"s_cmp_eq_u32 {s(sTYPE)}, 0\ns_cbranch_scc0 L_loadB")
        q0 = list(vm.q)
        for typ in "AB":
            if typ == "B": a.label("L_loadB")
            vm.q = list(q0); sfx = "A" if typ == "A" else ""
            nE, nL, pe0 = (self.o[x + sfx] for x in ("nE", "nL", "pe0")); burst = self.o["burst"] if typ == "A" else 0
            assert nE <= 33 and pe0 >= KS; st_["nE"] = nE; XP = PARK + 4*(nE + 21)
            early = list(range(nE)) + list(range(NSLOT, NSLOT + nL)); nxt = 0
            for k in range(KS, N):
                vm.wait(("S", k)); self.ts(f"l_land{k}"); a("s_barrier"); self.ts(f"l_bar{k}")
                if k + 2 < N: wst(k + 2); xpair(k + 3)
                if k >= pe0:
                    while nxt < -(-(len(early) - burst) * (k + 1 - pe0) // (N - pe0)) + (burst if k >= 16 else 0): park(early[nxt]); nxt += 1
            a("s_barrier")
            self.ts("l_barN")
            assert nxt == len(early)
            todo = [x for x in range(59) if x not in early]; lvl = [(7, 1), (22, 2), (37, 3)]
            def more(n):
                for _ in range(n):
                    if todo:
                        sig = todo.pop(0)
                        bstep(sig) if sig < NSLOT else park(sig)
                        if self.o["thr"]: vm.wait(("B", sig - self.o["thr"]))
            more(4)
            for sig in range(nE):
                vm.wait(("B", sig)); put(sig)
                if lvl and sig == lvl[0][0]: prog(lvl.pop(0)[1])
                if sig % 3 == 2: more(1)
            self.ts("l_put")
            while todo:
                more(1)
                if lvl and todo and todo[0] >= lvl[0][0] + 7: vm.wait(("B", lvl[0][0])); prog(lvl.pop(0)[1])
            a(f"s_lshl_b32 {s(sT0)}, {s(sI)}, 1\ns_add_u32 {s(sT0)}, {s(sT0)}, {s(sHF)}\ns_lshl_b32 {s(sT0)}, {s(sT0)}, 16\ns_lshl_b32 {s(sT1)}, {s(sCT)}, 7\ns_add_u32 {s(sT0)}, {s(sT0)}, {s(sT1)}")
            for m in range(2): a(f"buffer_load_dwordx4 {v(XP+4*m,4)}, {v(vX+m)}, {s(sX,4)}, {s(sT0)} offen"); vm.issue("xt")
            for sg, lv in lvl: vm.wait(("B", sg)); prog(lv)
            self.ts("l_bissue")
            if self.stop == "p1":
                vm.wait_all(); self.ts_flush(); a("s_endpgm"); continue
            def done(lv):
                L = self.lab("dw"); X = self.lab("dwx")
                a(f"s_mov_b32 {s(sSPIN)}, 0")
                a.label(L)
                a(f"ds_read_b32 {v(vP)}, {v(vDN)}\ns_add_u32 {s(sSPIN)}, {s(sSPIN)}, 1\ns_cmp_gt_u32 {s(sSPIN)}, {SPIN_MAX*8}\ns_waitcnt lgkmcnt(0)\ns_cbranch_scc1 {X}")
                a(f"v_cmp_gt_u32 vcc, {lv}, {v(vP)}\ns_cbranch_vccnz {L}")
                a.label(X)
            for lv, (lo, hi) in enumerate(((38, 45), (45, 55), (55, 59))):
                vm.wait(("B", hi - 1))
                if lv == 2: self.ts("l_bland")
                done(lv + 1)
                for sig in range(lo, hi): put(sig)
                prog(4 + lv)
                self.ts(f"l_ref{lv}")
            vm.wait("xt"); done(4)
            a(f"ds_write_b128 {v(vL+1)}, {v(XP,4)} offset:{XT-65536}\nds_write_b128 {v(vL+1)}, {v(XP+4,4)} offset:{XT-65536+4096}")
            prog(7)
            a("s_waitcnt lgkmcnt(0)")
            self.ts("l_end")
            self.ts_flush()
            a("s_endpgm")

    ACC = 160
    SEL = 64
    CSM = dict(A=(68, 72, 68), B=(68, 72, 90))
    vXA, vXB, vWE, vWO = 76, 80, 84, 87
    GR = 90
    vCW, vCR = 94, 95
    vT0, vT1, vT2 = 97, 98, 99
    SG = 100
    IDN = 108
    B1 = 108
    XS = 112
    GC = 120
    vSTA, vSTG, vNZ, vDUM = 124, 125, 126, 127
    vFL = 7
    TMP = 128
    FX = 152
    KVA = 16
    def acc(self, p, rb): return self.ACC + 32 * p + 16 * rb

    def it(self, text):
        cost = 0
        for ln in text.split("\n"):
            op = ln.split()[0]
            if op.endswith(":"): continue
            cost += 32 if op.startswith("v_mfma") else 8 if op in ("v_exp_f32", "v_rcp_f32", "v_rsq_f32") else 5 if (op.startswith(("ds_", "buffer_", "v_fma_", "v_cvt_pk", "v_cndmask", "v_lshl_add")) or "0x" in ln) else 4
        return (cost, lambda: self.a(text))
    def its(self, lst): return [self.it(x) for x in lst]
    def vmi(self, text, tag): return (6, lambda: (self.a(text), self.vm.issue(tag)))
    def vmw(self, tag): return (4, lambda: self.vm.wait(tag))
    def tsi(self, name): return (0, lambda: self.ts(name))
    def flush(self, q):
        while q:
            x = q.pop(0)
            if x == "NEXT": self.a("s_waitcnt lgkmcnt(0)")
            elif x == "BAR": raise RuntimeError("barrier marker left over")
            elif x[0] == "GI": continue
            else: x[1]()

    def compute_setup(self):
        a = self.a; G = self; T = G.TMP
        a.label("L_compute")
        self.vm = vm = Cnt(a, "vmcnt", 63)
        a(f"s_bfe_u32 {s(sRH)}, {s(sWAVE)}, 0x10001\ns_and_b32 {s(sCH)}, {s(sWAVE)}, 1")
        a("v_and_b32 v2, 31, v1\nv_lshrrev_b32 v3, 5, v1\nv_lshrrev_b32 v4, 4, v1\nv_and_b32 v5, 15, v1")
        a(f"v_mov_b32 {v(G.vNZ)}, 0")
        L = self.lab("non")
        a(f"s_or_b32 {s(sT3)}, s2, {s(sWAVE)}\ns_cmp_lg_u32 {s(sT3)}, 0\ns_cbranch_scc1 {L}")
        a(f"s_memrealtime {s(sM,2)}\ns_waitcnt lgkmcnt(0)")
        self.srd(sDBG, 22, 256)
        a(f"s_or_b32 {s(sT3)}, {s(sM)}, 1\nv_mov_b32 v8, {s(sT3)}\ns_mov_b64 exec, 1")
        a(f"buffer_store_dword v8, {v(G.vNZ)}, {s(sDBG,4)}, 0 offen sc1\ns_mov_b64 exec, -1")
        a.label(L)
        a(f"s_lshl_b32 {s(sT0)}, {s(sHF)}, 3\ns_add_u32 {s(sT0)}, {s(sT0)}, {s(sCT)}\ns_lshl_b32 {s(sT0)}, {s(sT0)}, 3")
        a(f"s_lshl_b32 {s(sT1)}, {s(sI)}, 7\ns_add_u32 {s(sT0)}, {s(sT0)}, {s(sT1)}\ns_lshl_b32 {s(sT2)}, {s(sWAVE)}, 1\ns_add_u32 {s(sT0)}, {s(sT0)}, {s(sT2)}")
        a(f"v_add_u32 v6, {s(sT0)}, v3\nv_lshlrev_b32 v11, 4, v2\nv_lshl_add_u32 v11, v6, 10, v11")
        a(f"s_lshl_b32 {s(sT2)}, {s(sI)}, 3\ns_add_u32 {s(sT2)}, {s(sT2)}, {s(sG)}\ns_lshl_b32 {s(sT3)}, {s(sSTR)}, 2\ns_mul_i32 {s(sT2)}, {s(sT2)}, {s(sT3)}\ns_sub_u32 {s(sT3)}, {s(sT3)}, 4")
        a(f"s_mul_i32 {s(sT4)}, {s(sWAVE)}, 24\nv_min_u32 v12, 23, v1\nv_add_lshl_u32 v12, v12, {s(sT4)}, 7\nv_min_u32 v12, {s(sT3)}, v12\nv_add_u32 {v(G.vT0)}, {s(sT2)}, v12")
        a(f"s_lshl_b32 {s(sW+2)}, {s(sSTR)}, 9\ns_mov_b32 {s(sW+3)}, 0x00020000\ns_cmp_eq_u32 {s(sTYPE)}, 0\ns_waitcnt lgkmcnt(0)")
        self.ts("c_karg")
        a(f"s_cselect_b32 {s(sW)}, s6, s12\ns_cselect_b32 {s(sW+1)}, s7, s13")
        self.srd(sX, 4, 2097152)
        def xs():
            a(f"buffer_load_dwordx4 {v(T,4)}, v11, {s(sX,4)}, 0 offen\nbuffer_load_dwordx4 {v(T+4,4)}, v11, {s(sX,4)}, 0 offen offset:512"); vm.issue("xs"); vm.issue("xs")
        if self.o["xe"]: xs()
        if self.o["wt"] == 3: a(f"buffer_load_dword {v(G.vDUM)}, {v(G.vT0)}, {s(sW,4)}, 0 offen"); vm.issue("t")
        if self.o["ld"]: a("s_barrier")
        a(f"v_lshlrev_b32 v8, 4, v3\nv_lshl_add_u32 v8, v2, 5, v8\ns_lshl_b32 {s(sT0)}, {s(sT0)}, 5\nv_add_u32 v8, {s(sT0)}, v8\nv_mov_b32 v9, {hx(OOB)}\nv_cmp_gt_u32 vcc, 2, v2\nv_add_u32 v8, {WS_ST}, v8\nv_cndmask_b32 {v(G.vSTA)}, v9, v8, vcc")
        a(f"v_cmp_gt_u32 vcc, {self.o['fl']}, v1\nv_lshlrev_b32 v8, 2, v1\nv_cndmask_b32 {v(G.vFL)}, v9, v8, vcc")
        a(f"s_lshl_b32 {s(sT2)}, {s(sRH)}, 6\ns_add_u32 {s(sT1)}, {s(sT1)}, {s(sT2)}\nv_add_u32 v8, {s(sT1)}, v2\nv_and_b32 v10, 1, v8\nv_lshlrev_b32 v8, 5, v8\nv_lshlrev_b32 v10, 4, v10\nv_sub_u32 v8, v8, v10\nv_add_u32 {v(G.vSTG)}, {WS_ST}, v8")
        a("v_bfe_u32 v8, v1, 1, 3")
        a(f"s_lshl_b32 {s(sT2)}, {s(sRH)}, 13\nv_lshl_add_u32 v9, v2, 7, {s(sT2)}")
        for tau in range(4):
            a(f"s_xor_b32 {s(sT3)}, {s(sRH)}, {tau}\ns_lshl_b32 {s(sT3)}, {s(sT3)}, 1")
            a(f"v_add_u32 v10, {s(sT3)}, v3\nv_xor_b32 v10, v10, v8\nv_lshl_add_u32 {v(G.vXA+tau)}, v10, 4, v9\nv_add_u32 {v(G.vXB+tau)}, 65536, {v(G.vXA+tau)}")
        a("v_lshrrev_b32 v8, 2, v5\nv_lshl_add_u32 v8, v3, 3, v8\nv_lshlrev_b32 v8, 7, v8")
        a("v_and_b32 v9, 1, v4\nv_lshlrev_b32 v9, 1, v9\nv_bfe_u32 v10, v5, 1, 1\nv_add_u32 v9, v9, v10")
        a("v_lshrrev_b32 v10, 3, v5\nv_lshlrev_b32 v10, 2, v10\nv_xor_b32 v9, v9, v10")
        a("v_and_b32 v10, 1, v5\nv_lshlrev_b32 v10, 3, v10\nv_add_u32 v8, v8, v10")
        a(f"s_xor_b32 {s(sT3)}, {s(sTYPE)}, 1\ns_and_b32 {s(sT3)}, {s(sT3)}, {s(sRH)}\ns_lshl_b32 {s(sT3)}, {s(sT3)}, 1")
        a(f"s_lshl_b32 {s(sT2)}, {s(sCH)}, 2\ns_or_b32 {s(sT2)}, {s(sT2)}, {s(sT3)}\nv_xor_b32 v10, {s(sT2)}, v9\nv_lshl_add_u32 v10, v10, 4, v8")
        a(f"s_lshl_b32 {s(sT2)}, {s(sRH)}, 11")
        for sl in range(3):
            a(f"s_add_u32 {s(sT4)}, {s(sT2)}, {WR+8192*sl}\ns_sub_u32 {s(sT5)}, {WR+8192*sl}, {s(sT2)}")
            a(f"v_add_u32 {v(G.vWE+sl)}, {s(sT4)}, v10\nv_add_u32 {v(G.vWO+sl)}, {s(sT5)}, v10")
        a(f"v_lshrrev_b32 v8, 2, v5\nv_xor_b32 v8, v8, v4\nv_and_b32 v8, 1, v8\nv_cmp_eq_u32 vcc, 0, v8\nv_mov_b32 v9, 0x3f803f80")
        for q in range(4): a(f"v_cndmask_b32 {v(G.SEL+q)}, 0, v9, vcc")
        a(f"s_mul_i32 {s(sT0)}, {s(sWAVE)}, 384\ns_add_u32 {s(sT0)}, {s(sT0)}, {SC_CS}\nv_lshl_add_u32 {v(G.vCW)}, v2, 2, {s(sT0)}")
        a(f"s_xor_b32 {s(sT0)}, {s(sWAVE)}, 2\ns_mul_i32 {s(sT0)}, {s(sT0)}, 384\ns_add_u32 {s(sT0)}, {s(sT0)}, {SC_CS}\ns_xor_b32 {s(sT1)}, {s(sTYPE)}, 1\ns_lshl_b32 {s(sT1)}, {s(sT1)}, 4")
        a(f"v_xor_b32 v8, {s(sT1)}, v2\nv_lshl_add_u32 {v(G.vCR)}, v8, 2, {s(sT0)}")
        a(f"v_lshlrev_b32 v8, 2, v2\nv_add_u32 v8, {SC_FLAG}, v8\nds_write_b32 v8, {v(G.vNZ)}")
        if self.o["wt"] == 2: a(f"buffer_load_dword {v(G.vDUM)}, {v(G.vT0)}, {s(sW,4)}, 0 offen"); vm.issue("t")
        X = self.lab("vwx")
        a(f"v_mov_b32 {v(G.vT1)}, {hx(OOB)}\nv_mov_b32 {v(G.vT2)}, {hx(OOB)}\ns_cmp_lt_u32 {s(sWAVE)}, 2\ns_cbranch_scc1 {X}")
        a(f"s_cmp_eq_u32 {s(sWAVE)}, 2")
        a(f"s_cselect_b32 {s(sW)}, s16, s8\ns_cselect_b32 {s(sW+1)}, s17, s9\ns_movk_i32 {s(sT3)}, 2048\ns_cselect_b32 {s(sT3)}, 5504, {s(sT3)}")
        a(f"s_lshl_b32 {s(sW+2)}, {s(sT3)}, 8\ns_mul_i32 {s(sT2)}, s2, {s(sT3)}\ns_sub_u32 {s(sT3)}, {s(sT3)}, 4")
        a(f"v_lshlrev_b32 v12, 7, v1\nv_min_u32 v12, {s(sT3)}, v12\nv_add_u32 {v(G.vT1)}, {s(sT2)}, v12")
        a(f"s_cmp_eq_u32 {s(sWAVE)}, 2\ns_cselect_b32 {s(sT3)}, 43, 16\ns_lshr_b32 {s(sT2)}, s2, 3\ns_mul_i32 {s(sT2)}, {s(sT2)}, {s(sT3)}")
        a(f"v_add_u32 v12, {s(sT2)}, v1\nv_lshlrev_b32 v12, 10, v12\nv_add_u32 v12, 384, v12\nv_cmp_gt_u32 vcc, {s(sT3)}, v1\nv_cndmask_b32 {v(G.vT2)}, {v(G.vT2)}, v12, vcc")
        a.label(X)
        self.srd(sB1, 14, 2752); self.srd(sDBG, 22, 256); self.srd(sWS, 24, WS_SIZE)
        a(f"s_lshl_b32 {s(sT2)}, {s(sCH)}, 6\ns_lshl_b32 {s(sT3)}, {s(sTYPE)}, 31\ns_xor_b32 {s(sT3)}, {s(sT3)}, {hx(OOB)}\ns_or_b32 {s(sT2)}, {s(sT2)}, {s(sT3)}")
        a(f"v_lshl_add_u32 v8, v2, 1, {s(sT2)}")
        if not self.o["xe"]: xs()
        a("v_mov_b32 v96, v8")
        if self.o["t2"]:
            L = self.lab("t2")
            a(f"s_lshl_b32 {s(sT2)}, {s(sHF)}, 2\ns_or_b32 {s(sT2)}, {s(sT2)}, {s(sWAVE)}\ns_cmp_lg_u32 {s(sT2)}, 3\ns_cbranch_scc1 {L}")
            self.srd(sOUT, 6, 1572864)
            a(f"s_lshr_b32 {s(sT2)}, s2, 3\ns_lshl_b32 {s(sT2)}, {s(sT2)}, 4")
            a(f"v_add_u32 v12, {s(sT2)}, v5\nv_mul_u32_u24 v12, 3072, v12\nv_min_u32 v13, 2, v4\nv_lshl_add_u32 v12, v13, 10, v12\nv_add_u32 v12, 384, v12")
            a(f"buffer_load_dword {v(G.vDUM)}, v12, {s(sOUT,4)}, 0 offen")
            a.label(L)
        if self.o["w2s"]: a(f"buffer_load_dword {v(G.vDUM)}, {v(G.vT1)}, {s(sW,4)}, 0 offen"); vm.issue("t")
        self.vm0 = list(vm.q)
        self.ts("c_setup")
        a(f"s_cmp_eq_u32 {s(sTYPE)}, 0\ns_cbranch_scc0 L_typeB")

    def q_stats(self, typ, extra=()):
        G = self; T = G.TMP; U = T + 8; q = []
        g = dict(math=1, chk=self.o['chk'], w2=self.o["w2t"], ga=self.o['ga'], gc=self.o['gc'])
        nl = [self.vmi(f"buffer_load_dword {v(G.GR+3)}, {v(G.vNZ)}, {s(sDBG,4)}, 0 offen sc1", "nonce")]
        if not self.o["pre"]: q += nl
        q += [("GI", g["math"]), self.vmw("xs")]
        if self.o["pre"]: q += nl
        w = []
        for k in range(8): w += [f"v_lshlrev_b32 {v(U+2*k)}, 16, {v(T+k)}", f"v_and_b32 {v(U+2*k+1)}, 0xffff0000, {v(T+k)}"]
        w += [f"v_add_f32 {v(T+k)}, {v(U+2*k)}, {v(U+2*k+1)}" for k in range(8)]
        for n in (4, 2, 1): w += [f"v_add_f32 {v(T+k)}, {v(T+k)}, {v(T+k+n)}" for k in range(n)]
        def red32(r, t):
            o = [f"v_add_f32_dpp {v(r)}, {v(r)}, {v(r)} {m} row_mask:0xf bank_mask:0xf" for m in ("quad_perm:[1,0,3,2]", "quad_perm:[2,3,0,1]", "row_half_mirror", "row_mirror")]
            return o + [f"v_mov_b32 {v(t)}, {v(r)}", f"v_permlane16_swap_b32 {v(r)}, {v(t)}", f"v_add_f32 {v(r)}, {v(r)}, {v(t)}"]
        w += red32(T, T + 1) + [f"v_mul_f32 {v(G.GR)}, {fl(1/512)}, {v(T)}"]
        w += [f"v_sub_f32 {v(U+k)}, {v(U+k)}, {v(G.GR)}" for k in range(16)]
        w += [f"v_mul_f32 {v(T+k)}, {v(U+k)}, {v(U+k)}" for k in range(4)]
        w += [f"v_fmac_f32 {v(T+k%4)}, {v(U+k)}, {v(U+k)}" for k in range(4, 16)]
        w += [f"v_add_f32 {v(T)}, {v(T)}, {v(T+1)}", f"v_add_f32 {v(T+2)}, {v(T+2)}, {v(T+3)}", f"v_add_f32 {v(T)}, {v(T)}, {v(T+2)}"]
        w += red32(T, T + 1) + [f"v_mov_b32 {v(T+1)}, {fl(1e-5)}", f"v_fmac_f32 {v(T+1)}, {fl(1/512)}, {v(T)}",
                                f"v_rsq_f32 {v(G.GR+1)}, {v(T+1)}", f"v_mul_f32 {v(G.GR+2)}, {v(T+1)}, {v(G.GR+1)}"]
        q += self.its(w)
        if self.o["pre"]: self.flush(q); q = []
        L = self.lab("nonce"); R = self.lab("nonceok"); X = self.lab("noncex")
        q += [("GI", g["chk"]), self.vmw("nonce"),
              self.it(f"v_readfirstlane_b32 {s(sNONCE)}, {v(G.GR+3)}\ns_cmp_eq_u32 {s(sNONCE)}, 0\ns_cbranch_scc1 {L}\n{R}:"),
              self.vmi(f"buffer_store_dwordx4 {v(G.GR,4)}, {v(G.vSTA)}, {s(sWS,4)}, 0 offen sc1", "st"),
              self.it(f"v_mov_b32 v8, {SC_NONCE}\nds_write_b32 v8, {v(G.GR+3)}"), self.tsi("c_stpub")]
        self.tail.append(f"""{L}:
s_mov_b32 {s(sSPIN)}, 0
{X}:
buffer_load_dword {v(G.GR+3)}, {v(G.vNZ)}, {s(sDBG,4)}, 0 offen sc1
s_add_u32 {s(sSPIN)}, {s(sSPIN)}, 1
s_waitcnt vmcnt(0)
v_readfirstlane_b32 {s(sNONCE)}, {v(G.GR+3)}
s_cmp_gt_u32 {s(sSPIN)}, {SPIN_MAX}
s_cbranch_scc1 {R}
s_cmp_eq_u32 {s(sNONCE)}, 0
s_cbranch_scc1 {X}
s_branch {R}""")
        if typ == "B": q += self.its([f"v_lshlrev_b32 {v(G.B1+p)}, 16, {v(G.B1+p)}" for p in range(3)])
        q += list(extra)
        if self.o["t3"]:
            q += [("GI", self.o["t3"] - 1), self.it(f"s_lshl_b32 {s(sT0)}, {s(sI)}, 3\ns_add_u32 {s(sT0)}, {s(sT0)}, {s(sCT)}\ns_lshl_b32 {s(sT0)}, {s(sT0)}, 14\nv_lshl_add_u32 v8, v5, 10, {s(sT0)}"),
                  self.vmi(f"buffer_load_dword {v(G.vDUM)}, v8, {s(sX,4)}, 0 offen offset:384", "t")]
        if self.o["w2t"] and not self.o["w2s"]: q += [("GI", g["w2"]), self.vmi(f"buffer_load_dword {v(G.vDUM)}, {v(G.vT1)}, {s(sW,4)}, 0 offen", "t")]
        if self.o["t1"]: q += [("GI", self.o["t1"]), self.vmi(f"buffer_load_dword {v(G.vDUM)}, {v(G.vT2)}, {s(sW,4)}, 0 offen", "t")]
        q += [("GI", g["ga"])] + [self.vmi(f"buffer_load_dwordx4 {v(G.SG+4*rb,4)}, {v(G.vSTG)}, {s(sWS,4)}, 0 offen offset:{1024*rb} sc1", "sg") for rb in range(2)]
        L = self.lab("st"); R = self.lab("stok"); X = self.lab("stx")
        chk = f"v_cmp_ne_u32 vcc, {s(sNONCE)}, {v(G.SG+3)}\nv_cmp_ne_u32 {s(sM,2)}, {s(sNONCE)}, {v(G.SG+7)}\ns_or_b64 vcc, vcc, {s(sM,2)}"
        q += [("GI", g["gc"]), self.vmw("sg"), self.it(f"{chk}\ns_cbranch_vccnz {L}\n{R}:"), self.tsi("c_stok")]
        self.tail.append(f"""{L}:
s_mov_b32 {s(sSPIN)}, 0
{X}:
buffer_load_dwordx4 {v(G.SG,4)}, {v(G.vSTG)}, {s(sWS,4)}, 0 offen sc1
buffer_load_dwordx4 {v(G.SG+4,4)}, {v(G.vSTG)}, {s(sWS,4)}, 0 offen offset:1024 sc1
s_add_u32 {s(sSPIN)}, {s(sSPIN)}, 1
s_cmp_gt_u32 {s(sSPIN)}, {SPIN_MAX}
s_waitcnt vmcnt(0)
s_cbranch_scc1 {R}
{chk}
s_cbranch_vccnz {X}
s_branch {R}""")
        for rb in range(2):
            mu, r, sd = G.SG + 4*rb, G.SG + 4*rb + 1, G.SG + 4*rb + 2; X = G.XS + 4*rb
            q += self.its([f"v_cvt_pk_bf16_f32 {v(T)}, -{v(mu)}, -{v(mu)}", f"v_cvt_pk_bf16_f32 {v(T+1)}, {v(sd)}, {v(sd)}",
                           f"v_and_b32 {v(T+2)}, 0xffff0000, {v(T)}", f"v_and_b32 {v(T+3)}, 0xffff0000, {v(T+1)}",
                           f"v_sub_f32 {v(T+2)}, -{v(mu)}, {v(T+2)}", f"v_sub_f32 {v(T+4)}, {v(sd)}, {v(T+3)}",
                           f"v_cvt_pk_bf16_f32 {v(T+2)}, {v(T+2)}, {v(T+3)}", f"v_cvt_pk_bf16_f32 {v(T+4)}, {v(T+4)}, 0",
                           f"v_cmp_gt_u32 vcc, 32, v1\nv_mov_b32 {v(X+3)}, 0\nv_cndmask_b32 {v(X)}, 0, {v(T)}, vcc\nv_cndmask_b32 {v(X+1)}, 0, {v(T+2)}, vcc\nv_cndmask_b32 {v(X+2)}, 0, {v(T+4)}, vcc"])
        k0 = -2.0 * 1.4426950408889634 * 0.7978845608028654
        for rb in range(2):
            r, sd = G.SG + 4*rb + 1, G.SG + 4*rb + 2
            if typ == "B":
                q += self.its([f"v_mul_f32 {v(G.GC+rb)}, {fl(k0)}, {v(r)}", f"v_mul_f32 {v(T)}, {v(r)}, {v(r)}",
                               f"v_mul_f32 {v(T)}, {fl(0.044715)}, {v(T)}", f"v_mul_f32 {v(G.GC+2+rb)}, {v(T)}, {v(G.GC+rb)}"])
            else:
                q += self.its([f"v_mul_f32 {v(G.GC+rb)}, {fl(1.4426950408889634)}, {v(r)}", f"v_mul_f32 {v(G.GC+2+rb)}, {fl(1e-6)}, {v(sd)}"])
        if typ == "A":
            q += self.its([f"s_lshl_b32 {s(sT0)}, {s(sWAVE)}, 8\ns_add_u32 {s(sT0)}, {s(sT0)}, {SC_R}\nv_lshl_add_u32 v8, v2, 2, {s(sT0)}\nv_lshl_add_u32 v6, v3, 4, {s(sT0)}",
                           f"ds_write_b32 v8, {v(G.GC)}", f"ds_write_b32 v8, {v(G.GC+1)} offset:128"])
        return q

    def reads0(self, gi):
        G = self
        k, tau = divmod(gi, 4); sl = (gi // 2) % 3; b = gi & 1
        X = lambda rb: [(f"ds_read_b128 {v(16+8*b+4*rb,4)}, {v((G.vXB if k >= 4 else G.vXA) + tau)} offset:{(k % 4)*16384 + 4096*rb}", (gi, "X", rb))]
        W = lambda p: [(f"ds_read_b64_tr_b16 {v(48+8*b+4*p+2*j,2)}, {v((G.vWO if tau & 1 else G.vWE) + sl)} offset:{p*4096+(tau&1)*2048+j*512}", (gi, "W", p)) for j in range(2)]
        return [W(0) + X(0), W(1) + X(1), [], []]
    def reads1(self, M):
        G = self
        if M >= 16: return [[], [], [], []]
        k = M // 2; sl = (16 + k) % 3; b = M & 1
        def X(ks, rb):
            tau = 2*(M & 1) + ks
            return [(f"ds_read_b128 {v(16+16*b+8*ks+4*rb,4)}, {v((G.vXB if k >= 4 else G.vXA) + tau)} offset:{(k % 4)*16384 + 4096*rb}", (32+M, "X", ks, rb))]
        def W(ks):
            tau = 2*(M & 1) + ks
            return [(f"ds_read_b64_tr_b16 {v(48+8*b+4*ks+2*j,2)}, {v((G.vWO if tau & 1 else G.vWE) + sl)} offset:{tau*2048+j*512}", (32+M, "W", ks)) for j in range(2)]
        return [W(0) + X(0, 0), W(1) + X(0, 1), X(1, 0), X(1, 1)]

    def mpass(self, typ, ps, q, budget):
        a = self.a; G = self; CS = G.CSM[typ]
        def issue(g):
            for r, t in g: a(r); self.lg.issue(t)
        if ps == 0:
            self.lg = Cnt(a, "lgkmcnt", 15)
            self.ts("c_pre0")
            a("s_waitcnt lgkmcnt(0)\ns_barrier")
            self.ts("c_bar0")
            for g in self.reads0(0): issue(g)
        elif typ == "A":
            for g in self.reads1(0): issue(g)
        lg = self.lg
        st_ = dict(hold=None, credit=0, nbar=0)
        def emit(x):
            n0 = len(a.items); x[1]()
            for ln in a.items[n0:]:
                if ln.startswith("ds_"): lg.issue("F")
        def fill(M, nr):
            st_["credit"] = min(st_["credit"] + budget - 5 * nr, budget + 6)
            while q and st_["hold"] is None:
                x = q[0]
                if x in ("NEXT", "BAR"): st_["hold"] = x; q.pop(0); break
                if x[0] == "GI":
                    if M >= x[1]: q.pop(0); continue
                    break
                if x[0] == "GB":
                    if st_["nbar"] >= x[1]: q.pop(0); continue
                    break
                if st_["credit"] < min(x[0], 12): break
                q.pop(0); emit(x); st_["credit"] -= x[0]
        def barrier(n):
            lg.wait("F"); a("s_barrier"); self.ts(f"c_bar{n}"); st_["nbar"] += 1
            if st_["hold"] == "BAR": st_["hold"] = None
        NS = 32 if ps == 0 else 16
        pn = (0, 1) if ps == 0 else (2,)
        for M in range(NS):
            b = M & 1; mf = []; last = M == NS - 1
            for i in range(2):
                for rb in range(2):
                    p = i if ps == 0 else 2
                    x = v(16+8*b+4*rb, 4) if ps == 0 else v(16+16*b+8*i+4*rb, 4)
                    w = v(48+8*b+4*i, 4); c = v(G.acc(p, rb), 16)
                    A, B = (x, w) if (typ == "A" and p < 2) else (w, x)
                    mf.append(f"v_mfma_f32_32x32x16_bf16 {c}, {A}, {B}, {c if M or (ps and i) else 0}")
            if ps == 0:
                cs = [f"v_mfma_f32_16x16x32_bf16 {v(CS[p],4)}, {v(G.SEL,4)}, {v(48+8*b+4*p,4)}, {v(CS[p],4) if M else 0}" for p in pn] if b == 0 else []
                rd = self.reads0(M + 1) if not last else (self.reads1(0) if typ == "B" else [[], [], [], []])
                need = [(M, "X", 1), None, None, None]; nb = M // 2 + 1
            else:
                cs = [f"v_mfma_f32_16x16x32_bf16 {v(CS[2],4)}, {v(G.SEL,4)}, {v(48+8*b,4)}, {v(CS[2],4) if M else 0}"]
                rd = self.reads1(M + 1)
                need = [(32+M, "X", 0, 1), None, (32+M, "X", 1, 1), None]; nb = 17 + M // 2
            csw = [(f"ds_write_b32 {v(G.vCW)}, {v(CS[p])} offset:{128*p}", "F") for p in pn]
            csr = [(f"ds_read_b32 {v(CS[p]+1)}, {v(G.vCR)} offset:{128*p}", "F") for p in pn]
            if st_["hold"] == "NEXT" or M == 0: lg.wait("F"); st_["hold"] = None if st_["hold"] == "NEXT" else st_["hold"]
            if last and ps == 1:
                lg.wait(need[0]); a(cs[0]); a(mf[0]); fill(M, 0); a(mf[1])
                issue(csw); fill(M, 1); lg.wait(need[2]); a(mf[2])
                barrier(nb); issue(csr); a(mf[3])
                break
            for k in range(4):
                lg.wait(need[k]); a(mf[k])
                if k == 0 and b:
                    barrier(nb)
                    if last: issue(csr)
                issue(rd[k])
                fill(M, len(rd[k]))
                if k == (0 if (ps == 0 and M == 30) else 2):
                    for c in cs: a(c)
                if k == 2 and ps == 0 and M == 30: issue(csw)
        assert st_["hold"] != "BAR"
        assert not any(x[0] in ("GI", "GB") for x in q if not isinstance(x, str)), "GI marker left"
        if self.verbose: print(typ, "pass", ps, "leftover cost", sum(x[0] for x in q if not isinstance(x, str)))
        self.ts(f"c_pass{ps}")

    def q_fixup(self, typ, p):
        G = self; c = G.CSM[typ][p]; F = 136 if typ == "B" else (152, 148, 128)[p]; q = []
        q += self.its([f"v_add_f32 {v(c)}, {v(c)}, {v(c+1)}", f"v_cvt_pk_bf16_f32 {v(c+1)}, {v(c)}, {v(c)}",
                      f"v_and_b32 {v(c+1)}, 0xffff0000, {v(c+1)}", f"v_sub_f32 {v(c+2)}, {v(c)}, {v(c+1)}", f"v_mov_b32 {v(F+3)}, 0"])
        if typ == "B":
            q += self.its([f"v_cvt_pk_bf16_f32 {v(F+1)}, {v(c+1)}, {v(G.B1+p)}", f"v_cvt_pk_bf16_f32 {v(F+2)}, {v(G.B1+p)}, 0"])
        else:
            q += self.its([f"v_cvt_pk_bf16_f32 {v(F+1)}, {v(c+1)}, 0", f"v_mov_b32 {v(F+2)}, 0"])
        q += self.its([f"v_cvt_pk_bf16_f32 {v(F)}, {v(c+1)}, {v(c+2)}"])
        for rb in range(2):
            x = v(G.XS + 4*rb, 4); w = v(F, 4); cc = v(G.acc(p, rb), 16)
            A, B = (x, w) if (typ == "A" and p < 2) else (w, x)
            q += self.its([f"v_mfma_f32_32x32x16_bf16 {cc}, {A}, {B}, {cc}"])
        return q

    def ho_base(self, dst, sig0):
        t = (f"s_lshl_b32 {s(dst)}, {s(sI)}, 1\ns_add_u32 {s(dst)}, {s(dst)}, {s(sRH)}\ns_lshl_b32 {s(dst)}, {s(dst)}, 18\n"
             f"s_lshl_b32 {s(sT0)}, {s(sG)}, 1\ns_add_u32 {s(sT0)}, {s(sT0)}, {s(sCH)}\n")
        if not self.o["lay"]:
            return t + f"s_add_u32 {s(sT5)}, {s(sT0)}, {sig0}\ns_lshl_b32 {s(sT5)}, {s(sT5)}, 10\ns_add_u32 {s(dst)}, {s(dst)}, {s(sT5)}"
        par = int(sig0 >= 29)
        return t + (f"s_add_u32 {s(sT5)}, {s(sT0)}, {sig0 - 29*par}\ns_and_b32 {s(sT4)}, {s(sT5)}, 7\ns_lshr_b32 {s(sT5)}, {s(sT5)}, 3\ns_lshl_b32 {s(sT5)}, {s(sT5)}, 4\n"
                    f"s_add_u32 {s(sT5)}, {s(sT5)}, {s(sT4)}\ns_add_u32 {s(sT5)}, {s(sT5)}, {8*par}\ns_lshl_b32 {s(sT5)}, {s(sT5)}, 10\ns_add_u32 {s(dst)}, {s(dst)}, {s(sT5)}")

    def q_flag(self, soff):
        return [self.it(f"v_mov_b32 v11, {s(sNONCE)}"),
                self.vmi(f"buffer_store_dword v11, {v(self.vFL)}, {s(sWS,4)}, {s(soff)} offen {'sc0 sc1' if self.o['fsc'] else 'sc1'}", "f")]

    def q_gelu_setup(self):
        sHB, sFL = 26, 27; vO = 12
        q = [self.it("\n".join(self.ho_base(4 + p, SIG0[p]) for p in range(3)) + f"\ns_lshl_b32 {s(sT1)}, {s(sI)}, 1\ns_add_u32 {s(sT1)}, {s(sT1)}, {s(sRH)}\ns_mul_i32 {s(sFL)}, {s(sT1)}, {3*FG}\ns_lshl_b32 {s(sT1)}, {s(sT0)}, {FS}\ns_add_u32 {s(sFL)}, {s(sFL)}, {s(sT1)}\ns_add_u32 {s(sFL)}, {s(sFL)}, {WS_FH}")]
        t = f"s_mul_i32 {s(sT1)}, {s(sG)}, 6\ns_add_u32 {s(sT1)}, {s(sT1)}, {s(sCH)}\nv_lshlrev_b32 v11, 4, v1"
        for p in range(3): t += f"\ns_cmp_lt_u32 {s(sT1)}, {43-2*p}\ns_cselect_b32 {s(sT2)}, 0, {hx(OOB)}\nv_or_b32 {v(vO+p)}, {s(sT2)}, v11"
        return q + [self.it(t)]
    def q_gelu(self, p, pk):
        G = self; sHB, sFL, sO = 26, 27, 3; vO = 12; t = G.TMP; q = []; n = 0
        for rb in range(2):
            A, B, sd = G.GC + rb, G.GC + 2 + rb, G.SG + 4*rb + 2
            for kh in range(2):
                c = G.acc(p, rb) + 8*kh; P = t + 8 + 4*(n & 1); n += 1
                if self.o["pk"] and pk:
                    sel = rb
                    w = [f"v_pk_mul_f32 {v(t+j,2)}, {v(c+j,2)}, {v(c+j,2)}" for j in range(0, 8, 2)]
                    w += [f"v_pk_fma_f32 {v(t+j,2)}, {v(t+j,2)}, {v(G.GC+2,2)}, {v(G.GC,2)} op_sel:[0,{sel},{sel}] op_sel_hi:[1,{sel},{sel}]" for j in range(0, 8, 2)]
                    w += [f"v_pk_mul_f32 {v(t+j,2)}, {v(c+j,2)}, {v(t+j,2)}" for j in range(0, 8, 2)]
                    w += [f"v_exp_f32 {v(t+j)}, {v(t+j)}" for j in range(8)]
                    w += [f"v_pk_fma_f32 {v(t+j,2)}, {v(t+j,2)}, {v(sd,2)}, {v(sd,2)} op_sel:[0,0,0] op_sel_hi:[1,0,0]" for j in range(0, 8, 2)]
                    w += [f"v_rcp_f32 {v(t+j)}, {v(t+j)}" for j in range(8)]
                    w += [f"v_pk_mul_f32 {v(t+j,2)}, {v(c+j,2)}, {v(t+j,2)}" for j in range(0, 8, 2)]
                else:
                    w = [f"v_mul_f32 {v(t+j)}, {v(c+j)}, {v(c+j)}" for j in range(8)]
                    w += [f"v_fma_f32 {v(t+j)}, {v(t+j)}, {v(B)}, {v(A)}" for j in range(8)]
                    w += [f"v_mul_f32 {v(t+j)}, {v(c+j)}, {v(t+j)}" for j in range(8)]
                    w += [f"v_exp_f32 {v(t+j)}, {v(t+j)}" for j in range(8)]
                    w += [f"v_fma_f32 {v(t+j)}, {v(t+j)}, {v(sd)}, {v(sd)}" for j in range(8)]
                    w += [f"v_rcp_f32 {v(t+j)}, {v(t+j)}" for j in range(8)]
                    w += [f"v_mul_f32 {v(t+j)}, {v(c+j)}, {v(t+j)}" for j in range(8)]
                w += [f"v_cvt_pk_bf16_f32 {v(P+j)}, {v(t+2*j)}, {v(t+2*j+1)}" for j in range(4)]
                q += self.its(w)
                q += [self.vmi(f"s_add_u32 {s(sO)}, {s(4+p)}, {(2*rb+kh)*65536}\nbuffer_store_dwordx4 {v(P,4)}, {v(vO+p)}, {s(sWS,4)}, {s(sO)} offen sc1", ("h", p))]
        return q + [self.tsi(f"cB_p{p}")]

    def q_hflag(self, p):
        return [self.vmw(("h", p))] + self.q_flag(27) + [self.it(f"s_add_u32 s27, s27, {FG}"), self.tsi(f"cB_flag{p}")]
    def q_h0(self):
        G = self
        return self.its([f"s_lshl_b32 {s(sT1)}, {s(sI)}, 1\ns_add_u32 {s(sT1)}, {s(sT1)}, {s(sHF)}\ns_mul_i32 {s(sC0)}, {s(sT1)}, {3*FG}\ns_add_u32 {s(sC0)}, {s(sC0)}, {WS_FH}", f"v_lshlrev_b32 {v(G.vGP)}, {FS}, v5"]) + \
               [("GI", 13), self.vmi(f"buffer_load_dword {v(G.vGF)}, {v(G.vGP)}, {s(sWS,4)}, {s(sC0)} offen sc1", "gf")]
    def aload(self, vm, sig):
        if sig >= 59: return
        G = self; sA = sKST; D = self.o["D"]
        o = hoff(sig, self.o["lay"]); d = (o & ~4095) - (hoff(sig - 1, self.o["lay"]) & ~4095) if sig else 0
        if d: self.a(f"s_add_u32 {s(sA)}, {s(sA)}, {hx(d)}")
        self.a(f"buffer_load_dwordx4 {v(G.RING[sig%D],4)}, {v(G.vA)}, {s(sWS,4)}, {s(sA)} offen offset:{o & 4095} sc1"); vm.issue(("A", sig))
    RING = [16 + 4*k for k in range(8)] + [72, 76, 80, 84, 88]
    def gcheck(self, vm, soff):
        a = self.a; G = self; L = self.lab("gc"); R = self.lab("gcok"); X = self.lab("gcx")
        vm.wait("gf")
        a(f"v_cmp_ne_u32 vcc, {s(sNONCE)}, {v(G.vGF)}\ns_cbranch_vccnz {L}")
        a.label(R)
        self.tail.append(f"{L}:\n" + self.poll_text(G.vGP, G.vGF, soff, X, self.lab("gcy")) + f"\ns_branch {R}")
    def p2_pre(self):
        if self.stop == "p1": return
        self.gcheck(self.vm, sC0); self.ts("c_p0x")
        for sig in range(8): self.aload(self.vm, sig)
    def typeB(self):
        a = self.a; G = self; o = self.o
        self.vm.q = list(self.vm0)
        for p in range(3):
            a(f"v_add_u32 v9, {s(sC0+p)}, v96\nbuffer_load_ushort {v(G.B1+p)}, v9, {s(sB1,4)}, 0 offen"); self.vm.issue("b1")
        self.flush(self.q_gelu_setup())
        q = self.q_stats("B", self.q_p2setup())
        self.mpass("B", 0, q, o["bud0"])
        g1 = self.q_gelu(1, False)
        h0 = self.q_h0()
        q += self.q_fixup("B", 0) + self.q_fixup("B", 1) + h0[:2] + self.q_gelu(0, False) + g1[:o["fm"]*10] + self.q_hflag(0) + g1[o["fm"]*10:]
        self.mpass("B", 1, q, o["bud2"])
        self.ts("c_main")
        g2 = self.q_gelu(2, True); h = len(g2) // 4 * o["g2h"]
        self.flush(q + h0[3:] + ["NEXT"] + self.q_fixup("B", 2) + g2[:h] + self.q_hflag(1) + [(0, self.p2_pre)] + g2[h:])
        self.ts("cB_gelu")
        if self.stop == "p1": self.vm.wait(("h", 2)); self.flush(self.q_flag(27))

    def pair_recv(self, kind, reads):
        a = self.a; L = self.lab("pw"); X = self.lab("pwx")
        a(f"s_xor_b32 {s(sT0)}, {s(sWAVE)}, 2\ns_lshl_b32 {s(sT0)}, {s(sT0)}, 4\ns_add_u32 {s(sT0)}, {s(sT0)}, {SC_FLAG+4*kind}\nv_mov_b32 v12, {s(sT0)}\ns_mov_b32 {s(sSPIN)}, 0")
        a.label(L)
        a("ds_read_b32 v13, v12")
        for r in reads: a(r)
        a(f"s_add_u32 {s(sSPIN)}, {s(sSPIN)}, 1\ns_cmp_gt_u32 {s(sSPIN)}, {SPIN_MAX}\ns_waitcnt lgkmcnt(0)\ns_cbranch_scc1 {X}")
        a(f"v_cmp_eq_u32 vcc, 0, v13\ns_cbranch_vccnz {L}")
        a.label(X)
    def pair_send(self, kind):
        a = self.a
        a(f"s_lshl_b32 {s(sT0)}, {s(sWAVE)}, 4\ns_add_u32 {s(sT0)}, {s(sT0)}, {SC_FLAG+4*kind}\nv_mov_b32 v12, {s(sT0)}\nv_mov_b32 v13, 1\nds_write_b32 v12, v13")

    ON = 156
    RR = (128, 32)
    def q_kv_pre(self):
        G = self
        return ["NEXT"] + self.its([f"ds_read_b128 {v(G.RR[rb]+4*k,4)}, v6 offset:{128*rb+32*k}" for rb in range(2) for k in range(4)]
                                   + [f"v_mov_b32 {v(G.ON+k)}, 0x3f803f80" for k in range(4)] + ["v_xor_b32 v12, 32, v96"])
    def q_kv(self):
        G = self; q = []
        KV, ZZ, u, ON = 16, 48, G.TMP + 16, G.ON
        pend = []
        for n, (rb, kh) in enumerate(((0, 0), (0, 1), (1, 0), (1, 1))):
            c = G.acc(0, rb) + 8*kh; cv = G.acc(1, rb) + 8*kh; r = G.RR[rb] + 8*kh
            w = [f"v_pk_mul_f32 {v(c+j,2)}, {v(c+j,2)}, {v(r+j,2)}" for j in range(0, 8, 2)]
            e = [f"v_exp_f32 {v(u+j)}, {v(c+j)} clamp" for j in range(8)]
            w += pend[:1] + e[:4] + pend[1:] + e[4:]
            w += [f"v_max_f32 {v(c+j)}, v10, {v(c+j)}" for j in range(8)]
            w += [f"v_pk_mul_f32 {v(cv+j,2)}, {v(cv+j,2)}, {v(r+j,2)}" for j in range(0, 8, 2)]
            w += [f"v_pk_fma_f32 {v(u+j,2)}, {v(c+j,2)}, v[10:11], {v(u+j,2)} op_sel:[0,1,0] op_sel_hi:[1,1,1]" for j in range(0, 8, 2)]
            w += [f"v_cvt_pk_bf16_f32 {v(cv+j)}, {v(cv+2*j)}, {v(cv+2*j+1)}" for j in range(4)]
            w += [f"v_cvt_pk_bf16_f32 {v(c+j)}, {v(u+2*j)}, {v(u+2*j+1)}" for j in range(4)]
            pend = [f"v_mfma_f32_32x32x16_bf16 {v(ZZ,16)}, {v(c,4)}, {v(ON,4)}, {v(ZZ,16) if n else 0}",
                    f"v_mfma_f32_32x32x16_bf16 {v(KV,16)}, {v(c,4)}, {v(cv,4)}, {v(KV,16) if n else 0}"]
            q += self.its(w)
        q += self.its(pend) + [self.tsi("cA_kv"), self.it("v_mov_b32 v13, 1")]
        q += self.its([f"v_cndmask_b32 {v(u+j)}, {v(KV+8+j)}, {v(ZZ+8+j)}, {s(sLM,2)}" for j in range(8)])
        q += self.its([f"ds_write_b128 v90, {v(u,4)}", f"ds_write_b128 v90, {v(u+4,4)} offset:16", "ds_write_b32 v96, v13"])
        q += self.its([f"v_cndmask_b32 {v(ZZ+j)}, {v(ZZ+j)}, {v(KV+j)}, {s(sLM,2)}" for j in range(8)])
        q += [(40, lambda: self.pair_spin([f"ds_read_b128 {v(ZZ+8,4)}, v91", f"ds_read_b128 {v(ZZ+12,4)}, v91 offset:16"]))]
        q += self.its([f"v_pk_add_f32 {v(ZZ+j,2)}, {v(ZZ+j,2)}, {v(ZZ+8+j,2)}" for j in range(0, 8, 2)])
        q += self.its([f"v_pk_mul_f32 {v(ZZ+j,2)}, {v(ZZ+j,2)}, v[0:1] op_sel_hi:[1,0]" for j in range(0, 8, 2)])
        q += self.its([f"v_cvt_pk_bf16_f32 {v(u+j)}, {v(ZZ+2*j)}, {v(ZZ+2*j+1)}" for j in range(4)])
        q += [self.vmi(f"buffer_store_dwordx4 {v(u,4)}, v15, {s(sWS,4)}, s85 offen sc1", "kv"), self.tsi("cA_pub")]
        return q
    def pair_spin(self, reads, off=0):
        a = self.a; L = self.lab("pw"); X = self.lab("pwx")
        a(f"s_mov_b32 {s(sSPIN)}, 0")
        a.label(L)
        a(f"ds_read_b32 v13, v12 offset:{off}")
        for r in reads: a(r)
        a(f"s_add_u32 {s(sSPIN)}, {s(sSPIN)}, 1\ns_cmp_gt_u32 {s(sSPIN)}, {SPIN_MAX}\ns_waitcnt lgkmcnt(0)\ns_cbranch_scc1 {X}")
        a(f"v_cmp_eq_u32 vcc, 0, v13\ns_cbranch_vccnz {L}")
        a.label(X)
    def q_kvflag(self):
        sFL, sHD = 27, 3
        return [self.vmw("kv")] + self.q_flag(sHD) + [self.tsi("cA_flag")]
    def q_phiq(self):
        G = self; u = G.TMP; q = []
        for rb in range(2):
            rl, ep, r = G.GC + rb, G.GC + 2 + rb, G.SG + 4*rb + 1
            for hh in range(2):
                c = G.acc(2, rb) + 8*hh
                w = [f"v_mul_f32 {v(u+j)}, {v(rl)}, {v(c+j)}" for j in range(8)]
                w += [f"v_exp_f32 {v(u+j)}, {v(u+j)} clamp" for j in range(8)]
                w += [f"v_max_f32 {v(c+j)}, {v(ep)}, {v(c+j)}" for j in range(8)]
                w += [f"v_fmac_f32 {v(u+j)}, {v(c+j)}, {v(r)}" for j in range(8)]
                w += [f"v_cvt_pk_bf16_f32 {v(c+j)}, {v(u+2*j)}, {v(u+2*j+1)}" for j in range(4)]
                q += self.its(w)
        return q + [self.tsi("cA_q")]

    def typeA(self):
        a = self.a; G = self; T = G.TMP; vm = self.vm
        vm.q = list(self.vm0)
        a("v_and_b32 v8, 1, v4\nv_lshlrev_b32 v8, 2, v8\nv_sub_u32 v8, v5, v8\nv_mov_b32 v9, 0x3f80\nv_mov_b32 v10, 0x3f800000")
        for k, e in enumerate((0, 2, 8, 10)):
            a(f"v_cmp_eq_u32 vcc, {e}, v8\nv_cndmask_b32 v11, 0, v9, vcc\nv_cmp_eq_u32 vcc, {e+1}, v8\nv_cndmask_b32 {v(G.IDN+k)}, v11, v10, vcc")
        sREC, sFL, sHD = 26, 27, 3
        a(f"s_lshl_b32 {s(sHD)}, {s(sG)}, 1\ns_add_u32 {s(sHD)}, {s(sHD)}, {s(sCH)}\ns_lshl_b32 {s(sHD)}, {s(sHD)}, 1\ns_add_u32 {s(sHD)}, {s(sHD)}, {s(sRH)}")
        a(f"s_mul_i32 {s(sREC)}, {s(sHD)}, 10240\ns_add_u32 {s(sREC)}, {s(sREC)}, {WS_KV}\ns_lshl_b32 {s(sFL)}, {s(sHD)}, {FS+4}\ns_add_u32 {s(sFL)}, {s(sFL)}, {WS_FK}")
        a(f"s_lshl_b32 {s(sHD)}, {s(sI)}, {FS}\ns_add_u32 {s(sHD)}, {s(sHD)}, {s(sFL)}\ns_mul_i32 s85, {s(sI)}, 640\ns_add_u32 s85, s85, {s(sREC)}")
        a(f"v_cmp_gt_u32 {s(sLM,2)}, 16, v2\nv_lshl_add_u32 v12, v3, 4, v2\nv_lshlrev_b32 v12, 4, v12\nv_lshlrev_b32 v13, 6, v3\nv_add_u32 v13, 512, v13")
        a(f"v_cndmask_b32 v14, v13, v12, {s(sLM,2)}")
        a(f"v_lshl_add_u32 v13, v5, 4, v13\nv_cndmask_b32 v15, v13, v12, {s(sLM,2)}\nv_mov_b32 v12, {hx(OOB)}\nv_cmp_gt_u32 vcc, 20, v2\nv_cndmask_b32 v15, v12, v15, vcc")
        a(f"v_mov_b32 v9, {fl(0.6931471805599453)}\nv_cndmask_b32 v0, 1.0, v9, {s(sLM,2)}")
        a(f"v_mov_b32 v10, {fl(1e-6*1.4426950408889634)}\nv_mov_b32 v11, v9")
        o = self.o
        q = self.q_stats("A")
        q += self.its([f"s_mul_i32 {s(sT1)}, {s(sWAVE)}, 1280\ns_add_u32 {s(sT1)}, {s(sT1)}, {SC_KVX}\nv_add_u32 v93, {s(sT1)}, v14",
                       "v_xor_b32 v8, 16, v2", "v_lshl_add_u32 v8, v3, 4, v8", "v_lshlrev_b32 v9, 0, v3", "v_add_u32 v9, 32, v9",
                       f"v_cndmask_b32 v8, v8, v9, {s(sLM,2)}", f"v_lshl_add_u32 v90, v8, 5, {s(sT1)}",
                       f"s_xor_b32 {s(sT1)}, {s(sWAVE)}, 2\ns_mul_i32 {s(sT1)}, {s(sT1)}, 1280\ns_add_u32 {s(sT1)}, {s(sT1)}, {SC_KVX}\nv_add_u32 v92, {s(sT1)}, v14",
                       "v_lshl_add_u32 v8, v3, 4, v2", f"v_cndmask_b32 v8, v9, v8, {s(sLM,2)}", f"v_lshl_add_u32 v91, v8, 5, {s(sT1)}"])
        q += self.its([f"s_lshl_b32 {s(sT1)}, {s(sWAVE)}, 4\ns_add_u32 {s(sT1)}, {s(sT1)}, {SC_FLAG}\nv_mov_b32 v96, {s(sT1)}"])
        q += self.q_kv_pre()
        self.mpass("A", 0, q, o["bud0"])
        self.flush(q + ["NEXT"] + self.q_fixup("A", 0) + self.q_fixup("A", 1) + self.q_kv()); self.lg.q = []
        sREC, sFL = 26, 27
        h0 = self.q_h0()
        GA = G.ACC; KP, ZP = G.ACC + 40, G.ACC + 44
        q = [("GI", o["fmA"])] + self.q_kvflag() + self.q_p2setup() + h0[:2]
        q += self.its(["v_mul_u32_u24 v97, 640, v3", "v_lshl_add_u32 v97, v2, 4, v97",
                       "v_and_b32 v8, 7, v5", "v_lshl_add_u32 v8, v8, 1, v3", "v_mul_u32_u24 v98, 640, v8", "v_and_b32 v9, 1, v4", "v_lshl_add_u32 v98, v9, 6, v98", "v_add_u32 v98, 512, v98",
                       f"s_xor_b32 {s(sT1)}, {s(sWAVE)}, 2\ns_mul_i32 {s(sT1)}, {s(sT1)}, 1280\ns_add_u32 {s(sT1)}, {s(sT1)}, {SC_KVX}\nv_lshl_add_u32 v8, v3, 3, {s(sT1)}",
                       "v_lshl_add_u32 v90, v2, 4, v8", "v_lshl_add_u32 v91, v9, 6, v8", "v_add_u32 v91, 512, v91"])
        L = self.lab("kf"); R = self.lab("kfok")
        q += [("GI", o["kfs"]), self.vmi(f"buffer_load_dword v11, {v(G.vGP)}, {s(sWS,4)}, {s(sFL)} offen sc1", "kf"), ("GI", o["kfc"]), self.vmw("kf"),
              (0, lambda: a(f"v_cmp_ne_u32 vcc, {s(sNONCE)}, v11\ns_cbranch_vccnz {L}\n{R}:")), self.tsi("cA_poll")]
        self.tail.append(f"{L}:\n" + self.poll_text(G.vGP, 11, sFL, self.lab("kfx"), self.lab("kfy")) + f"\ns_branch {R}")
        def gl(k):
            if k == 8: a(f"buffer_load_dwordx4 {v(GA+32,4)}, v98, {s(sWS,4)}, {s(sREC)} offen sc1")
            else: a((f"s_add_u32 s3, {s(sREC)}, {k*1280}\n" if k % 4 == 0 else "") + f"buffer_load_dwordx4 {v(GA+4*k,4)}, v97, {s(sWS,4)}, s3 offen offset:{1280*(k%4)} sc1")
            vm.issue(("ga", k))
        q += [(0, lambda k=k: gl(k)) for k in (8, 0, 1, 2, 3, 4, 5, 6, 7)]
        self.mpass("A", 1, q, o["budA"])
        self.ts("c_main")
        self.flush(q + h0[3:] + ["NEXT"] + self.q_fixup("A", 2))
        a(self.ho_base(sREC, 43))
        a(f"s_lshl_b32 {s(sT1)}, {s(sI)}, 1\ns_add_u32 {s(sT1)}, {s(sT1)}, {s(sRH)}\ns_lshl_b32 {s(sFL)}, {s(sT1)}, {FS+4}\ns_lshl_b32 {s(sT1)}, {s(sT0)}, {FS}\ns_add_u32 {s(sFL)}, {s(sFL)}, {s(sT1)}\ns_add_u32 {s(sFL)}, {s(sFL)}, {WS_FO}")
        a(f"s_lshl_b32 {s(sT2)}, {s(sRH)}, 16\ns_xor_b32 {s(sT3)}, {s(sT2)}, 65536")
        a(f"s_add_u32 {s(sT2)}, {s(sT2)}, {s(sREC)}\ns_add_u32 {s(sT3)}, {s(sT3)}, {s(sREC)}")
        a("v_lshlrev_b32 v10, 4, v1\nv_mov_b32 v13, 1")
        pq = self.q_phiq(); h = (len(pq) - 1) // 4 * o["pqh"]
        self.flush(pq[:h])
        vm.wait(("ga", 8)); a(f"v_mfma_f32_16x16x32_bf16 {v(ZP,4)}, {v(G.IDN,4)}, {v(GA+32,4)}, 0")
        for k in range(8):
            vm.wait(("ga", k)); a(f"v_mfma_f32_16x16x32_bf16 {v(KP,4)}, {v(G.IDN,4)}, {v(GA+4*k,4)}, {v(KP,4) if k else 0}")
        self.ts("cA_gath")
        for m in ("quad_perm:[1,0,3,2]", "quad_perm:[2,3,0,1]", "row_half_mirror"):
            for j in range(4): a(f"v_add_f32_dpp {v(ZP+j)}, {v(ZP+j)}, {v(ZP+j)} {m} row_mask:0xf bank_mask:0xf")
        for r_ in (KP, ZP):
            for j in range(2): a(f"v_cvt_pk_bf16_f32 {v(r_+j)}, {v(r_+2*j)}, {v(r_+2*j+1)}")
        a(f"ds_write_b64 v90, {v(KP,2)}\nds_write_b64 v91, {v(ZP,2)}\nds_write_b32 v96, v13 offset:4")
        self.flush(pq[h:])
        F = [T + 8, T + 12]; t = T; PV = G.XS
        self.pair_spin([f"ds_read_b128 {v(F[0],4)}, v92", f"ds_read_b128 {v(F[1],4)}, v93"], off=4)
        O = [G.ACC + 16*k for k in range(4)]
        for hh in range(2):
            for rb in range(2): a(f"v_mfma_f32_32x32x16_bf16 {v(O[2*rb+hh],16)}, {v(F[hh],4)}, {v(G.acc(2,rb)+8*hh,4)}, 0")
        self.p2_pre()
        n = 0
        for hh in range(2):
            for rb in range(2):
                o = O[2*rb+hh]; P = PV + 4*(n & 1); n += 1
                a(f"v_add_f32 {v(t)}, {fl(1e-6)}, {v(o+8)}\nv_rcp_f32 {v(t)}, {v(t)}")
                a(f"s_add_u32 {s(sT4)}, {s(sT2+hh)}, {rb*131072}")
                for j in range(8): a(f"v_mul_f32 {v(o+j)}, {v(t)}, {v(o+j)}")
                for j in range(4): a(f"v_cvt_pk_bf16_f32 {v(P+j)}, {v(o+2*j)}, {v(o+2*j+1)}")
                a(f"buffer_store_dwordx4 {v(P,4)}, v10, {s(sWS,4)}, {s(sT4)} offen sc1"); vm.issue("o")
        self.ts("cA_o")
        if self.stop == "p1": vm.wait("o"); self.flush(self.q_flag(sFL))

    Y, S2 = 160, 192
    AR = 16; D = 8
    BF = 48
    vBA = 144
    vA, vXC, vXP, vOUT = 150, 151, 152, 153
    vPW, vDW, vPF, vMF, vGP, vCK, vGF, vLV = 154, 155, 156, 157, 0, 159, 158, 9
    vXR, vB2 = 10, 12
    XR = 224; B2 = 232
    def q_p2setup(self):
        G = self; out = []
        def a(t):
            cur = []
            for ln in t.split("\n"):
                cur.append(ln)
                if ln.startswith("v_"): out.append(self.it("\n".join(cur))); cur = []
            if cur: out.append(self.it("\n".join(cur)))
        for d, ptr, size in ((sOUT, 20, 2097152), (sB2, 18, 1024)): a(f"s_mov_b32 {s(d)}, {s(ptr)}\ns_mov_b32 {s(d+1)}, {s(ptr+1)}"); a(f"s_mov_b32 {s(d+2)}, {size}\ns_mov_b32 {s(d+3)}, 0x00020000")
        sA = sKST
        a(f"s_lshl_b32 {s(sP1)}, {s(sI)}, 1\ns_add_u32 {s(sP1)}, {s(sP1)}, {s(sHF)}\ns_lshl_b32 {s(sP2)}, {s(sP1)}, 2\ns_add_u32 {s(sP2)}, {s(sP2)}, {s(sWAVE)}\ns_lshl_b32 {s(sA)}, {s(sP2)}, 16")
        a(f"v_lshlrev_b32 {v(G.vA)}, 4, v1")
        a(f"v_lshrrev_b32 v8, 2, v5\nv_lshl_add_u32 v8, v3, 2, v8\ns_lshl_b32 {s(sP2)}, {s(sCH)}, 4\nv_add_u32 v8, {s(sP2)}, v8\nv_lshlrev_b32 v8, 7, v8")
        a("v_and_b32 v9, 1, v5\nv_lshl_add_u32 v8, v9, 3, v8")
        a("v_and_b32 v9, 1, v4\nv_lshlrev_b32 v9, 1, v9\nv_bfe_u32 v0, v5, 1, 1\nv_add_u32 v9, v9, v0\nv_lshrrev_b32 v0, 3, v5\nv_lshlrev_b32 v0, 2, v0\nv_xor_b32 v9, v9, v0")
        a(f"s_lshl_b32 {s(sP2)}, {s(sCH)}, 2\nv_xor_b32 v9, {s(sP2)}, v9")
        a(f"v_lshl_add_u32 {v(G.vBA)}, v9, 4, v8\nv_xor_b32 v9, 4, v9\nv_lshl_add_u32 {v(G.vBA+1)}, v9, 4, v8")
        for w in (1, 2):
            for cb in range(2): a(f"v_add_u32 {v(G.vBA+2*w+cb)}, {65536*w}, {v(G.vBA+cb)}")
        a(f"s_lshl_b32 {s(sP2)}, {s(sWAVE)}, 12\ns_add_u32 {s(sP2)}, {s(sP2)}, {XCH_Y}\nv_add_u32 {v(G.vXC)}, {s(sP2)}, {v(G.vA)}")
        a(f"s_xor_b32 {s(sP2)}, {s(sWAVE)}, 1\ns_lshl_b32 {s(sP2)}, {s(sP2)}, 12\ns_add_u32 {s(sP2)}, {s(sP2)}, {XCH_Y}\nv_add_u32 {v(G.vXP)}, {s(sP2)}, {v(G.vA)}")
        a(f"v_and_b32 v8, 3, v1\nv_lshlrev_b32 v8, 2, v8\nv_add_u32 {v(G.vPW)}, {SC_PROG}, v8\nv_lshlrev_b32 {v(G.vGP)}, {FS}, v5")
        a(f"s_lshl_b32 {s(sP2)}, {s(sWAVE)}, 2\ns_add_u32 {s(sP2)}, {s(sP2)}, {SC_PROG+16}\nv_mov_b32 {v(G.vDW)}, {s(sP2)}")
        a(f"s_lshl_b32 {s(sP2)}, {s(sWAVE)}, 4\ns_add_u32 {s(sP2)}, {s(sP2)}, {SC_FLAG}\nv_mov_b32 {v(G.vMF)}, {s(sP2)}\ns_xor_b32 {s(sP2)}, {s(sP2)}, 16\nv_mov_b32 {v(G.vPF)}, {s(sP2)}")
        a(f"s_lshl_b32 {s(sC0+1)}, {s(sP1)}, {FS+4}\ns_add_u32 {s(sC0+1)}, {s(sC0+1)}, {WS_FO}")
        a(f"s_lshl_b32 {s(sP1)}, {s(sP1)}, 1\ns_add_u32 {s(sP1)}, {s(sP1)}, {s(sRH)}\ns_lshl_b32 {s(sP1)}, {s(sP1)}, 15")
        a(f"s_lshl_b32 {s(sP2)}, {s(sCT)}, 1\ns_add_u32 {s(sP2)}, {s(sP2)}, {s(sCH)}\ns_lshl_b32 {s(sP2)}, {s(sP2)}, 6\ns_add_u32 {s(sP1)}, {s(sP1)}, {s(sP2)}")
        a(f"v_lshl_add_u32 v8, v2, 10, {s(sP1)}\nv_lshl_add_u32 {v(G.vOUT)}, v3, 4, v8\ns_mov_b32 {s(sC0+2)}, {s(sP2)}")
        return out

    def phase2(self):
        a = self.a; G = self; D = self.o['D']; sA = sKST
        RING = G.RING
        a.label("L_phase2")
        vm = Cnt(a, "vmcnt", 63); lg = Cnt(a, "lgkmcnt", 15)
        aload = lambda sig: self.aload(vm, sig)
        def breads(sig):
            if sig >= 59: return []
            base = b_lds(sig); w = base >> 16; off = base & 0xffff
            return [f"ds_read_b64_tr_b16 {v(G.BF+8*(sig%3)+4*cb+2*q,2)}, {v(G.vBA+2*w+cb)} offset:{off+1024*q}" for cb in range(2) for q in range(2)]
        def ds(x, tag): a(x); lg.issue(tag)
        def lcheck(vaddr, off, lv, tag, extra=()):
            L = self.lab("lc"); R = self.lab("lcok"); X = self.lab("lcx")
            lg.wait(tag)
            a(f"v_cmp_gt_u32 vcc, {lv}, {v(G.vCK)}\ns_cbranch_vccnz {L}")
            a.label(R)
            ex = "".join(e + "\n" for e in extra)
            self.tail.append(f"""{L}:
s_mov_b32 {s(sSPIN)}, 0
{X}:
ds_read_b32 {v(G.vCK)}, {v(vaddr)} offset:{off}
{ex}s_add_u32 {s(sSPIN)}, {s(sSPIN)}, 1
s_cmp_gt_u32 {s(sSPIN)}, {SPIN_MAX*8}
s_waitcnt lgkmcnt(0)
s_cbranch_scc1 {R}
v_cmp_gt_u32 vcc, {lv}, {v(G.vCK)}
s_cbranch_vccnz {X}
s_branch {R}""")
        def lread(vaddr, off, tag): ds(f"ds_read_b32 {v(G.vCK)}, {v(vaddr)} offset:{off}", tag)
        def lsig(vaddr, off, lv): a(f"v_mov_b32 {v(G.vLV)}, {lv}"); ds(f"ds_write_b32 {v(vaddr)}, {v(G.vLV)} offset:{off}", "sig")
        def gload(soff): a(f"buffer_load_dword {v(G.vGF)}, {v(G.vGP)}, {s(sWS,4)}, {s(soff)} offen sc1"); vm.issue("gf")
        gcheck = lambda soff: self.gcheck(vm, soff)
        self.ts("c_p0"); assert self.o["g2h"] < 4
        vm.q = [("A", k) for k in range(8)] + ["pub"] * (4 - self.o["g2h"])
        lread(G.vPW, 0, "ck")
        a(f"v_lshlrev_b32 {v(G.vXR)}, 3, v3\nv_add_u32 {v(G.vB2)}, {s(sC0+2)}, {v(G.vXR)}\nv_sub_u32 {v(G.vXR)}, {v(G.vOUT)}, {v(G.vXR)}\nv_mov_b32 v11, {s(sNONCE)}")
        if self.o["xl"]:
            a(f"v_bfe_u32 v8, v1, 1, 3\ns_lshl_b32 {s(sT0)}, {s(sCH)}, 2\nv_xor_b32 v8, {s(sT0)}, v8\nv_lshlrev_b32 v8, 4, v8\nv_lshl_add_u32 v8, v3, 3, v8")
            a(f"s_lshl_b32 {s(sT0)}, {s(sRH)}, 12\ns_add_u32 {s(sT0)}, {s(sT0)}, {XT}\nv_lshl_add_u32 v13, v2, 7, {s(sT0)}\nv_add_u32 {v(G.vXR)}, v8, v13")
        for sig in range(8, D): aload(sig)
        lcheck(G.vPW, 0, 1, "ck")
        need_prog = {6: 2, 21: 3, 36: 4, 43: 5, 46: 7}
        done_at = {6: 1, 16: 2, 20: 3, 30: 4}
        gat = {15 - D: sC0, 29 - D: sC0, 43 - D: sC0 + 1}
        yr = [f"ds_read_b128 {v(96+4*q,4)}, {v(G.vXP)} offset:{1024*q}" for q in range(4)]
        for sig in range(2):
            for r in breads(sig): ds(r, ("B", sig))
        T = 96; YK = 112; BB = 128; XX = 240
        work = []
        for q in range(8):
            work += [f"v_lshlrev_b32 {v(BB+2*q)}, 16, {v(G.B2+q)}", f"v_and_b32 {v(BB+2*q+1)}, 0xffff0000, {v(G.B2+q)}"]
        for q in range(8):
            work += [f"v_lshlrev_b32 {v(XX+2*q)}, 16, {v(G.XR+q)}", f"v_and_b32 {v(XX+2*q+1)}, 0xffff0000, {v(G.XR+q)}"]
        gw = []
        for half in range(2):
            o = 8 * half
            gw += [f"v_add_f32 {v(YK+o+j)}, {v(T+o+j)}, {v(G.Y+o+j)}" for j in range(8)]
            gw += [f"v_add_f32 {v(YK+o+j)}, {v(YK+o+j)}, {v(BB+o+j)}" for j in range(8)]
            gw += [f"v_mul_f32 {v(T+o+j)}, {fl(-1.4426950408889634)}, {v(YK+o+j)}" for j in range(8)]
            gw += [f"v_exp_f32 {v(T+o+j)}, {v(T+o+j)}" for j in range(8)]
            gw += [f"v_add_f32 {v(T+o+j)}, 1.0, {v(T+o+j)}" for j in range(8)]
            gw += [f"v_rcp_f32 {v(T+o+j)}, {v(T+o+j)}" for j in range(8)]
            gw += [f"v_mul_f32 {v(YK+o+j)}, {v(YK+o+j)}, {v(T+o+j)}" for j in range(8)]
        for sig in range(59):
            acc = G.Y if sig < 43 else G.S2; first = sig in (0, 43)
            lg.wait(("B", sig)); vm.wait(("A", sig))
            A = v(RING[sig % D], 4)
            m = [f"v_mfma_f32_32x32x16_bf16 {v(acc+16*cb,16)}, {v(G.BF+8*(sig%3)+4*cb,4)}, {A}, {0 if first else v(acc+16*cb,16)}" for cb in range(2)]
            self.ts(f"c_s{sig}")
            a(m[0])
            if sig in done_at: lsig(G.vDW, 0, done_at[sig])
            if sig in need_prog: lcheck(G.vPW, 0, need_prog[sig], "ck")
            if sig == 44:
                lcheck(G.vPW, 16, 4, "ck")
                for q in range(4): ds(f"ds_write_b128 {v(G.vXC)}, {v(G.Y+16+4*q,4)} offset:{1024*q}", "yw")
                lsig(G.vMF, 8, 1)
            if sig == 49: lcheck(G.vPF, 8, 1, "yr", yr)
            rd = breads(sig + 2)
            for r in rd[:2]: ds(r, ("B", sig + 2))
            fill = []
            if 12 <= sig <= (15 if self.o["xl"] else 19): fill = work[4*(sig-12): 4*(sig-11)]
            if self.o["xl"] and sig == 46:
                for q in range(4):
                    if q: a(f"v_xor_b32 v8, {16*q}, {v(G.vXR)}")
                    ds(f"ds_read_b64 {v(G.XR+2*q,2)}, {v(8 if q else G.vXR)}", "xr")
            if self.o["xl"] and sig == 48: lg.wait("xr"); fill = work[16:32]
            if 49 <= sig <= 58: fill = gw[12*(sig-49): 12*(sig-48)]
            h = len(fill) // 2
            for f in fill[:h]: a(f)
            a(m[1])
            for r in rd[2:]: ds(r, ("B", sig + 2))
            if sig + 1 in need_prog: lread(G.vPW, 0, "ck")
            if sig == 43: lread(G.vPW, 16, "ck")
            if sig == 47:
                lread(G.vPF, 8, "yr")
                for r in yr: ds(r, "yr")
            if sig == self.o["pf"]:
                vm.wait("pub"); a(f"buffer_store_dword v11, {v(G.vFL)}, {s(sWS,4)}, s27 offen sc1"); vm.issue("f"); self.ts("c_pflag")
            if sig in gat: self.ts(f"c_gp{sig}"); gcheck(gat[sig]); self.ts(f"c_g{sig}")
            aload(sig + D)
            if sig < 4:
                if not self.o["xl"]: a(f"buffer_load_dwordx2 {v(G.XR+2*sig,2)}, {v(G.vXR)}, {s(sX,4)}, 0 offen offset:{16*sig}"); vm.issue("x")
                a(f"buffer_load_dwordx2 {v(G.B2+2*sig,2)}, {v(G.vB2)}, {s(sB2,4)}, 0 offen offset:{16*sig}"); vm.issue("x")
            if sig == 11: vm.wait("x")
            if sig + self.o["kpoll"] in gat:
                so = gat[sig + self.o["kpoll"]]
                if so == sC0: a(f"s_add_u32 {s(sC0)}, {s(sC0)}, {FG}")
                gload(so)
            for f in fill[h:]: a(f)
        self.ts("c_loop")
        for q in range(4): ds(f"ds_write_b128 {v(G.vXC)}, {v(G.S2+16+4*q,4)} offset:{16384+1024*q}", "sw")
        lsig(G.vMF, 12, 1)
        sr = [f"ds_read_b128 {v(T+4*q,4)}, {v(G.vXP)} offset:{16384+1024*q}" for q in range(4)]
        lread(G.vPF, 12, "sr")
        for r in sr: ds(r, "sr")
        for j in range(16): a(f"v_fmac_f32 {v(XX+j)}, {v(G.S2+j)}, {v(YK+j)}")
        lcheck(G.vPF, 12, 1, "sr", sr)
        for half in range(2):
            o = 8 * half; P = BB + 4 * half
            for j in range(8): a(f"v_fmac_f32 {v(XX+o+j)}, {v(T+o+j)}, {v(YK+o+j)}")
            for j in range(4): a(f"v_cvt_pk_bf16_f32 {v(P+j)}, {v(XX+o+2*j)}, {v(XX+o+2*j+1)}")
            a(f"v_permlane32_swap_b32 {v(P)}, {v(P+2)}\nv_permlane32_swap_b32 {v(P+1)}, {v(P+3)}")
            a(f"buffer_store_dwordx4 {v(P,4)}, {v(G.vOUT)}, {s(sOUT,4)}, 0 offen offset:{32*half} {['', 'sc1', 'nt', 'sc0 sc1', 'sc1 nt'][self.o['osc']]}")
        self.ts("c_end")
        self.ts_flush()

    def build(self):
        a = self.a
        self.prologue()
        self.loader()
        self.compute_setup()
        self.typeA()
        if self.stop == "p1": self.ts_flush(); a("s_endpgm")
        else: a("s_branch L_phase2")
        a.label("L_typeB")
        self.typeB()
        if self.stop == "p1": self.ts_flush(); a("s_endpgm")
        else: self.phase2()
        a.label("L_end")
        a("s_endpgm")
        for t in self.tail: a(t)
        a("L_last:\ns_endpgm")
        body = a.finalize(verbose=True)
        head = open("cdna_kernels/" + KN[:-7] + ".s.ref").read().split("; Override launch")[0]
        return head + f"""; @launch grid=(256,1,1) block=(512,1,1) lds={LDS_SIZE}
.amdgcn_target "amdgcn-amd-amdhsa--gfx950"
.text
.globl {KN}
.p2align 8
.type {KN},@function
{KN}:
{body}
.section .rodata,"a"
.p2align 6
.amdhsa_kernel {KN}
  .amdhsa_next_free_vgpr 256
  .amdhsa_next_free_sgpr 102
  .amdhsa_accum_offset 256
  .amdhsa_group_segment_fixed_size 0
  .amdhsa_kernarg_size 88
  .amdhsa_user_sgpr_count 2
  .amdhsa_user_sgpr_kernarg_segment_ptr 1
  .amdhsa_system_sgpr_workgroup_id_x 1
.end_amdhsa_kernel
"""

if __name__ == "__main__":
    import argparse
    ap = argparse.ArgumentParser()
    ap.add_argument("out"); ap.add_argument("--diag", nargs="?", const="rt"); ap.add_argument("--stop"); ap.add_argument("--dbgout", action="store_true"); ap.add_argument("--marks"); ap.add_argument("--opts"); ap.add_argument("--probe")
    x = ap.parse_args()
    open(x.out, "w").write(Gen(diag=x.diag, stop=x.stop, dbgout=x.dbgout, marks=x.marks, opts=x.opts, probe=x.probe).build())
```

```python
import sys, struct
from asmlib import Asm, v, s

KN = "recurrent_scan__linear_attn_block__dense_activation_gelu__prompt_kernel"
def f2u(x): return struct.unpack("<I", struct.pack("<f", x))[0]
def hx(x): return f"0x{x & 0xffffffff:08x}"
def fl(x): return hx(f2u(x))

WS_HO = 0
WS_KV = 8 << 20
WS_ST = 9 << 20
FS = 7
FG = 16 << FS
WS_FH = 10 << 20
WS_FO = WS_FH + 96 * FG
WS_FK = WS_FO + 32 * FG
WS_DUM = 11 << 20
WS_TS = 12 << 20
WS_SIZE = 268435456
OOB = 0x80000000
WR = 131072
SCR = 155648
SC_NONCE = SCR
SC_FLAG = SCR + 64
SC_PROG = SC_FLAG + 64
SC_CS = SCR + 256
SC_R = SCR + 2048
SC_KVX = SCR + 3072
LDS_SIZE = 163840
NSLOT = 38
def b_lds(sig): return (sig % NSLOT) * 4096
XCH_Y = 21 * 4096
XT = 29 * 4096
ORDER = []
for p in range(3):
    for g in range(8):
        for ch in range(2):
            f = 6 * g + 2 * p + ch
            if f < 43: ORDER.append(("w2", f))
ORDER += [("wo", f) for f in range(16)]
assert len(ORDER) == 59
SIG0 = [0, 15, 29]
def pos_of(sig):
    st = 3 if sig >= 43 else 2 if sig >= 29 else 1 if sig >= 15 else 0
    j = sig - (SIG0 + [43])[st]
    return st, j >> 1, j & 1
def hoff(sig, lay=0):
    if not lay: return sig * 1024
    par = int(sig >= 29); t = sig - 29 * par
    return (t >> 3) * 16384 + par * 8192 + (t & 7) * 1024
SPIN_MAX = 1 << 18

sX, sW, sW2, sWO, sWS, sDBG, sOUT, sB1, sB2 = 28, 32, 36, 40, 44, 48, 52, 56, 60
sWAVE, sI, sG, sTYPE, sHF, sCT, sKST, sRH, sCH, sNONCE, sSTR = 64, 65, 66, 67, 68, 69, 70, 71, 72, 73, 74
sT0, sT1, sT2, sT3, sT4, sT5 = 75, 76, 77, 78, 79, 80
sC0 = 81
sSPIN = 84
sM = 86
sLM = 60
sWD = 10
sP1, sP2, sP3, sP4 = 12, 13, 14, 15
sWB = 56
sTS = 88

class Cnt:
    def __init__(self, a, name, mx): self.a, self.name, self.mx, self.q = a, name, mx, []
    def issue(self, tag): self.q.append(tag)
    def wait(self, tag):
        if tag not in self.q: return
        k = len(self.q) - 1 - max(i for i, t in enumerate(self.q) if t == tag)
        k = min(k, self.mx)
        self.a(f"s_waitcnt {self.name}({k})")
        self.q = self.q[len(self.q) - k:] if k else []
    def wait_all(self):
        self.a(f"s_waitcnt {self.name}(0)"); self.q = []

class Gen:
    def __init__(self, diag=False, stop=None, dbgout=False, marks=None, opts=None, probe=None):
        self.probe = tuple(int(x) for x in probe.split(',')) if probe else None
        self.o = dict(cpf=1, wt=3, xe=1, w2t=4, t1=14, t2=1, pk=1, kpoll=3, D=8, asc=1, xl=1, mp=1, seg=0, fsc=0,
                      bud0=24, bud2=64, budA=24, nE=33, nL=0, pe0=14, nEA=33, nLA=12, pe0A=15, burst=10, fm=12, fmA=3, ga=20, gc=26, thr=0, fl=32, pre=1, chk=2, pf=4, g2h=3, lay=0, kfs=13, kfc=13, pqh=3, w2s=0, ld=1, t3=0, grp=1223, osc=0, kearly=0, psc=0, pw=0, r2=0, r2m=2, sw=0, sw0=1, sw1=9, swn=4, slp=0, prio=0, m0n=4, mint=3, tl=1, kpos=1, ofirst=0, bk=16)
        for kv in (opts or '').split(','):
            if kv: k, x = kv.split('='); assert k in self.o, k; self.o[k] = int(x)
        self.dbgout = dbgout; self.verbose = True
        self.marks = {"start": 0}
        for grp in (marks or "c_bar0,c_main,cA_q|cB_gelu,c_p0,c_loop,c_end;l_bar0,l_bar8,l_bland,l_p0,l_p3,l_end").split(";"):
            for k, nm in enumerate(grp.split(",")):
                for x in nm.split("|"): self.marks[x] = k + 1
        self.a = Asm(); self.diag = diag; self.stop = stop; self.uid = 0; self.tail = []
    def lab(self, n): self.uid += 1; return f"L{n}_{self.uid}"
    def ts(self, name):
        if not self.diag or name not in self.marks: return
        k = self.marks[name]
        if self.diag == "both":
            if k == 0: self.a(f"s_memrealtime {s(sTS, 2)}")
            elif k <= 3: self.a(f"s_memrealtime {s(sTS + 2 * k, 2)}\ns_memtime {s(sTS + 2 * k + 6, 2)}")
            return
        self.a(f"{'s_memtime' if self.diag == 'cyc' else 's_memrealtime'} {s(sTS + 2 * k, 2)}")
    def ts_flush(self):
        if not self.diag: return
        a = self.a
        if self.probe:
            pa, pb = self.probe
            L = self.lab("probe"); X = self.lab("probex")
            op = 's_memtime' if self.diag == 'cyc' else 's_memrealtime'
            a(f"s_cmp_ge_u32 {s(sWAVE)}, 4\ns_cbranch_scc1 {X}")
            a(f"{op} {s(sM,2)}\ns_waitcnt lgkmcnt(0)")
            if pa < 0: a(f"s_mov_b32 {s(sT0)}, {pb}")
            else: a(f"s_sub_u32 {s(sT0)}, {s(sTS+2*pb)}, {s(sTS+2*pa)}\ns_lshl_b32 {s(sT0)}, {s(sT0)}, 2")
            a(f"s_min_u32 {s(sT0)}, {s(sT0)}, 400000\ns_mov_b32 {s(sT1)}, {s(sM)}")
            a.label(L)
            a(f"{op} {s(sM,2)}\ns_waitcnt lgkmcnt(0)\ns_sub_u32 {s(sT2)}, {s(sM)}, {s(sT1)}\ns_cmp_lt_u32 {s(sT2)}, {s(sT0)}\ns_cbranch_scc1 {L}")
            a.label(X)
            return
        a("s_waitcnt lgkmcnt(0)")
        a(f"s_lshl_b32 {s(sT0)}, s2, 3\ns_add_u32 {s(sT0)}, {s(sT0)}, {s(sWAVE)}\ns_lshl_b32 {s(sT0)}, {s(sT0)}, 5\ns_add_u32 {s(sT0)}, {s(sT0)}, {WS_TS}")
        for k in range(7): a(f"v_mov_b32 v{8+k}, {s(sTS+2*k)}")
        a("v_mov_b32 v15, 0\nv_mov_b32 v7, 0")
        a("s_mov_b64 exec, 1")
        a(f"buffer_store_dwordx4 v[8:11], v7, {s(sWS,4)}, {s(sT0)} offen")
        a(f"buffer_store_dwordx4 v[12:15], v7, {s(sWS,4)}, {s(sT0)} offen offset:16")
        if self.dbgout:
            L = self.lab("dbgo")
            self.srd(sDBG, 22, 256)
            a(f"s_cmp_lg_u32 {s(sWAVE)}, 0\ns_cbranch_scc1 {L}\ns_and_b32 {s(sT0)}, s2, 0xdf\ns_cmp_lg_u32 {s(sT0)}, 0\ns_cbranch_scc1 {L}")
            for k in range(6, -1, -1): a(f"v_subrev_u32 v{8+k}, {s(sTS)}, v{8+k}")
            a(f"s_add_u32 {s(sT0)}, s2, 4")
            a(f"buffer_store_dwordx4 v[9:12], v7, {s(sDBG,4)}, {s(sT0)} offen".replace("v[9:12]", "v[8:11]"))
            a(f"buffer_store_dwordx3 v[12:14], v7, {s(sDBG,4)}, {s(sT0)} offen offset:16")
            a.label(L)
        a("s_mov_b64 exec, -1")

    def srd(self, d, ptr, size):
        self.a(f"s_mov_b32 {s(d)}, {s(ptr)}\ns_mov_b32 {s(d+1)}, {s(ptr+1)}\ns_mov_b32 {s(d+2)}, {size}\ns_mov_b32 {s(d+3)}, 0x00020000")

    def rot2(self, r7, r8, t):
        return (f"s_lshr_b32 {s(r8)}, s2, 6\ns_mul_i32 {s(r8)}, {s(r8)}, {self.o['r2m']}\ns_add_u32 {s(r8)}, {s(r8)}, {s(sCT)}\n"
                f"s_mul_i32 {s(t)}, {s(r8)}, 37\ns_lshr_b32 {s(t)}, {s(t)}, 8\ns_mul_i32 {s(t)}, {s(t)}, 7\ns_sub_u32 {s(r7)}, {s(r8)}, {s(t)}\ns_and_b32 {s(r8)}, {s(r8)}, 7")
    def fload(self, r, va, so):
        k = self.o["psc"]
        if k == 4: return f"v_mov_b32 {v(r)}, 0\nbuffer_atomic_or {v(r)}, {v(va)}, {s(sWS,4)}, {s(so)} offen sc0 sc1"
        return f"buffer_load_dword {v(r)}, {v(va)}, {s(sWS,4)}, {s(so)} offen {['sc1', 'sc0 sc1', 'sc1 nt', 'sc0 sc1 nt'][k]}"
    def poll_text(self, vaddr, vtmp, soff, L, X):
        if self.o["mp"]:
            return (f"s_mov_b32 {s(sSPIN)}, 0\ns_mov_b64 exec, 0xffff\n{L}:\n"
                    f"{self.fload(vtmp, vaddr, soff)}\n"
                    f"s_add_u32 {s(sSPIN)}, {s(sSPIN)}, 1\ns_cmp_gt_u32 {s(sSPIN)}, {SPIN_MAX}\ns_waitcnt vmcnt(0)\ns_cbranch_scc1 {X}\n"
                    f"v_cmp_ne_u32 vcc, {s(sNONCE)}, {v(vtmp)}\ns_and_b64 exec, exec, vcc\ns_cbranch_execnz {L}\n{X}:\ns_mov_b64 exec, -1")
        return (f"s_mov_b32 {s(sSPIN)}, 0\n{L}:\n"
                f"{self.fload(vtmp, vaddr, soff)}\n"
                f"s_add_u32 {s(sSPIN)}, {s(sSPIN)}, 1\ns_cmp_gt_u32 {s(sSPIN)}, {SPIN_MAX}\ns_waitcnt vmcnt(0)\ns_cbranch_scc1 {X}\n"
                f"v_cmp_ne_u32 vcc, {s(sNONCE)}, {v(vtmp)}\ns_cbranch_vccnz {L}\n{X}:")
    def poll(self, vaddr, vtmp, soff):
        self.a(self.poll_text(vaddr, vtmp, soff, self.lab("poll"), self.lab("pollx")))

    def prologue(self):
        a = self.a
        a("s_cmp_ge_u32 s2, 256\ns_cbranch_scc1 L_end")
        a("s_load_dwordx16 s[4:19], s[0:1], 0\ns_load_dwordx4 s[20:23], s[0:1], 64\ns_load_dwordx2 s[24:25], s[0:1], 80")
        if self.diag:
            for k in range(1, 7): a(f"s_mov_b32 {s(sTS+2*k)}, 0")
        self.ts("start")
        if self.o["cpf"]:
            a(f"s_getpc_b64 s[26:27]\nL_pc:\nv_lshlrev_b32 v3, 7, v0\nv_min_u32 v3, L_last-L_pc, v3\nglobal_load_dword {v(self.vDUM)}, v3, s[26:27]")
        a("v_lshrrev_b32 v2, 6, v0\nv_and_b32 v1, 63, v0")
        a(f"s_and_b32 {s(sT0)}, s2, 3")
        a(f"v_readfirstlane_b32 {s(sWAVE)}, v2")
        a(f"s_bfe_u32 {s(sHF)}, s2, 0x10002")
        a(f"s_bfe_u32 {s(sCT)}, s2, 0x30003")
        a(f"s_lshr_b32 {s(sI)}, s2, 6\ns_lshl_b32 {s(sI)}, {s(sI)}, 2\ns_add_u32 {s(sI)}, {s(sI)}, {s(sT0)}")
        if self.o["seg"]: a(f"s_mov_b32 {s(sTYPE)}, {s(sHF)}\ns_mov_b32 {s(sG)}, {s(sCT)}")
        else:
            a(f"s_lshr_b32 {s(sTYPE)}, {s(sCT)}, 2")
            a(f"s_and_b32 {s(sG)}, {s(sCT)}, 3\ns_lshl_b32 {s(sT0)}, {s(sHF)}, 2\ns_add_u32 {s(sG)}, {s(sG)}, {s(sT0)}")
        a(f"s_lshl_b32 {s(sT0)}, {s(sG)}, 7\ns_mul_i32 {s(sT1)}, {s(sG)}, 384")
        a(f"s_add_u32 {s(sT2)}, {s(sT0)}, 1024\ns_add_u32 {s(sT3)}, {s(sT0)}, 2048\ns_add_u32 {s(sT4)}, {s(sT1)}, 128\ns_add_u32 {s(sT5)}, {s(sT1)}, 256")
        a(f"s_cmp_eq_u32 {s(sTYPE)}, 0")
        a(f"s_movk_i32 {s(sSTR)}, 2752\ns_cselect_b32 {s(sSTR)}, 3072, {s(sSTR)}")
        a(f"s_cselect_b32 {s(sC0)}, {s(sT2)}, {s(sT1)}\ns_cselect_b32 {s(sC0+1)}, {s(sT3)}, {s(sT4)}\ns_cselect_b32 {s(sC0+2)}, {s(sT0)}, {s(sT5)}")
        a(f"s_cmp_ge_u32 {s(sWAVE)}, 4\ns_cbranch_scc1 L_loader")

    def loader(self):
        a = self.a
        vX, vW, vB, vP, vT, vL, PARK = 10, 14, 20, 21, 22, 24, 32
        sWK, sKX, sKW, sXB, sF = 85, 26, 27, 3, sT5
        a.label("L_loader")
        if self.o["prio"] == 2: a("s_setprio 1")
        a(f"s_and_b32 {s(sWK)}, {s(sWAVE)}, 3")
        a("v_lshrrev_b32 v2, 3, v1\nv_and_b32 v3, 7, v1\nv_lshrrev_b32 v4, 4, v1")
        a(f"s_and_b32 {s(sT0)}, {s(sWK)}, 1\ns_lshl_b32 {s(sT0)}, {s(sT0)}, 2\ns_lshl_b32 {s(sT1)}, {s(sWK)}, 3")
        a(f"v_add_u32 v5, {s(sT0)}, v4\nv_xor_b32 v5, v3, v5\nv_lshlrev_b32 v5, 4, v5")
        a(f"v_add_u32 v6, {s(sT1)}, v2")
        a(f"v_lshl_add_u32 {v(vX)}, v6, 10, v5")
        for m in range(1, 4): a(f"v_add_u32 {v(vX+m)}, {m*32768}, {v(vX)}")
        a("v_and_b32 v7, 1, v4\nv_lshlrev_b32 v7, 2, v7\nv_xor_b32 v7, v3, v7\nv_lshlrev_b32 v7, 4, v7")
        a(f"v_mul_u32_u24 v8, {s(sSTR)}, v6")
        a(f"s_lshl_b32 {s(sT2)}, {s(sSTR)}, 5\nv_mov_b32 v2, {hx(OOB)}")
        for p in range(3):
            a(f"v_add_u32 v9, {s(sC0+p)}, v7\nv_cmp_gt_u32 vcc, {s(sSTR)}, v9\nv_add_u32 v9, v8, v9\nv_add_u32 v3, {s(sT2)}, v9")
            a(f"v_cndmask_b32 {v(vW+2*p)}, v2, v9, vcc\nv_cndmask_b32 {v(vW+2*p+1)}, v2, v3, vcc")
        a(f"s_lshl_b32 {s(sWK)}, {s(sWK)}, 10\ns_lshl_b32 {s(sXB)}, {s(sI)}, 17\ns_lshl_b32 {s(sT3)}, {s(sSTR)}, 5")
        self.ts("l_pre")
        a("s_waitcnt lgkmcnt(0)")
        self.srd(sX, 4, 2097152)
        a(f"s_lshl_b32 {s(sW+2)}, {s(sSTR)}, 9\ns_mov_b32 {s(sW+3)}, 0x00020000\ns_cmp_eq_u32 {s(sTYPE)}, 0")
        a(f"s_cselect_b32 {s(sW)}, s6, s12\ns_cselect_b32 {s(sW+1)}, s7, s13")
        self.ts("l_karg")
        vm = Cnt(a, "vmcnt", 63)
        def bsrc(sig):
            mat, f = ORDER[sig]; st, j2, ch = pos_of(sig)
            if not self.o["r2"] or sig == 14: a(f"s_mov_b32 {s(sF)}, {f*32768}")
            elif st < 3: a(f"s_add_u32 {s(sF)}, {s(4+j2)}, {(2*st+ch)*32768}")
            else: a(f"s_add_u32 {s(sF)}, {s(11+j2)}, {ch*32768}")
            return s(sW2 if mat == 'w2' else sWO, 4)
        gs = [int(c) for c in str(self.o["grp"])]; assert sum(gs) == 8
        grp_of = [(sum(gs[:n]), gs[n]) for n in range(len(gs)) for _ in range(gs[n])]
        rot = lambda pos: grp_of[pos][1] > 1
        sK0 = 56
        def ktable(lo, hi):
            for pos in range(lo, hi):
                g0, n = grp_of[pos]
                if n == 1: continue
                if pos == g0:
                    a(f"s_lshr_b32 {s(sT1)}, s2, 6\ns_mul_i32 {s(sT1)}, {s(sT1)}, {max(1, (n+1)//4)}\ns_add_u32 {s(sT1)}, {s(sT1)}, {s(sCT)}")
                    a(f"s_mul_i32 {s(sT0)}, {s(sT1)}, {-(-256//n)}\ns_lshr_b32 {s(sT0)}, {s(sT0)}, 8\ns_mul_i32 {s(sT0)}, {s(sT0)}, {n}\ns_sub_u32 {s(sT1)}, {s(sT1)}, {s(sT0)}\ns_add_u32 {s(sK0+pos)}, {s(sT1)}, {g0}")
                else:
                    a(f"s_add_u32 {s(sK0+pos)}, {s(sK0+pos-1)}, 1\ns_cmp_eq_u32 {s(sK0+pos)}, {g0+n}\ns_cselect_b32 {s(sK0+pos)}, {g0}, {s(sK0+pos)}")
        def wst(st):
            pos = st // 2 if st < 16 else st - 16
            if rot(pos):
                a(f"s_lshl_b32 {s(sKW)}, {s(sK0+pos)}, 1" + (f"\ns_add_u32 {s(sKW)}, {s(sKW)}, 1" if st < 16 and st & 1 else "") + f"\ns_mul_i32 {s(sKW)}, {s(sKW)}, {s(sT3)}")
            else: a(f"s_mul_i32 {s(sKW)}, {s(sT3)}, {st if st < 16 else 2*(st-16)}")
            for m in range(2):
                a(f"s_add_u32 m0, {s(sWK)}, {WR + (st % 3)*8192 + m*4096}")
                a(f"buffer_load_dwordx4 {v(vW + (2*m if st < 16 else 4+m))}, {s(sW,4)}, {s(sKW)} offen lds"); vm.issue(("S", st))
        def xpair(n):
            k = n >> 1
            if k >= 8: return
            if rot(k): a(f"s_lshl_b32 {s(sKX)}, {s(sK0+k)}, 7\ns_add_u32 {s(sKX)}, {s(sKX)}, {s(sXB)}")
            else: a(f"s_add_u32 {s(sKX)}, {s(sXB)}, {128*k}")
            for mm in (2*(n & 1), 2*(n & 1) + 1):
                a(f"s_add_u32 m0, {s(sWK)}, {k*16384 + mm*4096}")
                a(f"buffer_load_dwordx4 {v(vX+mm)}, {s(sX,4)}, {s(sKX)} offen lds"); vm.issue(("S", 2*k))
        st_ = dict(nE=0)
        preg = lambda sig: PARK + 4*sig if sig < st_["nE"] else PARK + 4*(st_["nE"] + sig - NSLOT)
        def bstep(sig):
            a(f"s_add_u32 m0, {s(sWK)}, {b_lds(sig)}")
            srd = bsrc(sig)
            a(f"buffer_load_dwordx4 {v(vB)}, {srd}, {s(sF)} offen lds"); vm.issue(("B", sig))
        def park(sig):
            srd = bsrc(sig)
            a(f"buffer_load_dwordx4 {v(preg(sig),4)}, {v(vB)}, {srd}, {s(sF)} offen"); vm.issue(("B", sig))
        def put(sig):
            base = b_lds(sig); w = base >> 16
            a(f"ds_write_b128 {v(vL+w)}, {v(preg(sig),4)} offset:{base-65536*w}")
        if self.o["ld"]: a("s_barrier")
        ktable(0, 1); wst(0); xpair(0); xpair(1); self.ts("l_s0"); wst(1); ktable(1, 8); xpair(2); self.ts("l_s2")
        vPG, vDN = 28, 29
        self.srd(sW2, 16, 1409024); self.srd(sWO, 8, 524288); self.srd(sWS, 24, WS_SIZE)
        if self.o["r2"]:
            a(self.rot2(sT0, sT1, sT2))
            for base, n, r, step in ((4, 7, sT0, 6*32768), (11, 8, sT1, 2*32768)):
                a(f"s_mul_i32 {s(base)}, {s(r)}, {step}")
                for j in range(1, n): a(f"s_add_u32 {s(base+j)}, {s(base+j-1)}, {step}\ns_cmp_eq_u32 {s(base+j)}, {n*step}\ns_cselect_b32 {s(base+j)}, 0, {s(base+j)}")
        a(f"s_lshl_b32 {s(sT0)}, {s(sCT)}, 7\nv_lshl_add_u32 {v(vB)}, v6, 10, v7\nv_add_u32 {v(vB)}, {s(sT0)}, {v(vB)}")
        a(f"v_lshl_add_u32 {v(vL)}, v1, 4, {s(sWK)}\nv_add_u32 {v(vL+1)}, 65536, {v(vL)}\nv_add_u32 {v(vL+2)}, 131072, {v(vL)}")
        a(f"s_lshr_b32 {s(sT0)}, {s(sWK)}, 8\ns_add_u32 {s(sT0)}, {s(sT0)}, {SC_PROG}\nv_mov_b32 {v(vPG)}, {s(sT0)}")
        a(f"v_and_b32 {v(vDN)}, 3, v1\nv_lshlrev_b32 {v(vDN)}, 2, {v(vDN)}\nv_add_u32 {v(vDN)}, {SC_PROG+16}, {v(vDN)}")
        def prog(lv): a(f"v_mov_b32 {v(vT)}, {lv}\nds_write_b32 {v(vPG)}, {v(vT)}")
        sw = self.o["sw"]; tq = [[], []]
        if sw:
            assert not self.o["r2"]
            a(f"s_lshr_b32 {s(sT1)}, {s(sWK)}, 10\ns_lshl_b32 {s(sT0)}, s2, 2\ns_add_u32 {s(sT0)}, {s(sT0)}, {s(sT1)}")
            a(f"s_mul_i32 {s(sT2)}, {s(sT0)}, 1376\ns_add_u32 s10, s16, {s(sT2)}\ns_addc_u32 s11, s17, 0\ns_lshl_b32 {s(sT2)}, {s(sT0)}, 9\ns_add_u32 s12, s8, {s(sT2)}\ns_addc_u32 s13, s9, 0")
            a(f"s_lshr_b32 {s(sT0)}, s2, 3\ns_mul_i32 {s(sT2)}, {s(sT1)}, 11\ns_min_u32 {s(sT2)}, {s(sT2)}, 32\ns_mul_i32 s14, {s(sT0)}, 43\ns_add_u32 {s(sT2)}, {s(sT2)}, s14\ns_lshl_b32 {s(sT2)}, {s(sT2)}, 10\ns_add_u32 s14, s16, {s(sT2)}\ns_addc_u32 s15, s17, 0")
            a(f"s_lshl_b32 {s(sT0)}, {s(sT0)}, 2\ns_add_u32 {s(sT0)}, {s(sT0)}, {s(sT1)}\ns_lshl_b32 {s(sT0)}, {s(sT0)}, 12\ns_add_u32 s18, s8, {s(sT0)}\ns_addc_u32 s19, s9, 0")
            if sw & 1: tq[0] = [f"s_load_dword s20, s[10:11], {64*u}" for u in range(22)] + [f"s_load_dword s20, s[12:13], {64*u}" for u in range(8)]
            if sw & 2: tq[1] = [f"s_load_dword s20, s[14:15], {1024*r + 384 + u}" for r in range(11) for u in (0, 64)] + [f"s_load_dword s20, s[18:19], {1024*r + 384 + u}" for r in range(4) for u in (0, 64)]
        def touch(k, tq):
            for j in range(2):
                if k >= self.o[f"sw{j}"]:
                    for x in tq[j][:self.o["swn"]]: a(x)
                    tq[j] = tq[j][self.o["swn"]:]
        N = 24; KS = 12
        for k in range(KS):
            vm.wait(("S", k)); self.ts(f"l_land{k}"); a("s_barrier"); self.ts(f"l_bar{k}")
            wst(k + 2); xpair(k + 3); touch(k, tq)
        a(f"s_cmp_eq_u32 {s(sTYPE)}, 0\ns_cbranch_scc0 L_loadB")
        q0 = list(vm.q)
        for typ in "AB":
            if typ == "B": a.label("L_loadB")
            tq2 = [list(x) for x in tq]
            vm.q = list(q0); sfx = "A" if typ == "A" else ""
            nE, nL, pe0 = (self.o[x + sfx] for x in ("nE", "nL", "pe0")); burst = self.o["burst"] if typ == "A" else 0
            assert nE <= 35 and pe0 >= KS; st_["nE"] = nE
            early = list(range(nE)) + list(range(NSLOT, NSLOT + nL)); nxt = 0
            for k in range(KS, N):
                vm.wait(("S", k)); self.ts(f"l_land{k}"); a("s_barrier"); self.ts(f"l_bar{k}")
                if k + 2 < N: wst(k + 2); xpair(k + 3)
                touch(k, tq2)
                if k >= pe0:
                    while nxt < -(-(len(early) - burst) * (k + 1 - pe0) // (N - pe0)) + (burst if k >= self.o['bk'] else 0): park(early[nxt]); nxt += 1
            a("s_barrier")
            self.ts("l_barN")
            assert nxt == len(early)
            todo = [x for x in range(59) if x not in early]; lvl = [(7, 1), (22, 2), (37, 3)]
            def more(n):
                for _ in range(n):
                    if todo:
                        sig = todo.pop(0)
                        bstep(sig) if sig < NSLOT else park(sig)
                        if self.o["thr"] and len(vm.q) > self.o["thr"]: vm.wait(vm.q[-1 - self.o["thr"]])
            thr_ = self.o['thr']; self.o['thr'] = 0; more(self.o['m0n'])
            for sig in range(nE):
                vm.wait(("B", sig)); put(sig)
                if lvl and sig == lvl[0][0]: prog(lvl.pop(0)[1])
                if self.o['mint'] and sig % self.o['mint'] == self.o['mint'] - 1: more(1)
            self.o['thr'] = thr_
            self.ts("l_put")
            while todo:
                more(1)
                if lvl and todo and todo[0] >= lvl[0][0] + 7: vm.wait(("B", lvl[0][0])); prog(lvl.pop(0)[1])
            for sg, lv in lvl: vm.wait(("B", sg)); prog(lv)
            self.ts("l_bissue")
            if self.stop == "p1":
                vm.wait_all(); self.ts_flush(); a("s_endpgm"); continue
            def done(lv):
                L = self.lab("dw"); X = self.lab("dwx")
                a(f"s_mov_b32 {s(sSPIN)}, 0")
                a.label(L)
                if self.o["slp"]: a(f"s_sleep {self.o['slp']}")
                a(f"ds_read_b32 {v(vP)}, {v(vDN)}\ns_add_u32 {s(sSPIN)}, {s(sSPIN)}, 1\ns_cmp_gt_u32 {s(sSPIN)}, {SPIN_MAX*8}\ns_waitcnt lgkmcnt(0)\ns_cbranch_scc1 {X}")
                a(f"v_cmp_gt_u32 vcc, {lv}, {v(vP)}\ns_cbranch_vccnz {L}")
                a.label(X)
            for lv, (lo, hi) in enumerate(((38, 45), (45, 55), (55, 59))):
                vm.wait(("B", hi - 1))
                if lv == 2: self.ts("l_bland")
                done(lv + 1)
                for sig in range(lo, hi): put(sig)
                prog(4 + lv)
                self.ts(f"l_ref{lv}")
            a("s_waitcnt lgkmcnt(0)")
            self.ts("l_end")
            self.ts_flush()
            a("s_endpgm")

    ACC = 160
    SEL = 64
    CSM = dict(A=(68, 72, 68), B=(68, 72, 90))
    vXA, vXB, vWE, vWO = 76, 80, 84, 87
    GR = 90
    vCW, vCR = 94, 95
    vT0, vT1, vT2 = 97, 98, 99
    SG = 100
    IDN = 108
    B1 = 108
    XS = 112
    GC = 120
    vSTA, vSTG, vNZ, vDUM = 124, 125, 126, 127
    vFL = 7
    TMP = 128
    FX = 152
    KVA = 16
    def acc(self, p, rb): return self.ACC + 32 * p + 16 * rb

    def it(self, text):
        cost = 0
        for ln in text.split("\n"):
            op = ln.split()[0]
            if op.endswith(":"): continue
            cost += 32 if op.startswith("v_mfma") else 8 if op in ("v_exp_f32", "v_rcp_f32", "v_rsq_f32") else 5 if (op.startswith(("ds_", "buffer_", "v_fma_", "v_cvt_pk", "v_cndmask", "v_lshl_add")) or "0x" in ln) else 4
        return (cost, lambda: self.a(text))
    def its(self, lst): return [self.it(x) for x in lst]
    def vmi(self, text, tag): return (6, lambda: (self.a(text), self.vm.issue(tag)))
    def vmw(self, tag): return (4, lambda: self.vm.wait(tag))
    def tsi(self, name): return (0, lambda: self.ts(name))
    def flush(self, q):
        while q:
            x = q.pop(0)
            if x == "NEXT": self.a("s_waitcnt lgkmcnt(0)")
            elif x == "BAR": raise RuntimeError("barrier marker left over")
            elif x[0] == "GI": continue
            else: x[1]()

    def compute_setup(self):
        a = self.a; G = self; T = G.TMP
        if self.o["prio"] == 1: a("s_setprio 1")
        self.vm = vm = Cnt(a, "vmcnt", 63)
        a(f"s_bfe_u32 {s(sRH)}, {s(sWAVE)}, 0x10001\ns_and_b32 {s(sCH)}, {s(sWAVE)}, 1")
        a("v_and_b32 v2, 31, v1\nv_lshrrev_b32 v3, 5, v1\nv_lshrrev_b32 v4, 4, v1\nv_and_b32 v5, 15, v1")
        a(f"v_mov_b32 {v(G.vNZ)}, 0")
        a(f"s_lshl_b32 {s(sT0)}, {s(sHF)}, 3\ns_add_u32 {s(sT0)}, {s(sT0)}, {s(sCT)}\ns_lshl_b32 {s(sT0)}, {s(sT0)}, 3")
        a(f"s_lshl_b32 {s(sT1)}, {s(sI)}, 7\ns_add_u32 {s(sT0)}, {s(sT0)}, {s(sT1)}\ns_lshl_b32 {s(sT2)}, {s(sWAVE)}, 1\ns_add_u32 {s(sT0)}, {s(sT0)}, {s(sT2)}")
        a(f"v_add_u32 v6, {s(sT0)}, v3\nv_lshlrev_b32 v11, 4, v2\nv_lshl_add_u32 v11, v6, 10, v11")
        a(f"s_lshl_b32 {s(sT2)}, {s(sI)}, 3\ns_add_u32 {s(sT2)}, {s(sT2)}, {s(sG)}\ns_lshl_b32 {s(sT3)}, {s(sSTR)}, 2\ns_mul_i32 {s(sT2)}, {s(sT2)}, {s(sT3)}\ns_sub_u32 {s(sT3)}, {s(sT3)}, 4")
        a(f"s_mul_i32 {s(sT4)}, {s(sWAVE)}, 24\nv_min_u32 v12, 23, v1\nv_add_lshl_u32 v12, v12, {s(sT4)}, 7\nv_min_u32 v12, {s(sT3)}, v12\nv_add_u32 {v(G.vT0)}, {s(sT2)}, v12")
        a(f"s_lshl_b32 {s(sW+2)}, {s(sSTR)}, 9\ns_mov_b32 {s(sW+3)}, 0x00020000\ns_cmp_eq_u32 {s(sTYPE)}, 0\ns_waitcnt lgkmcnt(0)")
        self.ts("c_karg")
        a(f"s_cselect_b32 {s(sW)}, s6, s12\ns_cselect_b32 {s(sW+1)}, s7, s13")
        self.srd(sX, 4, 2097152)
        def xs():
            a(f"buffer_load_dwordx4 {v(T,4)}, v11, {s(sX,4)}, 0 offen\nbuffer_load_dwordx4 {v(T+4,4)}, v11, {s(sX,4)}, 0 offen offset:512"); vm.issue("xs"); vm.issue("xs")
        if self.o["xe"]: xs()
        if self.o["wt"] == 3: a(f"buffer_load_dword {v(G.vDUM)}, {v(G.vT0)}, {s(sW,4)}, 0 offen"); vm.issue("t")
        if self.o["ld"]: a("s_barrier")
        L = self.lab("non")
        a(f"s_or_b32 {s(sT3)}, s2, {s(sWAVE)}\ns_cmp_lg_u32 {s(sT3)}, 0\ns_cbranch_scc1 {L}")
        a(f"s_memrealtime {s(sM,2)}\ns_waitcnt lgkmcnt(0)")
        self.srd(sDBG, 22, 256)
        a(f"s_or_b32 {s(sT3)}, {s(sM)}, 1\nv_mov_b32 v8, {s(sT3)}\ns_mov_b64 exec, 1")
        a(f"buffer_store_dword v8, {v(G.vNZ)}, {s(sDBG,4)}, 0 offen sc1\ns_mov_b64 exec, -1")
        a.label(L)
        a("s_branch L_compute")
        self.loader()
        a.label("L_compute")
        a(f"v_lshlrev_b32 v8, 4, v3\nv_lshl_add_u32 v8, v2, 5, v8\ns_lshl_b32 {s(sT0)}, {s(sT0)}, 5\nv_add_u32 v8, {s(sT0)}, v8\nv_mov_b32 v9, {hx(OOB)}\nv_cmp_gt_u32 vcc, 2, v2\nv_add_u32 v8, {WS_ST}, v8\nv_cndmask_b32 {v(G.vSTA)}, v9, v8, vcc")
        a(f"v_cmp_gt_u32 vcc, {self.o['fl']}, v1\nv_lshlrev_b32 v8, 2, v1\nv_cndmask_b32 {v(G.vFL)}, v9, v8, vcc")
        a(f"s_lshl_b32 {s(sT2)}, {s(sRH)}, 6\ns_add_u32 {s(sT1)}, {s(sT1)}, {s(sT2)}\nv_add_u32 v8, {s(sT1)}, v2\nv_and_b32 v10, 1, v8\nv_lshlrev_b32 v8, 5, v8\nv_lshlrev_b32 v10, 4, v10\nv_sub_u32 v8, v8, v10\nv_add_u32 {v(G.vSTG)}, {WS_ST}, v8")
        a("v_bfe_u32 v8, v1, 1, 3")
        a(f"s_lshl_b32 {s(sT2)}, {s(sRH)}, 13\nv_lshl_add_u32 v9, v2, 7, {s(sT2)}")
        for tau in range(4):
            a(f"s_xor_b32 {s(sT3)}, {s(sRH)}, {tau}\ns_lshl_b32 {s(sT3)}, {s(sT3)}, 1")
            a(f"v_add_u32 v10, {s(sT3)}, v3\nv_xor_b32 v10, v10, v8\nv_lshl_add_u32 {v(G.vXA+tau)}, v10, 4, v9\nv_add_u32 {v(G.vXB+tau)}, 65536, {v(G.vXA+tau)}")
        a("v_lshrrev_b32 v8, 2, v5\nv_lshl_add_u32 v8, v3, 3, v8\nv_lshlrev_b32 v8, 7, v8")
        a("v_and_b32 v9, 1, v4\nv_lshlrev_b32 v9, 1, v9\nv_bfe_u32 v10, v5, 1, 1\nv_add_u32 v9, v9, v10")
        a("v_lshrrev_b32 v10, 3, v5\nv_lshlrev_b32 v10, 2, v10\nv_xor_b32 v9, v9, v10")
        a("v_and_b32 v10, 1, v5\nv_lshlrev_b32 v10, 3, v10\nv_add_u32 v8, v8, v10")
        a(f"s_xor_b32 {s(sT3)}, {s(sTYPE)}, 1\ns_and_b32 {s(sT3)}, {s(sT3)}, {s(sRH)}\ns_lshl_b32 {s(sT3)}, {s(sT3)}, 1")
        a(f"s_lshl_b32 {s(sT2)}, {s(sCH)}, 2\ns_or_b32 {s(sT2)}, {s(sT2)}, {s(sT3)}\nv_xor_b32 v10, {s(sT2)}, v9\nv_lshl_add_u32 v10, v10, 4, v8")
        a(f"s_lshl_b32 {s(sT2)}, {s(sRH)}, 11")
        for sl in range(3):
            a(f"s_add_u32 {s(sT4)}, {s(sT2)}, {WR+8192*sl}\ns_sub_u32 {s(sT5)}, {WR+8192*sl}, {s(sT2)}")
            a(f"v_add_u32 {v(G.vWE+sl)}, {s(sT4)}, v10\nv_add_u32 {v(G.vWO+sl)}, {s(sT5)}, v10")
        a(f"v_lshrrev_b32 v8, 2, v5\nv_xor_b32 v8, v8, v4\nv_and_b32 v8, 1, v8\nv_cmp_eq_u32 vcc, 0, v8\nv_mov_b32 v9, 0x3f803f80")
        for q in range(4): a(f"v_cndmask_b32 {v(G.SEL+q)}, 0, v9, vcc")
        a(f"s_mul_i32 {s(sT0)}, {s(sWAVE)}, 384\ns_add_u32 {s(sT0)}, {s(sT0)}, {SC_CS}\nv_lshl_add_u32 {v(G.vCW)}, v2, 2, {s(sT0)}")
        a(f"s_xor_b32 {s(sT0)}, {s(sWAVE)}, 2\ns_mul_i32 {s(sT0)}, {s(sT0)}, 384\ns_add_u32 {s(sT0)}, {s(sT0)}, {SC_CS}\ns_xor_b32 {s(sT1)}, {s(sTYPE)}, 1\ns_lshl_b32 {s(sT1)}, {s(sT1)}, 4")
        a(f"v_xor_b32 v8, {s(sT1)}, v2\nv_lshl_add_u32 {v(G.vCR)}, v8, 2, {s(sT0)}")
        a(f"v_lshlrev_b32 v8, 2, v2\nv_add_u32 v8, {SC_FLAG}, v8\nds_write_b32 v8, {v(G.vNZ)}")
        if self.o["wt"] == 2: a(f"buffer_load_dword {v(G.vDUM)}, {v(G.vT0)}, {s(sW,4)}, 0 offen"); vm.issue("t")
        X = self.lab("vwx")
        a(f"v_mov_b32 {v(G.vT1)}, {hx(OOB)}\nv_mov_b32 {v(G.vT2)}, {hx(OOB)}\ns_cmp_lt_u32 {s(sWAVE)}, 2\ns_cbranch_scc1 {X}")
        a(f"s_cmp_eq_u32 {s(sWAVE)}, 2")
        a(f"s_cselect_b32 {s(sW)}, s16, s8\ns_cselect_b32 {s(sW+1)}, s17, s9\ns_movk_i32 {s(sT3)}, 2048\ns_cselect_b32 {s(sT3)}, 5504, {s(sT3)}")
        a(f"s_lshl_b32 {s(sW+2)}, {s(sT3)}, 8\ns_mul_i32 {s(sT2)}, s2, {s(sT3)}\ns_sub_u32 {s(sT3)}, {s(sT3)}, 4")
        a(f"v_lshlrev_b32 v12, 7, v1\nv_min_u32 v12, {s(sT3)}, v12\nv_add_u32 {v(G.vT1)}, {s(sT2)}, v12")
        a(f"s_cmp_eq_u32 {s(sWAVE)}, 2\ns_cselect_b32 {s(sT3)}, 43, 16\ns_lshr_b32 {s(sT2)}, s2, 3\ns_mul_i32 {s(sT2)}, {s(sT2)}, {s(sT3)}")
        a(f"v_add_u32 v12, {s(sT2)}, v1\nv_lshlrev_b32 v12, 10, v12\nv_add_u32 v12, 384, v12\nv_cmp_gt_u32 vcc, {s(sT3)}, v1\nv_cndmask_b32 {v(G.vT2)}, {v(G.vT2)}, v12, vcc")
        a.label(X)
        self.srd(sB1, 14, 2752); self.srd(sDBG, 22, 256); self.srd(sWS, 24, WS_SIZE)
        a(f"s_lshl_b32 {s(sT2)}, {s(sCH)}, 6\ns_lshl_b32 {s(sT3)}, {s(sTYPE)}, 31\ns_xor_b32 {s(sT3)}, {s(sT3)}, {hx(OOB)}\ns_or_b32 {s(sT2)}, {s(sT2)}, {s(sT3)}")
        a(f"v_lshl_add_u32 v8, v2, 1, {s(sT2)}")
        if not self.o["xe"]: xs()
        a("v_mov_b32 v96, v8")
        if self.o["t2"]:
            L = self.lab("t2")
            a(f"s_lshl_b32 {s(sT2)}, {s(sHF)}, 2\ns_or_b32 {s(sT2)}, {s(sT2)}, {s(sWAVE)}\ns_cmp_lg_u32 {s(sT2)}, 3\ns_cbranch_scc1 {L}")
            self.srd(sOUT, 6, 1572864)
            a(f"s_lshr_b32 {s(sT2)}, s2, 3\ns_lshl_b32 {s(sT2)}, {s(sT2)}, 4")
            a(f"v_add_u32 v12, {s(sT2)}, v5\nv_mul_u32_u24 v12, 3072, v12\nv_min_u32 v13, 2, v4\nv_lshl_add_u32 v12, v13, 10, v12\nv_add_u32 v12, 384, v12")
            a(f"buffer_load_dword {v(G.vDUM)}, v12, {s(sOUT,4)}, 0 offen")
            a.label(L)
        if self.o["w2s"]: a(f"buffer_load_dword {v(G.vDUM)}, {v(G.vT1)}, {s(sW,4)}, 0 offen"); vm.issue("t")
        self.vm0 = list(vm.q)
        self.ts("c_setup")
        a(f"s_cmp_eq_u32 {s(sTYPE)}, 0\ns_cbranch_scc0 L_typeB")

    def q_stats(self, typ, extra=()):
        G = self; T = G.TMP; U = T + 8; q = []
        g = dict(math=1, chk=self.o['chk'], w2=self.o["w2t"], ga=self.o['ga'], gc=self.o['gc'])
        nl = [self.vmi(f"buffer_load_dword {v(G.GR+3)}, {v(G.vNZ)}, {s(sDBG,4)}, 0 offen sc1", "nonce")]
        if not self.o["pre"]: q += nl
        q += [("GI", g["math"]), self.vmw("xs")]
        if self.o["pre"]: q += nl
        w = []
        for k in range(8): w += [f"v_lshlrev_b32 {v(U+2*k)}, 16, {v(T+k)}", f"v_and_b32 {v(U+2*k+1)}, 0xffff0000, {v(T+k)}"]
        w += [f"v_add_f32 {v(T+k)}, {v(U+2*k)}, {v(U+2*k+1)}" for k in range(8)]
        for n in (4, 2, 1): w += [f"v_add_f32 {v(T+k)}, {v(T+k)}, {v(T+k+n)}" for k in range(n)]
        def red32(r, t):
            o = [f"v_add_f32_dpp {v(r)}, {v(r)}, {v(r)} {m} row_mask:0xf bank_mask:0xf" for m in ("quad_perm:[1,0,3,2]", "quad_perm:[2,3,0,1]", "row_half_mirror", "row_mirror")]
            return o + [f"v_mov_b32 {v(t)}, {v(r)}", f"v_permlane16_swap_b32 {v(r)}, {v(t)}", f"v_add_f32 {v(r)}, {v(r)}, {v(t)}"]
        w += red32(T, T + 1) + [f"v_mul_f32 {v(G.GR)}, {fl(1/512)}, {v(T)}"]
        w += [f"v_sub_f32 {v(U+k)}, {v(U+k)}, {v(G.GR)}" for k in range(16)]
        w += [f"v_mul_f32 {v(T+k)}, {v(U+k)}, {v(U+k)}" for k in range(4)]
        w += [f"v_fmac_f32 {v(T+k%4)}, {v(U+k)}, {v(U+k)}" for k in range(4, 16)]
        w += [f"v_add_f32 {v(T)}, {v(T)}, {v(T+1)}", f"v_add_f32 {v(T+2)}, {v(T+2)}, {v(T+3)}", f"v_add_f32 {v(T)}, {v(T)}, {v(T+2)}"]
        w += red32(T, T + 1) + [f"v_mov_b32 {v(T+1)}, {fl(1e-5)}", f"v_fmac_f32 {v(T+1)}, {fl(1/512)}, {v(T)}",
                                f"v_rsq_f32 {v(G.GR+1)}, {v(T+1)}", f"v_mul_f32 {v(G.GR+2)}, {v(T+1)}, {v(G.GR+1)}"]
        q += self.its(w)
        if self.o["pre"]: self.flush(q); q = []
        L = self.lab("nonce"); R = self.lab("nonceok"); X = self.lab("noncex")
        q += [("GI", g["chk"]), self.vmw("nonce"),
              self.it(f"v_readfirstlane_b32 {s(sNONCE)}, {v(G.GR+3)}\ns_cmp_eq_u32 {s(sNONCE)}, 0\ns_cbranch_scc1 {L}\n{R}:"),
              self.vmi(f"buffer_store_dwordx4 {v(G.GR,4)}, {v(G.vSTA)}, {s(sWS,4)}, 0 offen sc1", "st"),
              self.it(f"v_mov_b32 v8, {SC_NONCE}\nds_write_b32 v8, {v(G.GR+3)}"), self.tsi("c_stpub")]
        self.tail.append(f"""{L}:
s_mov_b32 {s(sSPIN)}, 0
{X}:
buffer_load_dword {v(G.GR+3)}, {v(G.vNZ)}, {s(sDBG,4)}, 0 offen sc1
s_add_u32 {s(sSPIN)}, {s(sSPIN)}, 1
s_waitcnt vmcnt(0)
v_readfirstlane_b32 {s(sNONCE)}, {v(G.GR+3)}
s_cmp_gt_u32 {s(sSPIN)}, {SPIN_MAX}
s_cbranch_scc1 {R}
s_cmp_eq_u32 {s(sNONCE)}, 0
s_cbranch_scc1 {X}
s_branch {R}""")
        if typ == "B": q += self.its([f"v_lshlrev_b32 {v(G.B1+p)}, 16, {v(G.B1+p)}" for p in range(3)])
        q += list(extra)
        if self.o["t3"]:
            q += [("GI", self.o["t3"] - 1), self.it(f"s_lshl_b32 {s(sT0)}, {s(sI)}, 3\ns_add_u32 {s(sT0)}, {s(sT0)}, {s(sCT)}\ns_lshl_b32 {s(sT0)}, {s(sT0)}, 14\nv_lshl_add_u32 v8, v5, 10, {s(sT0)}"),
                  self.vmi(f"buffer_load_dword {v(G.vDUM)}, v8, {s(sX,4)}, 0 offen offset:384", "t")]
        if self.o["w2t"] and not self.o["w2s"] and not self.o["sw"] & 1: q += [("GI", g["w2"]), self.vmi(f"buffer_load_dword {v(G.vDUM)}, {v(G.vT1)}, {s(sW,4)}, 0 offen", "t")]
        if self.o["t1"] and not self.o["sw"] & 2: q += [("GI", self.o["t1"]), self.vmi(f"buffer_load_dword {v(G.vDUM)}, {v(G.vT2)}, {s(sW,4)}, 0 offen", "t")]
        q += [("GI", g["ga"])] + [self.vmi(f"buffer_load_dwordx4 {v(G.SG+4*rb,4)}, {v(G.vSTG)}, {s(sWS,4)}, 0 offen offset:{1024*rb} sc1", "sg") for rb in range(2)]
        L = self.lab("st"); R = self.lab("stok"); X = self.lab("stx")
        chk = f"v_cmp_ne_u32 vcc, {s(sNONCE)}, {v(G.SG+3)}\nv_cmp_ne_u32 {s(sM,2)}, {s(sNONCE)}, {v(G.SG+7)}\ns_or_b64 vcc, vcc, {s(sM,2)}"
        q += [("GI", g["gc"]), self.vmw("sg"), self.it(f"{chk}\ns_cbranch_vccnz {L}\n{R}:"), self.tsi("c_stok")]
        self.tail.append(f"""{L}:
s_mov_b32 {s(sSPIN)}, 0
{X}:
buffer_load_dwordx4 {v(G.SG,4)}, {v(G.vSTG)}, {s(sWS,4)}, 0 offen sc1
buffer_load_dwordx4 {v(G.SG+4,4)}, {v(G.vSTG)}, {s(sWS,4)}, 0 offen offset:1024 sc1
s_add_u32 {s(sSPIN)}, {s(sSPIN)}, 1
s_cmp_gt_u32 {s(sSPIN)}, {SPIN_MAX}
s_waitcnt vmcnt(0)
s_cbranch_scc1 {R}
{chk}
s_cbranch_vccnz {X}
s_branch {R}""")
        for rb in range(2):
            mu, r, sd = G.SG + 4*rb, G.SG + 4*rb + 1, G.SG + 4*rb + 2; X = G.XS + 4*rb
            q += self.its([f"v_cvt_pk_bf16_f32 {v(T)}, -{v(mu)}, -{v(mu)}", f"v_cvt_pk_bf16_f32 {v(T+1)}, {v(sd)}, {v(sd)}",
                           f"v_and_b32 {v(T+2)}, 0xffff0000, {v(T)}", f"v_and_b32 {v(T+3)}, 0xffff0000, {v(T+1)}",
                           f"v_sub_f32 {v(T+2)}, -{v(mu)}, {v(T+2)}", f"v_sub_f32 {v(T+4)}, {v(sd)}, {v(T+3)}",
                           f"v_cvt_pk_bf16_f32 {v(T+2)}, {v(T+2)}, {v(T+3)}", f"v_cvt_pk_bf16_f32 {v(T+4)}, {v(T+4)}, 0",
                           f"v_cmp_gt_u32 vcc, 32, v1\nv_mov_b32 {v(X+3)}, 0\nv_cndmask_b32 {v(X)}, 0, {v(T)}, vcc\nv_cndmask_b32 {v(X+1)}, 0, {v(T+2)}, vcc\nv_cndmask_b32 {v(X+2)}, 0, {v(T+4)}, vcc"])
        k0 = -2.0 * 1.4426950408889634 * 0.7978845608028654
        for rb in range(2):
            r, sd = G.SG + 4*rb + 1, G.SG + 4*rb + 2
            if typ == "B":
                q += self.its([f"v_mul_f32 {v(G.GC+rb)}, {fl(k0)}, {v(r)}", f"v_mul_f32 {v(T)}, {v(r)}, {v(r)}",
                               f"v_mul_f32 {v(T)}, {fl(0.044715)}, {v(T)}", f"v_mul_f32 {v(G.GC+2+rb)}, {v(T)}, {v(G.GC+rb)}"])
            else:
                q += self.its([f"v_mul_f32 {v(G.GC+rb)}, {fl(1.4426950408889634)}, {v(r)}", f"v_mul_f32 {v(G.GC+2+rb)}, {fl(1e-6)}, {v(sd)}"])
        if typ == "A":
            q += self.its([f"s_lshl_b32 {s(sT0)}, {s(sWAVE)}, 8\ns_add_u32 {s(sT0)}, {s(sT0)}, {SC_R}\nv_lshl_add_u32 v8, v2, 2, {s(sT0)}\nv_lshl_add_u32 v6, v3, 4, {s(sT0)}",
                           f"ds_write_b32 v8, {v(G.GC)}", f"ds_write_b32 v8, {v(G.GC+1)} offset:128"])
        return q

    def reads0(self, gi):
        G = self
        k, tau = divmod(gi, 4); sl = (gi // 2) % 3; b = gi & 1
        X = lambda rb: [(f"ds_read_b128 {v(16+8*b+4*rb,4)}, {v((G.vXB if k >= 4 else G.vXA) + tau)} offset:{(k % 4)*16384 + 4096*rb}", (gi, "X", rb))]
        W = lambda p: [(f"ds_read_b64_tr_b16 {v(48+8*b+4*p+2*j,2)}, {v((G.vWO if tau & 1 else G.vWE) + sl)} offset:{p*4096+(tau&1)*2048+j*512}", (gi, "W", p)) for j in range(2)]
        return [W(0) + X(0), W(1) + X(1), [], []]
    def reads1(self, M):
        G = self
        if M >= 16: return [[], [], [], []]
        k = M // 2; sl = (16 + k) % 3; b = M & 1
        def X(ks, rb):
            tau = 2*(M & 1) + ks
            return [(f"ds_read_b128 {v(16+16*b+8*ks+4*rb,4)}, {v((G.vXB if k >= 4 else G.vXA) + tau)} offset:{(k % 4)*16384 + 4096*rb}", (32+M, "X", ks, rb))]
        def W(ks):
            tau = 2*(M & 1) + ks
            return [(f"ds_read_b64_tr_b16 {v(48+8*b+4*ks+2*j,2)}, {v((G.vWO if tau & 1 else G.vWE) + sl)} offset:{tau*2048+j*512}", (32+M, "W", ks)) for j in range(2)]
        return [W(0) + X(0, 0), W(1) + X(0, 1), X(1, 0), X(1, 1)]

    def mpass(self, typ, ps, q, budget):
        a = self.a; G = self; CS = G.CSM[typ]
        def issue(g):
            for r, t in g: a(r); self.lg.issue(t)
        if ps == 0:
            self.lg = Cnt(a, "lgkmcnt", 15)
            self.ts("c_pre0")
            a("s_waitcnt lgkmcnt(0)\ns_barrier")
            self.ts("c_bar0")
            for g in self.reads0(0): issue(g)
        elif typ == "A":
            for g in self.reads1(0): issue(g)
        lg = self.lg
        st_ = dict(hold=None, credit=0, nbar=0)
        def emit(x):
            n0 = len(a.items); x[1]()
            for ln in a.items[n0:]:
                if ln.startswith("ds_"): lg.issue("F")
        def fill(M, nr):
            st_["credit"] = min(st_["credit"] + budget - 5 * nr, budget + 6)
            while q and st_["hold"] is None:
                x = q[0]
                if x in ("NEXT", "BAR"): st_["hold"] = x; q.pop(0); break
                if x[0] == "GI":
                    if M >= x[1]: q.pop(0); continue
                    break
                if x[0] == "GB":
                    if st_["nbar"] >= x[1]: q.pop(0); continue
                    break
                if st_["credit"] < min(x[0], 12): break
                q.pop(0); emit(x); st_["credit"] -= x[0]
        def barrier(n):
            lg.wait("F"); a("s_barrier"); self.ts(f"c_bar{n}"); st_["nbar"] += 1
            if st_["hold"] == "BAR": st_["hold"] = None
        NS = 32 if ps == 0 else 16
        pn = (0, 1) if ps == 0 else (2,)
        for M in range(NS):
            b = M & 1; mf = []; last = M == NS - 1
            for i in range(2):
                for rb in range(2):
                    p = i if ps == 0 else 2
                    x = v(16+8*b+4*rb, 4) if ps == 0 else v(16+16*b+8*i+4*rb, 4)
                    w = v(48+8*b+4*i, 4); c = v(G.acc(p, rb), 16)
                    A, B = (x, w) if (typ == "A" and p < 2) else (w, x)
                    mf.append(f"v_mfma_f32_32x32x16_bf16 {c}, {A}, {B}, {c if M or (ps and i) else 0}")
            if ps == 0:
                cs = [f"v_mfma_f32_16x16x32_bf16 {v(CS[p],4)}, {v(G.SEL,4)}, {v(48+8*b+4*p,4)}, {v(CS[p],4) if M else 0}" for p in pn] if b == 0 else []
                rd = self.reads0(M + 1) if not last else (self.reads1(0) if typ == "B" else [[], [], [], []])
                need = [(M, "X", 1), None, None, None]; nb = M // 2 + 1
            else:
                cs = [f"v_mfma_f32_16x16x32_bf16 {v(CS[2],4)}, {v(G.SEL,4)}, {v(48+8*b,4)}, {v(CS[2],4) if M else 0}"]
                rd = self.reads1(M + 1)
                need = [(32+M, "X", 0, 1), None, (32+M, "X", 1, 1), None]; nb = 17 + M // 2
            csw = [(f"ds_write_b32 {v(G.vCW)}, {v(CS[p])} offset:{128*p}", "F") for p in pn]
            csr = [(f"ds_read_b32 {v(CS[p]+1)}, {v(G.vCR)} offset:{128*p}", "F") for p in pn]
            if st_["hold"] == "NEXT" or M == 0: lg.wait("F"); st_["hold"] = None if st_["hold"] == "NEXT" else st_["hold"]
            if last and ps == 1:
                lg.wait(need[0]); a(cs[0]); a(mf[0])
                for j in range(4):
                    if j: a(f"v_xor_b32 v8, {16*j}, {v(G.vXR)}")
                    issue([(f"ds_read_b64 {v(G.XR+2*j,2)}, {v(8 if j else G.vXR)}", "F")])
                fill(M, 4); a(mf[1])
                issue(csw); fill(M, 1); lg.wait(need[2]); a(mf[2])
                barrier(nb); issue(csr); a(mf[3])
                break
            for k in range(4):
                lg.wait(need[k]); a(mf[k])
                if k == 0 and b:
                    barrier(nb)
                    if last: issue(csr)
                issue(rd[k])
                fill(M, len(rd[k]))
                if k == (0 if (ps == 0 and M == 30) else 2):
                    for c in cs: a(c)
                if k == 2 and ps == 0 and M == 30: issue(csw)
        assert st_["hold"] != "BAR"
        assert not any(x[0] in ("GI", "GB") for x in q if not isinstance(x, str)), "GI marker left"
        if self.verbose: print(typ, "pass", ps, "leftover cost", sum(x[0] for x in q if not isinstance(x, str)))
        self.ts(f"c_pass{ps}")

    def q_fixup(self, typ, p):
        G = self; c = G.CSM[typ][p]; F = 136 if typ == "B" else (152, 148, 128)[p]; q = []
        q += self.its([f"v_add_f32 {v(c)}, {v(c)}, {v(c+1)}", f"v_cvt_pk_bf16_f32 {v(c+1)}, {v(c)}, {v(c)}",
                      f"v_and_b32 {v(c+1)}, 0xffff0000, {v(c+1)}", f"v_sub_f32 {v(c+2)}, {v(c)}, {v(c+1)}", f"v_mov_b32 {v(F+3)}, 0"])
        if typ == "B":
            q += self.its([f"v_cvt_pk_bf16_f32 {v(F+1)}, {v(c+1)}, {v(G.B1+p)}", f"v_cvt_pk_bf16_f32 {v(F+2)}, {v(G.B1+p)}, 0"])
        else:
            q += self.its([f"v_cvt_pk_bf16_f32 {v(F+1)}, {v(c+1)}, 0", f"v_mov_b32 {v(F+2)}, 0"])
        q += self.its([f"v_cvt_pk_bf16_f32 {v(F)}, {v(c+1)}, {v(c+2)}"])
        for rb in range(2):
            x = v(G.XS + 4*rb, 4); w = v(F, 4); cc = v(G.acc(p, rb), 16)
            A, B = (x, w) if (typ == "A" and p < 2) else (w, x)
            q += self.its([f"v_mfma_f32_32x32x16_bf16 {cc}, {A}, {B}, {cc}"])
        return q

    def ho_base(self, dst, sig0):
        t = (f"s_lshl_b32 {s(dst)}, {s(sI)}, 1\ns_add_u32 {s(dst)}, {s(dst)}, {s(sRH)}\ns_lshl_b32 {s(dst)}, {s(dst)}, 18\n"
             f"s_lshl_b32 {s(sT0)}, {s(sG)}, 1\ns_add_u32 {s(sT0)}, {s(sT0)}, {s(sCH)}\n")
        if not self.o["lay"]:
            return t + f"s_add_u32 {s(sT5)}, {s(sT0)}, {sig0}\ns_lshl_b32 {s(sT5)}, {s(sT5)}, 10\ns_add_u32 {s(dst)}, {s(dst)}, {s(sT5)}"
        par = int(sig0 >= 29)
        return t + (f"s_add_u32 {s(sT5)}, {s(sT0)}, {sig0 - 29*par}\ns_and_b32 {s(sT4)}, {s(sT5)}, 7\ns_lshr_b32 {s(sT5)}, {s(sT5)}, 3\ns_lshl_b32 {s(sT5)}, {s(sT5)}, 4\n"
                    f"s_add_u32 {s(sT5)}, {s(sT5)}, {s(sT4)}\ns_add_u32 {s(sT5)}, {s(sT5)}, {8*par}\ns_lshl_b32 {s(sT5)}, {s(sT5)}, 10\ns_add_u32 {s(dst)}, {s(dst)}, {s(sT5)}")

    def q_flag(self, soff):
        return [self.it(f"v_mov_b32 v11, {s(sNONCE)}"),
                self.vmi(f"buffer_store_dword v11, {v(self.vFL)}, {s(sWS,4)}, {s(soff)} offen {'sc0 sc1' if self.o['fsc'] else 'sc1'}", "f")]

    def q_gelu_setup(self):
        sHB, sFL = 26, 27; vO = 12
        q = [self.it("\n".join(self.ho_base(4 + p, SIG0[p]) for p in range(3)) + f"\ns_lshl_b32 {s(sT1)}, {s(sI)}, 1\ns_add_u32 {s(sT1)}, {s(sT1)}, {s(sRH)}\ns_mul_i32 {s(sFL)}, {s(sT1)}, {3*FG}\ns_lshl_b32 {s(sT1)}, {s(sT0)}, {FS}\ns_add_u32 {s(sFL)}, {s(sFL)}, {s(sT1)}\ns_add_u32 {s(sFL)}, {s(sFL)}, {WS_FH}")]
        t = f"s_mul_i32 {s(sT1)}, {s(sG)}, 6\ns_add_u32 {s(sT1)}, {s(sT1)}, {s(sCH)}\nv_lshlrev_b32 v11, 4, v1"
        for p in range(3): t += f"\ns_cmp_lt_u32 {s(sT1)}, {43-2*p}\ns_cselect_b32 {s(sT2)}, 0, {hx(OOB)}\nv_or_b32 {v(vO+p)}, {s(sT2)}, v11"
        return q + [self.it(t)]
    def q_gelu(self, p, pk):
        G = self; sHB, sFL, sO = 26, 27, 3; vO = 12; t = G.TMP; q = []; n = 0
        for rb in range(2):
            A, B, sd = G.GC + rb, G.GC + 2 + rb, G.SG + 4*rb + 2
            for kh in range(2):
                c = G.acc(p, rb) + 8*kh; P = t + 8 + 4*(n & 1); n += 1
                if self.o["pk"] and pk:
                    sel = rb
                    w = [f"v_pk_mul_f32 {v(t+j,2)}, {v(c+j,2)}, {v(c+j,2)}" for j in range(0, 8, 2)]
                    w += [f"v_pk_fma_f32 {v(t+j,2)}, {v(t+j,2)}, {v(G.GC+2,2)}, {v(G.GC,2)} op_sel:[0,{sel},{sel}] op_sel_hi:[1,{sel},{sel}]" for j in range(0, 8, 2)]
                    w += [f"v_pk_mul_f32 {v(t+j,2)}, {v(c+j,2)}, {v(t+j,2)}" for j in range(0, 8, 2)]
                    w += [f"v_exp_f32 {v(t+j)}, {v(t+j)}" for j in range(8)]
                    w += [f"v_pk_fma_f32 {v(t+j,2)}, {v(t+j,2)}, {v(sd,2)}, {v(sd,2)} op_sel:[0,0,0] op_sel_hi:[1,0,0]" for j in range(0, 8, 2)]
                    w += [f"v_rcp_f32 {v(t+j)}, {v(t+j)}" for j in range(8)]
                    w += [f"v_pk_mul_f32 {v(t+j,2)}, {v(c+j,2)}, {v(t+j,2)}" for j in range(0, 8, 2)]
                else:
                    w = [f"v_mul_f32 {v(t+j)}, {v(c+j)}, {v(c+j)}" for j in range(8)]
                    w += [f"v_fma_f32 {v(t+j)}, {v(t+j)}, {v(B)}, {v(A)}" for j in range(8)]
                    w += [f"v_mul_f32 {v(t+j)}, {v(c+j)}, {v(t+j)}" for j in range(8)]
                    w += [f"v_exp_f32 {v(t+j)}, {v(t+j)}" for j in range(8)]
                    w += [f"v_fma_f32 {v(t+j)}, {v(t+j)}, {v(sd)}, {v(sd)}" for j in range(8)]
                    w += [f"v_rcp_f32 {v(t+j)}, {v(t+j)}" for j in range(8)]
                    w += [f"v_mul_f32 {v(t+j)}, {v(c+j)}, {v(t+j)}" for j in range(8)]
                w += [f"v_cvt_pk_bf16_f32 {v(P+j)}, {v(t+2*j)}, {v(t+2*j+1)}" for j in range(4)]
                q += self.its(w)
                q += [self.vmi(f"s_add_u32 {s(sO)}, {s(4+p)}, {(2*rb+kh)*65536}\nbuffer_store_dwordx4 {v(P,4)}, {v(vO+p)}, {s(sWS,4)}, {s(sO)} offen sc1", ("h", p))]
        return q + [self.tsi(f"cB_p{p}")]

    def q_hflag(self, p):
        return [self.vmw(("h", p))] + self.q_flag(27) + [self.it(f"s_add_u32 s27, s27, {FG}"), self.tsi(f"cB_flag{p}")]
    def q_h0(self):
        G = self
        return self.its([f"s_lshl_b32 {s(sT1)}, {s(sI)}, 1\ns_add_u32 {s(sT1)}, {s(sT1)}, {s(sHF)}\ns_mul_i32 {s(sC0)}, {s(sT1)}, {3*FG}\ns_add_u32 {s(sC0)}, {s(sC0)}, {WS_FH}", f"v_lshlrev_b32 {v(G.vGP)}, {FS}, v5"]) + \
               [("GI", 13), self.vmi(self.fload(G.vGF, G.vGP, sC0), "gf")]
    def aload(self, vm, sig):
        if sig >= 59: return
        G = self; sA = sKST; D = self.o["D"]
        if self.o["r2"]:
            st, j2, ch = pos_of(sig); n = 8 if st == 3 else 7; t = ""
            if sig == 14: t = f"s_add_u32 {s(sA)}, s16, {14*1024}\n"
            elif ch == 0:
                t = f"s_mov_b32 s19, {'s18' if st == 3 else 's17'}\n" if j2 == 0 else f"s_add_u32 s19, s19, 2048\ns_cmp_eq_u32 s19, {n*2048}\ns_cselect_b32 s19, 0, s19\n"
                t += f"s_add_u32 {s(sA)}, s19, s16\n" + (f"s_add_u32 {s(sA)}, {s(sA)}, {(SIG0+[43])[st]*1024}\n" if st else "")
            self.a(t + f"buffer_load_dwordx4 {v(G.RING[sig%D],4)}, {v(G.vA)}, {s(sWS,4)}, {s(sA)} offen offset:{1024*ch} sc1"); vm.issue(("A", sig))
            return
        o = hoff(sig, self.o["lay"]); d = (o & ~4095) - (hoff(sig - 1, self.o["lay"]) & ~4095) if sig else 0
        if d: self.a(f"s_add_u32 {s(sA)}, {s(sA)}, {hx(d)}")
        self.a(f"buffer_load_dwordx4 {v(G.RING[sig%D],4)}, {v(G.vA)}, {s(sWS,4)}, {s(sA)} offen offset:{o & 4095} sc1"); vm.issue(("A", sig))
    RING = [16 + 4*k for k in range(8)] + [72, 76, 80, 84, 88]
    def gcheck(self, vm, soff, two=False):
        a = self.a; G = self; L = self.lab("gc"); R = self.lab("gcok"); X = self.lab("gcx")
        vm.wait("gf")
        a(f"v_cmp_ne_u32 vcc, {s(sNONCE)}, {v(G.vGF)}\ns_cbranch_vccnz {L}")
        a.label(R)
        pre = ""
        if two:
            n = len(vm.q) - 1 - max(i for i, t in enumerate(vm.q) if t == "gb")
            pre = f"s_waitcnt vmcnt({n})\nv_cmp_ne_u32 vcc, {s(sNONCE)}, {v(G.vGB)}\ns_cbranch_vccz {R}\n"
        self.tail.append(f"{L}:\n" + pre + self.poll_text(G.vGP, G.vGF, soff, X, self.lab("gcy")) + f"\ns_branch {R}")
    def p2_pre(self):
        if self.stop == "p1": return
        self.gcheck(self.vm, sC0); self.ts("c_p0x")
        for sig in range(8): self.aload(self.vm, sig)
        G = self
        if self.o["kearly"]: self.a(f"s_add_u32 {s(sC0)}, {s(sC0)}, {FG}\nbuffer_load_dword {v(G.vGF)}, {v(G.vGP)}, {s(sWS,4)}, {s(sC0)} offen sc1"); self.vm.issue("gf")
    def typeB(self):
        a = self.a; G = self; o = self.o
        self.vm.q = list(self.vm0)
        for p in range(3):
            a(f"v_add_u32 v9, {s(sC0+p)}, v96\nbuffer_load_ushort {v(G.B1+p)}, v9, {s(sB1,4)}, 0 offen"); self.vm.issue("b1")
        self.flush(self.q_gelu_setup())
        pw = []
        if o["pw"]:
            pw = [("GI", o["pw"])] + [self.vmi(f"s_add_u32 s3, s27, {k*FG}\nbuffer_store_dword {v(G.vNZ)}, {v(G.vFL)}, {s(sWS,4)}, s3 offen sc1", "pw") for k in range(3)]
        q = self.q_stats("B", pw + self.q_p2setup())
        self.mpass("B", 0, q, o["bud0"])
        g1 = self.q_gelu(1, False)
        h0 = self.q_h0()
        q += self.q_fixup("B", 0) + self.q_fixup("B", 1) + h0[:2] + self.q_gelu(0, False) + g1[:o["fm"]*10] + self.q_hflag(0) + g1[o["fm"]*10:]
        self.mpass("B", 1, q, o["bud2"])
        self.ts("c_main")
        g2 = self.q_gelu(2, True); h = len(g2) // 4 * o["g2h"]
        self.flush(q + h0[3:] + ["NEXT"] + self.q_fixup("B", 2) + g2[:h] + self.q_hflag(1) + [(0, self.p2_pre)] + g2[h:])
        self.ts("cB_gelu")
        if self.stop == "p1": self.vm.wait(("h", 2)); self.flush(self.q_flag(27))

    def pair_recv(self, kind, reads):
        a = self.a; L = self.lab("pw"); X = self.lab("pwx")
        a(f"s_xor_b32 {s(sT0)}, {s(sWAVE)}, 2\ns_lshl_b32 {s(sT0)}, {s(sT0)}, 4\ns_add_u32 {s(sT0)}, {s(sT0)}, {SC_FLAG+4*kind}\nv_mov_b32 v12, {s(sT0)}\ns_mov_b32 {s(sSPIN)}, 0")
        a.label(L)
        a("ds_read_b32 v13, v12")
        for r in reads: a(r)
        a(f"s_add_u32 {s(sSPIN)}, {s(sSPIN)}, 1\ns_cmp_gt_u32 {s(sSPIN)}, {SPIN_MAX}\ns_waitcnt lgkmcnt(0)\ns_cbranch_scc1 {X}")
        a(f"v_cmp_eq_u32 vcc, 0, v13\ns_cbranch_vccnz {L}")
        a.label(X)
    def pair_send(self, kind):
        a = self.a
        a(f"s_lshl_b32 {s(sT0)}, {s(sWAVE)}, 4\ns_add_u32 {s(sT0)}, {s(sT0)}, {SC_FLAG+4*kind}\nv_mov_b32 v12, {s(sT0)}\nv_mov_b32 v13, 1\nds_write_b32 v12, v13")

    ON = 156
    RR = (128, 32)
    def q_kv_pre(self):
        G = self
        return ["NEXT"] + self.its([f"ds_read_b128 {v(G.RR[rb]+4*k,4)}, v6 offset:{128*rb+32*k}" for rb in range(2) for k in range(4)]
                                   + [f"v_mov_b32 {v(G.ON+k)}, 0x3f803f80" for k in range(4)] + ["v_xor_b32 v12, 32, v96"])
    def q_kv(self):
        G = self; q = []
        KV, ZZ, u, ON = 16, 48, G.TMP + 16, G.ON
        pend = []
        for n, (rb, kh) in enumerate(((0, 0), (0, 1), (1, 0), (1, 1))):
            c = G.acc(0, rb) + 8*kh; cv = G.acc(1, rb) + 8*kh; r = G.RR[rb] + 8*kh
            w = [f"v_pk_mul_f32 {v(c+j,2)}, {v(c+j,2)}, {v(r+j,2)}" for j in range(0, 8, 2)]
            e = [f"v_exp_f32 {v(u+j)}, {v(c+j)} clamp" for j in range(8)]
            w += pend[:1] + e[:4] + pend[1:] + e[4:]
            w += [f"v_max_f32 {v(c+j)}, v10, {v(c+j)}" for j in range(8)]
            w += [f"v_pk_mul_f32 {v(cv+j,2)}, {v(cv+j,2)}, {v(r+j,2)}" for j in range(0, 8, 2)]
            w += [f"v_pk_fma_f32 {v(u+j,2)}, {v(c+j,2)}, v[10:11], {v(u+j,2)} op_sel:[0,1,0] op_sel_hi:[1,1,1]" for j in range(0, 8, 2)]
            w += [f"v_cvt_pk_bf16_f32 {v(cv+j)}, {v(cv+2*j)}, {v(cv+2*j+1)}" for j in range(4)]
            w += [f"v_cvt_pk_bf16_f32 {v(c+j)}, {v(u+2*j)}, {v(u+2*j+1)}" for j in range(4)]
            pend = [f"v_mfma_f32_32x32x16_bf16 {v(ZZ,16)}, {v(c,4)}, {v(ON,4)}, {v(ZZ,16) if n else 0}",
                    f"v_mfma_f32_32x32x16_bf16 {v(KV,16)}, {v(c,4)}, {v(cv,4)}, {v(KV,16) if n else 0}"]
            q += self.its(w)
        q += self.its(pend) + [self.tsi("cA_kv"), self.it("v_mov_b32 v13, 1")]
        q += self.its([f"v_cndmask_b32 {v(u+j)}, {v(KV+8+j)}, {v(ZZ+8+j)}, {s(sLM,2)}" for j in range(8)])
        q += self.its([f"ds_write_b128 v90, {v(u,4)}", f"ds_write_b128 v90, {v(u+4,4)} offset:16", "ds_write_b32 v96, v13"])
        q += self.its([f"v_cndmask_b32 {v(ZZ+j)}, {v(ZZ+j)}, {v(KV+j)}, {s(sLM,2)}" for j in range(8)])
        q += [(40, lambda: self.pair_spin([f"ds_read_b128 {v(ZZ+8,4)}, v91", f"ds_read_b128 {v(ZZ+12,4)}, v91 offset:16"]))]
        q += self.its([f"v_pk_add_f32 {v(ZZ+j,2)}, {v(ZZ+j,2)}, {v(ZZ+8+j,2)}" for j in range(0, 8, 2)])
        q += self.its([f"v_pk_mul_f32 {v(ZZ+j,2)}, {v(ZZ+j,2)}, v[0:1] op_sel_hi:[1,0]" for j in range(0, 8, 2)])
        q += self.its([f"v_cvt_pk_bf16_f32 {v(u+j)}, {v(ZZ+2*j)}, {v(ZZ+2*j+1)}" for j in range(4)])
        q += [self.vmi(f"buffer_store_dwordx4 {v(u,4)}, v15, {s(sWS,4)}, s85 offen sc1", "kv"), self.tsi("cA_pub")]
        return q
    def pair_spin(self, reads, off=0):
        a = self.a; L = self.lab("pw"); X = self.lab("pwx")
        a(f"s_mov_b32 {s(sSPIN)}, 0")
        a.label(L)
        a(f"ds_read_b32 v13, v12 offset:{off}")
        for r in reads: a(r)
        a(f"s_add_u32 {s(sSPIN)}, {s(sSPIN)}, 1\ns_cmp_gt_u32 {s(sSPIN)}, {SPIN_MAX}\ns_waitcnt lgkmcnt(0)\ns_cbranch_scc1 {X}")
        a(f"v_cmp_eq_u32 vcc, 0, v13\ns_cbranch_vccnz {L}")
        a.label(X)
    def q_kvflag(self):
        sFL, sHD = 27, 3
        return [self.vmw("kv")] + self.q_flag(sHD) + [self.tsi("cA_flag")]
    def q_phiq(self):
        G = self; u = G.TMP; q = []
        for rb in range(2):
            rl, ep, r = G.GC + rb, G.GC + 2 + rb, G.SG + 4*rb + 1
            for hh in range(2):
                c = G.acc(2, rb) + 8*hh
                w = [f"v_mul_f32 {v(u+j)}, {v(rl)}, {v(c+j)}" for j in range(8)]
                w += [f"v_exp_f32 {v(u+j)}, {v(u+j)} clamp" for j in range(8)]
                w += [f"v_max_f32 {v(c+j)}, {v(ep)}, {v(c+j)}" for j in range(8)]
                w += [f"v_fmac_f32 {v(u+j)}, {v(c+j)}, {v(r)}" for j in range(8)]
                w += [f"v_cvt_pk_bf16_f32 {v(c+j)}, {v(u+2*j)}, {v(u+2*j+1)}" for j in range(4)]
                q += self.its(w)
        return q + [self.tsi("cA_q")]

    def typeA(self):
        a = self.a; G = self; T = G.TMP; vm = self.vm
        vm.q = list(self.vm0)
        a("v_and_b32 v8, 1, v4\nv_lshlrev_b32 v8, 2, v8\nv_sub_u32 v8, v5, v8\nv_mov_b32 v9, 0x3f80\nv_mov_b32 v10, 0x3f800000")
        for k, e in enumerate((0, 2, 8, 10)):
            a(f"v_cmp_eq_u32 vcc, {e}, v8\nv_cndmask_b32 v11, 0, v9, vcc\nv_cmp_eq_u32 vcc, {e+1}, v8\nv_cndmask_b32 {v(G.IDN+k)}, v11, v10, vcc")
        sREC, sFL, sHD = 26, 27, 3
        a(f"s_lshl_b32 {s(sHD)}, {s(sG)}, 1\ns_add_u32 {s(sHD)}, {s(sHD)}, {s(sCH)}\ns_lshl_b32 {s(sHD)}, {s(sHD)}, 1\ns_add_u32 {s(sHD)}, {s(sHD)}, {s(sRH)}")
        a(f"s_mul_i32 {s(sREC)}, {s(sHD)}, 10240\ns_add_u32 {s(sREC)}, {s(sREC)}, {WS_KV}\ns_lshl_b32 {s(sFL)}, {s(sHD)}, {FS+4}\ns_add_u32 {s(sFL)}, {s(sFL)}, {WS_FK}")
        a(f"s_lshl_b32 {s(sHD)}, {s(sI)}, {FS}\ns_add_u32 {s(sHD)}, {s(sHD)}, {s(sFL)}\ns_mul_i32 s85, {s(sI)}, 640\ns_add_u32 s85, s85, {s(sREC)}")
        a(f"v_cmp_gt_u32 {s(sLM,2)}, 16, v2\nv_lshl_add_u32 v12, v3, 4, v2\nv_lshlrev_b32 v12, 4, v12\nv_lshlrev_b32 v13, 6, v3\nv_add_u32 v13, 512, v13")
        a(f"v_cndmask_b32 v14, v13, v12, {s(sLM,2)}")
        a(f"v_lshl_add_u32 v13, v5, 4, v13\nv_cndmask_b32 v15, v13, v12, {s(sLM,2)}\nv_mov_b32 v12, {hx(OOB)}\nv_cmp_gt_u32 vcc, 20, v2\nv_cndmask_b32 v15, v12, v15, vcc")
        a(f"v_mov_b32 v9, {fl(0.6931471805599453)}\nv_cndmask_b32 v0, 1.0, v9, {s(sLM,2)}")
        a(f"v_mov_b32 v10, {fl(1e-6*1.4426950408889634)}\nv_mov_b32 v11, v9")
        o = self.o
        pw = []
        if o["pw"]:
            pw = [("GI", o["pw"]), self.vmi(f"buffer_store_dword {v(G.vNZ)}, {v(G.vFL)}, {s(sWS,4)}, s3 offen sc1", "pw"),
                  self.it(f"s_lshl_b32 {s(sT1)}, {s(sI)}, 1\ns_add_u32 {s(sT1)}, {s(sT1)}, {s(sRH)}\ns_lshl_b32 {s(sT1)}, {s(sT1)}, 4\ns_lshl_b32 {s(sT2)}, {s(sG)}, 1"),
                  self.it(f"s_add_u32 {s(sT1)}, {s(sT1)}, {s(sT2)}\ns_add_u32 {s(sT1)}, {s(sT1)}, {s(sCH)}\ns_lshl_b32 {s(sT1)}, {s(sT1)}, {FS}\ns_add_u32 {s(sT1)}, {s(sT1)}, {WS_FO}"),
                  self.vmi(f"buffer_store_dword {v(G.vNZ)}, {v(G.vFL)}, {s(sWS,4)}, {s(sT1)} offen sc1", "pw")]
        q = self.q_stats("A", pw)
        q += self.its([f"s_mul_i32 {s(sT1)}, {s(sWAVE)}, 1280\ns_add_u32 {s(sT1)}, {s(sT1)}, {SC_KVX}\nv_add_u32 v93, {s(sT1)}, v14",
                       "v_xor_b32 v8, 16, v2", "v_lshl_add_u32 v8, v3, 4, v8", "v_lshlrev_b32 v9, 0, v3", "v_add_u32 v9, 32, v9",
                       f"v_cndmask_b32 v8, v8, v9, {s(sLM,2)}", f"v_lshl_add_u32 v90, v8, 5, {s(sT1)}",
                       f"s_xor_b32 {s(sT1)}, {s(sWAVE)}, 2\ns_mul_i32 {s(sT1)}, {s(sT1)}, 1280\ns_add_u32 {s(sT1)}, {s(sT1)}, {SC_KVX}\nv_add_u32 v92, {s(sT1)}, v14",
                       "v_lshl_add_u32 v8, v3, 4, v2", f"v_cndmask_b32 v8, v9, v8, {s(sLM,2)}", f"v_lshl_add_u32 v91, v8, 5, {s(sT1)}"])
        q += self.its([f"s_lshl_b32 {s(sT1)}, {s(sWAVE)}, 4\ns_add_u32 {s(sT1)}, {s(sT1)}, {SC_FLAG}\nv_mov_b32 v96, {s(sT1)}"])
        q += self.q_kv_pre()
        self.mpass("A", 0, q, o["bud0"])
        self.flush(q + ["NEXT"] + self.q_fixup("A", 0) + self.q_fixup("A", 1) + self.q_kv()); self.lg.q = []
        sREC, sFL = 26, 27
        h0 = self.q_h0()
        GA = G.ACC; KP, ZP = G.ACC + 40, G.ACC + 44
        q = [("GI", o["fmA"])] + self.q_kvflag() + self.q_p2setup() + h0[:2]
        q += self.its(["v_mul_u32_u24 v97, 640, v3", "v_lshl_add_u32 v97, v2, 4, v97",
                       "v_and_b32 v8, 7, v5", "v_lshl_add_u32 v8, v8, 1, v3", "v_mul_u32_u24 v98, 640, v8", "v_and_b32 v9, 1, v4", "v_lshl_add_u32 v98, v9, 6, v98", "v_add_u32 v98, 512, v98",
                       f"s_xor_b32 {s(sT1)}, {s(sWAVE)}, 2\ns_mul_i32 {s(sT1)}, {s(sT1)}, 1280\ns_add_u32 {s(sT1)}, {s(sT1)}, {SC_KVX}\nv_lshl_add_u32 v8, v3, 3, {s(sT1)}",
                       "v_lshl_add_u32 v90, v2, 4, v8", "v_lshl_add_u32 v91, v9, 6, v8", "v_add_u32 v91, 512, v91"])
        L = self.lab("kf"); R = self.lab("kfok")
        q += [("GI", o["kfs"]), self.vmi(self.fload(11, G.vGP, sFL), "kf")]
        kq = [("GI", o["kfc"]), self.vmw("kf"),
              (0, lambda: a(f"v_cmp_ne_u32 vcc, {s(sNONCE)}, v11\ns_cbranch_vccnz {L}\n{R}:")), self.tsi("cA_poll")]
        self.tail.append(f"{L}:\n" + self.poll_text(G.vGP, 11, sFL, self.lab("kfx"), self.lab("kfy")) + f"\ns_branch {R}")
        def gl(k):
            if k == 8: a(f"buffer_load_dwordx4 {v(GA+32,4)}, v98, {s(sWS,4)}, {s(sREC)} offen sc1")
            else: a((f"s_add_u32 s3, {s(sREC)}, {k*1280}\n" if k % 4 == 0 else "") + f"buffer_load_dwordx4 {v(GA+4*k,4)}, v97, {s(sWS,4)}, s3 offen offset:{1280*(k%4)} sc1")
            vm.issue(("ga", k))
        kq += [(0, lambda k=k: gl(k)) for k in (8, 0, 1, 2, 3, 4, 5, 6, 7)]
        if o["kpos"] == 0: q += kq
        self.mpass("A", 1, q, o["budA"])
        self.ts("c_main")
        pq = self.q_phiq(); h = (len(pq) - 1) // 4 * o["pqh"]
        self.flush(q + ["NEXT"] + self.q_fixup("A", 2))
        if o["kpos"] == 2: self.flush(pq); pq = []
        if o["kpos"]: self.flush(kq)
        self.flush(h0[3:])
        a(self.ho_base(sREC, 43))
        a(f"s_lshl_b32 {s(sT1)}, {s(sI)}, 1\ns_add_u32 {s(sT1)}, {s(sT1)}, {s(sRH)}\ns_lshl_b32 {s(sFL)}, {s(sT1)}, {FS+4}\ns_lshl_b32 {s(sT1)}, {s(sT0)}, {FS}\ns_add_u32 {s(sFL)}, {s(sFL)}, {s(sT1)}\ns_add_u32 {s(sFL)}, {s(sFL)}, {WS_FO}")
        a(f"s_lshl_b32 {s(sT2)}, {s(sRH)}, 16\ns_xor_b32 {s(sT3)}, {s(sT2)}, 65536")
        a(f"s_add_u32 {s(sT2)}, {s(sT2)}, {s(sREC)}\ns_add_u32 {s(sT3)}, {s(sT3)}, {s(sREC)}")
        a("v_lshlrev_b32 v10, 4, v1\nv_mov_b32 v13, 1")
        self.flush(pq[:h])
        vm.wait(("ga", 8)); a(f"v_mfma_f32_16x16x32_bf16 {v(ZP,4)}, {v(G.IDN,4)}, {v(GA+32,4)}, 0")
        for k in range(8):
            vm.wait(("ga", k)); a(f"v_mfma_f32_16x16x32_bf16 {v(KP,4)}, {v(G.IDN,4)}, {v(GA+4*k,4)}, {v(KP,4) if k else 0}")
        self.ts("cA_gath")
        for m in ("quad_perm:[1,0,3,2]", "quad_perm:[2,3,0,1]", "row_half_mirror"):
            for j in range(4): a(f"v_add_f32_dpp {v(ZP+j)}, {v(ZP+j)}, {v(ZP+j)} {m} row_mask:0xf bank_mask:0xf")
        for r_ in (KP, ZP):
            for j in range(2): a(f"v_cvt_pk_bf16_f32 {v(r_+j)}, {v(r_+2*j)}, {v(r_+2*j+1)}")
        a(f"ds_write_b64 v90, {v(KP,2)}\nds_write_b64 v91, {v(ZP,2)}\nds_write_b32 v96, v13 offset:4")
        self.flush(pq[h:])
        F = [T + 8, T + 12]; t = T; PV = G.XS
        self.pair_spin([f"ds_read_b128 {v(F[0],4)}, v92", f"ds_read_b128 {v(F[1],4)}, v93"], off=4)
        O = [G.ACC + 16*k for k in range(4)]
        for hh in range(2):
            for rb in range(2): a(f"v_mfma_f32_32x32x16_bf16 {v(O[2*rb+hh],16)}, {v(F[hh],4)}, {v(G.acc(2,rb)+8*hh,4)}, 0")
        if not o["ofirst"]: self.p2_pre()
        n = 0
        for hh in range(2):
            for rb in range(2):
                o = O[2*rb+hh]; P = PV + 4*(n & 1); n += 1
                a(f"v_add_f32 {v(t)}, {fl(1e-6)}, {v(o+8)}\nv_rcp_f32 {v(t)}, {v(t)}")
                a(f"s_add_u32 {s(sT4)}, {s(sT2+hh)}, {rb*131072}")
                for j in range(8): a(f"v_mul_f32 {v(o+j)}, {v(t)}, {v(o+j)}")
                for j in range(4): a(f"v_cvt_pk_bf16_f32 {v(P+j)}, {v(o+2*j)}, {v(o+2*j+1)}")
                a(f"buffer_store_dwordx4 {v(P,4)}, v10, {s(sWS,4)}, {s(sT4)} offen sc1"); vm.issue("o")
        self.ts("cA_o")
        if self.o["ofirst"] and self.stop != "p1":
            self.p2_pre(); vm.wait("o"); self.flush(self.q_flag(sFL)); self.ts("cA_oflag")
            a(f"s_lshl_b32 {s(sT0)}, s2, 2\ns_add_u32 {s(sT0)}, {s(sT0)}, {s(sWAVE)}\ns_lshl_b32 {s(sT0)}, {s(sT0)}, 7\ns_add_u32 {s(sFL)}, {s(sT0)}, {WS_DUM}")
        if self.stop == "p1": vm.wait("o"); self.flush(self.q_flag(sFL))

    Y, S2 = 160, 192
    AR = 16; D = 8
    BF = 48
    vBA = 144
    vA, vXC, vXP, vOUT = 150, 151, 152, 153
    vPW, vDW, vPF, vMF, vGP, vCK, vGF, vLV = 154, 155, 156, 157, 0, 159, 158, 9
    vXR, vGB = 124, 10
    XR = 76
    def q_p2setup(self):
        G = self; out = []
        def a(t):
            cur = []
            for ln in t.split("\n"):
                cur.append(ln)
                if ln.startswith("v_"): out.append(self.it("\n".join(cur))); cur = []
            if cur: out.append(self.it("\n".join(cur)))
        for d, ptr, size in ((sOUT, 20, 2097152), (sB2, 18, 1024)): a(f"s_mov_b32 {s(d)}, {s(ptr)}\ns_mov_b32 {s(d+1)}, {s(ptr+1)}"); a(f"s_mov_b32 {s(d+2)}, {size}\ns_mov_b32 {s(d+3)}, 0x00020000")
        sA = sKST
        a(f"s_lshl_b32 {s(sP1)}, {s(sI)}, 1\ns_add_u32 {s(sP1)}, {s(sP1)}, {s(sHF)}\ns_lshl_b32 {s(sP2)}, {s(sP1)}, 2\ns_add_u32 {s(sP2)}, {s(sP2)}, {s(sWAVE)}\ns_lshl_b32 {s(sA)}, {s(sP2)}, 16")
        if self.o["r2"]:
            a(self.rot2(17, 18, sP2)); a(f"s_lshl_b32 s17, s17, 11\ns_lshl_b32 s18, s18, 11\ns_mov_b32 s16, {s(sA)}")
        a(f"v_lshlrev_b32 {v(G.vA)}, 4, v1")
        a(f"v_lshrrev_b32 v8, 2, v5\nv_lshl_add_u32 v8, v3, 2, v8\ns_lshl_b32 {s(sP2)}, {s(sCH)}, 4\nv_add_u32 v8, {s(sP2)}, v8\nv_lshlrev_b32 v8, 7, v8")
        a("v_and_b32 v9, 1, v5\nv_lshl_add_u32 v8, v9, 3, v8")
        a("v_and_b32 v9, 1, v4\nv_lshlrev_b32 v9, 1, v9\nv_bfe_u32 v0, v5, 1, 1\nv_add_u32 v9, v9, v0\nv_lshrrev_b32 v0, 3, v5\nv_lshlrev_b32 v0, 2, v0\nv_xor_b32 v9, v9, v0")
        a(f"s_lshl_b32 {s(sP2)}, {s(sCH)}, 2\nv_xor_b32 v9, {s(sP2)}, v9")
        a(f"v_lshl_add_u32 {v(G.vBA)}, v9, 4, v8\nv_xor_b32 v9, 4, v9\nv_lshl_add_u32 {v(G.vBA+1)}, v9, 4, v8")
        for w in (1, 2):
            for cb in range(2): a(f"v_add_u32 {v(G.vBA+2*w+cb)}, {65536*w}, {v(G.vBA+cb)}")
        a(f"s_lshl_b32 {s(sP2)}, {s(sWAVE)}, 12\ns_add_u32 {s(sP2)}, {s(sP2)}, {XCH_Y}\nv_add_u32 {v(G.vXC)}, {s(sP2)}, {v(G.vA)}")
        a(f"s_xor_b32 {s(sP2)}, {s(sWAVE)}, 1\ns_lshl_b32 {s(sP2)}, {s(sP2)}, 12\ns_add_u32 {s(sP2)}, {s(sP2)}, {XCH_Y}\nv_add_u32 {v(G.vXP)}, {s(sP2)}, {v(G.vA)}")
        a(f"v_and_b32 v8, 3, v1\nv_lshlrev_b32 v8, 2, v8\nv_add_u32 {v(G.vPW)}, {SC_PROG}, v8\nv_lshlrev_b32 {v(G.vGP)}, {FS}, v5")
        a(f"s_lshl_b32 {s(sP2)}, {s(sWAVE)}, 2\ns_add_u32 {s(sP2)}, {s(sP2)}, {SC_PROG+16}\nv_mov_b32 {v(G.vDW)}, {s(sP2)}")
        a(f"s_lshl_b32 {s(sP2)}, {s(sWAVE)}, 4\ns_add_u32 {s(sP2)}, {s(sP2)}, {SC_FLAG}\nv_mov_b32 {v(G.vMF)}, {s(sP2)}\ns_xor_b32 {s(sP2)}, {s(sP2)}, 16\nv_mov_b32 {v(G.vPF)}, {s(sP2)}")
        a(f"s_lshl_b32 {s(sC0+1)}, {s(sP1)}, {FS+4}\ns_add_u32 {s(sC0+1)}, {s(sC0+1)}, {WS_FO}")
        gs = [int(c) for c in str(self.o["grp"])]; g0 = 0
        a(f"s_mov_b32 {s(sP3)}, {s(sCT)}")
        for n in gs:
            if n > 1:
                a(f"s_lshr_b32 {s(sP2)}, s2, 6\ns_mul_i32 {s(sP2)}, {s(sP2)}, {max(1, (n+1)//4)}\ns_add_u32 {s(sP2)}, {s(sP2)}, {s(sCT)}")
                a(f"s_mul_i32 {s(sP4)}, {s(sP2)}, {-(-256//n)}\ns_lshr_b32 {s(sP4)}, {s(sP4)}, 8\ns_mul_i32 {s(sP4)}, {s(sP4)}, {n}\ns_sub_u32 {s(sP2)}, {s(sP2)}, {s(sP4)}")
                a(f"s_sub_u32 {s(sP2)}, {s(sCT)}, {s(sP2)}\ns_add_u32 {s(sP4)}, {s(sP2)}, {n}\ns_cmp_lt_i32 {s(sP2)}, {g0}\ns_cselect_b32 {s(sP2)}, {s(sP4)}, {s(sP2)}")
                a(f"s_sub_u32 {s(sP4)}, {s(sCT)}, {g0}\ns_cmp_lt_u32 {s(sP4)}, {n}\ns_cselect_b32 {s(sP3)}, {s(sP2)}, {s(sP3)}")
            g0 += n
        a(f"s_lshl_b32 {s(sP3)}, {s(sP3)}, 2\ns_lshl_b32 {s(sP2)}, {s(sHF)}, 1\ns_add_u32 {s(sP3)}, {s(sP3)}, {s(sP2)}\ns_add_u32 {s(sP3)}, {s(sP3)}, {s(sRH)}\ns_lshl_b32 {s(sP3)}, {s(sP3)}, 12")
        a(f"v_bfe_u32 v8, v1, 1, 3\ns_lshl_b32 {s(sP2)}, {s(sCH)}, 2\nv_xor_b32 v8, {s(sP2)}, v8\nv_lshlrev_b32 v8, 4, v8\nv_lshl_add_u32 v8, v3, 3, v8")
        a(f"v_lshl_add_u32 v8, v2, 7, v8\nv_add_u32 {v(G.vXR)}, {s(sP3)}, v8")
        a(f"s_lshl_b32 {s(sP1)}, {s(sP1)}, 1\ns_add_u32 {s(sP1)}, {s(sP1)}, {s(sRH)}\ns_lshl_b32 {s(sP1)}, {s(sP1)}, 15")
        a(f"s_lshl_b32 {s(sP2)}, {s(sCT)}, 1\ns_add_u32 {s(sP2)}, {s(sP2)}, {s(sCH)}\ns_lshl_b32 {s(sP2)}, {s(sP2)}, 6\ns_add_u32 {s(sP1)}, {s(sP1)}, {s(sP2)}")
        a(f"v_lshl_add_u32 v8, v2, 10, {s(sP1)}\nv_lshl_add_u32 {v(G.vOUT)}, v3, 4, v8\ns_mov_b32 {s(sC0+2)}, {s(sP2)}")
        return out

    def phase2(self):
        a = self.a; G = self; D = self.o['D']; sA = sKST
        RING = G.RING
        a.label("L_phase2")
        vm = Cnt(a, "vmcnt", 63); lg = Cnt(a, "lgkmcnt", 15)
        aload = lambda sig: self.aload(vm, sig)
        def breads(sig):
            if sig >= 59: return []
            base = b_lds(sig); w = base >> 16; off = base & 0xffff
            return [f"ds_read_b64_tr_b16 {v(G.BF+8*(sig%3)+4*cb+2*q,2)}, {v(G.vBA+2*w+cb)} offset:{off+1024*q}" for cb in range(2) for q in range(2)]
        def ds(x, tag): a(x); lg.issue(tag)
        def lcheck(vaddr, off, lv, tag, extra=()):
            L = self.lab("lc"); R = self.lab("lcok"); X = self.lab("lcx")
            lg.wait(tag)
            a(f"v_cmp_gt_u32 vcc, {lv}, {v(G.vCK)}\ns_cbranch_vccnz {L}")
            a.label(R)
            ex = "".join(e + "\n" for e in extra)
            self.tail.append(f"""{L}:
s_mov_b32 {s(sSPIN)}, 0
{X}:
ds_read_b32 {v(G.vCK)}, {v(vaddr)} offset:{off}
{ex}s_add_u32 {s(sSPIN)}, {s(sSPIN)}, 1
s_cmp_gt_u32 {s(sSPIN)}, {SPIN_MAX*8}
s_waitcnt lgkmcnt(0)
s_cbranch_scc1 {R}
v_cmp_gt_u32 vcc, {lv}, {v(G.vCK)}
s_cbranch_vccnz {X}
s_branch {R}""")
        def lread(vaddr, off, tag): ds(f"ds_read_b32 {v(G.vCK)}, {v(vaddr)} offset:{off}", tag)
        def lsig(vaddr, off, lv): a(f"v_mov_b32 {v(G.vLV)}, {lv}"); ds(f"ds_write_b32 {v(vaddr)}, {v(G.vLV)} offset:{off}", "sig")
        def gload(soff, r, tag): a(self.fload(r, G.vGP, soff)); vm.issue(tag)
        gcheck = lambda soff: self.gcheck(vm, soff, bool(self.o['kearly']))
        self.ts("c_p0"); assert self.o["g2h"] < 4
        vm.q = [("A", k) for k in range(8)] + ["gf"] * bool(self.o["kearly"]) + ["pub"] * (4 - self.o["g2h"])
        lread(G.vPW, 0, "ck")
        a(f"v_lshl_add_u32 v8, v2, 1, {s(sC0+2)}\nv_mov_b32 v11, {s(sNONCE)}")
        assert D == 8
        for sig in range(8, D): aload(sig)
        lcheck(G.vPW, 0, 1, "ck")
        need_prog = {6: 2, 21: 3, 36: 4, 43: 5, 53: 6}
        done_at = {6: 1, 16: 2, 20: 3, 30: 4}
        gat = {15 - D: sC0, 29 - D: sC0, 43 - D: sC0 + 1}
        yr = [f"ds_read_b128 {v(96+4*q,4)}, {v(G.vXP)} offset:{1024*q}" for q in range(4)]
        for sig in range(2):
            for r in breads(sig): ds(r, ("B", sig))
        T = 96; YK = 112; BB = 128; XX = 240
        work = []
        for q in range(8):
            work += [f"v_lshlrev_b32 {v(XX+2*q)}, 16, {v(G.XR+q)}", f"v_and_b32 {v(XX+2*q+1)}, 0xffff0000, {v(G.XR+q)}"]
        work += ["v_cmp_gt_u32 vcc, 32, v1\nv_mov_b32 v12, 0x3f80", f"v_cndmask_b32 {v(BB+4)}, 0, v12, vcc"] + [f"v_mov_b32 {v(BB+k)}, 0" for k in (1, 2, 3, 5, 6, 7)]
        gw = []
        for half in range(2):
            o = 8 * half
            gw += [f"v_add_f32 {v(YK+o+j)}, {v(T+o+j)}, {v(G.Y+o+j)}" for j in range(8)]
            gw += [f"v_mul_f32 {v(T+o+j)}, {fl(-1.4426950408889634)}, {v(YK+o+j)}" for j in range(8)]
            gw += [f"v_exp_f32 {v(T+o+j)}, {v(T+o+j)}" for j in range(8)]
            gw += [f"v_add_f32 {v(T+o+j)}, 1.0, {v(T+o+j)}" for j in range(8)]
            gw += [f"v_rcp_f32 {v(T+o+j)}, {v(T+o+j)}" for j in range(8)]
            gw += [f"v_mul_f32 {v(YK+o+j)}, {v(YK+o+j)}, {v(T+o+j)}" for j in range(8)]
        held = []
        for sig in range(59):
            acc = G.Y if sig < 43 else G.S2; first = sig in (0, 43)
            lg.wait(("B", sig)); vm.wait(("A", sig))
            A = v(RING[sig % D], 4)
            m = [f"v_mfma_f32_32x32x16_bf16 {v(acc+16*cb,16)}, {v(G.BF+8*(sig%3)+4*cb,4)}, {A}, {0 if first else v(acc+16*cb,16)}" for cb in range(2)]
            self.ts(f"c_s{sig}")
            if sig >= 56 and self.o["tl"]:
                for r in breads(sig + 2): ds(r, ("B", sig + 2))
                held.append((m[0], gw[8*(sig-47): 8*(sig-46)])); a(m[1]); continue
            a(m[0])
            if sig in done_at: lsig(G.vDW, 0, done_at[sig])
            if sig in need_prog: lcheck(G.vPW, 0, need_prog[sig], "ck")
            if sig == 44:
                lcheck(G.vPW, 16, 4, "ck")
                for q in range(4): ds(f"ds_write_b128 {v(G.vXC)}, {v(G.Y+16+4*q,4)} offset:{1024*q}", "yw")
                lsig(G.vMF, 8, 1)
            if sig == 47: lcheck(G.vPF, 8, 1, "yr", yr)
            rd = breads(sig + 2)
            for r in rd[:2]: ds(r, ("B", sig + 2))
            fill = []
            if 9 <= sig <= 14: fill = work[4*(sig-9): 4*(sig-8)]
            if sig == 16: fill = ["s_nop 0", f"v_mfma_f32_32x32x16_bf16 {v(G.Y,16)}, {v(BB,4)}, {v(BB+4,4)}, {v(G.Y,16)}"]
            if 47 <= sig <= 58: fill = gw[8*(sig-47): 8*(sig-46)]
            h = len(fill) // 2
            for f in fill[:h]: a(f)
            a(m[1])
            for r in rd[2:]: ds(r, ("B", sig + 2))
            if sig + 1 in need_prog: lread(G.vPW, 0, "ck")
            if sig == 43: lread(G.vPW, 16, "ck")
            if sig == 45:
                lread(G.vPF, 8, "yr")
                for r in yr: ds(r, "yr")
            if sig == self.o["pf"]:
                vm.wait("pub"); a(f"buffer_store_dword v11, {v(G.vFL)}, {s(sWS,4)}, s27 offen sc1"); vm.issue("f"); self.ts("c_pflag")
            if sig in gat: self.ts(f"c_gp{sig}"); gcheck(gat[sig]); self.ts(f"c_g{sig}")
            aload(sig + D)
            if sig == 0: a(f"buffer_load_ushort {v(BB)}, v8, {s(sB2,4)}, 0 offen"); vm.issue("x")
            if sig == 15: vm.wait("x")
            ke = self.o["kearly"] or self.o["kpoll"]
            if self.o["kearly"] and sig + self.o["kpoll"] in gat: gload(gat[sig + self.o["kpoll"]], G.vGB, "gb")
            if sig + ke in gat and (sig > 7 or not self.o["kearly"]):
                so = gat[sig + ke]
                if so == sC0: a(f"s_add_u32 {s(sC0)}, {s(sC0)}, {FG}")
                gload(so, G.vGF, "gf")
            for f in fill[h:]: a(f)
        for m0, f in held[:2]:
            a(m0)
            for x in f: a(x)
        self.ts("c_loop")
        for q in range(4): ds(f"ds_write_b128 {v(G.vXC)}, {v(G.S2+16+4*q,4)} offset:{16384+1024*q}", "sw")
        lsig(G.vMF, 12, 1)
        for m0, f in held[2:]:
            a(m0)
            for x in f: a(x)
        sr = [f"ds_read_b128 {v(T+4*q,4)}, {v(G.vXP)} offset:{16384+1024*q}" for q in range(4)]
        lread(G.vPF, 12, "sr")
        for r in sr: ds(r, "sr")
        for j in range(0, 16, 2): a(f"v_pk_fma_f32 {v(XX+j,2)}, {v(G.S2+j,2)}, {v(YK+j,2)}, {v(XX+j,2)}")
        lcheck(G.vPF, 12, 1, "sr", sr)
        for half in range(2):
            o = 8 * half; P = BB + 8 + 4 * half
            for j in range(0, 8, 2): a(f"v_pk_fma_f32 {v(XX+o+j,2)}, {v(T+o+j,2)}, {v(YK+o+j,2)}, {v(XX+o+j,2)}")
            for j in range(4): a(f"v_cvt_pk_bf16_f32 {v(P+j)}, {v(XX+o+2*j)}, {v(XX+o+2*j+1)}")
            a(f"v_permlane32_swap_b32 {v(P)}, {v(P+2)}\nv_permlane32_swap_b32 {v(P+1)}, {v(P+3)}")
            a(f"buffer_store_dwordx4 {v(P,4)}, {v(G.vOUT)}, {s(sOUT,4)}, 0 offen offset:{32*half} {['', 'sc1', 'nt', 'sc0 sc1', 'sc1 nt'][self.o['osc']]}")
        self.ts("c_end")
        self.ts_flush()

    def build(self):
        a = self.a
        self.prologue()
        self.compute_setup()
        self.typeA()
        if self.stop == "p1": self.ts_flush(); a("s_endpgm")
        else: a("s_branch L_phase2")
        a.label("L_typeB")
        self.typeB()
        if self.stop == "p1": self.ts_flush(); a("s_endpgm")
        else: self.phase2()
        a.label("L_end")
        a("s_endpgm")
        for t in self.tail: a(t)
        a("L_last:\ns_endpgm")
        body = a.finalize(verbose=True)
        head = open("cdna_kernels/" + KN[:-7] + ".s.ref").read().split("; Override launch")[0]
        return head + f"""; @launch grid=(256,1,1) block=(512,1,1) lds={LDS_SIZE}
.amdgcn_target "amdgcn-amd-amdhsa--gfx950"
.text
.globl {KN}
.p2align 8
.type {KN},@function
{KN}:
{body}
.section .rodata,"a"
.p2align 6
.amdhsa_kernel {KN}
  .amdhsa_next_free_vgpr 256
  .amdhsa_next_free_sgpr 102
  .amdhsa_accum_offset 256
  .amdhsa_group_segment_fixed_size 0
  .amdhsa_kernarg_size 88
  .amdhsa_user_sgpr_count 2
  .amdhsa_user_sgpr_kernarg_segment_ptr 1
  .amdhsa_system_sgpr_workgroup_id_x 1
.end_amdhsa_kernel
"""

if __name__ == "__main__":
    import argparse
    ap = argparse.ArgumentParser()
    ap.add_argument("out"); ap.add_argument("--diag", nargs="?", const="rt"); ap.add_argument("--stop"); ap.add_argument("--dbgout", action="store_true"); ap.add_argument("--marks"); ap.add_argument("--opts"); ap.add_argument("--probe")
    x = ap.parse_args()
    open(x.out, "w").write(Gen(diag=x.diag, stop=x.stop, dbgout=x.dbgout, marks=x.marks, opts=x.opts, probe=x.probe).build())
```

```python
import sys, struct
from asmlib import Asm, v, s

KN = "recurrent_scan__linear_attn_block__dense_activation_gelu__prompt_kernel"
def f2u(x): return struct.unpack("<I", struct.pack("<f", x))[0]
def hx(x): return f"0x{x & 0xffffffff:08x}"
def fl(x): return hx(f2u(x))

WS_HO = 0
WS_KV = 8 << 20
WS_ST = 9 << 20
FS = 7
FG = 16 << FS
WS_FH = 10 << 20
WS_FO = WS_FH + 96 * FG
WS_FK = WS_FO + 32 * FG
WS_DUM = 11 << 20
WS_TS = 12 << 20
WS_SIZE = 268435456
OOB = 0x80000000
WR = 131072
SCR = 155648
SC_NONCE = SCR
SC_FLAG = SCR + 64
SC_PROG = SC_FLAG + 64
SC_CS = SCR + 256
SC_R = SCR + 2048
SC_KVX = SCR + 3072
LDS_SIZE = 163840
NSLOT = 38
def b_lds(sig): return (sig % NSLOT) * 4096
XCH_Y = 21 * 4096
XT = 29 * 4096
ORDER = []
for p in range(3):
    for g in range(8):
        for ch in range(2):
            f = 6 * g + 2 * p + ch
            if f < 43: ORDER.append(("w2", f))
ORDER += [("wo", f) for f in range(16)]
assert len(ORDER) == 59
SIG0 = [0, 15, 29]
def pos_of(sig):
    st = 3 if sig >= 43 else 2 if sig >= 29 else 1 if sig >= 15 else 0
    j = sig - (SIG0 + [43])[st]
    return st, j >> 1, j & 1
def hoff(sig, lay=0):
    if not lay: return sig * 1024
    par = int(sig >= 29); t = sig - 29 * par
    return (t >> 3) * 16384 + par * 8192 + (t & 7) * 1024
SPIN_MAX = 1 << 18

sX, sW, sW2, sWO, sWS, sDBG, sOUT, sB1, sB2 = 28, 32, 36, 40, 44, 48, 52, 56, 60
sWAVE, sI, sG, sTYPE, sHF, sCT, sKST, sRH, sCH, sNONCE, sSTR = 64, 65, 66, 67, 68, 69, 70, 71, 72, 73, 74
sT0, sT1, sT2, sT3, sT4, sT5 = 75, 76, 77, 78, 79, 80
sC0 = 81
sSPIN = 84
sM = 86
sLM = 60
sWD = 10
sP1, sP2, sP3, sP4 = 12, 13, 14, 15
sWB = 56
sTS = 88

class Cnt:
    def __init__(self, a, name, mx): self.a, self.name, self.mx, self.q = a, name, mx, []
    def issue(self, tag): self.q.append(tag)
    def wait(self, tag):
        if tag not in self.q: return
        k = len(self.q) - 1 - max(i for i, t in enumerate(self.q) if t == tag)
        k = min(k, self.mx)
        self.a(f"s_waitcnt {self.name}({k})")
        self.q = self.q[len(self.q) - k:] if k else []
    def wait_all(self):
        self.a(f"s_waitcnt {self.name}(0)"); self.q = []

class Gen:
    def __init__(self, diag=False, stop=None, dbgout=False, marks=None, opts=None, probe=None):
        self.probe = tuple(int(x) for x in probe.split(',')) if probe else None
        self.o = dict(cpf=1, wt=3, xe=1, w2t=4, t1=14, t2=1, pk=1, kpoll=3, D=8, asc=1, xl=1, mp=1, seg=0, fsc=0,
                      bud0=24, bud2=64, budA=24, nE=33, nL=0, pe0=14, nEA=33, nLA=12, pe0A=15, burst=10, fm=12, fmA=3, ga=20, gc=26, thr=0, fl=32, pre=1, chk=2, pf=4, g2h=3, lay=0, kfs=13, kfc=13, pqh=3, w2s=0, ld=1, t3=0, grp=1223, osc=0, kearly=0, psc=0, pw=0, r2=0, r2m=2, sw=0, sw0=1, sw1=9, swn=4, slp=0, prio=0, m0n=4, mint=3, tl=1, kpos=1, ofirst=0, bk=16, latp=-1, psh=2)
        for kv in (opts or '').split(','):
            if kv: k, x = kv.split('='); assert k in self.o, k; self.o[k] = int(x)
        self.dbgout = dbgout; self.verbose = True
        self.marks = {"start": 0}
        for grp in (marks or "c_bar0,c_main,cA_q|cB_gelu,c_p0,c_loop,c_end;l_bar0,l_bar8,l_bland,l_p0,l_p3,l_end").split(";"):
            for k, nm in enumerate(grp.split(",")):
                for x in nm.split("|"): self.marks[x] = k + 1
        self.a = Asm(); self.diag = diag; self.stop = stop; self.uid = 0; self.tail = []
    def lab(self, n): self.uid += 1; return f"L{n}_{self.uid}"
    def ts(self, name):
        if not self.diag or name not in self.marks: return
        k = self.marks[name]
        if self.diag == "both":
            if k == 0: self.a(f"s_memrealtime {s(sTS, 2)}")
            elif k <= 3: self.a(f"s_memrealtime {s(sTS + 2 * k, 2)}\ns_memtime {s(sTS + 2 * k + 6, 2)}")
            return
        self.a(f"{'s_memtime' if self.diag == 'cyc' else 's_memrealtime'} {s(sTS + 2 * k, 2)}")
    def ts_flush(self):
        if not self.diag: return
        a = self.a
        if self.probe:
            pa, pb = self.probe
            L = self.lab("probe"); X = self.lab("probex")
            op = 's_memtime' if self.diag == 'cyc' else 's_memrealtime'
            a(f"s_cmp_ge_u32 {s(sWAVE)}, 4\ns_cbranch_scc1 {X}")
            a(f"{op} {s(sM,2)}\ns_waitcnt lgkmcnt(0)")
            if pa < 0: a(f"s_mov_b32 {s(sT0)}, {pb}")
            else: a(f"s_sub_u32 {s(sT0)}, {s(sTS+2*pb)}, {s(sTS+2*pa)}\ns_lshl_b32 {s(sT0)}, {s(sT0)}, {self.o['psh']}")
            a(f"s_min_u32 {s(sT0)}, {s(sT0)}, 400000\ns_mov_b32 {s(sT1)}, {s(sM)}")
            a.label(L)
            a(f"{op} {s(sM,2)}\ns_waitcnt lgkmcnt(0)\ns_sub_u32 {s(sT2)}, {s(sM)}, {s(sT1)}\ns_cmp_lt_u32 {s(sT2)}, {s(sT0)}\ns_cbranch_scc1 {L}")
            a.label(X)
            return
        a("s_waitcnt lgkmcnt(0)")
        a(f"s_lshl_b32 {s(sT0)}, s2, 3\ns_add_u32 {s(sT0)}, {s(sT0)}, {s(sWAVE)}\ns_lshl_b32 {s(sT0)}, {s(sT0)}, 5\ns_add_u32 {s(sT0)}, {s(sT0)}, {WS_TS}")
        for k in range(7): a(f"v_mov_b32 v{8+k}, {s(sTS+2*k)}")
        a("v_mov_b32 v15, 0\nv_mov_b32 v7, 0")
        a("s_mov_b64 exec, 1")
        a(f"buffer_store_dwordx4 v[8:11], v7, {s(sWS,4)}, {s(sT0)} offen")
        a(f"buffer_store_dwordx4 v[12:15], v7, {s(sWS,4)}, {s(sT0)} offen offset:16")
        if self.dbgout:
            L = self.lab("dbgo")
            self.srd(sDBG, 22, 256)
            a(f"s_cmp_lg_u32 {s(sWAVE)}, 0\ns_cbranch_scc1 {L}\ns_and_b32 {s(sT0)}, s2, 0xdf\ns_cmp_lg_u32 {s(sT0)}, 0\ns_cbranch_scc1 {L}")
            for k in range(6, -1, -1): a(f"v_subrev_u32 v{8+k}, {s(sTS)}, v{8+k}")
            a(f"s_add_u32 {s(sT0)}, s2, 4")
            a(f"buffer_store_dwordx4 v[9:12], v7, {s(sDBG,4)}, {s(sT0)} offen".replace("v[9:12]", "v[8:11]"))
            a(f"buffer_store_dwordx3 v[12:14], v7, {s(sDBG,4)}, {s(sT0)} offen offset:16")
            a.label(L)
        a("s_mov_b64 exec, -1")

    def srd(self, d, ptr, size):
        self.a(f"s_mov_b32 {s(d)}, {s(ptr)}\ns_mov_b32 {s(d+1)}, {s(ptr+1)}\ns_mov_b32 {s(d+2)}, {size}\ns_mov_b32 {s(d+3)}, 0x00020000")

    def rot2(self, r7, r8, t):
        return (f"s_lshr_b32 {s(r8)}, s2, 6\ns_mul_i32 {s(r8)}, {s(r8)}, {self.o['r2m']}\ns_add_u32 {s(r8)}, {s(r8)}, {s(sCT)}\n"
                f"s_mul_i32 {s(t)}, {s(r8)}, 37\ns_lshr_b32 {s(t)}, {s(t)}, 8\ns_mul_i32 {s(t)}, {s(t)}, 7\ns_sub_u32 {s(r7)}, {s(r8)}, {s(t)}\ns_and_b32 {s(r8)}, {s(r8)}, 7")
    def fload(self, r, va, so):
        k = self.o["psc"]
        if k == 4: return f"v_mov_b32 {v(r)}, 0\nbuffer_atomic_or {v(r)}, {v(va)}, {s(sWS,4)}, {s(so)} offen sc0 sc1"
        return f"buffer_load_dword {v(r)}, {v(va)}, {s(sWS,4)}, {s(so)} offen {['sc1', 'sc0 sc1', 'sc1 nt', 'sc0 sc1 nt'][k]}"
    def poll_text(self, vaddr, vtmp, soff, L, X):
        if self.o["mp"]:
            return (f"s_mov_b32 {s(sSPIN)}, 0\ns_mov_b64 exec, 0xffff\n{L}:\n"
                    f"{self.fload(vtmp, vaddr, soff)}\n"
                    f"s_add_u32 {s(sSPIN)}, {s(sSPIN)}, 1\ns_cmp_gt_u32 {s(sSPIN)}, {SPIN_MAX}\ns_waitcnt vmcnt(0)\ns_cbranch_scc1 {X}\n"
                    f"v_cmp_ne_u32 vcc, {s(sNONCE)}, {v(vtmp)}\ns_and_b64 exec, exec, vcc\ns_cbranch_execnz {L}\n{X}:\ns_mov_b64 exec, -1")
        return (f"s_mov_b32 {s(sSPIN)}, 0\n{L}:\n"
                f"{self.fload(vtmp, vaddr, soff)}\n"
                f"s_add_u32 {s(sSPIN)}, {s(sSPIN)}, 1\ns_cmp_gt_u32 {s(sSPIN)}, {SPIN_MAX}\ns_waitcnt vmcnt(0)\ns_cbranch_scc1 {X}\n"
                f"v_cmp_ne_u32 vcc, {s(sNONCE)}, {v(vtmp)}\ns_cbranch_vccnz {L}\n{X}:")
    def poll(self, vaddr, vtmp, soff):
        self.a(self.poll_text(vaddr, vtmp, soff, self.lab("poll"), self.lab("pollx")))

    def prologue(self):
        a = self.a
        a("s_cmp_ge_u32 s2, 256\ns_cbranch_scc1 L_end")
        a("s_load_dwordx16 s[4:19], s[0:1], 0\ns_load_dwordx4 s[20:23], s[0:1], 64\ns_load_dwordx2 s[24:25], s[0:1], 80")
        if self.diag:
            for k in range(1, 7): a(f"s_mov_b32 {s(sTS+2*k)}, 0")
        self.ts("start")
        if self.o["cpf"]:
            a(f"s_getpc_b64 s[26:27]\nL_pc:\nv_lshlrev_b32 v3, 7, v0\nv_min_u32 v3, L_last-L_pc, v3\nglobal_load_dword {v(self.vDUM)}, v3, s[26:27]")
        a("v_lshrrev_b32 v2, 6, v0\nv_and_b32 v1, 63, v0")
        a(f"s_and_b32 {s(sT0)}, s2, 3")
        a(f"v_readfirstlane_b32 {s(sWAVE)}, v2")
        a(f"s_bfe_u32 {s(sHF)}, s2, 0x10002")
        a(f"s_bfe_u32 {s(sCT)}, s2, 0x30003")
        a(f"s_lshr_b32 {s(sI)}, s2, 6\ns_lshl_b32 {s(sI)}, {s(sI)}, 2\ns_add_u32 {s(sI)}, {s(sI)}, {s(sT0)}")
        if self.o["seg"]: a(f"s_mov_b32 {s(sTYPE)}, {s(sHF)}\ns_mov_b32 {s(sG)}, {s(sCT)}")
        else:
            a(f"s_lshr_b32 {s(sTYPE)}, {s(sCT)}, 2")
            a(f"s_and_b32 {s(sG)}, {s(sCT)}, 3\ns_lshl_b32 {s(sT0)}, {s(sHF)}, 2\ns_add_u32 {s(sG)}, {s(sG)}, {s(sT0)}")
        a(f"s_lshl_b32 {s(sT0)}, {s(sG)}, 7\ns_mul_i32 {s(sT1)}, {s(sG)}, 384")
        a(f"s_add_u32 {s(sT2)}, {s(sT0)}, 1024\ns_add_u32 {s(sT3)}, {s(sT0)}, 2048\ns_add_u32 {s(sT4)}, {s(sT1)}, 128\ns_add_u32 {s(sT5)}, {s(sT1)}, 256")
        a(f"s_cmp_eq_u32 {s(sTYPE)}, 0")
        a(f"s_movk_i32 {s(sSTR)}, 2752\ns_cselect_b32 {s(sSTR)}, 3072, {s(sSTR)}")
        a(f"s_cselect_b32 {s(sC0)}, {s(sT2)}, {s(sT1)}\ns_cselect_b32 {s(sC0+1)}, {s(sT3)}, {s(sT4)}\ns_cselect_b32 {s(sC0+2)}, {s(sT0)}, {s(sT5)}")
        a(f"s_cmp_ge_u32 {s(sWAVE)}, 4\ns_cbranch_scc1 L_loader")

    def loader(self):
        a = self.a
        vX, vW, vB, vP, vT, vL, PARK = 10, 14, 20, 21, 22, 24, 32
        sWK, sKX, sKW, sXB, sF = 85, 26, 27, 3, sT5
        a.label("L_loader")
        if self.o["prio"] == 2: a("s_setprio 1")
        a(f"s_and_b32 {s(sWK)}, {s(sWAVE)}, 3")
        a("v_lshrrev_b32 v2, 3, v1\nv_and_b32 v3, 7, v1\nv_lshrrev_b32 v4, 4, v1")
        a(f"s_and_b32 {s(sT0)}, {s(sWK)}, 1\ns_lshl_b32 {s(sT0)}, {s(sT0)}, 2\ns_lshl_b32 {s(sT1)}, {s(sWK)}, 3")
        a(f"v_add_u32 v5, {s(sT0)}, v4\nv_xor_b32 v5, v3, v5\nv_lshlrev_b32 v5, 4, v5")
        a(f"v_add_u32 v6, {s(sT1)}, v2")
        a(f"v_lshl_add_u32 {v(vX)}, v6, 10, v5")
        for m in range(1, 4): a(f"v_add_u32 {v(vX+m)}, {m*32768}, {v(vX)}")
        a("v_and_b32 v7, 1, v4\nv_lshlrev_b32 v7, 2, v7\nv_xor_b32 v7, v3, v7\nv_lshlrev_b32 v7, 4, v7")
        a(f"v_mul_u32_u24 v8, {s(sSTR)}, v6")
        a(f"s_lshl_b32 {s(sT2)}, {s(sSTR)}, 5\nv_mov_b32 v2, {hx(OOB)}")
        for p in range(3):
            a(f"v_add_u32 v9, {s(sC0+p)}, v7\nv_cmp_gt_u32 vcc, {s(sSTR)}, v9\nv_add_u32 v9, v8, v9\nv_add_u32 v3, {s(sT2)}, v9")
            a(f"v_cndmask_b32 {v(vW+2*p)}, v2, v9, vcc\nv_cndmask_b32 {v(vW+2*p+1)}, v2, v3, vcc")
        a(f"s_lshl_b32 {s(sWK)}, {s(sWK)}, 10\ns_lshl_b32 {s(sXB)}, {s(sI)}, 17\ns_lshl_b32 {s(sT3)}, {s(sSTR)}, 5")
        self.ts("l_pre")
        a("s_waitcnt lgkmcnt(0)")
        self.srd(sX, 4, 2097152)
        a(f"s_lshl_b32 {s(sW+2)}, {s(sSTR)}, 9\ns_mov_b32 {s(sW+3)}, 0x00020000\ns_cmp_eq_u32 {s(sTYPE)}, 0")
        a(f"s_cselect_b32 {s(sW)}, s6, s12\ns_cselect_b32 {s(sW+1)}, s7, s13")
        self.ts("l_karg")
        vm = Cnt(a, "vmcnt", 63)
        def bsrc(sig):
            mat, f = ORDER[sig]; st, j2, ch = pos_of(sig)
            if not self.o["r2"] or sig == 14: a(f"s_mov_b32 {s(sF)}, {f*32768}")
            elif st < 3: a(f"s_add_u32 {s(sF)}, {s(4+j2)}, {(2*st+ch)*32768}")
            else: a(f"s_add_u32 {s(sF)}, {s(11+j2)}, {ch*32768}")
            return s(sW2 if mat == 'w2' else sWO, 4)
        gs = [int(c) for c in str(self.o["grp"])]; assert sum(gs) == 8
        grp_of = [(sum(gs[:n]), gs[n]) for n in range(len(gs)) for _ in range(gs[n])]
        rot = lambda pos: grp_of[pos][1] > 1
        sK0 = 56
        def ktable(lo, hi):
            for pos in range(lo, hi):
                g0, n = grp_of[pos]
                if n == 1: continue
                if pos == g0:
                    a(f"s_lshr_b32 {s(sT1)}, s2, 6\ns_mul_i32 {s(sT1)}, {s(sT1)}, {max(1, (n+1)//4)}\ns_add_u32 {s(sT1)}, {s(sT1)}, {s(sCT)}")
                    a(f"s_mul_i32 {s(sT0)}, {s(sT1)}, {-(-256//n)}\ns_lshr_b32 {s(sT0)}, {s(sT0)}, 8\ns_mul_i32 {s(sT0)}, {s(sT0)}, {n}\ns_sub_u32 {s(sT1)}, {s(sT1)}, {s(sT0)}\ns_add_u32 {s(sK0+pos)}, {s(sT1)}, {g0}")
                else:
                    a(f"s_add_u32 {s(sK0+pos)}, {s(sK0+pos-1)}, 1\ns_cmp_eq_u32 {s(sK0+pos)}, {g0+n}\ns_cselect_b32 {s(sK0+pos)}, {g0}, {s(sK0+pos)}")
        def wst(st):
            pos = st // 2 if st < 16 else st - 16
            if rot(pos):
                a(f"s_lshl_b32 {s(sKW)}, {s(sK0+pos)}, 1" + (f"\ns_add_u32 {s(sKW)}, {s(sKW)}, 1" if st < 16 and st & 1 else "") + f"\ns_mul_i32 {s(sKW)}, {s(sKW)}, {s(sT3)}")
            else: a(f"s_mul_i32 {s(sKW)}, {s(sT3)}, {st if st < 16 else 2*(st-16)}")
            for m in range(2):
                a(f"s_add_u32 m0, {s(sWK)}, {WR + (st % 3)*8192 + m*4096}")
                a(f"buffer_load_dwordx4 {v(vW + (2*m if st < 16 else 4+m))}, {s(sW,4)}, {s(sKW)} offen lds"); vm.issue(("S", st))
        def xpair(n):
            k = n >> 1
            if k >= 8: return
            if rot(k): a(f"s_lshl_b32 {s(sKX)}, {s(sK0+k)}, 7\ns_add_u32 {s(sKX)}, {s(sKX)}, {s(sXB)}")
            else: a(f"s_add_u32 {s(sKX)}, {s(sXB)}, {128*k}")
            for mm in (2*(n & 1), 2*(n & 1) + 1):
                a(f"s_add_u32 m0, {s(sWK)}, {k*16384 + mm*4096}")
                a(f"buffer_load_dwordx4 {v(vX+mm)}, {s(sX,4)}, {s(sKX)} offen lds"); vm.issue(("S", 2*k))
        st_ = dict(nE=0)
        preg = lambda sig: PARK + 4*sig if sig < st_["nE"] else PARK + 4*(st_["nE"] + sig - NSLOT)
        def bstep(sig):
            a(f"s_add_u32 m0, {s(sWK)}, {b_lds(sig)}")
            srd = bsrc(sig)
            a(f"buffer_load_dwordx4 {v(vB)}, {srd}, {s(sF)} offen lds"); vm.issue(("B", sig))
        def park(sig):
            srd = bsrc(sig)
            a(f"buffer_load_dwordx4 {v(preg(sig),4)}, {v(vB)}, {srd}, {s(sF)} offen"); vm.issue(("B", sig))
        def put(sig):
            base = b_lds(sig); w = base >> 16
            a(f"ds_write_b128 {v(vL+w)}, {v(preg(sig),4)} offset:{base-65536*w}")
        if self.o["ld"]: a("s_barrier")
        ktable(0, 1); wst(0); xpair(0); xpair(1); self.ts("l_s0"); wst(1); ktable(1, 8); xpair(2); self.ts("l_s2")
        vPG, vDN = 28, 29
        self.srd(sW2, 16, 1409024); self.srd(sWO, 8, 524288); self.srd(sWS, 24, WS_SIZE)
        if self.o["r2"]:
            a(self.rot2(sT0, sT1, sT2))
            for base, n, r, step in ((4, 7, sT0, 6*32768), (11, 8, sT1, 2*32768)):
                a(f"s_mul_i32 {s(base)}, {s(r)}, {step}")
                for j in range(1, n): a(f"s_add_u32 {s(base+j)}, {s(base+j-1)}, {step}\ns_cmp_eq_u32 {s(base+j)}, {n*step}\ns_cselect_b32 {s(base+j)}, 0, {s(base+j)}")
        a(f"s_lshl_b32 {s(sT0)}, {s(sCT)}, 7\nv_lshl_add_u32 {v(vB)}, v6, 10, v7\nv_add_u32 {v(vB)}, {s(sT0)}, {v(vB)}")
        a(f"v_lshl_add_u32 {v(vL)}, v1, 4, {s(sWK)}\nv_add_u32 {v(vL+1)}, 65536, {v(vL)}\nv_add_u32 {v(vL+2)}, 131072, {v(vL)}")
        a(f"s_lshr_b32 {s(sT0)}, {s(sWK)}, 8\ns_add_u32 {s(sT0)}, {s(sT0)}, {SC_PROG}\nv_mov_b32 {v(vPG)}, {s(sT0)}")
        a(f"v_and_b32 {v(vDN)}, 3, v1\nv_lshlrev_b32 {v(vDN)}, 2, {v(vDN)}\nv_add_u32 {v(vDN)}, {SC_PROG+16}, {v(vDN)}")
        def prog(lv): a(f"v_mov_b32 {v(vT)}, {lv}\nds_write_b32 {v(vPG)}, {v(vT)}")
        sw = self.o["sw"]; tq = [[], []]
        if sw:
            assert not self.o["r2"]
            a(f"s_lshr_b32 {s(sT1)}, {s(sWK)}, 10\ns_lshl_b32 {s(sT0)}, s2, 2\ns_add_u32 {s(sT0)}, {s(sT0)}, {s(sT1)}")
            a(f"s_mul_i32 {s(sT2)}, {s(sT0)}, 1376\ns_add_u32 s10, s16, {s(sT2)}\ns_addc_u32 s11, s17, 0\ns_lshl_b32 {s(sT2)}, {s(sT0)}, 9\ns_add_u32 s12, s8, {s(sT2)}\ns_addc_u32 s13, s9, 0")
            a(f"s_lshr_b32 {s(sT0)}, s2, 3\ns_mul_i32 {s(sT2)}, {s(sT1)}, 11\ns_min_u32 {s(sT2)}, {s(sT2)}, 32\ns_mul_i32 s14, {s(sT0)}, 43\ns_add_u32 {s(sT2)}, {s(sT2)}, s14\ns_lshl_b32 {s(sT2)}, {s(sT2)}, 10\ns_add_u32 s14, s16, {s(sT2)}\ns_addc_u32 s15, s17, 0")
            a(f"s_lshl_b32 {s(sT0)}, {s(sT0)}, 2\ns_add_u32 {s(sT0)}, {s(sT0)}, {s(sT1)}\ns_lshl_b32 {s(sT0)}, {s(sT0)}, 12\ns_add_u32 s18, s8, {s(sT0)}\ns_addc_u32 s19, s9, 0")
            if sw & 1: tq[0] = [f"s_load_dword s20, s[10:11], {64*u}" for u in range(22)] + [f"s_load_dword s20, s[12:13], {64*u}" for u in range(8)]
            if sw & 2: tq[1] = [f"s_load_dword s20, s[14:15], {1024*r + 384 + u}" for r in range(11) for u in (0, 64)] + [f"s_load_dword s20, s[18:19], {1024*r + 384 + u}" for r in range(4) for u in (0, 64)]
        def touch(k, tq):
            for j in range(2):
                if k >= self.o[f"sw{j}"]:
                    for x in tq[j][:self.o["swn"]]: a(x)
                    tq[j] = tq[j][self.o["swn"]:]
        N = 24; KS = 12
        for k in range(KS):
            vm.wait(("S", k)); self.ts(f"l_land{k}"); a("s_barrier"); self.ts(f"l_bar{k}")
            wst(k + 2); xpair(k + 3); touch(k, tq)
        a(f"s_cmp_eq_u32 {s(sTYPE)}, 0\ns_cbranch_scc0 L_loadB")
        q0 = list(vm.q)
        for typ in "AB":
            if typ == "B": a.label("L_loadB")
            tq2 = [list(x) for x in tq]
            vm.q = list(q0); sfx = "A" if typ == "A" else ""
            nE, nL, pe0 = (self.o[x + sfx] for x in ("nE", "nL", "pe0")); burst = self.o["burst"] if typ == "A" else 0
            assert nE <= 35 and pe0 >= KS; st_["nE"] = nE
            early = list(range(nE)) + list(range(NSLOT, NSLOT + nL)); nxt = 0
            for k in range(KS, N):
                vm.wait(("S", k)); self.ts(f"l_land{k}"); a("s_barrier"); self.ts(f"l_bar{k}")
                if k + 2 < N: wst(k + 2); xpair(k + 3)
                touch(k, tq2)
                if k >= pe0:
                    while nxt < -(-(len(early) - burst) * (k + 1 - pe0) // (N - pe0)) + (burst if k >= self.o['bk'] else 0): park(early[nxt]); nxt += 1
            a("s_barrier")
            self.ts("l_barN")
            assert nxt == len(early)
            todo = [x for x in range(59) if x not in early]; lvl = [(7, 1), (22, 2), (37, 3)]
            def more(n):
                for _ in range(n):
                    if todo:
                        sig = todo.pop(0)
                        bstep(sig) if sig < NSLOT else park(sig)
                        if self.o["thr"] and len(vm.q) > self.o["thr"]: vm.wait(vm.q[-1 - self.o["thr"]])
            thr_ = self.o['thr']; self.o['thr'] = 0; more(self.o['m0n'])
            for sig in range(nE):
                vm.wait(("B", sig)); put(sig)
                if lvl and sig == lvl[0][0]: prog(lvl.pop(0)[1])
                if self.o['mint'] and sig % self.o['mint'] == self.o['mint'] - 1: more(1)
            self.o['thr'] = thr_
            self.ts("l_put")
            while todo:
                more(1)
                if lvl and todo and todo[0] >= lvl[0][0] + 7: vm.wait(("B", lvl[0][0])); prog(lvl.pop(0)[1])
            for sg, lv in lvl: vm.wait(("B", sg)); prog(lv)
            self.ts("l_bissue")
            if self.stop == "p1":
                vm.wait_all(); self.ts_flush(); a("s_endpgm"); continue
            def done(lv):
                L = self.lab("dw"); X = self.lab("dwx")
                a(f"s_mov_b32 {s(sSPIN)}, 0")
                a.label(L)
                if self.o["slp"]: a(f"s_sleep {self.o['slp']}")
                a(f"ds_read_b32 {v(vP)}, {v(vDN)}\ns_add_u32 {s(sSPIN)}, {s(sSPIN)}, 1\ns_cmp_gt_u32 {s(sSPIN)}, {SPIN_MAX*8}\ns_waitcnt lgkmcnt(0)\ns_cbranch_scc1 {X}")
                a(f"v_cmp_gt_u32 vcc, {lv}, {v(vP)}\ns_cbranch_vccnz {L}")
                a.label(X)
            for lv, (lo, hi) in enumerate(((38, 45), (45, 55), (55, 59))):
                vm.wait(("B", hi - 1))
                if lv == 2: self.ts("l_bland")
                done(lv + 1)
                for sig in range(lo, hi): put(sig)
                prog(4 + lv)
                self.ts(f"l_ref{lv}")
            a("s_waitcnt lgkmcnt(0)")
            self.ts("l_end")
            self.ts_flush()
            a("s_endpgm")

    ACC = 160
    SEL = 64
    CSM = dict(A=(68, 72, 68), B=(68, 72, 90))
    vXA, vXB, vWE, vWO = 76, 80, 84, 87
    GR = 90
    vCW, vCR = 94, 95
    vT0, vT1, vT2 = 97, 98, 99
    SG = 100
    IDN = 108
    B1 = 108
    XS = 112
    GC = 120
    vSTA, vSTG, vNZ, vDUM = 124, 125, 126, 127
    vFL = 7
    TMP = 128
    FX = 152
    KVA = 16
    def acc(self, p, rb): return self.ACC + 32 * p + 16 * rb

    def it(self, text):
        cost = 0
        for ln in text.split("\n"):
            op = ln.split()[0]
            if op.endswith(":"): continue
            cost += 32 if op.startswith("v_mfma") else 8 if op in ("v_exp_f32", "v_rcp_f32", "v_rsq_f32") else 5 if (op.startswith(("ds_", "buffer_", "v_fma_", "v_cvt_pk", "v_cndmask", "v_lshl_add")) or "0x" in ln) else 4
        return (cost, lambda: self.a(text))
    def its(self, lst): return [self.it(x) for x in lst]
    def vmi(self, text, tag): return (6, lambda: (self.a(text), self.vm.issue(tag)))
    def vmw(self, tag): return (4, lambda: self.vm.wait(tag))
    def tsi(self, name): return (0, lambda: self.ts(name))
    def flush(self, q):
        while q:
            x = q.pop(0)
            if x == "NEXT": self.a("s_waitcnt lgkmcnt(0)")
            elif x == "BAR": raise RuntimeError("barrier marker left over")
            elif x[0] == "GI": continue
            else: x[1]()

    def compute_setup(self):
        a = self.a; G = self; T = G.TMP
        if self.o["prio"] == 1: a("s_setprio 1")
        self.vm = vm = Cnt(a, "vmcnt", 63)
        a(f"s_bfe_u32 {s(sRH)}, {s(sWAVE)}, 0x10001\ns_and_b32 {s(sCH)}, {s(sWAVE)}, 1")
        a("v_and_b32 v2, 31, v1\nv_lshrrev_b32 v3, 5, v1\nv_lshrrev_b32 v4, 4, v1\nv_and_b32 v5, 15, v1")
        a(f"v_mov_b32 {v(G.vNZ)}, 0")
        a(f"s_lshl_b32 {s(sT0)}, {s(sHF)}, 3\ns_add_u32 {s(sT0)}, {s(sT0)}, {s(sCT)}\ns_lshl_b32 {s(sT0)}, {s(sT0)}, 3")
        a(f"s_lshl_b32 {s(sT1)}, {s(sI)}, 7\ns_add_u32 {s(sT0)}, {s(sT0)}, {s(sT1)}\ns_lshl_b32 {s(sT2)}, {s(sWAVE)}, 1\ns_add_u32 {s(sT0)}, {s(sT0)}, {s(sT2)}")
        a(f"v_add_u32 v6, {s(sT0)}, v3\nv_lshlrev_b32 v11, 4, v2\nv_lshl_add_u32 v11, v6, 10, v11")
        a(f"s_lshl_b32 {s(sT2)}, {s(sI)}, 3\ns_add_u32 {s(sT2)}, {s(sT2)}, {s(sG)}\ns_lshl_b32 {s(sT3)}, {s(sSTR)}, 2\ns_mul_i32 {s(sT2)}, {s(sT2)}, {s(sT3)}\ns_sub_u32 {s(sT3)}, {s(sT3)}, 4")
        a(f"s_mul_i32 {s(sT4)}, {s(sWAVE)}, 24\nv_min_u32 v12, 23, v1\nv_add_lshl_u32 v12, v12, {s(sT4)}, 7\nv_min_u32 v12, {s(sT3)}, v12\nv_add_u32 {v(G.vT0)}, {s(sT2)}, v12")
        a(f"s_lshl_b32 {s(sW+2)}, {s(sSTR)}, 9\ns_mov_b32 {s(sW+3)}, 0x00020000\ns_cmp_eq_u32 {s(sTYPE)}, 0\ns_waitcnt lgkmcnt(0)")
        self.ts("c_karg")
        a(f"s_cselect_b32 {s(sW)}, s6, s12\ns_cselect_b32 {s(sW+1)}, s7, s13")
        self.srd(sX, 4, 2097152)
        if self.o["latp"] >= 0:
            self.srd(sOUT, 4 + 2*self.o["latp"], 524288)
            a(f"s_lshl_b32 {s(sT4)}, s2, 2\ns_add_u32 {s(sT4)}, {s(sT4)}, {s(sWAVE)}\ns_lshl_b32 {s(sT4)}, {s(sT4)}, 9\nv_mov_b32 v12, 0")
            a("s_waitcnt vmcnt(0)"); self.ts("c_l0"); a("s_waitcnt lgkmcnt(0)")
            a(f"buffer_load_dword v13, v12, {s(sOUT,4)}, {s(sT4)} offen\ns_waitcnt vmcnt(0)")
            self.ts("c_l1")
        def xs():
            a(f"buffer_load_dwordx4 {v(T,4)}, v11, {s(sX,4)}, 0 offen\nbuffer_load_dwordx4 {v(T+4,4)}, v11, {s(sX,4)}, 0 offen offset:512"); vm.issue("xs"); vm.issue("xs")
        if self.o["xe"]: xs()
        if self.o["wt"] == 3: a(f"buffer_load_dword {v(G.vDUM)}, {v(G.vT0)}, {s(sW,4)}, 0 offen"); vm.issue("t")
        if self.o["ld"]: a("s_barrier")
        L = self.lab("non")
        a(f"s_or_b32 {s(sT3)}, s2, {s(sWAVE)}\ns_cmp_lg_u32 {s(sT3)}, 0\ns_cbranch_scc1 {L}")
        a(f"s_memrealtime {s(sM,2)}\ns_waitcnt lgkmcnt(0)")
        self.srd(sDBG, 22, 256)
        a(f"s_or_b32 {s(sT3)}, {s(sM)}, 1\nv_mov_b32 v8, {s(sT3)}\ns_mov_b64 exec, 1")
        a(f"buffer_store_dword v8, {v(G.vNZ)}, {s(sDBG,4)}, 0 offen sc1\ns_mov_b64 exec, -1")
        a.label(L)
        a("s_branch L_compute")
        self.loader()
        a.label("L_compute")
        a(f"v_lshlrev_b32 v8, 4, v3\nv_lshl_add_u32 v8, v2, 5, v8\ns_lshl_b32 {s(sT0)}, {s(sT0)}, 5\nv_add_u32 v8, {s(sT0)}, v8\nv_mov_b32 v9, {hx(OOB)}\nv_cmp_gt_u32 vcc, 2, v2\nv_add_u32 v8, {WS_ST}, v8\nv_cndmask_b32 {v(G.vSTA)}, v9, v8, vcc")
        a(f"v_cmp_gt_u32 vcc, {self.o['fl']}, v1\nv_lshlrev_b32 v8, 2, v1\nv_cndmask_b32 {v(G.vFL)}, v9, v8, vcc")
        a(f"s_lshl_b32 {s(sT2)}, {s(sRH)}, 6\ns_add_u32 {s(sT1)}, {s(sT1)}, {s(sT2)}\nv_add_u32 v8, {s(sT1)}, v2\nv_and_b32 v10, 1, v8\nv_lshlrev_b32 v8, 5, v8\nv_lshlrev_b32 v10, 4, v10\nv_sub_u32 v8, v8, v10\nv_add_u32 {v(G.vSTG)}, {WS_ST}, v8")
        a("v_bfe_u32 v8, v1, 1, 3")
        a(f"s_lshl_b32 {s(sT2)}, {s(sRH)}, 13\nv_lshl_add_u32 v9, v2, 7, {s(sT2)}")
        for tau in range(4):
            a(f"s_xor_b32 {s(sT3)}, {s(sRH)}, {tau}\ns_lshl_b32 {s(sT3)}, {s(sT3)}, 1")
            a(f"v_add_u32 v10, {s(sT3)}, v3\nv_xor_b32 v10, v10, v8\nv_lshl_add_u32 {v(G.vXA+tau)}, v10, 4, v9\nv_add_u32 {v(G.vXB+tau)}, 65536, {v(G.vXA+tau)}")
        a("v_lshrrev_b32 v8, 2, v5\nv_lshl_add_u32 v8, v3, 3, v8\nv_lshlrev_b32 v8, 7, v8")
        a("v_and_b32 v9, 1, v4\nv_lshlrev_b32 v9, 1, v9\nv_bfe_u32 v10, v5, 1, 1\nv_add_u32 v9, v9, v10")
        a("v_lshrrev_b32 v10, 3, v5\nv_lshlrev_b32 v10, 2, v10\nv_xor_b32 v9, v9, v10")
        a("v_and_b32 v10, 1, v5\nv_lshlrev_b32 v10, 3, v10\nv_add_u32 v8, v8, v10")
        a(f"s_xor_b32 {s(sT3)}, {s(sTYPE)}, 1\ns_and_b32 {s(sT3)}, {s(sT3)}, {s(sRH)}\ns_lshl_b32 {s(sT3)}, {s(sT3)}, 1")
        a(f"s_lshl_b32 {s(sT2)}, {s(sCH)}, 2\ns_or_b32 {s(sT2)}, {s(sT2)}, {s(sT3)}\nv_xor_b32 v10, {s(sT2)}, v9\nv_lshl_add_u32 v10, v10, 4, v8")
        a(f"s_lshl_b32 {s(sT2)}, {s(sRH)}, 11")
        for sl in range(3):
            a(f"s_add_u32 {s(sT4)}, {s(sT2)}, {WR+8192*sl}\ns_sub_u32 {s(sT5)}, {WR+8192*sl}, {s(sT2)}")
            a(f"v_add_u32 {v(G.vWE+sl)}, {s(sT4)}, v10\nv_add_u32 {v(G.vWO+sl)}, {s(sT5)}, v10")
        a(f"v_lshrrev_b32 v8, 2, v5\nv_xor_b32 v8, v8, v4\nv_and_b32 v8, 1, v8\nv_cmp_eq_u32 vcc, 0, v8\nv_mov_b32 v9, 0x3f803f80")
        for q in range(4): a(f"v_cndmask_b32 {v(G.SEL+q)}, 0, v9, vcc")
        a(f"s_mul_i32 {s(sT0)}, {s(sWAVE)}, 384\ns_add_u32 {s(sT0)}, {s(sT0)}, {SC_CS}\nv_lshl_add_u32 {v(G.vCW)}, v2, 2, {s(sT0)}")
        a(f"s_xor_b32 {s(sT0)}, {s(sWAVE)}, 2\ns_mul_i32 {s(sT0)}, {s(sT0)}, 384\ns_add_u32 {s(sT0)}, {s(sT0)}, {SC_CS}\ns_xor_b32 {s(sT1)}, {s(sTYPE)}, 1\ns_lshl_b32 {s(sT1)}, {s(sT1)}, 4")
        a(f"v_xor_b32 v8, {s(sT1)}, v2\nv_lshl_add_u32 {v(G.vCR)}, v8, 2, {s(sT0)}")
        a(f"v_lshlrev_b32 v8, 2, v2\nv_add_u32 v8, {SC_FLAG}, v8\nds_write_b32 v8, {v(G.vNZ)}")
        if self.o["wt"] == 2: a(f"buffer_load_dword {v(G.vDUM)}, {v(G.vT0)}, {s(sW,4)}, 0 offen"); vm.issue("t")
        X = self.lab("vwx")
        a(f"v_mov_b32 {v(G.vT1)}, {hx(OOB)}\nv_mov_b32 {v(G.vT2)}, {hx(OOB)}\ns_cmp_lt_u32 {s(sWAVE)}, 2\ns_cbranch_scc1 {X}")
        a(f"s_cmp_eq_u32 {s(sWAVE)}, 2")
        a(f"s_cselect_b32 {s(sW)}, s16, s8\ns_cselect_b32 {s(sW+1)}, s17, s9\ns_movk_i32 {s(sT3)}, 2048\ns_cselect_b32 {s(sT3)}, 5504, {s(sT3)}")
        a(f"s_lshl_b32 {s(sW+2)}, {s(sT3)}, 8\ns_mul_i32 {s(sT2)}, s2, {s(sT3)}\ns_sub_u32 {s(sT3)}, {s(sT3)}, 4")
        a(f"v_lshlrev_b32 v12, 7, v1\nv_min_u32 v12, {s(sT3)}, v12\nv_add_u32 {v(G.vT1)}, {s(sT2)}, v12")
        a(f"s_cmp_eq_u32 {s(sWAVE)}, 2\ns_cselect_b32 {s(sT3)}, 43, 16\ns_lshr_b32 {s(sT2)}, s2, 3\ns_mul_i32 {s(sT2)}, {s(sT2)}, {s(sT3)}")
        a(f"v_add_u32 v12, {s(sT2)}, v1\nv_lshlrev_b32 v12, 10, v12\nv_add_u32 v12, 384, v12\nv_cmp_gt_u32 vcc, {s(sT3)}, v1\nv_cndmask_b32 {v(G.vT2)}, {v(G.vT2)}, v12, vcc")
        a.label(X)
        self.srd(sB1, 14, 2752); self.srd(sDBG, 22, 256); self.srd(sWS, 24, WS_SIZE)
        a(f"s_lshl_b32 {s(sT2)}, {s(sCH)}, 6\ns_lshl_b32 {s(sT3)}, {s(sTYPE)}, 31\ns_xor_b32 {s(sT3)}, {s(sT3)}, {hx(OOB)}\ns_or_b32 {s(sT2)}, {s(sT2)}, {s(sT3)}")
        a(f"v_lshl_add_u32 v8, v2, 1, {s(sT2)}")
        if not self.o["xe"]: xs()
        a("v_mov_b32 v96, v8")
        if self.o["t2"]:
            L = self.lab("t2")
            a(f"s_lshl_b32 {s(sT2)}, {s(sHF)}, 2\ns_or_b32 {s(sT2)}, {s(sT2)}, {s(sWAVE)}\ns_cmp_lg_u32 {s(sT2)}, 3\ns_cbranch_scc1 {L}")
            self.srd(sOUT, 6, 1572864)
            a(f"s_lshr_b32 {s(sT2)}, s2, 3\ns_lshl_b32 {s(sT2)}, {s(sT2)}, 4")
            a(f"v_add_u32 v12, {s(sT2)}, v5\nv_mul_u32_u24 v12, 3072, v12\nv_min_u32 v13, 2, v4\nv_lshl_add_u32 v12, v13, 10, v12\nv_add_u32 v12, 384, v12")
            a(f"buffer_load_dword {v(G.vDUM)}, v12, {s(sOUT,4)}, 0 offen")
            a.label(L)
        if self.o["w2s"]: a(f"buffer_load_dword {v(G.vDUM)}, {v(G.vT1)}, {s(sW,4)}, 0 offen"); vm.issue("t")
        self.vm0 = list(vm.q)
        self.ts("c_setup")
        a(f"s_cmp_eq_u32 {s(sTYPE)}, 0\ns_cbranch_scc0 L_typeB")

    def q_stats(self, typ, extra=()):
        G = self; T = G.TMP; U = T + 8; q = []
        g = dict(math=1, chk=self.o['chk'], w2=self.o["w2t"], ga=self.o['ga'], gc=self.o['gc'])
        nl = [self.vmi(f"buffer_load_dword {v(G.GR+3)}, {v(G.vNZ)}, {s(sDBG,4)}, 0 offen sc1", "nonce")]
        if not self.o["pre"]: q += nl
        q += [("GI", g["math"]), self.vmw("xs")]
        if self.o["pre"]: q += nl
        w = []
        for k in range(8): w += [f"v_lshlrev_b32 {v(U+2*k)}, 16, {v(T+k)}", f"v_and_b32 {v(U+2*k+1)}, 0xffff0000, {v(T+k)}"]
        w += [f"v_add_f32 {v(T+k)}, {v(U+2*k)}, {v(U+2*k+1)}" for k in range(8)]
        for n in (4, 2, 1): w += [f"v_add_f32 {v(T+k)}, {v(T+k)}, {v(T+k+n)}" for k in range(n)]
        def red32(r, t):
            o = [f"v_add_f32_dpp {v(r)}, {v(r)}, {v(r)} {m} row_mask:0xf bank_mask:0xf" for m in ("quad_perm:[1,0,3,2]", "quad_perm:[2,3,0,1]", "row_half_mirror", "row_mirror")]
            return o + [f"v_mov_b32 {v(t)}, {v(r)}", f"v_permlane16_swap_b32 {v(r)}, {v(t)}", f"v_add_f32 {v(r)}, {v(r)}, {v(t)}"]
        w += red32(T, T + 1) + [f"v_mul_f32 {v(G.GR)}, {fl(1/512)}, {v(T)}"]
        w += [f"v_sub_f32 {v(U+k)}, {v(U+k)}, {v(G.GR)}" for k in range(16)]
        w += [f"v_mul_f32 {v(T+k)}, {v(U+k)}, {v(U+k)}" for k in range(4)]
        w += [f"v_fmac_f32 {v(T+k%4)}, {v(U+k)}, {v(U+k)}" for k in range(4, 16)]
        w += [f"v_add_f32 {v(T)}, {v(T)}, {v(T+1)}", f"v_add_f32 {v(T+2)}, {v(T+2)}, {v(T+3)}", f"v_add_f32 {v(T)}, {v(T)}, {v(T+2)}"]
        w += red32(T, T + 1) + [f"v_mov_b32 {v(T+1)}, {fl(1e-5)}", f"v_fmac_f32 {v(T+1)}, {fl(1/512)}, {v(T)}",
                                f"v_rsq_f32 {v(G.GR+1)}, {v(T+1)}", f"v_mul_f32 {v(G.GR+2)}, {v(T+1)}, {v(G.GR+1)}"]
        q += self.its(w)
        if self.o["pre"]: self.flush(q); q = []
        L = self.lab("nonce"); R = self.lab("nonceok"); X = self.lab("noncex")
        q += [("GI", g["chk"]), self.vmw("nonce"),
              self.it(f"v_readfirstlane_b32 {s(sNONCE)}, {v(G.GR+3)}\ns_cmp_eq_u32 {s(sNONCE)}, 0\ns_cbranch_scc1 {L}\n{R}:"),
              self.vmi(f"buffer_store_dwordx4 {v(G.GR,4)}, {v(G.vSTA)}, {s(sWS,4)}, 0 offen sc1", "st"),
              self.it(f"v_mov_b32 v8, {SC_NONCE}\nds_write_b32 v8, {v(G.GR+3)}"), self.tsi("c_stpub")]
        self.tail.append(f"""{L}:
s_mov_b32 {s(sSPIN)}, 0
{X}:
buffer_load_dword {v(G.GR+3)}, {v(G.vNZ)}, {s(sDBG,4)}, 0 offen sc1
s_add_u32 {s(sSPIN)}, {s(sSPIN)}, 1
s_waitcnt vmcnt(0)
v_readfirstlane_b32 {s(sNONCE)}, {v(G.GR+3)}
s_cmp_gt_u32 {s(sSPIN)}, {SPIN_MAX}
s_cbranch_scc1 {R}
s_cmp_eq_u32 {s(sNONCE)}, 0
s_cbranch_scc1 {X}
s_branch {R}""")
        if typ == "B": q += self.its([f"v_lshlrev_b32 {v(G.B1+p)}, 16, {v(G.B1+p)}" for p in range(3)])
        q += list(extra)
        if self.o["t3"]:
            q += [("GI", self.o["t3"] - 1), self.it(f"s_lshl_b32 {s(sT0)}, {s(sI)}, 3\ns_add_u32 {s(sT0)}, {s(sT0)}, {s(sCT)}\ns_lshl_b32 {s(sT0)}, {s(sT0)}, 14\nv_lshl_add_u32 v8, v5, 10, {s(sT0)}"),
                  self.vmi(f"buffer_load_dword {v(G.vDUM)}, v8, {s(sX,4)}, 0 offen offset:384", "t")]
        if self.o["w2t"] and not self.o["w2s"] and not self.o["sw"] & 1: q += [("GI", g["w2"]), self.vmi(f"buffer_load_dword {v(G.vDUM)}, {v(G.vT1)}, {s(sW,4)}, 0 offen", "t")]
        if self.o["t1"] and not self.o["sw"] & 2: q += [("GI", self.o["t1"]), self.vmi(f"buffer_load_dword {v(G.vDUM)}, {v(G.vT2)}, {s(sW,4)}, 0 offen", "t")]
        q += [("GI", g["ga"])] + [self.vmi(f"buffer_load_dwordx4 {v(G.SG+4*rb,4)}, {v(G.vSTG)}, {s(sWS,4)}, 0 offen offset:{1024*rb} sc1", "sg") for rb in range(2)]
        L = self.lab("st"); R = self.lab("stok"); X = self.lab("stx")
        chk = f"v_cmp_ne_u32 vcc, {s(sNONCE)}, {v(G.SG+3)}\nv_cmp_ne_u32 {s(sM,2)}, {s(sNONCE)}, {v(G.SG+7)}\ns_or_b64 vcc, vcc, {s(sM,2)}"
        q += [("GI", g["gc"]), self.vmw("sg"), self.it(f"{chk}\ns_cbranch_vccnz {L}\n{R}:"), self.tsi("c_stok")]
        self.tail.append(f"""{L}:
s_mov_b32 {s(sSPIN)}, 0
{X}:
buffer_load_dwordx4 {v(G.SG,4)}, {v(G.vSTG)}, {s(sWS,4)}, 0 offen sc1
buffer_load_dwordx4 {v(G.SG+4,4)}, {v(G.vSTG)}, {s(sWS,4)}, 0 offen offset:1024 sc1
s_add_u32 {s(sSPIN)}, {s(sSPIN)}, 1
s_cmp_gt_u32 {s(sSPIN)}, {SPIN_MAX}
s_waitcnt vmcnt(0)
s_cbranch_scc1 {R}
{chk}
s_cbranch_vccnz {X}
s_branch {R}""")
        for rb in range(2):
            mu, r, sd = G.SG + 4*rb, G.SG + 4*rb + 1, G.SG + 4*rb + 2; X = G.XS + 4*rb
            q += self.its([f"v_cvt_pk_bf16_f32 {v(T)}, -{v(mu)}, -{v(mu)}", f"v_cvt_pk_bf16_f32 {v(T+1)}, {v(sd)}, {v(sd)}",
                           f"v_and_b32 {v(T+2)}, 0xffff0000, {v(T)}", f"v_and_b32 {v(T+3)}, 0xffff0000, {v(T+1)}",
                           f"v_sub_f32 {v(T+2)}, -{v(mu)}, {v(T+2)}", f"v_sub_f32 {v(T+4)}, {v(sd)}, {v(T+3)}",
                           f"v_cvt_pk_bf16_f32 {v(T+2)}, {v(T+2)}, {v(T+3)}", f"v_cvt_pk_bf16_f32 {v(T+4)}, {v(T+4)}, 0",
                           f"v_cmp_gt_u32 vcc, 32, v1\nv_mov_b32 {v(X+3)}, 0\nv_cndmask_b32 {v(X)}, 0, {v(T)}, vcc\nv_cndmask_b32 {v(X+1)}, 0, {v(T+2)}, vcc\nv_cndmask_b32 {v(X+2)}, 0, {v(T+4)}, vcc"])
        k0 = -2.0 * 1.4426950408889634 * 0.7978845608028654
        for rb in range(2):
            r, sd = G.SG + 4*rb + 1, G.SG + 4*rb + 2
            if typ == "B":
                q += self.its([f"v_mul_f32 {v(G.GC+rb)}, {fl(k0)}, {v(r)}", f"v_mul_f32 {v(T)}, {v(r)}, {v(r)}",
                               f"v_mul_f32 {v(T)}, {fl(0.044715)}, {v(T)}", f"v_mul_f32 {v(G.GC+2+rb)}, {v(T)}, {v(G.GC+rb)}"])
            else:
                q += self.its([f"v_mul_f32 {v(G.GC+rb)}, {fl(1.4426950408889634)}, {v(r)}", f"v_mul_f32 {v(G.GC+2+rb)}, {fl(1e-6)}, {v(sd)}"])
        if typ == "A":
            q += self.its([f"s_lshl_b32 {s(sT0)}, {s(sWAVE)}, 8\ns_add_u32 {s(sT0)}, {s(sT0)}, {SC_R}\nv_lshl_add_u32 v8, v2, 2, {s(sT0)}\nv_lshl_add_u32 v6, v3, 4, {s(sT0)}",
                           f"ds_write_b32 v8, {v(G.GC)}", f"ds_write_b32 v8, {v(G.GC+1)} offset:128"])
        return q

    def reads0(self, gi):
        G = self
        k, tau = divmod(gi, 4); sl = (gi // 2) % 3; b = gi & 1
        X = lambda rb: [(f"ds_read_b128 {v(16+8*b+4*rb,4)}, {v((G.vXB if k >= 4 else G.vXA) + tau)} offset:{(k % 4)*16384 + 4096*rb}", (gi, "X", rb))]
        W = lambda p: [(f"ds_read_b64_tr_b16 {v(48+8*b+4*p+2*j,2)}, {v((G.vWO if tau & 1 else G.vWE) + sl)} offset:{p*4096+(tau&1)*2048+j*512}", (gi, "W", p)) for j in range(2)]
        return [W(0) + X(0), W(1) + X(1), [], []]
    def reads1(self, M):
        G = self
        if M >= 16: return [[], [], [], []]
        k = M // 2; sl = (16 + k) % 3; b = M & 1
        def X(ks, rb):
            tau = 2*(M & 1) + ks
            return [(f"ds_read_b128 {v(16+16*b+8*ks+4*rb,4)}, {v((G.vXB if k >= 4 else G.vXA) + tau)} offset:{(k % 4)*16384 + 4096*rb}", (32+M, "X", ks, rb))]
        def W(ks):
            tau = 2*(M & 1) + ks
            return [(f"ds_read_b64_tr_b16 {v(48+8*b+4*ks+2*j,2)}, {v((G.vWO if tau & 1 else G.vWE) + sl)} offset:{tau*2048+j*512}", (32+M, "W", ks)) for j in range(2)]
        return [W(0) + X(0, 0), W(1) + X(0, 1), X(1, 0), X(1, 1)]

    def mpass(self, typ, ps, q, budget):
        a = self.a; G = self; CS = G.CSM[typ]
        def issue(g):
            for r, t in g: a(r); self.lg.issue(t)
        if ps == 0:
            self.lg = Cnt(a, "lgkmcnt", 15)
            self.ts("c_pre0")
            a("s_waitcnt lgkmcnt(0)\ns_barrier")
            self.ts("c_bar0")
            for g in self.reads0(0): issue(g)
        elif typ == "A":
            for g in self.reads1(0): issue(g)
        lg = self.lg
        st_ = dict(hold=None, credit=0, nbar=0)
        def emit(x):
            n0 = len(a.items); x[1]()
            for ln in a.items[n0:]:
                if ln.startswith("ds_"): lg.issue("F")
        def fill(M, nr):
            st_["credit"] = min(st_["credit"] + budget - 5 * nr, budget + 6)
            while q and st_["hold"] is None:
                x = q[0]
                if x in ("NEXT", "BAR"): st_["hold"] = x; q.pop(0); break
                if x[0] == "GI":
                    if M >= x[1]: q.pop(0); continue
                    break
                if x[0] == "GB":
                    if st_["nbar"] >= x[1]: q.pop(0); continue
                    break
                if st_["credit"] < min(x[0], 12): break
                q.pop(0); emit(x); st_["credit"] -= x[0]
        def barrier(n):
            lg.wait("F"); a("s_barrier"); self.ts(f"c_bar{n}"); st_["nbar"] += 1
            if st_["hold"] == "BAR": st_["hold"] = None
        NS = 32 if ps == 0 else 16
        pn = (0, 1) if ps == 0 else (2,)
        for M in range(NS):
            b = M & 1; mf = []; last = M == NS - 1
            for i in range(2):
                for rb in range(2):
                    p = i if ps == 0 else 2
                    x = v(16+8*b+4*rb, 4) if ps == 0 else v(16+16*b+8*i+4*rb, 4)
                    w = v(48+8*b+4*i, 4); c = v(G.acc(p, rb), 16)
                    A, B = (x, w) if (typ == "A" and p < 2) else (w, x)
                    mf.append(f"v_mfma_f32_32x32x16_bf16 {c}, {A}, {B}, {c if M or (ps and i) else 0}")
            if ps == 0:
                cs = [f"v_mfma_f32_16x16x32_bf16 {v(CS[p],4)}, {v(G.SEL,4)}, {v(48+8*b+4*p,4)}, {v(CS[p],4) if M else 0}" for p in pn] if b == 0 else []
                rd = self.reads0(M + 1) if not last else (self.reads1(0) if typ == "B" else [[], [], [], []])
                need = [(M, "X", 1), None, None, None]; nb = M // 2 + 1
            else:
                cs = [f"v_mfma_f32_16x16x32_bf16 {v(CS[2],4)}, {v(G.SEL,4)}, {v(48+8*b,4)}, {v(CS[2],4) if M else 0}"]
                rd = self.reads1(M + 1)
                need = [(32+M, "X", 0, 1), None, (32+M, "X", 1, 1), None]; nb = 17 + M // 2
            csw = [(f"ds_write_b32 {v(G.vCW)}, {v(CS[p])} offset:{128*p}", "F") for p in pn]
            csr = [(f"ds_read_b32 {v(CS[p]+1)}, {v(G.vCR)} offset:{128*p}", "F") for p in pn]
            if st_["hold"] == "NEXT" or M == 0: lg.wait("F"); st_["hold"] = None if st_["hold"] == "NEXT" else st_["hold"]
            if last and ps == 1:
                lg.wait(need[0]); a(cs[0]); a(mf[0])
                for j in range(4):
                    if j: a(f"v_xor_b32 v8, {16*j}, {v(G.vXR)}")
                    issue([(f"ds_read_b64 {v(G.XR+2*j,2)}, {v(8 if j else G.vXR)}", "F")])
                fill(M, 4); a(mf[1])
                issue(csw); fill(M, 1); lg.wait(need[2]); a(mf[2])
                barrier(nb); issue(csr); a(mf[3])
                break
            for k in range(4):
                lg.wait(need[k]); a(mf[k])
                if k == 0 and b:
                    barrier(nb)
                    if last: issue(csr)
                issue(rd[k])
                fill(M, len(rd[k]))
                if k == (0 if (ps == 0 and M == 30) else 2):
                    for c in cs: a(c)
                if k == 2 and ps == 0 and M == 30: issue(csw)
        assert st_["hold"] != "BAR"
        assert not any(x[0] in ("GI", "GB") for x in q if not isinstance(x, str)), "GI marker left"
        if self.verbose: print(typ, "pass", ps, "leftover cost", sum(x[0] for x in q if not isinstance(x, str)))
        self.ts(f"c_pass{ps}")

    def q_fixup(self, typ, p):
        G = self; c = G.CSM[typ][p]; F = 136 if typ == "B" else (152, 148, 128)[p]; q = []
        q += self.its([f"v_add_f32 {v(c)}, {v(c)}, {v(c+1)}", f"v_cvt_pk_bf16_f32 {v(c+1)}, {v(c)}, {v(c)}",
                      f"v_and_b32 {v(c+1)}, 0xffff0000, {v(c+1)}", f"v_sub_f32 {v(c+2)}, {v(c)}, {v(c+1)}", f"v_mov_b32 {v(F+3)}, 0"])
        if typ == "B":
            q += self.its([f"v_cvt_pk_bf16_f32 {v(F+1)}, {v(c+1)}, {v(G.B1+p)}", f"v_cvt_pk_bf16_f32 {v(F+2)}, {v(G.B1+p)}, 0"])
        else:
            q += self.its([f"v_cvt_pk_bf16_f32 {v(F+1)}, {v(c+1)}, 0", f"v_mov_b32 {v(F+2)}, 0"])
        q += self.its([f"v_cvt_pk_bf16_f32 {v(F)}, {v(c+1)}, {v(c+2)}"])
        for rb in range(2):
            x = v(G.XS + 4*rb, 4); w = v(F, 4); cc = v(G.acc(p, rb), 16)
            A, B = (x, w) if (typ == "A" and p < 2) else (w, x)
            q += self.its([f"v_mfma_f32_32x32x16_bf16 {cc}, {A}, {B}, {cc}"])
        return q

    def ho_base(self, dst, sig0):
        t = (f"s_lshl_b32 {s(dst)}, {s(sI)}, 1\ns_add_u32 {s(dst)}, {s(dst)}, {s(sRH)}\ns_lshl_b32 {s(dst)}, {s(dst)}, 18\n"
             f"s_lshl_b32 {s(sT0)}, {s(sG)}, 1\ns_add_u32 {s(sT0)}, {s(sT0)}, {s(sCH)}\n")
        if not self.o["lay"]:
            return t + f"s_add_u32 {s(sT5)}, {s(sT0)}, {sig0}\ns_lshl_b32 {s(sT5)}, {s(sT5)}, 10\ns_add_u32 {s(dst)}, {s(dst)}, {s(sT5)}"
        par = int(sig0 >= 29)
        return t + (f"s_add_u32 {s(sT5)}, {s(sT0)}, {sig0 - 29*par}\ns_and_b32 {s(sT4)}, {s(sT5)}, 7\ns_lshr_b32 {s(sT5)}, {s(sT5)}, 3\ns_lshl_b32 {s(sT5)}, {s(sT5)}, 4\n"
                    f"s_add_u32 {s(sT5)}, {s(sT5)}, {s(sT4)}\ns_add_u32 {s(sT5)}, {s(sT5)}, {8*par}\ns_lshl_b32 {s(sT5)}, {s(sT5)}, 10\ns_add_u32 {s(dst)}, {s(dst)}, {s(sT5)}")

    def q_flag(self, soff):
        return [self.it(f"v_mov_b32 v11, {s(sNONCE)}"),
                self.vmi(f"buffer_store_dword v11, {v(self.vFL)}, {s(sWS,4)}, {s(soff)} offen {'sc0 sc1' if self.o['fsc'] else 'sc1'}", "f")]

    def q_gelu_setup(self):
        sHB, sFL = 26, 27; vO = 12
        q = [self.it("\n".join(self.ho_base(4 + p, SIG0[p]) for p in range(3)) + f"\ns_lshl_b32 {s(sT1)}, {s(sI)}, 1\ns_add_u32 {s(sT1)}, {s(sT1)}, {s(sRH)}\ns_mul_i32 {s(sFL)}, {s(sT1)}, {3*FG}\ns_lshl_b32 {s(sT1)}, {s(sT0)}, {FS}\ns_add_u32 {s(sFL)}, {s(sFL)}, {s(sT1)}\ns_add_u32 {s(sFL)}, {s(sFL)}, {WS_FH}")]
        t = f"s_mul_i32 {s(sT1)}, {s(sG)}, 6\ns_add_u32 {s(sT1)}, {s(sT1)}, {s(sCH)}\nv_lshlrev_b32 v11, 4, v1"
        for p in range(3): t += f"\ns_cmp_lt_u32 {s(sT1)}, {43-2*p}\ns_cselect_b32 {s(sT2)}, 0, {hx(OOB)}\nv_or_b32 {v(vO+p)}, {s(sT2)}, v11"
        return q + [self.it(t)]
    def q_gelu(self, p, pk):
        G = self; sHB, sFL, sO = 26, 27, 3; vO = 12; t = G.TMP; q = []; n = 0
        for rb in range(2):
            A, B, sd = G.GC + rb, G.GC + 2 + rb, G.SG + 4*rb + 2
            for kh in range(2):
                c = G.acc(p, rb) + 8*kh; P = t + 8 + 4*(n & 1); n += 1
                if self.o["pk"] and pk:
                    sel = rb
                    w = [f"v_pk_mul_f32 {v(t+j,2)}, {v(c+j,2)}, {v(c+j,2)}" for j in range(0, 8, 2)]
                    w += [f"v_pk_fma_f32 {v(t+j,2)}, {v(t+j,2)}, {v(G.GC+2,2)}, {v(G.GC,2)} op_sel:[0,{sel},{sel}] op_sel_hi:[1,{sel},{sel}]" for j in range(0, 8, 2)]
                    w += [f"v_pk_mul_f32 {v(t+j,2)}, {v(c+j,2)}, {v(t+j,2)}" for j in range(0, 8, 2)]
                    w += [f"v_exp_f32 {v(t+j)}, {v(t+j)}" for j in range(8)]
                    w += [f"v_pk_fma_f32 {v(t+j,2)}, {v(t+j,2)}, {v(sd,2)}, {v(sd,2)} op_sel:[0,0,0] op_sel_hi:[1,0,0]" for j in range(0, 8, 2)]
                    w += [f"v_rcp_f32 {v(t+j)}, {v(t+j)}" for j in range(8)]
                    w += [f"v_pk_mul_f32 {v(t+j,2)}, {v(c+j,2)}, {v(t+j,2)}" for j in range(0, 8, 2)]
                else:
                    w = [f"v_mul_f32 {v(t+j)}, {v(c+j)}, {v(c+j)}" for j in range(8)]
                    w += [f"v_fma_f32 {v(t+j)}, {v(t+j)}, {v(B)}, {v(A)}" for j in range(8)]
                    w += [f"v_mul_f32 {v(t+j)}, {v(c+j)}, {v(t+j)}" for j in range(8)]
                    w += [f"v_exp_f32 {v(t+j)}, {v(t+j)}" for j in range(8)]
                    w += [f"v_fma_f32 {v(t+j)}, {v(t+j)}, {v(sd)}, {v(sd)}" for j in range(8)]
                    w += [f"v_rcp_f32 {v(t+j)}, {v(t+j)}" for j in range(8)]
                    w += [f"v_mul_f32 {v(t+j)}, {v(c+j)}, {v(t+j)}" for j in range(8)]
                w += [f"v_cvt_pk_bf16_f32 {v(P+j)}, {v(t+2*j)}, {v(t+2*j+1)}" for j in range(4)]
                q += self.its(w)
                q += [self.vmi(f"s_add_u32 {s(sO)}, {s(4+p)}, {(2*rb+kh)*65536}\nbuffer_store_dwordx4 {v(P,4)}, {v(vO+p)}, {s(sWS,4)}, {s(sO)} offen sc1", ("h", p))]
        return q + [self.tsi(f"cB_p{p}")]

    def q_hflag(self, p):
        return [self.vmw(("h", p))] + self.q_flag(27) + [self.it(f"s_add_u32 s27, s27, {FG}"), self.tsi(f"cB_flag{p}")]
    def q_h0(self):
        G = self
        return self.its([f"s_lshl_b32 {s(sT1)}, {s(sI)}, 1\ns_add_u32 {s(sT1)}, {s(sT1)}, {s(sHF)}\ns_mul_i32 {s(sC0)}, {s(sT1)}, {3*FG}\ns_add_u32 {s(sC0)}, {s(sC0)}, {WS_FH}", f"v_lshlrev_b32 {v(G.vGP)}, {FS}, v5"]) + \
               [("GI", 13), self.vmi(self.fload(G.vGF, G.vGP, sC0), "gf")]
    def aload(self, vm, sig):
        if sig >= 59: return
        G = self; sA = sKST; D = self.o["D"]
        if self.o["r2"]:
            st, j2, ch = pos_of(sig); n = 8 if st == 3 else 7; t = ""
            if sig == 14: t = f"s_add_u32 {s(sA)}, s16, {14*1024}\n"
            elif ch == 0:
                t = f"s_mov_b32 s19, {'s18' if st == 3 else 's17'}\n" if j2 == 0 else f"s_add_u32 s19, s19, 2048\ns_cmp_eq_u32 s19, {n*2048}\ns_cselect_b32 s19, 0, s19\n"
                t += f"s_add_u32 {s(sA)}, s19, s16\n" + (f"s_add_u32 {s(sA)}, {s(sA)}, {(SIG0+[43])[st]*1024}\n" if st else "")
            self.a(t + f"buffer_load_dwordx4 {v(G.RING[sig%D],4)}, {v(G.vA)}, {s(sWS,4)}, {s(sA)} offen offset:{1024*ch} sc1"); vm.issue(("A", sig))
            return
        o = hoff(sig, self.o["lay"]); d = (o & ~4095) - (hoff(sig - 1, self.o["lay"]) & ~4095) if sig else 0
        if d: self.a(f"s_add_u32 {s(sA)}, {s(sA)}, {hx(d)}")
        self.a(f"buffer_load_dwordx4 {v(G.RING[sig%D],4)}, {v(G.vA)}, {s(sWS,4)}, {s(sA)} offen offset:{o & 4095} sc1"); vm.issue(("A", sig))
    RING = [16 + 4*k for k in range(8)] + [72, 76, 80, 84, 88]
    def gcheck(self, vm, soff, two=False):
        a = self.a; G = self; L = self.lab("gc"); R = self.lab("gcok"); X = self.lab("gcx")
        vm.wait("gf")
        a(f"v_cmp_ne_u32 vcc, {s(sNONCE)}, {v(G.vGF)}\ns_cbranch_vccnz {L}")
        a.label(R)
        pre = ""
        if two:
            n = len(vm.q) - 1 - max(i for i, t in enumerate(vm.q) if t == "gb")
            pre = f"s_waitcnt vmcnt({n})\nv_cmp_ne_u32 vcc, {s(sNONCE)}, {v(G.vGB)}\ns_cbranch_vccz {R}\n"
        self.tail.append(f"{L}:\n" + pre + self.poll_text(G.vGP, G.vGF, soff, X, self.lab("gcy")) + f"\ns_branch {R}")
    def p2_pre(self):
        if self.stop == "p1": return
        self.gcheck(self.vm, sC0); self.ts("c_p0x")
        for sig in range(8): self.aload(self.vm, sig)
        G = self
        if self.o["kearly"]: self.a(f"s_add_u32 {s(sC0)}, {s(sC0)}, {FG}\nbuffer_load_dword {v(G.vGF)}, {v(G.vGP)}, {s(sWS,4)}, {s(sC0)} offen sc1"); self.vm.issue("gf")
    def typeB(self):
        a = self.a; G = self; o = self.o
        self.vm.q = list(self.vm0)
        for p in range(3):
            a(f"v_add_u32 v9, {s(sC0+p)}, v96\nbuffer_load_ushort {v(G.B1+p)}, v9, {s(sB1,4)}, 0 offen"); self.vm.issue("b1")
        self.flush(self.q_gelu_setup())
        pw = []
        if o["pw"]:
            pw = [("GI", o["pw"])] + [self.vmi(f"s_add_u32 s3, s27, {k*FG}\nbuffer_store_dword {v(G.vNZ)}, {v(G.vFL)}, {s(sWS,4)}, s3 offen sc1", "pw") for k in range(3)]
        q = self.q_stats("B", pw + self.q_p2setup())
        self.mpass("B", 0, q, o["bud0"])
        g1 = self.q_gelu(1, False)
        h0 = self.q_h0()
        q += self.q_fixup("B", 0) + self.q_fixup("B", 1) + h0[:2] + self.q_gelu(0, False) + g1[:o["fm"]*10] + self.q_hflag(0) + g1[o["fm"]*10:]
        self.mpass("B", 1, q, o["bud2"])
        self.ts("c_main")
        g2 = self.q_gelu(2, True); h = len(g2) // 4 * o["g2h"]
        self.flush(q + h0[3:] + ["NEXT"] + self.q_fixup("B", 2) + g2[:h] + self.q_hflag(1) + [(0, self.p2_pre)] + g2[h:])
        self.ts("cB_gelu")
        if self.stop == "p1": self.vm.wait(("h", 2)); self.flush(self.q_flag(27))

    def pair_recv(self, kind, reads):
        a = self.a; L = self.lab("pw"); X = self.lab("pwx")
        a(f"s_xor_b32 {s(sT0)}, {s(sWAVE)}, 2\ns_lshl_b32 {s(sT0)}, {s(sT0)}, 4\ns_add_u32 {s(sT0)}, {s(sT0)}, {SC_FLAG+4*kind}\nv_mov_b32 v12, {s(sT0)}\ns_mov_b32 {s(sSPIN)}, 0")
        a.label(L)
        a("ds_read_b32 v13, v12")
        for r in reads: a(r)
        a(f"s_add_u32 {s(sSPIN)}, {s(sSPIN)}, 1\ns_cmp_gt_u32 {s(sSPIN)}, {SPIN_MAX}\ns_waitcnt lgkmcnt(0)\ns_cbranch_scc1 {X}")
        a(f"v_cmp_eq_u32 vcc, 0, v13\ns_cbranch_vccnz {L}")
        a.label(X)
    def pair_send(self, kind):
        a = self.a
        a(f"s_lshl_b32 {s(sT0)}, {s(sWAVE)}, 4\ns_add_u32 {s(sT0)}, {s(sT0)}, {SC_FLAG+4*kind}\nv_mov_b32 v12, {s(sT0)}\nv_mov_b32 v13, 1\nds_write_b32 v12, v13")

    ON = 156
    RR = (128, 32)
    def q_kv_pre(self):
        G = self
        return ["NEXT"] + self.its([f"ds_read_b128 {v(G.RR[rb]+4*k,4)}, v6 offset:{128*rb+32*k}" for rb in range(2) for k in range(4)]
                                   + [f"v_mov_b32 {v(G.ON+k)}, 0x3f803f80" for k in range(4)] + ["v_xor_b32 v12, 32, v96"])
    def q_kv(self):
        G = self; q = []
        KV, ZZ, u, ON = 16, 48, G.TMP + 16, G.ON
        pend = []
        for n, (rb, kh) in enumerate(((0, 0), (0, 1), (1, 0), (1, 1))):
            c = G.acc(0, rb) + 8*kh; cv = G.acc(1, rb) + 8*kh; r = G.RR[rb] + 8*kh
            w = [f"v_pk_mul_f32 {v(c+j,2)}, {v(c+j,2)}, {v(r+j,2)}" for j in range(0, 8, 2)]
            e = [f"v_exp_f32 {v(u+j)}, {v(c+j)} clamp" for j in range(8)]
            w += pend[:1] + e[:4] + pend[1:] + e[4:]
            w += [f"v_max_f32 {v(c+j)}, v10, {v(c+j)}" for j in range(8)]
            w += [f"v_pk_mul_f32 {v(cv+j,2)}, {v(cv+j,2)}, {v(r+j,2)}" for j in range(0, 8, 2)]
            w += [f"v_pk_fma_f32 {v(u+j,2)}, {v(c+j,2)}, v[10:11], {v(u+j,2)} op_sel:[0,1,0] op_sel_hi:[1,1,1]" for j in range(0, 8, 2)]
            w += [f"v_cvt_pk_bf16_f32 {v(cv+j)}, {v(cv+2*j)}, {v(cv+2*j+1)}" for j in range(4)]
            w += [f"v_cvt_pk_bf16_f32 {v(c+j)}, {v(u+2*j)}, {v(u+2*j+1)}" for j in range(4)]
            pend = [f"v_mfma_f32_32x32x16_bf16 {v(ZZ,16)}, {v(c,4)}, {v(ON,4)}, {v(ZZ,16) if n else 0}",
                    f"v_mfma_f32_32x32x16_bf16 {v(KV,16)}, {v(c,4)}, {v(cv,4)}, {v(KV,16) if n else 0}"]
            q += self.its(w)
        q += self.its(pend) + [self.tsi("cA_kv"), self.it("v_mov_b32 v13, 1")]
        q += self.its([f"v_cndmask_b32 {v(u+j)}, {v(KV+8+j)}, {v(ZZ+8+j)}, {s(sLM,2)}" for j in range(8)])
        q += self.its([f"ds_write_b128 v90, {v(u,4)}", f"ds_write_b128 v90, {v(u+4,4)} offset:16", "ds_write_b32 v96, v13"])
        q += self.its([f"v_cndmask_b32 {v(ZZ+j)}, {v(ZZ+j)}, {v(KV+j)}, {s(sLM,2)}" for j in range(8)])
        q += [(40, lambda: self.pair_spin([f"ds_read_b128 {v(ZZ+8,4)}, v91", f"ds_read_b128 {v(ZZ+12,4)}, v91 offset:16"]))]
        q += self.its([f"v_pk_add_f32 {v(ZZ+j,2)}, {v(ZZ+j,2)}, {v(ZZ+8+j,2)}" for j in range(0, 8, 2)])
        q += self.its([f"v_pk_mul_f32 {v(ZZ+j,2)}, {v(ZZ+j,2)}, v[0:1] op_sel_hi:[1,0]" for j in range(0, 8, 2)])
        q += self.its([f"v_cvt_pk_bf16_f32 {v(u+j)}, {v(ZZ+2*j)}, {v(ZZ+2*j+1)}" for j in range(4)])
        q += [self.vmi(f"buffer_store_dwordx4 {v(u,4)}, v15, {s(sWS,4)}, s85 offen sc1", "kv"), self.tsi("cA_pub")]
        return q
    def pair_spin(self, reads, off=0):
        a = self.a; L = self.lab("pw"); X = self.lab("pwx")
        a(f"s_mov_b32 {s(sSPIN)}, 0")
        a.label(L)
        a(f"ds_read_b32 v13, v12 offset:{off}")
        for r in reads: a(r)
        a(f"s_add_u32 {s(sSPIN)}, {s(sSPIN)}, 1\ns_cmp_gt_u32 {s(sSPIN)}, {SPIN_MAX}\ns_waitcnt lgkmcnt(0)\ns_cbranch_scc1 {X}")
        a(f"v_cmp_eq_u32 vcc, 0, v13\ns_cbranch_vccnz {L}")
        a.label(X)
    def q_kvflag(self):
        sFL, sHD = 27, 3
        return [self.vmw("kv")] + self.q_flag(sHD) + [self.tsi("cA_flag")]
    def q_phiq(self):
        G = self; u = G.TMP; q = []
        for rb in range(2):
            rl, ep, r = G.GC + rb, G.GC + 2 + rb, G.SG + 4*rb + 1
            for hh in range(2):
                c = G.acc(2, rb) + 8*hh
                w = [f"v_mul_f32 {v(u+j)}, {v(rl)}, {v(c+j)}" for j in range(8)]
                w += [f"v_exp_f32 {v(u+j)}, {v(u+j)} clamp" for j in range(8)]
                w += [f"v_max_f32 {v(c+j)}, {v(ep)}, {v(c+j)}" for j in range(8)]
                w += [f"v_fmac_f32 {v(u+j)}, {v(c+j)}, {v(r)}" for j in range(8)]
                w += [f"v_cvt_pk_bf16_f32 {v(c+j)}, {v(u+2*j)}, {v(u+2*j+1)}" for j in range(4)]
                q += self.its(w)
        return q + [self.tsi("cA_q")]

    def typeA(self):
        a = self.a; G = self; T = G.TMP; vm = self.vm
        vm.q = list(self.vm0)
        a("v_and_b32 v8, 1, v4\nv_lshlrev_b32 v8, 2, v8\nv_sub_u32 v8, v5, v8\nv_mov_b32 v9, 0x3f80\nv_mov_b32 v10, 0x3f800000")
        for k, e in enumerate((0, 2, 8, 10)):
            a(f"v_cmp_eq_u32 vcc, {e}, v8\nv_cndmask_b32 v11, 0, v9, vcc\nv_cmp_eq_u32 vcc, {e+1}, v8\nv_cndmask_b32 {v(G.IDN+k)}, v11, v10, vcc")
        sREC, sFL, sHD = 26, 27, 3
        a(f"s_lshl_b32 {s(sHD)}, {s(sG)}, 1\ns_add_u32 {s(sHD)}, {s(sHD)}, {s(sCH)}\ns_lshl_b32 {s(sHD)}, {s(sHD)}, 1\ns_add_u32 {s(sHD)}, {s(sHD)}, {s(sRH)}")
        a(f"s_mul_i32 {s(sREC)}, {s(sHD)}, 10240\ns_add_u32 {s(sREC)}, {s(sREC)}, {WS_KV}\ns_lshl_b32 {s(sFL)}, {s(sHD)}, {FS+4}\ns_add_u32 {s(sFL)}, {s(sFL)}, {WS_FK}")
        a(f"s_lshl_b32 {s(sHD)}, {s(sI)}, {FS}\ns_add_u32 {s(sHD)}, {s(sHD)}, {s(sFL)}\ns_mul_i32 s85, {s(sI)}, 640\ns_add_u32 s85, s85, {s(sREC)}")
        a(f"v_cmp_gt_u32 {s(sLM,2)}, 16, v2\nv_lshl_add_u32 v12, v3, 4, v2\nv_lshlrev_b32 v12, 4, v12\nv_lshlrev_b32 v13, 6, v3\nv_add_u32 v13, 512, v13")
        a(f"v_cndmask_b32 v14, v13, v12, {s(sLM,2)}")
        a(f"v_lshl_add_u32 v13, v5, 4, v13\nv_cndmask_b32 v15, v13, v12, {s(sLM,2)}\nv_mov_b32 v12, {hx(OOB)}\nv_cmp_gt_u32 vcc, 20, v2\nv_cndmask_b32 v15, v12, v15, vcc")
        a(f"v_mov_b32 v9, {fl(0.6931471805599453)}\nv_cndmask_b32 v0, 1.0, v9, {s(sLM,2)}")
        a(f"v_mov_b32 v10, {fl(1e-6*1.4426950408889634)}\nv_mov_b32 v11, v9")
        o = self.o
        pw = []
        if o["pw"]:
            pw = [("GI", o["pw"]), self.vmi(f"buffer_store_dword {v(G.vNZ)}, {v(G.vFL)}, {s(sWS,4)}, s3 offen sc1", "pw"),
                  self.it(f"s_lshl_b32 {s(sT1)}, {s(sI)}, 1\ns_add_u32 {s(sT1)}, {s(sT1)}, {s(sRH)}\ns_lshl_b32 {s(sT1)}, {s(sT1)}, 4\ns_lshl_b32 {s(sT2)}, {s(sG)}, 1"),
                  self.it(f"s_add_u32 {s(sT1)}, {s(sT1)}, {s(sT2)}\ns_add_u32 {s(sT1)}, {s(sT1)}, {s(sCH)}\ns_lshl_b32 {s(sT1)}, {s(sT1)}, {FS}\ns_add_u32 {s(sT1)}, {s(sT1)}, {WS_FO}"),
                  self.vmi(f"buffer_store_dword {v(G.vNZ)}, {v(G.vFL)}, {s(sWS,4)}, {s(sT1)} offen sc1", "pw")]
        q = self.q_stats("A", pw)
        q += self.its([f"s_mul_i32 {s(sT1)}, {s(sWAVE)}, 1280\ns_add_u32 {s(sT1)}, {s(sT1)}, {SC_KVX}\nv_add_u32 v93, {s(sT1)}, v14",
                       "v_xor_b32 v8, 16, v2", "v_lshl_add_u32 v8, v3, 4, v8", "v_lshlrev_b32 v9, 0, v3", "v_add_u32 v9, 32, v9",
                       f"v_cndmask_b32 v8, v8, v9, {s(sLM,2)}", f"v_lshl_add_u32 v90, v8, 5, {s(sT1)}",
                       f"s_xor_b32 {s(sT1)}, {s(sWAVE)}, 2\ns_mul_i32 {s(sT1)}, {s(sT1)}, 1280\ns_add_u32 {s(sT1)}, {s(sT1)}, {SC_KVX}\nv_add_u32 v92, {s(sT1)}, v14",
                       "v_lshl_add_u32 v8, v3, 4, v2", f"v_cndmask_b32 v8, v9, v8, {s(sLM,2)}", f"v_lshl_add_u32 v91, v8, 5, {s(sT1)}"])
        q += self.its([f"s_lshl_b32 {s(sT1)}, {s(sWAVE)}, 4\ns_add_u32 {s(sT1)}, {s(sT1)}, {SC_FLAG}\nv_mov_b32 v96, {s(sT1)}"])
        q += self.q_kv_pre()
        self.mpass("A", 0, q, o["bud0"])
        self.flush(q + ["NEXT"] + self.q_fixup("A", 0) + self.q_fixup("A", 1) + self.q_kv()); self.lg.q = []
        sREC, sFL = 26, 27
        h0 = self.q_h0()
        GA = G.ACC; KP, ZP = G.ACC + 40, G.ACC + 44
        q = [("GI", o["fmA"])] + self.q_kvflag() + self.q_p2setup() + h0[:2]
        q += self.its(["v_mul_u32_u24 v97, 640, v3", "v_lshl_add_u32 v97, v2, 4, v97",
                       "v_and_b32 v8, 7, v5", "v_lshl_add_u32 v8, v8, 1, v3", "v_mul_u32_u24 v98, 640, v8", "v_and_b32 v9, 1, v4", "v_lshl_add_u32 v98, v9, 6, v98", "v_add_u32 v98, 512, v98",
                       f"s_xor_b32 {s(sT1)}, {s(sWAVE)}, 2\ns_mul_i32 {s(sT1)}, {s(sT1)}, 1280\ns_add_u32 {s(sT1)}, {s(sT1)}, {SC_KVX}\nv_lshl_add_u32 v8, v3, 3, {s(sT1)}",
                       "v_lshl_add_u32 v90, v2, 4, v8", "v_lshl_add_u32 v91, v9, 6, v8", "v_add_u32 v91, 512, v91"])
        L = self.lab("kf"); R = self.lab("kfok")
        q += [("GI", o["kfs"]), self.vmi(self.fload(11, G.vGP, sFL), "kf")]
        kq = [("GI", o["kfc"]), self.vmw("kf"),
              (0, lambda: a(f"v_cmp_ne_u32 vcc, {s(sNONCE)}, v11\ns_cbranch_vccnz {L}\n{R}:")), self.tsi("cA_poll")]
        self.tail.append(f"{L}:\n" + self.poll_text(G.vGP, 11, sFL, self.lab("kfx"), self.lab("kfy")) + f"\ns_branch {R}")
        def gl(k):
            if k == 8: a(f"buffer_load_dwordx4 {v(GA+32,4)}, v98, {s(sWS,4)}, {s(sREC)} offen sc1")
            else: a((f"s_add_u32 s3, {s(sREC)}, {k*1280}\n" if k % 4 == 0 else "") + f"buffer_load_dwordx4 {v(GA+4*k,4)}, v97, {s(sWS,4)}, s3 offen offset:{1280*(k%4)} sc1")
            vm.issue(("ga", k))
        kq += [(0, lambda k=k: gl(k)) for k in (8, 0, 1, 2, 3, 4, 5, 6, 7)]
        if o["kpos"] == 0: q += kq
        self.mpass("A", 1, q, o["budA"])
        self.ts("c_main")
        pq = self.q_phiq(); h = (len(pq) - 1) // 4 * o["pqh"]
        self.flush(q + ["NEXT"] + self.q_fixup("A", 2))
        if o["kpos"] == 2: self.flush(pq); pq = []
        if o["kpos"]: self.flush(kq)
        self.flush(h0[3:])
        a(self.ho_base(sREC, 43))
        a(f"s_lshl_b32 {s(sT1)}, {s(sI)}, 1\ns_add_u32 {s(sT1)}, {s(sT1)}, {s(sRH)}\ns_lshl_b32 {s(sFL)}, {s(sT1)}, {FS+4}\ns_lshl_b32 {s(sT1)}, {s(sT0)}, {FS}\ns_add_u32 {s(sFL)}, {s(sFL)}, {s(sT1)}\ns_add_u32 {s(sFL)}, {s(sFL)}, {WS_FO}")
        a(f"s_lshl_b32 {s(sT2)}, {s(sRH)}, 16\ns_xor_b32 {s(sT3)}, {s(sT2)}, 65536")
        a(f"s_add_u32 {s(sT2)}, {s(sT2)}, {s(sREC)}\ns_add_u32 {s(sT3)}, {s(sT3)}, {s(sREC)}")
        a("v_lshlrev_b32 v10, 4, v1\nv_mov_b32 v13, 1")
        self.flush(pq[:h])
        vm.wait(("ga", 8)); a(f"v_mfma_f32_16x16x32_bf16 {v(ZP,4)}, {v(G.IDN,4)}, {v(GA+32,4)}, 0")
        for k in range(8):
            vm.wait(("ga", k)); a(f"v_mfma_f32_16x16x32_bf16 {v(KP,4)}, {v(G.IDN,4)}, {v(GA+4*k,4)}, {v(KP,4) if k else 0}")
        self.ts("cA_gath")
        for m in ("quad_perm:[1,0,3,2]", "quad_perm:[2,3,0,1]", "row_half_mirror"):
            for j in range(4): a(f"v_add_f32_dpp {v(ZP+j)}, {v(ZP+j)}, {v(ZP+j)} {m} row_mask:0xf bank_mask:0xf")
        for r_ in (KP, ZP):
            for j in range(2): a(f"v_cvt_pk_bf16_f32 {v(r_+j)}, {v(r_+2*j)}, {v(r_+2*j+1)}")
        a(f"ds_write_b64 v90, {v(KP,2)}\nds_write_b64 v91, {v(ZP,2)}\nds_write_b32 v96, v13 offset:4")
        self.flush(pq[h:])
        F = [T + 8, T + 12]; t = T; PV = G.XS
        self.pair_spin([f"ds_read_b128 {v(F[0],4)}, v92", f"ds_read_b128 {v(F[1],4)}, v93"], off=4)
        O = [G.ACC + 16*k for k in range(4)]
        for hh in range(2):
            for rb in range(2): a(f"v_mfma_f32_32x32x16_bf16 {v(O[2*rb+hh],16)}, {v(F[hh],4)}, {v(G.acc(2,rb)+8*hh,4)}, 0")
        if not o["ofirst"]: self.p2_pre()
        n = 0
        for hh in range(2):
            for rb in range(2):
                o = O[2*rb+hh]; P = PV + 4*(n & 1); n += 1
                a(f"v_add_f32 {v(t)}, {fl(1e-6)}, {v(o+8)}\nv_rcp_f32 {v(t)}, {v(t)}")
                a(f"s_add_u32 {s(sT4)}, {s(sT2+hh)}, {rb*131072}")
                for j in range(8): a(f"v_mul_f32 {v(o+j)}, {v(t)}, {v(o+j)}")
                for j in range(4): a(f"v_cvt_pk_bf16_f32 {v(P+j)}, {v(o+2*j)}, {v(o+2*j+1)}")
                a(f"buffer_store_dwordx4 {v(P,4)}, v10, {s(sWS,4)}, {s(sT4)} offen sc1"); vm.issue("o")
        self.ts("cA_o")
        if self.o["ofirst"] and self.stop != "p1":
            self.p2_pre(); vm.wait("o"); self.flush(self.q_flag(sFL)); self.ts("cA_oflag")
            a(f"s_lshl_b32 {s(sT0)}, s2, 2\ns_add_u32 {s(sT0)}, {s(sT0)}, {s(sWAVE)}\ns_lshl_b32 {s(sT0)}, {s(sT0)}, 7\ns_add_u32 {s(sFL)}, {s(sT0)}, {WS_DUM}")
        if self.stop == "p1": vm.wait("o"); self.flush(self.q_flag(sFL))

    Y, S2 = 160, 192
    AR = 16; D = 8
    BF = 48
    vBA = 144
    vA, vXC, vXP, vOUT = 150, 151, 152, 153
    vPW, vDW, vPF, vMF, vGP, vCK, vGF, vLV = 154, 155, 156, 157, 0, 159, 158, 9
    vXR, vGB = 124, 10
    XR = 76
    def q_p2setup(self):
        G = self; out = []
        def a(t):
            cur = []
            for ln in t.split("\n"):
                cur.append(ln)
                if ln.startswith("v_"): out.append(self.it("\n".join(cur))); cur = []
            if cur: out.append(self.it("\n".join(cur)))
        for d, ptr, size in ((sOUT, 20, 2097152), (sB2, 18, 1024)): a(f"s_mov_b32 {s(d)}, {s(ptr)}\ns_mov_b32 {s(d+1)}, {s(ptr+1)}"); a(f"s_mov_b32 {s(d+2)}, {size}\ns_mov_b32 {s(d+3)}, 0x00020000")
        sA = sKST
        a(f"s_lshl_b32 {s(sP1)}, {s(sI)}, 1\ns_add_u32 {s(sP1)}, {s(sP1)}, {s(sHF)}\ns_lshl_b32 {s(sP2)}, {s(sP1)}, 2\ns_add_u32 {s(sP2)}, {s(sP2)}, {s(sWAVE)}\ns_lshl_b32 {s(sA)}, {s(sP2)}, 16")
        if self.o["r2"]:
            a(self.rot2(17, 18, sP2)); a(f"s_lshl_b32 s17, s17, 11\ns_lshl_b32 s18, s18, 11\ns_mov_b32 s16, {s(sA)}")
        a(f"v_lshlrev_b32 {v(G.vA)}, 4, v1")
        a(f"v_lshrrev_b32 v8, 2, v5\nv_lshl_add_u32 v8, v3, 2, v8\ns_lshl_b32 {s(sP2)}, {s(sCH)}, 4\nv_add_u32 v8, {s(sP2)}, v8\nv_lshlrev_b32 v8, 7, v8")
        a("v_and_b32 v9, 1, v5\nv_lshl_add_u32 v8, v9, 3, v8")
        a("v_and_b32 v9, 1, v4\nv_lshlrev_b32 v9, 1, v9\nv_bfe_u32 v0, v5, 1, 1\nv_add_u32 v9, v9, v0\nv_lshrrev_b32 v0, 3, v5\nv_lshlrev_b32 v0, 2, v0\nv_xor_b32 v9, v9, v0")
        a(f"s_lshl_b32 {s(sP2)}, {s(sCH)}, 2\nv_xor_b32 v9, {s(sP2)}, v9")
        a(f"v_lshl_add_u32 {v(G.vBA)}, v9, 4, v8\nv_xor_b32 v9, 4, v9\nv_lshl_add_u32 {v(G.vBA+1)}, v9, 4, v8")
        for w in (1, 2):
            for cb in range(2): a(f"v_add_u32 {v(G.vBA+2*w+cb)}, {65536*w}, {v(G.vBA+cb)}")
        a(f"s_lshl_b32 {s(sP2)}, {s(sWAVE)}, 12\ns_add_u32 {s(sP2)}, {s(sP2)}, {XCH_Y}\nv_add_u32 {v(G.vXC)}, {s(sP2)}, {v(G.vA)}")
        a(f"s_xor_b32 {s(sP2)}, {s(sWAVE)}, 1\ns_lshl_b32 {s(sP2)}, {s(sP2)}, 12\ns_add_u32 {s(sP2)}, {s(sP2)}, {XCH_Y}\nv_add_u32 {v(G.vXP)}, {s(sP2)}, {v(G.vA)}")
        a(f"v_and_b32 v8, 3, v1\nv_lshlrev_b32 v8, 2, v8\nv_add_u32 {v(G.vPW)}, {SC_PROG}, v8\nv_lshlrev_b32 {v(G.vGP)}, {FS}, v5")
        a(f"s_lshl_b32 {s(sP2)}, {s(sWAVE)}, 2\ns_add_u32 {s(sP2)}, {s(sP2)}, {SC_PROG+16}\nv_mov_b32 {v(G.vDW)}, {s(sP2)}")
        a(f"s_lshl_b32 {s(sP2)}, {s(sWAVE)}, 4\ns_add_u32 {s(sP2)}, {s(sP2)}, {SC_FLAG}\nv_mov_b32 {v(G.vMF)}, {s(sP2)}\ns_xor_b32 {s(sP2)}, {s(sP2)}, 16\nv_mov_b32 {v(G.vPF)}, {s(sP2)}")
        a(f"s_lshl_b32 {s(sC0+1)}, {s(sP1)}, {FS+4}\ns_add_u32 {s(sC0+1)}, {s(sC0+1)}, {WS_FO}")
        gs = [int(c) for c in str(self.o["grp"])]; g0 = 0
        a(f"s_mov_b32 {s(sP3)}, {s(sCT)}")
        for n in gs:
            if n > 1:
                a(f"s_lshr_b32 {s(sP2)}, s2, 6\ns_mul_i32 {s(sP2)}, {s(sP2)}, {max(1, (n+1)//4)}\ns_add_u32 {s(sP2)}, {s(sP2)}, {s(sCT)}")
                a(f"s_mul_i32 {s(sP4)}, {s(sP2)}, {-(-256//n)}\ns_lshr_b32 {s(sP4)}, {s(sP4)}, 8\ns_mul_i32 {s(sP4)}, {s(sP4)}, {n}\ns_sub_u32 {s(sP2)}, {s(sP2)}, {s(sP4)}")
                a(f"s_sub_u32 {s(sP2)}, {s(sCT)}, {s(sP2)}\ns_add_u32 {s(sP4)}, {s(sP2)}, {n}\ns_cmp_lt_i32 {s(sP2)}, {g0}\ns_cselect_b32 {s(sP2)}, {s(sP4)}, {s(sP2)}")
                a(f"s_sub_u32 {s(sP4)}, {s(sCT)}, {g0}\ns_cmp_lt_u32 {s(sP4)}, {n}\ns_cselect_b32 {s(sP3)}, {s(sP2)}, {s(sP3)}")
            g0 += n
        a(f"s_lshl_b32 {s(sP3)}, {s(sP3)}, 2\ns_lshl_b32 {s(sP2)}, {s(sHF)}, 1\ns_add_u32 {s(sP3)}, {s(sP3)}, {s(sP2)}\ns_add_u32 {s(sP3)}, {s(sP3)}, {s(sRH)}\ns_lshl_b32 {s(sP3)}, {s(sP3)}, 12")
        a(f"v_bfe_u32 v8, v1, 1, 3\ns_lshl_b32 {s(sP2)}, {s(sCH)}, 2\nv_xor_b32 v8, {s(sP2)}, v8\nv_lshlrev_b32 v8, 4, v8\nv_lshl_add_u32 v8, v3, 3, v8")
        a(f"v_lshl_add_u32 v8, v2, 7, v8\nv_add_u32 {v(G.vXR)}, {s(sP3)}, v8")
        a(f"s_lshl_b32 {s(sP1)}, {s(sP1)}, 1\ns_add_u32 {s(sP1)}, {s(sP1)}, {s(sRH)}\ns_lshl_b32 {s(sP1)}, {s(sP1)}, 15")
        a(f"s_lshl_b32 {s(sP2)}, {s(sCT)}, 1\ns_add_u32 {s(sP2)}, {s(sP2)}, {s(sCH)}\ns_lshl_b32 {s(sP2)}, {s(sP2)}, 6\ns_add_u32 {s(sP1)}, {s(sP1)}, {s(sP2)}")
        a(f"v_lshl_add_u32 v8, v2, 10, {s(sP1)}\nv_lshl_add_u32 {v(G.vOUT)}, v3, 4, v8\ns_mov_b32 {s(sC0+2)}, {s(sP2)}")
        return out

    def phase2(self):
        a = self.a; G = self; D = self.o['D']; sA = sKST
        RING = G.RING
        a.label("L_phase2")
        vm = Cnt(a, "vmcnt", 63); lg = Cnt(a, "lgkmcnt", 15)
        aload = lambda sig: self.aload(vm, sig)
        def breads(sig):
            if sig >= 59: return []
            base = b_lds(sig); w = base >> 16; off = base & 0xffff
            return [f"ds_read_b64_tr_b16 {v(G.BF+8*(sig%3)+4*cb+2*q,2)}, {v(G.vBA+2*w+cb)} offset:{off+1024*q}" for cb in range(2) for q in range(2)]
        def ds(x, tag): a(x); lg.issue(tag)
        def lcheck(vaddr, off, lv, tag, extra=()):
            L = self.lab("lc"); R = self.lab("lcok"); X = self.lab("lcx")
            lg.wait(tag)
            a(f"v_cmp_gt_u32 vcc, {lv}, {v(G.vCK)}\ns_cbranch_vccnz {L}")
            a.label(R)
            ex = "".join(e + "\n" for e in extra)
            self.tail.append(f"""{L}:
s_mov_b32 {s(sSPIN)}, 0
{X}:
ds_read_b32 {v(G.vCK)}, {v(vaddr)} offset:{off}
{ex}s_add_u32 {s(sSPIN)}, {s(sSPIN)}, 1
s_cmp_gt_u32 {s(sSPIN)}, {SPIN_MAX*8}
s_waitcnt lgkmcnt(0)
s_cbranch_scc1 {R}
v_cmp_gt_u32 vcc, {lv}, {v(G.vCK)}
s_cbranch_vccnz {X}
s_branch {R}""")
        def lread(vaddr, off, tag): ds(f"ds_read_b32 {v(G.vCK)}, {v(vaddr)} offset:{off}", tag)
        def lsig(vaddr, off, lv): a(f"v_mov_b32 {v(G.vLV)}, {lv}"); ds(f"ds_write_b32 {v(vaddr)}, {v(G.vLV)} offset:{off}", "sig")
        def gload(soff, r, tag): a(self.fload(r, G.vGP, soff)); vm.issue(tag)
        gcheck = lambda soff: self.gcheck(vm, soff, bool(self.o['kearly']))
        self.ts("c_p0"); assert self.o["g2h"] < 4
        vm.q = [("A", k) for k in range(8)] + ["gf"] * bool(self.o["kearly"]) + ["pub"] * (4 - self.o["g2h"])
        lread(G.vPW, 0, "ck")
        a(f"v_lshl_add_u32 v8, v2, 1, {s(sC0+2)}\nv_mov_b32 v11, {s(sNONCE)}")
        assert D == 8
        for sig in range(8, D): aload(sig)
        lcheck(G.vPW, 0, 1, "ck")
        need_prog = {6: 2, 21: 3, 36: 4, 43: 5, 53: 6}
        done_at = {6: 1, 16: 2, 20: 3, 30: 4}
        gat = {15 - D: sC0, 29 - D: sC0, 43 - D: sC0 + 1}
        yr = [f"ds_read_b128 {v(96+4*q,4)}, {v(G.vXP)} offset:{1024*q}" for q in range(4)]
        for sig in range(2):
            for r in breads(sig): ds(r, ("B", sig))
        T = 96; YK = 112; BB = 128; XX = 240
        work = []
        for q in range(8):
            work += [f"v_lshlrev_b32 {v(XX+2*q)}, 16, {v(G.XR+q)}", f"v_and_b32 {v(XX+2*q+1)}, 0xffff0000, {v(G.XR+q)}"]
        work += ["v_cmp_gt_u32 vcc, 32, v1\nv_mov_b32 v12, 0x3f80", f"v_cndmask_b32 {v(BB+4)}, 0, v12, vcc"] + [f"v_mov_b32 {v(BB+k)}, 0" for k in (1, 2, 3, 5, 6, 7)]
        gw = []
        for half in range(2):
            o = 8 * half
            gw += [f"v_add_f32 {v(YK+o+j)}, {v(T+o+j)}, {v(G.Y+o+j)}" for j in range(8)]
            gw += [f"v_mul_f32 {v(T+o+j)}, {fl(-1.4426950408889634)}, {v(YK+o+j)}" for j in range(8)]
            gw += [f"v_exp_f32 {v(T+o+j)}, {v(T+o+j)}" for j in range(8)]
            gw += [f"v_add_f32 {v(T+o+j)}, 1.0, {v(T+o+j)}" for j in range(8)]
            gw += [f"v_rcp_f32 {v(T+o+j)}, {v(T+o+j)}" for j in range(8)]
            gw += [f"v_mul_f32 {v(YK+o+j)}, {v(YK+o+j)}, {v(T+o+j)}" for j in range(8)]
        held = []
        for sig in range(59):
            acc = G.Y if sig < 43 else G.S2; first = sig in (0, 43)
            lg.wait(("B", sig)); vm.wait(("A", sig))
            A = v(RING[sig % D], 4)
            m = [f"v_mfma_f32_32x32x16_bf16 {v(acc+16*cb,16)}, {v(G.BF+8*(sig%3)+4*cb,4)}, {A}, {0 if first else v(acc+16*cb,16)}" for cb in range(2)]
            self.ts(f"c_s{sig}")
            if sig >= 56 and self.o["tl"]:
                for r in breads(sig + 2): ds(r, ("B", sig + 2))
                held.append((m[0], gw[8*(sig-47): 8*(sig-46)])); a(m[1]); continue
            a(m[0])
            if sig in done_at: lsig(G.vDW, 0, done_at[sig])
            if sig in need_prog: lcheck(G.vPW, 0, need_prog[sig], "ck")
            if sig == 44:
                lcheck(G.vPW, 16, 4, "ck")
                for q in range(4): ds(f"ds_write_b128 {v(G.vXC)}, {v(G.Y+16+4*q,4)} offset:{1024*q}", "yw")
                lsig(G.vMF, 8, 1)
            if sig == 47: lcheck(G.vPF, 8, 1, "yr", yr)
            rd = breads(sig + 2)
            for r in rd[:2]: ds(r, ("B", sig + 2))
            fill = []
            if 9 <= sig <= 14: fill = work[4*(sig-9): 4*(sig-8)]
            if sig == 16: fill = ["s_nop 0", f"v_mfma_f32_32x32x16_bf16 {v(G.Y,16)}, {v(BB,4)}, {v(BB+4,4)}, {v(G.Y,16)}"]
            if 47 <= sig <= 58: fill = gw[8*(sig-47): 8*(sig-46)]
            h = len(fill) // 2
            for f in fill[:h]: a(f)
            a(m[1])
            for r in rd[2:]: ds(r, ("B", sig + 2))
            if sig + 1 in need_prog: lread(G.vPW, 0, "ck")
            if sig == 43: lread(G.vPW, 16, "ck")
            if sig == 45:
                lread(G.vPF, 8, "yr")
                for r in yr: ds(r, "yr")
            if sig == self.o["pf"]:
                vm.wait("pub"); a(f"buffer_store_dword v11, {v(G.vFL)}, {s(sWS,4)}, s27 offen sc1"); vm.issue("f"); self.ts("c_pflag")
            if sig in gat: self.ts(f"c_gp{sig}"); gcheck(gat[sig]); self.ts(f"c_g{sig}")
            aload(sig + D)
            if sig == 0: a(f"buffer_load_ushort {v(BB)}, v8, {s(sB2,4)}, 0 offen"); vm.issue("x")
            if sig == 15: vm.wait("x")
            ke = self.o["kearly"] or self.o["kpoll"]
            if self.o["kearly"] and sig + self.o["kpoll"] in gat: gload(gat[sig + self.o["kpoll"]], G.vGB, "gb")
            if sig + ke in gat and (sig > 7 or not self.o["kearly"]):
                so = gat[sig + ke]
                if so == sC0: a(f"s_add_u32 {s(sC0)}, {s(sC0)}, {FG}")
                gload(so, G.vGF, "gf")
            for f in fill[h:]: a(f)
        for m0, f in held[:2]:
            a(m0)
            for x in f: a(x)
        self.ts("c_loop")
        for q in range(4): ds(f"ds_write_b128 {v(G.vXC)}, {v(G.S2+16+4*q,4)} offset:{16384+1024*q}", "sw")
        lsig(G.vMF, 12, 1)
        for m0, f in held[2:]:
            a(m0)
            for x in f: a(x)
        sr = [f"ds_read_b128 {v(T+4*q,4)}, {v(G.vXP)} offset:{16384+1024*q}" for q in range(4)]
        lread(G.vPF, 12, "sr")
        for r in sr: ds(r, "sr")
        for j in range(0, 16, 2): a(f"v_pk_fma_f32 {v(XX+j,2)}, {v(G.S2+j,2)}, {v(YK+j,2)}, {v(XX+j,2)}")
        lcheck(G.vPF, 12, 1, "sr", sr)
        for half in range(2):
            o = 8 * half; P = BB + 8 + 4 * half
            for j in range(0, 8, 2): a(f"v_pk_fma_f32 {v(XX+o+j,2)}, {v(T+o+j,2)}, {v(YK+o+j,2)}, {v(XX+o+j,2)}")
            for j in range(4): a(f"v_cvt_pk_bf16_f32 {v(P+j)}, {v(XX+o+2*j)}, {v(XX+o+2*j+1)}")
            a(f"v_permlane32_swap_b32 {v(P)}, {v(P+2)}\nv_permlane32_swap_b32 {v(P+1)}, {v(P+3)}")
            a(f"buffer_store_dwordx4 {v(P,4)}, {v(G.vOUT)}, {s(sOUT,4)}, 0 offen offset:{32*half} {['', 'sc1', 'nt', 'sc0 sc1', 'sc1 nt'][self.o['osc']]}")
        self.ts("c_end")
        self.ts_flush()

    def build(self):
        a = self.a
        self.prologue()
        self.compute_setup()
        self.typeA()
        if self.stop == "p1": self.ts_flush(); a("s_endpgm")
        else: a("s_branch L_phase2")
        a.label("L_typeB")
        self.typeB()
        if self.stop == "p1": self.ts_flush(); a("s_endpgm")
        else: self.phase2()
        a.label("L_end")
        a("s_endpgm")
        for t in self.tail: a(t)
        a("L_last:\ns_endpgm")
        body = a.finalize(verbose=True)
        head = open("cdna_kernels/" + KN[:-7] + ".s.ref").read().split("; Override launch")[0]
        return head + f"""; @launch grid=(256,1,1) block=(512,1,1) lds={LDS_SIZE}
.amdgcn_target "amdgcn-amd-amdhsa--gfx950"
.text
.globl {KN}
.p2align 8
.type {KN},@function
{KN}:
{body}
.section .rodata,"a"
.p2align 6
.amdhsa_kernel {KN}
  .amdhsa_next_free_vgpr 256
  .amdhsa_next_free_sgpr 102
  .amdhsa_accum_offset 256
  .amdhsa_group_segment_fixed_size 0
  .amdhsa_kernarg_size 88
  .amdhsa_user_sgpr_count 2
  .amdhsa_user_sgpr_kernarg_segment_ptr 1
  .amdhsa_system_sgpr_workgroup_id_x 1
.end_amdhsa_kernel
"""

if __name__ == "__main__":
    import argparse
    ap = argparse.ArgumentParser()
    ap.add_argument("out"); ap.add_argument("--diag", nargs="?", const="rt"); ap.add_argument("--stop"); ap.add_argument("--dbgout", action="store_true"); ap.add_argument("--marks"); ap.add_argument("--opts"); ap.add_argument("--probe")
    x = ap.parse_args()
    open(x.out, "w").write(Gen(diag=x.diag, stop=x.stop, dbgout=x.dbgout, marks=x.marks, opts=x.opts, probe=x.probe).build())
```

```python
import sys, struct
from asmlib import Asm, v, s

KN = "recurrent_scan__linear_attn_block__dense_activation_gelu__prompt_kernel"
def f2u(x): return struct.unpack("<I", struct.pack("<f", x))[0]
def hx(x): return f"0x{x & 0xffffffff:08x}"
def fl(x): return hx(f2u(x))

WS_HO = 0
WS_KV = 24 << 20
WS_ST = 25 << 20
FS = 7
FG = 16 << FS
WS_FH = 26 << 20
WS_FO = WS_FH + 96 * FG
WS_FK = WS_FO + 32 * FG
WS_DUM = 27 << 20
WS_TS = 28 << 20
WS_SIZE = 268435456
OOB = 0x80000000
WR = 131072
SCR = 155648
SC_NONCE = SCR
SC_FLAG = SCR + 64
SC_PROG = SC_FLAG + 64
SC_CS = SCR + 256
SC_R = SCR + 2048
SC_KVX = SCR + 3072
LDS_SIZE = 163840
NSLOT = 38
def b_lds(sig): return (sig % NSLOT) * 4096
XCH_Y = 21 * 4096
XT = 29 * 4096
ORDER = []
for p in range(3):
    for g in range(8):
        for ch in range(2):
            f = 6 * g + 2 * p + ch
            if f < 43: ORDER.append(("w2", f))
ORDER += [("wo", f) for f in range(16)]
assert len(ORDER) == 59
SIG0 = [0, 15, 29]
def pos_of(sig):
    st = 3 if sig >= 43 else 2 if sig >= 29 else 1 if sig >= 15 else 0
    j = sig - (SIG0 + [43])[st]
    return st, j >> 1, j & 1
def hoff(sig, lay=0):
    if not lay: return sig * 1024
    if lay == 2: return (sig >> 3) * 16384 + (sig & 7) * 1024
    par = int(sig >= 29); t = sig - 29 * par
    return (t >> 3) * 16384 + par * 8192 + (t & 7) * 1024
SPIN_MAX = 1 << 18

sX, sW, sW2, sWO, sWS, sDBG, sOUT, sB1, sB2 = 28, 32, 36, 40, 44, 48, 52, 56, 60
sWAVE, sI, sG, sTYPE, sHF, sCT, sKST, sRH, sCH, sNONCE, sSTR = 64, 65, 66, 67, 68, 69, 70, 71, 72, 73, 74
sT0, sT1, sT2, sT3, sT4, sT5 = 75, 76, 77, 78, 79, 80
sC0 = 81
sSPIN = 84
sM = 86
sLM = 60
sWD = 10
sP1, sP2, sP3, sP4 = 12, 13, 14, 15
sWB = 56
sTS = 88

class Cnt:
    def __init__(self, a, name, mx): self.a, self.name, self.mx, self.q = a, name, mx, []
    def issue(self, tag): self.q.append(tag)
    def wait(self, tag):
        if tag not in self.q: return
        k = len(self.q) - 1 - max(i for i, t in enumerate(self.q) if t == tag)
        k = min(k, self.mx)
        self.a(f"s_waitcnt {self.name}({k})")
        self.q = self.q[len(self.q) - k:] if k else []
    def wait_all(self):
        self.a(f"s_waitcnt {self.name}(0)"); self.q = []

class Gen:
    def __init__(self, diag=False, stop=None, dbgout=False, marks=None, opts=None, probe=None):
        self.probe = tuple(int(x) for x in probe.split(',')) if probe else None
        self.o = dict(cpf=5, wt=3, xe=1, w2t=4, t1=14, t2=1, pk=1, kpoll=3, D=8, asc=1, xl=1, mp=1, seg=0, fsc=0,
                      bud0=24, bud2=64, budA=30, nE=33, nL=4, pe0=14, nEA=35, nLA=21, pe0A=15, burst=16, fm=12, fmA=3, ga=20, gc=26, thr=0, fl=32, pre=1, chk=2, pf=4, g2h=3, lay=0, kfs=13, kfc=13, pqh=3, w2s=0, ld=1, t3=0, grp=1223, osc=0, kearly=0, psc=0, pw=0, r2=0, r2m=2, sw=0, sw0=1, sw1=9, swn=4, slp=0, prio=0, m0n=4, mint=3, tl=1, kpos=1, ofirst=0, bk=16, latp=-1, psh=2, pwg=-1, gateA=0, gateB=0, stg=0, e1=0, fs4=0, ow=0, owk=6, e4=0, nd=3, mw=1, gl=0, r2c=1, w7=0, w7s=2)
        for kv in (opts or '').split(','):
            if kv: k, x = kv.split('='); assert k in self.o, k; self.o[k] = int(x)
        self.SS = 17 if self.o['lay'] == 2 else 16
        self.dbgout = dbgout; self.verbose = True
        self.marks = {"start": 0}
        for grp in (marks or "c_bar0,c_main,cA_q|cB_gelu,c_p0,c_loop,c_end;l_bar0,l_bar8,l_bland,l_p0,l_p3,l_end").split(";"):
            for k, nm in enumerate(grp.split(",")):
                for x in nm.split("|"): self.marks[x] = k + 1
        self.a = Asm(); self.diag = diag; self.stop = stop; self.uid = 0; self.tail = []
    def lab(self, n): self.uid += 1; return f"L{n}_{self.uid}"
    def ts(self, name):
        if not self.diag or name not in self.marks: return
        k = self.marks[name]
        if self.diag == "both":
            if k == 0: self.a(f"s_memrealtime {s(sTS, 2)}")
            elif k <= 3: self.a(f"s_memrealtime {s(sTS + 2 * k, 2)}\ns_memtime {s(sTS + 2 * k + 6, 2)}")
            return
        self.a(f"{'s_memtime' if self.diag == 'cyc' else 's_memrealtime'} {s(sTS + 2 * k, 2)}")
    def ts_flush(self):
        if not self.diag: return
        a = self.a
        if self.probe:
            pa, pb = self.probe
            L = self.lab("probe"); X = self.lab("probex")
            op = 's_memtime' if self.diag == 'cyc' else 's_memrealtime'
            a(f"s_cmp_ge_u32 {s(sWAVE)}, 4\ns_cbranch_scc1 {X}")
            if self.o["pwg"] >= 0: a(f"s_lshl_b32 {s(sT0)}, s2, 2\ns_add_u32 {s(sT0)}, {s(sT0)}, {s(sWAVE)}\ns_cmp_lg_u32 {s(sT0)}, {self.o['pwg']}\ns_cbranch_scc1 {X}")
            a(f"{op} {s(sM,2)}\ns_waitcnt lgkmcnt(0)")
            if pa < 0: a(f"s_mov_b32 {s(sT0)}, {pb}")
            else: a(f"s_sub_u32 {s(sT0)}, {s(sTS+2*pb)}, {s(sTS+2*pa)}\ns_lshl_b32 {s(sT0)}, {s(sT0)}, {self.o['psh']}")
            a(f"s_min_u32 {s(sT0)}, {s(sT0)}, 400000\ns_mov_b32 {s(sT1)}, {s(sM)}")
            a.label(L)
            a(f"{op} {s(sM,2)}\ns_waitcnt lgkmcnt(0)\ns_sub_u32 {s(sT2)}, {s(sM)}, {s(sT1)}\ns_cmp_lt_u32 {s(sT2)}, {s(sT0)}\ns_cbranch_scc1 {L}")
            a.label(X)
            return
        a("s_waitcnt lgkmcnt(0)")
        a(f"s_lshl_b32 {s(sT0)}, s2, 3\ns_add_u32 {s(sT0)}, {s(sT0)}, {s(sWAVE)}\ns_lshl_b32 {s(sT0)}, {s(sT0)}, 5\ns_add_u32 {s(sT0)}, {s(sT0)}, {WS_TS}")
        for k in range(7): a(f"v_mov_b32 v{8+k}, {s(sTS+2*k)}")
        a("v_mov_b32 v15, 0\nv_mov_b32 v7, 0")
        a("s_mov_b64 exec, 1")
        a(f"buffer_store_dwordx4 v[8:11], v7, {s(sWS,4)}, {s(sT0)} offen")
        a(f"buffer_store_dwordx4 v[12:15], v7, {s(sWS,4)}, {s(sT0)} offen offset:16")
        if self.dbgout:
            L = self.lab("dbgo")
            self.srd(sDBG, 22, 256)
            a(f"s_cmp_lg_u32 {s(sWAVE)}, 0\ns_cbranch_scc1 {L}\ns_and_b32 {s(sT0)}, s2, 0xdf\ns_cmp_lg_u32 {s(sT0)}, 0\ns_cbranch_scc1 {L}")
            for k in range(6, -1, -1): a(f"v_subrev_u32 v{8+k}, {s(sTS)}, v{8+k}")
            a(f"s_add_u32 {s(sT0)}, s2, 4")
            a(f"buffer_store_dwordx4 v[9:12], v7, {s(sDBG,4)}, {s(sT0)} offen".replace("v[9:12]", "v[8:11]"))
            a(f"buffer_store_dwordx3 v[12:14], v7, {s(sDBG,4)}, {s(sT0)} offen offset:16")
            a.label(L)
        a("s_mov_b64 exec, -1")

    def srd(self, d, ptr, size):
        self.a(f"s_mov_b32 {s(d)}, {s(ptr)}\ns_mov_b32 {s(d+1)}, {s(ptr+1)}\ns_mov_b32 {s(d+2)}, {size}\ns_mov_b32 {s(d+3)}, 0x00020000")

    def rot2(self, r7, r8, t):
        return (f"s_lshr_b32 {s(r8)}, s2, 6\ns_mul_i32 {s(r8)}, {s(r8)}, {self.o['r2m']}\ns_add_u32 {s(r8)}, {s(r8)}, {s(sCT) if self.o['r2c'] else 0}\n"
                f"s_mul_i32 {s(t)}, {s(r8)}, 37\ns_lshr_b32 {s(t)}, {s(t)}, 8\ns_mul_i32 {s(t)}, {s(t)}, 7\ns_sub_u32 {s(r7)}, {s(r8)}, {s(t)}\ns_and_b32 {s(r8)}, {s(r8)}, 7")
    def fload(self, r, va, so):
        k = self.o["psc"]
        if k == 4: return f"v_mov_b32 {v(r)}, 0\nbuffer_atomic_or {v(r)}, {v(va)}, {s(sWS,4)}, {s(so)} offen sc0 sc1"
        return f"buffer_load_dword {v(r)}, {v(va)}, {s(sWS,4)}, {s(so)} offen {['sc1', 'sc0 sc1', 'sc1 nt', 'sc0 sc1 nt'][k]}"
    def poll_text(self, vaddr, vtmp, soff, L, X):
        if self.o["mp"]:
            return (f"s_mov_b32 {s(sSPIN)}, 0\ns_mov_b64 exec, 0xffff\n{L}:\n"
                    f"{self.fload(vtmp, vaddr, soff)}\n"
                    f"s_add_u32 {s(sSPIN)}, {s(sSPIN)}, 1\ns_cmp_gt_u32 {s(sSPIN)}, {SPIN_MAX}\ns_waitcnt vmcnt(0)\ns_cbranch_scc1 {X}\n"
                    f"v_cmp_ne_u32 vcc, {s(sNONCE)}, {v(vtmp)}\ns_and_b64 exec, exec, vcc\ns_cbranch_execnz {L}\n{X}:\ns_mov_b64 exec, -1")
        return (f"s_mov_b32 {s(sSPIN)}, 0\n{L}:\n"
                f"{self.fload(vtmp, vaddr, soff)}\n"
                f"s_add_u32 {s(sSPIN)}, {s(sSPIN)}, 1\ns_cmp_gt_u32 {s(sSPIN)}, {SPIN_MAX}\ns_waitcnt vmcnt(0)\ns_cbranch_scc1 {X}\n"
                f"v_cmp_ne_u32 vcc, {s(sNONCE)}, {v(vtmp)}\ns_cbranch_vccnz {L}\n{X}:")
    def poll(self, vaddr, vtmp, soff):
        self.a(self.poll_text(vaddr, vtmp, soff, self.lab("poll"), self.lab("pollx")))

    def prologue(self):
        a = self.a
        a("s_cmp_ge_u32 s2, 256\ns_cbranch_scc1 L_end")
        a("s_load_dwordx16 s[4:19], s[0:1], 0\ns_load_dwordx4 s[20:23], s[0:1], 64\ns_load_dwordx2 s[24:25], s[0:1], 80")
        if self.diag:
            for k in range(1, 7): a(f"s_mov_b32 {s(sTS+2*k)}, 0")
        self.ts("start")
        if self.o["cpf"] >= 2:
            n = self.o["cpf"]
            a(f"s_getpc_b64 s[26:27]\nL_pc:\ns_bfe_u32 s3, s2, {0x30003 if n == 5 else 0x20003 if n == 10 else 0x10003}\ns_mul_i32 s3, s3, {8*n}\nv_lshrrev_b32 v3, 6, v0\nv_and_b32 v4, 63, v0\nv_min_u32 v4, {n-1}, v4\nv_mad_u32_u24 v3, v3, {n}, v4")
            a(f"v_add_lshl_u32 v3, v3, s3, 7\nv_min_u32 v3, L_last-L_pc, v3\nglobal_load_dword {v(self.vDUM)}, v3, s[26:27]")
        elif self.o["cpf"]:
            a(f"s_getpc_b64 s[26:27]\nL_pc:\nv_lshlrev_b32 v3, 7, v0\nv_min_u32 v3, L_last-L_pc, v3\nglobal_load_dword {v(self.vDUM)}, v3, s[26:27]")
        a("v_lshrrev_b32 v2, 6, v0\nv_and_b32 v1, 63, v0")
        a(f"s_and_b32 {s(sT0)}, s2, 3")
        a(f"v_readfirstlane_b32 {s(sWAVE)}, v2")
        a(f"s_bfe_u32 {s(sHF)}, s2, 0x10002")
        a(f"s_bfe_u32 {s(sCT)}, s2, 0x30003")
        a(f"s_lshr_b32 {s(sI)}, s2, 6\ns_lshl_b32 {s(sI)}, {s(sI)}, 2\ns_add_u32 {s(sI)}, {s(sI)}, {s(sT0)}")
        if self.o["seg"]: a(f"s_mov_b32 {s(sTYPE)}, {s(sHF)}\ns_mov_b32 {s(sG)}, {s(sCT)}")
        else:
            a(f"s_lshr_b32 {s(sTYPE)}, {s(sCT)}, 2")
            a(f"s_and_b32 {s(sG)}, {s(sCT)}, 3\ns_lshl_b32 {s(sT0)}, {s(sHF)}, 2\ns_add_u32 {s(sG)}, {s(sG)}, {s(sT0)}")
        a(f"s_lshl_b32 {s(sT0)}, {s(sG)}, 7\ns_mul_i32 {s(sT1)}, {s(sG)}, 384")
        a(f"s_add_u32 {s(sT2)}, {s(sT0)}, 1024\ns_add_u32 {s(sT3)}, {s(sT0)}, 2048\ns_add_u32 {s(sT4)}, {s(sT1)}, 128\ns_add_u32 {s(sT5)}, {s(sT1)}, 256")
        a(f"s_cmp_eq_u32 {s(sTYPE)}, 0")
        a(f"s_movk_i32 {s(sSTR)}, 2752\ns_cselect_b32 {s(sSTR)}, 3072, {s(sSTR)}")
        a(f"s_cselect_b32 {s(sC0)}, {s(sT2)}, {s(sT1)}\ns_cselect_b32 {s(sC0+1)}, {s(sT3)}, {s(sT4)}\ns_cselect_b32 {s(sC0+2)}, {s(sT0)}, {s(sT5)}")
        a(f"s_cmp_ge_u32 {s(sWAVE)}, 4\ns_cbranch_scc1 L_loader")

    def loader(self):
        a = self.a
        vX, vW, vB, vP, vT, vL, PARK = 10, 14, 20, 21, 22, 24, 32
        sWK, sKX, sKW, sXB, sF = 85, 26, 27, 3, sT5
        a.label("L_loader")
        if self.o["prio"] == 2: a("s_setprio 1")
        a(f"s_and_b32 {s(sWK)}, {s(sWAVE)}, 3")
        a("v_lshrrev_b32 v2, 3, v1\nv_and_b32 v3, 7, v1\nv_lshrrev_b32 v4, 4, v1")
        a(f"s_and_b32 {s(sT0)}, {s(sWK)}, 1\ns_lshl_b32 {s(sT0)}, {s(sT0)}, 2\ns_lshl_b32 {s(sT1)}, {s(sWK)}, 3")
        a(f"v_add_u32 v5, {s(sT0)}, v4\nv_xor_b32 v5, v3, v5\nv_lshlrev_b32 v5, 4, v5")
        a(f"v_add_u32 v6, {s(sT1)}, v2")
        a(f"v_lshl_add_u32 {v(vX)}, v6, 10, v5")
        for m in range(1, 4): a(f"v_add_u32 {v(vX+m)}, {m*32768}, {v(vX)}")
        a("v_and_b32 v7, 1, v4\nv_lshlrev_b32 v7, 2, v7\nv_xor_b32 v7, v3, v7\nv_lshlrev_b32 v7, 4, v7")
        a(f"v_mul_u32_u24 v8, {s(sSTR)}, v6")
        a(f"s_lshl_b32 {s(sT2)}, {s(sSTR)}, 5\nv_mov_b32 v2, {hx(OOB)}")
        for p in range(3):
            a(f"v_add_u32 v9, {s(sC0+p)}, v7\nv_cmp_gt_u32 vcc, {s(sSTR)}, v9\nv_add_u32 v9, v8, v9\nv_add_u32 v3, {s(sT2)}, v9")
            a(f"v_cndmask_b32 {v(vW+2*p)}, v2, v9, vcc\nv_cndmask_b32 {v(vW+2*p+1)}, v2, v3, vcc")
        a(f"s_lshl_b32 {s(sWK)}, {s(sWK)}, 10\ns_lshl_b32 {s(sXB)}, {s(sI)}, 17\ns_lshl_b32 {s(sT3)}, {s(sSTR)}, 5")
        self.ts("l_pre")
        a("s_waitcnt lgkmcnt(0)")
        self.srd(sX, 4, 2097152)
        a(f"s_lshl_b32 {s(sW+2)}, {s(sSTR)}, 9\ns_mov_b32 {s(sW+3)}, 0x00020000\ns_cmp_eq_u32 {s(sTYPE)}, 0")
        a(f"s_cselect_b32 {s(sW)}, s6, s12\ns_cselect_b32 {s(sW+1)}, s7, s13")
        self.ts("l_karg")
        vm = Cnt(a, "vmcnt", 63)
        def bsrc(sig):
            mat, f = ORDER[sig]; st, j2, ch = pos_of(sig)
            if not self.o["r2"] or sig == 14: a(f"s_mov_b32 {s(sF)}, {f*32768}")
            elif st < 3: a(f"s_add_u32 {s(sF)}, {s(4+j2)}, {(2*st+ch)*32768}")
            else: a(f"s_add_u32 {s(sF)}, {s(11+j2)}, {ch*32768}")
            return s(sW2 if mat == 'w2' else sWO, 4)
        gs = [int(c) for c in str(self.o["grp"])]; assert sum(gs) == 8
        grp_of = [(sum(gs[:n]), gs[n]) for n in range(len(gs)) for _ in range(gs[n])]
        rot = lambda pos: grp_of[pos][1] > 1
        sK0 = 56
        def ktable(lo, hi):
            for pos in range(lo, hi):
                g0, n = grp_of[pos]
                if n == 1: continue
                if pos == g0:
                    a(f"s_lshr_b32 {s(sT1)}, s2, 6\ns_mul_i32 {s(sT1)}, {s(sT1)}, {max(1, (n+1)//4)}\ns_add_u32 {s(sT1)}, {s(sT1)}, {s(sCT)}")
                    a(f"s_mul_i32 {s(sT0)}, {s(sT1)}, {-(-256//n)}\ns_lshr_b32 {s(sT0)}, {s(sT0)}, 8\ns_mul_i32 {s(sT0)}, {s(sT0)}, {n}\ns_sub_u32 {s(sT1)}, {s(sT1)}, {s(sT0)}\ns_add_u32 {s(sK0+pos)}, {s(sT1)}, {g0}")
                else:
                    a(f"s_add_u32 {s(sK0+pos)}, {s(sK0+pos-1)}, 1\ns_cmp_eq_u32 {s(sK0+pos)}, {g0+n}\ns_cselect_b32 {s(sK0+pos)}, {g0}, {s(sK0+pos)}")
        def wst(st, reg=False):
            pos = st // 2 if st < 16 else st - 16
            if rot(pos):
                a(f"s_lshl_b32 {s(sKW)}, {s(sK0+pos)}, 1" + (f"\ns_add_u32 {s(sKW)}, {s(sKW)}, 1" if st < 16 and st & 1 else "") + f"\ns_mul_i32 {s(sKW)}, {s(sKW)}, {s(sT3)}")
            else: a(f"s_mul_i32 {s(sKW)}, {s(sT3)}, {st if st < 16 else 2*(st-16)}")
            for m in range(2):
                if reg:
                    a(f"buffer_load_dwordx4 {v(224 + 8*(st % 4) + 4*m, 4)}, {v(vW + (2*m if st < 16 else 4+m))}, {s(sW,4)}, {s(sKW)} offen"); vm.issue(("R", st))
                    continue
                a(f"s_add_u32 m0, {s(sWK)}, {WR + (st % 3)*8192 + m*4096}")
                a(f"buffer_load_dwordx4 {v(vW + (2*m if st < 16 else 4+m))}, {s(sW,4)}, {s(sKW)} offen lds"); vm.issue(("S", st))
        STG = self.o["stg"]
        def feed(k):
            if self.o["e1"] == 2 and 1 < k < 14: return
            if not STG: wst(k + 2); xpair(k + 3); return
            if k == 0: wst(2); xpair(3); wst(3, True); xpair(4)
            if k + 4 <= STG: wst(k + 4, True)
            if STG < k + 2 < 24: wst(k + 2)
            xpair(k + 5)
            if 3 <= k + 2 <= STG:
                vm.wait(("R", k + 2))
                for m in range(2): a(f"ds_write_b128 {v(vL+2)}, {v(224 + 8*((k+2) % 4) + 4*m, 4)} offset:{WR - 131072 + ((k+2) % 3)*8192 + m*4096}")
        def ready(k):
            if self.o["e1"] and 2 < k < 16: return
            vm.wait(("S", k))
            if 3 <= k <= STG: a(f"s_waitcnt lgkmcnt({2 if k + 1 <= STG else 0})")
        def xpair(n):
            k = n >> 1
            if k >= 8: return
            if rot(k): a(f"s_lshl_b32 {s(sKX)}, {s(sK0+k)}, 7\ns_add_u32 {s(sKX)}, {s(sKX)}, {s(sXB)}")
            else: a(f"s_add_u32 {s(sKX)}, {s(sXB)}, {128*k}")
            for mm in (2*(n & 1), 2*(n & 1) + 1):
                a(f"s_add_u32 m0, {s(sWK)}, {k*16384 + mm*4096}")
                a(f"buffer_load_dwordx4 {v(vX+mm)}, {s(sX,4)}, {s(sKX)} offen lds"); vm.issue(("S", 2*k))
        st_ = dict(nE=0)
        preg = lambda sig: PARK + 4*sig if sig < st_["nE"] else PARK + 4*(st_["nE"] + sig - NSLOT)
        def bstep(sig):
            a(f"s_add_u32 m0, {s(sWK)}, {b_lds(sig)}")
            srd = bsrc(sig)
            a(f"buffer_load_dwordx4 {v(vB)}, {srd}, {s(sF)} offen lds"); vm.issue(("B", sig))
        def park(sig):
            srd = bsrc(sig)
            a(f"buffer_load_dwordx4 {v(preg(sig),4)}, {v(vB)}, {srd}, {s(sF)} offen"); vm.issue(("B", sig))
        def put(sig):
            base = b_lds(sig); w = base >> 16
            a(f"ds_write_b128 {v(vL+w)}, {v(preg(sig),4)} offset:{base-65536*w}")
        if self.o["ld"]: a("s_barrier")
        ktable(0, 1); wst(0); xpair(0); xpair(1); self.ts("l_s0"); wst(1); ktable(1, 8); xpair(2); self.ts("l_s2")
        vPG, vDN = 28, 29
        self.srd(sW2, 16, 1409024); self.srd(sWO, 8, 524288); self.srd(sWS, 24, WS_SIZE)
        if self.o["r2"]:
            a(self.rot2(sT0, sT1, sT2))
            for base, n, r, step in ((4, 7, sT0, 6*32768), (11, 8, sT1, 2*32768)):
                a(f"s_mul_i32 {s(base)}, {s(r)}, {step}")
                for j in range(1, n): a(f"s_add_u32 {s(base+j)}, {s(base+j-1)}, {step}\ns_cmp_eq_u32 {s(base+j)}, {n*step}\ns_cselect_b32 {s(base+j)}, 0, {s(base+j)}")
        a(f"s_lshl_b32 {s(sT0)}, {s(sCT)}, 7\nv_lshl_add_u32 {v(vB)}, v6, 10, v7\nv_add_u32 {v(vB)}, {s(sT0)}, {v(vB)}")
        a(f"v_lshl_add_u32 {v(vL)}, v1, 4, {s(sWK)}\nv_add_u32 {v(vL+1)}, 65536, {v(vL)}\nv_add_u32 {v(vL+2)}, 131072, {v(vL)}")
        a(f"s_lshr_b32 {s(sT0)}, {s(sWK)}, 8\ns_add_u32 {s(sT0)}, {s(sT0)}, {SC_PROG}\nv_mov_b32 {v(vPG)}, {s(sT0)}")
        a(f"v_and_b32 {v(vDN)}, 3, v1\nv_lshlrev_b32 {v(vDN)}, 2, {v(vDN)}\nv_add_u32 {v(vDN)}, {SC_PROG+16}, {v(vDN)}")
        def prog(lv): a(f"v_mov_b32 {v(vT)}, {lv}\nds_write_b32 {v(vPG)}, {v(vT)}")
        sw = self.o["sw"]; tq = [[], []]
        if sw:
            assert not self.o["r2"]
            a(f"s_lshr_b32 {s(sT1)}, {s(sWK)}, 10\ns_lshl_b32 {s(sT0)}, s2, 2\ns_add_u32 {s(sT0)}, {s(sT0)}, {s(sT1)}")
            a(f"s_mul_i32 {s(sT2)}, {s(sT0)}, 1376\ns_add_u32 s10, s16, {s(sT2)}\ns_addc_u32 s11, s17, 0\ns_lshl_b32 {s(sT2)}, {s(sT0)}, 9\ns_add_u32 s12, s8, {s(sT2)}\ns_addc_u32 s13, s9, 0")
            a(f"s_lshr_b32 {s(sT0)}, s2, 3\ns_mul_i32 {s(sT2)}, {s(sT1)}, 11\ns_min_u32 {s(sT2)}, {s(sT2)}, 32\ns_mul_i32 s14, {s(sT0)}, 43\ns_add_u32 {s(sT2)}, {s(sT2)}, s14\ns_lshl_b32 {s(sT2)}, {s(sT2)}, 10\ns_add_u32 s14, s16, {s(sT2)}\ns_addc_u32 s15, s17, 0")
            a(f"s_lshl_b32 {s(sT0)}, {s(sT0)}, 2\ns_add_u32 {s(sT0)}, {s(sT0)}, {s(sT1)}\ns_lshl_b32 {s(sT0)}, {s(sT0)}, 12\ns_add_u32 s18, s8, {s(sT0)}\ns_addc_u32 s19, s9, 0")
            if sw & 1: tq[0] = [f"s_load_dword s20, s[10:11], {64*u}" for u in range(22)] + [f"s_load_dword s20, s[12:13], {64*u}" for u in range(8)]
            if sw & 2: tq[1] = [f"s_load_dword s20, s[14:15], {1024*r + 384 + u}" for r in range(11) for u in (0, 64)] + [f"s_load_dword s20, s[18:19], {1024*r + 384 + u}" for r in range(4) for u in (0, 64)]
        def touch(k, tq):
            for j in range(2):
                if k >= self.o[f"sw{j}"]:
                    for x in tq[j][:self.o["swn"]]: a(x)
                    tq[j] = tq[j][self.o["swn"]:]
        N = 24; KS = 12
        for k in range(KS):
            ready(k); self.ts(f"l_land{k}"); a("s_barrier"); self.ts(f"l_bar{k}")
            feed(k); touch(k, tq)
            if self.o["ow"] and k == self.o["owk"]:
                self.srd(sOUT, 20, 2097152)
                a(f"s_lshl_b32 {s(sT0)}, {s(sI)}, 1\ns_add_u32 {s(sT0)}, {s(sT0)}, {s(sHF)}\ns_lshl_b32 {s(sT0)}, {s(sT0)}, 16\ns_lshl_b32 {s(sT1)}, {s(sCT)}, 7\ns_add_u32 {s(sT0)}, {s(sT0)}, {s(sT1)}")
                for m in range(2):
                    if self.o["ow"] == 1: a(f"buffer_store_dwordx4 v[4:7], {v(vX+m)}, {s(sOUT,4)}, {s(sT0)} offen")
                    else: a(f"buffer_load_dwordx4 v[32:35], {v(vX+m)}, {s(sOUT,4)}, {s(sT0)} offen")
                    vm.issue("ow")
        a(f"s_cmp_eq_u32 {s(sTYPE)}, 0\ns_cbranch_scc0 L_loadB")
        q0 = list(vm.q)
        for typ in "AB":
            if typ == "B": a.label("L_loadB")
            tq2 = [list(x) for x in tq]
            vm.q = list(q0); sfx = "A" if typ == "A" else ""
            nE, nL, pe0 = (self.o[x + sfx] for x in ("nE", "nL", "pe0")); burst = self.o["burst"] if typ == "A" else 0
            assert nE <= 35 and pe0 >= KS; st_["nE"] = nE
            early = list(range(nE)) + list(range(NSLOT, NSLOT + nL)); nxt = 0
            for k in range(KS, N):
                ready(k); self.ts(f"l_land{k}"); a("s_barrier"); self.ts(f"l_bar{k}")
                if k + 2 < N: feed(k)
                touch(k, tq2)
                if k >= pe0:
                    while nxt < -(-(len(early) - burst) * (k + 1 - pe0) // (N - pe0)) + (burst if k >= self.o['bk'] else 0): assert preg(early[nxt]) < 224 or k > STG or not STG; park(early[nxt]); nxt += 1
            a("s_barrier")
            self.ts("l_barN")
            assert nxt == len(early)
            def done(lv):
                L = self.lab("dw"); X = self.lab("dwx")
                a(f"s_mov_b32 {s(sSPIN)}, 0")
                a.label(L)
                if self.o["slp"]: a(f"s_sleep {self.o['slp']}")
                a(f"ds_read_b32 {v(vP)}, {v(vDN)}\ns_add_u32 {s(sSPIN)}, {s(sSPIN)}, 1\ns_cmp_gt_u32 {s(sSPIN)}, {SPIN_MAX*8}\ns_waitcnt lgkmcnt(0)\ns_cbranch_scc1 {X}")
                a(f"v_cmp_gt_u32 vcc, {lv}, {v(vP)}\ns_cbranch_vccnz {L}")
                a.label(X)
            gate = self.o['gate' + typ]
            todo = [x for x in range(59) if x not in early]; lvl = [(7, 1), (22, 2), (37, 3)]
            def more(n):
                for _ in range(n):
                    if todo:
                        sig = todo.pop(0)
                        bstep(sig) if sig < NSLOT else park(sig)
                        if self.o["thr"] and len(vm.q) > self.o["thr"]: vm.wait(vm.q[-1 - self.o["thr"]])
            thr_ = self.o['thr']; self.o['thr'] = 0; more(0 if gate else self.o['m0n'])
            for sig in range(nE):
                vm.wait(("B", sig)); put(sig)
                if lvl and sig == lvl[0][0]: prog(lvl.pop(0)[1])
                if not gate and self.o['mint'] and sig % self.o['mint'] == self.o['mint'] - 1: more(1)
            self.o['thr'] = thr_
            self.ts("l_put")
            if gate and self.stop != "p1": done(1)
            while todo:
                more(1)
                if lvl and todo and todo[0] >= lvl[0][0] + 7: vm.wait(("B", lvl[0][0])); prog(lvl.pop(0)[1])
            for sg, lv in lvl: vm.wait(("B", sg)); prog(lv)
            self.ts("l_bissue")
            if self.stop == "p1":
                vm.wait_all(); self.ts_flush(); a("s_endpgm"); continue
            for lv, (lo, hi) in enumerate(((38, 45), (45, 55), (55, 59))):
                vm.wait(("B", hi - 1))
                if lv == 2: self.ts("l_bland")
                done(lv + 2)
                for sig in range(lo, hi): put(sig)
                prog(4 + lv)
                self.ts(f"l_ref{lv}")
            if self.o["gl"]:
                Y0, Y1, vY, vYP = 32, 48, 30, 31
                a(f"s_lshl_b32 {s(sT0)}, {s(sWK)}, 2\ns_add_u32 {s(sT0)}, {s(sT0)}, {XCH_Y}\nv_lshl_add_u32 {v(vY)}, v1, 4, {s(sT0)}")
                a(f"s_lshl_b32 {s(sT0)}, {s(sWK)}, 2\ns_xor_b32 {s(sT0)}, {s(sT0)}, 4096\ns_add_u32 {s(sT0)}, {s(sT0)}, {XCH_Y}\nv_lshl_add_u32 {v(vYP)}, v1, 4, {s(sT0)}")
                a(f"s_lshr_b32 {s(sT0)}, {s(sWK)}, 6\ns_and_b32 {s(sT0)}, {s(sT0)}, 32\ns_add_u32 {s(sT0)}, {s(sT0)}, {SC_FLAG+8}\nv_and_b32 {v(vDN)}, 1, v1\nv_lshl_add_u32 {v(vDN)}, {v(vDN)}, 4, {s(sT0)}")
                done(1)
                for q in range(4): a(f"ds_read_b128 {v(Y0+4*q,4)}, {v(vY)} offset:{1024*q}\nds_read_b128 {v(Y1+4*q,4)}, {v(vYP)} offset:{16384+1024*q}")
                for half in range(2):
                    o = 8 * half
                    a(f"s_waitcnt lgkmcnt({4-4*half})")
                    for j in range(8): a(f"v_add_f32 {v(Y0+o+j)}, {v(Y0+o+j)}, {v(Y1+o+j)}")
                    for j in range(8): a(f"v_mul_f32 {v(Y1+o+j)}, {fl(-1.4426950408889634)}, {v(Y0+o+j)}")
                    for j in range(8): a(f"v_exp_f32 {v(Y1+o+j)}, {v(Y1+o+j)}")
                    for j in range(8): a(f"v_add_f32 {v(Y1+o+j)}, 1.0, {v(Y1+o+j)}")
                    for j in range(8): a(f"v_rcp_f32 {v(Y1+o+j)}, {v(Y1+o+j)}")
                    for j in range(8): a(f"v_mul_f32 {v(Y0+o+j)}, {v(Y0+o+j)}, {v(Y1+o+j)}")
                for q in range(4): a(f"ds_write_b128 {v(vY)}, {v(Y0+4*q,4)} offset:{32768+1024*q}")
                prog(7)
            a("s_waitcnt lgkmcnt(0)")
            self.ts("l_end")
            self.ts_flush()
            a("s_endpgm")

    ACC = 160
    SEL = 64
    CSM = dict(A=(68, 72, 68), B=(68, 72, 90))
    vXA, vXB, vWE, vWO = 76, 80, 84, 87
    GR = 90
    vCW, vCR = 94, 95
    vT0, vT1, vT2 = 97, 98, 99
    SG = 100
    IDN = 108
    B1 = 108
    XS = 112
    GC = 120
    vSTA, vSTG, vNZ, vDUM = 124, 125, 126, 127
    vFL = 7
    TMP = 128
    FX = 152
    KVA = 16
    def acc(self, p, rb): return self.ACC + 32 * p + 16 * rb

    def it(self, text):
        cost = 0
        for ln in text.split("\n"):
            op = ln.split()[0]
            if op.endswith(":"): continue
            cost += 32 if op.startswith("v_mfma") else 8 if op in ("v_exp_f32", "v_rcp_f32", "v_rsq_f32") else 5 if (op.startswith(("ds_", "buffer_", "v_fma_", "v_cvt_pk", "v_cndmask", "v_lshl_add")) or "0x" in ln) else 4
        return (cost, lambda: self.a(text))
    def its(self, lst): return [self.it(x) for x in lst]
    def vmi(self, text, tag): return (6, lambda: (self.a(text), self.vm.issue(tag)))
    def vmw(self, tag): return (4, lambda: self.vm.wait(tag))
    def tsi(self, name): return (0, lambda: self.ts(name))
    def flush(self, q):
        while q:
            x = q.pop(0)
            if x == "NEXT": self.a("s_waitcnt lgkmcnt(0)")
            elif x == "BAR": raise RuntimeError("barrier marker left over")
            elif x[0] == "GI": continue
            else: x[1]()

    def compute_setup(self):
        a = self.a; G = self; T = G.TMP
        if self.o["prio"] == 1: a("s_setprio 1")
        self.vm = vm = Cnt(a, "vmcnt", 63)
        a(f"s_bfe_u32 {s(sRH)}, {s(sWAVE)}, 0x10001\ns_and_b32 {s(sCH)}, {s(sWAVE)}, 1")
        a("v_and_b32 v2, 31, v1\nv_lshrrev_b32 v3, 5, v1\nv_lshrrev_b32 v4, 4, v1\nv_and_b32 v5, 15, v1")
        a(f"v_mov_b32 {v(G.vNZ)}, 0")
        a(f"s_lshl_b32 {s(sT0)}, {s(sHF)}, 3\ns_add_u32 {s(sT0)}, {s(sT0)}, {s(sCT)}\ns_lshl_b32 {s(sT0)}, {s(sT0)}, 3")
        a(f"s_lshl_b32 {s(sT1)}, {s(sI)}, 7\ns_add_u32 {s(sT0)}, {s(sT0)}, {s(sT1)}\ns_lshl_b32 {s(sT2)}, {s(sWAVE)}, 1\ns_add_u32 {s(sT0)}, {s(sT0)}, {s(sT2)}")
        a(f"v_add_u32 v6, {s(sT0)}, v3\nv_lshlrev_b32 v11, 4, v2\nv_lshl_add_u32 v11, v6, 10, v11")
        a(f"s_lshl_b32 {s(sT2)}, {s(sI)}, 3\ns_add_u32 {s(sT2)}, {s(sT2)}, {s(sG)}\ns_lshl_b32 {s(sT3)}, {s(sSTR)}, 2\ns_mul_i32 {s(sT2)}, {s(sT2)}, {s(sT3)}\ns_sub_u32 {s(sT3)}, {s(sT3)}, 4")
        a(f"s_mul_i32 {s(sT4)}, {s(sWAVE)}, 24\nv_min_u32 v12, 23, v1\nv_add_lshl_u32 v12, v12, {s(sT4)}, 7\nv_min_u32 v12, {s(sT3)}, v12\nv_add_u32 {v(G.vT0)}, {s(sT2)}, v12")
        a(f"s_lshl_b32 {s(sW+2)}, {s(sSTR)}, 9\ns_mov_b32 {s(sW+3)}, 0x00020000\ns_cmp_eq_u32 {s(sTYPE)}, 0\ns_waitcnt lgkmcnt(0)")
        self.ts("c_karg")
        a(f"s_cselect_b32 {s(sW)}, s6, s12\ns_cselect_b32 {s(sW+1)}, s7, s13")
        self.srd(sX, 4, 2097152)
        if self.o["latp"] >= 0:
            self.srd(sOUT, 4 + 2*self.o["latp"], 524288)
            a(f"s_lshl_b32 {s(sT4)}, s2, 2\ns_add_u32 {s(sT4)}, {s(sT4)}, {s(sWAVE)}\ns_lshl_b32 {s(sT4)}, {s(sT4)}, 9\nv_mov_b32 v12, 0")
            a("s_waitcnt vmcnt(0)"); self.ts("c_l0"); a("s_waitcnt lgkmcnt(0)")
            a(f"buffer_load_dword v13, v12, {s(sOUT,4)}, {s(sT4)} offen\ns_waitcnt vmcnt(0)")
            self.ts("c_l1")
        def xs():
            a(f"buffer_load_dwordx4 {v(T,4)}, v11, {s(sX,4)}, 0 offen\nbuffer_load_dwordx4 {v(T+4,4)}, v11, {s(sX,4)}, 0 offen offset:512"); vm.issue("xs"); vm.issue("xs")
        if self.o["xe"]: xs()
        if self.o["wt"] == 3: a(f"buffer_load_dword {v(G.vDUM)}, {v(G.vT0)}, {s(sW,4)}, 0 offen"); vm.issue("t")
        if self.o["ld"]: a("s_barrier")
        L = self.lab("non")
        a(f"s_or_b32 {s(sT3)}, s2, {s(sWAVE)}\ns_cmp_lg_u32 {s(sT3)}, 0\ns_cbranch_scc1 {L}")
        a(f"s_memrealtime {s(sM,2)}\ns_waitcnt lgkmcnt(0)")
        self.srd(sDBG, 22, 256)
        a(f"s_or_b32 {s(sT3)}, {s(sM)}, 1\nv_mov_b32 v8, {s(sT3)}\ns_mov_b64 exec, 1")
        a(f"buffer_store_dword v8, {v(G.vNZ)}, {s(sDBG,4)}, 0 offen sc1\ns_mov_b64 exec, -1")
        a.label(L)
        a("s_branch L_compute")
        self.loader()
        a.label("L_compute")
        a(f"v_lshlrev_b32 v8, 4, v3\nv_lshl_add_u32 v8, v2, 5, v8\ns_lshl_b32 {s(sT0)}, {s(sT0)}, 5\nv_add_u32 v8, {s(sT0)}, v8\nv_mov_b32 v9, {hx(OOB)}\nv_cmp_gt_u32 vcc, 2, v2\nv_add_u32 v8, {WS_ST}, v8\nv_cndmask_b32 {v(G.vSTA)}, v9, v8, vcc")
        a(f"v_cmp_gt_u32 vcc, {self.o['fl']}, v1\nv_lshlrev_b32 v8, 2, v1\nv_cndmask_b32 {v(G.vFL)}, v9, v8, vcc")
        a(f"s_lshl_b32 {s(sT2)}, {s(sRH)}, 6\ns_add_u32 {s(sT1)}, {s(sT1)}, {s(sT2)}\nv_add_u32 v8, {s(sT1)}, v2\nv_and_b32 v10, 1, v8\nv_lshlrev_b32 v8, 5, v8\nv_lshlrev_b32 v10, 4, v10\nv_sub_u32 v8, v8, v10\nv_add_u32 {v(G.vSTG)}, {WS_ST}, v8")
        a("v_bfe_u32 v8, v1, 1, 3")
        a(f"s_lshl_b32 {s(sT2)}, {s(sRH)}, 13\nv_lshl_add_u32 v9, v2, 7, {s(sT2)}")
        for tau in range(4):
            a(f"s_xor_b32 {s(sT3)}, {s(sRH)}, {tau}\ns_lshl_b32 {s(sT3)}, {s(sT3)}, 1")
            a(f"v_add_u32 v10, {s(sT3)}, v3\nv_xor_b32 v10, v10, v8\nv_lshl_add_u32 {v(G.vXA+tau)}, v10, 4, v9\nv_add_u32 {v(G.vXB+tau)}, 65536, {v(G.vXA+tau)}")
        a("v_lshrrev_b32 v8, 2, v5\nv_lshl_add_u32 v8, v3, 3, v8\nv_lshlrev_b32 v8, 7, v8")
        a("v_and_b32 v9, 1, v4\nv_lshlrev_b32 v9, 1, v9\nv_bfe_u32 v10, v5, 1, 1\nv_add_u32 v9, v9, v10")
        a("v_lshrrev_b32 v10, 3, v5\nv_lshlrev_b32 v10, 2, v10\nv_xor_b32 v9, v9, v10")
        a("v_and_b32 v10, 1, v5\nv_lshlrev_b32 v10, 3, v10\nv_add_u32 v8, v8, v10")
        a(f"s_xor_b32 {s(sT3)}, {s(sTYPE)}, 1\ns_and_b32 {s(sT3)}, {s(sT3)}, {s(sRH)}\ns_lshl_b32 {s(sT3)}, {s(sT3)}, 1")
        a(f"s_lshl_b32 {s(sT2)}, {s(sCH)}, 2\ns_or_b32 {s(sT2)}, {s(sT2)}, {s(sT3)}\nv_xor_b32 v10, {s(sT2)}, v9\nv_lshl_add_u32 v10, v10, 4, v8")
        a(f"s_lshl_b32 {s(sT2)}, {s(sRH)}, 11")
        for sl in range(3):
            a(f"s_add_u32 {s(sT4)}, {s(sT2)}, {WR+8192*sl}\ns_sub_u32 {s(sT5)}, {WR+8192*sl}, {s(sT2)}")
            a(f"v_add_u32 {v(G.vWE+sl)}, {s(sT4)}, v10\nv_add_u32 {v(G.vWO+sl)}, {s(sT5)}, v10")
        a(f"v_lshrrev_b32 v8, 2, v5\nv_xor_b32 v8, v8, v4\nv_and_b32 v8, 1, v8\nv_cmp_eq_u32 vcc, 0, v8\nv_mov_b32 v9, 0x3f803f80")
        for q in range(4): a(f"v_cndmask_b32 {v(G.SEL+q)}, 0, v9, vcc")
        a(f"s_mul_i32 {s(sT0)}, {s(sWAVE)}, 384\ns_add_u32 {s(sT0)}, {s(sT0)}, {SC_CS}\nv_lshl_add_u32 {v(G.vCW)}, v2, 2, {s(sT0)}")
        a(f"s_xor_b32 {s(sT0)}, {s(sWAVE)}, 2\ns_mul_i32 {s(sT0)}, {s(sT0)}, 384\ns_add_u32 {s(sT0)}, {s(sT0)}, {SC_CS}\ns_xor_b32 {s(sT1)}, {s(sTYPE)}, 1\ns_lshl_b32 {s(sT1)}, {s(sT1)}, 4")
        a(f"v_xor_b32 v8, {s(sT1)}, v2\nv_lshl_add_u32 {v(G.vCR)}, v8, 2, {s(sT0)}")
        a(f"v_lshlrev_b32 v8, 2, v2\nv_add_u32 v8, {SC_FLAG}, v8\nds_write_b32 v8, {v(G.vNZ)}")
        if self.o["wt"] == 2: a(f"buffer_load_dword {v(G.vDUM)}, {v(G.vT0)}, {s(sW,4)}, 0 offen"); vm.issue("t")
        X = self.lab("vwx")
        a(f"v_mov_b32 {v(G.vT1)}, {hx(OOB)}\nv_mov_b32 {v(G.vT2)}, {hx(OOB)}\ns_cmp_lt_u32 {s(sWAVE)}, 2\ns_cbranch_scc1 {X}")
        a(f"s_cmp_eq_u32 {s(sWAVE)}, 2")
        a(f"s_cselect_b32 {s(sW)}, s16, s8\ns_cselect_b32 {s(sW+1)}, s17, s9\ns_movk_i32 {s(sT3)}, 2048\ns_cselect_b32 {s(sT3)}, 5504, {s(sT3)}")
        a(f"s_lshl_b32 {s(sW+2)}, {s(sT3)}, 8\ns_mul_i32 {s(sT2)}, s2, {s(sT3)}\ns_sub_u32 {s(sT3)}, {s(sT3)}, 4")
        a(f"v_lshlrev_b32 v12, 7, v1\nv_min_u32 v12, {s(sT3)}, v12\nv_add_u32 {v(G.vT1)}, {s(sT2)}, v12")
        a(f"s_cmp_eq_u32 {s(sWAVE)}, 2\ns_cselect_b32 {s(sT3)}, 43, 16\ns_lshr_b32 {s(sT2)}, s2, 3\ns_mul_i32 {s(sT2)}, {s(sT2)}, {s(sT3)}")
        a(f"v_add_u32 v12, {s(sT2)}, v1\nv_lshlrev_b32 v12, 10, v12\nv_add_u32 v12, 384, v12\nv_cmp_gt_u32 vcc, {s(sT3)}, v1\nv_cndmask_b32 {v(G.vT2)}, {v(G.vT2)}, v12, vcc")
        a.label(X)
        self.srd(sB1, 14, 2752); self.srd(sDBG, 22, 256); self.srd(sWS, 24, WS_SIZE)
        a(f"s_lshl_b32 {s(sT2)}, {s(sCH)}, 6\ns_lshl_b32 {s(sT3)}, {s(sTYPE)}, 31\ns_xor_b32 {s(sT3)}, {s(sT3)}, {hx(OOB)}\ns_or_b32 {s(sT2)}, {s(sT2)}, {s(sT3)}")
        a(f"v_lshl_add_u32 v8, v2, 1, {s(sT2)}")
        if not self.o["xe"]: xs()
        a("v_mov_b32 v96, v8")
        if self.o["t2"]:
            L = self.lab("t2")
            a(f"s_lshl_b32 {s(sT2)}, {s(sHF)}, 2\ns_or_b32 {s(sT2)}, {s(sT2)}, {s(sWAVE)}\ns_cmp_lg_u32 {s(sT2)}, 3\ns_cbranch_scc1 {L}")
            self.srd(sOUT, 6, 1572864)
            a(f"s_lshr_b32 {s(sT2)}, s2, 3\ns_lshl_b32 {s(sT2)}, {s(sT2)}, 4")
            a(f"v_add_u32 v12, {s(sT2)}, v5\nv_mul_u32_u24 v12, 3072, v12\nv_min_u32 v13, 2, v4\nv_lshl_add_u32 v12, v13, 10, v12\nv_add_u32 v12, 384, v12")
            a(f"buffer_load_dword {v(G.vDUM)}, v12, {s(sOUT,4)}, 0 offen")
            a.label(L)
        if self.o["w2s"]: a(f"buffer_load_dword {v(G.vDUM)}, {v(G.vT1)}, {s(sW,4)}, 0 offen"); vm.issue("t")
        self.vm0 = list(vm.q)
        self.ts("c_setup")
        a(f"s_cmp_eq_u32 {s(sTYPE)}, 0\ns_cbranch_scc0 L_typeB")

    def q_stats(self, typ, extra=()):
        G = self; T = G.TMP; U = T + 8; q = []
        g = dict(math=1, chk=self.o['chk'], w2=self.o["w2t"], ga=self.o['ga'], gc=self.o['gc'])
        nl = [self.vmi(f"buffer_load_dword {v(G.GR+3)}, {v(G.vNZ)}, {s(sDBG,4)}, 0 offen sc1", "nonce")]
        if not self.o["pre"]: q += nl
        q += [("GI", g["math"]), self.vmw("xs")]
        if self.o["pre"]: q += nl
        w = []
        for k in range(8): w += [f"v_lshlrev_b32 {v(U+2*k)}, 16, {v(T+k)}", f"v_and_b32 {v(U+2*k+1)}, 0xffff0000, {v(T+k)}"]
        w += [f"v_add_f32 {v(T+k)}, {v(U+2*k)}, {v(U+2*k+1)}" for k in range(8)]
        for n in (4, 2, 1): w += [f"v_add_f32 {v(T+k)}, {v(T+k)}, {v(T+k+n)}" for k in range(n)]
        def red32(r, t):
            o = [f"v_add_f32_dpp {v(r)}, {v(r)}, {v(r)} {m} row_mask:0xf bank_mask:0xf" for m in ("quad_perm:[1,0,3,2]", "quad_perm:[2,3,0,1]", "row_half_mirror", "row_mirror")]
            return o + [f"v_mov_b32 {v(t)}, {v(r)}", f"v_permlane16_swap_b32 {v(r)}, {v(t)}", f"v_add_f32 {v(r)}, {v(r)}, {v(t)}"]
        w += red32(T, T + 1) + [f"v_mul_f32 {v(G.GR)}, {fl(1/512)}, {v(T)}"]
        w += [f"v_sub_f32 {v(U+k)}, {v(U+k)}, {v(G.GR)}" for k in range(16)]
        w += [f"v_mul_f32 {v(T+k)}, {v(U+k)}, {v(U+k)}" for k in range(4)]
        w += [f"v_fmac_f32 {v(T+k%4)}, {v(U+k)}, {v(U+k)}" for k in range(4, 16)]
        w += [f"v_add_f32 {v(T)}, {v(T)}, {v(T+1)}", f"v_add_f32 {v(T+2)}, {v(T+2)}, {v(T+3)}", f"v_add_f32 {v(T)}, {v(T)}, {v(T+2)}"]
        w += red32(T, T + 1) + [f"v_mov_b32 {v(T+1)}, {fl(1e-5)}", f"v_fmac_f32 {v(T+1)}, {fl(1/512)}, {v(T)}",
                                f"v_rsq_f32 {v(G.GR+1)}, {v(T+1)}", f"v_mul_f32 {v(G.GR+2)}, {v(T+1)}, {v(G.GR+1)}"]
        q += self.its(w)
        if self.o["pre"]: self.flush(q); q = []
        L = self.lab("nonce"); R = self.lab("nonceok"); X = self.lab("noncex")
        q += [("GI", g["chk"]), self.vmw("nonce"),
              self.it(f"v_readfirstlane_b32 {s(sNONCE)}, {v(G.GR+3)}\ns_cmp_eq_u32 {s(sNONCE)}, 0\ns_cbranch_scc1 {L}\n{R}:"),
              self.vmi(f"buffer_store_dwordx4 {v(G.GR,4)}, {v(G.vSTA)}, {s(sWS,4)}, 0 offen sc1", "st"),
              self.it(f"v_mov_b32 v8, {SC_NONCE}\nds_write_b32 v8, {v(G.GR+3)}"), self.tsi("c_stpub")]
        self.tail.append(f"""{L}:
s_mov_b32 {s(sSPIN)}, 0
{X}:
buffer_load_dword {v(G.GR+3)}, {v(G.vNZ)}, {s(sDBG,4)}, 0 offen sc1
s_add_u32 {s(sSPIN)}, {s(sSPIN)}, 1
s_waitcnt vmcnt(0)
v_readfirstlane_b32 {s(sNONCE)}, {v(G.GR+3)}
s_cmp_gt_u32 {s(sSPIN)}, {SPIN_MAX}
s_cbranch_scc1 {R}
s_cmp_eq_u32 {s(sNONCE)}, 0
s_cbranch_scc1 {X}
s_branch {R}""")
        if typ == "B": q += self.its([f"v_lshlrev_b32 {v(G.B1+p)}, 16, {v(G.B1+p)}" for p in range(3)])
        if self.o["w7"] and typ == "B":
            q = [self.it(f"s_cmp_eq_u32 {s(sWAVE)}, 3\ns_cselect_b32 s56, s8, s16\ns_cselect_b32 s57, s9, s17\ns_movk_i32 {s(sT1)}, 688\ns_cselect_b32 {s(sT1)}, 256, {s(sT1)}\ns_cselect_b32 {s(sT2)}, 0, {s(sWAVE)}"),
                 self.it(f"s_lshl_b32 s58, {s(sT1)}, 11\ns_lshl_b32 {s(sT2)}, {s(sT2)}, 8\ns_mul_i32 {s(sT3)}, {s(sI)}, {s(sT1)}\ns_sub_u32 {s(sT1)}, {s(sT1)}, 1"),
                 self.it(f"s_cmp_eq_u32 {s(sG)}, 7\ns_cselect_b32 {s(sT4)}, 0, {hx(OOB)}\nv_add_u32 v96, {s(sT2)}, v1")] + q
            k0 = next(i for i, x in enumerate(q) if not isinstance(x, str) and x[0] == "GI")
            t = []
            for k in range(4):
                t += [("GI", self.o["w7"] + self.o["w7s"] * k - 1)] if k else []
                t += [self.it(f"v_min_u32 v9, {s(sT1)}, v96"), self.it(f"v_add_lshl_u32 v9, v9, {s(sT3)}, 7"), self.it(f"v_or_b32 v9, {s(sT4)}, v9"),
                      self.vmi(f"buffer_load_dword {v(G.vDUM)}, v9, s[56:59], 0 offen", "t"), self.it("v_add_u32 v96, 64, v96")]
            self.w7q = t
            q += t
        q += list(extra)
        if self.o["t3"]:
            q += [("GI", self.o["t3"] - 1), self.it(f"s_lshl_b32 {s(sT0)}, {s(sI)}, 3\ns_add_u32 {s(sT0)}, {s(sT0)}, {s(sCT)}\ns_lshl_b32 {s(sT0)}, {s(sT0)}, 14\nv_lshl_add_u32 v8, v5, 10, {s(sT0)}"),
                  self.vmi(f"buffer_load_dword {v(G.vDUM)}, v8, {s(sX,4)}, 0 offen offset:384", "t")]
        if self.o["w2t"] and not self.o["w7"] and not self.o["w2s"] and not self.o["sw"] & 1: q += [("GI", g["w2"]), self.vmi(f"buffer_load_dword {v(G.vDUM)}, {v(G.vT1)}, {s(sW,4)}, 0 offen", "t")]
        if self.o["t1"] and not self.o["sw"] & 2: q += [("GI", self.o["t1"]), self.vmi(f"buffer_load_dword {v(G.vDUM)}, {v(G.vT2)}, {s(sW,4)}, 0 offen", "t")]
        q += [("GI", g["ga"])] + [self.vmi(f"buffer_load_dwordx4 {v(G.SG+4*rb,4)}, {v(G.vSTG)}, {s(sWS,4)}, 0 offen offset:{1024*rb} sc1", "sg") for rb in range(2)]
        L = self.lab("st"); R = self.lab("stok"); X = self.lab("stx")
        chk = f"v_cmp_ne_u32 vcc, {s(sNONCE)}, {v(G.SG+3)}\nv_cmp_ne_u32 {s(sM,2)}, {s(sNONCE)}, {v(G.SG+7)}\ns_or_b64 vcc, vcc, {s(sM,2)}"
        q += [("GI", g["gc"]), self.vmw("sg"), self.it(f"{chk}\ns_cbranch_vccnz {L}\n{R}:"), self.tsi("c_stok")]
        self.tail.append(f"""{L}:
s_mov_b32 {s(sSPIN)}, 0
{X}:
buffer_load_dwordx4 {v(G.SG,4)}, {v(G.vSTG)}, {s(sWS,4)}, 0 offen sc1
buffer_load_dwordx4 {v(G.SG+4,4)}, {v(G.vSTG)}, {s(sWS,4)}, 0 offen offset:1024 sc1
s_add_u32 {s(sSPIN)}, {s(sSPIN)}, 1
s_cmp_gt_u32 {s(sSPIN)}, {SPIN_MAX}
s_waitcnt vmcnt(0)
s_cbranch_scc1 {R}
{chk}
s_cbranch_vccnz {X}
s_branch {R}""")
        for rb in range(2):
            mu, r, sd = G.SG + 4*rb, G.SG + 4*rb + 1, G.SG + 4*rb + 2; X = G.XS + 4*rb
            q += self.its([f"v_cvt_pk_bf16_f32 {v(T)}, -{v(mu)}, -{v(mu)}", f"v_cvt_pk_bf16_f32 {v(T+1)}, {v(sd)}, {v(sd)}",
                           f"v_and_b32 {v(T+2)}, 0xffff0000, {v(T)}", f"v_and_b32 {v(T+3)}, 0xffff0000, {v(T+1)}",
                           f"v_sub_f32 {v(T+2)}, -{v(mu)}, {v(T+2)}", f"v_sub_f32 {v(T+4)}, {v(sd)}, {v(T+3)}",
                           f"v_cvt_pk_bf16_f32 {v(T+2)}, {v(T+2)}, {v(T+3)}", f"v_cvt_pk_bf16_f32 {v(T+4)}, {v(T+4)}, 0",
                           f"v_cmp_gt_u32 vcc, 32, v1\nv_mov_b32 {v(X+3)}, 0\nv_cndmask_b32 {v(X)}, 0, {v(T)}, vcc\nv_cndmask_b32 {v(X+1)}, 0, {v(T+2)}, vcc\nv_cndmask_b32 {v(X+2)}, 0, {v(T+4)}, vcc"])
        k0 = -2.0 * 1.4426950408889634 * 0.7978845608028654
        for rb in range(2):
            r, sd = G.SG + 4*rb + 1, G.SG + 4*rb + 2
            if typ == "B":
                q += self.its([f"v_mul_f32 {v(G.GC+rb)}, {fl(k0)}, {v(r)}", f"v_mul_f32 {v(T)}, {v(r)}, {v(r)}",
                               f"v_mul_f32 {v(T)}, {fl(0.044715)}, {v(T)}", f"v_mul_f32 {v(G.GC+2+rb)}, {v(T)}, {v(G.GC+rb)}"])
            else:
                q += self.its([f"v_mul_f32 {v(G.GC+rb)}, {fl(1.4426950408889634)}, {v(r)}", f"v_mul_f32 {v(G.GC+2+rb)}, {fl(1e-6)}, {v(sd)}"])
        if typ == "A":
            q += self.its([f"s_lshl_b32 {s(sT0)}, {s(sWAVE)}, 8\ns_add_u32 {s(sT0)}, {s(sT0)}, {SC_R}\nv_lshl_add_u32 v8, v2, 2, {s(sT0)}\nv_lshl_add_u32 v6, v3, 4, {s(sT0)}",
                           f"ds_write_b32 v8, {v(G.GC)}", f"ds_write_b32 v8, {v(G.GC+1)} offset:128"])
        return q

    def reads0(self, gi):
        G = self
        k, tau = divmod(gi, 4); sl = (gi // 2) % 3; b = gi & 1
        X = lambda rb: [(f"ds_read_b128 {v(16+8*b+4*rb,4)}, {v((G.vXB if k >= 4 else G.vXA) + tau)} offset:{(k % 4)*16384 + 4096*rb}", (gi, "X", rb))]
        W = lambda p: [(f"ds_read_b64_tr_b16 {v(48+8*b+4*p+2*j,2)}, {v((G.vWO if tau & 1 else G.vWE) + sl)} offset:{p*4096+(tau&1)*2048+j*512}", (gi, "W", p)) for j in range(2)]
        return [W(0) + X(0), W(1) + X(1), [], []]
    def reads1(self, M):
        G = self
        if M >= 16: return [[], [], [], []]
        k = M // 2; sl = (16 + k) % 3; b = M & 1
        def X(ks, rb):
            tau = 2*(M & 1) + ks
            return [(f"ds_read_b128 {v(16+16*b+8*ks+4*rb,4)}, {v((G.vXB if k >= 4 else G.vXA) + tau)} offset:{(k % 4)*16384 + 4096*rb}", (32+M, "X", ks, rb))]
        def W(ks):
            tau = 2*(M & 1) + ks
            return [(f"ds_read_b64_tr_b16 {v(48+8*b+4*ks+2*j,2)}, {v((G.vWO if tau & 1 else G.vWE) + sl)} offset:{tau*2048+j*512}", (32+M, "W", ks)) for j in range(2)]
        return [W(0) + X(0, 0), W(1) + X(0, 1), X(1, 0), X(1, 1)]

    def mpass(self, typ, ps, q, budget):
        a = self.a; G = self; CS = G.CSM[typ]
        def issue(g):
            for r, t in g: a(r); self.lg.issue(t)
        if ps == 0:
            self.lg = Cnt(a, "lgkmcnt", 15)
            self.ts("c_pre0")
            a("s_waitcnt lgkmcnt(0)\ns_barrier")
            self.ts("c_bar0")
            for g in self.reads0(0): issue(g)
        elif typ == "A":
            for g in self.reads1(0): issue(g)
        lg = self.lg
        st_ = dict(hold=None, credit=0, nbar=0)
        def emit(x):
            n0 = len(a.items); x[1]()
            for ln in a.items[n0:]:
                if ln.startswith("ds_"): lg.issue("F")
        def fill(M, nr):
            st_["credit"] = min(st_["credit"] + budget - 5 * nr, budget + 6)
            while q and st_["hold"] is None:
                x = q[0]
                if x in ("NEXT", "BAR"): st_["hold"] = x; q.pop(0); break
                if x[0] == "GI":
                    if M >= x[1]: q.pop(0); continue
                    break
                if x[0] == "GB":
                    if st_["nbar"] >= x[1]: q.pop(0); continue
                    break
                if st_["credit"] < min(x[0], 12): break
                q.pop(0); emit(x); st_["credit"] -= x[0]
        def barrier(n):
            lg.wait("F"); a("s_barrier"); self.ts(f"c_bar{n}"); st_["nbar"] += 1
            if st_["hold"] == "BAR": st_["hold"] = None
        NS = 32 if ps == 0 else 16
        pn = (0, 1) if ps == 0 else (2,)
        for M in range(NS):
            b = M & 1; mf = []; last = M == NS - 1
            for i in range(2):
                for rb in range(2):
                    p = i if ps == 0 else 2
                    x = v(16+8*b+4*rb, 4) if ps == 0 else v(16+16*b+8*i+4*rb, 4)
                    w = v(48+8*b+4*i, 4); c = v(G.acc(p, rb), 16)
                    A, B = (x, w) if (typ == "A" and p < 2) else (w, x)
                    mf.append(f"v_mfma_f32_32x32x16_bf16 {c}, {A}, {B}, {c if M or (ps and i) else 0}")
            if ps == 0:
                cs = [f"v_mfma_f32_16x16x32_bf16 {v(CS[p],4)}, {v(G.SEL,4)}, {v(48+8*b+4*p,4)}, {v(CS[p],4) if M else 0}" for p in pn] if b == 0 else []
                rd = self.reads0(M + 1) if not last else (self.reads1(0) if typ == "B" else [[], [], [], []])
                need = [(M, "X", 1), None, None, None]; nb = M // 2 + 1
            else:
                cs = [f"v_mfma_f32_16x16x32_bf16 {v(CS[2],4)}, {v(G.SEL,4)}, {v(48+8*b,4)}, {v(CS[2],4) if M else 0}"]
                rd = self.reads1(M + 1)
                need = [(32+M, "X", 0, 1), None, (32+M, "X", 1, 1), None]; nb = 17 + M // 2
            csw = [(f"ds_write_b32 {v(G.vCW)}, {v(CS[p])} offset:{128*p}", "F") for p in pn]
            csr = [(f"ds_read_b32 {v(CS[p]+1)}, {v(G.vCR)} offset:{128*p}", "F") for p in pn]
            if st_["hold"] == "NEXT" or M == 0: lg.wait("F"); st_["hold"] = None if st_["hold"] == "NEXT" else st_["hold"]
            if last and ps == 1:
                lg.wait(need[0]); a(cs[0]); a(mf[0])
                for j in range(4):
                    if j: a(f"v_xor_b32 v8, {16*j}, {v(G.vXR)}")
                    issue([(f"ds_read_b64 {v(G.XR+2*j,2)}, {v(8 if j else G.vXR)}", "F")])
                fill(M, 4); a(mf[1])
                issue(csw); fill(M, 1); lg.wait(need[2]); a(mf[2])
                barrier(nb); issue(csr); a(mf[3])
                break
            for k in range(4):
                lg.wait(need[k]); a(mf[k])
                if k == 0 and b:
                    barrier(nb)
                    if last: issue(csr)
                issue(rd[k])
                fill(M, len(rd[k]))
                if k == (0 if (ps == 0 and M == 30) else 2):
                    for c in cs: a(c)
                if k == 2 and ps == 0 and M == 30: issue(csw)
        assert st_["hold"] != "BAR"
        assert not any(x[0] in ("GI", "GB") for x in q if not isinstance(x, str)), "GI marker left"
        if self.verbose: print(typ, "pass", ps, "leftover cost", sum(x[0] for x in q if not isinstance(x, str)))
        self.ts(f"c_pass{ps}")

    def q_fixup(self, typ, p):
        G = self; c = G.CSM[typ][p]; F = 136 if typ == "B" else (152, 148, 128)[p]; q = []
        q += self.its([f"v_add_f32 {v(c)}, {v(c)}, {v(c+1)}", f"v_cvt_pk_bf16_f32 {v(c+1)}, {v(c)}, {v(c)}",
                      f"v_and_b32 {v(c+1)}, 0xffff0000, {v(c+1)}", f"v_sub_f32 {v(c+2)}, {v(c)}, {v(c+1)}", f"v_mov_b32 {v(F+3)}, 0"])
        if typ == "B":
            q += self.its([f"v_cvt_pk_bf16_f32 {v(F+1)}, {v(c+1)}, {v(G.B1+p)}", f"v_cvt_pk_bf16_f32 {v(F+2)}, {v(G.B1+p)}, 0"])
        else:
            q += self.its([f"v_cvt_pk_bf16_f32 {v(F+1)}, {v(c+1)}, 0", f"v_mov_b32 {v(F+2)}, 0"])
        q += self.its([f"v_cvt_pk_bf16_f32 {v(F)}, {v(c+1)}, {v(c+2)}"])
        for rb in range(2):
            x = v(G.XS + 4*rb, 4); w = v(F, 4); cc = v(G.acc(p, rb), 16)
            A, B = (x, w) if (typ == "A" and p < 2) else (w, x)
            q += self.its([f"v_mfma_f32_32x32x16_bf16 {cc}, {A}, {B}, {cc}"])
        return q

    def ho_base(self, dst, sig0):
        t = (f"s_lshl_b32 {s(dst)}, {s(sI)}, 1\ns_add_u32 {s(dst)}, {s(dst)}, {s(sRH)}\ns_lshl_b32 {s(dst)}, {s(dst)}, {self.SS+2}\n"
             f"s_lshl_b32 {s(sT0)}, {s(sG)}, 1\ns_add_u32 {s(sT0)}, {s(sT0)}, {s(sCH)}\n")
        if not self.o["lay"]:
            return t + f"s_add_u32 {s(sT5)}, {s(sT0)}, {sig0}\ns_lshl_b32 {s(sT5)}, {s(sT5)}, 10\ns_add_u32 {s(dst)}, {s(dst)}, {s(sT5)}"
        par = int(sig0 >= 29) if self.o['lay'] == 1 else 0
        return t + (f"s_add_u32 {s(sT5)}, {s(sT0)}, {sig0 - 29*par}\ns_and_b32 {s(sT4)}, {s(sT5)}, 7\ns_lshr_b32 {s(sT5)}, {s(sT5)}, 3\ns_lshl_b32 {s(sT5)}, {s(sT5)}, 4\n"
                    f"s_add_u32 {s(sT5)}, {s(sT5)}, {s(sT4)}\ns_add_u32 {s(sT5)}, {s(sT5)}, {8*par}\ns_lshl_b32 {s(sT5)}, {s(sT5)}, 10\ns_add_u32 {s(dst)}, {s(dst)}, {s(sT5)}")

    def q_flag(self, soff):
        return [self.it(f"v_mov_b32 v11, {s(sNONCE)}"),
                self.vmi(f"buffer_store_dword v11, {v(self.vFL)}, {s(sWS,4)}, {s(soff)} offen {'sc0 sc1' if self.o['fsc'] else 'sc1'}", "f")]

    def q_gelu_setup(self):
        sHB, sFL = 26, 27; vO = 12
        q = [self.it("\n".join(self.ho_base(4 + p, SIG0[p]) for p in range(3)) + f"\ns_lshl_b32 {s(sT1)}, {s(sI)}, 1\ns_add_u32 {s(sT1)}, {s(sT1)}, {s(sRH)}\ns_mul_i32 {s(sFL)}, {s(sT1)}, {3*FG}\ns_lshl_b32 {s(sT1)}, {s(sT0)}, {FS}\ns_add_u32 {s(sFL)}, {s(sFL)}, {s(sT1)}\ns_add_u32 {s(sFL)}, {s(sFL)}, {WS_FH}")]
        t = f"s_mul_i32 {s(sT1)}, {s(sG)}, 6\ns_add_u32 {s(sT1)}, {s(sT1)}, {s(sCH)}\nv_lshlrev_b32 v11, 4, v1"
        for p in range(3): t += f"\ns_cmp_lt_u32 {s(sT1)}, {43-2*p}\ns_cselect_b32 {s(sT2)}, 0, {hx(OOB)}\nv_or_b32 {v(vO+p)}, {s(sT2)}, v11"
        return q + [self.it(t)]
    def q_gelu(self, p, pk):
        G = self; sHB, sFL, sO = 26, 27, 3; vO = 12; t = G.TMP; q = []; n = 0
        for rb in range(2):
            A, B, sd = G.GC + rb, G.GC + 2 + rb, G.SG + 4*rb + 2
            for kh in range(2):
                c = G.acc(p, rb) + 8*kh; P = t + 8 + 4*(n & 1); n += 1
                if self.o["pk"] and pk:
                    sel = rb
                    w = [f"v_pk_mul_f32 {v(t+j,2)}, {v(c+j,2)}, {v(c+j,2)}" for j in range(0, 8, 2)]
                    w += [f"v_pk_fma_f32 {v(t+j,2)}, {v(t+j,2)}, {v(G.GC+2,2)}, {v(G.GC,2)} op_sel:[0,{sel},{sel}] op_sel_hi:[1,{sel},{sel}]" for j in range(0, 8, 2)]
                    w += [f"v_pk_mul_f32 {v(t+j,2)}, {v(c+j,2)}, {v(t+j,2)}" for j in range(0, 8, 2)]
                    w += [f"v_exp_f32 {v(t+j)}, {v(t+j)}" for j in range(8)]
                    w += [f"v_pk_fma_f32 {v(t+j,2)}, {v(t+j,2)}, {v(sd,2)}, {v(sd,2)} op_sel:[0,0,0] op_sel_hi:[1,0,0]" for j in range(0, 8, 2)]
                    w += [f"v_rcp_f32 {v(t+j)}, {v(t+j)}" for j in range(8)]
                    w += [f"v_pk_mul_f32 {v(t+j,2)}, {v(c+j,2)}, {v(t+j,2)}" for j in range(0, 8, 2)]
                else:
                    w = [f"v_mul_f32 {v(t+j)}, {v(c+j)}, {v(c+j)}" for j in range(8)]
                    w += [f"v_fma_f32 {v(t+j)}, {v(t+j)}, {v(B)}, {v(A)}" for j in range(8)]
                    w += [f"v_mul_f32 {v(t+j)}, {v(c+j)}, {v(t+j)}" for j in range(8)]
                    w += [f"v_exp_f32 {v(t+j)}, {v(t+j)}" for j in range(8)]
                    w += [f"v_fma_f32 {v(t+j)}, {v(t+j)}, {v(sd)}, {v(sd)}" for j in range(8)]
                    w += [f"v_rcp_f32 {v(t+j)}, {v(t+j)}" for j in range(8)]
                    w += [f"v_mul_f32 {v(t+j)}, {v(c+j)}, {v(t+j)}" for j in range(8)]
                w += [f"v_cvt_pk_bf16_f32 {v(P+j)}, {v(t+2*j)}, {v(t+2*j+1)}" for j in range(4)]
                q += self.its(w)
                q += [self.vmi(f"s_add_u32 {s(sO)}, {s(4+p)}, {(2*rb+kh) << self.SS}\nbuffer_store_dwordx4 {v(P,4)}, {v(vO+p)}, {s(sWS,4)}, {s(sO)} offen sc1", ("h", p))]
        return q + [self.tsi(f"cB_p{p}")]

    def q_hflag(self, p):
        return [self.vmw(("h", p))] + self.q_flag(27) + [self.it(f"s_add_u32 s27, s27, {FG}"), self.tsi(f"cB_flag{p}")]
    def q_h0(self):
        G = self
        return self.its([f"s_lshl_b32 {s(sT1)}, {s(sI)}, 1\ns_add_u32 {s(sT1)}, {s(sT1)}, {s(sHF)}\ns_mul_i32 {s(sC0)}, {s(sT1)}, {3*FG}\ns_add_u32 {s(sC0)}, {s(sC0)}, {WS_FH}", f"v_lshlrev_b32 {v(G.vGP)}, {FS}, v5"]) + \
               [("GI", 13), self.vmi(self.fload(G.vGF, G.vGP, sC0), "gf")]
    def aload(self, vm, sig):
        if sig >= 59: return
        G = self; sA = sKST; D = self.o["D"]
        if self.o["r2"]:
            st, j2, ch = pos_of(sig); n = 8 if st == 3 else 7; t = ""
            if sig == 14: t = f"s_add_u32 {s(sA)}, s16, {14*1024}\n"
            elif ch == 0:
                t = f"s_mov_b32 s19, {'s18' if st == 3 else 's17'}\n" if j2 == 0 else f"s_add_u32 s19, s19, 2048\ns_cmp_eq_u32 s19, {n*2048}\ns_cselect_b32 s19, 0, s19\n"
                t += f"s_add_u32 {s(sA)}, s19, s16\n" + (f"s_add_u32 {s(sA)}, {s(sA)}, {(SIG0+[43])[st]*1024}\n" if st else "")
            self.a(t + f"buffer_load_dwordx4 {v(G.RING[sig%D],4)}, {v(G.vA)}, {s(sWS,4)}, {s(sA)} offen offset:{1024*ch} sc1"); vm.issue(("A", sig))
            return
        o = hoff(sig, self.o["lay"]); d = (o & ~4095) - (hoff(sig - 1, self.o["lay"]) & ~4095) if sig else 0
        if d: self.a(f"s_add_u32 {s(sA)}, {s(sA)}, {hx(d)}")
        self.a(f"buffer_load_dwordx4 {v(G.RING[sig%D],4)}, {v(G.vA)}, {s(sWS,4)}, {s(sA)} offen offset:{o & 4095} {['', 'sc1', 'sc0 sc1', 'nt sc1'][self.o['asc']]}"); vm.issue(("A", sig))
    RING = [16 + 4*k for k in range(8)] + [72, 76, 80, 84, 88]
    def gcheck(self, vm, soff, two=False, va=None):
        a = self.a; G = self; L = self.lab("gc"); R = self.lab("gcok"); X = self.lab("gcx")
        vm.wait("gf")
        a(f"v_cmp_ne_u32 vcc, {s(sNONCE)}, {v(G.vGF)}\ns_cbranch_vccnz {L}")
        a.label(R)
        pre = ""
        if two:
            n = len(vm.q) - 1 - max(i for i, t in enumerate(vm.q) if t == "gb")
            pre = f"s_waitcnt vmcnt({n})\nv_cmp_ne_u32 vcc, {s(sNONCE)}, {v(G.vGB)}\ns_cbranch_vccz {R}\n"
        self.tail.append(f"{L}:\n" + pre + self.poll_text(G.vGP if va is None else va, G.vGF, soff, X, self.lab("gcy")) + f"\ns_branch {R}")
    def p2_pre(self):
        if self.stop == "p1": return
        self.gcheck(self.vm, sC0); self.ts("c_p0x")
        for sig in range(8): self.aload(self.vm, sig)
        G = self
        if self.o["kearly"]: self.a(f"s_add_u32 {s(sC0)}, {s(sC0)}, {FG}\nbuffer_load_dword {v(G.vGF)}, {v(G.vGP)}, {s(sWS,4)}, {s(sC0)} offen sc1"); self.vm.issue("gf")
    def typeB(self):
        a = self.a; G = self; o = self.o
        self.vm.q = list(self.vm0)
        for p in range(3):
            a(f"v_add_u32 v9, {s(sC0+p)}, v96\nbuffer_load_ushort {v(G.B1+p)}, v9, {s(sB1,4)}, 0 offen"); self.vm.issue("b1")
        self.flush(self.q_gelu_setup())
        pw = []
        if o["pw"]:
            pw = [("GI", o["pw"])] + [self.vmi(f"s_add_u32 s3, s27, {k*FG}\nbuffer_store_dword {v(G.vNZ)}, {v(G.vFL)}, {s(sWS,4)}, s3 offen sc1", "pw") for k in range(3)]
        q = self.q_stats("B", pw + self.q_p2setup())
        self.mpass("B", 0, q, o["bud0"])
        g1 = self.q_gelu(1, False)
        h0 = self.q_h0()
        q += self.q_fixup("B", 0) + self.q_fixup("B", 1) + h0[:2] + self.q_gelu(0, False) + g1[:o["fm"]*10] + self.q_hflag(0) + g1[o["fm"]*10:]
        self.mpass("B", 1, q, o["bud2"])
        self.ts("c_main")
        g2 = self.q_gelu(2, True); h = len(g2) // 4 * o["g2h"]
        self.flush(q + h0[3:] + ["NEXT"] + self.q_fixup("B", 2) + g2[:h] + self.q_hflag(1) + [(0, self.p2_pre)] + g2[h:])
        self.ts("cB_gelu")
        if self.stop == "p1": self.vm.wait(("h", 2)); self.flush(self.q_flag(27))

    def pair_recv(self, kind, reads):
        a = self.a; L = self.lab("pw"); X = self.lab("pwx")
        a(f"s_xor_b32 {s(sT0)}, {s(sWAVE)}, 2\ns_lshl_b32 {s(sT0)}, {s(sT0)}, 4\ns_add_u32 {s(sT0)}, {s(sT0)}, {SC_FLAG+4*kind}\nv_mov_b32 v12, {s(sT0)}\ns_mov_b32 {s(sSPIN)}, 0")
        a.label(L)
        a("ds_read_b32 v13, v12")
        for r in reads: a(r)
        a(f"s_add_u32 {s(sSPIN)}, {s(sSPIN)}, 1\ns_cmp_gt_u32 {s(sSPIN)}, {SPIN_MAX}\ns_waitcnt lgkmcnt(0)\ns_cbranch_scc1 {X}")
        a(f"v_cmp_eq_u32 vcc, 0, v13\ns_cbranch_vccnz {L}")
        a.label(X)
    def pair_send(self, kind):
        a = self.a
        a(f"s_lshl_b32 {s(sT0)}, {s(sWAVE)}, 4\ns_add_u32 {s(sT0)}, {s(sT0)}, {SC_FLAG+4*kind}\nv_mov_b32 v12, {s(sT0)}\nv_mov_b32 v13, 1\nds_write_b32 v12, v13")

    ON = 156
    RR = (128, 32)
    def q_kv_pre(self):
        G = self
        return ["NEXT"] + self.its([f"ds_read_b128 {v(G.RR[rb]+4*k,4)}, v6 offset:{128*rb+32*k}" for rb in range(2) for k in range(4)]
                                   + [f"v_mov_b32 {v(G.ON+k)}, 0x3f803f80" for k in range(4)] + ["v_xor_b32 v12, 32, v96"])
    def q_kv(self):
        G = self; q = []
        KV, ZZ, u, ON = 16, 48, G.TMP + 16, G.ON
        pend = []
        for n, (rb, kh) in enumerate(((0, 0), (0, 1), (1, 0), (1, 1))):
            c = G.acc(0, rb) + 8*kh; cv = G.acc(1, rb) + 8*kh; r = G.RR[rb] + 8*kh
            w = [f"v_pk_mul_f32 {v(c+j,2)}, {v(c+j,2)}, {v(r+j,2)}" for j in range(0, 8, 2)]
            e = [f"v_exp_f32 {v(u+j)}, {v(c+j)} clamp" for j in range(8)]
            w += pend[:1] + e[:4] + pend[1:] + e[4:]
            w += [f"v_max_f32 {v(c+j)}, v10, {v(c+j)}" for j in range(8)]
            w += [f"v_pk_mul_f32 {v(cv+j,2)}, {v(cv+j,2)}, {v(r+j,2)}" for j in range(0, 8, 2)]
            w += [f"v_pk_fma_f32 {v(u+j,2)}, {v(c+j,2)}, v[10:11], {v(u+j,2)} op_sel:[0,1,0] op_sel_hi:[1,1,1]" for j in range(0, 8, 2)]
            w += [f"v_cvt_pk_bf16_f32 {v(cv+j)}, {v(cv+2*j)}, {v(cv+2*j+1)}" for j in range(4)]
            w += [f"v_cvt_pk_bf16_f32 {v(c+j)}, {v(u+2*j)}, {v(u+2*j+1)}" for j in range(4)]
            pend = [f"v_mfma_f32_32x32x16_bf16 {v(ZZ,16)}, {v(c,4)}, {v(ON,4)}, {v(ZZ,16) if n else 0}",
                    f"v_mfma_f32_32x32x16_bf16 {v(KV,16)}, {v(c,4)}, {v(cv,4)}, {v(KV,16) if n else 0}"]
            q += self.its(w)
        q += self.its(pend) + [self.tsi("cA_kv"), self.it("v_mov_b32 v13, 1")]
        q += self.its([f"v_cndmask_b32 {v(u+j)}, {v(KV+8+j)}, {v(ZZ+8+j)}, {s(sLM,2)}" for j in range(8)])
        q += self.its([f"ds_write_b128 v90, {v(u,4)}", f"ds_write_b128 v90, {v(u+4,4)} offset:16", "ds_write_b32 v96, v13"])
        q += self.its([f"v_cndmask_b32 {v(ZZ+j)}, {v(ZZ+j)}, {v(KV+j)}, {s(sLM,2)}" for j in range(8)])
        q += [(40, lambda: self.pair_spin([f"ds_read_b128 {v(ZZ+8,4)}, v91", f"ds_read_b128 {v(ZZ+12,4)}, v91 offset:16"]))]
        q += self.its([f"v_pk_add_f32 {v(ZZ+j,2)}, {v(ZZ+j,2)}, {v(ZZ+8+j,2)}" for j in range(0, 8, 2)])
        q += self.its([f"v_pk_mul_f32 {v(ZZ+j,2)}, {v(ZZ+j,2)}, v[0:1] op_sel_hi:[1,0]" for j in range(0, 8, 2)])
        q += self.its([f"v_cvt_pk_bf16_f32 {v(u+j)}, {v(ZZ+2*j)}, {v(ZZ+2*j+1)}" for j in range(4)])
        q += [self.vmi(f"buffer_store_dwordx4 {v(u,4)}, v15, {s(sWS,4)}, s85 offen sc1", "kv"), self.tsi("cA_pub")]
        return q
    def pair_spin(self, reads, off=0):
        a = self.a; L = self.lab("pw"); X = self.lab("pwx")
        a(f"s_mov_b32 {s(sSPIN)}, 0")
        a.label(L)
        a(f"ds_read_b32 v13, v12 offset:{off}")
        for r in reads: a(r)
        a(f"s_add_u32 {s(sSPIN)}, {s(sSPIN)}, 1\ns_cmp_gt_u32 {s(sSPIN)}, {SPIN_MAX}\ns_waitcnt lgkmcnt(0)\ns_cbranch_scc1 {X}")
        a(f"v_cmp_eq_u32 vcc, 0, v13\ns_cbranch_vccnz {L}")
        a.label(X)
    def q_kvflag(self):
        sFL, sHD = 27, 3
        return [self.vmw("kv")] + self.q_flag(sHD) + [self.tsi("cA_flag")]
    def q_phiq(self):
        G = self; u = G.TMP; q = []
        for rb in range(2):
            rl, ep, r = G.GC + rb, G.GC + 2 + rb, G.SG + 4*rb + 1
            for hh in range(2):
                c = G.acc(2, rb) + 8*hh
                w = [f"v_mul_f32 {v(u+j)}, {v(rl)}, {v(c+j)}" for j in range(8)]
                w += [f"v_exp_f32 {v(u+j)}, {v(u+j)} clamp" for j in range(8)]
                w += [f"v_max_f32 {v(c+j)}, {v(ep)}, {v(c+j)}" for j in range(8)]
                w += [f"v_fmac_f32 {v(u+j)}, {v(c+j)}, {v(r)}" for j in range(8)]
                w += [f"v_cvt_pk_bf16_f32 {v(c+j)}, {v(u+2*j)}, {v(u+2*j+1)}" for j in range(4)]
                q += self.its(w)
        return q + [self.tsi("cA_q")]

    def typeA(self):
        a = self.a; G = self; T = G.TMP; vm = self.vm
        vm.q = list(self.vm0)
        a("v_and_b32 v8, 1, v4\nv_lshlrev_b32 v8, 2, v8\nv_sub_u32 v8, v5, v8\nv_mov_b32 v9, 0x3f80\nv_mov_b32 v10, 0x3f800000")
        for k, e in enumerate((0, 2, 8, 10)):
            a(f"v_cmp_eq_u32 vcc, {e}, v8\nv_cndmask_b32 v11, 0, v9, vcc\nv_cmp_eq_u32 vcc, {e+1}, v8\nv_cndmask_b32 {v(G.IDN+k)}, v11, v10, vcc")
        sREC, sFL, sHD = 26, 27, 3
        a(f"s_lshl_b32 {s(sHD)}, {s(sG)}, 1\ns_add_u32 {s(sHD)}, {s(sHD)}, {s(sCH)}\ns_lshl_b32 {s(sHD)}, {s(sHD)}, 1\ns_add_u32 {s(sHD)}, {s(sHD)}, {s(sRH)}")
        a(f"s_mul_i32 {s(sREC)}, {s(sHD)}, 10240\ns_add_u32 {s(sREC)}, {s(sREC)}, {WS_KV}\ns_lshl_b32 {s(sFL)}, {s(sHD)}, {FS+4}\ns_add_u32 {s(sFL)}, {s(sFL)}, {WS_FK}")
        a(f"s_lshl_b32 {s(sHD)}, {s(sI)}, {FS}\ns_add_u32 {s(sHD)}, {s(sHD)}, {s(sFL)}\ns_mul_i32 s85, {s(sI)}, 640\ns_add_u32 s85, s85, {s(sREC)}")
        a(f"v_cmp_gt_u32 {s(sLM,2)}, 16, v2\nv_lshl_add_u32 v12, v3, 4, v2\nv_lshlrev_b32 v12, 4, v12\nv_lshlrev_b32 v13, 6, v3\nv_add_u32 v13, 512, v13")
        a(f"v_cndmask_b32 v14, v13, v12, {s(sLM,2)}")
        a(f"v_lshl_add_u32 v13, v5, 4, v13\nv_cndmask_b32 v15, v13, v12, {s(sLM,2)}\nv_mov_b32 v12, {hx(OOB)}\nv_cmp_gt_u32 vcc, 20, v2\nv_cndmask_b32 v15, v12, v15, vcc")
        a(f"v_mov_b32 v9, {fl(0.6931471805599453)}\nv_cndmask_b32 v0, 1.0, v9, {s(sLM,2)}")
        a(f"v_mov_b32 v10, {fl(1e-6*1.4426950408889634)}\nv_mov_b32 v11, v9")
        o = self.o
        pw = []
        if o["pw"]:
            pw = [("GI", o["pw"]), self.vmi(f"buffer_store_dword {v(G.vNZ)}, {v(G.vFL)}, {s(sWS,4)}, s3 offen sc1", "pw"),
                  self.it(f"s_lshl_b32 {s(sT1)}, {s(sI)}, 1\ns_add_u32 {s(sT1)}, {s(sT1)}, {s(sRH)}\ns_lshl_b32 {s(sT1)}, {s(sT1)}, 4\ns_lshl_b32 {s(sT2)}, {s(sG)}, 1"),
                  self.it(f"s_add_u32 {s(sT1)}, {s(sT1)}, {s(sT2)}\ns_add_u32 {s(sT1)}, {s(sT1)}, {s(sCH)}\ns_lshl_b32 {s(sT1)}, {s(sT1)}, {FS}\ns_add_u32 {s(sT1)}, {s(sT1)}, {WS_FO}"),
                  self.vmi(f"buffer_store_dword {v(G.vNZ)}, {v(G.vFL)}, {s(sWS,4)}, {s(sT1)} offen sc1", "pw")]
        q = self.q_stats("A", pw)
        q += self.its([f"s_mul_i32 {s(sT1)}, {s(sWAVE)}, 1280\ns_add_u32 {s(sT1)}, {s(sT1)}, {SC_KVX}\nv_add_u32 v93, {s(sT1)}, v14",
                       "v_xor_b32 v8, 16, v2", "v_lshl_add_u32 v8, v3, 4, v8", "v_lshlrev_b32 v9, 0, v3", "v_add_u32 v9, 32, v9",
                       f"v_cndmask_b32 v8, v8, v9, {s(sLM,2)}", f"v_lshl_add_u32 v90, v8, 5, {s(sT1)}",
                       f"s_xor_b32 {s(sT1)}, {s(sWAVE)}, 2\ns_mul_i32 {s(sT1)}, {s(sT1)}, 1280\ns_add_u32 {s(sT1)}, {s(sT1)}, {SC_KVX}\nv_add_u32 v92, {s(sT1)}, v14",
                       "v_lshl_add_u32 v8, v3, 4, v2", f"v_cndmask_b32 v8, v9, v8, {s(sLM,2)}", f"v_lshl_add_u32 v91, v8, 5, {s(sT1)}"])
        q += self.its([f"s_lshl_b32 {s(sT1)}, {s(sWAVE)}, 4\ns_add_u32 {s(sT1)}, {s(sT1)}, {SC_FLAG}\nv_mov_b32 v96, {s(sT1)}"])
        q += self.q_kv_pre()
        self.mpass("A", 0, q, o["bud0"])
        self.flush(q + ["NEXT"] + self.q_fixup("A", 0) + self.q_fixup("A", 1) + self.q_kv()); self.lg.q = []
        sREC, sFL = 26, 27
        h0 = self.q_h0()
        GA = G.ACC; KP, ZP = G.ACC + 40, G.ACC + 44
        q = [("GI", o["fmA"])] + self.q_kvflag() + self.q_p2setup() + h0[:2]
        q += self.its(["v_mul_u32_u24 v97, 640, v3", "v_lshl_add_u32 v97, v2, 4, v97",
                       "v_and_b32 v8, 7, v5", "v_lshl_add_u32 v8, v8, 1, v3", "v_mul_u32_u24 v98, 640, v8", "v_and_b32 v9, 1, v4", "v_lshl_add_u32 v98, v9, 6, v98", "v_add_u32 v98, 512, v98",
                       f"s_xor_b32 {s(sT1)}, {s(sWAVE)}, 2\ns_mul_i32 {s(sT1)}, {s(sT1)}, 1280\ns_add_u32 {s(sT1)}, {s(sT1)}, {SC_KVX}\nv_lshl_add_u32 v8, v3, 3, {s(sT1)}",
                       "v_lshl_add_u32 v90, v2, 4, v8", "v_lshl_add_u32 v91, v9, 6, v8", "v_add_u32 v91, 512, v91"])
        hb = self.ho_base(7, 43).split("\n")
        q += [self.it("\n".join(hb[k:k+4])) for k in range(0, len(hb), 4)]
        q += self.its([f"s_lshl_b32 {s(sT1)}, {s(sI)}, 1\ns_add_u32 {s(sT1)}, {s(sT1)}, {s(sRH)}\ns_lshl_b32 s6, {s(sT1)}, {FS+4}", f"s_lshl_b32 {s(sT1)}, {s(sT0)}, {FS}\ns_add_u32 s6, s6, {s(sT1)}\ns_add_u32 s6, s6, {WS_FO}",
                       f"s_lshl_b32 s4, {s(sRH)}, {self.SS}\ns_xor_b32 s5, s4, {1 << self.SS}", "s_add_u32 s4, s4, s7\ns_add_u32 s5, s5, s7"])
        L = self.lab("kf"); R = self.lab("kfok")
        q += [("GI", o["kfs"]), self.vmi(self.fload(11, G.vGP, sFL), "kf")]
        kq = [("GI", o["kfc"]), self.vmw("kf"),
              (0, lambda: a(f"v_cmp_ne_u32 vcc, {s(sNONCE)}, v11\ns_cbranch_vccnz {L}\n{R}:")), self.tsi("cA_poll")]
        self.tail.append(f"{L}:\n" + self.poll_text(G.vGP, 11, sFL, self.lab("kfx"), self.lab("kfy")) + f"\ns_branch {R}")
        def gl(k):
            if k == 8: a(f"buffer_load_dwordx4 {v(GA+32,4)}, v98, {s(sWS,4)}, {s(sREC)} offen sc1")
            else: a((f"s_add_u32 s3, {s(sREC)}, {k*1280}\n" if k % 4 == 0 else "") + f"buffer_load_dwordx4 {v(GA+4*k,4)}, v97, {s(sWS,4)}, s3 offen offset:{1280*(k%4)} sc1")
            vm.issue(("ga", k))
        kq += [(0, lambda k=k: gl(k)) for k in (8, 0, 1, 2, 3, 4, 5, 6, 7)]
        if o["kpos"] == 0: q += kq
        self.mpass("A", 1, q, o["budA"])
        self.ts("c_main")
        pq = self.q_phiq(); h = (len(pq) - 1) // 4 * o["pqh"]
        self.flush(q + ["NEXT"] + self.q_fixup("A", 2))
        if o["kpos"] == 2: self.flush(pq); pq = []
        if o["kpos"]: self.flush(kq)
        self.flush(h0[3:])
        a(f"s_mov_b32 {s(sFL)}, s6")
        a("v_lshlrev_b32 v10, 4, v1\nv_mov_b32 v13, 1")
        self.flush(pq[:h])
        vm.wait(("ga", 8)); a(f"v_mfma_f32_16x16x32_bf16 {v(ZP,4)}, {v(G.IDN,4)}, {v(GA+32,4)}, 0")
        for k in range(8):
            vm.wait(("ga", k)); a(f"v_mfma_f32_16x16x32_bf16 {v(KP,4)}, {v(G.IDN,4)}, {v(GA+4*k,4)}, {v(KP,4) if k else 0}")
        self.ts("cA_gath")
        for m in ("quad_perm:[1,0,3,2]", "quad_perm:[2,3,0,1]", "row_half_mirror"):
            for j in range(4): a(f"v_add_f32_dpp {v(ZP+j)}, {v(ZP+j)}, {v(ZP+j)} {m} row_mask:0xf bank_mask:0xf")
        for r_ in (KP, ZP):
            for j in range(2): a(f"v_cvt_pk_bf16_f32 {v(r_+j)}, {v(r_+2*j)}, {v(r_+2*j+1)}")
        a(f"ds_write_b64 v90, {v(KP,2)}\nds_write_b64 v91, {v(ZP,2)}\nds_write_b32 v96, v13 offset:4")
        self.flush(pq[h:])
        F = [T + 8, T + 12]; t = T; PV = G.XS
        self.pair_spin([f"ds_read_b128 {v(F[0],4)}, v92", f"ds_read_b128 {v(F[1],4)}, v93"], off=4)
        O = [G.ACC + 16*k for k in range(4)]
        for hh in range(2):
            for rb in range(2): a(f"v_mfma_f32_32x32x16_bf16 {v(O[2*rb+hh],16)}, {v(F[hh],4)}, {v(G.acc(2,rb)+8*hh,4)}, 0")
        if not o["ofirst"]: self.p2_pre()
        n = 0
        for hh in range(2):
            for rb in range(2):
                o = O[2*rb+hh]; P = PV + 4*(n & 1); n += 1
                a(f"v_add_f32 {v(t)}, {fl(1e-6)}, {v(o+8)}\nv_rcp_f32 {v(t)}, {v(t)}")
                a(f"s_add_u32 {s(sT4)}, {s(4+hh)}, {rb << (self.SS+1)}")
                for j in range(8): a(f"v_mul_f32 {v(o+j)}, {v(t)}, {v(o+j)}")
                for j in range(4): a(f"v_cvt_pk_bf16_f32 {v(P+j)}, {v(o+2*j)}, {v(o+2*j+1)}")
                a(f"buffer_store_dwordx4 {v(P,4)}, v10, {s(sWS,4)}, {s(sT4)} offen sc1"); vm.issue("o")
        self.ts("cA_o")
        if self.o["ofirst"] and self.stop != "p1":
            self.p2_pre(); vm.wait("o"); self.flush(self.q_flag(sFL)); self.ts("cA_oflag")
            a(f"s_lshl_b32 {s(sT0)}, s2, 2\ns_add_u32 {s(sT0)}, {s(sT0)}, {s(sWAVE)}\ns_lshl_b32 {s(sT0)}, {s(sT0)}, 7\ns_add_u32 {s(sFL)}, {s(sT0)}, {WS_DUM}")
        if self.stop == "p1": vm.wait("o"); self.flush(self.q_flag(sFL))

    Y, S2 = 160, 192
    AR = 16; D = 8
    BF = 48
    vBA = 144
    vA, vXC, vXP, vOUT = 150, 151, 152, 153
    vPW, vDW, vPF, vMF, vGP, vCK, vGF, vLV = 154, 155, 156, 157, 0, 159, 158, 9
    vXR, vGB = 124, 10
    XR = 76
    def q_p2setup(self):
        G = self; out = []
        def a(t):
            cur = []
            for ln in t.split("\n"):
                cur.append(ln)
                if ln.startswith("v_"): out.append(self.it("\n".join(cur))); cur = []
            if cur: out.append(self.it("\n".join(cur)))
        for d, ptr, size in ((sOUT, 20, 2097152), (sB2, 18, 1024)): a(f"s_mov_b32 {s(d)}, {s(ptr)}\ns_mov_b32 {s(d+1)}, {s(ptr+1)}"); a(f"s_mov_b32 {s(d+2)}, {size}\ns_mov_b32 {s(d+3)}, 0x00020000")
        sA = sKST
        a(f"s_lshl_b32 {s(sP1)}, {s(sI)}, 1\ns_add_u32 {s(sP1)}, {s(sP1)}, {s(sHF)}\ns_lshl_b32 {s(sP2)}, {s(sP1)}, 2\ns_add_u32 {s(sP2)}, {s(sP2)}, {s(sWAVE)}\ns_lshl_b32 {s(sA)}, {s(sP2)}, {self.SS}")
        if self.o["r2"]:
            a(self.rot2(17, 18, sP2)); a(f"s_lshl_b32 s17, s17, 11\ns_lshl_b32 s18, s18, 11\ns_mov_b32 s16, {s(sA)}")
        a(f"v_lshlrev_b32 {v(G.vA)}, 4, v1")
        a(f"v_lshrrev_b32 v8, 2, v5\nv_lshl_add_u32 v8, v3, 2, v8\ns_lshl_b32 {s(sP2)}, {s(sCH)}, 4\nv_add_u32 v8, {s(sP2)}, v8\nv_lshlrev_b32 v8, 7, v8")
        a("v_and_b32 v9, 1, v5\nv_lshl_add_u32 v8, v9, 3, v8")
        a("v_and_b32 v9, 1, v4\nv_lshlrev_b32 v9, 1, v9\nv_bfe_u32 v0, v5, 1, 1\nv_add_u32 v9, v9, v0\nv_lshrrev_b32 v0, 3, v5\nv_lshlrev_b32 v0, 2, v0\nv_xor_b32 v9, v9, v0")
        a(f"s_lshl_b32 {s(sP2)}, {s(sCH)}, 2\nv_xor_b32 v9, {s(sP2)}, v9")
        a(f"v_lshl_add_u32 {v(G.vBA)}, v9, 4, v8\nv_xor_b32 v9, 4, v9\nv_lshl_add_u32 {v(G.vBA+1)}, v9, 4, v8")
        for w in (1, 2):
            for cb in range(2): a(f"v_add_u32 {v(G.vBA+2*w+cb)}, {65536*w}, {v(G.vBA+cb)}")
        a(f"s_lshl_b32 {s(sP2)}, {s(sWAVE)}, 12\ns_add_u32 {s(sP2)}, {s(sP2)}, {XCH_Y}\nv_add_u32 {v(G.vXC)}, {s(sP2)}, {v(G.vA)}")
        a(f"s_xor_b32 {s(sP2)}, {s(sWAVE)}, 1\ns_lshl_b32 {s(sP2)}, {s(sP2)}, 12\ns_add_u32 {s(sP2)}, {s(sP2)}, {XCH_Y}\nv_add_u32 {v(G.vXP)}, {s(sP2)}, {v(G.vA)}")
        a(f"v_and_b32 v8, 3, v1\nv_lshlrev_b32 v8, 2, v8\nv_add_u32 {v(G.vPW)}, {SC_PROG}, v8\nv_lshlrev_b32 {v(G.vGP)}, {FS}, v5")
        a(f"s_lshl_b32 {s(sP2)}, {s(sWAVE)}, 2\ns_add_u32 {s(sP2)}, {s(sP2)}, {SC_PROG+16}\nv_mov_b32 {v(G.vDW)}, {s(sP2)}")
        a(f"s_lshl_b32 {s(sP2)}, {s(sWAVE)}, 4\ns_add_u32 {s(sP2)}, {s(sP2)}, {SC_FLAG}\nv_mov_b32 {v(G.vMF)}, {s(sP2)}\ns_xor_b32 {s(sP2)}, {s(sP2)}, 16\nv_mov_b32 {v(G.vPF)}, {s(sP2)}")
        a(f"s_lshl_b32 {s(sC0+1)}, {s(sP1)}, {FS+4}\ns_add_u32 {s(sC0+1)}, {s(sC0+1)}, {WS_FO}")
        gs = [int(c) for c in str(self.o["grp"])]; g0 = 0
        a(f"s_mov_b32 {s(sP3)}, {s(sCT)}")
        for n in gs:
            if n > 1:
                a(f"s_lshr_b32 {s(sP2)}, s2, 6\ns_mul_i32 {s(sP2)}, {s(sP2)}, {max(1, (n+1)//4)}\ns_add_u32 {s(sP2)}, {s(sP2)}, {s(sCT)}")
                a(f"s_mul_i32 {s(sP4)}, {s(sP2)}, {-(-256//n)}\ns_lshr_b32 {s(sP4)}, {s(sP4)}, 8\ns_mul_i32 {s(sP4)}, {s(sP4)}, {n}\ns_sub_u32 {s(sP2)}, {s(sP2)}, {s(sP4)}")
                a(f"s_sub_u32 {s(sP2)}, {s(sCT)}, {s(sP2)}\ns_add_u32 {s(sP4)}, {s(sP2)}, {n}\ns_cmp_lt_i32 {s(sP2)}, {g0}\ns_cselect_b32 {s(sP2)}, {s(sP4)}, {s(sP2)}")
                a(f"s_sub_u32 {s(sP4)}, {s(sCT)}, {g0}\ns_cmp_lt_u32 {s(sP4)}, {n}\ns_cselect_b32 {s(sP3)}, {s(sP2)}, {s(sP3)}")
            g0 += n
        a(f"s_lshl_b32 {s(sP3)}, {s(sP3)}, 2\ns_lshl_b32 {s(sP2)}, {s(sHF)}, 1\ns_add_u32 {s(sP3)}, {s(sP3)}, {s(sP2)}\ns_add_u32 {s(sP3)}, {s(sP3)}, {s(sRH)}\ns_lshl_b32 {s(sP3)}, {s(sP3)}, 12")
        a(f"v_bfe_u32 v8, v1, 1, 3\ns_lshl_b32 {s(sP2)}, {s(sCH)}, 2\nv_xor_b32 v8, {s(sP2)}, v8\nv_lshlrev_b32 v8, 4, v8\nv_lshl_add_u32 v8, v3, 3, v8")
        a(f"v_lshl_add_u32 v8, v2, 7, v8\nv_add_u32 {v(G.vXR)}, {s(sP3)}, v8")
        a(f"s_lshl_b32 {s(sP1)}, {s(sP1)}, 1\ns_add_u32 {s(sP1)}, {s(sP1)}, {s(sRH)}\ns_lshl_b32 {s(sP1)}, {s(sP1)}, 15")
        a(f"s_lshl_b32 {s(sP2)}, {s(sCT)}, 1\ns_add_u32 {s(sP2)}, {s(sP2)}, {s(sCH)}\ns_lshl_b32 {s(sP2)}, {s(sP2)}, 6\ns_add_u32 {s(sP1)}, {s(sP1)}, {s(sP2)}")
        a(f"v_lshl_add_u32 v8, v2, 10, {s(sP1)}\nv_lshl_add_u32 {v(G.vOUT)}, v3, 4, v8\ns_mov_b32 {s(sC0+2)}, {s(sP2)}")
        return out

    def phase2(self):
        a = self.a; G = self; D = self.o['D']; sA = sKST
        RING = G.RING
        a.label("L_phase2")
        vm = Cnt(a, "vmcnt", 63); lg = Cnt(a, "lgkmcnt", 15)
        aload = lambda sig: self.aload(vm, sig)
        def breads(sig):
            if sig >= 59: return []
            base = b_lds(sig); w = base >> 16; off = base & 0xffff
            return [f"ds_read_b64_tr_b16 {v(G.BF+8*(sig%3)+4*cb+2*q,2)}, {v(G.vBA+2*w+cb)} offset:{off+1024*q}" for cb in range(2) for q in range(2)]
        def ds(x, tag): a(x); lg.issue(tag)
        def lcheck(vaddr, off, lv, tag, extra=(), ck=G.vCK):
            L = self.lab("lc"); R = self.lab("lcok"); X = self.lab("lcx")
            lg.wait(tag)
            a(f"v_cmp_gt_u32 vcc, {lv}, {v(ck)}\ns_cbranch_vccnz {L}")
            a.label(R)
            ex = "".join(e + "\n" for e in extra)
            self.tail.append(f"""{L}:
s_mov_b32 {s(sSPIN)}, 0
{X}:
ds_read_b32 {v(ck)}, {v(vaddr)} offset:{off}
{ex}s_add_u32 {s(sSPIN)}, {s(sSPIN)}, 1
s_cmp_gt_u32 {s(sSPIN)}, {SPIN_MAX*8}
s_waitcnt lgkmcnt(0)
s_cbranch_scc1 {R}
v_cmp_gt_u32 vcc, {lv}, {v(ck)}
s_cbranch_vccnz {X}
s_branch {R}""")
        def lread(vaddr, off, tag, ck=G.vCK): ds(f"ds_read_b32 {v(ck)}, {v(vaddr)} offset:{off}", tag)
        def lsig(vaddr, off, lv): a(f"v_mov_b32 {v(G.vLV)}, {lv}"); ds(f"ds_write_b32 {v(vaddr)}, {v(G.vLV)} offset:{off}", "sig")
        F4 = self.o["fs4"]; va = G.vGB if F4 else G.vGP
        def gload(soff, r, tag): a(self.fload(r, va, soff)); vm.issue(tag)
        gcheck = lambda soff: self.gcheck(vm, soff, bool(self.o['kearly']), va)
        self.ts("c_p0"); assert self.o["g2h"] < 4
        vm.q = [("A", k) for k in range(8)] + ["gf"] * bool(self.o["kearly"]) + ["pub"] * (4 - self.o["g2h"])
        lsig(G.vDW, 0, 1)
        lread(G.vPW, 0, "ck")
        a(f"v_lshl_add_u32 v8, v2, 1, {s(sC0+2)}\nv_mov_b32 v11, {s(sNONCE)}")
        assert D == 8
        if F4: a(f"v_and_b32 {v(va)}, 3, v1\ns_lshl_b32 {s(sT0)}, {s(sWAVE)}, 2\nv_add_lshl_u32 {v(va)}, {v(va)}, {s(sT0)}, {FS}")
        for sig in range(8, D): aload(sig)
        lcheck(G.vPW, 0, 1, "ck")
        need_prog = {6: 2, 21: 3, 36: 4, 43: 5, 53: 6}
        GL = self.o['gl']; SO = 49152 if GL else 16384
        done_at = {6: 2, 16: 3, 20: 4, (36 if GL else 30): 5}
        gat = {15 - D: sC0, 29 - D: sC0, 43 - D: sC0 + 1}
        yr = [f"ds_read_b128 {v(96+4*q,4)}, {v(G.vXP)} offset:{1024*q}" for q in range(4)]
        for sig in range(2):
            for r in breads(sig): ds(r, ("B", sig))
        T = 96; YK = 112; BB = 128; XX = 240
        work = []
        for q in range(8):
            work += [f"v_lshlrev_b32 {v(XX+2*q)}, 16, {v(G.XR+q)}", f"v_and_b32 {v(XX+2*q+1)}, 0xffff0000, {v(G.XR+q)}"]
        work += ["v_cmp_gt_u32 vcc, 32, v1\nv_mov_b32 v12, 0x3f80", f"v_cndmask_b32 {v(BB+4)}, 0, v12, vcc"] + [f"v_mov_b32 {v(BB+k)}, 0" for k in (1, 2, 3, 5, 6, 7)]
        gw = []
        for half in range(2):
            o = 8 * half
            gw += [f"v_add_f32 {v(YK+o+j)}, {v(T+o+j)}, {v(G.Y+o+j)}" for j in range(8)]
            gw += [f"v_mul_f32 {v(T+o+j)}, {fl(-1.4426950408889634)}, {v(YK+o+j)}" for j in range(8)]
            gw += [f"v_exp_f32 {v(T+o+j)}, {v(T+o+j)}" for j in range(8)]
            gw += [f"v_add_f32 {v(T+o+j)}, 1.0, {v(T+o+j)}" for j in range(8)]
            gw += [f"v_rcp_f32 {v(T+o+j)}, {v(T+o+j)}" for j in range(8)]
            gw += [f"v_mul_f32 {v(YK+o+j)}, {v(YK+o+j)}, {v(T+o+j)}" for j in range(8)]
        held = []
        if GL: gw = []
        for sig in range(59):
            acc = G.Y if sig < 43 else G.S2; first = sig in (0, 43)
            n0 = len(a.items); lg.wait(("B", sig)); vm.wait(("A", sig))
            if self.o["mw"] and len(a.items) == n0 + 2: a.items[n0:] = [a.items[n0 + 1] + " " + a.items[n0].split()[1]]
            A = v(RING[sig % D], 4)
            m = [f"v_mfma_f32_32x32x16_bf16 {v(acc+16*cb,16)}, {v(G.BF+8*(sig%3)+4*cb,4)}, {A}, {0 if first else v(acc+16*cb,16)}" for cb in range(2)]
            self.ts(f"c_s{sig}")
            if sig >= 56 and self.o["tl"]:
                for r in breads(sig + 2): ds(r, ("B", sig + 2))
                held.append((m[0], gw[8*(sig-47): 8*(sig-46)])); a(m[1]); continue
            a(m[0])
            if sig in done_at: lsig(G.vDW, 0, done_at[sig])
            if sig in need_prog: lcheck(G.vPW, 0, need_prog[sig], "ck")
            if sig == 44:
                lcheck(G.vPW, 16, 5, "ck")
                for q in range(4): ds(f"ds_write_b128 {v(G.vXC)}, {v(G.Y+16+4*q,4)} offset:{16384*GL+1024*q}", "yw")
                if not GL: lsig(G.vMF, 8, 1)
            if sig == 45 and GL:
                for q in range(4): ds(f"ds_write_b128 {v(G.vXC)}, {v(G.Y+4*q,4)} offset:{1024*q}", "yw")
                lsig(G.vMF, 8, 1)

            if sig == 47 and not GL: lcheck(G.vPF, 8, 1, "yr", yr)
            rd = breads(sig + 2) if not (self.o["e4"] & 2 and 8 <= sig < 40) else []
            nd = self.o["nd"]
            for r in rd[:nd]: ds(r, ("B", sig + 2))
            fill = []
            if 9 <= sig <= 14: fill = work[4*(sig-9): 4*(sig-8)]
            if sig == 16: fill = ["s_nop 0", f"v_mfma_f32_32x32x16_bf16 {v(G.Y,16)}, {v(BB,4)}, {v(BB+4,4)}, {v(G.Y,16)}"]
            if 47 <= sig <= 58: fill = gw[8*(sig-47): 8*(sig-46)]
            h = len(fill) // 2
            for f in fill[:h]: a(f)
            a(m[1])
            for r in rd[nd:]: ds(r, ("B", sig + 2))
            if sig + 1 in need_prog: lread(G.vPW, 0, "ck")
            if sig == 43: lread(G.vPW, 16, "ck")
            if sig == 55 and GL: lread(G.vPW, 0, "ck")
            if sig == 45 and not GL:
                lread(G.vPF, 8, "yr")
                for r in yr: ds(r, "yr")
            if sig == self.o["pf"]:
                vm.wait("pub"); a(f"buffer_store_dword v11, {v(G.vFL)}, {s(sWS,4)}, s27 offen sc1"); vm.issue("f"); self.ts("c_pflag")
            if F4:
                lvl = lambda k: sorted(gat).index(k) + 1
                if sig + 2 in gat: gcheck(gat[sig + 2]); lsig(G.vDW, 16, lvl(sig + 2))
                if sig + 1 in gat: lread(G.vPW, 32, "sn", G.vGF)
                if sig in gat: self.ts(f"c_gp{sig}"); lcheck(G.vPW, 32, lvl(sig), "sn", ck=G.vGF); self.ts(f"c_g{sig}")
            elif sig in gat: self.ts(f"c_gp{sig}"); gcheck(gat[sig]); self.ts(f"c_g{sig}")
            if not (self.o["e4"] & 1 and 8 <= sig + D < 43): aload(sig + D)
            if sig == 0: a(f"buffer_load_ushort {v(BB)}, v8, {s(sB2,4)}, 0 offen"); vm.issue("x")
            if sig == 15: vm.wait("x")
            ke = self.o["kearly"] or self.o["kpoll"] + 2 * F4
            if self.o["kearly"] and sig + self.o["kpoll"] in gat: gload(gat[sig + self.o["kpoll"]], G.vGB, "gb")
            if sig + ke in gat and (sig > 7 or not self.o["kearly"]):
                so = gat[sig + ke]
                if so == sC0: a(f"s_add_u32 {s(sC0)}, {s(sC0)}, {FG}")
                gload(so, G.vGF, "gf")
            for f in fill[h:]: a(f)
        for m0, f in held[:2]:
            a(m0)
            for x in f: a(x)
            if GL and m0 == held[0][0]:
                lcheck(G.vPW, 0, 7, "ck")
                for q in range(4): ds(f"ds_read_b128 {v(YK+4*q,4)}, {v(G.vXC)} offset:{32768+1024*q}", "g")
        self.ts("c_loop")
        for q in range(4): ds(f"ds_write_b128 {v(G.vXC)}, {v(G.S2+16+4*q,4)} offset:{SO+1024*q}", "sw")
        lsig(G.vMF, 12, 1)
        for m0, f in held[2:]:
            a(m0)
            for x in f: a(x)
        sr = [f"ds_read_b128 {v(T+4*q,4)}, {v(G.vXP)} offset:{SO+1024*q}" for q in range(4)]
        lread(G.vPF, 12, "sr")
        for r in sr: ds(r, "sr")
        lg.wait("g")
        for j in range(0, 16, 2): a(f"v_pk_fma_f32 {v(XX+j,2)}, {v(G.S2+j,2)}, {v(YK+j,2)}, {v(XX+j,2)}")
        lcheck(G.vPF, 12, 1, "sr", sr)
        for half in range(2):
            o = 8 * half; P = BB + 8 + 4 * half
            for j in range(0, 8, 2): a(f"v_pk_fma_f32 {v(XX+o+j,2)}, {v(T+o+j,2)}, {v(YK+o+j,2)}, {v(XX+o+j,2)}")
            for j in range(4): a(f"v_cvt_pk_bf16_f32 {v(P+j)}, {v(XX+o+2*j)}, {v(XX+o+2*j+1)}")
            a(f"v_permlane32_swap_b32 {v(P)}, {v(P+2)}\nv_permlane32_swap_b32 {v(P+1)}, {v(P+3)}")
            a(f"buffer_store_dwordx4 {v(P,4)}, {v(G.vOUT)}, {s(sOUT,4)}, 0 offen offset:{32*half} {['', 'sc1', 'nt', 'sc0 sc1', 'sc1 nt'][self.o['osc']]}")
        self.ts("c_end")
        self.ts_flush()

    def build(self):
        a = self.a
        self.prologue()
        self.compute_setup()
        self.typeA()
        if self.stop == "p1": self.ts_flush(); a("s_endpgm")
        else: a("s_branch L_phase2")
        a.label("L_typeB")
        self.typeB()
        if self.stop == "p1": self.ts_flush(); a("s_endpgm")
        else: self.phase2()
        a.label("L_end")
        a("s_endpgm")
        for t in self.tail: a(t)
        a("L_last:\ns_endpgm")
        body = a.finalize(verbose=True)
        head = open("cdna_kernels/" + KN[:-7] + ".s.ref").read().split("; Override launch")[0]
        return head + f"""; @launch grid=(256,1,1) block=(512,1,1) lds={LDS_SIZE}
.amdgcn_target "amdgcn-amd-amdhsa--gfx950"
.text
.globl {KN}
.p2align 8
.type {KN},@function
{KN}:
{body}
.section .rodata,"a"
.p2align 6
.amdhsa_kernel {KN}
  .amdhsa_next_free_vgpr 256
  .amdhsa_next_free_sgpr 102
  .amdhsa_accum_offset 256
  .amdhsa_group_segment_fixed_size 0
  .amdhsa_kernarg_size 88
  .amdhsa_user_sgpr_count 2
  .amdhsa_user_sgpr_kernarg_segment_ptr 1
  .amdhsa_system_sgpr_workgroup_id_x 1
.end_amdhsa_kernel
"""

if __name__ == "__main__":
    import argparse
    ap = argparse.ArgumentParser()
    ap.add_argument("out"); ap.add_argument("--diag", nargs="?", const="rt"); ap.add_argument("--stop"); ap.add_argument("--dbgout", action="store_true"); ap.add_argument("--marks"); ap.add_argument("--opts"); ap.add_argument("--probe")
    x = ap.parse_args()
    open(x.out, "w").write(Gen(diag=x.diag, stop=x.stop, dbgout=x.dbgout, marks=x.marks, opts=x.opts, probe=x.probe).build())
```

```python
import sys, struct
from asmlib import Asm, v, s

KN = "recurrent_scan__linear_attn_block__dense_activation_gelu__prompt_kernel"
def f2u(x): return struct.unpack("<I", struct.pack("<f", x))[0]
def hx(x): return f"0x{x & 0xffffffff:08x}"
def fl(x): return hx(f2u(x))

WS_HO = 0
WS_KV = 8 << 20
WS_ST = 9 << 20
FS = 7
FG = 16 << FS
WS_FH = 10 << 20
WS_FO = WS_FH + 96 * FG
WS_FK = WS_FO + 32 * FG
WS_DUM = 11 << 20
WS_TS = 12 << 20
WS_SIZE = 268435456
OOB = 0x80000000
WR = 131072
SCR = 155648
SC_NONCE = SCR
SC_FLAG = SCR + 64
SC_PROG = SC_FLAG + 64
SC_CS = SCR + 256
SC_R = SCR + 2048
SC_KVX = SCR + 3072
LDS_SIZE = 163840
NSLOT = 38
def b_lds(sig): return (sig % NSLOT) * 4096
XCH_Y = 21 * 4096
XT = 29 * 4096
ORDER = []
for p in range(3):
    for g in range(8):
        for ch in range(2):
            f = 6 * g + 2 * p + ch
            if f < 43: ORDER.append(("w2", f))
ORDER += [("wo", f) for f in range(16)]
assert len(ORDER) == 59
SIG0 = [0, 15, 29]
def pos_of(sig):
    st = 3 if sig >= 43 else 2 if sig >= 29 else 1 if sig >= 15 else 0
    j = sig - (SIG0 + [43])[st]
    return st, j >> 1, j & 1
def hoff(sig, lay=0):
    if not lay: return sig * 1024
    par = int(sig >= 29); t = sig - 29 * par
    return (t >> 3) * 16384 + par * 8192 + (t & 7) * 1024
SPIN_MAX = 1 << 18

sX, sW, sW2, sWO, sWS, sDBG, sOUT, sB1, sB2 = 28, 32, 36, 40, 44, 48, 52, 56, 60
sWAVE, sI, sG, sTYPE, sHF, sCT, sKST, sRH, sCH, sNONCE, sSTR = 64, 65, 66, 67, 68, 69, 70, 71, 72, 73, 74
sT0, sT1, sT2, sT3, sT4, sT5 = 75, 76, 77, 78, 79, 80
sC0 = 81
sSPIN = 84
sM = 86
sLM = 60
sWD = 10
sP1, sP2, sP3, sP4 = 12, 13, 14, 15
sWB = 56
sTS = 88

class Cnt:
    def __init__(self, a, name, mx): self.a, self.name, self.mx, self.q = a, name, mx, []
    def issue(self, tag): self.q.append(tag)
    def wait(self, tag):
        if tag not in self.q: return
        k = len(self.q) - 1 - max(i for i, t in enumerate(self.q) if t == tag)
        k = min(k, self.mx)
        self.a(f"s_waitcnt {self.name}({k})")
        self.q = self.q[len(self.q) - k:] if k else []
    def wait_all(self):
        self.a(f"s_waitcnt {self.name}(0)"); self.q = []

class Gen:
    def __init__(self, diag=False, stop=None, dbgout=False, marks=None, opts=None, probe=None):
        self.probe = tuple(int(x) for x in probe.split(',')) if probe else None
        self.o = dict(cpf=5, wt=3, xe=1, w2t=4, t1=14, t2=1, pk=1, kpoll=3, D=8, asc=1, xl=1, mp=1, seg=0, fsc=0,
                      bud0=24, bud2=64, budA=24, nE=33, nL=4, pe0=14, nEA=35, nLA=21, pe0A=15, burst=16, fm=12, fmA=3, ga=20, gc=26, thr=0, fl=32, pre=1, chk=2, pf=4, g2h=3, lay=0, kfs=13, kfc=13, pqh=3, w2s=0, ld=1, t3=0, grp=1223, osc=0, kearly=0, psc=0, pw=0, r2=0, r2m=2, sw=0, sw0=1, sw1=9, swn=4, slp=0, prio=0, m0n=4, mint=3, tl=1, kpos=1, ofirst=0, bk=16, latp=-1, psh=2, pwg=-1, gateA=0, gateB=0, stg=0, e1=0, fs4=0)
        for kv in (opts or '').split(','):
            if kv: k, x = kv.split('='); assert k in self.o, k; self.o[k] = int(x)
        self.dbgout = dbgout; self.verbose = True
        self.marks = {"start": 0}
        for grp in (marks or "c_bar0,c_main,cA_q|cB_gelu,c_p0,c_loop,c_end;l_bar0,l_bar8,l_bland,l_p0,l_p3,l_end").split(";"):
            for k, nm in enumerate(grp.split(",")):
                for x in nm.split("|"): self.marks[x] = k + 1
        self.a = Asm(); self.diag = diag; self.stop = stop; self.uid = 0; self.tail = []
    def lab(self, n): self.uid += 1; return f"L{n}_{self.uid}"
    def ts(self, name):
        if not self.diag or name not in self.marks: return
        k = self.marks[name]
        if self.diag == "both":
            if k == 0: self.a(f"s_memrealtime {s(sTS, 2)}")
            elif k <= 3: self.a(f"s_memrealtime {s(sTS + 2 * k, 2)}\ns_memtime {s(sTS + 2 * k + 6, 2)}")
            return
        self.a(f"{'s_memtime' if self.diag == 'cyc' else 's_memrealtime'} {s(sTS + 2 * k, 2)}")
    def ts_flush(self):
        if not self.diag: return
        a = self.a
        if self.probe:
            pa, pb = self.probe
            L = self.lab("probe"); X = self.lab("probex")
            op = 's_memtime' if self.diag == 'cyc' else 's_memrealtime'
            a(f"s_cmp_ge_u32 {s(sWAVE)}, 4\ns_cbranch_scc1 {X}")
            if self.o["pwg"] >= 0: a(f"s_lshl_b32 {s(sT0)}, s2, 2\ns_add_u32 {s(sT0)}, {s(sT0)}, {s(sWAVE)}\ns_cmp_lg_u32 {s(sT0)}, {self.o['pwg']}\ns_cbranch_scc1 {X}")
            a(f"{op} {s(sM,2)}\ns_waitcnt lgkmcnt(0)")
            if pa < 0: a(f"s_mov_b32 {s(sT0)}, {pb}")
            else: a(f"s_sub_u32 {s(sT0)}, {s(sTS+2*pb)}, {s(sTS+2*pa)}\ns_lshl_b32 {s(sT0)}, {s(sT0)}, {self.o['psh']}")
            a(f"s_min_u32 {s(sT0)}, {s(sT0)}, 400000\ns_mov_b32 {s(sT1)}, {s(sM)}")
            a.label(L)
            a(f"{op} {s(sM,2)}\ns_waitcnt lgkmcnt(0)\ns_sub_u32 {s(sT2)}, {s(sM)}, {s(sT1)}\ns_cmp_lt_u32 {s(sT2)}, {s(sT0)}\ns_cbranch_scc1 {L}")
            a.label(X)
            return
        a("s_waitcnt lgkmcnt(0)")
        a(f"s_lshl_b32 {s(sT0)}, s2, 3\ns_add_u32 {s(sT0)}, {s(sT0)}, {s(sWAVE)}\ns_lshl_b32 {s(sT0)}, {s(sT0)}, 5\ns_add_u32 {s(sT0)}, {s(sT0)}, {WS_TS}")
        for k in range(7): a(f"v_mov_b32 v{8+k}, {s(sTS+2*k)}")
        a("v_mov_b32 v15, 0\nv_mov_b32 v7, 0")
        a("s_mov_b64 exec, 1")
        a(f"buffer_store_dwordx4 v[8:11], v7, {s(sWS,4)}, {s(sT0)} offen")
        a(f"buffer_store_dwordx4 v[12:15], v7, {s(sWS,4)}, {s(sT0)} offen offset:16")
        if self.dbgout:
            L = self.lab("dbgo")
            self.srd(sDBG, 22, 256)
            a(f"s_cmp_lg_u32 {s(sWAVE)}, 0\ns_cbranch_scc1 {L}\ns_and_b32 {s(sT0)}, s2, 0xdf\ns_cmp_lg_u32 {s(sT0)}, 0\ns_cbranch_scc1 {L}")
            for k in range(6, -1, -1): a(f"v_subrev_u32 v{8+k}, {s(sTS)}, v{8+k}")
            a(f"s_add_u32 {s(sT0)}, s2, 4")
            a(f"buffer_store_dwordx4 v[9:12], v7, {s(sDBG,4)}, {s(sT0)} offen".replace("v[9:12]", "v[8:11]"))
            a(f"buffer_store_dwordx3 v[12:14], v7, {s(sDBG,4)}, {s(sT0)} offen offset:16")
            a.label(L)
        a("s_mov_b64 exec, -1")

    def srd(self, d, ptr, size):
        self.a(f"s_mov_b32 {s(d)}, {s(ptr)}\ns_mov_b32 {s(d+1)}, {s(ptr+1)}\ns_mov_b32 {s(d+2)}, {size}\ns_mov_b32 {s(d+3)}, 0x00020000")

    def rot2(self, r7, r8, t):
        return (f"s_lshr_b32 {s(r8)}, s2, 6\ns_mul_i32 {s(r8)}, {s(r8)}, {self.o['r2m']}\ns_add_u32 {s(r8)}, {s(r8)}, {s(sCT)}\n"
                f"s_mul_i32 {s(t)}, {s(r8)}, 37\ns_lshr_b32 {s(t)}, {s(t)}, 8\ns_mul_i32 {s(t)}, {s(t)}, 7\ns_sub_u32 {s(r7)}, {s(r8)}, {s(t)}\ns_and_b32 {s(r8)}, {s(r8)}, 7")
    def fload(self, r, va, so):
        k = self.o["psc"]
        if k == 4: return f"v_mov_b32 {v(r)}, 0\nbuffer_atomic_or {v(r)}, {v(va)}, {s(sWS,4)}, {s(so)} offen sc0 sc1"
        return f"buffer_load_dword {v(r)}, {v(va)}, {s(sWS,4)}, {s(so)} offen {['sc1', 'sc0 sc1', 'sc1 nt', 'sc0 sc1 nt'][k]}"
    def poll_text(self, vaddr, vtmp, soff, L, X):
        if self.o["mp"]:
            return (f"s_mov_b32 {s(sSPIN)}, 0\ns_mov_b64 exec, 0xffff\n{L}:\n"
                    f"{self.fload(vtmp, vaddr, soff)}\n"
                    f"s_add_u32 {s(sSPIN)}, {s(sSPIN)}, 1\ns_cmp_gt_u32 {s(sSPIN)}, {SPIN_MAX}\ns_waitcnt vmcnt(0)\ns_cbranch_scc1 {X}\n"
                    f"v_cmp_ne_u32 vcc, {s(sNONCE)}, {v(vtmp)}\ns_and_b64 exec, exec, vcc\ns_cbranch_execnz {L}\n{X}:\ns_mov_b64 exec, -1")
        return (f"s_mov_b32 {s(sSPIN)}, 0\n{L}:\n"
                f"{self.fload(vtmp, vaddr, soff)}\n"
                f"s_add_u32 {s(sSPIN)}, {s(sSPIN)}, 1\ns_cmp_gt_u32 {s(sSPIN)}, {SPIN_MAX}\ns_waitcnt vmcnt(0)\ns_cbranch_scc1 {X}\n"
                f"v_cmp_ne_u32 vcc, {s(sNONCE)}, {v(vtmp)}\ns_cbranch_vccnz {L}\n{X}:")
    def poll(self, vaddr, vtmp, soff):
        self.a(self.poll_text(vaddr, vtmp, soff, self.lab("poll"), self.lab("pollx")))

    def prologue(self):
        a = self.a
        a("s_cmp_ge_u32 s2, 256\ns_cbranch_scc1 L_end")
        a("s_load_dwordx16 s[4:19], s[0:1], 0\ns_load_dwordx4 s[20:23], s[0:1], 64\ns_load_dwordx2 s[24:25], s[0:1], 80")
        if self.diag:
            for k in range(1, 7): a(f"s_mov_b32 {s(sTS+2*k)}, 0")
        self.ts("start")
        if self.o["cpf"] >= 2:
            n = self.o["cpf"]
            a(f"s_getpc_b64 s[26:27]\nL_pc:\ns_bfe_u32 s3, s2, {0x30003 if n == 5 else 0x20003 if n == 10 else 0x10003}\ns_mul_i32 s3, s3, {8*n}\nv_lshrrev_b32 v3, 6, v0\nv_and_b32 v4, 63, v0\nv_min_u32 v4, {n-1}, v4\nv_mad_u32_u24 v3, v3, {n}, v4")
            a(f"v_add_lshl_u32 v3, v3, s3, 7\nv_min_u32 v3, L_last-L_pc, v3\nglobal_load_dword {v(self.vDUM)}, v3, s[26:27]")
        elif self.o["cpf"]:
            a(f"s_getpc_b64 s[26:27]\nL_pc:\nv_lshlrev_b32 v3, 7, v0\nv_min_u32 v3, L_last-L_pc, v3\nglobal_load_dword {v(self.vDUM)}, v3, s[26:27]")
        a("v_lshrrev_b32 v2, 6, v0\nv_and_b32 v1, 63, v0")
        a(f"s_and_b32 {s(sT0)}, s2, 3")
        a(f"v_readfirstlane_b32 {s(sWAVE)}, v2")
        a(f"s_bfe_u32 {s(sHF)}, s2, 0x10002")
        a(f"s_bfe_u32 {s(sCT)}, s2, 0x30003")
        a(f"s_lshr_b32 {s(sI)}, s2, 6\ns_lshl_b32 {s(sI)}, {s(sI)}, 2\ns_add_u32 {s(sI)}, {s(sI)}, {s(sT0)}")
        if self.o["seg"]: a(f"s_mov_b32 {s(sTYPE)}, {s(sHF)}\ns_mov_b32 {s(sG)}, {s(sCT)}")
        else:
            a(f"s_lshr_b32 {s(sTYPE)}, {s(sCT)}, 2")
            a(f"s_and_b32 {s(sG)}, {s(sCT)}, 3\ns_lshl_b32 {s(sT0)}, {s(sHF)}, 2\ns_add_u32 {s(sG)}, {s(sG)}, {s(sT0)}")
        a(f"s_lshl_b32 {s(sT0)}, {s(sG)}, 7\ns_mul_i32 {s(sT1)}, {s(sG)}, 384")
        a(f"s_add_u32 {s(sT2)}, {s(sT0)}, 1024\ns_add_u32 {s(sT3)}, {s(sT0)}, 2048\ns_add_u32 {s(sT4)}, {s(sT1)}, 128\ns_add_u32 {s(sT5)}, {s(sT1)}, 256")
        a(f"s_cmp_eq_u32 {s(sTYPE)}, 0")
        a(f"s_movk_i32 {s(sSTR)}, 2752\ns_cselect_b32 {s(sSTR)}, 3072, {s(sSTR)}")
        a(f"s_cselect_b32 {s(sC0)}, {s(sT2)}, {s(sT1)}\ns_cselect_b32 {s(sC0+1)}, {s(sT3)}, {s(sT4)}\ns_cselect_b32 {s(sC0+2)}, {s(sT0)}, {s(sT5)}")
        a(f"s_cmp_ge_u32 {s(sWAVE)}, 4\ns_cbranch_scc1 L_loader")

    def loader(self):
        a = self.a
        vX, vW, vB, vP, vT, vL, PARK = 10, 14, 20, 21, 22, 24, 32
        sWK, sKX, sKW, sXB, sF = 85, 26, 27, 3, sT5
        a.label("L_loader")
        if self.o["prio"] == 2: a("s_setprio 1")
        a(f"s_and_b32 {s(sWK)}, {s(sWAVE)}, 3")
        a("v_lshrrev_b32 v2, 3, v1\nv_and_b32 v3, 7, v1\nv_lshrrev_b32 v4, 4, v1")
        a(f"s_and_b32 {s(sT0)}, {s(sWK)}, 1\ns_lshl_b32 {s(sT0)}, {s(sT0)}, 2\ns_lshl_b32 {s(sT1)}, {s(sWK)}, 3")
        a(f"v_add_u32 v5, {s(sT0)}, v4\nv_xor_b32 v5, v3, v5\nv_lshlrev_b32 v5, 4, v5")
        a(f"v_add_u32 v6, {s(sT1)}, v2")
        a(f"v_lshl_add_u32 {v(vX)}, v6, 10, v5")
        for m in range(1, 4): a(f"v_add_u32 {v(vX+m)}, {m*32768}, {v(vX)}")
        a("v_and_b32 v7, 1, v4\nv_lshlrev_b32 v7, 2, v7\nv_xor_b32 v7, v3, v7\nv_lshlrev_b32 v7, 4, v7")
        a(f"v_mul_u32_u24 v8, {s(sSTR)}, v6")
        a(f"s_lshl_b32 {s(sT2)}, {s(sSTR)}, 5\nv_mov_b32 v2, {hx(OOB)}")
        for p in range(3):
            a(f"v_add_u32 v9, {s(sC0+p)}, v7\nv_cmp_gt_u32 vcc, {s(sSTR)}, v9\nv_add_u32 v9, v8, v9\nv_add_u32 v3, {s(sT2)}, v9")
            a(f"v_cndmask_b32 {v(vW+2*p)}, v2, v9, vcc\nv_cndmask_b32 {v(vW+2*p+1)}, v2, v3, vcc")
        a(f"s_lshl_b32 {s(sWK)}, {s(sWK)}, 10\ns_lshl_b32 {s(sXB)}, {s(sI)}, 17\ns_lshl_b32 {s(sT3)}, {s(sSTR)}, 5")
        self.ts("l_pre")
        a("s_waitcnt lgkmcnt(0)")
        self.srd(sX, 4, 2097152)
        a(f"s_lshl_b32 {s(sW+2)}, {s(sSTR)}, 9\ns_mov_b32 {s(sW+3)}, 0x00020000\ns_cmp_eq_u32 {s(sTYPE)}, 0")
        a(f"s_cselect_b32 {s(sW)}, s6, s12\ns_cselect_b32 {s(sW+1)}, s7, s13")
        self.ts("l_karg")
        vm = Cnt(a, "vmcnt", 63)
        def bsrc(sig):
            mat, f = ORDER[sig]; st, j2, ch = pos_of(sig)
            if not self.o["r2"] or sig == 14: a(f"s_mov_b32 {s(sF)}, {f*32768}")
            elif st < 3: a(f"s_add_u32 {s(sF)}, {s(4+j2)}, {(2*st+ch)*32768}")
            else: a(f"s_add_u32 {s(sF)}, {s(11+j2)}, {ch*32768}")
            return s(sW2 if mat == 'w2' else sWO, 4)
        gs = [int(c) for c in str(self.o["grp"])]; assert sum(gs) == 8
        grp_of = [(sum(gs[:n]), gs[n]) for n in range(len(gs)) for _ in range(gs[n])]
        rot = lambda pos: grp_of[pos][1] > 1
        sK0 = 56
        def ktable(lo, hi):
            for pos in range(lo, hi):
                g0, n = grp_of[pos]
                if n == 1: continue
                if pos == g0:
                    a(f"s_lshr_b32 {s(sT1)}, s2, 6\ns_mul_i32 {s(sT1)}, {s(sT1)}, {max(1, (n+1)//4)}\ns_add_u32 {s(sT1)}, {s(sT1)}, {s(sCT)}")
                    a(f"s_mul_i32 {s(sT0)}, {s(sT1)}, {-(-256//n)}\ns_lshr_b32 {s(sT0)}, {s(sT0)}, 8\ns_mul_i32 {s(sT0)}, {s(sT0)}, {n}\ns_sub_u32 {s(sT1)}, {s(sT1)}, {s(sT0)}\ns_add_u32 {s(sK0+pos)}, {s(sT1)}, {g0}")
                else:
                    a(f"s_add_u32 {s(sK0+pos)}, {s(sK0+pos-1)}, 1\ns_cmp_eq_u32 {s(sK0+pos)}, {g0+n}\ns_cselect_b32 {s(sK0+pos)}, {g0}, {s(sK0+pos)}")
        def wst(st, reg=False):
            pos = st // 2 if st < 16 else st - 16
            if rot(pos):
                a(f"s_lshl_b32 {s(sKW)}, {s(sK0+pos)}, 1" + (f"\ns_add_u32 {s(sKW)}, {s(sKW)}, 1" if st < 16 and st & 1 else "") + f"\ns_mul_i32 {s(sKW)}, {s(sKW)}, {s(sT3)}")
            else: a(f"s_mul_i32 {s(sKW)}, {s(sT3)}, {st if st < 16 else 2*(st-16)}")
            for m in range(2):
                if reg:
                    a(f"buffer_load_dwordx4 {v(224 + 8*(st % 4) + 4*m, 4)}, {v(vW + (2*m if st < 16 else 4+m))}, {s(sW,4)}, {s(sKW)} offen"); vm.issue(("R", st))
                    continue
                a(f"s_add_u32 m0, {s(sWK)}, {WR + (st % 3)*8192 + m*4096}")
                a(f"buffer_load_dwordx4 {v(vW + (2*m if st < 16 else 4+m))}, {s(sW,4)}, {s(sKW)} offen lds"); vm.issue(("S", st))
        STG = self.o["stg"]
        def feed(k):
            if self.o["e1"] == 2 and 1 < k < 14: return
            if not STG: wst(k + 2); xpair(k + 3); return
            if k == 0: wst(2); xpair(3); wst(3, True); xpair(4)
            if k + 4 <= STG: wst(k + 4, True)
            if STG < k + 2 < 24: wst(k + 2)
            xpair(k + 5)
            if 3 <= k + 2 <= STG:
                vm.wait(("R", k + 2))
                for m in range(2): a(f"ds_write_b128 {v(vL+2)}, {v(224 + 8*((k+2) % 4) + 4*m, 4)} offset:{WR - 131072 + ((k+2) % 3)*8192 + m*4096}")
        def ready(k):
            if self.o["e1"] and 2 < k < 16: return
            vm.wait(("S", k))
            if 3 <= k <= STG: a(f"s_waitcnt lgkmcnt({2 if k + 1 <= STG else 0})")
        def xpair(n):
            k = n >> 1
            if k >= 8: return
            if rot(k): a(f"s_lshl_b32 {s(sKX)}, {s(sK0+k)}, 7\ns_add_u32 {s(sKX)}, {s(sKX)}, {s(sXB)}")
            else: a(f"s_add_u32 {s(sKX)}, {s(sXB)}, {128*k}")
            for mm in (2*(n & 1), 2*(n & 1) + 1):
                a(f"s_add_u32 m0, {s(sWK)}, {k*16384 + mm*4096}")
                a(f"buffer_load_dwordx4 {v(vX+mm)}, {s(sX,4)}, {s(sKX)} offen lds"); vm.issue(("S", 2*k))
        st_ = dict(nE=0)
        preg = lambda sig: PARK + 4*sig if sig < st_["nE"] else PARK + 4*(st_["nE"] + sig - NSLOT)
        def bstep(sig):
            a(f"s_add_u32 m0, {s(sWK)}, {b_lds(sig)}")
            srd = bsrc(sig)
            a(f"buffer_load_dwordx4 {v(vB)}, {srd}, {s(sF)} offen lds"); vm.issue(("B", sig))
        def park(sig):
            srd = bsrc(sig)
            a(f"buffer_load_dwordx4 {v(preg(sig),4)}, {v(vB)}, {srd}, {s(sF)} offen"); vm.issue(("B", sig))
        def put(sig):
            base = b_lds(sig); w = base >> 16
            a(f"ds_write_b128 {v(vL+w)}, {v(preg(sig),4)} offset:{base-65536*w}")
        if self.o["ld"]: a("s_barrier")
        ktable(0, 1); wst(0); xpair(0); xpair(1); self.ts("l_s0"); wst(1); ktable(1, 8); xpair(2); self.ts("l_s2")
        vPG, vDN = 28, 29
        self.srd(sW2, 16, 1409024); self.srd(sWO, 8, 524288); self.srd(sWS, 24, WS_SIZE)
        if self.o["r2"]:
            a(self.rot2(sT0, sT1, sT2))
            for base, n, r, step in ((4, 7, sT0, 6*32768), (11, 8, sT1, 2*32768)):
                a(f"s_mul_i32 {s(base)}, {s(r)}, {step}")
                for j in range(1, n): a(f"s_add_u32 {s(base+j)}, {s(base+j-1)}, {step}\ns_cmp_eq_u32 {s(base+j)}, {n*step}\ns_cselect_b32 {s(base+j)}, 0, {s(base+j)}")
        a(f"s_lshl_b32 {s(sT0)}, {s(sCT)}, 7\nv_lshl_add_u32 {v(vB)}, v6, 10, v7\nv_add_u32 {v(vB)}, {s(sT0)}, {v(vB)}")
        a(f"v_lshl_add_u32 {v(vL)}, v1, 4, {s(sWK)}\nv_add_u32 {v(vL+1)}, 65536, {v(vL)}\nv_add_u32 {v(vL+2)}, 131072, {v(vL)}")
        a(f"s_lshr_b32 {s(sT0)}, {s(sWK)}, 8\ns_add_u32 {s(sT0)}, {s(sT0)}, {SC_PROG}\nv_mov_b32 {v(vPG)}, {s(sT0)}")
        a(f"v_and_b32 {v(vDN)}, 3, v1\nv_lshlrev_b32 {v(vDN)}, 2, {v(vDN)}\nv_add_u32 {v(vDN)}, {SC_PROG+16}, {v(vDN)}")
        def prog(lv): a(f"v_mov_b32 {v(vT)}, {lv}\nds_write_b32 {v(vPG)}, {v(vT)}")
        sw = self.o["sw"]; tq = [[], []]
        if sw:
            assert not self.o["r2"]
            a(f"s_lshr_b32 {s(sT1)}, {s(sWK)}, 10\ns_lshl_b32 {s(sT0)}, s2, 2\ns_add_u32 {s(sT0)}, {s(sT0)}, {s(sT1)}")
            a(f"s_mul_i32 {s(sT2)}, {s(sT0)}, 1376\ns_add_u32 s10, s16, {s(sT2)}\ns_addc_u32 s11, s17, 0\ns_lshl_b32 {s(sT2)}, {s(sT0)}, 9\ns_add_u32 s12, s8, {s(sT2)}\ns_addc_u32 s13, s9, 0")
            a(f"s_lshr_b32 {s(sT0)}, s2, 3\ns_mul_i32 {s(sT2)}, {s(sT1)}, 11\ns_min_u32 {s(sT2)}, {s(sT2)}, 32\ns_mul_i32 s14, {s(sT0)}, 43\ns_add_u32 {s(sT2)}, {s(sT2)}, s14\ns_lshl_b32 {s(sT2)}, {s(sT2)}, 10\ns_add_u32 s14, s16, {s(sT2)}\ns_addc_u32 s15, s17, 0")
            a(f"s_lshl_b32 {s(sT0)}, {s(sT0)}, 2\ns_add_u32 {s(sT0)}, {s(sT0)}, {s(sT1)}\ns_lshl_b32 {s(sT0)}, {s(sT0)}, 12\ns_add_u32 s18, s8, {s(sT0)}\ns_addc_u32 s19, s9, 0")
            if sw & 1: tq[0] = [f"s_load_dword s20, s[10:11], {64*u}" for u in range(22)] + [f"s_load_dword s20, s[12:13], {64*u}" for u in range(8)]
            if sw & 2: tq[1] = [f"s_load_dword s20, s[14:15], {1024*r + 384 + u}" for r in range(11) for u in (0, 64)] + [f"s_load_dword s20, s[18:19], {1024*r + 384 + u}" for r in range(4) for u in (0, 64)]
        def touch(k, tq):
            for j in range(2):
                if k >= self.o[f"sw{j}"]:
                    for x in tq[j][:self.o["swn"]]: a(x)
                    tq[j] = tq[j][self.o["swn"]:]
        N = 24; KS = 12
        for k in range(KS):
            ready(k); self.ts(f"l_land{k}"); a("s_barrier"); self.ts(f"l_bar{k}")
            feed(k); touch(k, tq)
        a(f"s_cmp_eq_u32 {s(sTYPE)}, 0\ns_cbranch_scc0 L_loadB")
        q0 = list(vm.q)
        for typ in "AB":
            if typ == "B": a.label("L_loadB")
            tq2 = [list(x) for x in tq]
            vm.q = list(q0); sfx = "A" if typ == "A" else ""
            nE, nL, pe0 = (self.o[x + sfx] for x in ("nE", "nL", "pe0")); burst = self.o["burst"] if typ == "A" else 0
            assert nE <= 35 and pe0 >= KS; st_["nE"] = nE
            early = list(range(nE)) + list(range(NSLOT, NSLOT + nL)); nxt = 0
            for k in range(KS, N):
                ready(k); self.ts(f"l_land{k}"); a("s_barrier"); self.ts(f"l_bar{k}")
                if k + 2 < N: feed(k)
                touch(k, tq2)
                if k >= pe0:
                    while nxt < -(-(len(early) - burst) * (k + 1 - pe0) // (N - pe0)) + (burst if k >= self.o['bk'] else 0): assert preg(early[nxt]) < 224 or k > STG or not STG; park(early[nxt]); nxt += 1
            a("s_barrier")
            self.ts("l_barN")
            assert nxt == len(early)
            def done(lv):
                L = self.lab("dw"); X = self.lab("dwx")
                a(f"s_mov_b32 {s(sSPIN)}, 0")
                a.label(L)
                if self.o["slp"]: a(f"s_sleep {self.o['slp']}")
                a(f"ds_read_b32 {v(vP)}, {v(vDN)}\ns_add_u32 {s(sSPIN)}, {s(sSPIN)}, 1\ns_cmp_gt_u32 {s(sSPIN)}, {SPIN_MAX*8}\ns_waitcnt lgkmcnt(0)\ns_cbranch_scc1 {X}")
                a(f"v_cmp_gt_u32 vcc, {lv}, {v(vP)}\ns_cbranch_vccnz {L}")
                a.label(X)
            gate = self.o['gate' + typ]
            todo = [x for x in range(59) if x not in early]; lvl = [(7, 1), (22, 2), (37, 3)]
            def more(n):
                for _ in range(n):
                    if todo:
                        sig = todo.pop(0)
                        bstep(sig) if sig < NSLOT else park(sig)
                        if self.o["thr"] and len(vm.q) > self.o["thr"]: vm.wait(vm.q[-1 - self.o["thr"]])
            thr_ = self.o['thr']; self.o['thr'] = 0; more(0 if gate else self.o['m0n'])
            for sig in range(nE):
                vm.wait(("B", sig)); put(sig)
                if lvl and sig == lvl[0][0]: prog(lvl.pop(0)[1])
                if not gate and self.o['mint'] and sig % self.o['mint'] == self.o['mint'] - 1: more(1)
            self.o['thr'] = thr_
            self.ts("l_put")
            if gate and self.stop != "p1": done(1)
            while todo:
                more(1)
                if lvl and todo and todo[0] >= lvl[0][0] + 7: vm.wait(("B", lvl[0][0])); prog(lvl.pop(0)[1])
            for sg, lv in lvl: vm.wait(("B", sg)); prog(lv)
            self.ts("l_bissue")
            if self.stop == "p1":
                vm.wait_all(); self.ts_flush(); a("s_endpgm"); continue
            for lv, (lo, hi) in enumerate(((38, 45), (45, 55), (55, 59))):
                vm.wait(("B", hi - 1))
                if lv == 2: self.ts("l_bland")
                done(lv + 2)
                for sig in range(lo, hi): put(sig)
                prog(4 + lv)
                self.ts(f"l_ref{lv}")
            a("s_waitcnt lgkmcnt(0)")
            self.ts("l_end")
            self.ts_flush()
            a("s_endpgm")

    ACC = 160
    SEL = 64
    CSM = dict(A=(68, 72, 68), B=(68, 72, 90))
    vXA, vXB, vWE, vWO = 76, 80, 84, 87
    GR = 90
    vCW, vCR = 94, 95
    vT0, vT1, vT2 = 97, 98, 99
    SG = 100
    IDN = 108
    B1 = 108
    XS = 112
    GC = 120
    vSTA, vSTG, vNZ, vDUM = 124, 125, 126, 127
    vFL = 7
    TMP = 128
    FX = 152
    KVA = 16
    def acc(self, p, rb): return self.ACC + 32 * p + 16 * rb

    def it(self, text):
        cost = 0
        for ln in text.split("\n"):
            op = ln.split()[0]
            if op.endswith(":"): continue
            cost += 32 if op.startswith("v_mfma") else 8 if op in ("v_exp_f32", "v_rcp_f32", "v_rsq_f32") else 5 if (op.startswith(("ds_", "buffer_", "v_fma_", "v_cvt_pk", "v_cndmask", "v_lshl_add")) or "0x" in ln) else 4
        return (cost, lambda: self.a(text))
    def its(self, lst): return [self.it(x) for x in lst]
    def vmi(self, text, tag): return (6, lambda: (self.a(text), self.vm.issue(tag)))
    def vmw(self, tag): return (4, lambda: self.vm.wait(tag))
    def tsi(self, name): return (0, lambda: self.ts(name))
    def flush(self, q):
        while q:
            x = q.pop(0)
            if x == "NEXT": self.a("s_waitcnt lgkmcnt(0)")
            elif x == "BAR": raise RuntimeError("barrier marker left over")
            elif x[0] == "GI": continue
            else: x[1]()

    def compute_setup(self):
        a = self.a; G = self; T = G.TMP
        if self.o["prio"] == 1: a("s_setprio 1")
        self.vm = vm = Cnt(a, "vmcnt", 63)
        a(f"s_bfe_u32 {s(sRH)}, {s(sWAVE)}, 0x10001\ns_and_b32 {s(sCH)}, {s(sWAVE)}, 1")
        a("v_and_b32 v2, 31, v1\nv_lshrrev_b32 v3, 5, v1\nv_lshrrev_b32 v4, 4, v1\nv_and_b32 v5, 15, v1")
        a(f"v_mov_b32 {v(G.vNZ)}, 0")
        a(f"s_lshl_b32 {s(sT0)}, {s(sHF)}, 3\ns_add_u32 {s(sT0)}, {s(sT0)}, {s(sCT)}\ns_lshl_b32 {s(sT0)}, {s(sT0)}, 3")
        a(f"s_lshl_b32 {s(sT1)}, {s(sI)}, 7\ns_add_u32 {s(sT0)}, {s(sT0)}, {s(sT1)}\ns_lshl_b32 {s(sT2)}, {s(sWAVE)}, 1\ns_add_u32 {s(sT0)}, {s(sT0)}, {s(sT2)}")
        a(f"v_add_u32 v6, {s(sT0)}, v3\nv_lshlrev_b32 v11, 4, v2\nv_lshl_add_u32 v11, v6, 10, v11")
        a(f"s_lshl_b32 {s(sT2)}, {s(sI)}, 3\ns_add_u32 {s(sT2)}, {s(sT2)}, {s(sG)}\ns_lshl_b32 {s(sT3)}, {s(sSTR)}, 2\ns_mul_i32 {s(sT2)}, {s(sT2)}, {s(sT3)}\ns_sub_u32 {s(sT3)}, {s(sT3)}, 4")
        a(f"s_mul_i32 {s(sT4)}, {s(sWAVE)}, 24\nv_min_u32 v12, 23, v1\nv_add_lshl_u32 v12, v12, {s(sT4)}, 7\nv_min_u32 v12, {s(sT3)}, v12\nv_add_u32 {v(G.vT0)}, {s(sT2)}, v12")
        a(f"s_lshl_b32 {s(sW+2)}, {s(sSTR)}, 9\ns_mov_b32 {s(sW+3)}, 0x00020000\ns_cmp_eq_u32 {s(sTYPE)}, 0\ns_waitcnt lgkmcnt(0)")
        self.ts("c_karg")
        a(f"s_cselect_b32 {s(sW)}, s6, s12\ns_cselect_b32 {s(sW+1)}, s7, s13")
        self.srd(sX, 4, 2097152)
        if self.o["latp"] >= 0:
            self.srd(sOUT, 4 + 2*self.o["latp"], 524288)
            a(f"s_lshl_b32 {s(sT4)}, s2, 2\ns_add_u32 {s(sT4)}, {s(sT4)}, {s(sWAVE)}\ns_lshl_b32 {s(sT4)}, {s(sT4)}, 9\nv_mov_b32 v12, 0")
            a("s_waitcnt vmcnt(0)"); self.ts("c_l0"); a("s_waitcnt lgkmcnt(0)")
            a(f"buffer_load_dword v13, v12, {s(sOUT,4)}, {s(sT4)} offen\ns_waitcnt vmcnt(0)")
            self.ts("c_l1")
        def xs():
            a(f"buffer_load_dwordx4 {v(T,4)}, v11, {s(sX,4)}, 0 offen\nbuffer_load_dwordx4 {v(T+4,4)}, v11, {s(sX,4)}, 0 offen offset:512"); vm.issue("xs"); vm.issue("xs")
        if self.o["xe"]: xs()
        if self.o["wt"] == 3: a(f"buffer_load_dword {v(G.vDUM)}, {v(G.vT0)}, {s(sW,4)}, 0 offen"); vm.issue("t")
        if self.o["ld"]: a("s_barrier")
        L = self.lab("non")
        a(f"s_or_b32 {s(sT3)}, s2, {s(sWAVE)}\ns_cmp_lg_u32 {s(sT3)}, 0\ns_cbranch_scc1 {L}")
        a(f"s_memrealtime {s(sM,2)}\ns_waitcnt lgkmcnt(0)")
        self.srd(sDBG, 22, 256)
        a(f"s_or_b32 {s(sT3)}, {s(sM)}, 1\nv_mov_b32 v8, {s(sT3)}\ns_mov_b64 exec, 1")
        a(f"buffer_store_dword v8, {v(G.vNZ)}, {s(sDBG,4)}, 0 offen sc1\ns_mov_b64 exec, -1")
        a.label(L)
        a("s_branch L_compute")
        self.loader()
        a.label("L_compute")
        a(f"v_lshlrev_b32 v8, 4, v3\nv_lshl_add_u32 v8, v2, 5, v8\ns_lshl_b32 {s(sT0)}, {s(sT0)}, 5\nv_add_u32 v8, {s(sT0)}, v8\nv_mov_b32 v9, {hx(OOB)}\nv_cmp_gt_u32 vcc, 2, v2\nv_add_u32 v8, {WS_ST}, v8\nv_cndmask_b32 {v(G.vSTA)}, v9, v8, vcc")
        a(f"v_cmp_gt_u32 vcc, {self.o['fl']}, v1\nv_lshlrev_b32 v8, 2, v1\nv_cndmask_b32 {v(G.vFL)}, v9, v8, vcc")
        a(f"s_lshl_b32 {s(sT2)}, {s(sRH)}, 6\ns_add_u32 {s(sT1)}, {s(sT1)}, {s(sT2)}\nv_add_u32 v8, {s(sT1)}, v2\nv_and_b32 v10, 1, v8\nv_lshlrev_b32 v8, 5, v8\nv_lshlrev_b32 v10, 4, v10\nv_sub_u32 v8, v8, v10\nv_add_u32 {v(G.vSTG)}, {WS_ST}, v8")
        a("v_bfe_u32 v8, v1, 1, 3")
        a(f"s_lshl_b32 {s(sT2)}, {s(sRH)}, 13\nv_lshl_add_u32 v9, v2, 7, {s(sT2)}")
        for tau in range(4):
            a(f"s_xor_b32 {s(sT3)}, {s(sRH)}, {tau}\ns_lshl_b32 {s(sT3)}, {s(sT3)}, 1")
            a(f"v_add_u32 v10, {s(sT3)}, v3\nv_xor_b32 v10, v10, v8\nv_lshl_add_u32 {v(G.vXA+tau)}, v10, 4, v9\nv_add_u32 {v(G.vXB+tau)}, 65536, {v(G.vXA+tau)}")
        a("v_lshrrev_b32 v8, 2, v5\nv_lshl_add_u32 v8, v3, 3, v8\nv_lshlrev_b32 v8, 7, v8")
        a("v_and_b32 v9, 1, v4\nv_lshlrev_b32 v9, 1, v9\nv_bfe_u32 v10, v5, 1, 1\nv_add_u32 v9, v9, v10")
        a("v_lshrrev_b32 v10, 3, v5\nv_lshlrev_b32 v10, 2, v10\nv_xor_b32 v9, v9, v10")
        a("v_and_b32 v10, 1, v5\nv_lshlrev_b32 v10, 3, v10\nv_add_u32 v8, v8, v10")
        a(f"s_xor_b32 {s(sT3)}, {s(sTYPE)}, 1\ns_and_b32 {s(sT3)}, {s(sT3)}, {s(sRH)}\ns_lshl_b32 {s(sT3)}, {s(sT3)}, 1")
        a(f"s_lshl_b32 {s(sT2)}, {s(sCH)}, 2\ns_or_b32 {s(sT2)}, {s(sT2)}, {s(sT3)}\nv_xor_b32 v10, {s(sT2)}, v9\nv_lshl_add_u32 v10, v10, 4, v8")
        a(f"s_lshl_b32 {s(sT2)}, {s(sRH)}, 11")
        for sl in range(3):
            a(f"s_add_u32 {s(sT4)}, {s(sT2)}, {WR+8192*sl}\ns_sub_u32 {s(sT5)}, {WR+8192*sl}, {s(sT2)}")
            a(f"v_add_u32 {v(G.vWE+sl)}, {s(sT4)}, v10\nv_add_u32 {v(G.vWO+sl)}, {s(sT5)}, v10")
        a(f"v_lshrrev_b32 v8, 2, v5\nv_xor_b32 v8, v8, v4\nv_and_b32 v8, 1, v8\nv_cmp_eq_u32 vcc, 0, v8\nv_mov_b32 v9, 0x3f803f80")
        for q in range(4): a(f"v_cndmask_b32 {v(G.SEL+q)}, 0, v9, vcc")
        a(f"s_mul_i32 {s(sT0)}, {s(sWAVE)}, 384\ns_add_u32 {s(sT0)}, {s(sT0)}, {SC_CS}\nv_lshl_add_u32 {v(G.vCW)}, v2, 2, {s(sT0)}")
        a(f"s_xor_b32 {s(sT0)}, {s(sWAVE)}, 2\ns_mul_i32 {s(sT0)}, {s(sT0)}, 384\ns_add_u32 {s(sT0)}, {s(sT0)}, {SC_CS}\ns_xor_b32 {s(sT1)}, {s(sTYPE)}, 1\ns_lshl_b32 {s(sT1)}, {s(sT1)}, 4")
        a(f"v_xor_b32 v8, {s(sT1)}, v2\nv_lshl_add_u32 {v(G.vCR)}, v8, 2, {s(sT0)}")
        a(f"v_lshlrev_b32 v8, 2, v2\nv_add_u32 v8, {SC_FLAG}, v8\nds_write_b32 v8, {v(G.vNZ)}")
        if self.o["wt"] == 2: a(f"buffer_load_dword {v(G.vDUM)}, {v(G.vT0)}, {s(sW,4)}, 0 offen"); vm.issue("t")
        X = self.lab("vwx")
        a(f"v_mov_b32 {v(G.vT1)}, {hx(OOB)}\nv_mov_b32 {v(G.vT2)}, {hx(OOB)}\ns_cmp_lt_u32 {s(sWAVE)}, 2\ns_cbranch_scc1 {X}")
        a(f"s_cmp_eq_u32 {s(sWAVE)}, 2")
        a(f"s_cselect_b32 {s(sW)}, s16, s8\ns_cselect_b32 {s(sW+1)}, s17, s9\ns_movk_i32 {s(sT3)}, 2048\ns_cselect_b32 {s(sT3)}, 5504, {s(sT3)}")
        a(f"s_lshl_b32 {s(sW+2)}, {s(sT3)}, 8\ns_mul_i32 {s(sT2)}, s2, {s(sT3)}\ns_sub_u32 {s(sT3)}, {s(sT3)}, 4")
        a(f"v_lshlrev_b32 v12, 7, v1\nv_min_u32 v12, {s(sT3)}, v12\nv_add_u32 {v(G.vT1)}, {s(sT2)}, v12")
        a(f"s_cmp_eq_u32 {s(sWAVE)}, 2\ns_cselect_b32 {s(sT3)}, 43, 16\ns_lshr_b32 {s(sT2)}, s2, 3\ns_mul_i32 {s(sT2)}, {s(sT2)}, {s(sT3)}")
        a(f"v_add_u32 v12, {s(sT2)}, v1\nv_lshlrev_b32 v12, 10, v12\nv_add_u32 v12, 384, v12\nv_cmp_gt_u32 vcc, {s(sT3)}, v1\nv_cndmask_b32 {v(G.vT2)}, {v(G.vT2)}, v12, vcc")
        a.label(X)
        self.srd(sB1, 14, 2752); self.srd(sDBG, 22, 256); self.srd(sWS, 24, WS_SIZE)
        a(f"s_lshl_b32 {s(sT2)}, {s(sCH)}, 6\ns_lshl_b32 {s(sT3)}, {s(sTYPE)}, 31\ns_xor_b32 {s(sT3)}, {s(sT3)}, {hx(OOB)}\ns_or_b32 {s(sT2)}, {s(sT2)}, {s(sT3)}")
        a(f"v_lshl_add_u32 v8, v2, 1, {s(sT2)}")
        if not self.o["xe"]: xs()
        a("v_mov_b32 v96, v8")
        if self.o["t2"]:
            L = self.lab("t2")
            a(f"s_lshl_b32 {s(sT2)}, {s(sHF)}, 2\ns_or_b32 {s(sT2)}, {s(sT2)}, {s(sWAVE)}\ns_cmp_lg_u32 {s(sT2)}, 3\ns_cbranch_scc1 {L}")
            self.srd(sOUT, 6, 1572864)
            a(f"s_lshr_b32 {s(sT2)}, s2, 3\ns_lshl_b32 {s(sT2)}, {s(sT2)}, 4")
            a(f"v_add_u32 v12, {s(sT2)}, v5\nv_mul_u32_u24 v12, 3072, v12\nv_min_u32 v13, 2, v4\nv_lshl_add_u32 v12, v13, 10, v12\nv_add_u32 v12, 384, v12")
            a(f"buffer_load_dword {v(G.vDUM)}, v12, {s(sOUT,4)}, 0 offen")
            a.label(L)
        if self.o["w2s"]: a(f"buffer_load_dword {v(G.vDUM)}, {v(G.vT1)}, {s(sW,4)}, 0 offen"); vm.issue("t")
        self.vm0 = list(vm.q)
        self.ts("c_setup")
        a(f"s_cmp_eq_u32 {s(sTYPE)}, 0\ns_cbranch_scc0 L_typeB")

    def q_stats(self, typ, extra=()):
        G = self; T = G.TMP; U = T + 8; q = []
        g = dict(math=1, chk=self.o['chk'], w2=self.o["w2t"], ga=self.o['ga'], gc=self.o['gc'])
        nl = [self.vmi(f"buffer_load_dword {v(G.GR+3)}, {v(G.vNZ)}, {s(sDBG,4)}, 0 offen sc1", "nonce")]
        if not self.o["pre"]: q += nl
        q += [("GI", g["math"]), self.vmw("xs")]
        if self.o["pre"]: q += nl
        w = []
        for k in range(8): w += [f"v_lshlrev_b32 {v(U+2*k)}, 16, {v(T+k)}", f"v_and_b32 {v(U+2*k+1)}, 0xffff0000, {v(T+k)}"]
        w += [f"v_add_f32 {v(T+k)}, {v(U+2*k)}, {v(U+2*k+1)}" for k in range(8)]
        for n in (4, 2, 1): w += [f"v_add_f32 {v(T+k)}, {v(T+k)}, {v(T+k+n)}" for k in range(n)]
        def red32(r, t):
            o = [f"v_add_f32_dpp {v(r)}, {v(r)}, {v(r)} {m} row_mask:0xf bank_mask:0xf" for m in ("quad_perm:[1,0,3,2]", "quad_perm:[2,3,0,1]", "row_half_mirror", "row_mirror")]
            return o + [f"v_mov_b32 {v(t)}, {v(r)}", f"v_permlane16_swap_b32 {v(r)}, {v(t)}", f"v_add_f32 {v(r)}, {v(r)}, {v(t)}"]
        w += red32(T, T + 1) + [f"v_mul_f32 {v(G.GR)}, {fl(1/512)}, {v(T)}"]
        w += [f"v_sub_f32 {v(U+k)}, {v(U+k)}, {v(G.GR)}" for k in range(16)]
        w += [f"v_mul_f32 {v(T+k)}, {v(U+k)}, {v(U+k)}" for k in range(4)]
        w += [f"v_fmac_f32 {v(T+k%4)}, {v(U+k)}, {v(U+k)}" for k in range(4, 16)]
        w += [f"v_add_f32 {v(T)}, {v(T)}, {v(T+1)}", f"v_add_f32 {v(T+2)}, {v(T+2)}, {v(T+3)}", f"v_add_f32 {v(T)}, {v(T)}, {v(T+2)}"]
        w += red32(T, T + 1) + [f"v_mov_b32 {v(T+1)}, {fl(1e-5)}", f"v_fmac_f32 {v(T+1)}, {fl(1/512)}, {v(T)}",
                                f"v_rsq_f32 {v(G.GR+1)}, {v(T+1)}", f"v_mul_f32 {v(G.GR+2)}, {v(T+1)}, {v(G.GR+1)}"]
        q += self.its(w)
        if self.o["pre"]: self.flush(q); q = []
        L = self.lab("nonce"); R = self.lab("nonceok"); X = self.lab("noncex")
        q += [("GI", g["chk"]), self.vmw("nonce"),
              self.it(f"v_readfirstlane_b32 {s(sNONCE)}, {v(G.GR+3)}\ns_cmp_eq_u32 {s(sNONCE)}, 0\ns_cbranch_scc1 {L}\n{R}:"),
              self.vmi(f"buffer_store_dwordx4 {v(G.GR,4)}, {v(G.vSTA)}, {s(sWS,4)}, 0 offen sc1", "st"),
              self.it(f"v_mov_b32 v8, {SC_NONCE}\nds_write_b32 v8, {v(G.GR+3)}"), self.tsi("c_stpub")]
        self.tail.append(f"""{L}:
s_mov_b32 {s(sSPIN)}, 0
{X}:
buffer_load_dword {v(G.GR+3)}, {v(G.vNZ)}, {s(sDBG,4)}, 0 offen sc1
s_add_u32 {s(sSPIN)}, {s(sSPIN)}, 1
s_waitcnt vmcnt(0)
v_readfirstlane_b32 {s(sNONCE)}, {v(G.GR+3)}
s_cmp_gt_u32 {s(sSPIN)}, {SPIN_MAX}
s_cbranch_scc1 {R}
s_cmp_eq_u32 {s(sNONCE)}, 0
s_cbranch_scc1 {X}
s_branch {R}""")
        if typ == "B": q += self.its([f"v_lshlrev_b32 {v(G.B1+p)}, 16, {v(G.B1+p)}" for p in range(3)])
        q += list(extra)
        if self.o["t3"]:
            q += [("GI", self.o["t3"] - 1), self.it(f"s_lshl_b32 {s(sT0)}, {s(sI)}, 3\ns_add_u32 {s(sT0)}, {s(sT0)}, {s(sCT)}\ns_lshl_b32 {s(sT0)}, {s(sT0)}, 14\nv_lshl_add_u32 v8, v5, 10, {s(sT0)}"),
                  self.vmi(f"buffer_load_dword {v(G.vDUM)}, v8, {s(sX,4)}, 0 offen offset:384", "t")]
        if self.o["w2t"] and not self.o["w2s"] and not self.o["sw"] & 1: q += [("GI", g["w2"]), self.vmi(f"buffer_load_dword {v(G.vDUM)}, {v(G.vT1)}, {s(sW,4)}, 0 offen", "t")]
        if self.o["t1"] and not self.o["sw"] & 2: q += [("GI", self.o["t1"]), self.vmi(f"buffer_load_dword {v(G.vDUM)}, {v(G.vT2)}, {s(sW,4)}, 0 offen", "t")]
        q += [("GI", g["ga"])] + [self.vmi(f"buffer_load_dwordx4 {v(G.SG+4*rb,4)}, {v(G.vSTG)}, {s(sWS,4)}, 0 offen offset:{1024*rb} sc1", "sg") for rb in range(2)]
        L = self.lab("st"); R = self.lab("stok"); X = self.lab("stx")
        chk = f"v_cmp_ne_u32 vcc, {s(sNONCE)}, {v(G.SG+3)}\nv_cmp_ne_u32 {s(sM,2)}, {s(sNONCE)}, {v(G.SG+7)}\ns_or_b64 vcc, vcc, {s(sM,2)}"
        q += [("GI", g["gc"]), self.vmw("sg"), self.it(f"{chk}\ns_cbranch_vccnz {L}\n{R}:"), self.tsi("c_stok")]
        self.tail.append(f"""{L}:
s_mov_b32 {s(sSPIN)}, 0
{X}:
buffer_load_dwordx4 {v(G.SG,4)}, {v(G.vSTG)}, {s(sWS,4)}, 0 offen sc1
buffer_load_dwordx4 {v(G.SG+4,4)}, {v(G.vSTG)}, {s(sWS,4)}, 0 offen offset:1024 sc1
s_add_u32 {s(sSPIN)}, {s(sSPIN)}, 1
s_cmp_gt_u32 {s(sSPIN)}, {SPIN_MAX}
s_waitcnt vmcnt(0)
s_cbranch_scc1 {R}
{chk}
s_cbranch_vccnz {X}
s_branch {R}""")
        for rb in range(2):
            mu, r, sd = G.SG + 4*rb, G.SG + 4*rb + 1, G.SG + 4*rb + 2; X = G.XS + 4*rb
            q += self.its([f"v_cvt_pk_bf16_f32 {v(T)}, -{v(mu)}, -{v(mu)}", f"v_cvt_pk_bf16_f32 {v(T+1)}, {v(sd)}, {v(sd)}",
                           f"v_and_b32 {v(T+2)}, 0xffff0000, {v(T)}", f"v_and_b32 {v(T+3)}, 0xffff0000, {v(T+1)}",
                           f"v_sub_f32 {v(T+2)}, -{v(mu)}, {v(T+2)}", f"v_sub_f32 {v(T+4)}, {v(sd)}, {v(T+3)}",
                           f"v_cvt_pk_bf16_f32 {v(T+2)}, {v(T+2)}, {v(T+3)}", f"v_cvt_pk_bf16_f32 {v(T+4)}, {v(T+4)}, 0",
                           f"v_cmp_gt_u32 vcc, 32, v1\nv_mov_b32 {v(X+3)}, 0\nv_cndmask_b32 {v(X)}, 0, {v(T)}, vcc\nv_cndmask_b32 {v(X+1)}, 0, {v(T+2)}, vcc\nv_cndmask_b32 {v(X+2)}, 0, {v(T+4)}, vcc"])
        k0 = -2.0 * 1.4426950408889634 * 0.7978845608028654
        for rb in range(2):
            r, sd = G.SG + 4*rb + 1, G.SG + 4*rb + 2
            if typ == "B":
                q += self.its([f"v_mul_f32 {v(G.GC+rb)}, {fl(k0)}, {v(r)}", f"v_mul_f32 {v(T)}, {v(r)}, {v(r)}",
                               f"v_mul_f32 {v(T)}, {fl(0.044715)}, {v(T)}", f"v_mul_f32 {v(G.GC+2+rb)}, {v(T)}, {v(G.GC+rb)}"])
            else:
                q += self.its([f"v_mul_f32 {v(G.GC+rb)}, {fl(1.4426950408889634)}, {v(r)}", f"v_mul_f32 {v(G.GC+2+rb)}, {fl(1e-6)}, {v(sd)}"])
        if typ == "A":
            q += self.its([f"s_lshl_b32 {s(sT0)}, {s(sWAVE)}, 8\ns_add_u32 {s(sT0)}, {s(sT0)}, {SC_R}\nv_lshl_add_u32 v8, v2, 2, {s(sT0)}\nv_lshl_add_u32 v6, v3, 4, {s(sT0)}",
                           f"ds_write_b32 v8, {v(G.GC)}", f"ds_write_b32 v8, {v(G.GC+1)} offset:128"])
        return q

    def reads0(self, gi):
        G = self
        k, tau = divmod(gi, 4); sl = (gi // 2) % 3; b = gi & 1
        X = lambda rb: [(f"ds_read_b128 {v(16+8*b+4*rb,4)}, {v((G.vXB if k >= 4 else G.vXA) + tau)} offset:{(k % 4)*16384 + 4096*rb}", (gi, "X", rb))]
        W = lambda p: [(f"ds_read_b64_tr_b16 {v(48+8*b+4*p+2*j,2)}, {v((G.vWO if tau & 1 else G.vWE) + sl)} offset:{p*4096+(tau&1)*2048+j*512}", (gi, "W", p)) for j in range(2)]
        return [W(0) + X(0), W(1) + X(1), [], []]
    def reads1(self, M):
        G = self
        if M >= 16: return [[], [], [], []]
        k = M // 2; sl = (16 + k) % 3; b = M & 1
        def X(ks, rb):
            tau = 2*(M & 1) + ks
            return [(f"ds_read_b128 {v(16+16*b+8*ks+4*rb,4)}, {v((G.vXB if k >= 4 else G.vXA) + tau)} offset:{(k % 4)*16384 + 4096*rb}", (32+M, "X", ks, rb))]
        def W(ks):
            tau = 2*(M & 1) + ks
            return [(f"ds_read_b64_tr_b16 {v(48+8*b+4*ks+2*j,2)}, {v((G.vWO if tau & 1 else G.vWE) + sl)} offset:{tau*2048+j*512}", (32+M, "W", ks)) for j in range(2)]
        return [W(0) + X(0, 0), W(1) + X(0, 1), X(1, 0), X(1, 1)]

    def mpass(self, typ, ps, q, budget):
        a = self.a; G = self; CS = G.CSM[typ]
        def issue(g):
            for r, t in g: a(r); self.lg.issue(t)
        if ps == 0:
            self.lg = Cnt(a, "lgkmcnt", 15)
            self.ts("c_pre0")
            a("s_waitcnt lgkmcnt(0)\ns_barrier")
            self.ts("c_bar0")
            for g in self.reads0(0): issue(g)
        elif typ == "A":
            for g in self.reads1(0): issue(g)
        lg = self.lg
        st_ = dict(hold=None, credit=0, nbar=0)
        def emit(x):
            n0 = len(a.items); x[1]()
            for ln in a.items[n0:]:
                if ln.startswith("ds_"): lg.issue("F")
        def fill(M, nr):
            st_["credit"] = min(st_["credit"] + budget - 5 * nr, budget + 6)
            while q and st_["hold"] is None:
                x = q[0]
                if x in ("NEXT", "BAR"): st_["hold"] = x; q.pop(0); break
                if x[0] == "GI":
                    if M >= x[1]: q.pop(0); continue
                    break
                if x[0] == "GB":
                    if st_["nbar"] >= x[1]: q.pop(0); continue
                    break
                if st_["credit"] < min(x[0], 12): break
                q.pop(0); emit(x); st_["credit"] -= x[0]
        def barrier(n):
            lg.wait("F"); a("s_barrier"); self.ts(f"c_bar{n}"); st_["nbar"] += 1
            if st_["hold"] == "BAR": st_["hold"] = None
        NS = 32 if ps == 0 else 16
        pn = (0, 1) if ps == 0 else (2,)
        for M in range(NS):
            b = M & 1; mf = []; last = M == NS - 1
            for i in range(2):
                for rb in range(2):
                    p = i if ps == 0 else 2
                    x = v(16+8*b+4*rb, 4) if ps == 0 else v(16+16*b+8*i+4*rb, 4)
                    w = v(48+8*b+4*i, 4); c = v(G.acc(p, rb), 16)
                    A, B = (x, w) if (typ == "A" and p < 2) else (w, x)
                    mf.append(f"v_mfma_f32_32x32x16_bf16 {c}, {A}, {B}, {c if M or (ps and i) else 0}")
            if ps == 0:
                cs = [f"v_mfma_f32_16x16x32_bf16 {v(CS[p],4)}, {v(G.SEL,4)}, {v(48+8*b+4*p,4)}, {v(CS[p],4) if M else 0}" for p in pn] if b == 0 else []
                rd = self.reads0(M + 1) if not last else (self.reads1(0) if typ == "B" else [[], [], [], []])
                need = [(M, "X", 1), None, None, None]; nb = M // 2 + 1
            else:
                cs = [f"v_mfma_f32_16x16x32_bf16 {v(CS[2],4)}, {v(G.SEL,4)}, {v(48+8*b,4)}, {v(CS[2],4) if M else 0}"]
                rd = self.reads1(M + 1)
                need = [(32+M, "X", 0, 1), None, (32+M, "X", 1, 1), None]; nb = 17 + M // 2
            csw = [(f"ds_write_b32 {v(G.vCW)}, {v(CS[p])} offset:{128*p}", "F") for p in pn]
            csr = [(f"ds_read_b32 {v(CS[p]+1)}, {v(G.vCR)} offset:{128*p}", "F") for p in pn]
            if st_["hold"] == "NEXT" or M == 0: lg.wait("F"); st_["hold"] = None if st_["hold"] == "NEXT" else st_["hold"]
            if last and ps == 1:
                lg.wait(need[0]); a(cs[0]); a(mf[0])
                for j in range(4):
                    if j: a(f"v_xor_b32 v8, {16*j}, {v(G.vXR)}")
                    issue([(f"ds_read_b64 {v(G.XR+2*j,2)}, {v(8 if j else G.vXR)}", "F")])
                fill(M, 4); a(mf[1])
                issue(csw); fill(M, 1); lg.wait(need[2]); a(mf[2])
                barrier(nb); issue(csr); a(mf[3])
                break
            for k in range(4):
                lg.wait(need[k]); a(mf[k])
                if k == 0 and b:
                    barrier(nb)
                    if last: issue(csr)
                issue(rd[k])
                fill(M, len(rd[k]))
                if k == (0 if (ps == 0 and M == 30) else 2):
                    for c in cs: a(c)
                if k == 2 and ps == 0 and M == 30: issue(csw)
        assert st_["hold"] != "BAR"
        assert not any(x[0] in ("GI", "GB") for x in q if not isinstance(x, str)), "GI marker left"
        if self.verbose: print(typ, "pass", ps, "leftover cost", sum(x[0] for x in q if not isinstance(x, str)))
        self.ts(f"c_pass{ps}")

    def q_fixup(self, typ, p):
        G = self; c = G.CSM[typ][p]; F = 136 if typ == "B" else (152, 148, 128)[p]; q = []
        q += self.its([f"v_add_f32 {v(c)}, {v(c)}, {v(c+1)}", f"v_cvt_pk_bf16_f32 {v(c+1)}, {v(c)}, {v(c)}",
                      f"v_and_b32 {v(c+1)}, 0xffff0000, {v(c+1)}", f"v_sub_f32 {v(c+2)}, {v(c)}, {v(c+1)}", f"v_mov_b32 {v(F+3)}, 0"])
        if typ == "B":
            q += self.its([f"v_cvt_pk_bf16_f32 {v(F+1)}, {v(c+1)}, {v(G.B1+p)}", f"v_cvt_pk_bf16_f32 {v(F+2)}, {v(G.B1+p)}, 0"])
        else:
            q += self.its([f"v_cvt_pk_bf16_f32 {v(F+1)}, {v(c+1)}, 0", f"v_mov_b32 {v(F+2)}, 0"])
        q += self.its([f"v_cvt_pk_bf16_f32 {v(F)}, {v(c+1)}, {v(c+2)}"])
        for rb in range(2):
            x = v(G.XS + 4*rb, 4); w = v(F, 4); cc = v(G.acc(p, rb), 16)
            A, B = (x, w) if (typ == "A" and p < 2) else (w, x)
            q += self.its([f"v_mfma_f32_32x32x16_bf16 {cc}, {A}, {B}, {cc}"])
        return q

    def ho_base(self, dst, sig0):
        t = (f"s_lshl_b32 {s(dst)}, {s(sI)}, 1\ns_add_u32 {s(dst)}, {s(dst)}, {s(sRH)}\ns_lshl_b32 {s(dst)}, {s(dst)}, 18\n"
             f"s_lshl_b32 {s(sT0)}, {s(sG)}, 1\ns_add_u32 {s(sT0)}, {s(sT0)}, {s(sCH)}\n")
        if not self.o["lay"]:
            return t + f"s_add_u32 {s(sT5)}, {s(sT0)}, {sig0}\ns_lshl_b32 {s(sT5)}, {s(sT5)}, 10\ns_add_u32 {s(dst)}, {s(dst)}, {s(sT5)}"
        par = int(sig0 >= 29)
        return t + (f"s_add_u32 {s(sT5)}, {s(sT0)}, {sig0 - 29*par}\ns_and_b32 {s(sT4)}, {s(sT5)}, 7\ns_lshr_b32 {s(sT5)}, {s(sT5)}, 3\ns_lshl_b32 {s(sT5)}, {s(sT5)}, 4\n"
                    f"s_add_u32 {s(sT5)}, {s(sT5)}, {s(sT4)}\ns_add_u32 {s(sT5)}, {s(sT5)}, {8*par}\ns_lshl_b32 {s(sT5)}, {s(sT5)}, 10\ns_add_u32 {s(dst)}, {s(dst)}, {s(sT5)}")

    def q_flag(self, soff):
        return [self.it(f"v_mov_b32 v11, {s(sNONCE)}"),
                self.vmi(f"buffer_store_dword v11, {v(self.vFL)}, {s(sWS,4)}, {s(soff)} offen {'sc0 sc1' if self.o['fsc'] else 'sc1'}", "f")]

    def q_gelu_setup(self):
        sHB, sFL = 26, 27; vO = 12
        q = [self.it("\n".join(self.ho_base(4 + p, SIG0[p]) for p in range(3)) + f"\ns_lshl_b32 {s(sT1)}, {s(sI)}, 1\ns_add_u32 {s(sT1)}, {s(sT1)}, {s(sRH)}\ns_mul_i32 {s(sFL)}, {s(sT1)}, {3*FG}\ns_lshl_b32 {s(sT1)}, {s(sT0)}, {FS}\ns_add_u32 {s(sFL)}, {s(sFL)}, {s(sT1)}\ns_add_u32 {s(sFL)}, {s(sFL)}, {WS_FH}")]
        t = f"s_mul_i32 {s(sT1)}, {s(sG)}, 6\ns_add_u32 {s(sT1)}, {s(sT1)}, {s(sCH)}\nv_lshlrev_b32 v11, 4, v1"
        for p in range(3): t += f"\ns_cmp_lt_u32 {s(sT1)}, {43-2*p}\ns_cselect_b32 {s(sT2)}, 0, {hx(OOB)}\nv_or_b32 {v(vO+p)}, {s(sT2)}, v11"
        return q + [self.it(t)]
    def q_gelu(self, p, pk):
        G = self; sHB, sFL, sO = 26, 27, 3; vO = 12; t = G.TMP; q = []; n = 0
        for rb in range(2):
            A, B, sd = G.GC + rb, G.GC + 2 + rb, G.SG + 4*rb + 2
            for kh in range(2):
                c = G.acc(p, rb) + 8*kh; P = t + 8 + 4*(n & 1); n += 1
                if self.o["pk"] and pk:
                    sel = rb
                    w = [f"v_pk_mul_f32 {v(t+j,2)}, {v(c+j,2)}, {v(c+j,2)}" for j in range(0, 8, 2)]
                    w += [f"v_pk_fma_f32 {v(t+j,2)}, {v(t+j,2)}, {v(G.GC+2,2)}, {v(G.GC,2)} op_sel:[0,{sel},{sel}] op_sel_hi:[1,{sel},{sel}]" for j in range(0, 8, 2)]
                    w += [f"v_pk_mul_f32 {v(t+j,2)}, {v(c+j,2)}, {v(t+j,2)}" for j in range(0, 8, 2)]
                    w += [f"v_exp_f32 {v(t+j)}, {v(t+j)}" for j in range(8)]
                    w += [f"v_pk_fma_f32 {v(t+j,2)}, {v(t+j,2)}, {v(sd,2)}, {v(sd,2)} op_sel:[0,0,0] op_sel_hi:[1,0,0]" for j in range(0, 8, 2)]
                    w += [f"v_rcp_f32 {v(t+j)}, {v(t+j)}" for j in range(8)]
                    w += [f"v_pk_mul_f32 {v(t+j,2)}, {v(c+j,2)}, {v(t+j,2)}" for j in range(0, 8, 2)]
                else:
                    w = [f"v_mul_f32 {v(t+j)}, {v(c+j)}, {v(c+j)}" for j in range(8)]
                    w += [f"v_fma_f32 {v(t+j)}, {v(t+j)}, {v(B)}, {v(A)}" for j in range(8)]
                    w += [f"v_mul_f32 {v(t+j)}, {v(c+j)}, {v(t+j)}" for j in range(8)]
                    w += [f"v_exp_f32 {v(t+j)}, {v(t+j)}" for j in range(8)]
                    w += [f"v_fma_f32 {v(t+j)}, {v(t+j)}, {v(sd)}, {v(sd)}" for j in range(8)]
                    w += [f"v_rcp_f32 {v(t+j)}, {v(t+j)}" for j in range(8)]
                    w += [f"v_mul_f32 {v(t+j)}, {v(c+j)}, {v(t+j)}" for j in range(8)]
                w += [f"v_cvt_pk_bf16_f32 {v(P+j)}, {v(t+2*j)}, {v(t+2*j+1)}" for j in range(4)]
                q += self.its(w)
                q += [self.vmi(f"s_add_u32 {s(sO)}, {s(4+p)}, {(2*rb+kh)*65536}\nbuffer_store_dwordx4 {v(P,4)}, {v(vO+p)}, {s(sWS,4)}, {s(sO)} offen sc1", ("h", p))]
        return q + [self.tsi(f"cB_p{p}")]

    def q_hflag(self, p):
        return [self.vmw(("h", p))] + self.q_flag(27) + [self.it(f"s_add_u32 s27, s27, {FG}"), self.tsi(f"cB_flag{p}")]
    def q_h0(self):
        G = self
        return self.its([f"s_lshl_b32 {s(sT1)}, {s(sI)}, 1\ns_add_u32 {s(sT1)}, {s(sT1)}, {s(sHF)}\ns_mul_i32 {s(sC0)}, {s(sT1)}, {3*FG}\ns_add_u32 {s(sC0)}, {s(sC0)}, {WS_FH}", f"v_lshlrev_b32 {v(G.vGP)}, {FS}, v5"]) + \
               [("GI", 13), self.vmi(self.fload(G.vGF, G.vGP, sC0), "gf")]
    def aload(self, vm, sig):
        if sig >= 59: return
        G = self; sA = sKST; D = self.o["D"]
        if self.o["r2"]:
            st, j2, ch = pos_of(sig); n = 8 if st == 3 else 7; t = ""
            if sig == 14: t = f"s_add_u32 {s(sA)}, s16, {14*1024}\n"
            elif ch == 0:
                t = f"s_mov_b32 s19, {'s18' if st == 3 else 's17'}\n" if j2 == 0 else f"s_add_u32 s19, s19, 2048\ns_cmp_eq_u32 s19, {n*2048}\ns_cselect_b32 s19, 0, s19\n"
                t += f"s_add_u32 {s(sA)}, s19, s16\n" + (f"s_add_u32 {s(sA)}, {s(sA)}, {(SIG0+[43])[st]*1024}\n" if st else "")
            self.a(t + f"buffer_load_dwordx4 {v(G.RING[sig%D],4)}, {v(G.vA)}, {s(sWS,4)}, {s(sA)} offen offset:{1024*ch} sc1"); vm.issue(("A", sig))
            return
        o = hoff(sig, self.o["lay"]); d = (o & ~4095) - (hoff(sig - 1, self.o["lay"]) & ~4095) if sig else 0
        if d: self.a(f"s_add_u32 {s(sA)}, {s(sA)}, {hx(d)}")
        self.a(f"buffer_load_dwordx4 {v(G.RING[sig%D],4)}, {v(G.vA)}, {s(sWS,4)}, {s(sA)} offen offset:{o & 4095} sc1"); vm.issue(("A", sig))
    RING = [16 + 4*k for k in range(8)] + [72, 76, 80, 84, 88]
    def gcheck(self, vm, soff, two=False, va=None):
        a = self.a; G = self; L = self.lab("gc"); R = self.lab("gcok"); X = self.lab("gcx")
        vm.wait("gf")
        a(f"v_cmp_ne_u32 vcc, {s(sNONCE)}, {v(G.vGF)}\ns_cbranch_vccnz {L}")
        a.label(R)
        pre = ""
        if two:
            n = len(vm.q) - 1 - max(i for i, t in enumerate(vm.q) if t == "gb")
            pre = f"s_waitcnt vmcnt({n})\nv_cmp_ne_u32 vcc, {s(sNONCE)}, {v(G.vGB)}\ns_cbranch_vccz {R}\n"
        self.tail.append(f"{L}:\n" + pre + self.poll_text(G.vGP if va is None else va, G.vGF, soff, X, self.lab("gcy")) + f"\ns_branch {R}")
    def p2_pre(self):
        if self.stop == "p1": return
        self.gcheck(self.vm, sC0); self.ts("c_p0x")
        for sig in range(8): self.aload(self.vm, sig)
        G = self
        if self.o["kearly"]: self.a(f"s_add_u32 {s(sC0)}, {s(sC0)}, {FG}\nbuffer_load_dword {v(G.vGF)}, {v(G.vGP)}, {s(sWS,4)}, {s(sC0)} offen sc1"); self.vm.issue("gf")
    def typeB(self):
        a = self.a; G = self; o = self.o
        self.vm.q = list(self.vm0)
        for p in range(3):
            a(f"v_add_u32 v9, {s(sC0+p)}, v96\nbuffer_load_ushort {v(G.B1+p)}, v9, {s(sB1,4)}, 0 offen"); self.vm.issue("b1")
        self.flush(self.q_gelu_setup())
        pw = []
        if o["pw"]:
            pw = [("GI", o["pw"])] + [self.vmi(f"s_add_u32 s3, s27, {k*FG}\nbuffer_store_dword {v(G.vNZ)}, {v(G.vFL)}, {s(sWS,4)}, s3 offen sc1", "pw") for k in range(3)]
        q = self.q_stats("B", pw + self.q_p2setup())
        self.mpass("B", 0, q, o["bud0"])
        g1 = self.q_gelu(1, False)
        h0 = self.q_h0()
        q += self.q_fixup("B", 0) + self.q_fixup("B", 1) + h0[:2] + self.q_gelu(0, False) + g1[:o["fm"]*10] + self.q_hflag(0) + g1[o["fm"]*10:]
        self.mpass("B", 1, q, o["bud2"])
        self.ts("c_main")
        g2 = self.q_gelu(2, True); h = len(g2) // 4 * o["g2h"]
        self.flush(q + h0[3:] + ["NEXT"] + self.q_fixup("B", 2) + g2[:h] + self.q_hflag(1) + [(0, self.p2_pre)] + g2[h:])
        self.ts("cB_gelu")
        if self.stop == "p1": self.vm.wait(("h", 2)); self.flush(self.q_flag(27))

    def pair_recv(self, kind, reads):
        a = self.a; L = self.lab("pw"); X = self.lab("pwx")
        a(f"s_xor_b32 {s(sT0)}, {s(sWAVE)}, 2\ns_lshl_b32 {s(sT0)}, {s(sT0)}, 4\ns_add_u32 {s(sT0)}, {s(sT0)}, {SC_FLAG+4*kind}\nv_mov_b32 v12, {s(sT0)}\ns_mov_b32 {s(sSPIN)}, 0")
        a.label(L)
        a("ds_read_b32 v13, v12")
        for r in reads: a(r)
        a(f"s_add_u32 {s(sSPIN)}, {s(sSPIN)}, 1\ns_cmp_gt_u32 {s(sSPIN)}, {SPIN_MAX}\ns_waitcnt lgkmcnt(0)\ns_cbranch_scc1 {X}")
        a(f"v_cmp_eq_u32 vcc, 0, v13\ns_cbranch_vccnz {L}")
        a.label(X)
    def pair_send(self, kind):
        a = self.a
        a(f"s_lshl_b32 {s(sT0)}, {s(sWAVE)}, 4\ns_add_u32 {s(sT0)}, {s(sT0)}, {SC_FLAG+4*kind}\nv_mov_b32 v12, {s(sT0)}\nv_mov_b32 v13, 1\nds_write_b32 v12, v13")

    ON = 156
    RR = (128, 32)
    def q_kv_pre(self):
        G = self
        return ["NEXT"] + self.its([f"ds_read_b128 {v(G.RR[rb]+4*k,4)}, v6 offset:{128*rb+32*k}" for rb in range(2) for k in range(4)]
                                   + [f"v_mov_b32 {v(G.ON+k)}, 0x3f803f80" for k in range(4)] + ["v_xor_b32 v12, 32, v96"])
    def q_kv(self):
        G = self; q = []
        KV, ZZ, u, ON = 16, 48, G.TMP + 16, G.ON
        pend = []
        for n, (rb, kh) in enumerate(((0, 0), (0, 1), (1, 0), (1, 1))):
            c = G.acc(0, rb) + 8*kh; cv = G.acc(1, rb) + 8*kh; r = G.RR[rb] + 8*kh
            w = [f"v_pk_mul_f32 {v(c+j,2)}, {v(c+j,2)}, {v(r+j,2)}" for j in range(0, 8, 2)]
            e = [f"v_exp_f32 {v(u+j)}, {v(c+j)} clamp" for j in range(8)]
            w += pend[:1] + e[:4] + pend[1:] + e[4:]
            w += [f"v_max_f32 {v(c+j)}, v10, {v(c+j)}" for j in range(8)]
            w += [f"v_pk_mul_f32 {v(cv+j,2)}, {v(cv+j,2)}, {v(r+j,2)}" for j in range(0, 8, 2)]
            w += [f"v_pk_fma_f32 {v(u+j,2)}, {v(c+j,2)}, v[10:11], {v(u+j,2)} op_sel:[0,1,0] op_sel_hi:[1,1,1]" for j in range(0, 8, 2)]
            w += [f"v_cvt_pk_bf16_f32 {v(cv+j)}, {v(cv+2*j)}, {v(cv+2*j+1)}" for j in range(4)]
            w += [f"v_cvt_pk_bf16_f32 {v(c+j)}, {v(u+2*j)}, {v(u+2*j+1)}" for j in range(4)]
            pend = [f"v_mfma_f32_32x32x16_bf16 {v(ZZ,16)}, {v(c,4)}, {v(ON,4)}, {v(ZZ,16) if n else 0}",
                    f"v_mfma_f32_32x32x16_bf16 {v(KV,16)}, {v(c,4)}, {v(cv,4)}, {v(KV,16) if n else 0}"]
            q += self.its(w)
        q += self.its(pend) + [self.tsi("cA_kv"), self.it("v_mov_b32 v13, 1")]
        q += self.its([f"v_cndmask_b32 {v(u+j)}, {v(KV+8+j)}, {v(ZZ+8+j)}, {s(sLM,2)}" for j in range(8)])
        q += self.its([f"ds_write_b128 v90, {v(u,4)}", f"ds_write_b128 v90, {v(u+4,4)} offset:16", "ds_write_b32 v96, v13"])
        q += self.its([f"v_cndmask_b32 {v(ZZ+j)}, {v(ZZ+j)}, {v(KV+j)}, {s(sLM,2)}" for j in range(8)])
        q += [(40, lambda: self.pair_spin([f"ds_read_b128 {v(ZZ+8,4)}, v91", f"ds_read_b128 {v(ZZ+12,4)}, v91 offset:16"]))]
        q += self.its([f"v_pk_add_f32 {v(ZZ+j,2)}, {v(ZZ+j,2)}, {v(ZZ+8+j,2)}" for j in range(0, 8, 2)])
        q += self.its([f"v_pk_mul_f32 {v(ZZ+j,2)}, {v(ZZ+j,2)}, v[0:1] op_sel_hi:[1,0]" for j in range(0, 8, 2)])
        q += self.its([f"v_cvt_pk_bf16_f32 {v(u+j)}, {v(ZZ+2*j)}, {v(ZZ+2*j+1)}" for j in range(4)])
        q += [self.vmi(f"buffer_store_dwordx4 {v(u,4)}, v15, {s(sWS,4)}, s85 offen sc1", "kv"), self.tsi("cA_pub")]
        return q
    def pair_spin(self, reads, off=0):
        a = self.a; L = self.lab("pw"); X = self.lab("pwx")
        a(f"s_mov_b32 {s(sSPIN)}, 0")
        a.label(L)
        a(f"ds_read_b32 v13, v12 offset:{off}")
        for r in reads: a(r)
        a(f"s_add_u32 {s(sSPIN)}, {s(sSPIN)}, 1\ns_cmp_gt_u32 {s(sSPIN)}, {SPIN_MAX}\ns_waitcnt lgkmcnt(0)\ns_cbranch_scc1 {X}")
        a(f"v_cmp_eq_u32 vcc, 0, v13\ns_cbranch_vccnz {L}")
        a.label(X)
    def q_kvflag(self):
        sFL, sHD = 27, 3
        return [self.vmw("kv")] + self.q_flag(sHD) + [self.tsi("cA_flag")]
    def q_phiq(self):
        G = self; u = G.TMP; q = []
        for rb in range(2):
            rl, ep, r = G.GC + rb, G.GC + 2 + rb, G.SG + 4*rb + 1
            for hh in range(2):
                c = G.acc(2, rb) + 8*hh
                w = [f"v_mul_f32 {v(u+j)}, {v(rl)}, {v(c+j)}" for j in range(8)]
                w += [f"v_exp_f32 {v(u+j)}, {v(u+j)} clamp" for j in range(8)]
                w += [f"v_max_f32 {v(c+j)}, {v(ep)}, {v(c+j)}" for j in range(8)]
                w += [f"v_fmac_f32 {v(u+j)}, {v(c+j)}, {v(r)}" for j in range(8)]
                w += [f"v_cvt_pk_bf16_f32 {v(c+j)}, {v(u+2*j)}, {v(u+2*j+1)}" for j in range(4)]
                q += self.its(w)
        return q + [self.tsi("cA_q")]

    def typeA(self):
        a = self.a; G = self; T = G.TMP; vm = self.vm
        vm.q = list(self.vm0)
        a("v_and_b32 v8, 1, v4\nv_lshlrev_b32 v8, 2, v8\nv_sub_u32 v8, v5, v8\nv_mov_b32 v9, 0x3f80\nv_mov_b32 v10, 0x3f800000")
        for k, e in enumerate((0, 2, 8, 10)):
            a(f"v_cmp_eq_u32 vcc, {e}, v8\nv_cndmask_b32 v11, 0, v9, vcc\nv_cmp_eq_u32 vcc, {e+1}, v8\nv_cndmask_b32 {v(G.IDN+k)}, v11, v10, vcc")
        sREC, sFL, sHD = 26, 27, 3
        a(f"s_lshl_b32 {s(sHD)}, {s(sG)}, 1\ns_add_u32 {s(sHD)}, {s(sHD)}, {s(sCH)}\ns_lshl_b32 {s(sHD)}, {s(sHD)}, 1\ns_add_u32 {s(sHD)}, {s(sHD)}, {s(sRH)}")
        a(f"s_mul_i32 {s(sREC)}, {s(sHD)}, 10240\ns_add_u32 {s(sREC)}, {s(sREC)}, {WS_KV}\ns_lshl_b32 {s(sFL)}, {s(sHD)}, {FS+4}\ns_add_u32 {s(sFL)}, {s(sFL)}, {WS_FK}")
        a(f"s_lshl_b32 {s(sHD)}, {s(sI)}, {FS}\ns_add_u32 {s(sHD)}, {s(sHD)}, {s(sFL)}\ns_mul_i32 s85, {s(sI)}, 640\ns_add_u32 s85, s85, {s(sREC)}")
        a(f"v_cmp_gt_u32 {s(sLM,2)}, 16, v2\nv_lshl_add_u32 v12, v3, 4, v2\nv_lshlrev_b32 v12, 4, v12\nv_lshlrev_b32 v13, 6, v3\nv_add_u32 v13, 512, v13")
        a(f"v_cndmask_b32 v14, v13, v12, {s(sLM,2)}")
        a(f"v_lshl_add_u32 v13, v5, 4, v13\nv_cndmask_b32 v15, v13, v12, {s(sLM,2)}\nv_mov_b32 v12, {hx(OOB)}\nv_cmp_gt_u32 vcc, 20, v2\nv_cndmask_b32 v15, v12, v15, vcc")
        a(f"v_mov_b32 v9, {fl(0.6931471805599453)}\nv_cndmask_b32 v0, 1.0, v9, {s(sLM,2)}")
        a(f"v_mov_b32 v10, {fl(1e-6*1.4426950408889634)}\nv_mov_b32 v11, v9")
        o = self.o
        pw = []
        if o["pw"]:
            pw = [("GI", o["pw"]), self.vmi(f"buffer_store_dword {v(G.vNZ)}, {v(G.vFL)}, {s(sWS,4)}, s3 offen sc1", "pw"),
                  self.it(f"s_lshl_b32 {s(sT1)}, {s(sI)}, 1\ns_add_u32 {s(sT1)}, {s(sT1)}, {s(sRH)}\ns_lshl_b32 {s(sT1)}, {s(sT1)}, 4\ns_lshl_b32 {s(sT2)}, {s(sG)}, 1"),
                  self.it(f"s_add_u32 {s(sT1)}, {s(sT1)}, {s(sT2)}\ns_add_u32 {s(sT1)}, {s(sT1)}, {s(sCH)}\ns_lshl_b32 {s(sT1)}, {s(sT1)}, {FS}\ns_add_u32 {s(sT1)}, {s(sT1)}, {WS_FO}"),
                  self.vmi(f"buffer_store_dword {v(G.vNZ)}, {v(G.vFL)}, {s(sWS,4)}, {s(sT1)} offen sc1", "pw")]
        q = self.q_stats("A", pw)
        q += self.its([f"s_mul_i32 {s(sT1)}, {s(sWAVE)}, 1280\ns_add_u32 {s(sT1)}, {s(sT1)}, {SC_KVX}\nv_add_u32 v93, {s(sT1)}, v14",
                       "v_xor_b32 v8, 16, v2", "v_lshl_add_u32 v8, v3, 4, v8", "v_lshlrev_b32 v9, 0, v3", "v_add_u32 v9, 32, v9",
                       f"v_cndmask_b32 v8, v8, v9, {s(sLM,2)}", f"v_lshl_add_u32 v90, v8, 5, {s(sT1)}",
                       f"s_xor_b32 {s(sT1)}, {s(sWAVE)}, 2\ns_mul_i32 {s(sT1)}, {s(sT1)}, 1280\ns_add_u32 {s(sT1)}, {s(sT1)}, {SC_KVX}\nv_add_u32 v92, {s(sT1)}, v14",
                       "v_lshl_add_u32 v8, v3, 4, v2", f"v_cndmask_b32 v8, v9, v8, {s(sLM,2)}", f"v_lshl_add_u32 v91, v8, 5, {s(sT1)}"])
        q += self.its([f"s_lshl_b32 {s(sT1)}, {s(sWAVE)}, 4\ns_add_u32 {s(sT1)}, {s(sT1)}, {SC_FLAG}\nv_mov_b32 v96, {s(sT1)}"])
        q += self.q_kv_pre()
        self.mpass("A", 0, q, o["bud0"])
        self.flush(q + ["NEXT"] + self.q_fixup("A", 0) + self.q_fixup("A", 1) + self.q_kv()); self.lg.q = []
        sREC, sFL = 26, 27
        h0 = self.q_h0()
        GA = G.ACC; KP, ZP = G.ACC + 40, G.ACC + 44
        q = [("GI", o["fmA"])] + self.q_kvflag() + self.q_p2setup() + h0[:2]
        q += self.its(["v_mul_u32_u24 v97, 640, v3", "v_lshl_add_u32 v97, v2, 4, v97",
                       "v_and_b32 v8, 7, v5", "v_lshl_add_u32 v8, v8, 1, v3", "v_mul_u32_u24 v98, 640, v8", "v_and_b32 v9, 1, v4", "v_lshl_add_u32 v98, v9, 6, v98", "v_add_u32 v98, 512, v98",
                       f"s_xor_b32 {s(sT1)}, {s(sWAVE)}, 2\ns_mul_i32 {s(sT1)}, {s(sT1)}, 1280\ns_add_u32 {s(sT1)}, {s(sT1)}, {SC_KVX}\nv_lshl_add_u32 v8, v3, 3, {s(sT1)}",
                       "v_lshl_add_u32 v90, v2, 4, v8", "v_lshl_add_u32 v91, v9, 6, v8", "v_add_u32 v91, 512, v91"])
        q += [self.it(x) for x in (self.ho_base(7, 43).split("\ns_add_u32 " + s(sT5))[0],)]
        q += [self.it("s_add_u32 " + s(sT5) + ("\ns_add_u32 " + s(sT5)).join(self.ho_base(7, 43).split("\ns_add_u32 " + s(sT5))[1:]))]
        q += self.its([f"s_lshl_b32 {s(sT1)}, {s(sI)}, 1\ns_add_u32 {s(sT1)}, {s(sT1)}, {s(sRH)}\ns_lshl_b32 s6, {s(sT1)}, {FS+4}", f"s_lshl_b32 {s(sT1)}, {s(sT0)}, {FS}\ns_add_u32 s6, s6, {s(sT1)}\ns_add_u32 s6, s6, {WS_FO}",
                       f"s_lshl_b32 s4, {s(sRH)}, 16\ns_xor_b32 s5, s4, 65536", "s_add_u32 s4, s4, s7\ns_add_u32 s5, s5, s7"])
        L = self.lab("kf"); R = self.lab("kfok")
        q += [("GI", o["kfs"]), self.vmi(self.fload(11, G.vGP, sFL), "kf")]
        kq = [("GI", o["kfc"]), self.vmw("kf"),
              (0, lambda: a(f"v_cmp_ne_u32 vcc, {s(sNONCE)}, v11\ns_cbranch_vccnz {L}\n{R}:")), self.tsi("cA_poll")]
        self.tail.append(f"{L}:\n" + self.poll_text(G.vGP, 11, sFL, self.lab("kfx"), self.lab("kfy")) + f"\ns_branch {R}")
        def gl(k):
            if k == 8: a(f"buffer_load_dwordx4 {v(GA+32,4)}, v98, {s(sWS,4)}, {s(sREC)} offen sc1")
            else: a((f"s_add_u32 s3, {s(sREC)}, {k*1280}\n" if k % 4 == 0 else "") + f"buffer_load_dwordx4 {v(GA+4*k,4)}, v97, {s(sWS,4)}, s3 offen offset:{1280*(k%4)} sc1")
            vm.issue(("ga", k))
        kq += [(0, lambda k=k: gl(k)) for k in (8, 0, 1, 2, 3, 4, 5, 6, 7)]
        if o["kpos"] == 0: q += kq
        self.mpass("A", 1, q, o["budA"])
        self.ts("c_main")
        pq = self.q_phiq(); h = (len(pq) - 1) // 4 * o["pqh"]
        self.flush(q + ["NEXT"] + self.q_fixup("A", 2))
        if o["kpos"] == 2: self.flush(pq); pq = []
        if o["kpos"]: self.flush(kq)
        self.flush(h0[3:])
        a(f"s_mov_b32 {s(sFL)}, s6")
        a("v_lshlrev_b32 v10, 4, v1\nv_mov_b32 v13, 1")
        self.flush(pq[:h])
        vm.wait(("ga", 8)); a(f"v_mfma_f32_16x16x32_bf16 {v(ZP,4)}, {v(G.IDN,4)}, {v(GA+32,4)}, 0")
        for k in range(8):
            vm.wait(("ga", k)); a(f"v_mfma_f32_16x16x32_bf16 {v(KP,4)}, {v(G.IDN,4)}, {v(GA+4*k,4)}, {v(KP,4) if k else 0}")
        self.ts("cA_gath")
        for m in ("quad_perm:[1,0,3,2]", "quad_perm:[2,3,0,1]", "row_half_mirror"):
            for j in range(4): a(f"v_add_f32_dpp {v(ZP+j)}, {v(ZP+j)}, {v(ZP+j)} {m} row_mask:0xf bank_mask:0xf")
        for r_ in (KP, ZP):
            for j in range(2): a(f"v_cvt_pk_bf16_f32 {v(r_+j)}, {v(r_+2*j)}, {v(r_+2*j+1)}")
        a(f"ds_write_b64 v90, {v(KP,2)}\nds_write_b64 v91, {v(ZP,2)}\nds_write_b32 v96, v13 offset:4")
        self.flush(pq[h:])
        F = [T + 8, T + 12]; t = T; PV = G.XS
        self.pair_spin([f"ds_read_b128 {v(F[0],4)}, v92", f"ds_read_b128 {v(F[1],4)}, v93"], off=4)
        O = [G.ACC + 16*k for k in range(4)]
        for hh in range(2):
            for rb in range(2): a(f"v_mfma_f32_32x32x16_bf16 {v(O[2*rb+hh],16)}, {v(F[hh],4)}, {v(G.acc(2,rb)+8*hh,4)}, 0")
        if not o["ofirst"]: self.p2_pre()
        n = 0
        for hh in range(2):
            for rb in range(2):
                o = O[2*rb+hh]; P = PV + 4*(n & 1); n += 1
                a(f"v_add_f32 {v(t)}, {fl(1e-6)}, {v(o+8)}\nv_rcp_f32 {v(t)}, {v(t)}")
                a(f"s_add_u32 {s(sT4)}, {s(4+hh)}, {rb*131072}")
                for j in range(8): a(f"v_mul_f32 {v(o+j)}, {v(t)}, {v(o+j)}")
                for j in range(4): a(f"v_cvt_pk_bf16_f32 {v(P+j)}, {v(o+2*j)}, {v(o+2*j+1)}")
                a(f"buffer_store_dwordx4 {v(P,4)}, v10, {s(sWS,4)}, {s(sT4)} offen sc1"); vm.issue("o")
        self.ts("cA_o")
        if self.o["ofirst"] and self.stop != "p1":
            self.p2_pre(); vm.wait("o"); self.flush(self.q_flag(sFL)); self.ts("cA_oflag")
            a(f"s_lshl_b32 {s(sT0)}, s2, 2\ns_add_u32 {s(sT0)}, {s(sT0)}, {s(sWAVE)}\ns_lshl_b32 {s(sT0)}, {s(sT0)}, 7\ns_add_u32 {s(sFL)}, {s(sT0)}, {WS_DUM}")
        if self.stop == "p1": vm.wait("o"); self.flush(self.q_flag(sFL))

    Y, S2 = 160, 192
    AR = 16; D = 8
    BF = 48
    vBA = 144
    vA, vXC, vXP, vOUT = 150, 151, 152, 153
    vPW, vDW, vPF, vMF, vGP, vCK, vGF, vLV = 154, 155, 156, 157, 0, 159, 158, 9
    vXR, vGB = 124, 10
    XR = 76
    def q_p2setup(self):
        G = self; out = []
        def a(t):
            cur = []
            for ln in t.split("\n"):
                cur.append(ln)
                if ln.startswith("v_"): out.append(self.it("\n".join(cur))); cur = []
            if cur: out.append(self.it("\n".join(cur)))
        for d, ptr, size in ((sOUT, 20, 2097152), (sB2, 18, 1024)): a(f"s_mov_b32 {s(d)}, {s(ptr)}\ns_mov_b32 {s(d+1)}, {s(ptr+1)}"); a(f"s_mov_b32 {s(d+2)}, {size}\ns_mov_b32 {s(d+3)}, 0x00020000")
        sA = sKST
        a(f"s_lshl_b32 {s(sP1)}, {s(sI)}, 1\ns_add_u32 {s(sP1)}, {s(sP1)}, {s(sHF)}\ns_lshl_b32 {s(sP2)}, {s(sP1)}, 2\ns_add_u32 {s(sP2)}, {s(sP2)}, {s(sWAVE)}\ns_lshl_b32 {s(sA)}, {s(sP2)}, 16")
        if self.o["r2"]:
            a(self.rot2(17, 18, sP2)); a(f"s_lshl_b32 s17, s17, 11\ns_lshl_b32 s18, s18, 11\ns_mov_b32 s16, {s(sA)}")
        a(f"v_lshlrev_b32 {v(G.vA)}, 4, v1")
        a(f"v_lshrrev_b32 v8, 2, v5\nv_lshl_add_u32 v8, v3, 2, v8\ns_lshl_b32 {s(sP2)}, {s(sCH)}, 4\nv_add_u32 v8, {s(sP2)}, v8\nv_lshlrev_b32 v8, 7, v8")
        a("v_and_b32 v9, 1, v5\nv_lshl_add_u32 v8, v9, 3, v8")
        a("v_and_b32 v9, 1, v4\nv_lshlrev_b32 v9, 1, v9\nv_bfe_u32 v0, v5, 1, 1\nv_add_u32 v9, v9, v0\nv_lshrrev_b32 v0, 3, v5\nv_lshlrev_b32 v0, 2, v0\nv_xor_b32 v9, v9, v0")
        a(f"s_lshl_b32 {s(sP2)}, {s(sCH)}, 2\nv_xor_b32 v9, {s(sP2)}, v9")
        a(f"v_lshl_add_u32 {v(G.vBA)}, v9, 4, v8\nv_xor_b32 v9, 4, v9\nv_lshl_add_u32 {v(G.vBA+1)}, v9, 4, v8")
        for w in (1, 2):
            for cb in range(2): a(f"v_add_u32 {v(G.vBA+2*w+cb)}, {65536*w}, {v(G.vBA+cb)}")
        a(f"s_lshl_b32 {s(sP2)}, {s(sWAVE)}, 12\ns_add_u32 {s(sP2)}, {s(sP2)}, {XCH_Y}\nv_add_u32 {v(G.vXC)}, {s(sP2)}, {v(G.vA)}")
        a(f"s_xor_b32 {s(sP2)}, {s(sWAVE)}, 1\ns_lshl_b32 {s(sP2)}, {s(sP2)}, 12\ns_add_u32 {s(sP2)}, {s(sP2)}, {XCH_Y}\nv_add_u32 {v(G.vXP)}, {s(sP2)}, {v(G.vA)}")
        a(f"v_and_b32 v8, 3, v1\nv_lshlrev_b32 v8, 2, v8\nv_add_u32 {v(G.vPW)}, {SC_PROG}, v8\nv_lshlrev_b32 {v(G.vGP)}, {FS}, v5")
        a(f"s_lshl_b32 {s(sP2)}, {s(sWAVE)}, 2\ns_add_u32 {s(sP2)}, {s(sP2)}, {SC_PROG+16}\nv_mov_b32 {v(G.vDW)}, {s(sP2)}")
        a(f"s_lshl_b32 {s(sP2)}, {s(sWAVE)}, 4\ns_add_u32 {s(sP2)}, {s(sP2)}, {SC_FLAG}\nv_mov_b32 {v(G.vMF)}, {s(sP2)}\ns_xor_b32 {s(sP2)}, {s(sP2)}, 16\nv_mov_b32 {v(G.vPF)}, {s(sP2)}")
        a(f"s_lshl_b32 {s(sC0+1)}, {s(sP1)}, {FS+4}\ns_add_u32 {s(sC0+1)}, {s(sC0+1)}, {WS_FO}")
        gs = [int(c) for c in str(self.o["grp"])]; g0 = 0
        a(f"s_mov_b32 {s(sP3)}, {s(sCT)}")
        for n in gs:
            if n > 1:
                a(f"s_lshr_b32 {s(sP2)}, s2, 6\ns_mul_i32 {s(sP2)}, {s(sP2)}, {max(1, (n+1)//4)}\ns_add_u32 {s(sP2)}, {s(sP2)}, {s(sCT)}")
                a(f"s_mul_i32 {s(sP4)}, {s(sP2)}, {-(-256//n)}\ns_lshr_b32 {s(sP4)}, {s(sP4)}, 8\ns_mul_i32 {s(sP4)}, {s(sP4)}, {n}\ns_sub_u32 {s(sP2)}, {s(sP2)}, {s(sP4)}")
                a(f"s_sub_u32 {s(sP2)}, {s(sCT)}, {s(sP2)}\ns_add_u32 {s(sP4)}, {s(sP2)}, {n}\ns_cmp_lt_i32 {s(sP2)}, {g0}\ns_cselect_b32 {s(sP2)}, {s(sP4)}, {s(sP2)}")
                a(f"s_sub_u32 {s(sP4)}, {s(sCT)}, {g0}\ns_cmp_lt_u32 {s(sP4)}, {n}\ns_cselect_b32 {s(sP3)}, {s(sP2)}, {s(sP3)}")
            g0 += n
        a(f"s_lshl_b32 {s(sP3)}, {s(sP3)}, 2\ns_lshl_b32 {s(sP2)}, {s(sHF)}, 1\ns_add_u32 {s(sP3)}, {s(sP3)}, {s(sP2)}\ns_add_u32 {s(sP3)}, {s(sP3)}, {s(sRH)}\ns_lshl_b32 {s(sP3)}, {s(sP3)}, 12")
        a(f"v_bfe_u32 v8, v1, 1, 3\ns_lshl_b32 {s(sP2)}, {s(sCH)}, 2\nv_xor_b32 v8, {s(sP2)}, v8\nv_lshlrev_b32 v8, 4, v8\nv_lshl_add_u32 v8, v3, 3, v8")
        a(f"v_lshl_add_u32 v8, v2, 7, v8\nv_add_u32 {v(G.vXR)}, {s(sP3)}, v8")
        a(f"s_lshl_b32 {s(sP1)}, {s(sP1)}, 1\ns_add_u32 {s(sP1)}, {s(sP1)}, {s(sRH)}\ns_lshl_b32 {s(sP1)}, {s(sP1)}, 15")
        a(f"s_lshl_b32 {s(sP2)}, {s(sCT)}, 1\ns_add_u32 {s(sP2)}, {s(sP2)}, {s(sCH)}\ns_lshl_b32 {s(sP2)}, {s(sP2)}, 6\ns_add_u32 {s(sP1)}, {s(sP1)}, {s(sP2)}")
        a(f"v_lshl_add_u32 v8, v2, 10, {s(sP1)}\nv_lshl_add_u32 {v(G.vOUT)}, v3, 4, v8\ns_mov_b32 {s(sC0+2)}, {s(sP2)}")
        return out

    def phase2(self):
        a = self.a; G = self; D = self.o['D']; sA = sKST
        RING = G.RING
        a.label("L_phase2")
        vm = Cnt(a, "vmcnt", 63); lg = Cnt(a, "lgkmcnt", 15)
        aload = lambda sig: self.aload(vm, sig)
        def breads(sig):
            if sig >= 59: return []
            base = b_lds(sig); w = base >> 16; off = base & 0xffff
            return [f"ds_read_b64_tr_b16 {v(G.BF+8*(sig%3)+4*cb+2*q,2)}, {v(G.vBA+2*w+cb)} offset:{off+1024*q}" for cb in range(2) for q in range(2)]
        def ds(x, tag): a(x); lg.issue(tag)
        def lcheck(vaddr, off, lv, tag, extra=(), ck=G.vCK):
            L = self.lab("lc"); R = self.lab("lcok"); X = self.lab("lcx")
            lg.wait(tag)
            a(f"v_cmp_gt_u32 vcc, {lv}, {v(ck)}\ns_cbranch_vccnz {L}")
            a.label(R)
            ex = "".join(e + "\n" for e in extra)
            self.tail.append(f"""{L}:
s_mov_b32 {s(sSPIN)}, 0
{X}:
ds_read_b32 {v(ck)}, {v(vaddr)} offset:{off}
{ex}s_add_u32 {s(sSPIN)}, {s(sSPIN)}, 1
s_cmp_gt_u32 {s(sSPIN)}, {SPIN_MAX*8}
s_waitcnt lgkmcnt(0)
s_cbranch_scc1 {R}
v_cmp_gt_u32 vcc, {lv}, {v(ck)}
s_cbranch_vccnz {X}
s_branch {R}""")
        def lread(vaddr, off, tag, ck=G.vCK): ds(f"ds_read_b32 {v(ck)}, {v(vaddr)} offset:{off}", tag)
        def lsig(vaddr, off, lv): a(f"v_mov_b32 {v(G.vLV)}, {lv}"); ds(f"ds_write_b32 {v(vaddr)}, {v(G.vLV)} offset:{off}", "sig")
        F4 = self.o["fs4"]; va = G.vGB if F4 else G.vGP
        def gload(soff, r, tag): a(self.fload(r, va, soff)); vm.issue(tag)
        gcheck = lambda soff: self.gcheck(vm, soff, bool(self.o['kearly']), va)
        self.ts("c_p0"); assert self.o["g2h"] < 4
        vm.q = [("A", k) for k in range(8)] + ["gf"] * bool(self.o["kearly"]) + ["pub"] * (4 - self.o["g2h"])
        lsig(G.vDW, 0, 1)
        lread(G.vPW, 0, "ck")
        a(f"v_lshl_add_u32 v8, v2, 1, {s(sC0+2)}\nv_mov_b32 v11, {s(sNONCE)}")
        assert D == 8
        if F4: a(f"v_and_b32 {v(va)}, 3, v1\ns_lshl_b32 {s(sT0)}, {s(sWAVE)}, 2\nv_add_lshl_u32 {v(va)}, {v(va)}, {s(sT0)}, {FS}")
        for sig in range(8, D): aload(sig)
        lcheck(G.vPW, 0, 1, "ck")
        need_prog = {6: 2, 21: 3, 36: 4, 43: 5, 53: 6}
        done_at = {6: 2, 16: 3, 20: 4, 30: 5}
        gat = {15 - D: sC0, 29 - D: sC0, 43 - D: sC0 + 1}
        yr = [f"ds_read_b128 {v(96+4*q,4)}, {v(G.vXP)} offset:{1024*q}" for q in range(4)]
        for sig in range(2):
            for r in breads(sig): ds(r, ("B", sig))
        T = 96; YK = 112; BB = 128; XX = 240
        work = []
        for q in range(8):
            work += [f"v_lshlrev_b32 {v(XX+2*q)}, 16, {v(G.XR+q)}", f"v_and_b32 {v(XX+2*q+1)}, 0xffff0000, {v(G.XR+q)}"]
        work += ["v_cmp_gt_u32 vcc, 32, v1\nv_mov_b32 v12, 0x3f80", f"v_cndmask_b32 {v(BB+4)}, 0, v12, vcc"] + [f"v_mov_b32 {v(BB+k)}, 0" for k in (1, 2, 3, 5, 6, 7)]
        gw = []
        for half in range(2):
            o = 8 * half
            gw += [f"v_add_f32 {v(YK+o+j)}, {v(T+o+j)}, {v(G.Y+o+j)}" for j in range(8)]
            gw += [f"v_mul_f32 {v(T+o+j)}, {fl(-1.4426950408889634)}, {v(YK+o+j)}" for j in range(8)]
            gw += [f"v_exp_f32 {v(T+o+j)}, {v(T+o+j)}" for j in range(8)]
            gw += [f"v_add_f32 {v(T+o+j)}, 1.0, {v(T+o+j)}" for j in range(8)]
            gw += [f"v_rcp_f32 {v(T+o+j)}, {v(T+o+j)}" for j in range(8)]
            gw += [f"v_mul_f32 {v(YK+o+j)}, {v(YK+o+j)}, {v(T+o+j)}" for j in range(8)]
        held = []
        for sig in range(59):
            acc = G.Y if sig < 43 else G.S2; first = sig in (0, 43)
            lg.wait(("B", sig)); vm.wait(("A", sig))
            A = v(RING[sig % D], 4)
            m = [f"v_mfma_f32_32x32x16_bf16 {v(acc+16*cb,16)}, {v(G.BF+8*(sig%3)+4*cb,4)}, {A}, {0 if first else v(acc+16*cb,16)}" for cb in range(2)]
            self.ts(f"c_s{sig}")
            if sig >= 56 and self.o["tl"]:
                for r in breads(sig + 2): ds(r, ("B", sig + 2))
                held.append((m[0], gw[8*(sig-47): 8*(sig-46)])); a(m[1]); continue
            a(m[0])
            if sig in done_at: lsig(G.vDW, 0, done_at[sig])
            if sig in need_prog: lcheck(G.vPW, 0, need_prog[sig], "ck")
            if sig == 44:
                lcheck(G.vPW, 16, 5, "ck")
                for q in range(4): ds(f"ds_write_b128 {v(G.vXC)}, {v(G.Y+16+4*q,4)} offset:{1024*q}", "yw")
                lsig(G.vMF, 8, 1)
            if sig == 47: lcheck(G.vPF, 8, 1, "yr", yr)
            rd = breads(sig + 2)
            for r in rd[:2]: ds(r, ("B", sig + 2))
            fill = []
            if 9 <= sig <= 14: fill = work[4*(sig-9): 4*(sig-8)]
            if sig == 16: fill = ["s_nop 0", f"v_mfma_f32_32x32x16_bf16 {v(G.Y,16)}, {v(BB,4)}, {v(BB+4,4)}, {v(G.Y,16)}"]
            if 47 <= sig <= 58: fill = gw[8*(sig-47): 8*(sig-46)]
            h = len(fill) // 2
            for f in fill[:h]: a(f)
            a(m[1])
            for r in rd[2:]: ds(r, ("B", sig + 2))
            if sig + 1 in need_prog: lread(G.vPW, 0, "ck")
            if sig == 43: lread(G.vPW, 16, "ck")
            if sig == 45:
                lread(G.vPF, 8, "yr")
                for r in yr: ds(r, "yr")
            if sig == self.o["pf"]:
                vm.wait("pub"); a(f"buffer_store_dword v11, {v(G.vFL)}, {s(sWS,4)}, s27 offen sc1"); vm.issue("f"); self.ts("c_pflag")
            if F4:
                lvl = lambda k: sorted(gat).index(k) + 1
                if sig + 2 in gat: gcheck(gat[sig + 2]); lsig(G.vDW, 16, lvl(sig + 2))
                if sig + 1 in gat: lread(G.vPW, 32, "sn", G.vGF)
                if sig in gat: self.ts(f"c_gp{sig}"); lcheck(G.vPW, 32, lvl(sig), "sn", ck=G.vGF); self.ts(f"c_g{sig}")
            elif sig in gat: self.ts(f"c_gp{sig}"); gcheck(gat[sig]); self.ts(f"c_g{sig}")
            aload(sig + D)
            if sig == 0: a(f"buffer_load_ushort {v(BB)}, v8, {s(sB2,4)}, 0 offen"); vm.issue("x")
            if sig == 15: vm.wait("x")
            ke = self.o["kearly"] or self.o["kpoll"] + 2 * F4
            if self.o["kearly"] and sig + self.o["kpoll"] in gat: gload(gat[sig + self.o["kpoll"]], G.vGB, "gb")
            if sig + ke in gat and (sig > 7 or not self.o["kearly"]):
                so = gat[sig + ke]
                if so == sC0: a(f"s_add_u32 {s(sC0)}, {s(sC0)}, {FG}")
                gload(so, G.vGF, "gf")
            for f in fill[h:]: a(f)
        for m0, f in held[:2]:
            a(m0)
            for x in f: a(x)
        self.ts("c_loop")
        for q in range(4): ds(f"ds_write_b128 {v(G.vXC)}, {v(G.S2+16+4*q,4)} offset:{16384+1024*q}", "sw")
        lsig(G.vMF, 12, 1)
        for m0, f in held[2:]:
            a(m0)
            for x in f: a(x)
        sr = [f"ds_read_b128 {v(T+4*q,4)}, {v(G.vXP)} offset:{16384+1024*q}" for q in range(4)]
        lread(G.vPF, 12, "sr")
        for r in sr: ds(r, "sr")
        for j in range(0, 16, 2): a(f"v_pk_fma_f32 {v(XX+j,2)}, {v(G.S2+j,2)}, {v(YK+j,2)}, {v(XX+j,2)}")
        lcheck(G.vPF, 12, 1, "sr", sr)
        for half in range(2):
            o = 8 * half; P = BB + 8 + 4 * half
            for j in range(0, 8, 2): a(f"v_pk_fma_f32 {v(XX+o+j,2)}, {v(T+o+j,2)}, {v(YK+o+j,2)}, {v(XX+o+j,2)}")
            for j in range(4): a(f"v_cvt_pk_bf16_f32 {v(P+j)}, {v(XX+o+2*j)}, {v(XX+o+2*j+1)}")
            a(f"v_permlane32_swap_b32 {v(P)}, {v(P+2)}\nv_permlane32_swap_b32 {v(P+1)}, {v(P+3)}")
            a(f"buffer_store_dwordx4 {v(P,4)}, {v(G.vOUT)}, {s(sOUT,4)}, 0 offen offset:{32*half} {['', 'sc1', 'nt', 'sc0 sc1', 'sc1 nt'][self.o['osc']]}")
        self.ts("c_end")
        self.ts_flush()

    def build(self):
        a = self.a
        self.prologue()
        self.compute_setup()
        self.typeA()
        if self.stop == "p1": self.ts_flush(); a("s_endpgm")
        else: a("s_branch L_phase2")
        a.label("L_typeB")
        self.typeB()
        if self.stop == "p1": self.ts_flush(); a("s_endpgm")
        else: self.phase2()
        a.label("L_end")
        a("s_endpgm")
        for t in self.tail: a(t)
        a("L_last:\ns_endpgm")
        body = a.finalize(verbose=True)
        head = open("cdna_kernels/" + KN[:-7] + ".s.ref").read().split("; Override launch")[0]
        return head + f"""; @launch grid=(256,1,1) block=(512,1,1) lds={LDS_SIZE}
.amdgcn_target "amdgcn-amd-amdhsa--gfx950"
.text
.globl {KN}
.p2align 8
.type {KN},@function
{KN}:
{body}
.section .rodata,"a"
.p2align 6
.amdhsa_kernel {KN}
  .amdhsa_next_free_vgpr 256
  .amdhsa_next_free_sgpr 102
  .amdhsa_accum_offset 256
  .amdhsa_group_segment_fixed_size 0
  .amdhsa_kernarg_size 88
  .amdhsa_user_sgpr_count 2
  .amdhsa_user_sgpr_kernarg_segment_ptr 1
  .amdhsa_system_sgpr_workgroup_id_x 1
.end_amdhsa_kernel
"""

if __name__ == "__main__":
    import argparse
    ap = argparse.ArgumentParser()
    ap.add_argument("out"); ap.add_argument("--diag", nargs="?", const="rt"); ap.add_argument("--stop"); ap.add_argument("--dbgout", action="store_true"); ap.add_argument("--marks"); ap.add_argument("--opts"); ap.add_argument("--probe")
    x = ap.parse_args()
    open(x.out, "w").write(Gen(diag=x.diag, stop=x.stop, dbgout=x.dbgout, marks=x.marks, opts=x.opts, probe=x.probe).build())
```

```python
import sys, struct
from asmlib import Asm, v, s

KN = "recurrent_scan__linear_attn_block__dense_activation_gelu__prompt_kernel"
def f2u(x): return struct.unpack("<I", struct.pack("<f", x))[0]
def hx(x): return f"0x{x & 0xffffffff:08x}"
def fl(x): return hx(f2u(x))

WS_HO = 0
WS_KV = 24 << 20
WS_ST = 9 << 20
FS = 7
FG = 16 << FS
WS_FH = WS_KV + 0x80000
WS_FO = WS_FH + 96 * FG
WS_FK = WS_FO + 32 * FG
WS_DUM = 11 << 20
WS_TS = 12 << 20
WS_SIZE = 268435456
OOB = 0x80000000
WR = 131072
SCR = 155648
SC_NONCE = SCR
SC_FLAG = SCR + 64
SC_PROG = SC_FLAG + 64
SC_CS = SCR + 256
SC_R = SCR + 2048
SC_KVX = SCR + 3072
LDS_SIZE = 163840
NSLOT = 38
def b_lds(sig): return (sig % NSLOT) * 4096
XCH_Y = 21 * 4096
XT = 29 * 4096
ORDER = []
for p in range(3):
    for g in range(8):
        for ch in range(2):
            f = 6 * g + 2 * p + ch
            if f < 43: ORDER.append(("w2", f))
ORDER += [("wo", f) for f in range(16)]
assert len(ORDER) == 59
SIG0 = [0, 15, 29]
def pos_of(sig):
    st = 3 if sig >= 43 else 2 if sig >= 29 else 1 if sig >= 15 else 0
    j = sig - (SIG0 + [43])[st]
    return st, j >> 1, j & 1
def hoff(sig, lay=0):
    if not lay: return sig * 1024
    if lay == 2: return (sig >> 3) * 16384 + (sig & 7) * 1024
    par = int(sig >= 29); t = sig - 29 * par
    return (t >> 3) * 16384 + par * 8192 + (t & 7) * 1024
SPIN_MAX = 1 << 18

sX, sW, sW2, sWO, sWS, sDBG, sOUT, sB1, sB2 = 28, 32, 36, 40, 44, 48, 52, 56, 60
sWAVE, sI, sG, sTYPE, sHF, sCT, sKST, sRH, sCH, sNONCE, sSTR = 64, 65, 66, 67, 68, 69, 70, 71, 72, 73, 74
sT0, sT1, sT2, sT3, sT4, sT5 = 75, 76, 77, 78, 79, 80
sC0 = 81
sSPIN = 84
sM = 86
sLM = 60
sWD = 10
sP1, sP2, sP3, sP4 = 12, 13, 14, 15
sWB = 56
sTS = 88

class Cnt:
    def __init__(self, a, name, mx): self.a, self.name, self.mx, self.q = a, name, mx, []
    def issue(self, tag): self.q.append(tag)
    def wait(self, tag):
        if tag not in self.q: return
        k = len(self.q) - 1 - max(i for i, t in enumerate(self.q) if t == tag)
        k = min(k, self.mx)
        self.a(f"s_waitcnt {self.name}({k})")
        self.q = self.q[len(self.q) - k:] if k else []
    def wait_all(self):
        self.a(f"s_waitcnt {self.name}(0)"); self.q = []

class Gen:
    def __init__(self, diag=False, stop=None, dbgout=False, marks=None, opts=None, probe=None):
        self.probe = tuple(int(x) for x in probe.split(',')) if probe else None
        self.o = dict(cpf=5, wt=3, xe=1, w2t=4, t1=14, t2=1, pk=1, kpoll=3, D=8, asc=1, xl=1, mp=1, seg=0, fsc=0,
                      bud0=24, bud2=64, budA=30, nE=33, nL=4, pe0=14, nEA=35, nLA=21, pe0A=15, burst=16, fm=12, fmA=3, ga=20, gc=26, thr=0, fl=32, pre=1, chk=2, pf=4, g2h=3, lay=0, kfs=13, kfc=13, pqh=3, w2s=0, ld=1, t3=0, grp=1223, osc=0, kearly=0, psc=0, pw=0, r2=0, r2m=2, sw=0, sw0=1, sw1=9, swn=4, slp=0, prio=0, m0n=4, mint=3, tl=1, kpos=1, ofirst=0, bk=16, latp=-1, psh=2, pwg=-1, gateA=0, gateB=0, stg=0, e1=0, fs4=0, ow=0, owk=6, e4=0, nd=3, mw=1, gl=0, r2c=1, w7=0, w7s=2)
        for kv in (opts or '').split(','):
            if kv: k, x = kv.split('='); assert k in self.o, k; self.o[k] = int(x)
        self.SS = 17 if self.o['lay'] == 2 else 16
        self.dbgout = dbgout; self.verbose = True
        self.marks = {"start": 0}
        for grp in (marks or "c_bar0,c_main,cA_q|cB_gelu,c_p0,c_loop,c_end;l_bar0,l_bar8,l_bland,l_p0,l_p3,l_end").split(";"):
            for k, nm in enumerate(grp.split(",")):
                for x in nm.split("|"): self.marks[x] = k + 1
        self.a = Asm(); self.diag = diag; self.stop = stop; self.uid = 0; self.tail = []
    def lab(self, n): self.uid += 1; return f"L{n}_{self.uid}"
    def ts(self, name):
        if not self.diag or name not in self.marks: return
        k = self.marks[name]
        if self.diag == "both":
            if k == 0: self.a(f"s_memrealtime {s(sTS, 2)}")
            elif k <= 3: self.a(f"s_memrealtime {s(sTS + 2 * k, 2)}\ns_memtime {s(sTS + 2 * k + 6, 2)}")
            return
        self.a(f"{'s_memtime' if self.diag == 'cyc' else 's_memrealtime'} {s(sTS + 2 * k, 2)}")
    def ts_flush(self):
        if not self.diag: return
        a = self.a
        if self.probe:
            pa, pb = self.probe
            L = self.lab("probe"); X = self.lab("probex")
            op = 's_memtime' if self.diag == 'cyc' else 's_memrealtime'
            a(f"s_cmp_ge_u32 {s(sWAVE)}, 4\ns_cbranch_scc1 {X}")
            if self.o["pwg"] >= 0: a(f"s_lshl_b32 {s(sT0)}, s2, 2\ns_add_u32 {s(sT0)}, {s(sT0)}, {s(sWAVE)}\ns_cmp_lg_u32 {s(sT0)}, {self.o['pwg']}\ns_cbranch_scc1 {X}")
            a(f"{op} {s(sM,2)}\ns_waitcnt lgkmcnt(0)")
            if pa < 0: a(f"s_mov_b32 {s(sT0)}, {pb}")
            else: a(f"s_sub_u32 {s(sT0)}, {s(sTS+2*pb)}, {s(sTS+2*pa)}\ns_lshl_b32 {s(sT0)}, {s(sT0)}, {self.o['psh']}")
            a(f"s_min_u32 {s(sT0)}, {s(sT0)}, 400000\ns_mov_b32 {s(sT1)}, {s(sM)}")
            a.label(L)
            a(f"{op} {s(sM,2)}\ns_waitcnt lgkmcnt(0)\ns_sub_u32 {s(sT2)}, {s(sM)}, {s(sT1)}\ns_cmp_lt_u32 {s(sT2)}, {s(sT0)}\ns_cbranch_scc1 {L}")
            a.label(X)
            return
        a("s_waitcnt lgkmcnt(0)")
        a(f"s_lshl_b32 {s(sT0)}, s2, 3\ns_add_u32 {s(sT0)}, {s(sT0)}, {s(sWAVE)}\ns_lshl_b32 {s(sT0)}, {s(sT0)}, 5\ns_add_u32 {s(sT0)}, {s(sT0)}, {WS_TS}")
        for k in range(7): a(f"v_mov_b32 v{8+k}, {s(sTS+2*k)}")
        a("v_mov_b32 v15, 0\nv_mov_b32 v7, 0")
        a("s_mov_b64 exec, 1")
        a(f"buffer_store_dwordx4 v[8:11], v7, {s(sWS,4)}, {s(sT0)} offen")
        a(f"buffer_store_dwordx4 v[12:15], v7, {s(sWS,4)}, {s(sT0)} offen offset:16")
        if self.dbgout:
            L = self.lab("dbgo")
            self.srd(sDBG, 22, 256)
            a(f"s_cmp_lg_u32 {s(sWAVE)}, 0\ns_cbranch_scc1 {L}\ns_and_b32 {s(sT0)}, s2, 0xdf\ns_cmp_lg_u32 {s(sT0)}, 0\ns_cbranch_scc1 {L}")
            for k in range(6, -1, -1): a(f"v_subrev_u32 v{8+k}, {s(sTS)}, v{8+k}")
            a(f"s_add_u32 {s(sT0)}, s2, 4")
            a(f"buffer_store_dwordx4 v[9:12], v7, {s(sDBG,4)}, {s(sT0)} offen".replace("v[9:12]", "v[8:11]"))
            a(f"buffer_store_dwordx3 v[12:14], v7, {s(sDBG,4)}, {s(sT0)} offen offset:16")
            a.label(L)
        a("s_mov_b64 exec, -1")

    def srd(self, d, ptr, size):
        self.a(f"s_mov_b32 {s(d)}, {s(ptr)}\ns_mov_b32 {s(d+1)}, {s(ptr+1)}\ns_mov_b32 {s(d+2)}, {size}\ns_mov_b32 {s(d+3)}, 0x00020000")

    def rot2(self, r7, r8, t):
        return (f"s_lshr_b32 {s(r8)}, s2, 6\ns_mul_i32 {s(r8)}, {s(r8)}, {self.o['r2m']}\ns_add_u32 {s(r8)}, {s(r8)}, {s(sCT) if self.o['r2c'] else 0}\n"
                f"s_mul_i32 {s(t)}, {s(r8)}, 37\ns_lshr_b32 {s(t)}, {s(t)}, 8\ns_mul_i32 {s(t)}, {s(t)}, 7\ns_sub_u32 {s(r7)}, {s(r8)}, {s(t)}\ns_and_b32 {s(r8)}, {s(r8)}, 7")
    def fload(self, r, va, so):
        k = self.o["psc"]
        if k == 4: return f"v_mov_b32 {v(r)}, 0\nbuffer_atomic_or {v(r)}, {v(va)}, {s(sWS,4)}, {s(so)} offen sc0 sc1"
        return f"buffer_load_dword {v(r)}, {v(va)}, {s(sWS,4)}, {s(so)} offen {['sc1', 'sc0 sc1', 'sc1 nt', 'sc0 sc1 nt'][k]}"
    def poll_text(self, vaddr, vtmp, soff, L, X):
        if self.o["mp"]:
            return (f"s_mov_b32 {s(sSPIN)}, 0\ns_mov_b64 exec, 0xffff\n{L}:\n"
                    f"{self.fload(vtmp, vaddr, soff)}\n"
                    f"s_add_u32 {s(sSPIN)}, {s(sSPIN)}, 1\ns_cmp_gt_u32 {s(sSPIN)}, {SPIN_MAX}\ns_waitcnt vmcnt(0)\ns_cbranch_scc1 {X}\n"
                    f"v_cmp_ne_u32 vcc, {s(sNONCE)}, {v(vtmp)}\ns_and_b64 exec, exec, vcc\ns_cbranch_execnz {L}\n{X}:\ns_mov_b64 exec, -1")
        return (f"s_mov_b32 {s(sSPIN)}, 0\n{L}:\n"
                f"{self.fload(vtmp, vaddr, soff)}\n"
                f"s_add_u32 {s(sSPIN)}, {s(sSPIN)}, 1\ns_cmp_gt_u32 {s(sSPIN)}, {SPIN_MAX}\ns_waitcnt vmcnt(0)\ns_cbranch_scc1 {X}\n"
                f"v_cmp_ne_u32 vcc, {s(sNONCE)}, {v(vtmp)}\ns_cbranch_vccnz {L}\n{X}:")
    def poll(self, vaddr, vtmp, soff):
        self.a(self.poll_text(vaddr, vtmp, soff, self.lab("poll"), self.lab("pollx")))

    def prologue(self):
        a = self.a
        a("s_cmp_ge_u32 s2, 256\ns_cbranch_scc1 L_end")
        a("s_load_dwordx16 s[4:19], s[0:1], 0\ns_load_dwordx4 s[20:23], s[0:1], 64\ns_load_dwordx2 s[24:25], s[0:1], 80")
        if self.diag:
            for k in range(1, 7): a(f"s_mov_b32 {s(sTS+2*k)}, 0")
        self.ts("start")
        if self.o["cpf"] >= 2:
            n = self.o["cpf"]
            a(f"s_getpc_b64 s[26:27]\nL_pc:\ns_bfe_u32 s3, s2, {0x30003 if n == 5 else 0x20003 if n == 10 else 0x10003}\ns_mul_i32 s3, s3, {8*n}\nv_lshrrev_b32 v3, 6, v0\nv_and_b32 v4, 63, v0\nv_min_u32 v4, {n-1}, v4\nv_mad_u32_u24 v3, v3, {n}, v4")
            a(f"v_add_lshl_u32 v3, v3, s3, 7\nv_min_u32 v3, L_last-L_pc, v3\nglobal_load_dword {v(self.vDUM)}, v3, s[26:27]")
        elif self.o["cpf"]:
            a(f"s_getpc_b64 s[26:27]\nL_pc:\nv_lshlrev_b32 v3, 7, v0\nv_min_u32 v3, L_last-L_pc, v3\nglobal_load_dword {v(self.vDUM)}, v3, s[26:27]")
        a("v_lshrrev_b32 v2, 6, v0\nv_and_b32 v1, 63, v0")
        a(f"s_and_b32 {s(sT0)}, s2, 3")
        a(f"v_readfirstlane_b32 {s(sWAVE)}, v2")
        a(f"s_bfe_u32 {s(sHF)}, s2, 0x10002")
        a(f"s_bfe_u32 {s(sCT)}, s2, 0x30003")
        a(f"s_lshr_b32 {s(sI)}, s2, 6\ns_lshl_b32 {s(sI)}, {s(sI)}, 2\ns_add_u32 {s(sI)}, {s(sI)}, {s(sT0)}")
        if self.o["seg"]: a(f"s_mov_b32 {s(sTYPE)}, {s(sHF)}\ns_mov_b32 {s(sG)}, {s(sCT)}")
        else:
            a(f"s_lshr_b32 {s(sTYPE)}, {s(sCT)}, 2")
            a(f"s_and_b32 {s(sG)}, {s(sCT)}, 3\ns_lshl_b32 {s(sT0)}, {s(sHF)}, 2\ns_add_u32 {s(sG)}, {s(sG)}, {s(sT0)}")
        a(f"s_lshl_b32 {s(sT0)}, {s(sG)}, 7\ns_mul_i32 {s(sT1)}, {s(sG)}, 384")
        a(f"s_add_u32 {s(sT2)}, {s(sT0)}, 1024\ns_add_u32 {s(sT3)}, {s(sT0)}, 2048\ns_add_u32 {s(sT4)}, {s(sT1)}, 128\ns_add_u32 {s(sT5)}, {s(sT1)}, 256")
        a(f"s_cmp_eq_u32 {s(sTYPE)}, 0")
        a(f"s_movk_i32 {s(sSTR)}, 2752\ns_cselect_b32 {s(sSTR)}, 3072, {s(sSTR)}")
        a(f"s_cselect_b32 {s(sC0)}, {s(sT2)}, {s(sT1)}\ns_cselect_b32 {s(sC0+1)}, {s(sT3)}, {s(sT4)}\ns_cselect_b32 {s(sC0+2)}, {s(sT0)}, {s(sT5)}")
        a(f"s_cmp_ge_u32 {s(sWAVE)}, 4\ns_cbranch_scc1 L_loader")

    def loader(self):
        a = self.a
        vX, vW, vB, vP, vT, vL, PARK = 10, 14, 20, 21, 22, 24, 32
        sWK, sKX, sKW, sXB, sF = 85, 26, 27, 3, sT5
        a.label("L_loader")
        if self.o["prio"] == 2: a("s_setprio 1")
        a(f"s_and_b32 {s(sWK)}, {s(sWAVE)}, 3")
        a("v_lshrrev_b32 v2, 3, v1\nv_and_b32 v3, 7, v1\nv_lshrrev_b32 v4, 4, v1")
        a(f"s_and_b32 {s(sT0)}, {s(sWK)}, 1\ns_lshl_b32 {s(sT0)}, {s(sT0)}, 2\ns_lshl_b32 {s(sT1)}, {s(sWK)}, 3")
        a(f"v_add_u32 v5, {s(sT0)}, v4\nv_xor_b32 v5, v3, v5\nv_lshlrev_b32 v5, 4, v5")
        a(f"v_add_u32 v6, {s(sT1)}, v2")
        a(f"v_lshl_add_u32 {v(vX)}, v6, 10, v5")
        for m in range(1, 4): a(f"v_add_u32 {v(vX+m)}, {m*32768}, {v(vX)}")
        a("v_and_b32 v7, 1, v4\nv_lshlrev_b32 v7, 2, v7\nv_xor_b32 v7, v3, v7\nv_lshlrev_b32 v7, 4, v7")
        a(f"v_mul_u32_u24 v8, {s(sSTR)}, v6")
        a(f"s_lshl_b32 {s(sT2)}, {s(sSTR)}, 5\nv_mov_b32 v2, {hx(OOB)}")
        for p in range(3):
            a(f"v_add_u32 v9, {s(sC0+p)}, v7\nv_cmp_gt_u32 vcc, {s(sSTR)}, v9\nv_add_u32 v9, v8, v9\nv_add_u32 v3, {s(sT2)}, v9")
            a(f"v_cndmask_b32 {v(vW+2*p)}, v2, v9, vcc\nv_cndmask_b32 {v(vW+2*p+1)}, v2, v3, vcc")
        a(f"s_lshl_b32 {s(sWK)}, {s(sWK)}, 10\ns_lshl_b32 {s(sXB)}, {s(sI)}, 17\ns_lshl_b32 {s(sT3)}, {s(sSTR)}, 5")
        self.ts("l_pre")
        a("s_waitcnt lgkmcnt(0)")
        self.srd(sX, 4, 2097152)
        a(f"s_lshl_b32 {s(sW+2)}, {s(sSTR)}, 9\ns_mov_b32 {s(sW+3)}, 0x00020000\ns_cmp_eq_u32 {s(sTYPE)}, 0")
        a(f"s_cselect_b32 {s(sW)}, s6, s12\ns_cselect_b32 {s(sW+1)}, s7, s13")
        self.ts("l_karg")
        vm = Cnt(a, "vmcnt", 63)
        def bsrc(sig):
            mat, f = ORDER[sig]; st, j2, ch = pos_of(sig)
            if not self.o["r2"] or sig == 14: a(f"s_mov_b32 {s(sF)}, {f*32768}")
            elif st < 3: a(f"s_add_u32 {s(sF)}, {s(4+j2)}, {(2*st+ch)*32768}")
            else: a(f"s_add_u32 {s(sF)}, {s(11+j2)}, {ch*32768}")
            return s(sW2 if mat == 'w2' else sWO, 4)
        gs = [int(c) for c in str(self.o["grp"])]; assert sum(gs) == 8
        grp_of = [(sum(gs[:n]), gs[n]) for n in range(len(gs)) for _ in range(gs[n])]
        rot = lambda pos: grp_of[pos][1] > 1
        sK0 = 56
        def ktable(lo, hi):
            for pos in range(lo, hi):
                g0, n = grp_of[pos]
                if n == 1: continue
                if pos == g0:
                    a(f"s_lshr_b32 {s(sT1)}, s2, 6\ns_mul_i32 {s(sT1)}, {s(sT1)}, {max(1, (n+1)//4)}\ns_add_u32 {s(sT1)}, {s(sT1)}, {s(sCT)}")
                    a(f"s_mul_i32 {s(sT0)}, {s(sT1)}, {-(-256//n)}\ns_lshr_b32 {s(sT0)}, {s(sT0)}, 8\ns_mul_i32 {s(sT0)}, {s(sT0)}, {n}\ns_sub_u32 {s(sT1)}, {s(sT1)}, {s(sT0)}\ns_add_u32 {s(sK0+pos)}, {s(sT1)}, {g0}")
                else:
                    a(f"s_add_u32 {s(sK0+pos)}, {s(sK0+pos-1)}, 1\ns_cmp_eq_u32 {s(sK0+pos)}, {g0+n}\ns_cselect_b32 {s(sK0+pos)}, {g0}, {s(sK0+pos)}")
        def wst(st, reg=False):
            pos = st // 2 if st < 16 else st - 16
            if rot(pos):
                a(f"s_lshl_b32 {s(sKW)}, {s(sK0+pos)}, 1" + (f"\ns_add_u32 {s(sKW)}, {s(sKW)}, 1" if st < 16 and st & 1 else "") + f"\ns_mul_i32 {s(sKW)}, {s(sKW)}, {s(sT3)}")
            else: a(f"s_mul_i32 {s(sKW)}, {s(sT3)}, {st if st < 16 else 2*(st-16)}")
            for m in range(2):
                if reg:
                    a(f"buffer_load_dwordx4 {v(224 + 8*(st % 4) + 4*m, 4)}, {v(vW + (2*m if st < 16 else 4+m))}, {s(sW,4)}, {s(sKW)} offen"); vm.issue(("R", st))
                    continue
                a(f"s_add_u32 m0, {s(sWK)}, {WR + (st % 3)*8192 + m*4096}")
                a(f"buffer_load_dwordx4 {v(vW + (2*m if st < 16 else 4+m))}, {s(sW,4)}, {s(sKW)} offen lds"); vm.issue(("S", st))
        STG = self.o["stg"]
        def feed(k):
            if self.o["e1"] == 2 and 1 < k < 14: return
            if not STG: wst(k + 2); xpair(k + 3); return
            if k == 0: wst(2); xpair(3); wst(3, True); xpair(4)
            if k + 4 <= STG: wst(k + 4, True)
            if STG < k + 2 < 24: wst(k + 2)
            xpair(k + 5)
            if 3 <= k + 2 <= STG:
                vm.wait(("R", k + 2))
                for m in range(2): a(f"ds_write_b128 {v(vL+2)}, {v(224 + 8*((k+2) % 4) + 4*m, 4)} offset:{WR - 131072 + ((k+2) % 3)*8192 + m*4096}")
        def ready(k):
            if self.o["e1"] and 2 < k < 16: return
            vm.wait(("S", k))
            if 3 <= k <= STG: a(f"s_waitcnt lgkmcnt({2 if k + 1 <= STG else 0})")
        def xpair(n):
            k = n >> 1
            if k >= 8: return
            if rot(k): a(f"s_lshl_b32 {s(sKX)}, {s(sK0+k)}, 7\ns_add_u32 {s(sKX)}, {s(sKX)}, {s(sXB)}")
            else: a(f"s_add_u32 {s(sKX)}, {s(sXB)}, {128*k}")
            for mm in (2*(n & 1), 2*(n & 1) + 1):
                a(f"s_add_u32 m0, {s(sWK)}, {k*16384 + mm*4096}")
                a(f"buffer_load_dwordx4 {v(vX+mm)}, {s(sX,4)}, {s(sKX)} offen lds"); vm.issue(("S", 2*k))
        st_ = dict(nE=0)
        preg = lambda sig: PARK + 4*sig if sig < st_["nE"] else PARK + 4*(st_["nE"] + sig - NSLOT)
        def bstep(sig):
            a(f"s_add_u32 m0, {s(sWK)}, {b_lds(sig)}")
            srd = bsrc(sig)
            a(f"buffer_load_dwordx4 {v(vB)}, {srd}, {s(sF)} offen lds"); vm.issue(("B", sig))
        def park(sig):
            srd = bsrc(sig)
            a(f"buffer_load_dwordx4 {v(preg(sig),4)}, {v(vB)}, {srd}, {s(sF)} offen"); vm.issue(("B", sig))
        def put(sig):
            base = b_lds(sig); w = base >> 16
            a(f"ds_write_b128 {v(vL+w)}, {v(preg(sig),4)} offset:{base-65536*w}")
        if self.o["ld"]: a("s_barrier")
        ktable(0, 1); wst(0); xpair(0); xpair(1); self.ts("l_s0"); wst(1); ktable(1, 8); xpair(2); self.ts("l_s2")
        vPG, vDN = 28, 29
        self.srd(sW2, 16, 1409024); self.srd(sWO, 8, 524288); self.srd(sWS, 24, WS_SIZE)
        if self.o["r2"]:
            a(self.rot2(sT0, sT1, sT2))
            for base, n, r, step in ((4, 7, sT0, 6*32768), (11, 8, sT1, 2*32768)):
                a(f"s_mul_i32 {s(base)}, {s(r)}, {step}")
                for j in range(1, n): a(f"s_add_u32 {s(base+j)}, {s(base+j-1)}, {step}\ns_cmp_eq_u32 {s(base+j)}, {n*step}\ns_cselect_b32 {s(base+j)}, 0, {s(base+j)}")
        a(f"s_lshl_b32 {s(sT0)}, {s(sCT)}, 7\nv_lshl_add_u32 {v(vB)}, v6, 10, v7\nv_add_u32 {v(vB)}, {s(sT0)}, {v(vB)}")
        a(f"v_lshl_add_u32 {v(vL)}, v1, 4, {s(sWK)}\nv_add_u32 {v(vL+1)}, 65536, {v(vL)}\nv_add_u32 {v(vL+2)}, 131072, {v(vL)}")
        a(f"s_lshr_b32 {s(sT0)}, {s(sWK)}, 8\ns_add_u32 {s(sT0)}, {s(sT0)}, {SC_PROG}\nv_mov_b32 {v(vPG)}, {s(sT0)}")
        a(f"v_and_b32 {v(vDN)}, 3, v1\nv_lshlrev_b32 {v(vDN)}, 2, {v(vDN)}\nv_add_u32 {v(vDN)}, {SC_PROG+16}, {v(vDN)}")
        def prog(lv): a(f"v_mov_b32 {v(vT)}, {lv}\nds_write_b32 {v(vPG)}, {v(vT)}")
        sw = self.o["sw"]; tq = [[], []]
        if sw:
            assert not self.o["r2"]
            a(f"s_lshr_b32 {s(sT1)}, {s(sWK)}, 10\ns_lshl_b32 {s(sT0)}, s2, 2\ns_add_u32 {s(sT0)}, {s(sT0)}, {s(sT1)}")
            a(f"s_mul_i32 {s(sT2)}, {s(sT0)}, 1376\ns_add_u32 s10, s16, {s(sT2)}\ns_addc_u32 s11, s17, 0\ns_lshl_b32 {s(sT2)}, {s(sT0)}, 9\ns_add_u32 s12, s8, {s(sT2)}\ns_addc_u32 s13, s9, 0")
            a(f"s_lshr_b32 {s(sT0)}, s2, 3\ns_mul_i32 {s(sT2)}, {s(sT1)}, 11\ns_min_u32 {s(sT2)}, {s(sT2)}, 32\ns_mul_i32 s14, {s(sT0)}, 43\ns_add_u32 {s(sT2)}, {s(sT2)}, s14\ns_lshl_b32 {s(sT2)}, {s(sT2)}, 10\ns_add_u32 s14, s16, {s(sT2)}\ns_addc_u32 s15, s17, 0")
            a(f"s_lshl_b32 {s(sT0)}, {s(sT0)}, 2\ns_add_u32 {s(sT0)}, {s(sT0)}, {s(sT1)}\ns_lshl_b32 {s(sT0)}, {s(sT0)}, 12\ns_add_u32 s18, s8, {s(sT0)}\ns_addc_u32 s19, s9, 0")
            if sw & 1: tq[0] = [f"s_load_dword s20, s[10:11], {64*u}" for u in range(22)] + [f"s_load_dword s20, s[12:13], {64*u}" for u in range(8)]
            if sw & 2: tq[1] = [f"s_load_dword s20, s[14:15], {1024*r + 384 + u}" for r in range(11) for u in (0, 64)] + [f"s_load_dword s20, s[18:19], {1024*r + 384 + u}" for r in range(4) for u in (0, 64)]
        def touch(k, tq):
            for j in range(2):
                if k >= self.o[f"sw{j}"]:
                    for x in tq[j][:self.o["swn"]]: a(x)
                    tq[j] = tq[j][self.o["swn"]:]
        N = 24; KS = 12
        for k in range(KS):
            ready(k); self.ts(f"l_land{k}"); a("s_barrier"); self.ts(f"l_bar{k}")
            feed(k); touch(k, tq)
            if self.o["ow"] and k == self.o["owk"]:
                self.srd(sOUT, 20, 2097152)
                a(f"s_lshl_b32 {s(sT0)}, {s(sI)}, 1\ns_add_u32 {s(sT0)}, {s(sT0)}, {s(sHF)}\ns_lshl_b32 {s(sT0)}, {s(sT0)}, 16\ns_lshl_b32 {s(sT1)}, {s(sCT)}, 7\ns_add_u32 {s(sT0)}, {s(sT0)}, {s(sT1)}")
                for m in range(2):
                    if self.o["ow"] == 1: a(f"buffer_store_dwordx4 v[4:7], {v(vX+m)}, {s(sOUT,4)}, {s(sT0)} offen")
                    else: a(f"buffer_load_dwordx4 v[32:35], {v(vX+m)}, {s(sOUT,4)}, {s(sT0)} offen")
                    vm.issue("ow")
        a(f"s_cmp_eq_u32 {s(sTYPE)}, 0\ns_cbranch_scc0 L_loadB")
        q0 = list(vm.q)
        for typ in "AB":
            if typ == "B": a.label("L_loadB")
            tq2 = [list(x) for x in tq]
            vm.q = list(q0); sfx = "A" if typ == "A" else ""
            nE, nL, pe0 = (self.o[x + sfx] for x in ("nE", "nL", "pe0")); burst = self.o["burst"] if typ == "A" else 0
            assert nE <= 35 and pe0 >= KS; st_["nE"] = nE
            early = list(range(nE)) + list(range(NSLOT, NSLOT + nL)); nxt = 0
            for k in range(KS, N):
                ready(k); self.ts(f"l_land{k}"); a("s_barrier"); self.ts(f"l_bar{k}")
                if k + 2 < N: feed(k)
                touch(k, tq2)
                if k >= pe0:
                    while nxt < -(-(len(early) - burst) * (k + 1 - pe0) // (N - pe0)) + (burst if k >= self.o['bk'] else 0): assert preg(early[nxt]) < 224 or k > STG or not STG; park(early[nxt]); nxt += 1
            a("s_barrier")
            self.ts("l_barN")
            assert nxt == len(early)
            def done(lv):
                L = self.lab("dw"); X = self.lab("dwx")
                a(f"s_mov_b32 {s(sSPIN)}, 0")
                a.label(L)
                if self.o["slp"]: a(f"s_sleep {self.o['slp']}")
                a(f"ds_read_b32 {v(vP)}, {v(vDN)}\ns_add_u32 {s(sSPIN)}, {s(sSPIN)}, 1\ns_cmp_gt_u32 {s(sSPIN)}, {SPIN_MAX*8}\ns_waitcnt lgkmcnt(0)\ns_cbranch_scc1 {X}")
                a(f"v_cmp_gt_u32 vcc, {lv}, {v(vP)}\ns_cbranch_vccnz {L}")
                a.label(X)
            gate = self.o['gate' + typ]
            todo = [x for x in range(59) if x not in early]; lvl = [(7, 1), (22, 2), (37, 3)]
            def more(n):
                for _ in range(n):
                    if todo:
                        sig = todo.pop(0)
                        bstep(sig) if sig < NSLOT else park(sig)
                        if self.o["thr"] and len(vm.q) > self.o["thr"]: vm.wait(vm.q[-1 - self.o["thr"]])
            thr_ = self.o['thr']; self.o['thr'] = 0; more(0 if gate else self.o['m0n'])
            for sig in range(nE):
                vm.wait(("B", sig)); put(sig)
                if lvl and sig == lvl[0][0]: prog(lvl.pop(0)[1])
                if not gate and self.o['mint'] and sig % self.o['mint'] == self.o['mint'] - 1: more(1)
            self.o['thr'] = thr_
            self.ts("l_put")
            if gate and self.stop != "p1": done(1)
            while todo:
                more(1)
                if lvl and todo and todo[0] >= lvl[0][0] + 7: vm.wait(("B", lvl[0][0])); prog(lvl.pop(0)[1])
            for sg, lv in lvl: vm.wait(("B", sg)); prog(lv)
            self.ts("l_bissue")
            if self.stop == "p1":
                vm.wait_all(); self.ts_flush(); a("s_endpgm"); continue
            for lv, (lo, hi) in enumerate(((38, 45), (45, 55), (55, 59))):
                vm.wait(("B", hi - 1))
                if lv == 2: self.ts("l_bland")
                done(lv + 2)
                for sig in range(lo, hi): put(sig)
                prog(4 + lv)
                self.ts(f"l_ref{lv}")
            if self.o["gl"]:
                Y0, Y1, vY, vYP = 32, 48, 30, 31
                a(f"s_lshl_b32 {s(sT0)}, {s(sWK)}, 2\ns_add_u32 {s(sT0)}, {s(sT0)}, {XCH_Y}\nv_lshl_add_u32 {v(vY)}, v1, 4, {s(sT0)}")
                a(f"s_lshl_b32 {s(sT0)}, {s(sWK)}, 2\ns_xor_b32 {s(sT0)}, {s(sT0)}, 4096\ns_add_u32 {s(sT0)}, {s(sT0)}, {XCH_Y}\nv_lshl_add_u32 {v(vYP)}, v1, 4, {s(sT0)}")
                a(f"s_lshr_b32 {s(sT0)}, {s(sWK)}, 6\ns_and_b32 {s(sT0)}, {s(sT0)}, 32\ns_add_u32 {s(sT0)}, {s(sT0)}, {SC_FLAG+8}\nv_and_b32 {v(vDN)}, 1, v1\nv_lshl_add_u32 {v(vDN)}, {v(vDN)}, 4, {s(sT0)}")
                done(1)
                for q in range(4): a(f"ds_read_b128 {v(Y0+4*q,4)}, {v(vY)} offset:{1024*q}\nds_read_b128 {v(Y1+4*q,4)}, {v(vYP)} offset:{16384+1024*q}")
                for half in range(2):
                    o = 8 * half
                    a(f"s_waitcnt lgkmcnt({4-4*half})")
                    for j in range(8): a(f"v_add_f32 {v(Y0+o+j)}, {v(Y0+o+j)}, {v(Y1+o+j)}")
                    for j in range(8): a(f"v_mul_f32 {v(Y1+o+j)}, {fl(-1.4426950408889634)}, {v(Y0+o+j)}")
                    for j in range(8): a(f"v_exp_f32 {v(Y1+o+j)}, {v(Y1+o+j)}")
                    for j in range(8): a(f"v_add_f32 {v(Y1+o+j)}, 1.0, {v(Y1+o+j)}")
                    for j in range(8): a(f"v_rcp_f32 {v(Y1+o+j)}, {v(Y1+o+j)}")
                    for j in range(8): a(f"v_mul_f32 {v(Y0+o+j)}, {v(Y0+o+j)}, {v(Y1+o+j)}")
                for q in range(4): a(f"ds_write_b128 {v(vY)}, {v(Y0+4*q,4)} offset:{32768+1024*q}")
                prog(7)
            a("s_waitcnt lgkmcnt(0)")
            self.ts("l_end")
            self.ts_flush()
            a("s_endpgm")

    ACC = 160
    SEL = 64
    CSM = dict(A=(68, 72, 68), B=(68, 72, 90))
    vXA, vXB, vWE, vWO = 76, 80, 84, 87
    GR = 90
    vCW, vCR = 94, 95
    vT0, vT1, vT2 = 97, 98, 99
    SG = 100
    IDN = 108
    B1 = 108
    XS = 112
    GC = 120
    vSTA, vSTG, vNZ, vDUM = 124, 125, 126, 127
    vFL = 7
    TMP = 128
    FX = 152
    KVA = 16
    def acc(self, p, rb): return self.ACC + 32 * p + 16 * rb

    def it(self, text):
        cost = 0
        for ln in text.split("\n"):
            op = ln.split()[0]
            if op.endswith(":"): continue
            cost += 32 if op.startswith("v_mfma") else 8 if op in ("v_exp_f32", "v_rcp_f32", "v_rsq_f32") else 5 if (op.startswith(("ds_", "buffer_", "v_fma_", "v_cvt_pk", "v_cndmask", "v_lshl_add")) or "0x" in ln) else 4
        return (cost, lambda: self.a(text))
    def its(self, lst): return [self.it(x) for x in lst]
    def vmi(self, text, tag): return (6, lambda: (self.a(text), self.vm.issue(tag)))
    def vmw(self, tag): return (4, lambda: self.vm.wait(tag))
    def tsi(self, name): return (0, lambda: self.ts(name))
    def flush(self, q):
        while q:
            x = q.pop(0)
            if x == "NEXT": self.a("s_waitcnt lgkmcnt(0)")
            elif x == "BAR": raise RuntimeError("barrier marker left over")
            elif x[0] == "GI": continue
            else: x[1]()

    def compute_setup(self):
        a = self.a; G = self; T = G.TMP
        if self.o["prio"] == 1: a("s_setprio 1")
        self.vm = vm = Cnt(a, "vmcnt", 63)
        a(f"s_bfe_u32 {s(sRH)}, {s(sWAVE)}, 0x10001\ns_and_b32 {s(sCH)}, {s(sWAVE)}, 1")
        a("v_and_b32 v2, 31, v1\nv_lshrrev_b32 v3, 5, v1\nv_lshrrev_b32 v4, 4, v1\nv_and_b32 v5, 15, v1")
        a(f"v_mov_b32 {v(G.vNZ)}, 0")
        a(f"s_lshl_b32 {s(sT0)}, {s(sHF)}, 3\ns_add_u32 {s(sT0)}, {s(sT0)}, {s(sCT)}\ns_lshl_b32 {s(sT0)}, {s(sT0)}, 3")
        a(f"s_lshl_b32 {s(sT1)}, {s(sI)}, 7\ns_add_u32 {s(sT0)}, {s(sT0)}, {s(sT1)}\ns_lshl_b32 {s(sT2)}, {s(sWAVE)}, 1\ns_add_u32 {s(sT0)}, {s(sT0)}, {s(sT2)}")
        a(f"v_add_u32 v6, {s(sT0)}, v3\nv_lshlrev_b32 v11, 4, v2\nv_lshl_add_u32 v11, v6, 10, v11")
        a(f"s_lshl_b32 {s(sT2)}, {s(sI)}, 3\ns_add_u32 {s(sT2)}, {s(sT2)}, {s(sG)}\ns_lshl_b32 {s(sT3)}, {s(sSTR)}, 2\ns_mul_i32 {s(sT2)}, {s(sT2)}, {s(sT3)}\ns_sub_u32 {s(sT3)}, {s(sT3)}, 4")
        a(f"s_mul_i32 {s(sT4)}, {s(sWAVE)}, 24\nv_min_u32 v12, 23, v1\nv_add_lshl_u32 v12, v12, {s(sT4)}, 7\nv_min_u32 v12, {s(sT3)}, v12\nv_add_u32 {v(G.vT0)}, {s(sT2)}, v12")
        a(f"s_lshl_b32 {s(sW+2)}, {s(sSTR)}, 9\ns_mov_b32 {s(sW+3)}, 0x00020000\ns_cmp_eq_u32 {s(sTYPE)}, 0\ns_waitcnt lgkmcnt(0)")
        self.ts("c_karg")
        a(f"s_cselect_b32 {s(sW)}, s6, s12\ns_cselect_b32 {s(sW+1)}, s7, s13")
        self.srd(sX, 4, 2097152)
        if self.o["latp"] >= 0:
            self.srd(sOUT, 4 + 2*self.o["latp"], 524288)
            a(f"s_lshl_b32 {s(sT4)}, s2, 2\ns_add_u32 {s(sT4)}, {s(sT4)}, {s(sWAVE)}\ns_lshl_b32 {s(sT4)}, {s(sT4)}, 9\nv_mov_b32 v12, 0")
            a("s_waitcnt vmcnt(0)"); self.ts("c_l0"); a("s_waitcnt lgkmcnt(0)")
            a(f"buffer_load_dword v13, v12, {s(sOUT,4)}, {s(sT4)} offen\ns_waitcnt vmcnt(0)")
            self.ts("c_l1")
        def xs():
            a(f"buffer_load_dwordx4 {v(T,4)}, v11, {s(sX,4)}, 0 offen\nbuffer_load_dwordx4 {v(T+4,4)}, v11, {s(sX,4)}, 0 offen offset:512"); vm.issue("xs"); vm.issue("xs")
        if self.o["xe"]: xs()
        if self.o["wt"] == 3: a(f"buffer_load_dword {v(G.vDUM)}, {v(G.vT0)}, {s(sW,4)}, 0 offen"); vm.issue("t")
        if self.o["ld"]: a("s_barrier")
        L = self.lab("non")
        a(f"s_or_b32 {s(sT3)}, s2, {s(sWAVE)}\ns_cmp_lg_u32 {s(sT3)}, 0\ns_cbranch_scc1 {L}")
        a(f"s_memrealtime {s(sM,2)}\ns_waitcnt lgkmcnt(0)")
        self.srd(sDBG, 22, 256)
        a(f"s_or_b32 {s(sT3)}, {s(sM)}, 1\nv_mov_b32 v8, {s(sT3)}\ns_mov_b64 exec, 1")
        a(f"buffer_store_dword v8, {v(G.vNZ)}, {s(sDBG,4)}, 0 offen sc1\ns_mov_b64 exec, -1")
        a.label(L)
        a("s_branch L_compute")
        self.loader()
        a.label("L_compute")
        a(f"v_lshlrev_b32 v8, 4, v3\nv_lshl_add_u32 v8, v2, 5, v8\ns_lshl_b32 {s(sT0)}, {s(sT0)}, 5\nv_add_u32 v8, {s(sT0)}, v8\nv_mov_b32 v9, {hx(OOB)}\nv_cmp_gt_u32 vcc, 2, v2\nv_add_u32 v8, {WS_ST}, v8\nv_cndmask_b32 {v(G.vSTA)}, v9, v8, vcc")
        a(f"v_cmp_gt_u32 vcc, {self.o['fl']}, v1\nv_lshlrev_b32 v8, 2, v1\nv_cndmask_b32 {v(G.vFL)}, v9, v8, vcc")
        a(f"s_lshl_b32 {s(sT2)}, {s(sRH)}, 6\ns_add_u32 {s(sT1)}, {s(sT1)}, {s(sT2)}\nv_add_u32 v8, {s(sT1)}, v2\nv_and_b32 v10, 1, v8\nv_lshlrev_b32 v8, 5, v8\nv_lshlrev_b32 v10, 4, v10\nv_sub_u32 v8, v8, v10\nv_add_u32 {v(G.vSTG)}, {WS_ST}, v8")
        a("v_bfe_u32 v8, v1, 1, 3")
        a(f"s_lshl_b32 {s(sT2)}, {s(sRH)}, 13\nv_lshl_add_u32 v9, v2, 7, {s(sT2)}")
        for tau in range(4):
            a(f"s_xor_b32 {s(sT3)}, {s(sRH)}, {tau}\ns_lshl_b32 {s(sT3)}, {s(sT3)}, 1")
            a(f"v_add_u32 v10, {s(sT3)}, v3\nv_xor_b32 v10, v10, v8\nv_lshl_add_u32 {v(G.vXA+tau)}, v10, 4, v9\nv_add_u32 {v(G.vXB+tau)}, 65536, {v(G.vXA+tau)}")
        a("v_lshrrev_b32 v8, 2, v5\nv_lshl_add_u32 v8, v3, 3, v8\nv_lshlrev_b32 v8, 7, v8")
        a("v_and_b32 v9, 1, v4\nv_lshlrev_b32 v9, 1, v9\nv_bfe_u32 v10, v5, 1, 1\nv_add_u32 v9, v9, v10")
        a("v_lshrrev_b32 v10, 3, v5\nv_lshlrev_b32 v10, 2, v10\nv_xor_b32 v9, v9, v10")
        a("v_and_b32 v10, 1, v5\nv_lshlrev_b32 v10, 3, v10\nv_add_u32 v8, v8, v10")
        a(f"s_xor_b32 {s(sT3)}, {s(sTYPE)}, 1\ns_and_b32 {s(sT3)}, {s(sT3)}, {s(sRH)}\ns_lshl_b32 {s(sT3)}, {s(sT3)}, 1")
        a(f"s_lshl_b32 {s(sT2)}, {s(sCH)}, 2\ns_or_b32 {s(sT2)}, {s(sT2)}, {s(sT3)}\nv_xor_b32 v10, {s(sT2)}, v9\nv_lshl_add_u32 v10, v10, 4, v8")
        a(f"s_lshl_b32 {s(sT2)}, {s(sRH)}, 11")
        for sl in range(3):
            a(f"s_add_u32 {s(sT4)}, {s(sT2)}, {WR+8192*sl}\ns_sub_u32 {s(sT5)}, {WR+8192*sl}, {s(sT2)}")
            a(f"v_add_u32 {v(G.vWE+sl)}, {s(sT4)}, v10\nv_add_u32 {v(G.vWO+sl)}, {s(sT5)}, v10")
        a(f"v_lshrrev_b32 v8, 2, v5\nv_xor_b32 v8, v8, v4\nv_and_b32 v8, 1, v8\nv_cmp_eq_u32 vcc, 0, v8\nv_mov_b32 v9, 0x3f803f80")
        for q in range(4): a(f"v_cndmask_b32 {v(G.SEL+q)}, 0, v9, vcc")
        a(f"s_mul_i32 {s(sT0)}, {s(sWAVE)}, 384\ns_add_u32 {s(sT0)}, {s(sT0)}, {SC_CS}\nv_lshl_add_u32 {v(G.vCW)}, v2, 2, {s(sT0)}")
        a(f"s_xor_b32 {s(sT0)}, {s(sWAVE)}, 2\ns_mul_i32 {s(sT0)}, {s(sT0)}, 384\ns_add_u32 {s(sT0)}, {s(sT0)}, {SC_CS}\ns_xor_b32 {s(sT1)}, {s(sTYPE)}, 1\ns_lshl_b32 {s(sT1)}, {s(sT1)}, 4")
        a(f"v_xor_b32 v8, {s(sT1)}, v2\nv_lshl_add_u32 {v(G.vCR)}, v8, 2, {s(sT0)}")
        a(f"v_lshlrev_b32 v8, 2, v2\nv_add_u32 v8, {SC_FLAG}, v8\nds_write_b32 v8, {v(G.vNZ)}")
        if self.o["wt"] == 2: a(f"buffer_load_dword {v(G.vDUM)}, {v(G.vT0)}, {s(sW,4)}, 0 offen"); vm.issue("t")
        X = self.lab("vwx")
        a(f"v_mov_b32 {v(G.vT1)}, {hx(OOB)}\nv_mov_b32 {v(G.vT2)}, {hx(OOB)}\ns_cmp_lt_u32 {s(sWAVE)}, 2\ns_cbranch_scc1 {X}")
        a(f"s_cmp_eq_u32 {s(sWAVE)}, 2")
        a(f"s_cselect_b32 {s(sW)}, s16, s8\ns_cselect_b32 {s(sW+1)}, s17, s9\ns_movk_i32 {s(sT3)}, 2048\ns_cselect_b32 {s(sT3)}, 5504, {s(sT3)}")
        a(f"s_lshl_b32 {s(sW+2)}, {s(sT3)}, 8\ns_mul_i32 {s(sT2)}, s2, {s(sT3)}\ns_sub_u32 {s(sT3)}, {s(sT3)}, 4")
        a(f"v_lshlrev_b32 v12, 7, v1\nv_min_u32 v12, {s(sT3)}, v12\nv_add_u32 {v(G.vT1)}, {s(sT2)}, v12")
        a(f"s_cmp_eq_u32 {s(sWAVE)}, 2\ns_cselect_b32 {s(sT3)}, 43, 16\ns_lshr_b32 {s(sT2)}, s2, 3\ns_mul_i32 {s(sT2)}, {s(sT2)}, {s(sT3)}")
        a(f"v_add_u32 v12, {s(sT2)}, v1\nv_lshlrev_b32 v12, 10, v12\nv_add_u32 v12, 384, v12\nv_cmp_gt_u32 vcc, {s(sT3)}, v1\nv_cndmask_b32 {v(G.vT2)}, {v(G.vT2)}, v12, vcc")
        a.label(X)
        self.srd(sB1, 14, 2752); self.srd(sDBG, 22, 256); self.srd(sWS, 24, WS_SIZE)
        a(f"s_lshl_b32 {s(sT2)}, {s(sCH)}, 6\ns_lshl_b32 {s(sT3)}, {s(sTYPE)}, 31\ns_xor_b32 {s(sT3)}, {s(sT3)}, {hx(OOB)}\ns_or_b32 {s(sT2)}, {s(sT2)}, {s(sT3)}")
        a(f"v_lshl_add_u32 v8, v2, 1, {s(sT2)}")
        if not self.o["xe"]: xs()
        a("v_mov_b32 v96, v8")
        if self.o["t2"]:
            L = self.lab("t2")
            a(f"s_lshl_b32 {s(sT2)}, {s(sHF)}, 2\ns_or_b32 {s(sT2)}, {s(sT2)}, {s(sWAVE)}\ns_cmp_lg_u32 {s(sT2)}, 3\ns_cbranch_scc1 {L}")
            self.srd(sOUT, 6, 1572864)
            a(f"s_lshr_b32 {s(sT2)}, s2, 3\ns_lshl_b32 {s(sT2)}, {s(sT2)}, 4")
            a(f"v_add_u32 v12, {s(sT2)}, v5\nv_mul_u32_u24 v12, 3072, v12\nv_min_u32 v13, 2, v4\nv_lshl_add_u32 v12, v13, 10, v12\nv_add_u32 v12, 384, v12")
            a(f"buffer_load_dword {v(G.vDUM)}, v12, {s(sOUT,4)}, 0 offen")
            a.label(L)
        if self.o["w2s"]: a(f"buffer_load_dword {v(G.vDUM)}, {v(G.vT1)}, {s(sW,4)}, 0 offen"); vm.issue("t")
        self.vm0 = list(vm.q)
        self.ts("c_setup")
        a(f"s_cmp_eq_u32 {s(sTYPE)}, 0\ns_cbranch_scc0 L_typeB")

    def q_stats(self, typ, extra=()):
        G = self; T = G.TMP; U = T + 8; q = []
        g = dict(math=1, chk=self.o['chk'], w2=self.o["w2t"], ga=self.o['ga'], gc=self.o['gc'])
        nl = [self.vmi(f"buffer_load_dword {v(G.GR+3)}, {v(G.vNZ)}, {s(sDBG,4)}, 0 offen sc1", "nonce")]
        if not self.o["pre"]: q += nl
        q += [("GI", g["math"]), self.vmw("xs")]
        if self.o["pre"]: q += nl
        w = []
        for k in range(8): w += [f"v_lshlrev_b32 {v(U+2*k)}, 16, {v(T+k)}", f"v_and_b32 {v(U+2*k+1)}, 0xffff0000, {v(T+k)}"]
        w += [f"v_add_f32 {v(T+k)}, {v(U+2*k)}, {v(U+2*k+1)}" for k in range(8)]
        for n in (4, 2, 1): w += [f"v_add_f32 {v(T+k)}, {v(T+k)}, {v(T+k+n)}" for k in range(n)]
        def red32(r, t):
            o = [f"v_add_f32_dpp {v(r)}, {v(r)}, {v(r)} {m} row_mask:0xf bank_mask:0xf" for m in ("quad_perm:[1,0,3,2]", "quad_perm:[2,3,0,1]", "row_half_mirror", "row_mirror")]
            return o + [f"v_mov_b32 {v(t)}, {v(r)}", f"v_permlane16_swap_b32 {v(r)}, {v(t)}", f"v_add_f32 {v(r)}, {v(r)}, {v(t)}"]
        w += red32(T, T + 1) + [f"v_mul_f32 {v(G.GR)}, {fl(1/512)}, {v(T)}"]
        w += [f"v_sub_f32 {v(U+k)}, {v(U+k)}, {v(G.GR)}" for k in range(16)]
        w += [f"v_mul_f32 {v(T+k)}, {v(U+k)}, {v(U+k)}" for k in range(4)]
        w += [f"v_fmac_f32 {v(T+k%4)}, {v(U+k)}, {v(U+k)}" for k in range(4, 16)]
        w += [f"v_add_f32 {v(T)}, {v(T)}, {v(T+1)}", f"v_add_f32 {v(T+2)}, {v(T+2)}, {v(T+3)}", f"v_add_f32 {v(T)}, {v(T)}, {v(T+2)}"]
        w += red32(T, T + 1) + [f"v_mov_b32 {v(T+1)}, {fl(1e-5)}", f"v_fmac_f32 {v(T+1)}, {fl(1/512)}, {v(T)}",
                                f"v_rsq_f32 {v(G.GR+1)}, {v(T+1)}", f"v_mul_f32 {v(G.GR+2)}, {v(T+1)}, {v(G.GR+1)}"]
        q += self.its(w)
        if self.o["pre"]: self.flush(q); q = []
        L = self.lab("nonce"); R = self.lab("nonceok"); X = self.lab("noncex")
        q += [("GI", g["chk"]), self.vmw("nonce"),
              self.it(f"v_readfirstlane_b32 {s(sNONCE)}, {v(G.GR+3)}\ns_cmp_eq_u32 {s(sNONCE)}, 0\ns_cbranch_scc1 {L}\n{R}:"),
              self.vmi(f"buffer_store_dwordx4 {v(G.GR,4)}, {v(G.vSTA)}, {s(sWS,4)}, 0 offen sc1", "st"),
              self.it(f"v_mov_b32 v8, {SC_NONCE}\nds_write_b32 v8, {v(G.GR+3)}"), self.tsi("c_stpub")]
        self.tail.append(f"""{L}:
s_mov_b32 {s(sSPIN)}, 0
{X}:
buffer_load_dword {v(G.GR+3)}, {v(G.vNZ)}, {s(sDBG,4)}, 0 offen sc1
s_add_u32 {s(sSPIN)}, {s(sSPIN)}, 1
s_waitcnt vmcnt(0)
v_readfirstlane_b32 {s(sNONCE)}, {v(G.GR+3)}
s_cmp_gt_u32 {s(sSPIN)}, {SPIN_MAX}
s_cbranch_scc1 {R}
s_cmp_eq_u32 {s(sNONCE)}, 0
s_cbranch_scc1 {X}
s_branch {R}""")
        if typ == "B": q += self.its([f"v_lshlrev_b32 {v(G.B1+p)}, 16, {v(G.B1+p)}" for p in range(3)])
        if self.o["w7"] and typ == "B":
            q = [self.it(f"s_cmp_eq_u32 {s(sWAVE)}, 3\ns_cselect_b32 s56, s8, s16\ns_cselect_b32 s57, s9, s17\ns_movk_i32 {s(sT1)}, 688\ns_cselect_b32 {s(sT1)}, 256, {s(sT1)}\ns_cselect_b32 {s(sT2)}, 0, {s(sWAVE)}"),
                 self.it(f"s_lshl_b32 s58, {s(sT1)}, 11\ns_lshl_b32 {s(sT2)}, {s(sT2)}, 8\ns_mul_i32 {s(sT3)}, {s(sI)}, {s(sT1)}\ns_sub_u32 {s(sT1)}, {s(sT1)}, 1"),
                 self.it(f"s_cmp_eq_u32 {s(sG)}, 7\ns_cselect_b32 {s(sT4)}, 0, {hx(OOB)}\nv_add_u32 v96, {s(sT2)}, v1")] + q
            k0 = next(i for i, x in enumerate(q) if not isinstance(x, str) and x[0] == "GI")
            t = []
            for k in range(4):
                t += [("GI", self.o["w7"] + self.o["w7s"] * k - 1)] if k else []
                t += [self.it(f"v_min_u32 v9, {s(sT1)}, v96"), self.it(f"v_add_lshl_u32 v9, v9, {s(sT3)}, 7"), self.it(f"v_or_b32 v9, {s(sT4)}, v9"),
                      self.vmi(f"buffer_load_dword {v(G.vDUM)}, v9, s[56:59], 0 offen", "t"), self.it("v_add_u32 v96, 64, v96")]
            self.w7q = t
            q += t
        q += list(extra)
        if self.o["t3"]:
            q += [("GI", self.o["t3"] - 1), self.it(f"s_lshl_b32 {s(sT0)}, {s(sI)}, 3\ns_add_u32 {s(sT0)}, {s(sT0)}, {s(sCT)}\ns_lshl_b32 {s(sT0)}, {s(sT0)}, 14\nv_lshl_add_u32 v8, v5, 10, {s(sT0)}"),
                  self.vmi(f"buffer_load_dword {v(G.vDUM)}, v8, {s(sX,4)}, 0 offen offset:384", "t")]
        if self.o["w2t"] and not self.o["w7"] and not self.o["w2s"] and not self.o["sw"] & 1: q += [("GI", g["w2"]), self.vmi(f"buffer_load_dword {v(G.vDUM)}, {v(G.vT1)}, {s(sW,4)}, 0 offen", "t")]
        if self.o["t1"] and not self.o["sw"] & 2: q += [("GI", self.o["t1"]), self.vmi(f"buffer_load_dword {v(G.vDUM)}, {v(G.vT2)}, {s(sW,4)}, 0 offen", "t")]
        q += [("GI", g["ga"])] + [self.vmi(f"buffer_load_dwordx4 {v(G.SG+4*rb,4)}, {v(G.vSTG)}, {s(sWS,4)}, 0 offen offset:{1024*rb} sc1", "sg") for rb in range(2)]
        L = self.lab("st"); R = self.lab("stok"); X = self.lab("stx")
        chk = f"v_cmp_ne_u32 vcc, {s(sNONCE)}, {v(G.SG+3)}\nv_cmp_ne_u32 {s(sM,2)}, {s(sNONCE)}, {v(G.SG+7)}\ns_or_b64 vcc, vcc, {s(sM,2)}"
        q += [("GI", g["gc"]), self.vmw("sg"), self.it(f"{chk}\ns_cbranch_vccnz {L}\n{R}:"), self.tsi("c_stok")]
        self.tail.append(f"""{L}:
s_mov_b32 {s(sSPIN)}, 0
{X}:
buffer_load_dwordx4 {v(G.SG,4)}, {v(G.vSTG)}, {s(sWS,4)}, 0 offen sc1
buffer_load_dwordx4 {v(G.SG+4,4)}, {v(G.vSTG)}, {s(sWS,4)}, 0 offen offset:1024 sc1
s_add_u32 {s(sSPIN)}, {s(sSPIN)}, 1
s_cmp_gt_u32 {s(sSPIN)}, {SPIN_MAX}
s_waitcnt vmcnt(0)
s_cbranch_scc1 {R}
{chk}
s_cbranch_vccnz {X}
s_branch {R}""")
        for rb in range(2):
            mu, r, sd = G.SG + 4*rb, G.SG + 4*rb + 1, G.SG + 4*rb + 2; X = G.XS + 4*rb
            q += self.its([f"v_cvt_pk_bf16_f32 {v(T)}, -{v(mu)}, -{v(mu)}", f"v_cvt_pk_bf16_f32 {v(T+1)}, {v(sd)}, {v(sd)}",
                           f"v_and_b32 {v(T+2)}, 0xffff0000, {v(T)}", f"v_and_b32 {v(T+3)}, 0xffff0000, {v(T+1)}",
                           f"v_sub_f32 {v(T+2)}, -{v(mu)}, {v(T+2)}", f"v_sub_f32 {v(T+4)}, {v(sd)}, {v(T+3)}",
                           f"v_cvt_pk_bf16_f32 {v(T+2)}, {v(T+2)}, {v(T+3)}", f"v_cvt_pk_bf16_f32 {v(T+4)}, {v(T+4)}, 0",
                           f"v_cmp_gt_u32 vcc, 32, v1\nv_mov_b32 {v(X+3)}, 0\nv_cndmask_b32 {v(X)}, 0, {v(T)}, vcc\nv_cndmask_b32 {v(X+1)}, 0, {v(T+2)}, vcc\nv_cndmask_b32 {v(X+2)}, 0, {v(T+4)}, vcc"])
        k0 = -2.0 * 1.4426950408889634 * 0.7978845608028654
        for rb in range(2):
            r, sd = G.SG + 4*rb + 1, G.SG + 4*rb + 2
            if typ == "B":
                q += self.its([f"v_mul_f32 {v(G.GC+rb)}, {fl(k0)}, {v(r)}", f"v_mul_f32 {v(T)}, {v(r)}, {v(r)}",
                               f"v_mul_f32 {v(T)}, {fl(0.044715)}, {v(T)}", f"v_mul_f32 {v(G.GC+2+rb)}, {v(T)}, {v(G.GC+rb)}"])
            else:
                q += self.its([f"v_mul_f32 {v(G.GC+rb)}, {fl(1.4426950408889634)}, {v(r)}", f"v_mul_f32 {v(G.GC+2+rb)}, {fl(1e-6)}, {v(sd)}"])
        if typ == "A":
            q += self.its([f"s_lshl_b32 {s(sT0)}, {s(sWAVE)}, 8\ns_add_u32 {s(sT0)}, {s(sT0)}, {SC_R}\nv_lshl_add_u32 v8, v2, 2, {s(sT0)}\nv_lshl_add_u32 v6, v3, 4, {s(sT0)}",
                           f"ds_write_b32 v8, {v(G.GC)}", f"ds_write_b32 v8, {v(G.GC+1)} offset:128"])
        return q

    def reads0(self, gi):
        G = self
        k, tau = divmod(gi, 4); sl = (gi // 2) % 3; b = gi & 1
        X = lambda rb: [(f"ds_read_b128 {v(16+8*b+4*rb,4)}, {v((G.vXB if k >= 4 else G.vXA) + tau)} offset:{(k % 4)*16384 + 4096*rb}", (gi, "X", rb))]
        W = lambda p: [(f"ds_read_b64_tr_b16 {v(48+8*b+4*p+2*j,2)}, {v((G.vWO if tau & 1 else G.vWE) + sl)} offset:{p*4096+(tau&1)*2048+j*512}", (gi, "W", p)) for j in range(2)]
        return [W(0) + X(0), W(1) + X(1), [], []]
    def reads1(self, M):
        G = self
        if M >= 16: return [[], [], [], []]
        k = M // 2; sl = (16 + k) % 3; b = M & 1
        def X(ks, rb):
            tau = 2*(M & 1) + ks
            return [(f"ds_read_b128 {v(16+16*b+8*ks+4*rb,4)}, {v((G.vXB if k >= 4 else G.vXA) + tau)} offset:{(k % 4)*16384 + 4096*rb}", (32+M, "X", ks, rb))]
        def W(ks):
            tau = 2*(M & 1) + ks
            return [(f"ds_read_b64_tr_b16 {v(48+8*b+4*ks+2*j,2)}, {v((G.vWO if tau & 1 else G.vWE) + sl)} offset:{tau*2048+j*512}", (32+M, "W", ks)) for j in range(2)]
        return [W(0) + X(0, 0), W(1) + X(0, 1), X(1, 0), X(1, 1)]

    def mpass(self, typ, ps, q, budget):
        a = self.a; G = self; CS = G.CSM[typ]
        def issue(g):
            for r, t in g: a(r); self.lg.issue(t)
        if ps == 0:
            self.lg = Cnt(a, "lgkmcnt", 15)
            self.ts("c_pre0")
            a("s_waitcnt lgkmcnt(0)\ns_barrier")
            self.ts("c_bar0")
            for g in self.reads0(0): issue(g)
        elif typ == "A":
            for g in self.reads1(0): issue(g)
        lg = self.lg
        st_ = dict(hold=None, credit=0, nbar=0)
        def emit(x):
            n0 = len(a.items); x[1]()
            for ln in a.items[n0:]:
                if ln.startswith("ds_"): lg.issue("F")
        def fill(M, nr):
            st_["credit"] = min(st_["credit"] + budget - 5 * nr, budget + 6)
            while q and st_["hold"] is None:
                x = q[0]
                if x in ("NEXT", "BAR"): st_["hold"] = x; q.pop(0); break
                if x[0] == "GI":
                    if M >= x[1]: q.pop(0); continue
                    break
                if x[0] == "GB":
                    if st_["nbar"] >= x[1]: q.pop(0); continue
                    break
                if st_["credit"] < min(x[0], 12): break
                q.pop(0); emit(x); st_["credit"] -= x[0]
        def barrier(n):
            lg.wait("F"); a("s_barrier"); self.ts(f"c_bar{n}"); st_["nbar"] += 1
            if st_["hold"] == "BAR": st_["hold"] = None
        NS = 32 if ps == 0 else 16
        pn = (0, 1) if ps == 0 else (2,)
        for M in range(NS):
            b = M & 1; mf = []; last = M == NS - 1
            for i in range(2):
                for rb in range(2):
                    p = i if ps == 0 else 2
                    x = v(16+8*b+4*rb, 4) if ps == 0 else v(16+16*b+8*i+4*rb, 4)
                    w = v(48+8*b+4*i, 4); c = v(G.acc(p, rb), 16)
                    A, B = (x, w) if (typ == "A" and p < 2) else (w, x)
                    mf.append(f"v_mfma_f32_32x32x16_bf16 {c}, {A}, {B}, {c if M or (ps and i) else 0}")
            if ps == 0:
                cs = [f"v_mfma_f32_16x16x32_bf16 {v(CS[p],4)}, {v(G.SEL,4)}, {v(48+8*b+4*p,4)}, {v(CS[p],4) if M else 0}" for p in pn] if b == 0 else []
                rd = self.reads0(M + 1) if not last else (self.reads1(0) if typ == "B" else [[], [], [], []])
                need = [(M, "X", 1), None, None, None]; nb = M // 2 + 1
            else:
                cs = [f"v_mfma_f32_16x16x32_bf16 {v(CS[2],4)}, {v(G.SEL,4)}, {v(48+8*b,4)}, {v(CS[2],4) if M else 0}"]
                rd = self.reads1(M + 1)
                need = [(32+M, "X", 0, 1), None, (32+M, "X", 1, 1), None]; nb = 17 + M // 2
            csw = [(f"ds_write_b32 {v(G.vCW)}, {v(CS[p])} offset:{128*p}", "F") for p in pn]
            csr = [(f"ds_read_b32 {v(CS[p]+1)}, {v(G.vCR)} offset:{128*p}", "F") for p in pn]
            if st_["hold"] == "NEXT" or M == 0: lg.wait("F"); st_["hold"] = None if st_["hold"] == "NEXT" else st_["hold"]
            if last and ps == 1:
                lg.wait(need[0]); a(cs[0]); a(mf[0])
                for j in range(4):
                    if j: a(f"v_xor_b32 v8, {16*j}, {v(G.vXR)}")
                    issue([(f"ds_read_b64 {v(G.XR+2*j,2)}, {v(8 if j else G.vXR)}", "F")])
                fill(M, 4); a(mf[1])
                issue(csw); fill(M, 1); lg.wait(need[2]); a(mf[2])
                barrier(nb); issue(csr); a(mf[3])
                break
            for k in range(4):
                lg.wait(need[k]); a(mf[k])
                if k == 0 and b:
                    barrier(nb)
                    if last: issue(csr)
                issue(rd[k])
                fill(M, len(rd[k]))
                if k == (0 if (ps == 0 and M == 30) else 2):
                    for c in cs: a(c)
                if k == 2 and ps == 0 and M == 30: issue(csw)
        assert st_["hold"] != "BAR"
        assert not any(x[0] in ("GI", "GB") for x in q if not isinstance(x, str)), "GI marker left"
        if self.verbose: print(typ, "pass", ps, "leftover cost", sum(x[0] for x in q if not isinstance(x, str)))
        self.ts(f"c_pass{ps}")

    def q_fixup(self, typ, p):
        G = self; c = G.CSM[typ][p]; F = 136 if typ == "B" else (152, 148, 128)[p]; q = []
        q += self.its([f"v_add_f32 {v(c)}, {v(c)}, {v(c+1)}", f"v_cvt_pk_bf16_f32 {v(c+1)}, {v(c)}, {v(c)}",
                      f"v_and_b32 {v(c+1)}, 0xffff0000, {v(c+1)}", f"v_sub_f32 {v(c+2)}, {v(c)}, {v(c+1)}", f"v_mov_b32 {v(F+3)}, 0"])
        if typ == "B":
            q += self.its([f"v_cvt_pk_bf16_f32 {v(F+1)}, {v(c+1)}, {v(G.B1+p)}", f"v_cvt_pk_bf16_f32 {v(F+2)}, {v(G.B1+p)}, 0"])
        else:
            q += self.its([f"v_cvt_pk_bf16_f32 {v(F+1)}, {v(c+1)}, 0", f"v_mov_b32 {v(F+2)}, 0"])
        q += self.its([f"v_cvt_pk_bf16_f32 {v(F)}, {v(c+1)}, {v(c+2)}"])
        for rb in range(2):
            x = v(G.XS + 4*rb, 4); w = v(F, 4); cc = v(G.acc(p, rb), 16)
            A, B = (x, w) if (typ == "A" and p < 2) else (w, x)
            q += self.its([f"v_mfma_f32_32x32x16_bf16 {cc}, {A}, {B}, {cc}"])
        return q

    def ho_base(self, dst, sig0):
        t = (f"s_lshl_b32 {s(dst)}, {s(sI)}, 1\ns_add_u32 {s(dst)}, {s(dst)}, {s(sRH)}\ns_lshl_b32 {s(dst)}, {s(dst)}, {self.SS+2}\n"
             f"s_lshl_b32 {s(sT0)}, {s(sG)}, 1\ns_add_u32 {s(sT0)}, {s(sT0)}, {s(sCH)}\n")
        if not self.o["lay"]:
            return t + f"s_add_u32 {s(sT5)}, {s(sT0)}, {sig0}\ns_lshl_b32 {s(sT5)}, {s(sT5)}, 10\ns_add_u32 {s(dst)}, {s(dst)}, {s(sT5)}"
        par = int(sig0 >= 29) if self.o['lay'] == 1 else 0
        return t + (f"s_add_u32 {s(sT5)}, {s(sT0)}, {sig0 - 29*par}\ns_and_b32 {s(sT4)}, {s(sT5)}, 7\ns_lshr_b32 {s(sT5)}, {s(sT5)}, 3\ns_lshl_b32 {s(sT5)}, {s(sT5)}, 4\n"
                    f"s_add_u32 {s(sT5)}, {s(sT5)}, {s(sT4)}\ns_add_u32 {s(sT5)}, {s(sT5)}, {8*par}\ns_lshl_b32 {s(sT5)}, {s(sT5)}, 10\ns_add_u32 {s(dst)}, {s(dst)}, {s(sT5)}")

    def q_flag(self, soff):
        return [self.it(f"v_mov_b32 v11, {s(sNONCE)}"),
                self.vmi(f"buffer_store_dword v11, {v(self.vFL)}, {s(sWS,4)}, {s(soff)} offen {'sc0 sc1' if self.o['fsc'] else 'sc1'}", "f")]

    def q_gelu_setup(self):
        sHB, sFL = 26, 27; vO = 12
        q = [self.it("\n".join(self.ho_base(4 + p, SIG0[p]) for p in range(3)) + f"\ns_lshl_b32 {s(sT1)}, {s(sI)}, 1\ns_add_u32 {s(sT1)}, {s(sT1)}, {s(sRH)}\ns_mul_i32 {s(sFL)}, {s(sT1)}, {3*FG}\ns_lshl_b32 {s(sT1)}, {s(sT0)}, {FS}\ns_add_u32 {s(sFL)}, {s(sFL)}, {s(sT1)}\ns_add_u32 {s(sFL)}, {s(sFL)}, {WS_FH}")]
        t = f"s_mul_i32 {s(sT1)}, {s(sG)}, 6\ns_add_u32 {s(sT1)}, {s(sT1)}, {s(sCH)}\nv_lshlrev_b32 v11, 4, v1"
        for p in range(3): t += f"\ns_cmp_lt_u32 {s(sT1)}, {43-2*p}\ns_cselect_b32 {s(sT2)}, 0, {hx(OOB)}\nv_or_b32 {v(vO+p)}, {s(sT2)}, v11"
        return q + [self.it(t)]
    def q_gelu(self, p, pk):
        G = self; sHB, sFL, sO = 26, 27, 3; vO = 12; t = G.TMP; q = []; n = 0
        for rb in range(2):
            A, B, sd = G.GC + rb, G.GC + 2 + rb, G.SG + 4*rb + 2
            for kh in range(2):
                c = G.acc(p, rb) + 8*kh; P = t + 8 + 4*(n & 1); n += 1
                if self.o["pk"] and pk:
                    sel = rb
                    w = [f"v_pk_mul_f32 {v(t+j,2)}, {v(c+j,2)}, {v(c+j,2)}" for j in range(0, 8, 2)]
                    w += [f"v_pk_fma_f32 {v(t+j,2)}, {v(t+j,2)}, {v(G.GC+2,2)}, {v(G.GC,2)} op_sel:[0,{sel},{sel}] op_sel_hi:[1,{sel},{sel}]" for j in range(0, 8, 2)]
                    w += [f"v_pk_mul_f32 {v(t+j,2)}, {v(c+j,2)}, {v(t+j,2)}" for j in range(0, 8, 2)]
                    w += [f"v_exp_f32 {v(t+j)}, {v(t+j)}" for j in range(8)]
                    w += [f"v_pk_fma_f32 {v(t+j,2)}, {v(t+j,2)}, {v(sd,2)}, {v(sd,2)} op_sel:[0,0,0] op_sel_hi:[1,0,0]" for j in range(0, 8, 2)]
                    w += [f"v_rcp_f32 {v(t+j)}, {v(t+j)}" for j in range(8)]
                    w += [f"v_pk_mul_f32 {v(t+j,2)}, {v(c+j,2)}, {v(t+j,2)}" for j in range(0, 8, 2)]
                else:
                    w = [f"v_mul_f32 {v(t+j)}, {v(c+j)}, {v(c+j)}" for j in range(8)]
                    w += [f"v_fma_f32 {v(t+j)}, {v(t+j)}, {v(B)}, {v(A)}" for j in range(8)]
                    w += [f"v_mul_f32 {v(t+j)}, {v(c+j)}, {v(t+j)}" for j in range(8)]
                    w += [f"v_exp_f32 {v(t+j)}, {v(t+j)}" for j in range(8)]
                    w += [f"v_fma_f32 {v(t+j)}, {v(t+j)}, {v(sd)}, {v(sd)}" for j in range(8)]
                    w += [f"v_rcp_f32 {v(t+j)}, {v(t+j)}" for j in range(8)]
                    w += [f"v_mul_f32 {v(t+j)}, {v(c+j)}, {v(t+j)}" for j in range(8)]
                w += [f"v_cvt_pk_bf16_f32 {v(P+j)}, {v(t+2*j)}, {v(t+2*j+1)}" for j in range(4)]
                q += self.its(w)
                q += [self.vmi(f"s_add_u32 {s(sO)}, {s(4+p)}, {(2*rb+kh) << self.SS}\nbuffer_store_dwordx4 {v(P,4)}, {v(vO+p)}, {s(sWS,4)}, {s(sO)} offen sc1", ("h", p))]
        return q + [self.tsi(f"cB_p{p}")]

    def q_hflag(self, p):
        return [self.vmw(("h", p))] + self.q_flag(27) + [self.it(f"s_add_u32 s27, s27, {FG}"), self.tsi(f"cB_flag{p}")]
    def q_h0(self):
        G = self
        return self.its([f"s_lshl_b32 {s(sT1)}, {s(sI)}, 1\ns_add_u32 {s(sT1)}, {s(sT1)}, {s(sHF)}\ns_mul_i32 {s(sC0)}, {s(sT1)}, {3*FG}\ns_add_u32 {s(sC0)}, {s(sC0)}, {WS_FH}", f"v_lshlrev_b32 {v(G.vGP)}, {FS}, v5"]) + \
               [("GI", 13), self.vmi(self.fload(G.vGF, G.vGP, sC0), "gf")]
    def aload(self, vm, sig):
        if sig >= 59: return
        G = self; sA = sKST; D = self.o["D"]
        if self.o["r2"]:
            st, j2, ch = pos_of(sig); n = 8 if st == 3 else 7; t = ""
            if sig == 14: t = f"s_add_u32 {s(sA)}, s16, {14*1024}\n"
            elif ch == 0:
                t = f"s_mov_b32 s19, {'s18' if st == 3 else 's17'}\n" if j2 == 0 else f"s_add_u32 s19, s19, 2048\ns_cmp_eq_u32 s19, {n*2048}\ns_cselect_b32 s19, 0, s19\n"
                t += f"s_add_u32 {s(sA)}, s19, s16\n" + (f"s_add_u32 {s(sA)}, {s(sA)}, {(SIG0+[43])[st]*1024}\n" if st else "")
            self.a(t + f"buffer_load_dwordx4 {v(G.RING[sig%D],4)}, {v(G.vA)}, {s(sWS,4)}, {s(sA)} offen offset:{1024*ch} sc1"); vm.issue(("A", sig))
            return
        o = hoff(sig, self.o["lay"]); d = (o & ~4095) - (hoff(sig - 1, self.o["lay"]) & ~4095) if sig else 0
        if d: self.a(f"s_add_u32 {s(sA)}, {s(sA)}, {hx(d)}")
        self.a(f"buffer_load_dwordx4 {v(G.RING[sig%D],4)}, {v(G.vA)}, {s(sWS,4)}, {s(sA)} offen offset:{o & 4095} {['', 'sc1', 'sc0 sc1', 'nt sc1'][self.o['asc']]}"); vm.issue(("A", sig))
    RING = [16 + 4*k for k in range(8)] + [72, 76, 80, 84, 88]
    def gcheck(self, vm, soff, two=False, va=None):
        a = self.a; G = self; L = self.lab("gc"); R = self.lab("gcok"); X = self.lab("gcx")
        vm.wait("gf")
        a(f"v_cmp_ne_u32 vcc, {s(sNONCE)}, {v(G.vGF)}\ns_cbranch_vccnz {L}")
        a.label(R)
        pre = ""
        if two:
            n = len(vm.q) - 1 - max(i for i, t in enumerate(vm.q) if t == "gb")
            pre = f"s_waitcnt vmcnt({n})\nv_cmp_ne_u32 vcc, {s(sNONCE)}, {v(G.vGB)}\ns_cbranch_vccz {R}\n"
        self.tail.append(f"{L}:\n" + pre + self.poll_text(G.vGP if va is None else va, G.vGF, soff, X, self.lab("gcy")) + f"\ns_branch {R}")
    def p2_pre(self):
        if self.stop == "p1": return
        self.gcheck(self.vm, sC0); self.ts("c_p0x")
        for sig in range(8): self.aload(self.vm, sig)
        G = self
        if self.o["kearly"]: self.a(f"s_add_u32 {s(sC0)}, {s(sC0)}, {FG}\nbuffer_load_dword {v(G.vGF)}, {v(G.vGP)}, {s(sWS,4)}, {s(sC0)} offen sc1"); self.vm.issue("gf")
    def typeB(self):
        a = self.a; G = self; o = self.o
        self.vm.q = list(self.vm0)
        for p in range(3):
            a(f"v_add_u32 v9, {s(sC0+p)}, v96\nbuffer_load_ushort {v(G.B1+p)}, v9, {s(sB1,4)}, 0 offen"); self.vm.issue("b1")
        self.flush(self.q_gelu_setup())
        pw = []
        if o["pw"]:
            pw = [("GI", o["pw"])] + [self.vmi(f"s_add_u32 s3, s27, {k*FG}\nbuffer_store_dword {v(G.vNZ)}, {v(G.vFL)}, {s(sWS,4)}, s3 offen sc1", "pw") for k in range(3)]
        q = self.q_stats("B", pw + self.q_p2setup())
        self.mpass("B", 0, q, o["bud0"])
        g1 = self.q_gelu(1, False)
        h0 = self.q_h0()
        q += self.q_fixup("B", 0) + self.q_fixup("B", 1) + h0[:2] + self.q_gelu(0, False) + g1[:o["fm"]*10] + self.q_hflag(0) + g1[o["fm"]*10:]
        self.mpass("B", 1, q, o["bud2"])
        self.ts("c_main")
        g2 = self.q_gelu(2, True); h = len(g2) // 4 * o["g2h"]
        self.flush(q + h0[3:] + ["NEXT"] + self.q_fixup("B", 2) + g2[:h] + self.q_hflag(1) + [(0, self.p2_pre)] + g2[h:])
        self.ts("cB_gelu")
        if self.stop == "p1": self.vm.wait(("h", 2)); self.flush(self.q_flag(27))

    def pair_recv(self, kind, reads):
        a = self.a; L = self.lab("pw"); X = self.lab("pwx")
        a(f"s_xor_b32 {s(sT0)}, {s(sWAVE)}, 2\ns_lshl_b32 {s(sT0)}, {s(sT0)}, 4\ns_add_u32 {s(sT0)}, {s(sT0)}, {SC_FLAG+4*kind}\nv_mov_b32 v12, {s(sT0)}\ns_mov_b32 {s(sSPIN)}, 0")
        a.label(L)
        a("ds_read_b32 v13, v12")
        for r in reads: a(r)
        a(f"s_add_u32 {s(sSPIN)}, {s(sSPIN)}, 1\ns_cmp_gt_u32 {s(sSPIN)}, {SPIN_MAX}\ns_waitcnt lgkmcnt(0)\ns_cbranch_scc1 {X}")
        a(f"v_cmp_eq_u32 vcc, 0, v13\ns_cbranch_vccnz {L}")
        a.label(X)
    def pair_send(self, kind):
        a = self.a
        a(f"s_lshl_b32 {s(sT0)}, {s(sWAVE)}, 4\ns_add_u32 {s(sT0)}, {s(sT0)}, {SC_FLAG+4*kind}\nv_mov_b32 v12, {s(sT0)}\nv_mov_b32 v13, 1\nds_write_b32 v12, v13")

    ON = 156
    RR = (128, 32)
    def q_kv_pre(self):
        G = self
        return ["NEXT"] + self.its([f"ds_read_b128 {v(G.RR[rb]+4*k,4)}, v6 offset:{128*rb+32*k}" for rb in range(2) for k in range(4)]
                                   + [f"v_mov_b32 {v(G.ON+k)}, 0x3f803f80" for k in range(4)] + ["v_xor_b32 v12, 32, v96"])
    def q_kv(self):
        G = self; q = []
        KV, ZZ, u, ON = 16, 48, G.TMP + 16, G.ON
        pend = []
        for n, (rb, kh) in enumerate(((0, 0), (0, 1), (1, 0), (1, 1))):
            c = G.acc(0, rb) + 8*kh; cv = G.acc(1, rb) + 8*kh; r = G.RR[rb] + 8*kh
            w = [f"v_pk_mul_f32 {v(c+j,2)}, {v(c+j,2)}, {v(r+j,2)}" for j in range(0, 8, 2)]
            e = [f"v_exp_f32 {v(u+j)}, {v(c+j)} clamp" for j in range(8)]
            w += pend[:1] + e[:4] + pend[1:] + e[4:]
            w += [f"v_max_f32 {v(c+j)}, v10, {v(c+j)}" for j in range(8)]
            w += [f"v_pk_mul_f32 {v(cv+j,2)}, {v(cv+j,2)}, {v(r+j,2)}" for j in range(0, 8, 2)]
            w += [f"v_pk_fma_f32 {v(u+j,2)}, {v(c+j,2)}, v[10:11], {v(u+j,2)} op_sel:[0,1,0] op_sel_hi:[1,1,1]" for j in range(0, 8, 2)]
            w += [f"v_cvt_pk_bf16_f32 {v(cv+j)}, {v(cv+2*j)}, {v(cv+2*j+1)}" for j in range(4)]
            w += [f"v_cvt_pk_bf16_f32 {v(c+j)}, {v(u+2*j)}, {v(u+2*j+1)}" for j in range(4)]
            pend = [f"v_mfma_f32_32x32x16_bf16 {v(ZZ,16)}, {v(c,4)}, {v(ON,4)}, {v(ZZ,16) if n else 0}",
                    f"v_mfma_f32_32x32x16_bf16 {v(KV,16)}, {v(c,4)}, {v(cv,4)}, {v(KV,16) if n else 0}"]
            q += self.its(w)
        q += self.its(pend) + [self.tsi("cA_kv"), self.it("v_mov_b32 v13, 1")]
        q += self.its([f"v_cndmask_b32 {v(u+j)}, {v(KV+8+j)}, {v(ZZ+8+j)}, {s(sLM,2)}" for j in range(8)])
        q += self.its([f"ds_write_b128 v90, {v(u,4)}", f"ds_write_b128 v90, {v(u+4,4)} offset:16", "ds_write_b32 v96, v13"])
        q += self.its([f"v_cndmask_b32 {v(ZZ+j)}, {v(ZZ+j)}, {v(KV+j)}, {s(sLM,2)}" for j in range(8)])
        q += [(40, lambda: self.pair_spin([f"ds_read_b128 {v(ZZ+8,4)}, v91", f"ds_read_b128 {v(ZZ+12,4)}, v91 offset:16"]))]
        q += self.its([f"v_pk_add_f32 {v(ZZ+j,2)}, {v(ZZ+j,2)}, {v(ZZ+8+j,2)}" for j in range(0, 8, 2)])
        q += self.its([f"v_pk_mul_f32 {v(ZZ+j,2)}, {v(ZZ+j,2)}, v[0:1] op_sel_hi:[1,0]" for j in range(0, 8, 2)])
        q += self.its([f"v_cvt_pk_bf16_f32 {v(u+j)}, {v(ZZ+2*j)}, {v(ZZ+2*j+1)}" for j in range(4)])
        q += [self.vmi(f"buffer_store_dwordx4 {v(u,4)}, v15, {s(sWS,4)}, s85 offen sc1", "kv"), self.tsi("cA_pub")]
        return q
    def pair_spin(self, reads, off=0):
        a = self.a; L = self.lab("pw"); X = self.lab("pwx")
        a(f"s_mov_b32 {s(sSPIN)}, 0")
        a.label(L)
        a(f"ds_read_b32 v13, v12 offset:{off}")
        for r in reads: a(r)
        a(f"s_add_u32 {s(sSPIN)}, {s(sSPIN)}, 1\ns_cmp_gt_u32 {s(sSPIN)}, {SPIN_MAX}\ns_waitcnt lgkmcnt(0)\ns_cbranch_scc1 {X}")
        a(f"v_cmp_eq_u32 vcc, 0, v13\ns_cbranch_vccnz {L}")
        a.label(X)
    def q_kvflag(self):
        sFL, sHD = 27, 3
        return [self.vmw("kv")] + self.q_flag(sHD) + [self.tsi("cA_flag")]
    def q_phiq(self):
        G = self; u = G.TMP; q = []
        for rb in range(2):
            rl, ep, r = G.GC + rb, G.GC + 2 + rb, G.SG + 4*rb + 1
            for hh in range(2):
                c = G.acc(2, rb) + 8*hh
                w = [f"v_mul_f32 {v(u+j)}, {v(rl)}, {v(c+j)}" for j in range(8)]
                w += [f"v_exp_f32 {v(u+j)}, {v(u+j)} clamp" for j in range(8)]
                w += [f"v_max_f32 {v(c+j)}, {v(ep)}, {v(c+j)}" for j in range(8)]
                w += [f"v_fmac_f32 {v(u+j)}, {v(c+j)}, {v(r)}" for j in range(8)]
                w += [f"v_cvt_pk_bf16_f32 {v(c+j)}, {v(u+2*j)}, {v(u+2*j+1)}" for j in range(4)]
                q += self.its(w)
        return q + [self.tsi("cA_q")]

    def typeA(self):
        a = self.a; G = self; T = G.TMP; vm = self.vm
        vm.q = list(self.vm0)
        a("v_and_b32 v8, 1, v4\nv_lshlrev_b32 v8, 2, v8\nv_sub_u32 v8, v5, v8\nv_mov_b32 v9, 0x3f80\nv_mov_b32 v10, 0x3f800000")
        for k, e in enumerate((0, 2, 8, 10)):
            a(f"v_cmp_eq_u32 vcc, {e}, v8\nv_cndmask_b32 v11, 0, v9, vcc\nv_cmp_eq_u32 vcc, {e+1}, v8\nv_cndmask_b32 {v(G.IDN+k)}, v11, v10, vcc")
        sREC, sFL, sHD = 26, 27, 3
        a(f"s_lshl_b32 {s(sHD)}, {s(sG)}, 1\ns_add_u32 {s(sHD)}, {s(sHD)}, {s(sCH)}\ns_lshl_b32 {s(sHD)}, {s(sHD)}, 1\ns_add_u32 {s(sHD)}, {s(sHD)}, {s(sRH)}")
        a(f"s_mul_i32 {s(sREC)}, {s(sHD)}, 10240\ns_add_u32 {s(sREC)}, {s(sREC)}, {WS_KV}\ns_lshl_b32 {s(sFL)}, {s(sHD)}, {FS+4}\ns_add_u32 {s(sFL)}, {s(sFL)}, {WS_FK}")
        a(f"s_lshl_b32 {s(sHD)}, {s(sI)}, {FS}\ns_add_u32 {s(sHD)}, {s(sHD)}, {s(sFL)}\ns_mul_i32 s85, {s(sI)}, 640\ns_add_u32 s85, s85, {s(sREC)}")
        a(f"v_cmp_gt_u32 {s(sLM,2)}, 16, v2\nv_lshl_add_u32 v12, v3, 4, v2\nv_lshlrev_b32 v12, 4, v12\nv_lshlrev_b32 v13, 6, v3\nv_add_u32 v13, 512, v13")
        a(f"v_cndmask_b32 v14, v13, v12, {s(sLM,2)}")
        a(f"v_lshl_add_u32 v13, v5, 4, v13\nv_cndmask_b32 v15, v13, v12, {s(sLM,2)}\nv_mov_b32 v12, {hx(OOB)}\nv_cmp_gt_u32 vcc, 20, v2\nv_cndmask_b32 v15, v12, v15, vcc")
        a(f"v_mov_b32 v9, {fl(0.6931471805599453)}\nv_cndmask_b32 v0, 1.0, v9, {s(sLM,2)}")
        a(f"v_mov_b32 v10, {fl(1e-6*1.4426950408889634)}\nv_mov_b32 v11, v9")
        o = self.o
        pw = []
        if o["pw"]:
            pw = [("GI", o["pw"]), self.vmi(f"buffer_store_dword {v(G.vNZ)}, {v(G.vFL)}, {s(sWS,4)}, s3 offen sc1", "pw"),
                  self.it(f"s_lshl_b32 {s(sT1)}, {s(sI)}, 1\ns_add_u32 {s(sT1)}, {s(sT1)}, {s(sRH)}\ns_lshl_b32 {s(sT1)}, {s(sT1)}, 4\ns_lshl_b32 {s(sT2)}, {s(sG)}, 1"),
                  self.it(f"s_add_u32 {s(sT1)}, {s(sT1)}, {s(sT2)}\ns_add_u32 {s(sT1)}, {s(sT1)}, {s(sCH)}\ns_lshl_b32 {s(sT1)}, {s(sT1)}, {FS}\ns_add_u32 {s(sT1)}, {s(sT1)}, {WS_FO}"),
                  self.vmi(f"buffer_store_dword {v(G.vNZ)}, {v(G.vFL)}, {s(sWS,4)}, {s(sT1)} offen sc1", "pw")]
        q = self.q_stats("A", pw)
        q += self.its([f"s_mul_i32 {s(sT1)}, {s(sWAVE)}, 1280\ns_add_u32 {s(sT1)}, {s(sT1)}, {SC_KVX}\nv_add_u32 v93, {s(sT1)}, v14",
                       "v_xor_b32 v8, 16, v2", "v_lshl_add_u32 v8, v3, 4, v8", "v_lshlrev_b32 v9, 0, v3", "v_add_u32 v9, 32, v9",
                       f"v_cndmask_b32 v8, v8, v9, {s(sLM,2)}", f"v_lshl_add_u32 v90, v8, 5, {s(sT1)}",
                       f"s_xor_b32 {s(sT1)}, {s(sWAVE)}, 2\ns_mul_i32 {s(sT1)}, {s(sT1)}, 1280\ns_add_u32 {s(sT1)}, {s(sT1)}, {SC_KVX}\nv_add_u32 v92, {s(sT1)}, v14",
                       "v_lshl_add_u32 v8, v3, 4, v2", f"v_cndmask_b32 v8, v9, v8, {s(sLM,2)}", f"v_lshl_add_u32 v91, v8, 5, {s(sT1)}"])
        q += self.its([f"s_lshl_b32 {s(sT1)}, {s(sWAVE)}, 4\ns_add_u32 {s(sT1)}, {s(sT1)}, {SC_FLAG}\nv_mov_b32 v96, {s(sT1)}"])
        q += self.q_kv_pre()
        self.mpass("A", 0, q, o["bud0"])
        self.flush(q + ["NEXT"] + self.q_fixup("A", 0) + self.q_fixup("A", 1) + self.q_kv()); self.lg.q = []
        sREC, sFL = 26, 27
        h0 = self.q_h0()
        GA = G.ACC; KP, ZP = G.ACC + 40, G.ACC + 44
        q = [("GI", o["fmA"])] + self.q_kvflag() + self.q_p2setup() + h0[:2]
        q += self.its(["v_mul_u32_u24 v97, 640, v3", "v_lshl_add_u32 v97, v2, 4, v97",
                       "v_and_b32 v8, 7, v5", "v_lshl_add_u32 v8, v8, 1, v3", "v_mul_u32_u24 v98, 640, v8", "v_and_b32 v9, 1, v4", "v_lshl_add_u32 v98, v9, 6, v98", "v_add_u32 v98, 512, v98",
                       f"s_xor_b32 {s(sT1)}, {s(sWAVE)}, 2\ns_mul_i32 {s(sT1)}, {s(sT1)}, 1280\ns_add_u32 {s(sT1)}, {s(sT1)}, {SC_KVX}\nv_lshl_add_u32 v8, v3, 3, {s(sT1)}",
                       "v_lshl_add_u32 v90, v2, 4, v8", "v_lshl_add_u32 v91, v9, 6, v8", "v_add_u32 v91, 512, v91"])
        hb = self.ho_base(7, 43).split("\n")
        q += [self.it("\n".join(hb[k:k+4])) for k in range(0, len(hb), 4)]
        q += self.its([f"s_lshl_b32 {s(sT1)}, {s(sI)}, 1\ns_add_u32 {s(sT1)}, {s(sT1)}, {s(sRH)}\ns_lshl_b32 s6, {s(sT1)}, {FS+4}", f"s_lshl_b32 {s(sT1)}, {s(sT0)}, {FS}\ns_add_u32 s6, s6, {s(sT1)}\ns_add_u32 s6, s6, {WS_FO}",
                       f"s_lshl_b32 s4, {s(sRH)}, {self.SS}\ns_xor_b32 s5, s4, {1 << self.SS}", "s_add_u32 s4, s4, s7\ns_add_u32 s5, s5, s7"])
        L = self.lab("kf"); R = self.lab("kfok")
        q += [("GI", o["kfs"]), self.vmi(self.fload(11, G.vGP, sFL), "kf")]
        kq = [("GI", o["kfc"]), self.vmw("kf"),
              (0, lambda: a(f"v_cmp_ne_u32 vcc, {s(sNONCE)}, v11\ns_cbranch_vccnz {L}\n{R}:")), self.tsi("cA_poll")]
        self.tail.append(f"{L}:\n" + self.poll_text(G.vGP, 11, sFL, self.lab("kfx"), self.lab("kfy")) + f"\ns_branch {R}")
        def gl(k):
            if k == 8: a(f"buffer_load_dwordx4 {v(GA+32,4)}, v98, {s(sWS,4)}, {s(sREC)} offen sc1")
            else: a((f"s_add_u32 s3, {s(sREC)}, {k*1280}\n" if k % 4 == 0 else "") + f"buffer_load_dwordx4 {v(GA+4*k,4)}, v97, {s(sWS,4)}, s3 offen offset:{1280*(k%4)} sc1")
            vm.issue(("ga", k))
        kq += [(0, lambda k=k: gl(k)) for k in (8, 0, 1, 2, 3, 4, 5, 6, 7)]
        if o["kpos"] == 0: q += kq
        self.mpass("A", 1, q, o["budA"])
        self.ts("c_main")
        pq = self.q_phiq(); h = (len(pq) - 1) // 4 * o["pqh"]
        self.flush(q + ["NEXT"] + self.q_fixup("A", 2))
        if o["kpos"] == 2: self.flush(pq); pq = []
        if o["kpos"]: self.flush(kq)
        self.flush(h0[3:])
        a(f"s_mov_b32 {s(sFL)}, s6")
        a("v_lshlrev_b32 v10, 4, v1\nv_mov_b32 v13, 1")
        self.flush(pq[:h])
        vm.wait(("ga", 8)); a(f"v_mfma_f32_16x16x32_bf16 {v(ZP,4)}, {v(G.IDN,4)}, {v(GA+32,4)}, 0")
        for k in range(8):
            vm.wait(("ga", k)); a(f"v_mfma_f32_16x16x32_bf16 {v(KP,4)}, {v(G.IDN,4)}, {v(GA+4*k,4)}, {v(KP,4) if k else 0}")
        self.ts("cA_gath")
        for m in ("quad_perm:[1,0,3,2]", "quad_perm:[2,3,0,1]", "row_half_mirror"):
            for j in range(4): a(f"v_add_f32_dpp {v(ZP+j)}, {v(ZP+j)}, {v(ZP+j)} {m} row_mask:0xf bank_mask:0xf")
        for r_ in (KP, ZP):
            for j in range(2): a(f"v_cvt_pk_bf16_f32 {v(r_+j)}, {v(r_+2*j)}, {v(r_+2*j+1)}")
        a(f"ds_write_b64 v90, {v(KP,2)}\nds_write_b64 v91, {v(ZP,2)}\nds_write_b32 v96, v13 offset:4")
        self.flush(pq[h:])
        F = [T + 8, T + 12]; t = T; PV = G.XS
        self.pair_spin([f"ds_read_b128 {v(F[0],4)}, v92", f"ds_read_b128 {v(F[1],4)}, v93"], off=4)
        O = [G.ACC + 16*k for k in range(4)]
        for hh in range(2):
            for rb in range(2): a(f"v_mfma_f32_32x32x16_bf16 {v(O[2*rb+hh],16)}, {v(F[hh],4)}, {v(G.acc(2,rb)+8*hh,4)}, 0")
        if not o["ofirst"]: self.p2_pre()
        n = 0
        for hh in range(2):
            for rb in range(2):
                o = O[2*rb+hh]; P = PV + 4*(n & 1); n += 1
                a(f"v_add_f32 {v(t)}, {fl(1e-6)}, {v(o+8)}\nv_rcp_f32 {v(t)}, {v(t)}")
                a(f"s_add_u32 {s(sT4)}, {s(4+hh)}, {rb << (self.SS+1)}")
                for j in range(8): a(f"v_mul_f32 {v(o+j)}, {v(t)}, {v(o+j)}")
                for j in range(4): a(f"v_cvt_pk_bf16_f32 {v(P+j)}, {v(o+2*j)}, {v(o+2*j+1)}")
                a(f"buffer_store_dwordx4 {v(P,4)}, v10, {s(sWS,4)}, {s(sT4)} offen sc1"); vm.issue("o")
        self.ts("cA_o")
        if self.o["ofirst"] and self.stop != "p1":
            self.p2_pre(); vm.wait("o"); self.flush(self.q_flag(sFL)); self.ts("cA_oflag")
            a(f"s_lshl_b32 {s(sT0)}, s2, 2\ns_add_u32 {s(sT0)}, {s(sT0)}, {s(sWAVE)}\ns_lshl_b32 {s(sT0)}, {s(sT0)}, 7\ns_add_u32 {s(sFL)}, {s(sT0)}, {WS_DUM}")
        if self.stop == "p1": vm.wait("o"); self.flush(self.q_flag(sFL))

    Y, S2 = 160, 192
    AR = 16; D = 8
    BF = 48
    vBA = 144
    vA, vXC, vXP, vOUT = 150, 151, 152, 153
    vPW, vDW, vPF, vMF, vGP, vCK, vGF, vLV = 154, 155, 156, 157, 0, 159, 158, 9
    vXR, vGB = 124, 10
    XR = 76
    def q_p2setup(self):
        G = self; out = []
        def a(t):
            cur = []
            for ln in t.split("\n"):
                cur.append(ln)
                if ln.startswith("v_"): out.append(self.it("\n".join(cur))); cur = []
            if cur: out.append(self.it("\n".join(cur)))
        for d, ptr, size in ((sOUT, 20, 2097152), (sB2, 18, 1024)): a(f"s_mov_b32 {s(d)}, {s(ptr)}\ns_mov_b32 {s(d+1)}, {s(ptr+1)}"); a(f"s_mov_b32 {s(d+2)}, {size}\ns_mov_b32 {s(d+3)}, 0x00020000")
        sA = sKST
        a(f"s_lshl_b32 {s(sP1)}, {s(sI)}, 1\ns_add_u32 {s(sP1)}, {s(sP1)}, {s(sHF)}\ns_lshl_b32 {s(sP2)}, {s(sP1)}, 2\ns_add_u32 {s(sP2)}, {s(sP2)}, {s(sWAVE)}\ns_lshl_b32 {s(sA)}, {s(sP2)}, {self.SS}")
        if self.o["r2"]:
            a(self.rot2(17, 18, sP2)); a(f"s_lshl_b32 s17, s17, 11\ns_lshl_b32 s18, s18, 11\ns_mov_b32 s16, {s(sA)}")
        a(f"v_lshlrev_b32 {v(G.vA)}, 4, v1")
        a(f"v_lshrrev_b32 v8, 2, v5\nv_lshl_add_u32 v8, v3, 2, v8\ns_lshl_b32 {s(sP2)}, {s(sCH)}, 4\nv_add_u32 v8, {s(sP2)}, v8\nv_lshlrev_b32 v8, 7, v8")
        a("v_and_b32 v9, 1, v5\nv_lshl_add_u32 v8, v9, 3, v8")
        a("v_and_b32 v9, 1, v4\nv_lshlrev_b32 v9, 1, v9\nv_bfe_u32 v0, v5, 1, 1\nv_add_u32 v9, v9, v0\nv_lshrrev_b32 v0, 3, v5\nv_lshlrev_b32 v0, 2, v0\nv_xor_b32 v9, v9, v0")
        a(f"s_lshl_b32 {s(sP2)}, {s(sCH)}, 2\nv_xor_b32 v9, {s(sP2)}, v9")
        a(f"v_lshl_add_u32 {v(G.vBA)}, v9, 4, v8\nv_xor_b32 v9, 4, v9\nv_lshl_add_u32 {v(G.vBA+1)}, v9, 4, v8")
        for w in (1, 2):
            for cb in range(2): a(f"v_add_u32 {v(G.vBA+2*w+cb)}, {65536*w}, {v(G.vBA+cb)}")
        a(f"s_lshl_b32 {s(sP2)}, {s(sWAVE)}, 12\ns_add_u32 {s(sP2)}, {s(sP2)}, {XCH_Y}\nv_add_u32 {v(G.vXC)}, {s(sP2)}, {v(G.vA)}")
        a(f"s_xor_b32 {s(sP2)}, {s(sWAVE)}, 1\ns_lshl_b32 {s(sP2)}, {s(sP2)}, 12\ns_add_u32 {s(sP2)}, {s(sP2)}, {XCH_Y}\nv_add_u32 {v(G.vXP)}, {s(sP2)}, {v(G.vA)}")
        a(f"v_and_b32 v8, 3, v1\nv_lshlrev_b32 v8, 2, v8\nv_add_u32 {v(G.vPW)}, {SC_PROG}, v8\nv_lshlrev_b32 {v(G.vGP)}, {FS}, v5")
        a(f"s_lshl_b32 {s(sP2)}, {s(sWAVE)}, 2\ns_add_u32 {s(sP2)}, {s(sP2)}, {SC_PROG+16}\nv_mov_b32 {v(G.vDW)}, {s(sP2)}")
        a(f"s_lshl_b32 {s(sP2)}, {s(sWAVE)}, 4\ns_add_u32 {s(sP2)}, {s(sP2)}, {SC_FLAG}\nv_mov_b32 {v(G.vMF)}, {s(sP2)}\ns_xor_b32 {s(sP2)}, {s(sP2)}, 16\nv_mov_b32 {v(G.vPF)}, {s(sP2)}")
        a(f"s_lshl_b32 {s(sC0+1)}, {s(sP1)}, {FS+4}\ns_add_u32 {s(sC0+1)}, {s(sC0+1)}, {WS_FO}")
        gs = [int(c) for c in str(self.o["grp"])]; g0 = 0
        a(f"s_mov_b32 {s(sP3)}, {s(sCT)}")
        for n in gs:
            if n > 1:
                a(f"s_lshr_b32 {s(sP2)}, s2, 6\ns_mul_i32 {s(sP2)}, {s(sP2)}, {max(1, (n+1)//4)}\ns_add_u32 {s(sP2)}, {s(sP2)}, {s(sCT)}")
                a(f"s_mul_i32 {s(sP4)}, {s(sP2)}, {-(-256//n)}\ns_lshr_b32 {s(sP4)}, {s(sP4)}, 8\ns_mul_i32 {s(sP4)}, {s(sP4)}, {n}\ns_sub_u32 {s(sP2)}, {s(sP2)}, {s(sP4)}")
                a(f"s_sub_u32 {s(sP2)}, {s(sCT)}, {s(sP2)}\ns_add_u32 {s(sP4)}, {s(sP2)}, {n}\ns_cmp_lt_i32 {s(sP2)}, {g0}\ns_cselect_b32 {s(sP2)}, {s(sP4)}, {s(sP2)}")
                a(f"s_sub_u32 {s(sP4)}, {s(sCT)}, {g0}\ns_cmp_lt_u32 {s(sP4)}, {n}\ns_cselect_b32 {s(sP3)}, {s(sP2)}, {s(sP3)}")
            g0 += n
        a(f"s_lshl_b32 {s(sP3)}, {s(sP3)}, 2\ns_lshl_b32 {s(sP2)}, {s(sHF)}, 1\ns_add_u32 {s(sP3)}, {s(sP3)}, {s(sP2)}\ns_add_u32 {s(sP3)}, {s(sP3)}, {s(sRH)}\ns_lshl_b32 {s(sP3)}, {s(sP3)}, 12")
        a(f"v_bfe_u32 v8, v1, 1, 3\ns_lshl_b32 {s(sP2)}, {s(sCH)}, 2\nv_xor_b32 v8, {s(sP2)}, v8\nv_lshlrev_b32 v8, 4, v8\nv_lshl_add_u32 v8, v3, 3, v8")
        a(f"v_lshl_add_u32 v8, v2, 7, v8\nv_add_u32 {v(G.vXR)}, {s(sP3)}, v8")
        a(f"s_lshl_b32 {s(sP1)}, {s(sP1)}, 1\ns_add_u32 {s(sP1)}, {s(sP1)}, {s(sRH)}\ns_lshl_b32 {s(sP1)}, {s(sP1)}, 15")
        a(f"s_lshl_b32 {s(sP2)}, {s(sCT)}, 1\ns_add_u32 {s(sP2)}, {s(sP2)}, {s(sCH)}\ns_lshl_b32 {s(sP2)}, {s(sP2)}, 6\ns_add_u32 {s(sP1)}, {s(sP1)}, {s(sP2)}")
        a(f"v_lshl_add_u32 v8, v2, 10, {s(sP1)}\nv_lshl_add_u32 {v(G.vOUT)}, v3, 4, v8\ns_mov_b32 {s(sC0+2)}, {s(sP2)}")
        return out

    def phase2(self):
        a = self.a; G = self; D = self.o['D']; sA = sKST
        RING = G.RING
        a.label("L_phase2")
        vm = Cnt(a, "vmcnt", 63); lg = Cnt(a, "lgkmcnt", 15)
        aload = lambda sig: self.aload(vm, sig)
        def breads(sig):
            if sig >= 59: return []
            base = b_lds(sig); w = base >> 16; off = base & 0xffff
            if self.o["e4"] & 4: return [f"ds_read_b128 {v(G.BF+8*(sig%3)+4*cb,4)}, {v(G.vA)} offset:{(off & 0x7fff)+1024*cb}" for cb in range(2)]
            return [f"ds_read_b64_tr_b16 {v(G.BF+8*(sig%3)+4*cb+2*q,2)}, {v(G.vBA+2*w+cb)} offset:{off+1024*q}" for cb in range(2) for q in range(2)]
        def ds(x, tag): a(x); lg.issue(tag)
        def lcheck(vaddr, off, lv, tag, extra=(), ck=G.vCK):
            L = self.lab("lc"); R = self.lab("lcok"); X = self.lab("lcx")
            lg.wait(tag)
            a(f"v_cmp_gt_u32 vcc, {lv}, {v(ck)}\ns_cbranch_vccnz {L}")
            a.label(R)
            ex = "".join(e + "\n" for e in extra)
            self.tail.append(f"""{L}:
s_mov_b32 {s(sSPIN)}, 0
{X}:
ds_read_b32 {v(ck)}, {v(vaddr)} offset:{off}
{ex}s_add_u32 {s(sSPIN)}, {s(sSPIN)}, 1
s_cmp_gt_u32 {s(sSPIN)}, {SPIN_MAX*8}
s_waitcnt lgkmcnt(0)
s_cbranch_scc1 {R}
v_cmp_gt_u32 vcc, {lv}, {v(ck)}
s_cbranch_vccnz {X}
s_branch {R}""")
        def lread(vaddr, off, tag, ck=G.vCK): ds(f"ds_read_b32 {v(ck)}, {v(vaddr)} offset:{off}", tag)
        def lsig(vaddr, off, lv): a(f"v_mov_b32 {v(G.vLV)}, {lv}"); ds(f"ds_write_b32 {v(vaddr)}, {v(G.vLV)} offset:{off}", "sig")
        F4 = self.o["fs4"]; va = G.vGB if F4 else G.vGP
        def gload(soff, r, tag): a(self.fload(r, va, soff)); vm.issue(tag)
        gcheck = lambda soff: self.gcheck(vm, soff, bool(self.o['kearly']), va)
        self.ts("c_p0"); assert self.o["g2h"] < 4
        vm.q = [("A", k) for k in range(8)] + ["gf"] * bool(self.o["kearly"]) + ["pub"] * (4 - self.o["g2h"])
        lsig(G.vDW, 0, 1)
        lread(G.vPW, 0, "ck")
        a(f"v_lshl_add_u32 v8, v2, 1, {s(sC0+2)}\nv_mov_b32 v11, {s(sNONCE)}")
        assert D == 8
        if F4: a(f"v_and_b32 {v(va)}, 3, v1\ns_lshl_b32 {s(sT0)}, {s(sWAVE)}, 2\nv_add_lshl_u32 {v(va)}, {v(va)}, {s(sT0)}, {FS}")
        for sig in range(8, D): aload(sig)
        lcheck(G.vPW, 0, 1, "ck")
        need_prog = {6: 2, 21: 3, 36: 4, 43: 5, 53: 6}
        GL = self.o['gl']; SO = 49152 if GL else 16384
        done_at = {6: 2, 16: 3, 20: 4, (36 if GL else 30): 5}
        gat = {15 - D: sC0, 29 - D: sC0, 43 - D: sC0 + 1}
        yr = [f"ds_read_b128 {v(96+4*q,4)}, {v(G.vXP)} offset:{1024*q}" for q in range(4)]
        for sig in range(2):
            for r in breads(sig): ds(r, ("B", sig))
        T = 96; YK = 112; BB = 128; XX = 240
        work = []
        for q in range(8):
            work += [f"v_lshlrev_b32 {v(XX+2*q)}, 16, {v(G.XR+q)}", f"v_and_b32 {v(XX+2*q+1)}, 0xffff0000, {v(G.XR+q)}"]
        work += ["v_cmp_gt_u32 vcc, 32, v1\nv_mov_b32 v12, 0x3f80", f"v_cndmask_b32 {v(BB+4)}, 0, v12, vcc"] + [f"v_mov_b32 {v(BB+k)}, 0" for k in (1, 2, 3, 5, 6, 7)]
        gw = []
        for half in range(2):
            o = 8 * half
            gw += [f"v_add_f32 {v(YK+o+j)}, {v(T+o+j)}, {v(G.Y+o+j)}" for j in range(8)]
            gw += [f"v_mul_f32 {v(T+o+j)}, {fl(-1.4426950408889634)}, {v(YK+o+j)}" for j in range(8)]
            gw += [f"v_exp_f32 {v(T+o+j)}, {v(T+o+j)}" for j in range(8)]
            gw += [f"v_add_f32 {v(T+o+j)}, 1.0, {v(T+o+j)}" for j in range(8)]
            gw += [f"v_rcp_f32 {v(T+o+j)}, {v(T+o+j)}" for j in range(8)]
            gw += [f"v_mul_f32 {v(YK+o+j)}, {v(YK+o+j)}, {v(T+o+j)}" for j in range(8)]
        held = []
        if GL: gw = []
        for sig in range(59):
            acc = G.Y if sig < 43 else G.S2; first = sig in (0, 43)
            n0 = len(a.items); lg.wait(("B", sig)); vm.wait(("A", sig))
            if self.o["mw"] and len(a.items) == n0 + 2: a.items[n0:] = [a.items[n0 + 1] + " " + a.items[n0].split()[1]]
            A = v(RING[sig % D], 4)
            m = [f"v_mfma_f32_32x32x16_bf16 {v(acc+16*cb,16)}, {v(G.BF+8*(sig%3)+4*cb,4)}, {A}, {0 if first else v(acc+16*cb,16)}" for cb in range(2)]
            self.ts(f"c_s{sig}")
            if sig >= 56 and self.o["tl"]:
                for r in breads(sig + 2): ds(r, ("B", sig + 2))
                held.append((m[0], gw[8*(sig-47): 8*(sig-46)])); a(m[1]); continue
            a(m[0])
            if sig in done_at: lsig(G.vDW, 0, done_at[sig])
            if sig in need_prog: lcheck(G.vPW, 0, need_prog[sig], "ck")
            if sig == 44:
                lcheck(G.vPW, 16, 5, "ck")
                for q in range(4): ds(f"ds_write_b128 {v(G.vXC)}, {v(G.Y+16+4*q,4)} offset:{16384*GL+1024*q}", "yw")
                if not GL: lsig(G.vMF, 8, 1)
            if sig == 45 and GL:
                for q in range(4): ds(f"ds_write_b128 {v(G.vXC)}, {v(G.Y+4*q,4)} offset:{1024*q}", "yw")
                lsig(G.vMF, 8, 1)

            if sig == 47 and not GL: lcheck(G.vPF, 8, 1, "yr", yr)
            rd = breads(sig + 2) if not (self.o["e4"] & 2 and 8 <= sig < 40) else []
            nd = self.o["nd"]
            for r in rd[:nd]: ds(r, ("B", sig + 2))
            fill = []
            if 9 <= sig <= 14: fill = work[4*(sig-9): 4*(sig-8)]
            if sig == 16: fill = ["s_nop 0", f"v_mfma_f32_32x32x16_bf16 {v(G.Y,16)}, {v(BB,4)}, {v(BB+4,4)}, {v(G.Y,16)}"]
            if 47 <= sig <= 58: fill = gw[8*(sig-47): 8*(sig-46)]
            h = len(fill) // 2
            for f in fill[:h]: a(f)
            a(m[1])
            for r in rd[nd:]: ds(r, ("B", sig + 2))
            if sig + 1 in need_prog: lread(G.vPW, 0, "ck")
            if sig == 43: lread(G.vPW, 16, "ck")
            if sig == 55 and GL: lread(G.vPW, 0, "ck")
            if sig == 45 and not GL:
                lread(G.vPF, 8, "yr")
                for r in yr: ds(r, "yr")
            if sig == self.o["pf"]:
                vm.wait("pub"); a(f"buffer_store_dword v11, {v(G.vFL)}, {s(sWS,4)}, s27 offen sc1"); vm.issue("f"); self.ts("c_pflag")
            if F4:
                lvl = lambda k: sorted(gat).index(k) + 1
                if sig + 2 in gat: gcheck(gat[sig + 2]); lsig(G.vDW, 16, lvl(sig + 2))
                if sig + 1 in gat: lread(G.vPW, 32, "sn", G.vGF)
                if sig in gat: self.ts(f"c_gp{sig}"); lcheck(G.vPW, 32, lvl(sig), "sn", ck=G.vGF); self.ts(f"c_g{sig}")
            elif sig in gat: self.ts(f"c_gp{sig}"); gcheck(gat[sig]); self.ts(f"c_g{sig}")
            if not (self.o["e4"] & 1 and 8 <= sig + D < 43): aload(sig + D)
            if sig == 0: a(f"buffer_load_ushort {v(BB)}, v8, {s(sB2,4)}, 0 offen"); vm.issue("x")
            if sig == 15: vm.wait("x")
            ke = self.o["kearly"] or self.o["kpoll"] + 2 * F4
            if self.o["kearly"] and sig + self.o["kpoll"] in gat: gload(gat[sig + self.o["kpoll"]], G.vGB, "gb")
            if sig + ke in gat and (sig > 7 or not self.o["kearly"]):
                so = gat[sig + ke]
                if so == sC0: a(f"s_add_u32 {s(sC0)}, {s(sC0)}, {FG}")
                gload(so, G.vGF, "gf")
            for f in fill[h:]: a(f)
        for m0, f in held[:2]:
            a(m0)
            for x in f: a(x)
            if GL and m0 == held[0][0]:
                lcheck(G.vPW, 0, 7, "ck")
                for q in range(4): ds(f"ds_read_b128 {v(YK+4*q,4)}, {v(G.vXC)} offset:{32768+1024*q}", "g")
        self.ts("c_loop")
        for q in range(4): ds(f"ds_write_b128 {v(G.vXC)}, {v(G.S2+16+4*q,4)} offset:{SO+1024*q}", "sw")
        lsig(G.vMF, 12, 1)
        for m0, f in held[2:]:
            a(m0)
            for x in f: a(x)
        sr = [f"ds_read_b128 {v(T+4*q,4)}, {v(G.vXP)} offset:{SO+1024*q}" for q in range(4)]
        lread(G.vPF, 12, "sr")
        for r in sr: ds(r, "sr")
        lg.wait("g")
        for j in range(0, 16, 2): a(f"v_pk_fma_f32 {v(XX+j,2)}, {v(G.S2+j,2)}, {v(YK+j,2)}, {v(XX+j,2)}")
        lcheck(G.vPF, 12, 1, "sr", sr)
        for half in range(2):
            o = 8 * half; P = BB + 8 + 4 * half
            for j in range(0, 8, 2): a(f"v_pk_fma_f32 {v(XX+o+j,2)}, {v(T+o+j,2)}, {v(YK+o+j,2)}, {v(XX+o+j,2)}")
            for j in range(4): a(f"v_cvt_pk_bf16_f32 {v(P+j)}, {v(XX+o+2*j)}, {v(XX+o+2*j+1)}")
            a(f"v_permlane32_swap_b32 {v(P)}, {v(P+2)}\nv_permlane32_swap_b32 {v(P+1)}, {v(P+3)}")
            a(f"buffer_store_dwordx4 {v(P,4)}, {v(G.vOUT)}, {s(sOUT,4)}, 0 offen offset:{32*half} {['', 'sc1', 'nt', 'sc0 sc1', 'sc1 nt'][self.o['osc']]}")
        self.ts("c_end")
        self.ts_flush()

    def build(self):
        a = self.a
        self.prologue()
        self.compute_setup()
        self.typeA()
        if self.stop == "p1": self.ts_flush(); a("s_endpgm")
        else: a("s_branch L_phase2")
        a.label("L_typeB")
        self.typeB()
        if self.stop == "p1": self.ts_flush(); a("s_endpgm")
        else: self.phase2()
        a.label("L_end")
        a("s_endpgm")
        for t in self.tail: a(t)
        a("L_last:\ns_endpgm")
        body = a.finalize(verbose=True)
        head = open("cdna_kernels/" + KN[:-7] + ".s.ref").read().split("; Override launch")[0]
        return head + f"""; @launch grid=(256,1,1) block=(512,1,1) lds={LDS_SIZE}
;
; One persistent launch, one workgroup per CU: 4 compute waves (MFMA) + 4 loader waves (LDS-DMA / register staging).
; Phase 1, tile 128 rows x 3 panels of 64 columns, raw x resident in LDS, layer norm applied after the GEMM
;   (row mean / rstd are computed once per row and handed round; mean * column-sum and bias enter through one more MFMA):
;   type A workgroups: [K V] -> phi(k), kv / z partials -> [Q] -> sum of the 16 partials, o = num / den
;   type B workgroups: [F F] [F] -> gelu -> h
; Phase 2, tile 64 x 64: y = h @ w2 + b2, s = o @ wo, out = x + s * silu(y).
; Hand-offs go through d_ws with write-through stores and flag lines that carry a per-launch nonce (published in d_debug).
; Generated by gen/gen.py.
.amdgcn_target "amdgcn-amd-amdhsa--gfx950"
.text
.globl {KN}
.p2align 8
.type {KN},@function
{KN}:
{body}
.section .rodata,"a"
.p2align 6
.amdhsa_kernel {KN}
  .amdhsa_next_free_vgpr 256
  .amdhsa_next_free_sgpr 102
  .amdhsa_accum_offset 256
  .amdhsa_group_segment_fixed_size 0
  .amdhsa_kernarg_size 88
  .amdhsa_user_sgpr_count 2
  .amdhsa_user_sgpr_kernarg_segment_ptr 1
  .amdhsa_system_sgpr_workgroup_id_x 1
.end_amdhsa_kernel
"""

if __name__ == "__main__":
    import argparse
    ap = argparse.ArgumentParser()
    ap.add_argument("out"); ap.add_argument("--diag", nargs="?", const="rt"); ap.add_argument("--stop"); ap.add_argument("--dbgout", action="store_true"); ap.add_argument("--marks"); ap.add_argument("--opts"); ap.add_argument("--probe")
    x = ap.parse_args()
    open(x.out, "w").write(Gen(diag=x.diag, stop=x.stop, dbgout=x.dbgout, marks=x.marks, opts=x.opts, probe=x.probe).build())
```

```python
import sys, struct
from asmlib import Asm, v, s

KN = "recurrent_scan__linear_attn_block__dense_activation_gelu__prompt_kernel"
def f2u(x): return struct.unpack("<I", struct.pack("<f", x))[0]
def hx(x): return f"0x{x & 0xffffffff:08x}"
def fl(x): return hx(f2u(x))

WS_HO = 0
WS_KV = 24 << 20
WS_ST = 9 << 20
FS = 7
FG = 16 << FS
WS_FH = WS_KV + 0x80000
WS_FO = WS_FH + 96 * FG
WS_FK = WS_FO + 32 * FG
WS_DUM = 11 << 20
WS_TS = 12 << 20
WS_SIZE = 268435456
OOB = 0x80000000
WR = 131072
SCR = 155648
SC_NONCE = SCR
SC_FLAG = SCR + 64
SC_PROG = SC_FLAG + 64
SC_CS = SCR + 256
SC_R = SCR + 2048
SC_KVX = SCR + 3072
LDS_SIZE = 163840
NSLOT = 38
def b_lds(sig): return (sig % NSLOT) * 4096
XCH_Y = 21 * 4096
XT = 29 * 4096
ORDER = []
for p in range(3):
    for g in range(8):
        for ch in range(2):
            f = 6 * g + 2 * p + ch
            if f < 43: ORDER.append(("w2", f))
ORDER += [("wo", f) for f in range(16)]
assert len(ORDER) == 59
SIG0 = [0, 15, 29]
def pos_of(sig):
    st = 3 if sig >= 43 else 2 if sig >= 29 else 1 if sig >= 15 else 0
    j = sig - (SIG0 + [43])[st]
    return st, j >> 1, j & 1
def hoff(sig, lay=0):
    if not lay: return sig * 1024
    if lay == 2: return (sig >> 3) * 16384 + (sig & 7) * 1024
    par = int(sig >= 29); t = sig - 29 * par
    return (t >> 3) * 16384 + par * 8192 + (t & 7) * 1024
SPIN_MAX = 1 << 18

sX, sW, sW2, sWO, sWS, sDBG, sOUT, sB1, sB2 = 28, 32, 36, 40, 44, 48, 52, 56, 60
sWAVE, sI, sG, sTYPE, sHF, sCT, sKST, sRH, sCH, sNONCE, sSTR = 64, 65, 66, 67, 68, 69, 70, 71, 72, 73, 74
sT0, sT1, sT2, sT3, sT4, sT5 = 75, 76, 77, 78, 79, 80
sC0 = 81
sSPIN = 84
sM = 86
sLM = 60
sWD = 10
sP1, sP2, sP3, sP4 = 12, 13, 14, 15
sWB = 56
sTS = 88

class Cnt:
    def __init__(self, a, name, mx): self.a, self.name, self.mx, self.q = a, name, mx, []
    def issue(self, tag): self.q.append(tag)
    def wait(self, tag):
        if tag not in self.q: return
        k = len(self.q) - 1 - max(i for i, t in enumerate(self.q) if t == tag)
        k = min(k, self.mx)
        self.a(f"s_waitcnt {self.name}({k})")
        self.q = self.q[len(self.q) - k:] if k else []
    def wait_all(self):
        self.a(f"s_waitcnt {self.name}(0)"); self.q = []

class Gen:
    def __init__(self, diag=False, stop=None, dbgout=False, marks=None, opts=None, probe=None):
        self.probe = tuple(int(x) for x in probe.split(',')) if probe else None
        self.o = dict(cpf=5, wt=3, xe=1, w2t=4, t1=14, t2=1, pk=1, kpoll=4, D=8, asc=1, xl=1, mp=1, seg=0, fsc=0,
                      bud0=24, bud2=64, budA=30, nE=33, nL=4, pe0=14, nEA=35, nLA=21, pe0A=15, burst=16, fm=12, fmA=3, ga=20, gc=26, thr=0, fl=32, pre=1, chk=2, pf=5, g2h=3, lay=0, kfs=13, kfc=13, pqh=3, w2s=0, ld=1, t3=0, grp=1223, osc=0, kearly=0, psc=0, pw=0, r2=0, r2m=2, sw=0, sw0=1, sw1=9, swn=4, slp=0, prio=0, m0n=4, mint=3, tl=1, kpos=1, ofirst=0, bk=16, latp=-1, psh=2, pwg=-1, gateA=0, gateB=0, stg=0, e1=0, fs4=0, ow=0, owk=6, e4=0, nd=3, mw=1, gl=0, r2c=1, w7=0, w7s=2, n8=0, nlate=0, f1h=3, eb=1, lateA=0, lateB=0, e2=0, e5=0, snk=7, pku=0, fu=16)
        for kv in (opts or '').split(','):
            if kv: k, x = kv.split('='); assert k in self.o, k; self.o[k] = int(x)
        self.SS = 17 if self.o['lay'] == 2 else 16
        self.dbgout = dbgout; self.verbose = True
        self.marks = {"start": 0}
        for grp in (marks or "c_bar0,c_main,cA_q|cB_gelu,c_p0,c_loop,c_end;l_bar0,l_bar8,l_bland,l_p0,l_p3,l_end").split(";"):
            for k, nm in enumerate(grp.split(",")):
                for x in nm.split("|"): self.marks[x] = k + 1
        self.a = Asm(); self.diag = diag; self.stop = stop; self.uid = 0; self.tail = []
    def lab(self, n): self.uid += 1; return f"L{n}_{self.uid}"
    def ts(self, name):
        if not self.diag or name not in self.marks: return
        k = self.marks[name]
        if self.diag == "both":
            if k == 0: self.a(f"s_memrealtime {s(sTS, 2)}")
            elif k <= 3: self.a(f"s_memrealtime {s(sTS + 2 * k, 2)}\ns_memtime {s(sTS + 2 * k + 6, 2)}")
            return
        self.a(f"{'s_memtime' if self.diag == 'cyc' else 's_memrealtime'} {s(sTS + 2 * k, 2)}")
    def ts_flush(self):
        if not self.diag: return
        a = self.a
        if self.probe:
            pa, pb = self.probe
            L = self.lab("probe"); X = self.lab("probex")
            op = 's_memtime' if self.diag == 'cyc' else 's_memrealtime'
            a(f"s_cmp_ge_u32 {s(sWAVE)}, 4\ns_cbranch_scc1 {X}")
            if self.o["pwg"] >= 0: a(f"s_lshl_b32 {s(sT0)}, s2, 2\ns_add_u32 {s(sT0)}, {s(sT0)}, {s(sWAVE)}\ns_cmp_lg_u32 {s(sT0)}, {self.o['pwg']}\ns_cbranch_scc1 {X}")
            a(f"{op} {s(sM,2)}\ns_waitcnt lgkmcnt(0)")
            if pa < 0: a(f"s_mov_b32 {s(sT0)}, {pb}")
            else: a(f"s_sub_u32 {s(sT0)}, {s(sTS+2*pb)}, {s(sTS+2*pa)}\ns_lshl_b32 {s(sT0)}, {s(sT0)}, {self.o['psh']}")
            a(f"s_min_u32 {s(sT0)}, {s(sT0)}, 400000\ns_mov_b32 {s(sT1)}, {s(sM)}")
            a.label(L)
            a(f"{op} {s(sM,2)}\ns_waitcnt lgkmcnt(0)\ns_sub_u32 {s(sT2)}, {s(sM)}, {s(sT1)}\ns_cmp_lt_u32 {s(sT2)}, {s(sT0)}\ns_cbranch_scc1 {L}")
            a.label(X)
            return
        a("s_waitcnt lgkmcnt(0)")
        a(f"s_lshl_b32 {s(sT0)}, s2, 3\ns_add_u32 {s(sT0)}, {s(sT0)}, {s(sWAVE)}\ns_lshl_b32 {s(sT0)}, {s(sT0)}, 5\ns_add_u32 {s(sT0)}, {s(sT0)}, {WS_TS}")
        for k in range(7): a(f"v_mov_b32 v{8+k}, {s(sTS+2*k)}")
        a("v_mov_b32 v15, 0\nv_mov_b32 v7, 0")
        a("s_mov_b64 exec, 1")
        a(f"buffer_store_dwordx4 v[8:11], v7, {s(sWS,4)}, {s(sT0)} offen")
        a(f"buffer_store_dwordx4 v[12:15], v7, {s(sWS,4)}, {s(sT0)} offen offset:16")
        if self.dbgout:
            L = self.lab("dbgo")
            self.srd(sDBG, 22, 256)
            a(f"s_cmp_lg_u32 {s(sWAVE)}, 0\ns_cbranch_scc1 {L}\ns_and_b32 {s(sT0)}, s2, 0xdf\ns_cmp_lg_u32 {s(sT0)}, 0\ns_cbranch_scc1 {L}")
            for k in range(6, -1, -1): a(f"v_subrev_u32 v{8+k}, {s(sTS)}, v{8+k}")
            a(f"s_add_u32 {s(sT0)}, s2, 4")
            a(f"buffer_store_dwordx4 v[9:12], v7, {s(sDBG,4)}, {s(sT0)} offen".replace("v[9:12]", "v[8:11]"))
            a(f"buffer_store_dwordx3 v[12:14], v7, {s(sDBG,4)}, {s(sT0)} offen offset:16")
            a.label(L)
        a("s_mov_b64 exec, -1")

    def srd(self, d, ptr, size):
        self.a(f"s_mov_b32 {s(d)}, {s(ptr)}\ns_mov_b32 {s(d+1)}, {s(ptr+1)}\ns_mov_b32 {s(d+2)}, {size}\ns_mov_b32 {s(d+3)}, 0x00020000")

    def rot2(self, r7, r8, t):
        return (f"s_lshr_b32 {s(r8)}, s2, 6\ns_mul_i32 {s(r8)}, {s(r8)}, {self.o['r2m']}\ns_add_u32 {s(r8)}, {s(r8)}, {s(sCT) if self.o['r2c'] else 0}\n"
                f"s_mul_i32 {s(t)}, {s(r8)}, 37\ns_lshr_b32 {s(t)}, {s(t)}, 8\ns_mul_i32 {s(t)}, {s(t)}, 7\ns_sub_u32 {s(r7)}, {s(r8)}, {s(t)}\ns_and_b32 {s(r8)}, {s(r8)}, 7")
    def fload(self, r, va, so):
        k = self.o["psc"]
        if k == 4: return f"v_mov_b32 {v(r)}, 0\nbuffer_atomic_or {v(r)}, {v(va)}, {s(sWS,4)}, {s(so)} offen sc0 sc1"
        return f"buffer_load_dword {v(r)}, {v(va)}, {s(sWS,4)}, {s(so)} offen {['sc1', 'sc0 sc1', 'sc1 nt', 'sc0 sc1 nt'][k]}"
    def poll_text(self, vaddr, vtmp, soff, L, X):
        if self.o["mp"]:
            return (f"s_mov_b32 {s(sSPIN)}, 0\ns_mov_b64 exec, 0xffff\n{L}:\n"
                    f"{self.fload(vtmp, vaddr, soff)}\n"
                    f"s_add_u32 {s(sSPIN)}, {s(sSPIN)}, 1\ns_cmp_gt_u32 {s(sSPIN)}, {SPIN_MAX}\ns_waitcnt vmcnt(0)\ns_cbranch_scc1 {X}\n"
                    f"v_cmp_ne_u32 vcc, {s(sNONCE)}, {v(vtmp)}\ns_and_b64 exec, exec, vcc\ns_cbranch_execnz {L}\n{X}:\ns_mov_b64 exec, -1")
        return (f"s_mov_b32 {s(sSPIN)}, 0\n{L}:\n"
                f"{self.fload(vtmp, vaddr, soff)}\n"
                f"s_add_u32 {s(sSPIN)}, {s(sSPIN)}, 1\ns_cmp_gt_u32 {s(sSPIN)}, {SPIN_MAX}\ns_waitcnt vmcnt(0)\ns_cbranch_scc1 {X}\n"
                f"v_cmp_ne_u32 vcc, {s(sNONCE)}, {v(vtmp)}\ns_cbranch_vccnz {L}\n{X}:")
    def poll(self, vaddr, vtmp, soff):
        self.a(self.poll_text(vaddr, vtmp, soff, self.lab("poll"), self.lab("pollx")))

    def prologue(self):
        a = self.a
        a("s_cmp_ge_u32 s2, 256\ns_cbranch_scc1 L_end")
        a("s_load_dwordx16 s[4:19], s[0:1], 0\ns_load_dwordx4 s[20:23], s[0:1], 64\ns_load_dwordx2 s[24:25], s[0:1], 80")
        if self.diag:
            for k in range(1, 7): a(f"s_mov_b32 {s(sTS+2*k)}, 0")
        self.ts("start")
        if self.o["cpf"] >= 2:
            n = self.o["cpf"]
            a(f"s_getpc_b64 s[26:27]\nL_pc:\ns_bfe_u32 s3, s2, {0x30003 if n == 5 else 0x20003 if n == 10 else 0x10003}\ns_mul_i32 s3, s3, {8*n}\nv_lshrrev_b32 v3, 6, v0\nv_and_b32 v4, 63, v0\nv_min_u32 v4, {n-1}, v4\nv_mad_u32_u24 v3, v3, {n}, v4")
            a(f"v_add_lshl_u32 v3, v3, s3, 7\nv_min_u32 v3, L_last-L_pc, v3\nglobal_load_dword {v(self.vDUM)}, v3, s[26:27]")
        elif self.o["cpf"]:
            a(f"s_getpc_b64 s[26:27]\nL_pc:\nv_lshlrev_b32 v3, 7, v0\nv_min_u32 v3, L_last-L_pc, v3\nglobal_load_dword {v(self.vDUM)}, v3, s[26:27]")
        a("v_lshrrev_b32 v2, 6, v0\nv_and_b32 v1, 63, v0")
        a(f"s_and_b32 {s(sT0)}, s2, 3")
        a(f"v_readfirstlane_b32 {s(sWAVE)}, v2")
        a(f"s_bfe_u32 {s(sHF)}, s2, 0x10002")
        a(f"s_bfe_u32 {s(sCT)}, s2, 0x30003")
        a(f"s_lshr_b32 {s(sI)}, s2, 6\ns_lshl_b32 {s(sI)}, {s(sI)}, 2\ns_add_u32 {s(sI)}, {s(sI)}, {s(sT0)}")
        if self.o["seg"]: a(f"s_mov_b32 {s(sTYPE)}, {s(sHF)}\ns_mov_b32 {s(sG)}, {s(sCT)}")
        else:
            a(f"s_lshr_b32 {s(sTYPE)}, {s(sCT)}, 2")
            a(f"s_and_b32 {s(sG)}, {s(sCT)}, 3\ns_lshl_b32 {s(sT0)}, {s(sHF)}, 2\ns_add_u32 {s(sG)}, {s(sG)}, {s(sT0)}")
        a(f"s_lshl_b32 {s(sT0)}, {s(sG)}, 7\ns_mul_i32 {s(sT1)}, {s(sG)}, 384")
        a(f"s_add_u32 {s(sT2)}, {s(sT0)}, 1024\ns_add_u32 {s(sT3)}, {s(sT0)}, 2048\ns_add_u32 {s(sT4)}, {s(sT1)}, 128\ns_add_u32 {s(sT5)}, {s(sT1)}, 256")
        a(f"s_cmp_eq_u32 {s(sTYPE)}, 0")
        a(f"s_movk_i32 {s(sSTR)}, 2752\ns_cselect_b32 {s(sSTR)}, 3072, {s(sSTR)}")
        a(f"s_cselect_b32 {s(sC0)}, {s(sT2)}, {s(sT1)}\ns_cselect_b32 {s(sC0+1)}, {s(sT3)}, {s(sT4)}\ns_cselect_b32 {s(sC0+2)}, {s(sT0)}, {s(sT5)}")
        a(f"s_cmp_ge_u32 {s(sWAVE)}, 4\ns_cbranch_scc1 L_loader")

    def loader(self):
        a = self.a
        vX, vW, vB, vP, vT, vL, PARK = 10, 14, 20, 21, 22, 24, 32
        sWK, sKX, sKW, sXB, sF = 85, 26, 27, 3, sT5
        a.label("L_loader")
        if self.o["prio"] == 2: a("s_setprio 1")
        a(f"s_and_b32 {s(sWK)}, {s(sWAVE)}, 3")
        a("v_lshrrev_b32 v2, 3, v1\nv_and_b32 v3, 7, v1\nv_lshrrev_b32 v4, 4, v1")
        a(f"s_and_b32 {s(sT0)}, {s(sWK)}, 1\ns_lshl_b32 {s(sT0)}, {s(sT0)}, 2\ns_lshl_b32 {s(sT1)}, {s(sWK)}, 3")
        a(f"v_add_u32 v5, {s(sT0)}, v4\nv_xor_b32 v5, v3, v5\nv_lshlrev_b32 v5, 4, v5")
        a(f"v_add_u32 v6, {s(sT1)}, v2")
        a(f"v_lshl_add_u32 {v(vX)}, v6, 10, v5")
        for m in range(1, 4): a(f"v_add_u32 {v(vX+m)}, {m*32768}, {v(vX)}")
        a("v_and_b32 v7, 1, v4\nv_lshlrev_b32 v7, 2, v7\nv_xor_b32 v7, v3, v7\nv_lshlrev_b32 v7, 4, v7")
        a(f"v_mul_u32_u24 v8, {s(sSTR)}, v6")
        a(f"s_lshl_b32 {s(sT2)}, {s(sSTR)}, 5\nv_mov_b32 v2, {hx(OOB)}")
        for p in range(3):
            a(f"v_add_u32 v9, {s(sC0+p)}, v7\nv_cmp_gt_u32 vcc, {s(sSTR)}, v9\nv_add_u32 v9, v8, v9\nv_add_u32 v3, {s(sT2)}, v9")
            a(f"v_cndmask_b32 {v(vW+2*p)}, v2, v9, vcc\nv_cndmask_b32 {v(vW+2*p+1)}, v2, v3, vcc")
        a(f"s_lshl_b32 {s(sWK)}, {s(sWK)}, 10\ns_lshl_b32 {s(sXB)}, {s(sI)}, 17\ns_lshl_b32 {s(sT3)}, {s(sSTR)}, 5")
        self.ts("l_pre")
        a("s_waitcnt lgkmcnt(0)")
        self.srd(sX, 4, 2097152)
        a(f"s_lshl_b32 {s(sW+2)}, {s(sSTR)}, 9\ns_mov_b32 {s(sW+3)}, 0x00020000\ns_cmp_eq_u32 {s(sTYPE)}, 0")
        a(f"s_cselect_b32 {s(sW)}, s6, s12\ns_cselect_b32 {s(sW+1)}, s7, s13")
        self.ts("l_karg")
        vm = Cnt(a, "vmcnt", 63)
        def bsrc(sig):
            mat, f = ORDER[sig]; st, j2, ch = pos_of(sig)
            if not self.o["r2"] or sig == 14: a(f"s_mov_b32 {s(sF)}, {f*32768}")
            elif st < 3: a(f"s_add_u32 {s(sF)}, {s(4+j2)}, {(2*st+ch)*32768}")
            else: a(f"s_add_u32 {s(sF)}, {s(11+j2)}, {ch*32768}")
            return s(sW2 if mat == 'w2' else sWO, 4)
        gs = [int(c) for c in str(self.o["grp"])]; assert sum(gs) == 8
        grp_of = [(sum(gs[:n]), gs[n]) for n in range(len(gs)) for _ in range(gs[n])]
        rot = lambda pos: grp_of[pos][1] > 1
        sK0 = 56
        def ktable(lo, hi):
            for pos in range(lo, hi):
                g0, n = grp_of[pos]
                if n == 1: continue
                if pos == g0:
                    a(f"s_lshr_b32 {s(sT1)}, s2, 6\ns_mul_i32 {s(sT1)}, {s(sT1)}, {max(1, (n+1)//4)}\ns_add_u32 {s(sT1)}, {s(sT1)}, {s(sCT)}")
                    a(f"s_mul_i32 {s(sT0)}, {s(sT1)}, {-(-256//n)}\ns_lshr_b32 {s(sT0)}, {s(sT0)}, 8\ns_mul_i32 {s(sT0)}, {s(sT0)}, {n}\ns_sub_u32 {s(sT1)}, {s(sT1)}, {s(sT0)}\ns_add_u32 {s(sK0+pos)}, {s(sT1)}, {g0}")
                else:
                    a(f"s_add_u32 {s(sK0+pos)}, {s(sK0+pos-1)}, 1\ns_cmp_eq_u32 {s(sK0+pos)}, {g0+n}\ns_cselect_b32 {s(sK0+pos)}, {g0}, {s(sK0+pos)}")
        def wst(st, reg=False):
            pos = st // 2 if st < 16 else st - 16
            if rot(pos):
                a(f"s_lshl_b32 {s(sKW)}, {s(sK0+pos)}, 1" + (f"\ns_add_u32 {s(sKW)}, {s(sKW)}, 1" if st < 16 and st & 1 else "") + f"\ns_mul_i32 {s(sKW)}, {s(sKW)}, {s(sT3)}")
            else: a(f"s_mul_i32 {s(sKW)}, {s(sT3)}, {st if st < 16 else 2*(st-16)}")
            for m in range(2):
                if reg:
                    a(f"buffer_load_dwordx4 {v(224 + 8*(st % 4) + 4*m, 4)}, {v(vW + (2*m if st < 16 else 4+m))}, {s(sW,4)}, {s(sKW)} offen"); vm.issue(("R", st))
                    continue
                a(f"s_add_u32 m0, {s(sWK)}, {WR + (st % 3)*8192 + m*4096}")
                a(f"buffer_load_dwordx4 {v(vW + (2*m if st < 16 else 4+m))}, {s(sW,4)}, {s(sKW)} offen lds"); vm.issue(("S", st))
        STG = self.o["stg"]
        def feed(k):
            if self.o["e1"] == 2 and 1 < k < 14: return
            if not STG: wst(k + 2); xpair(k + 3); return
            if k == 0: wst(2); xpair(3); wst(3, True); xpair(4)
            if k + 4 <= STG: wst(k + 4, True)
            if STG < k + 2 < 24: wst(k + 2)
            xpair(k + 5)
            if 3 <= k + 2 <= STG:
                vm.wait(("R", k + 2))
                for m in range(2): a(f"ds_write_b128 {v(vL+2)}, {v(224 + 8*((k+2) % 4) + 4*m, 4)} offset:{WR - 131072 + ((k+2) % 3)*8192 + m*4096}")
        def ready(k):
            if self.o["e1"] and 2 < k < 16: return
            vm.wait(("S", k))
            if 3 <= k <= STG: a(f"s_waitcnt lgkmcnt({2 if k + 1 <= STG else 0})")
        def xpair(n):
            k = n >> 1
            if k >= 8: return
            if rot(k): a(f"s_lshl_b32 {s(sKX)}, {s(sK0+k)}, 7\ns_add_u32 {s(sKX)}, {s(sKX)}, {s(sXB)}")
            else: a(f"s_add_u32 {s(sKX)}, {s(sXB)}, {128*k}")
            for mm in (2*(n & 1), 2*(n & 1) + 1):
                a(f"s_add_u32 m0, {s(sWK)}, {k*16384 + mm*4096}")
                a(f"buffer_load_dwordx4 {v(vX+mm)}, {s(sX,4)}, {s(sKX)} offen lds"); vm.issue(("S", 2*k))
        st_ = dict(nE=0)
        preg = lambda sig: PARK + 4*sig if sig < st_["nE"] else PARK + 4*(st_["nE"] + sig - NSLOT)
        def bstep(sig):
            a(f"s_add_u32 m0, {s(sWK)}, {b_lds(sig)}")
            srd = bsrc(sig)
            a(f"buffer_load_dwordx4 {v(vB)}, {srd}, {s(sF)} offen lds"); vm.issue(("B", sig))
        def park(sig):
            srd = bsrc(sig)
            a(f"buffer_load_dwordx4 {v(preg(sig),4)}, {v(vB)}, {srd}, {s(sF)} offen"); vm.issue(("B", sig))
        def put(sig):
            base = b_lds(sig); w = base >> 16
            a(f"ds_write_b128 {v(vL+w)}, {v(preg(sig),4)} offset:{base-65536*w}")
        if self.o["ld"]: a("s_barrier")
        ktable(0, 1); wst(0); xpair(0); xpair(1); self.ts("l_s0"); wst(1); ktable(1, 8); xpair(2); self.ts("l_s2")
        vPG, vDN = 28, 29
        self.srd(sW2, 16, 1409024); self.srd(sWO, 8, 524288); self.srd(sWS, 24, WS_SIZE)
        if self.o["r2"]:
            a(self.rot2(sT0, sT1, sT2))
            for base, n, r, step in ((4, 7, sT0, 6*32768), (11, 8, sT1, 2*32768)):
                a(f"s_mul_i32 {s(base)}, {s(r)}, {step}")
                for j in range(1, n): a(f"s_add_u32 {s(base+j)}, {s(base+j-1)}, {step}\ns_cmp_eq_u32 {s(base+j)}, {n*step}\ns_cselect_b32 {s(base+j)}, 0, {s(base+j)}")
        a(f"s_lshl_b32 {s(sT0)}, {s(sCT)}, 7\nv_lshl_add_u32 {v(vB)}, v6, 10, v7\nv_add_u32 {v(vB)}, {s(sT0)}, {v(vB)}")
        a(f"v_lshl_add_u32 {v(vL)}, v1, 4, {s(sWK)}\nv_add_u32 {v(vL+1)}, 65536, {v(vL)}\nv_add_u32 {v(vL+2)}, 131072, {v(vL)}")
        a(f"s_lshr_b32 {s(sT0)}, {s(sWK)}, 8\ns_add_u32 {s(sT0)}, {s(sT0)}, {SC_PROG}\nv_mov_b32 {v(vPG)}, {s(sT0)}")
        a(f"v_and_b32 {v(vDN)}, 3, v1\nv_lshlrev_b32 {v(vDN)}, 2, {v(vDN)}\nv_add_u32 {v(vDN)}, {SC_PROG+16}, {v(vDN)}")
        def prog(lv): a(f"v_mov_b32 {v(vT)}, {lv}\nds_write_b32 {v(vPG)}, {v(vT)}")
        sw = self.o["sw"]; tq = [[], []]
        if sw:
            assert not self.o["r2"]
            a(f"s_lshr_b32 {s(sT1)}, {s(sWK)}, 10\ns_lshl_b32 {s(sT0)}, s2, 2\ns_add_u32 {s(sT0)}, {s(sT0)}, {s(sT1)}")
            a(f"s_mul_i32 {s(sT2)}, {s(sT0)}, 1376\ns_add_u32 s10, s16, {s(sT2)}\ns_addc_u32 s11, s17, 0\ns_lshl_b32 {s(sT2)}, {s(sT0)}, 9\ns_add_u32 s12, s8, {s(sT2)}\ns_addc_u32 s13, s9, 0")
            a(f"s_lshr_b32 {s(sT0)}, s2, 3\ns_mul_i32 {s(sT2)}, {s(sT1)}, 11\ns_min_u32 {s(sT2)}, {s(sT2)}, 32\ns_mul_i32 s14, {s(sT0)}, 43\ns_add_u32 {s(sT2)}, {s(sT2)}, s14\ns_lshl_b32 {s(sT2)}, {s(sT2)}, 10\ns_add_u32 s14, s16, {s(sT2)}\ns_addc_u32 s15, s17, 0")
            a(f"s_lshl_b32 {s(sT0)}, {s(sT0)}, 2\ns_add_u32 {s(sT0)}, {s(sT0)}, {s(sT1)}\ns_lshl_b32 {s(sT0)}, {s(sT0)}, 12\ns_add_u32 s18, s8, {s(sT0)}\ns_addc_u32 s19, s9, 0")
            if sw & 1: tq[0] = [f"s_load_dword s20, s[10:11], {64*u}" for u in range(22)] + [f"s_load_dword s20, s[12:13], {64*u}" for u in range(8)]
            if sw & 2: tq[1] = [f"s_load_dword s20, s[14:15], {1024*r + 384 + u}" for r in range(11) for u in (0, 64)] + [f"s_load_dword s20, s[18:19], {1024*r + 384 + u}" for r in range(4) for u in (0, 64)]
        def touch(k, tq):
            for j in range(2):
                if k >= self.o[f"sw{j}"]:
                    for x in tq[j][:self.o["swn"]]: a(x)
                    tq[j] = tq[j][self.o["swn"]:]
        N = 24; KS = 12
        for k in range(KS):
            ready(k); self.ts(f"l_land{k}"); a("s_barrier"); self.ts(f"l_bar{k}")
            feed(k); touch(k, tq)
            if self.o["ow"] and k == self.o["owk"]:
                self.srd(sOUT, 20, 2097152)
                a(f"s_lshl_b32 {s(sT0)}, {s(sI)}, 1\ns_add_u32 {s(sT0)}, {s(sT0)}, {s(sHF)}\ns_lshl_b32 {s(sT0)}, {s(sT0)}, 16\ns_lshl_b32 {s(sT1)}, {s(sCT)}, 7\ns_add_u32 {s(sT0)}, {s(sT0)}, {s(sT1)}")
                for m in range(2):
                    if self.o["ow"] == 1: a(f"buffer_store_dwordx4 v[4:7], {v(vX+m)}, {s(sOUT,4)}, {s(sT0)} offen")
                    else: a(f"buffer_load_dwordx4 v[32:35], {v(vX+m)}, {s(sOUT,4)}, {s(sT0)} offen")
                    vm.issue("ow")
        a(f"s_cmp_eq_u32 {s(sTYPE)}, 0\ns_cbranch_scc0 L_loadB")
        q0 = list(vm.q)
        for typ in "AB":
            if typ == "B": a.label("L_loadB")
            tq2 = [list(x) for x in tq]
            vm.q = list(q0); sfx = "A" if typ == "A" else ""
            nE, nL, pe0 = (self.o[x + sfx] for x in ("nE", "nL", "pe0")); burst = self.o["burst"] if typ == "A" else 0
            assert nE <= 35 and pe0 >= KS; st_["nE"] = nE
            early = list(range(nE)) + list(range(NSLOT, NSLOT + nL)); nxt = 0
            for k in range(KS, N):
                ready(k); self.ts(f"l_land{k}"); a("s_barrier"); self.ts(f"l_bar{k}")
                if k + 2 < N: feed(k)
                touch(k, tq2)
                if k >= pe0:
                    while nxt < -(-(len(early) - burst) * (k + 1 - pe0) // (N - pe0)) + (burst if k >= self.o['bk'] else 0): assert preg(early[nxt]) < 224 or k > STG or not STG; park(early[nxt]); nxt += 1
            a("s_barrier")
            self.ts("l_barN")
            assert nxt == len(early)
            def done(lv):
                L = self.lab("dw"); X = self.lab("dwx")
                a(f"s_mov_b32 {s(sSPIN)}, 0")
                a.label(L)
                if self.o["slp"]: a(f"s_sleep {self.o['slp']}")
                a(f"ds_read_b32 {v(vP)}, {v(vDN)}\ns_add_u32 {s(sSPIN)}, {s(sSPIN)}, 1\ns_cmp_gt_u32 {s(sSPIN)}, {SPIN_MAX*8}\ns_waitcnt lgkmcnt(0)\ns_cbranch_scc1 {X}")
                a(f"v_cmp_gt_u32 vcc, {lv}, {v(vP)}\ns_cbranch_vccnz {L}")
                a.label(X)
            gate = self.o['gate' + typ]
            late = self.o["late" + typ]; todo = [x for x in range(NSLOT if late else 59) if x not in early]; lvl = [(7, 1), (22, 2), (37, 3)]
            def more(n):
                for _ in range(n):
                    if todo:
                        sig = todo.pop(0)
                        bstep(sig) if sig < NSLOT else park(sig)
                        if self.o["thr"] and len(vm.q) > self.o["thr"]: vm.wait(vm.q[-1 - self.o["thr"]])
            thr_ = self.o['thr']; self.o['thr'] = 0; more(0 if gate else self.o['m0n'])
            for sig in range(nE):
                vm.wait(("B", sig)); put(sig)
                if lvl and sig == lvl[0][0]: prog(lvl.pop(0)[1])
                if not gate and self.o['mint'] and sig % self.o['mint'] == self.o['mint'] - 1: more(1)
            self.o['thr'] = thr_
            self.ts("l_put")
            if gate and self.stop != "p1": done(1)
            while todo:
                more(1)
                if lvl and todo and todo[0] >= lvl[0][0] + 7: vm.wait(("B", lvl[0][0])); prog(lvl.pop(0)[1])
            for sg, lv in lvl: vm.wait(("B", sg)); prog(lv)
            self.ts("l_bissue")
            if self.stop == "p1":
                vm.wait_all(); self.ts_flush(); a("s_endpgm"); continue
            for lv, (lo, hi) in enumerate(((38, 45), (45, 55), (55, 59))):
                vm.wait(("B", hi - 1))
                if lv == 2: self.ts("l_bland")
                done(lv + 2)
                for sig in range(lo, hi):
                    if late and sig not in early: bstep(sig)
                    else: put(sig)
                if late: vm.wait_all()
                prog(4 + lv)
                self.ts(f"l_ref{lv}")
            if self.o["gl"]:
                Y0, Y1, vY, vYP = 32, 48, 30, 31
                a(f"s_lshl_b32 {s(sT0)}, {s(sWK)}, 2\ns_add_u32 {s(sT0)}, {s(sT0)}, {XCH_Y}\nv_lshl_add_u32 {v(vY)}, v1, 4, {s(sT0)}")
                a(f"s_lshl_b32 {s(sT0)}, {s(sWK)}, 2\ns_xor_b32 {s(sT0)}, {s(sT0)}, 4096\ns_add_u32 {s(sT0)}, {s(sT0)}, {XCH_Y}\nv_lshl_add_u32 {v(vYP)}, v1, 4, {s(sT0)}")
                a(f"s_lshr_b32 {s(sT0)}, {s(sWK)}, 6\ns_and_b32 {s(sT0)}, {s(sT0)}, 32\ns_add_u32 {s(sT0)}, {s(sT0)}, {SC_FLAG+8}\nv_and_b32 {v(vDN)}, 1, v1\nv_lshl_add_u32 {v(vDN)}, {v(vDN)}, 4, {s(sT0)}")
                done(1)
                for q in range(4): a(f"ds_read_b128 {v(Y0+4*q,4)}, {v(vY)} offset:{1024*q}\nds_read_b128 {v(Y1+4*q,4)}, {v(vYP)} offset:{16384+1024*q}")
                for half in range(2):
                    o = 8 * half
                    a(f"s_waitcnt lgkmcnt({4-4*half})")
                    for j in range(8): a(f"v_add_f32 {v(Y0+o+j)}, {v(Y0+o+j)}, {v(Y1+o+j)}")
                    for j in range(8): a(f"v_mul_f32 {v(Y1+o+j)}, {fl(-1.4426950408889634)}, {v(Y0+o+j)}")
                    for j in range(8): a(f"v_exp_f32 {v(Y1+o+j)}, {v(Y1+o+j)}")
                    for j in range(8): a(f"v_add_f32 {v(Y1+o+j)}, 1.0, {v(Y1+o+j)}")
                    for j in range(8): a(f"v_rcp_f32 {v(Y1+o+j)}, {v(Y1+o+j)}")
                    for j in range(8): a(f"v_mul_f32 {v(Y0+o+j)}, {v(Y0+o+j)}, {v(Y1+o+j)}")
                for q in range(4): a(f"ds_write_b128 {v(vY)}, {v(Y0+4*q,4)} offset:{32768+1024*q}")
                prog(7)
            a("s_waitcnt lgkmcnt(0)")
            self.ts("l_end")
            self.ts_flush()
            a("s_endpgm")

    ACC = 160
    SEL = 64
    CSM = dict(A=(68, 72, 68), B=(68, 72, 90))
    vXA, vXB, vWE, vWO = 76, 80, 84, 87
    GR = 90
    vCW, vCR = 94, 95
    vT0, vT1, vT2 = 97, 98, 99
    SG = 100
    IDN = 108
    B1 = 108
    XS = 112
    GC = 120
    vSTA, vSTG, vNZ, vDUM = 124, 125, 126, 127
    vFL = 7
    TMP = 128
    FX = 152
    KVA = 16
    def acc(self, p, rb): return self.ACC + 32 * p + 16 * rb

    def it(self, text):
        cost = 0
        for ln in text.split("\n"):
            op = ln.split()[0]
            if op.endswith(":"): continue
            cost += 32 if op.startswith("v_mfma") else 8 if op in ("v_exp_f32", "v_rcp_f32", "v_rsq_f32") else 5 if (op.startswith(("ds_", "buffer_", "v_fma_", "v_cvt_pk", "v_cndmask", "v_lshl_add")) or "0x" in ln) else 4
        return (cost, lambda: self.a(text))
    def its(self, lst): return [self.it(x) for x in lst]
    def vmi(self, text, tag): return (6, lambda: (self.a(text), self.vm.issue(tag)))
    def vmw(self, tag): return (4, lambda: self.vm.wait(tag))
    def tsi(self, name): return (0, lambda: self.ts(name))
    def flush(self, q):
        while q:
            x = q.pop(0)
            if x == "NEXT": self.a("s_waitcnt lgkmcnt(0)")
            elif x == "BAR": raise RuntimeError("barrier marker left over")
            elif x[0] == "GI": continue
            else: x[1]()

    def compute_setup(self):
        a = self.a; G = self; T = G.TMP
        if self.o["prio"] == 1: a("s_setprio 1")
        self.vm = vm = Cnt(a, "vmcnt", 63)
        a(f"s_bfe_u32 {s(sRH)}, {s(sWAVE)}, 0x10001\ns_and_b32 {s(sCH)}, {s(sWAVE)}, 1")
        a("v_and_b32 v2, 31, v1\nv_lshrrev_b32 v3, 5, v1\nv_lshrrev_b32 v4, 4, v1\nv_and_b32 v5, 15, v1")
        a(f"v_mov_b32 {v(G.vNZ)}, 0")
        a(f"s_lshl_b32 {s(sT0)}, {s(sHF)}, 3\ns_add_u32 {s(sT0)}, {s(sT0)}, {s(sCT)}\ns_lshl_b32 {s(sT0)}, {s(sT0)}, 3")
        a(f"s_lshl_b32 {s(sT1)}, {s(sI)}, 7\ns_add_u32 {s(sT0)}, {s(sT0)}, {s(sT1)}\ns_lshl_b32 {s(sT2)}, {s(sWAVE)}, 1\ns_add_u32 {s(sT0)}, {s(sT0)}, {s(sT2)}")
        a(f"v_add_u32 v6, {s(sT0)}, v3\nv_lshlrev_b32 v11, 4, v2\nv_lshl_add_u32 v11, v6, 10, v11")
        a(f"s_lshl_b32 {s(sT2)}, {s(sI)}, 3\ns_add_u32 {s(sT2)}, {s(sT2)}, {s(sG)}\ns_lshl_b32 {s(sT3)}, {s(sSTR)}, 2\ns_mul_i32 {s(sT2)}, {s(sT2)}, {s(sT3)}\ns_sub_u32 {s(sT3)}, {s(sT3)}, 4")
        a(f"s_mul_i32 {s(sT4)}, {s(sWAVE)}, 24\nv_min_u32 v12, 23, v1\nv_add_lshl_u32 v12, v12, {s(sT4)}, 7\nv_min_u32 v12, {s(sT3)}, v12\nv_add_u32 {v(G.vT0)}, {s(sT2)}, v12")
        a(f"s_lshl_b32 {s(sW+2)}, {s(sSTR)}, 9\ns_mov_b32 {s(sW+3)}, 0x00020000\ns_cmp_eq_u32 {s(sTYPE)}, 0\ns_waitcnt lgkmcnt(0)")
        self.ts("c_karg")
        a(f"s_cselect_b32 {s(sW)}, s6, s12\ns_cselect_b32 {s(sW+1)}, s7, s13")
        self.srd(sX, 4, 2097152)
        if self.o["latp"] >= 0:
            self.srd(sOUT, 4 + 2*self.o["latp"], 524288)
            a(f"s_lshl_b32 {s(sT4)}, s2, 2\ns_add_u32 {s(sT4)}, {s(sT4)}, {s(sWAVE)}\ns_lshl_b32 {s(sT4)}, {s(sT4)}, 9\nv_mov_b32 v12, 0")
            a("s_waitcnt vmcnt(0)"); self.ts("c_l0"); a("s_waitcnt lgkmcnt(0)")
            a(f"buffer_load_dword v13, v12, {s(sOUT,4)}, {s(sT4)} offen\ns_waitcnt vmcnt(0)")
            self.ts("c_l1")
        def xs():
            a(f"buffer_load_dwordx4 {v(T,4)}, v11, {s(sX,4)}, 0 offen\nbuffer_load_dwordx4 {v(T+4,4)}, v11, {s(sX,4)}, 0 offen offset:512"); vm.issue("xs"); vm.issue("xs")
        if self.o["xe"]: xs()
        if self.o["wt"] == 3: a(f"buffer_load_dword {v(G.vDUM)}, {v(G.vT0)}, {s(sW,4)}, 0 offen"); vm.issue("t")
        if self.o["ld"]: a("s_barrier")
        L = self.lab("non")
        a(f"s_lshr_b32 {s(sT3)}, s2, {3 if self.o['n8'] else 0}\ns_or_b32 {s(sT3)}, {s(sT3)}, {s(sWAVE)}\ns_cmp_lg_u32 {s(sT3)}, 0\ns_cbranch_scc1 {L}")
        a(f"s_memrealtime {s(sM,2)}\ns_waitcnt lgkmcnt(0)")
        self.srd(sDBG, 22, 256)
        a(f"s_or_b32 {s(sT3)}, {s(sM)}, 1\nv_mov_b32 v8, {s(sT3)}\ns_mov_b64 exec, 1")
        if self.o["n8"]: a(f"v_mov_b32 v9, 0\nbuffer_atomic_cmpswap v[8:9], {v(G.vNZ)}, {s(sDBG,4)}, 0 offen sc1\ns_mov_b64 exec, -1")
        else: a(f"buffer_store_dword v8, {v(G.vNZ)}, {s(sDBG,4)}, 0 offen sc1\ns_mov_b64 exec, -1")
        a.label(L)
        a("s_branch L_compute")
        self.loader()
        a.label("L_compute")
        a(f"v_lshlrev_b32 v8, 4, v3\nv_lshl_add_u32 v8, v2, 5, v8\ns_lshl_b32 {s(sT0)}, {s(sT0)}, 5\nv_add_u32 v8, {s(sT0)}, v8\nv_mov_b32 v9, {hx(OOB)}\nv_cmp_gt_u32 vcc, 2, v2\nv_add_u32 v8, {WS_ST}, v8\nv_cndmask_b32 {v(G.vSTA)}, v9, v8, vcc")
        a(f"v_cmp_gt_u32 vcc, {self.o['fl']}, v1\nv_lshlrev_b32 v8, 2, v1\nv_cndmask_b32 {v(G.vFL)}, v9, v8, vcc")
        a(f"s_lshl_b32 {s(sT2)}, {s(sRH)}, 6\ns_add_u32 {s(sT1)}, {s(sT1)}, {s(sT2)}\nv_add_u32 v8, {s(sT1)}, v2\nv_and_b32 v10, 1, v8\nv_lshlrev_b32 v8, 5, v8\nv_lshlrev_b32 v10, 4, v10\nv_sub_u32 v8, v8, v10\nv_add_u32 {v(G.vSTG)}, {WS_ST}, v8")
        a("v_bfe_u32 v8, v1, 1, 3")
        a(f"s_lshl_b32 {s(sT2)}, {s(sRH)}, 13\nv_lshl_add_u32 v9, v2, 7, {s(sT2)}")
        for tau in range(4):
            a(f"s_xor_b32 {s(sT3)}, {s(sRH)}, {tau}\ns_lshl_b32 {s(sT3)}, {s(sT3)}, 1")
            a(f"v_add_u32 v10, {s(sT3)}, v3\nv_xor_b32 v10, v10, v8\nv_lshl_add_u32 {v(G.vXA+tau)}, v10, 4, v9\nv_add_u32 {v(G.vXB+tau)}, 65536, {v(G.vXA+tau)}")
        a("v_lshrrev_b32 v8, 2, v5\nv_lshl_add_u32 v8, v3, 3, v8\nv_lshlrev_b32 v8, 7, v8")
        a("v_and_b32 v9, 1, v4\nv_lshlrev_b32 v9, 1, v9\nv_bfe_u32 v10, v5, 1, 1\nv_add_u32 v9, v9, v10")
        a("v_lshrrev_b32 v10, 3, v5\nv_lshlrev_b32 v10, 2, v10\nv_xor_b32 v9, v9, v10")
        a("v_and_b32 v10, 1, v5\nv_lshlrev_b32 v10, 3, v10\nv_add_u32 v8, v8, v10")
        a(f"s_xor_b32 {s(sT3)}, {s(sTYPE)}, 1\ns_and_b32 {s(sT3)}, {s(sT3)}, {s(sRH)}\ns_lshl_b32 {s(sT3)}, {s(sT3)}, 1")
        a(f"s_lshl_b32 {s(sT2)}, {s(sCH)}, 2\ns_or_b32 {s(sT2)}, {s(sT2)}, {s(sT3)}\nv_xor_b32 v10, {s(sT2)}, v9\nv_lshl_add_u32 v10, v10, 4, v8")
        a(f"s_lshl_b32 {s(sT2)}, {s(sRH)}, 11")
        for sl in range(3):
            a(f"s_add_u32 {s(sT4)}, {s(sT2)}, {WR+8192*sl}\ns_sub_u32 {s(sT5)}, {WR+8192*sl}, {s(sT2)}")
            a(f"v_add_u32 {v(G.vWE+sl)}, {s(sT4)}, v10\nv_add_u32 {v(G.vWO+sl)}, {s(sT5)}, v10")
        a(f"v_lshrrev_b32 v8, 2, v5\nv_xor_b32 v8, v8, v4\nv_and_b32 v8, 1, v8\nv_cmp_eq_u32 vcc, 0, v8\nv_mov_b32 v9, 0x3f803f80")
        for q in range(4): a(f"v_cndmask_b32 {v(G.SEL+q)}, 0, v9, vcc")
        a(f"s_mul_i32 {s(sT0)}, {s(sWAVE)}, 384\ns_add_u32 {s(sT0)}, {s(sT0)}, {SC_CS}\nv_lshl_add_u32 {v(G.vCW)}, v2, 2, {s(sT0)}")
        a(f"s_xor_b32 {s(sT0)}, {s(sWAVE)}, 2\ns_mul_i32 {s(sT0)}, {s(sT0)}, 384\ns_add_u32 {s(sT0)}, {s(sT0)}, {SC_CS}\ns_xor_b32 {s(sT1)}, {s(sTYPE)}, 1\ns_lshl_b32 {s(sT1)}, {s(sT1)}, 4")
        a(f"v_xor_b32 v8, {s(sT1)}, v2\nv_lshl_add_u32 {v(G.vCR)}, v8, 2, {s(sT0)}")
        a(f"v_lshlrev_b32 v8, 2, v2\nv_add_u32 v8, {SC_FLAG}, v8\nds_write_b32 v8, {v(G.vNZ)}")
        if self.o["wt"] == 2: a(f"buffer_load_dword {v(G.vDUM)}, {v(G.vT0)}, {s(sW,4)}, 0 offen"); vm.issue("t")
        X = self.lab("vwx")
        a(f"v_mov_b32 {v(G.vT1)}, {hx(OOB)}\nv_mov_b32 {v(G.vT2)}, {hx(OOB)}\ns_cmp_lt_u32 {s(sWAVE)}, 2\ns_cbranch_scc1 {X}")
        a(f"s_cmp_eq_u32 {s(sWAVE)}, 2")
        a(f"s_cselect_b32 {s(sW)}, s16, s8\ns_cselect_b32 {s(sW+1)}, s17, s9\ns_movk_i32 {s(sT3)}, 2048\ns_cselect_b32 {s(sT3)}, 5504, {s(sT3)}")
        a(f"s_lshl_b32 {s(sW+2)}, {s(sT3)}, 8\ns_mul_i32 {s(sT2)}, s2, {s(sT3)}\ns_sub_u32 {s(sT3)}, {s(sT3)}, 4")
        a(f"v_lshlrev_b32 v12, 7, v1\nv_min_u32 v12, {s(sT3)}, v12\nv_add_u32 {v(G.vT1)}, {s(sT2)}, v12")
        a(f"s_cmp_eq_u32 {s(sWAVE)}, 2\ns_cselect_b32 {s(sT3)}, 43, 16\ns_lshr_b32 {s(sT2)}, s2, 3\ns_mul_i32 {s(sT2)}, {s(sT2)}, {s(sT3)}")
        a(f"v_add_u32 v12, {s(sT2)}, v1\nv_lshlrev_b32 v12, 10, v12\nv_add_u32 v12, 384, v12\nv_cmp_gt_u32 vcc, {s(sT3)}, v1\nv_cndmask_b32 {v(G.vT2)}, {v(G.vT2)}, v12, vcc")
        a.label(X)
        self.srd(sB1, 14, 2752); self.srd(sDBG, 22, 256); self.srd(sWS, 24, WS_SIZE)
        a(f"s_lshl_b32 {s(sT2)}, {s(sCH)}, 6\ns_lshl_b32 {s(sT3)}, {s(sTYPE)}, 31\ns_xor_b32 {s(sT3)}, {s(sT3)}, {hx(OOB)}\ns_or_b32 {s(sT2)}, {s(sT2)}, {s(sT3)}")
        a(f"v_lshl_add_u32 v8, v2, 1, {s(sT2)}")
        if not self.o["xe"]: xs()
        a("v_mov_b32 v96, v8")
        if self.o["t2"]:
            L = self.lab("t2")
            a(f"s_lshl_b32 {s(sT2)}, {s(sHF)}, 2\ns_or_b32 {s(sT2)}, {s(sT2)}, {s(sWAVE)}\ns_cmp_lg_u32 {s(sT2)}, 3\ns_cbranch_scc1 {L}")
            self.srd(sOUT, 6, 1572864)
            a(f"s_lshr_b32 {s(sT2)}, s2, 3\ns_lshl_b32 {s(sT2)}, {s(sT2)}, 4")
            a(f"v_add_u32 v12, {s(sT2)}, v5\nv_mul_u32_u24 v12, 3072, v12\nv_min_u32 v13, 2, v4\nv_lshl_add_u32 v12, v13, 10, v12\nv_add_u32 v12, 384, v12")
            a(f"buffer_load_dword {v(G.vDUM)}, v12, {s(sOUT,4)}, 0 offen")
            a.label(L)
        if self.o["w2s"]: a(f"buffer_load_dword {v(G.vDUM)}, {v(G.vT1)}, {s(sW,4)}, 0 offen"); vm.issue("t")
        self.vm0 = list(vm.q)
        self.ts("c_setup")
        a(f"s_cmp_eq_u32 {s(sTYPE)}, 0\ns_cbranch_scc0 L_typeB")

    def q_stats(self, typ, extra=()):
        G = self; T = G.TMP; U = T + 8; q = []
        g = dict(math=1, chk=self.o['chk'], w2=self.o["w2t"], ga=self.o['ga'], gc=self.o['gc'])
        nl = [self.vmi(f"buffer_load_dword {v(G.GR+3)}, {v(G.vNZ)}, {s(sDBG,4)}, 0 offen sc1", "nonce")]
        if not self.o["pre"]: q += nl
        q += [("GI", g["math"]), self.vmw("xs")]
        if self.o["pre"] and not self.o["nlate"]: q += nl
        w = []
        for k in range(8): w += [f"v_lshlrev_b32 {v(U+2*k)}, 16, {v(T+k)}", f"v_and_b32 {v(U+2*k+1)}, 0xffff0000, {v(T+k)}"]
        w += [f"v_add_f32 {v(T+k)}, {v(U+2*k)}, {v(U+2*k+1)}" for k in range(8)]
        for n in (4, 2, 1): w += [f"v_add_f32 {v(T+k)}, {v(T+k)}, {v(T+k+n)}" for k in range(n)]
        def red32(r, t):
            o = [f"v_add_f32_dpp {v(r)}, {v(r)}, {v(r)} {m} row_mask:0xf bank_mask:0xf" for m in ("quad_perm:[1,0,3,2]", "quad_perm:[2,3,0,1]", "row_half_mirror", "row_mirror")]
            return o + [f"v_mov_b32 {v(t)}, {v(r)}", f"v_permlane16_swap_b32 {v(r)}, {v(t)}", f"v_add_f32 {v(r)}, {v(r)}, {v(t)}"]
        w += red32(T, T + 1) + [f"v_mul_f32 {v(G.GR)}, {fl(1/512)}, {v(T)}"]
        w += [f"v_sub_f32 {v(U+k)}, {v(U+k)}, {v(G.GR)}" for k in range(16)]
        w += [f"v_mul_f32 {v(T+k)}, {v(U+k)}, {v(U+k)}" for k in range(4)]
        w += [f"v_fmac_f32 {v(T+k%4)}, {v(U+k)}, {v(U+k)}" for k in range(4, 16)]
        w += [f"v_add_f32 {v(T)}, {v(T)}, {v(T+1)}", f"v_add_f32 {v(T+2)}, {v(T+2)}, {v(T+3)}", f"v_add_f32 {v(T)}, {v(T)}, {v(T+2)}"]
        w += red32(T, T + 1) + [f"v_mov_b32 {v(T+1)}, {fl(1e-5)}", f"v_fmac_f32 {v(T+1)}, {fl(1/512)}, {v(T)}",
                                f"v_rsq_f32 {v(G.GR+1)}, {v(T+1)}", f"v_mul_f32 {v(G.GR+2)}, {v(T+1)}, {v(G.GR+1)}"]
        q += self.its(w)
        if self.o["pre"]: self.flush(q); q = []
        if self.o["nlate"] == 1: self.flush(nl)
        if self.o["nlate"] == 2: q += nl
        L = self.lab("nonce"); R = self.lab("nonceok"); X = self.lab("noncex")
        q += [("GI", g["chk"]), self.vmw("nonce"),
              self.it(f"v_readfirstlane_b32 {s(sNONCE)}, {v(G.GR+3)}\ns_cmp_eq_u32 {s(sNONCE)}, 0\ns_cbranch_scc1 {L}\n{R}:"),
              self.vmi(f"buffer_store_dwordx4 {v(G.GR,4)}, {v(G.vSTA)}, {s(sWS,4)}, 0 offen sc1", "st"),
              self.it(f"v_mov_b32 v8, {SC_NONCE}\nds_write_b32 v8, {v(G.GR+3)}"), self.tsi("c_stpub")]
        self.tail.append(f"""{L}:
s_mov_b32 {s(sSPIN)}, 0
{X}:
buffer_load_dword {v(G.GR+3)}, {v(G.vNZ)}, {s(sDBG,4)}, 0 offen sc1
s_add_u32 {s(sSPIN)}, {s(sSPIN)}, 1
s_waitcnt vmcnt(0)
v_readfirstlane_b32 {s(sNONCE)}, {v(G.GR+3)}
s_cmp_gt_u32 {s(sSPIN)}, {SPIN_MAX}
s_cbranch_scc1 {R}
s_cmp_eq_u32 {s(sNONCE)}, 0
s_cbranch_scc1 {X}
s_branch {R}""")
        if typ == "B": q += self.its([f"v_lshlrev_b32 {v(G.B1+p)}, 16, {v(G.B1+p)}" for p in range(3)])
        if self.o["w7"] and typ == "B":
            q = [self.it(f"s_cmp_eq_u32 {s(sWAVE)}, 3\ns_cselect_b32 s56, s8, s16\ns_cselect_b32 s57, s9, s17\ns_movk_i32 {s(sT1)}, 688\ns_cselect_b32 {s(sT1)}, 256, {s(sT1)}\ns_cselect_b32 {s(sT2)}, 0, {s(sWAVE)}"),
                 self.it(f"s_lshl_b32 s58, {s(sT1)}, 11\ns_lshl_b32 {s(sT2)}, {s(sT2)}, 8\ns_mul_i32 {s(sT3)}, {s(sI)}, {s(sT1)}\ns_sub_u32 {s(sT1)}, {s(sT1)}, 1"),
                 self.it(f"s_cmp_eq_u32 {s(sG)}, 7\ns_cselect_b32 {s(sT4)}, 0, {hx(OOB)}\nv_add_u32 v96, {s(sT2)}, v1")] + q
            k0 = next(i for i, x in enumerate(q) if not isinstance(x, str) and x[0] == "GI")
            t = []
            for k in range(4):
                t += [("GI", self.o["w7"] + self.o["w7s"] * k - 1)] if k else []
                t += [self.it(f"v_min_u32 v9, {s(sT1)}, v96"), self.it(f"v_add_lshl_u32 v9, v9, {s(sT3)}, 7"), self.it(f"v_or_b32 v9, {s(sT4)}, v9"),
                      self.vmi(f"buffer_load_dword {v(G.vDUM)}, v9, s[56:59], 0 offen", "t"), self.it("v_add_u32 v96, 64, v96")]
            self.w7q = t
            q += t
        q += list(extra)
        if self.o["t3"]:
            q += [("GI", self.o["t3"] - 1), self.it(f"s_lshl_b32 {s(sT0)}, {s(sI)}, 3\ns_add_u32 {s(sT0)}, {s(sT0)}, {s(sCT)}\ns_lshl_b32 {s(sT0)}, {s(sT0)}, 14\nv_lshl_add_u32 v8, v5, 10, {s(sT0)}"),
                  self.vmi(f"buffer_load_dword {v(G.vDUM)}, v8, {s(sX,4)}, 0 offen offset:384", "t")]
        if self.o["w2t"] and not self.o["w7"] and not self.o["w2s"] and not self.o["sw"] & 1: q += [("GI", g["w2"]), self.vmi(f"buffer_load_dword {v(G.vDUM)}, {v(G.vT1)}, {s(sW,4)}, 0 offen", "t")]
        if self.o["t1"] and not self.o["sw"] & 2: q += [("GI", self.o["t1"]), self.vmi(f"buffer_load_dword {v(G.vDUM)}, {v(G.vT2)}, {s(sW,4)}, 0 offen", "t")]
        q += [("GI", g["ga"])] + [self.vmi(f"buffer_load_dwordx4 {v(G.SG+4*rb,4)}, {v(G.vSTG)}, {s(sWS,4)}, 0 offen offset:{1024*rb} sc1", "sg") for rb in range(2)]
        L = self.lab("st"); R = self.lab("stok"); X = self.lab("stx")
        chk = f"v_cmp_ne_u32 vcc, {s(sNONCE)}, {v(G.SG+3)}\nv_cmp_ne_u32 {s(sM,2)}, {s(sNONCE)}, {v(G.SG+7)}\ns_or_b64 vcc, vcc, {s(sM,2)}"
        q += [("GI", g["gc"]), self.vmw("sg"), self.it(f"{chk}\ns_cbranch_vccnz {L}\n{R}:"), self.tsi("c_stok")]
        self.tail.append(f"""{L}:
s_mov_b32 {s(sSPIN)}, 0
{X}:
buffer_load_dwordx4 {v(G.SG,4)}, {v(G.vSTG)}, {s(sWS,4)}, 0 offen sc1
buffer_load_dwordx4 {v(G.SG+4,4)}, {v(G.vSTG)}, {s(sWS,4)}, 0 offen offset:1024 sc1
s_add_u32 {s(sSPIN)}, {s(sSPIN)}, 1
s_cmp_gt_u32 {s(sSPIN)}, {SPIN_MAX}
s_waitcnt vmcnt(0)
s_cbranch_scc1 {R}
{chk}
s_cbranch_vccnz {X}
s_branch {R}""")
        for rb in range(2):
            mu, r, sd = G.SG + 4*rb, G.SG + 4*rb + 1, G.SG + 4*rb + 2; X = G.XS + 4*rb
            q += self.its([f"v_cvt_pk_bf16_f32 {v(T)}, -{v(mu)}, -{v(mu)}", f"v_cvt_pk_bf16_f32 {v(T+1)}, {v(sd)}, {v(sd)}",
                           f"v_and_b32 {v(T+2)}, 0xffff0000, {v(T)}", f"v_and_b32 {v(T+3)}, 0xffff0000, {v(T+1)}",
                           f"v_sub_f32 {v(T+2)}, -{v(mu)}, {v(T+2)}", f"v_sub_f32 {v(T+4)}, {v(sd)}, {v(T+3)}",
                           f"v_cvt_pk_bf16_f32 {v(T+2)}, {v(T+2)}, {v(T+3)}", f"v_cvt_pk_bf16_f32 {v(T+4)}, {v(T+4)}, 0",
                           f"v_cmp_gt_u32 vcc, 32, v1\nv_mov_b32 {v(X+3)}, 0\nv_cndmask_b32 {v(X)}, 0, {v(T)}, vcc\nv_cndmask_b32 {v(X+1)}, 0, {v(T+2)}, vcc\nv_cndmask_b32 {v(X+2)}, 0, {v(T+4)}, vcc"])
        k0 = -2.0 * 1.4426950408889634 * 0.7978845608028654
        for rb in range(2):
            r, sd = G.SG + 4*rb + 1, G.SG + 4*rb + 2
            if typ == "B":
                q += self.its([f"v_mul_f32 {v(G.GC+rb)}, {fl(k0)}, {v(r)}", f"v_mul_f32 {v(T)}, {v(r)}, {v(r)}",
                               f"v_mul_f32 {v(T)}, {fl(0.044715)}, {v(T)}", f"v_mul_f32 {v(G.GC+2+rb)}, {v(T)}, {v(G.GC+rb)}"])
            else:
                q += self.its([f"v_mul_f32 {v(G.GC+rb)}, {fl(1.4426950408889634)}, {v(r)}", f"v_mul_f32 {v(G.GC+2+rb)}, {fl(1e-6)}, {v(sd)}"])
        if typ == "A":
            q += self.its([f"s_lshl_b32 {s(sT0)}, {s(sWAVE)}, 8\ns_add_u32 {s(sT0)}, {s(sT0)}, {SC_R}\nv_lshl_add_u32 v8, v2, 2, {s(sT0)}\nv_lshl_add_u32 v6, v3, 4, {s(sT0)}",
                           f"ds_write_b32 v8, {v(G.GC)}", f"ds_write_b32 v8, {v(G.GC+1)} offset:128"])
        return q

    def reads0(self, gi):
        G = self
        k, tau = divmod(gi, 4); sl = (gi // 2) % 3; b = gi & 1
        X = lambda rb: [(f"ds_read_b128 {v(16+8*b+4*rb,4)}, {v((G.vXB if k >= 4 else G.vXA) + tau)} offset:{(k % 4)*16384 + 4096*rb}", (gi, "X", rb))]
        W = lambda p: [(f"ds_read_b64_tr_b16 {v(48+8*b+4*p+2*j,2)}, {v((G.vWO if tau & 1 else G.vWE) + sl)} offset:{p*4096+(tau&1)*2048+j*512}", (gi, "W", p)) for j in range(2)]
        return [W(0) + X(0), W(1) + X(1), [], []]
    def reads1(self, M):
        G = self
        if M >= 16: return [[], [], [], []]
        k = M // 2; sl = (16 + k) % 3; b = M & 1
        def X(ks, rb):
            tau = 2*(M & 1) + ks
            return [(f"ds_read_b128 {v(16+16*b+8*ks+4*rb,4)}, {v((G.vXB if k >= 4 else G.vXA) + tau)} offset:{(k % 4)*16384 + 4096*rb}", (32+M, "X", ks, rb))]
        def W(ks):
            tau = 2*(M & 1) + ks
            return [(f"ds_read_b64_tr_b16 {v(48+8*b+4*ks+2*j,2)}, {v((G.vWO if tau & 1 else G.vWE) + sl)} offset:{tau*2048+j*512}", (32+M, "W", ks)) for j in range(2)]
        return [W(0) + X(0, 0), W(1) + X(0, 1), X(1, 0), X(1, 1)]

    def mpass(self, typ, ps, q, budget):
        a = self.a; G = self; CS = G.CSM[typ]
        def issue(g):
            for r, t in g: a(r); self.lg.issue(t)
        if ps == 0:
            self.lg = Cnt(a, "lgkmcnt", 15)
            self.ts("c_pre0")
            a("s_waitcnt lgkmcnt(0)\ns_barrier")
            self.ts("c_bar0")
            for g in self.reads0(0): issue(g)
        elif typ == "A":
            for g in self.reads1(0): issue(g)
        lg = self.lg
        st_ = dict(hold=None, credit=0, nbar=0)
        def emit(x):
            n0 = len(a.items); x[1]()
            for ln in a.items[n0:]:
                if ln.startswith("ds_"): lg.issue("F")
        def fill(M, nr):
            st_["credit"] = min(st_["credit"] + budget - 5 * nr, budget + 6)
            while q and st_["hold"] is None:
                x = q[0]
                if x in ("NEXT", "BAR"): st_["hold"] = x; q.pop(0); break
                if x[0] == "GI":
                    if M >= x[1]: q.pop(0); continue
                    break
                if x[0] == "U":
                    q.pop(0); x[1](); st_["credit"] = 0; break
                if x[0] == "GB":
                    if st_["nbar"] >= x[1]: q.pop(0); continue
                    break
                if st_["credit"] < min(x[0], 12): break
                q.pop(0); emit(x); st_["credit"] -= x[0]
        def barrier(n):
            lg.wait("F"); a("s_barrier"); self.ts(f"c_bar{n}"); st_["nbar"] += 1
            if st_["hold"] == "BAR": st_["hold"] = None
        NS = 32 if ps == 0 else 16
        pn = (0, 1) if ps == 0 else (2,)
        for M in range(NS):
            b = M & 1; mf = []; last = M == NS - 1
            for i in range(2):
                for rb in range(2):
                    p = i if ps == 0 else 2
                    x = v(16+8*b+4*rb, 4) if ps == 0 else v(16+16*b+8*i+4*rb, 4)
                    w = v(48+8*b+4*i, 4); c = v(G.acc(p, rb), 16)
                    A, B = (x, w) if (typ == "A" and p < 2) else (w, x)
                    mf.append(f"v_mfma_f32_32x32x16_bf16 {c}, {A}, {B}, {c if M or (ps and i) else 0}")
            if self.o["snk"] & (1 << ps) and not (last and ps == 0): mf[2], mf[3] = mf[3], mf[2]
            if ps == 0:
                cs = [f"v_mfma_f32_16x16x32_bf16 {v(CS[p],4)}, {v(G.SEL,4)}, {v(48+8*b+4*p,4)}, {v(CS[p],4) if M else 0}" for p in pn] if b == 0 else []
                rd = self.reads0(M + 1) if not last else (self.reads1(0) if typ == "B" else [[], [], [], []])
                need = [(M, "X", 1), None, None, None]; nb = M // 2 + 1
            else:
                cs = [f"v_mfma_f32_16x16x32_bf16 {v(CS[2],4)}, {v(G.SEL,4)}, {v(48+8*b,4)}, {v(CS[2],4) if M else 0}"]
                rd = self.reads1(M + 1)
                need = [(32+M, "X", 0, 1), None, (32+M, "X", 1, 1), None]; nb = 17 + M // 2
            if self.o["e2"] and 0 < M < NS - 2: cs = []
            csw = [(f"ds_write_b32 {v(G.vCW)}, {v(CS[p])} offset:{128*p}", "F") for p in pn]
            csr = [(f"ds_read_b32 {v(CS[p]+1)}, {v(G.vCR)} offset:{128*p}", "F") for p in pn]
            if st_["hold"] == "NEXT" or M == 0: lg.wait("F"); st_["hold"] = None if st_["hold"] == "NEXT" else st_["hold"]
            if last and ps == 1:
                lg.wait(need[0]); a(cs[0]); a(mf[0])
                for j in range(4):
                    if j: a(f"v_xor_b32 v8, {16*j}, {v(G.vXR)}")
                    issue([(f"ds_read_b64 {v(G.XR+2*j,2)}, {v(8 if j else G.vXR)}", "F")])
                fill(M, 4); a(mf[1])
                issue(csw); fill(M, 1); lg.wait(need[2]); a(mf[2])
                barrier(nb); issue(csr); a(mf[3])
                break
            for k in range(4):
                lg.wait(need[k]); a(mf[k])
                if k == 0 and b:
                    barrier(nb)
                    if last: issue(csr)
                issue(rd[k])
                fill(M, len(rd[k]))
                if k == (0 if (ps == 0 and M == 30) else 2):
                    for c in cs: a(c)
                if k == 2 and ps == 0 and M == 30: issue(csw)
        assert st_["hold"] != "BAR"
        assert not any(x[0] in ("GI", "GB") for x in q if not isinstance(x, str)), "GI marker left"
        if self.verbose: print(typ, "pass", ps, "leftover cost", sum(50 if x[0] == "U" else x[0] for x in q if not isinstance(x, str)))
        self.ts(f"c_pass{ps}")

    def q_fixup(self, typ, p):
        G = self; c = G.CSM[typ][p]; F = 136 if typ == "B" else (152, 148, 128)[p]; q = []
        q += self.its([f"v_add_f32 {v(c)}, {v(c)}, {v(c+1)}", f"v_cvt_pk_bf16_f32 {v(c+1)}, {v(c)}, {v(c)}",
                      f"v_and_b32 {v(c+1)}, 0xffff0000, {v(c+1)}", f"v_sub_f32 {v(c+2)}, {v(c)}, {v(c+1)}", f"v_mov_b32 {v(F+3)}, 0"])
        if typ == "B":
            q += self.its([f"v_cvt_pk_bf16_f32 {v(F+1)}, {v(c+1)}, {v(G.B1+p)}", f"v_cvt_pk_bf16_f32 {v(F+2)}, {v(G.B1+p)}, 0"])
        else:
            q += self.its([f"v_cvt_pk_bf16_f32 {v(F+1)}, {v(c+1)}, 0", f"v_mov_b32 {v(F+2)}, 0"])
        q += self.its([f"v_cvt_pk_bf16_f32 {v(F)}, {v(c+1)}, {v(c+2)}"])
        for rb in range(2):
            x = v(G.XS + 4*rb, 4); w = v(F, 4); cc = v(G.acc(p, rb), 16)
            A, B = (x, w) if (typ == "A" and p < 2) else (w, x)
            q += self.its([f"v_mfma_f32_32x32x16_bf16 {cc}, {A}, {B}, {cc}"])
        return q

    def ho_base(self, dst, sig0):
        t = (f"s_lshl_b32 {s(dst)}, {s(sI)}, 1\ns_add_u32 {s(dst)}, {s(dst)}, {s(sRH)}\ns_lshl_b32 {s(dst)}, {s(dst)}, {self.SS+2}\n"
             f"s_lshl_b32 {s(sT0)}, {s(sG)}, 1\ns_add_u32 {s(sT0)}, {s(sT0)}, {s(sCH)}\n")
        if not self.o["lay"]:
            return t + f"s_add_u32 {s(sT5)}, {s(sT0)}, {sig0}\ns_lshl_b32 {s(sT5)}, {s(sT5)}, 10\ns_add_u32 {s(dst)}, {s(dst)}, {s(sT5)}"
        par = int(sig0 >= 29) if self.o['lay'] == 1 else 0
        return t + (f"s_add_u32 {s(sT5)}, {s(sT0)}, {sig0 - 29*par}\ns_and_b32 {s(sT4)}, {s(sT5)}, 7\ns_lshr_b32 {s(sT5)}, {s(sT5)}, 3\ns_lshl_b32 {s(sT5)}, {s(sT5)}, 4\n"
                    f"s_add_u32 {s(sT5)}, {s(sT5)}, {s(sT4)}\ns_add_u32 {s(sT5)}, {s(sT5)}, {8*par}\ns_lshl_b32 {s(sT5)}, {s(sT5)}, 10\ns_add_u32 {s(dst)}, {s(dst)}, {s(sT5)}")

    def q_flag(self, soff):
        return [self.it(f"v_mov_b32 v11, {s(sNONCE)}"),
                self.vmi(f"buffer_store_dword v11, {v(self.vFL)}, {s(sWS,4)}, {s(soff)} offen {'sc0 sc1' if self.o['fsc'] else 'sc1'}", "f")]

    def q_gelu_setup(self):
        sHB, sFL = 26, 27; vO = 12
        q = [self.it("\n".join(self.ho_base(4 + p, SIG0[p]) for p in range(3)) + f"\ns_lshl_b32 {s(sT1)}, {s(sI)}, 1\ns_add_u32 {s(sT1)}, {s(sT1)}, {s(sRH)}\ns_mul_i32 {s(sFL)}, {s(sT1)}, {3*FG}\ns_lshl_b32 {s(sT1)}, {s(sT0)}, {FS}\ns_add_u32 {s(sFL)}, {s(sFL)}, {s(sT1)}\ns_add_u32 {s(sFL)}, {s(sFL)}, {WS_FH}")]
        t = f"s_mul_i32 {s(sT1)}, {s(sG)}, 6\ns_add_u32 {s(sT1)}, {s(sT1)}, {s(sCH)}\nv_lshlrev_b32 v11, 4, v1"
        for p in range(3): t += f"\ns_cmp_lt_u32 {s(sT1)}, {43-2*p}\ns_cselect_b32 {s(sT2)}, 0, {hx(OOB)}\nv_or_b32 {v(vO+p)}, {s(sT2)}, v11"
        return q + [self.it(t)]
    def q_gelu(self, p, pk):
        G = self; sHB, sFL, sO = 26, 27, 3; vO = 12; t = G.TMP; q = []; n = 0
        for rb in range(2):
            A, B, sd = G.GC + rb, G.GC + 2 + rb, G.SG + 4*rb + 2
            for kh in range(2):
                c = G.acc(p, rb) + 8*kh; P = t + 8 + 4*(n & 1); n += 1
                if self.o["pk"] and pk:
                    sel = rb
                    w = [f"v_pk_mul_f32 {v(t+j,2)}, {v(c+j,2)}, {v(c+j,2)}" for j in range(0, 8, 2)]
                    w += [f"v_pk_fma_f32 {v(t+j,2)}, {v(t+j,2)}, {v(G.GC+2,2)}, {v(G.GC,2)} op_sel:[0,{sel},{sel}] op_sel_hi:[1,{sel},{sel}]" for j in range(0, 8, 2)]
                    w += [f"v_pk_mul_f32 {v(t+j,2)}, {v(c+j,2)}, {v(t+j,2)}" for j in range(0, 8, 2)]
                    w += [f"v_exp_f32 {v(t+j)}, {v(t+j)}" for j in range(8)]
                    w += [f"v_pk_fma_f32 {v(t+j,2)}, {v(t+j,2)}, {v(sd,2)}, {v(sd,2)} op_sel:[0,0,0] op_sel_hi:[1,0,0]" for j in range(0, 8, 2)]
                    w += [f"v_rcp_f32 {v(t+j)}, {v(t+j)}" for j in range(8)]
                    w += [f"v_pk_mul_f32 {v(t+j,2)}, {v(c+j,2)}, {v(t+j,2)}" for j in range(0, 8, 2)]
                else:
                    w = [f"v_mul_f32 {v(t+j)}, {v(c+j)}, {v(c+j)}" for j in range(8)]
                    w += [f"v_fma_f32 {v(t+j)}, {v(t+j)}, {v(B)}, {v(A)}" for j in range(8)]
                    w += [f"v_mul_f32 {v(t+j)}, {v(c+j)}, {v(t+j)}" for j in range(8)]
                    w += [f"v_exp_f32 {v(t+j)}, {v(t+j)}" for j in range(8)]
                    w += [f"v_fma_f32 {v(t+j)}, {v(t+j)}, {v(sd)}, {v(sd)}" for j in range(8)]
                    w += [f"v_rcp_f32 {v(t+j)}, {v(t+j)}" for j in range(8)]
                    w += [f"v_mul_f32 {v(t+j)}, {v(c+j)}, {v(t+j)}" for j in range(8)]
                if self.o["e5"] and not pk: w = [x for k, x in enumerate(w) if x.startswith(("v_exp", "v_rcp")) or k % 2 == 0]
                w += [f"v_cvt_pk_bf16_f32 {v(P+j)}, {v(t+2*j)}, {v(t+2*j+1)}" for j in range(4)]
                q += self.its(w)
                q += [self.vmi(f"s_add_u32 {s(sO)}, {s(4+p)}, {(2*rb+kh) << self.SS}\nbuffer_store_dwordx4 {v(P,4)}, {v(vO+p)}, {s(sWS,4)}, {s(sO)} offen sc1", ("h", p))]
        return q + [self.tsi(f"cB_p{p}")]

    def q_gelu_units(self):
        G = self; sO = 3; vO = 12
        grp = [(p, rb, kh) for p in range(2) for rb in range(2) for kh in range(2)]
        def ops(g):
            p, rb, kh = grp[g]; c = G.acc(p, rb) + 8*kh; t = G.TMP + 8*(g & 1); sd = G.SG + 4*rb + 2
            P1 = [f"v_pk_mul_f32 {v(t+j,2)}, {v(c+j,2)}, {v(c+j,2)}" for j in range(0, 8, 2)]
            P1 += [f"v_pk_fma_f32 {v(t+j,2)}, {v(t+j,2)}, {v(G.GC+2,2)}, {v(G.GC,2)} op_sel:[0,{rb},{rb}] op_sel_hi:[1,{rb},{rb}]" for j in range(0, 8, 2)]
            P1 += [f"v_pk_mul_f32 {v(t+j,2)}, {v(c+j,2)}, {v(t+j,2)}" for j in range(0, 8, 2)]
            return dict(P1=P1, E=[f"v_exp_f32 {v(t+j)}, {v(t+j)}" for j in range(8)],
                        P2=[f"v_pk_fma_f32 {v(t+j,2)}, {v(t+j,2)}, {v(sd,2)}, {v(sd,2)} op_sel:[0,0,0] op_sel_hi:[1,0,0]" for j in range(0, 8, 2)],
                        R=[f"v_rcp_f32 {v(t+j)}, {v(t+j)}" for j in range(8)],
                        P3=[f"v_pk_mul_f32 {v(t+j,2)}, {v(c+j,2)}, {v(t+j,2)}" for j in range(0, 8, 2)],
                        C=[f"v_cvt_pk_bf16_f32 {v(c+j)}, {v(t+2*j)}, {v(t+2*j+1)}" for j in range(4)],
                        S=(f"s_add_u32 {s(sO)}, {s(4+p)}, {(2*rb+kh) << self.SS}\nbuffer_store_dwordx4 {v(c,4)}, {v(vO+p)}, {s(sWS,4)}, {s(sO)} offen sc1", ("h", p)))
        def unit(lines, st=None):
            def f():
                self.a("\n".join(lines))
                if st: self.a(st[0]); self.vm.issue(st[1])
            return ("U", f)
        q = self.its(ops(0)["P1"])
        for g in range(9):
            o = ops(g) if g < 8 else None; pv = ops(g - 1) if g else None; nx = ops(g + 1)["P1"] if g < 7 else [None] * 12
            fin = ([pv["C"][2], pv["P3"][3], pv["C"][3]] if pv else [])
            if o is None: q.append(unit(fin, pv["S"])); break
            U = [(o["E"][0:3] + fin, pv["S"] if pv else None),
                 (o["E"][3:6] + [o["P2"][0]] + nx[0:2], None), (o["E"][6:8] + o["P2"][1:3] + nx[2:4], None),
                 (o["R"][0:2] + [o["P2"][3]] + nx[4:6], None), (o["R"][2:4] + [o["P3"][0]] + nx[6:8], None),
                 (o["R"][4:6] + [o["C"][0], o["P3"][1]] + nx[8:10], None), (o["R"][6:8] + [o["C"][1], o["P3"][2]] + nx[10:12], None)]
            q += [unit([x for x in l if x], st) for l, st in U]
        return q
    def q_hflag(self, p):
        return [self.vmw(("h", p))] + self.q_flag(27) + [self.it(f"s_add_u32 s27, s27, {FG}"), self.tsi(f"cB_flag{p}")]
    def q_h0(self):
        G = self
        return self.its([f"s_lshl_b32 {s(sT1)}, {s(sI)}, 1\ns_add_u32 {s(sT1)}, {s(sT1)}, {s(sHF)}\ns_mul_i32 {s(sC0)}, {s(sT1)}, {3*FG}\ns_add_u32 {s(sC0)}, {s(sC0)}, {WS_FH}", f"v_lshlrev_b32 {v(G.vGP)}, {FS}, v5"]) + \
               [("GI", 13), self.vmi(self.fload(G.vGF, G.vGP, sC0), "gf")]
    def aload(self, vm, sig):
        if sig >= 59: return
        G = self; sA = sKST; D = self.o["D"]
        if self.o["r2"]:
            st, j2, ch = pos_of(sig); n = 8 if st == 3 else 7; t = ""
            if sig == 14: t = f"s_add_u32 {s(sA)}, s16, {14*1024}\n"
            elif ch == 0:
                t = f"s_mov_b32 s19, {'s18' if st == 3 else 's17'}\n" if j2 == 0 else f"s_add_u32 s19, s19, 2048\ns_cmp_eq_u32 s19, {n*2048}\ns_cselect_b32 s19, 0, s19\n"
                t += f"s_add_u32 {s(sA)}, s19, s16\n" + (f"s_add_u32 {s(sA)}, {s(sA)}, {(SIG0+[43])[st]*1024}\n" if st else "")
            self.a(t + f"buffer_load_dwordx4 {v(G.RING[sig%D],4)}, {v(G.vA)}, {s(sWS,4)}, {s(sA)} offen offset:{1024*ch} sc1"); vm.issue(("A", sig))
            return
        o = hoff(sig, self.o["lay"]); d = (o & ~4095) - (hoff(sig - 1, self.o["lay"]) & ~4095) if sig else 0
        if d: self.a(f"s_add_u32 {s(sA)}, {s(sA)}, {hx(d)}")
        self.a(f"buffer_load_dwordx4 {v(G.RING[sig%D],4)}, {v(G.vA)}, {s(sWS,4)}, {s(sA)} offen offset:{o & 4095} {['', 'sc1', 'sc0 sc1', 'nt sc1'][self.o['asc']]}"); vm.issue(("A", sig))
    RING = [16 + 4*k for k in range(8)] + [72, 76, 80, 84, 88]
    def gcheck(self, vm, soff, two=False, va=None):
        a = self.a; G = self; L = self.lab("gc"); R = self.lab("gcok"); X = self.lab("gcx")
        vm.wait("gf")
        a(f"v_cmp_ne_u32 vcc, {s(sNONCE)}, {v(G.vGF)}\ns_cbranch_vccnz {L}")
        a.label(R)
        pre = ""
        if two:
            n = len(vm.q) - 1 - max(i for i, t in enumerate(vm.q) if t == "gb")
            pre = f"s_waitcnt vmcnt({n})\nv_cmp_ne_u32 vcc, {s(sNONCE)}, {v(G.vGB)}\ns_cbranch_vccz {R}\n"
        self.tail.append(f"{L}:\n" + pre + self.poll_text(G.vGP if va is None else va, G.vGF, soff, X, self.lab("gcy")) + f"\ns_branch {R}")
    def breads(self, sig):
        G = self
        if sig >= 59: return []
        base = b_lds(sig); w = base >> 16; off = base & 0xffff
        if self.o["e4"] & 4: return [f"ds_read_b128 {v(G.BF+8*(sig%3)+4*cb,4)}, {v(G.vA)} offset:{(off & 0x7fff)+1024*cb}" for cb in range(2)]
        return [f"ds_read_b64_tr_b16 {v(G.BF+8*(sig%3)+4*cb+2*q,2)}, {v(G.vBA+2*w+cb)} offset:{off+1024*q}" for cb in range(2) for q in range(2)]
    def p2_pre(self):
        if self.stop == "p1": return
        if self.o["eb"]: self.a(f"ds_read_b32 {v(self.vCK)}, {v(self.vPW)}")
        self.gcheck(self.vm, sC0); self.ts("c_p0x")
        for sig in range(8): self.aload(self.vm, sig)
        G = self
        if self.o["eb"]:
            a = self.a; L = self.lab("eb"); R = self.lab("ebok"); X = self.lab("ebx")
            a(f"s_waitcnt lgkmcnt(0)\nv_cmp_gt_u32 vcc, 1, {v(G.vCK)}\ns_cbranch_vccnz {L}\n{R}:")
            self.tail.append(f"{L}:\ns_mov_b32 {s(sSPIN)}, 0\n{X}:\nds_read_b32 {v(G.vCK)}, {v(G.vPW)}\ns_add_u32 {s(sSPIN)}, {s(sSPIN)}, 1\ns_cmp_gt_u32 {s(sSPIN)}, {SPIN_MAX*8}\n"
                             f"s_waitcnt lgkmcnt(0)\ns_cbranch_scc1 {R}\nv_cmp_gt_u32 vcc, 1, {v(G.vCK)}\ns_cbranch_vccnz {X}\ns_branch {R}")
            for sig in range(2):
                for r in self.breads(sig): a(r)
        if self.o["kearly"]: self.a(f"s_add_u32 {s(sC0)}, {s(sC0)}, {FG}\nbuffer_load_dword {v(G.vGF)}, {v(G.vGP)}, {s(sWS,4)}, {s(sC0)} offen sc1"); self.vm.issue("gf")
    def typeB(self):
        a = self.a; G = self; o = self.o
        self.vm.q = list(self.vm0)
        for p in range(3):
            a(f"v_add_u32 v9, {s(sC0+p)}, v96\nbuffer_load_ushort {v(G.B1+p)}, v9, {s(sB1,4)}, 0 offen"); self.vm.issue("b1")
        self.flush(self.q_gelu_setup())
        pw = []
        if o["pw"]:
            pw = [("GI", o["pw"])] + [self.vmi(f"s_add_u32 s3, s27, {k*FG}\nbuffer_store_dword {v(G.vNZ)}, {v(G.vFL)}, {s(sWS,4)}, s3 offen sc1", "pw") for k in range(3)]
        q = self.q_stats("B", pw + self.q_p2setup())
        self.mpass("B", 0, q, o["bud0"])
        g1 = self.q_gelu(1, False)
        h0 = self.q_h0()
        if o["pku"]:
            u = self.q_gelu_units(); k = 12 + 29 + o["fu"]
            q += self.q_fixup("B", 0) + self.q_fixup("B", 1) + h0[:2] + u[:k] + self.q_hflag(0) + u[k:]
        else:
            q += self.q_fixup("B", 0) + self.q_fixup("B", 1) + h0[:2] + self.q_gelu(0, False) + g1[:o["fm"]*10] + self.q_hflag(0) + g1[o["fm"]*10:]
        self.mpass("B", 1, q, o["bud2"])
        self.ts("c_main")
        g2 = self.q_gelu(2, True); h = len(g2) // 4 * o["g2h"]; h1 = len(g2) // 4 * min(o["f1h"], o["g2h"])
        self.flush(q + h0[3:] + ["NEXT"] + self.q_fixup("B", 2) + g2[:h1] + self.q_hflag(1) + g2[h1:h] + [(0, self.p2_pre)] + g2[h:])
        self.ts("cB_gelu")
        if self.stop == "p1": self.vm.wait(("h", 2)); self.flush(self.q_flag(27))

    def pair_recv(self, kind, reads):
        a = self.a; L = self.lab("pw"); X = self.lab("pwx")
        a(f"s_xor_b32 {s(sT0)}, {s(sWAVE)}, 2\ns_lshl_b32 {s(sT0)}, {s(sT0)}, 4\ns_add_u32 {s(sT0)}, {s(sT0)}, {SC_FLAG+4*kind}\nv_mov_b32 v12, {s(sT0)}\ns_mov_b32 {s(sSPIN)}, 0")
        a.label(L)
        a("ds_read_b32 v13, v12")
        for r in reads: a(r)
        a(f"s_add_u32 {s(sSPIN)}, {s(sSPIN)}, 1\ns_cmp_gt_u32 {s(sSPIN)}, {SPIN_MAX}\ns_waitcnt lgkmcnt(0)\ns_cbranch_scc1 {X}")
        a(f"v_cmp_eq_u32 vcc, 0, v13\ns_cbranch_vccnz {L}")
        a.label(X)
    def pair_send(self, kind):
        a = self.a
        a(f"s_lshl_b32 {s(sT0)}, {s(sWAVE)}, 4\ns_add_u32 {s(sT0)}, {s(sT0)}, {SC_FLAG+4*kind}\nv_mov_b32 v12, {s(sT0)}\nv_mov_b32 v13, 1\nds_write_b32 v12, v13")

    ON = 156
    RR = (128, 32)
    def q_kv_pre(self):
        G = self
        return ["NEXT"] + self.its([f"ds_read_b128 {v(G.RR[rb]+4*k,4)}, v6 offset:{128*rb+32*k}" for rb in range(2) for k in range(4)]
                                   + [f"v_mov_b32 {v(G.ON+k)}, 0x3f803f80" for k in range(4)] + ["v_xor_b32 v12, 32, v96"])
    def q_kv(self):
        G = self; q = []
        KV, ZZ, u, ON = 16, 48, G.TMP + 16, G.ON
        pend = []
        for n, (rb, kh) in enumerate(((0, 0), (0, 1), (1, 0), (1, 1))):
            c = G.acc(0, rb) + 8*kh; cv = G.acc(1, rb) + 8*kh; r = G.RR[rb] + 8*kh
            w = [f"v_pk_mul_f32 {v(c+j,2)}, {v(c+j,2)}, {v(r+j,2)}" for j in range(0, 8, 2)]
            e = [f"v_exp_f32 {v(u+j)}, {v(c+j)} clamp" for j in range(8)]
            w += pend[:1] + e[:4] + pend[1:] + e[4:]
            w += [f"v_max_f32 {v(c+j)}, v10, {v(c+j)}" for j in range(8)]
            w += [f"v_pk_mul_f32 {v(cv+j,2)}, {v(cv+j,2)}, {v(r+j,2)}" for j in range(0, 8, 2)]
            w += [f"v_pk_fma_f32 {v(u+j,2)}, {v(c+j,2)}, v[10:11], {v(u+j,2)} op_sel:[0,1,0] op_sel_hi:[1,1,1]" for j in range(0, 8, 2)]
            w += [f"v_cvt_pk_bf16_f32 {v(cv+j)}, {v(cv+2*j)}, {v(cv+2*j+1)}" for j in range(4)]
            w += [f"v_cvt_pk_bf16_f32 {v(c+j)}, {v(u+2*j)}, {v(u+2*j+1)}" for j in range(4)]
            pend = [f"v_mfma_f32_32x32x16_bf16 {v(ZZ,16)}, {v(c,4)}, {v(ON,4)}, {v(ZZ,16) if n else 0}",
                    f"v_mfma_f32_32x32x16_bf16 {v(KV,16)}, {v(c,4)}, {v(cv,4)}, {v(KV,16) if n else 0}"]
            q += self.its(w)
        q += self.its(pend) + [self.tsi("cA_kv"), self.it("v_mov_b32 v13, 1")]
        q += self.its([f"v_cndmask_b32 {v(u+j)}, {v(KV+8+j)}, {v(ZZ+8+j)}, {s(sLM,2)}" for j in range(8)])
        q += self.its([f"ds_write_b128 v90, {v(u,4)}", f"ds_write_b128 v90, {v(u+4,4)} offset:16", "ds_write_b32 v96, v13"])
        q += self.its([f"v_cndmask_b32 {v(ZZ+j)}, {v(ZZ+j)}, {v(KV+j)}, {s(sLM,2)}" for j in range(8)])
        q += [(40, lambda: self.pair_spin([f"ds_read_b128 {v(ZZ+8,4)}, v91", f"ds_read_b128 {v(ZZ+12,4)}, v91 offset:16"]))]
        q += self.its([f"v_pk_add_f32 {v(ZZ+j,2)}, {v(ZZ+j,2)}, {v(ZZ+8+j,2)}" for j in range(0, 8, 2)])
        q += self.its([f"v_pk_mul_f32 {v(ZZ+j,2)}, {v(ZZ+j,2)}, v[0:1] op_sel_hi:[1,0]" for j in range(0, 8, 2)])
        q += self.its([f"v_cvt_pk_bf16_f32 {v(u+j)}, {v(ZZ+2*j)}, {v(ZZ+2*j+1)}" for j in range(4)])
        q += [self.vmi(f"buffer_store_dwordx4 {v(u,4)}, v15, {s(sWS,4)}, s85 offen sc1", "kv"), self.tsi("cA_pub")]
        return q
    def pair_spin(self, reads, off=0):
        a = self.a; L = self.lab("pw"); X = self.lab("pwx")
        a(f"s_mov_b32 {s(sSPIN)}, 0")
        a.label(L)
        a(f"ds_read_b32 v13, v12 offset:{off}")
        for r in reads: a(r)
        a(f"s_add_u32 {s(sSPIN)}, {s(sSPIN)}, 1\ns_cmp_gt_u32 {s(sSPIN)}, {SPIN_MAX}\ns_waitcnt lgkmcnt(0)\ns_cbranch_scc1 {X}")
        a(f"v_cmp_eq_u32 vcc, 0, v13\ns_cbranch_vccnz {L}")
        a.label(X)
    def q_kvflag(self):
        sFL, sHD = 27, 3
        return [self.vmw("kv")] + self.q_flag(sHD) + [self.tsi("cA_flag")]
    def q_phiq(self):
        G = self; u = G.TMP; q = []
        for rb in range(2):
            rl, ep, r = G.GC + rb, G.GC + 2 + rb, G.SG + 4*rb + 1
            for hh in range(2):
                c = G.acc(2, rb) + 8*hh
                w = [f"v_mul_f32 {v(u+j)}, {v(rl)}, {v(c+j)}" for j in range(8)]
                w += [f"v_exp_f32 {v(u+j)}, {v(u+j)} clamp" for j in range(8)]
                w += [f"v_max_f32 {v(c+j)}, {v(ep)}, {v(c+j)}" for j in range(8)]
                w += [f"v_fmac_f32 {v(u+j)}, {v(c+j)}, {v(r)}" for j in range(8)]
                w += [f"v_cvt_pk_bf16_f32 {v(c+j)}, {v(u+2*j)}, {v(u+2*j+1)}" for j in range(4)]
                q += self.its(w)
        return q + [self.tsi("cA_q")]

    def typeA(self):
        a = self.a; G = self; T = G.TMP; vm = self.vm
        vm.q = list(self.vm0)
        a("v_and_b32 v8, 1, v4\nv_lshlrev_b32 v8, 2, v8\nv_sub_u32 v8, v5, v8\nv_mov_b32 v9, 0x3f80\nv_mov_b32 v10, 0x3f800000")
        for k, e in enumerate((0, 2, 8, 10)):
            a(f"v_cmp_eq_u32 vcc, {e}, v8\nv_cndmask_b32 v11, 0, v9, vcc\nv_cmp_eq_u32 vcc, {e+1}, v8\nv_cndmask_b32 {v(G.IDN+k)}, v11, v10, vcc")
        sREC, sFL, sHD = 26, 27, 3
        a(f"s_lshl_b32 {s(sHD)}, {s(sG)}, 1\ns_add_u32 {s(sHD)}, {s(sHD)}, {s(sCH)}\ns_lshl_b32 {s(sHD)}, {s(sHD)}, 1\ns_add_u32 {s(sHD)}, {s(sHD)}, {s(sRH)}")
        a(f"s_mul_i32 {s(sREC)}, {s(sHD)}, 10240\ns_add_u32 {s(sREC)}, {s(sREC)}, {WS_KV}\ns_lshl_b32 {s(sFL)}, {s(sHD)}, {FS+4}\ns_add_u32 {s(sFL)}, {s(sFL)}, {WS_FK}")
        a(f"s_lshl_b32 {s(sHD)}, {s(sI)}, {FS}\ns_add_u32 {s(sHD)}, {s(sHD)}, {s(sFL)}\ns_mul_i32 s85, {s(sI)}, 640\ns_add_u32 s85, s85, {s(sREC)}")
        a(f"v_cmp_gt_u32 {s(sLM,2)}, 16, v2\nv_lshl_add_u32 v12, v3, 4, v2\nv_lshlrev_b32 v12, 4, v12\nv_lshlrev_b32 v13, 6, v3\nv_add_u32 v13, 512, v13")
        a(f"v_cndmask_b32 v14, v13, v12, {s(sLM,2)}")
        a(f"v_lshl_add_u32 v13, v5, 4, v13\nv_cndmask_b32 v15, v13, v12, {s(sLM,2)}\nv_mov_b32 v12, {hx(OOB)}\nv_cmp_gt_u32 vcc, 20, v2\nv_cndmask_b32 v15, v12, v15, vcc")
        a(f"v_mov_b32 v9, {fl(0.6931471805599453)}\nv_cndmask_b32 v0, 1.0, v9, {s(sLM,2)}")
        a(f"v_mov_b32 v10, {fl(1e-6*1.4426950408889634)}\nv_mov_b32 v11, v9")
        o = self.o
        pw = []
        if o["pw"]:
            pw = [("GI", o["pw"]), self.vmi(f"buffer_store_dword {v(G.vNZ)}, {v(G.vFL)}, {s(sWS,4)}, s3 offen sc1", "pw"),
                  self.it(f"s_lshl_b32 {s(sT1)}, {s(sI)}, 1\ns_add_u32 {s(sT1)}, {s(sT1)}, {s(sRH)}\ns_lshl_b32 {s(sT1)}, {s(sT1)}, 4\ns_lshl_b32 {s(sT2)}, {s(sG)}, 1"),
                  self.it(f"s_add_u32 {s(sT1)}, {s(sT1)}, {s(sT2)}\ns_add_u32 {s(sT1)}, {s(sT1)}, {s(sCH)}\ns_lshl_b32 {s(sT1)}, {s(sT1)}, {FS}\ns_add_u32 {s(sT1)}, {s(sT1)}, {WS_FO}"),
                  self.vmi(f"buffer_store_dword {v(G.vNZ)}, {v(G.vFL)}, {s(sWS,4)}, {s(sT1)} offen sc1", "pw")]
        q = self.q_stats("A", pw)
        q += self.its([f"s_mul_i32 {s(sT1)}, {s(sWAVE)}, 1280\ns_add_u32 {s(sT1)}, {s(sT1)}, {SC_KVX}\nv_add_u32 v93, {s(sT1)}, v14",
                       "v_xor_b32 v8, 16, v2", "v_lshl_add_u32 v8, v3, 4, v8", "v_lshlrev_b32 v9, 0, v3", "v_add_u32 v9, 32, v9",
                       f"v_cndmask_b32 v8, v8, v9, {s(sLM,2)}", f"v_lshl_add_u32 v90, v8, 5, {s(sT1)}",
                       f"s_xor_b32 {s(sT1)}, {s(sWAVE)}, 2\ns_mul_i32 {s(sT1)}, {s(sT1)}, 1280\ns_add_u32 {s(sT1)}, {s(sT1)}, {SC_KVX}\nv_add_u32 v92, {s(sT1)}, v14",
                       "v_lshl_add_u32 v8, v3, 4, v2", f"v_cndmask_b32 v8, v9, v8, {s(sLM,2)}", f"v_lshl_add_u32 v91, v8, 5, {s(sT1)}"])
        q += self.its([f"s_lshl_b32 {s(sT1)}, {s(sWAVE)}, 4\ns_add_u32 {s(sT1)}, {s(sT1)}, {SC_FLAG}\nv_mov_b32 v96, {s(sT1)}"])
        q += self.q_kv_pre()
        self.mpass("A", 0, q, o["bud0"])
        self.flush(q + ["NEXT"] + self.q_fixup("A", 0) + self.q_fixup("A", 1) + self.q_kv()); self.lg.q = []
        sREC, sFL = 26, 27
        h0 = self.q_h0()
        GA = G.ACC; KP, ZP = G.ACC + 40, G.ACC + 44
        q = [("GI", o["fmA"])] + self.q_kvflag() + self.q_p2setup() + h0[:2]
        q += self.its(["v_mul_u32_u24 v97, 640, v3", "v_lshl_add_u32 v97, v2, 4, v97",
                       "v_and_b32 v8, 7, v5", "v_lshl_add_u32 v8, v8, 1, v3", "v_mul_u32_u24 v98, 640, v8", "v_and_b32 v9, 1, v4", "v_lshl_add_u32 v98, v9, 6, v98", "v_add_u32 v98, 512, v98",
                       f"s_xor_b32 {s(sT1)}, {s(sWAVE)}, 2\ns_mul_i32 {s(sT1)}, {s(sT1)}, 1280\ns_add_u32 {s(sT1)}, {s(sT1)}, {SC_KVX}\nv_lshl_add_u32 v8, v3, 3, {s(sT1)}",
                       "v_lshl_add_u32 v90, v2, 4, v8", "v_lshl_add_u32 v91, v9, 6, v8", "v_add_u32 v91, 512, v91"])
        hb = self.ho_base(7, 43).split("\n")
        q += [self.it("\n".join(hb[k:k+4])) for k in range(0, len(hb), 4)]
        q += self.its([f"s_lshl_b32 {s(sT1)}, {s(sI)}, 1\ns_add_u32 {s(sT1)}, {s(sT1)}, {s(sRH)}\ns_lshl_b32 s6, {s(sT1)}, {FS+4}", f"s_lshl_b32 {s(sT1)}, {s(sT0)}, {FS}\ns_add_u32 s6, s6, {s(sT1)}\ns_add_u32 s6, s6, {WS_FO}",
                       f"s_lshl_b32 s4, {s(sRH)}, {self.SS}\ns_xor_b32 s5, s4, {1 << self.SS}", "s_add_u32 s4, s4, s7\ns_add_u32 s5, s5, s7"])
        L = self.lab("kf"); R = self.lab("kfok")
        q += [("GI", o["kfs"]), self.vmi(self.fload(11, G.vGP, sFL), "kf")]
        kq = [("GI", o["kfc"]), self.vmw("kf"),
              (0, lambda: a(f"v_cmp_ne_u32 vcc, {s(sNONCE)}, v11\ns_cbranch_vccnz {L}\n{R}:")), self.tsi("cA_poll")]
        self.tail.append(f"{L}:\n" + self.poll_text(G.vGP, 11, sFL, self.lab("kfx"), self.lab("kfy")) + f"\ns_branch {R}")
        def gl(k):
            if k == 8: a(f"buffer_load_dwordx4 {v(GA+32,4)}, v98, {s(sWS,4)}, {s(sREC)} offen sc1")
            else: a((f"s_add_u32 s3, {s(sREC)}, {k*1280}\n" if k % 4 == 0 else "") + f"buffer_load_dwordx4 {v(GA+4*k,4)}, v97, {s(sWS,4)}, s3 offen offset:{1280*(k%4)} sc1")
            vm.issue(("ga", k))
        kq += [(0, lambda k=k: gl(k)) for k in (8, 0, 1, 2, 3, 4, 5, 6, 7)]
        if o["kpos"] == 0: q += kq
        self.mpass("A", 1, q, o["budA"])
        self.ts("c_main")
        pq = self.q_phiq(); h = (len(pq) - 1) // 4 * o["pqh"]
        self.flush(q + ["NEXT"] + self.q_fixup("A", 2))
        if o["kpos"] == 2: self.flush(pq); pq = []
        if o["kpos"]: self.flush(kq)
        self.flush(h0[3:])
        a(f"s_mov_b32 {s(sFL)}, s6")
        a("v_lshlrev_b32 v10, 4, v1\nv_mov_b32 v13, 1")
        self.flush(pq[:h])
        self.ts("cA_pq")
        vm.wait(("ga", 8)); self.ts("cA_g8"); a(f"v_mfma_f32_16x16x32_bf16 {v(ZP,4)}, {v(G.IDN,4)}, {v(GA+32,4)}, 0")
        dpp = [f"v_add_f32_dpp {v(ZP+j)}, {v(ZP+j)}, {v(ZP+j)} {m} row_mask:0xf bank_mask:0xf" for m in ("quad_perm:[1,0,3,2]", "quad_perm:[2,3,0,1]", "row_half_mirror") for j in range(4)]
        dpp += [f"v_cvt_pk_bf16_f32 {v(ZP+j)}, {v(ZP+2*j)}, {v(ZP+2*j+1)}" for j in range(2)]
        for k in range(8):
            vm.wait(("ga", k)); a(f"v_mfma_f32_16x16x32_bf16 {v(KP,4)}, {v(G.IDN,4)}, {v(GA+4*k,4)}, {v(KP,4) if k else 0}")
            if k >= 3:
                for x in dpp[4*(k-3): 4*(k-2)]: a(x)
        self.ts("cA_gath")
        for j in range(2): a(f"v_cvt_pk_bf16_f32 {v(KP+j)}, {v(KP+2*j)}, {v(KP+2*j+1)}")
        a(f"ds_write_b64 v90, {v(KP,2)}\nds_write_b64 v91, {v(ZP,2)}\nds_write_b32 v96, v13 offset:4")
        self.flush(pq[h:])
        F = [T + 8, T + 12]; t = T; PV = G.XS
        self.pair_spin([f"ds_read_b128 {v(F[0],4)}, v92", f"ds_read_b128 {v(F[1],4)}, v93"], off=4)
        self.ts("cA_spin")
        O = [G.ACC + 16*k for k in range(4)]
        for hh in range(2):
            for rb in range(2): a(f"v_mfma_f32_32x32x16_bf16 {v(O[2*rb+hh],16)}, {v(F[hh],4)}, {v(G.acc(2,rb)+8*hh,4)}, 0")
        if not o["ofirst"]: self.p2_pre()
        for n in range(4): a(f"v_add_f32 {v(t+2*n)}, {fl(1e-6)}, {v(O[2*(n&1)+(n>>1)]+8)}\nv_rcp_f32 {v(t+2*n)}, {v(t+2*n)}")
        n = 0
        for hh in range(2):
            for rb in range(2):
                o = O[2*rb+hh]; P = PV + 4*(n & 1)
                a(f"s_add_u32 {s(sT4)}, {s(4+hh)}, {rb << (self.SS+1)}")
                for j in range(0, 8, 2): a(f"v_pk_mul_f32 {v(o+j,2)}, {v(o+j,2)}, {v(t+2*n,2)} op_sel_hi:[1,0]")
                for j in range(4): a(f"v_cvt_pk_bf16_f32 {v(P+j)}, {v(o+2*j)}, {v(o+2*j+1)}")
                a(f"buffer_store_dwordx4 {v(P,4)}, v10, {s(sWS,4)}, {s(sT4)} offen sc1"); vm.issue("o"); n += 1
        self.ts("cA_o")
        if self.o["ofirst"] and self.stop != "p1":
            self.p2_pre(); vm.wait("o"); self.flush(self.q_flag(sFL)); self.ts("cA_oflag")
            a(f"s_lshl_b32 {s(sT0)}, s2, 2\ns_add_u32 {s(sT0)}, {s(sT0)}, {s(sWAVE)}\ns_lshl_b32 {s(sT0)}, {s(sT0)}, 7\ns_add_u32 {s(sFL)}, {s(sT0)}, {WS_DUM}")
        if self.stop == "p1": vm.wait("o"); self.flush(self.q_flag(sFL))

    Y, S2 = 160, 192
    AR = 16; D = 8
    BF = 48
    vBA = 144
    vA, vXC, vXP, vOUT = 150, 151, 152, 153
    vPW, vDW, vPF, vMF, vGP, vCK, vGF, vLV = 154, 155, 156, 157, 0, 159, 158, 9
    vXR, vGB = 124, 10
    XR = 76
    def q_p2setup(self):
        G = self; out = []
        def a(t):
            cur = []
            for ln in t.split("\n"):
                cur.append(ln)
                if ln.startswith("v_"): out.append(self.it("\n".join(cur))); cur = []
            if cur: out.append(self.it("\n".join(cur)))
        for d, ptr, size in ((sOUT, 20, 2097152), (sB2, 18, 1024)): a(f"s_mov_b32 {s(d)}, {s(ptr)}\ns_mov_b32 {s(d+1)}, {s(ptr+1)}"); a(f"s_mov_b32 {s(d+2)}, {size}\ns_mov_b32 {s(d+3)}, 0x00020000")
        sA = sKST
        a(f"s_lshl_b32 {s(sP1)}, {s(sI)}, 1\ns_add_u32 {s(sP1)}, {s(sP1)}, {s(sHF)}\ns_lshl_b32 {s(sP2)}, {s(sP1)}, 2\ns_add_u32 {s(sP2)}, {s(sP2)}, {s(sWAVE)}\ns_lshl_b32 {s(sA)}, {s(sP2)}, {self.SS}")
        if self.o["r2"]:
            a(self.rot2(17, 18, sP2)); a(f"s_lshl_b32 s17, s17, 11\ns_lshl_b32 s18, s18, 11\ns_mov_b32 s16, {s(sA)}")
        a(f"v_lshlrev_b32 {v(G.vA)}, 4, v1")
        a(f"v_lshrrev_b32 v8, 2, v5\nv_lshl_add_u32 v8, v3, 2, v8\ns_lshl_b32 {s(sP2)}, {s(sCH)}, 4\nv_add_u32 v8, {s(sP2)}, v8\nv_lshlrev_b32 v8, 7, v8")
        a("v_and_b32 v9, 1, v5\nv_lshl_add_u32 v8, v9, 3, v8")
        a("v_and_b32 v9, 1, v4\nv_lshlrev_b32 v9, 1, v9\nv_bfe_u32 v0, v5, 1, 1\nv_add_u32 v9, v9, v0\nv_lshrrev_b32 v0, 3, v5\nv_lshlrev_b32 v0, 2, v0\nv_xor_b32 v9, v9, v0")
        a(f"s_lshl_b32 {s(sP2)}, {s(sCH)}, 2\nv_xor_b32 v9, {s(sP2)}, v9")
        a(f"v_lshl_add_u32 {v(G.vBA)}, v9, 4, v8\nv_xor_b32 v9, 4, v9\nv_lshl_add_u32 {v(G.vBA+1)}, v9, 4, v8")
        for w in (1, 2):
            for cb in range(2): a(f"v_add_u32 {v(G.vBA+2*w+cb)}, {65536*w}, {v(G.vBA+cb)}")
        a(f"s_lshl_b32 {s(sP2)}, {s(sWAVE)}, 12\ns_add_u32 {s(sP2)}, {s(sP2)}, {XCH_Y}\nv_add_u32 {v(G.vXC)}, {s(sP2)}, {v(G.vA)}")
        a(f"s_xor_b32 {s(sP2)}, {s(sWAVE)}, 1\ns_lshl_b32 {s(sP2)}, {s(sP2)}, 12\ns_add_u32 {s(sP2)}, {s(sP2)}, {XCH_Y}\nv_add_u32 {v(G.vXP)}, {s(sP2)}, {v(G.vA)}")
        a(f"v_and_b32 v8, 3, v1\nv_lshlrev_b32 v8, 2, v8\nv_add_u32 {v(G.vPW)}, {SC_PROG}, v8\nv_lshlrev_b32 {v(G.vGP)}, {FS}, v5")
        a(f"s_lshl_b32 {s(sP2)}, {s(sWAVE)}, 2\ns_add_u32 {s(sP2)}, {s(sP2)}, {SC_PROG+16}\nv_mov_b32 {v(G.vDW)}, {s(sP2)}")
        a(f"s_lshl_b32 {s(sP2)}, {s(sWAVE)}, 4\ns_add_u32 {s(sP2)}, {s(sP2)}, {SC_FLAG}\nv_mov_b32 {v(G.vMF)}, {s(sP2)}\ns_xor_b32 {s(sP2)}, {s(sP2)}, 16\nv_mov_b32 {v(G.vPF)}, {s(sP2)}")
        a(f"s_lshl_b32 {s(sC0+1)}, {s(sP1)}, {FS+4}\ns_add_u32 {s(sC0+1)}, {s(sC0+1)}, {WS_FO}")
        gs = [int(c) for c in str(self.o["grp"])]; g0 = 0
        a(f"s_mov_b32 {s(sP3)}, {s(sCT)}")
        for n in gs:
            if n > 1:
                a(f"s_lshr_b32 {s(sP2)}, s2, 6\ns_mul_i32 {s(sP2)}, {s(sP2)}, {max(1, (n+1)//4)}\ns_add_u32 {s(sP2)}, {s(sP2)}, {s(sCT)}")
                a(f"s_mul_i32 {s(sP4)}, {s(sP2)}, {-(-256//n)}\ns_lshr_b32 {s(sP4)}, {s(sP4)}, 8\ns_mul_i32 {s(sP4)}, {s(sP4)}, {n}\ns_sub_u32 {s(sP2)}, {s(sP2)}, {s(sP4)}")
                a(f"s_sub_u32 {s(sP2)}, {s(sCT)}, {s(sP2)}\ns_add_u32 {s(sP4)}, {s(sP2)}, {n}\ns_cmp_lt_i32 {s(sP2)}, {g0}\ns_cselect_b32 {s(sP2)}, {s(sP4)}, {s(sP2)}")
                a(f"s_sub_u32 {s(sP4)}, {s(sCT)}, {g0}\ns_cmp_lt_u32 {s(sP4)}, {n}\ns_cselect_b32 {s(sP3)}, {s(sP2)}, {s(sP3)}")
            g0 += n
        a(f"s_lshl_b32 {s(sP3)}, {s(sP3)}, 2\ns_lshl_b32 {s(sP2)}, {s(sHF)}, 1\ns_add_u32 {s(sP3)}, {s(sP3)}, {s(sP2)}\ns_add_u32 {s(sP3)}, {s(sP3)}, {s(sRH)}\ns_lshl_b32 {s(sP3)}, {s(sP3)}, 12")
        a(f"v_bfe_u32 v8, v1, 1, 3\ns_lshl_b32 {s(sP2)}, {s(sCH)}, 2\nv_xor_b32 v8, {s(sP2)}, v8\nv_lshlrev_b32 v8, 4, v8\nv_lshl_add_u32 v8, v3, 3, v8")
        a(f"v_lshl_add_u32 v8, v2, 7, v8\nv_add_u32 {v(G.vXR)}, {s(sP3)}, v8")
        a(f"s_lshl_b32 {s(sP1)}, {s(sP1)}, 1\ns_add_u32 {s(sP1)}, {s(sP1)}, {s(sRH)}\ns_lshl_b32 {s(sP1)}, {s(sP1)}, 15")
        a(f"s_lshl_b32 {s(sP2)}, {s(sCT)}, 1\ns_add_u32 {s(sP2)}, {s(sP2)}, {s(sCH)}\ns_lshl_b32 {s(sP2)}, {s(sP2)}, 6\ns_add_u32 {s(sP1)}, {s(sP1)}, {s(sP2)}")
        a(f"v_lshl_add_u32 v8, v2, 10, {s(sP1)}\nv_lshl_add_u32 {v(G.vOUT)}, v3, 4, v8\ns_mov_b32 {s(sC0+2)}, {s(sP2)}")
        return out

    def phase2(self):
        a = self.a; G = self; D = self.o['D']; sA = sKST
        RING = G.RING
        a.label("L_phase2")
        vm = Cnt(a, "vmcnt", 63); lg = Cnt(a, "lgkmcnt", 15)
        aload = lambda sig: self.aload(vm, sig)
        breads = self.breads
        def ds(x, tag): a(x); lg.issue(tag)
        def lcheck(vaddr, off, lv, tag, extra=(), ck=G.vCK):
            L = self.lab("lc"); R = self.lab("lcok"); X = self.lab("lcx")
            lg.wait(tag)
            a(f"v_cmp_gt_u32 vcc, {lv}, {v(ck)}\ns_cbranch_vccnz {L}")
            a.label(R)
            ex = "".join(e + "\n" for e in extra)
            self.tail.append(f"""{L}:
s_mov_b32 {s(sSPIN)}, 0
{X}:
ds_read_b32 {v(ck)}, {v(vaddr)} offset:{off}
{ex}s_add_u32 {s(sSPIN)}, {s(sSPIN)}, 1
s_cmp_gt_u32 {s(sSPIN)}, {SPIN_MAX*8}
s_waitcnt lgkmcnt(0)
s_cbranch_scc1 {R}
v_cmp_gt_u32 vcc, {lv}, {v(ck)}
s_cbranch_vccnz {X}
s_branch {R}""")
        def lread(vaddr, off, tag, ck=G.vCK): ds(f"ds_read_b32 {v(ck)}, {v(vaddr)} offset:{off}", tag)
        def lsig(vaddr, off, lv): a(f"v_mov_b32 {v(G.vLV)}, {lv}"); ds(f"ds_write_b32 {v(vaddr)}, {v(G.vLV)} offset:{off}", "sig")
        F4 = self.o["fs4"]; va = G.vGB if F4 else G.vGP
        def gload(soff, r, tag): a(self.fload(r, va, soff)); vm.issue(tag)
        gcheck = lambda soff: self.gcheck(vm, soff, bool(self.o['kearly']), va)
        self.ts("c_p0"); assert self.o["g2h"] < 4
        vm.q = [("A", k) for k in range(8)] + ["gf"] * bool(self.o["kearly"]) + ["pub"] * (4 - self.o["g2h"])
        EB = self.o["eb"]
        if EB: lg.q = [("B", 0)] * 4 + [("B", 1)] * 4
        if self.o["gateA"] or self.o["gateB"]: lsig(G.vDW, 0, 1)
        if not EB: lread(G.vPW, 0, "ck")
        a(f"v_lshl_add_u32 v8, v2, 1, {s(sC0+2)}\nv_mov_b32 v11, {s(sNONCE)}")
        assert D == 8
        if F4: a(f"v_and_b32 {v(va)}, 3, v1\ns_lshl_b32 {s(sT0)}, {s(sWAVE)}, 2\nv_add_lshl_u32 {v(va)}, {v(va)}, {s(sT0)}, {FS}")
        for sig in range(8, D): aload(sig)
        if not EB: lcheck(G.vPW, 0, 1, "ck")
        need_prog = {6: 2, 21: 3, 36: 4, 43: 5, 53: 6}
        GL = self.o['gl']; SO = 49152 if GL else 16384
        done_at = {6: 2, 16: 3, 20: 4, (36 if GL else 30): 5}
        gat = {15 - D: sC0, 29 - D: sC0, 43 - D: sC0 + 1}
        yr = [f"ds_read_b128 {v(96+4*q,4)}, {v(G.vXP)} offset:{1024*q}" for q in range(4)]
        for sig in range(0 if EB else 2):
            for r in breads(sig): ds(r, ("B", sig))
        T = 96; YK = 112; BB = 128; XX = 240
        work = []
        for q in range(8):
            work += [f"v_lshlrev_b32 {v(XX+2*q)}, 16, {v(G.XR+q)}", f"v_and_b32 {v(XX+2*q+1)}, 0xffff0000, {v(G.XR+q)}"]
        work += ["v_cmp_gt_u32 vcc, 32, v1\nv_mov_b32 v12, 0x3f80", f"v_cndmask_b32 {v(BB+4)}, 0, v12, vcc"] + [f"v_mov_b32 {v(BB+k)}, 0" for k in (1, 2, 3, 5, 6, 7)]
        gw = []
        for half in range(2):
            o = 8 * half
            gw += [f"v_add_f32 {v(YK+o+j)}, {v(T+o+j)}, {v(G.Y+o+j)}" for j in range(8)]
            gw += [f"v_mul_f32 {v(T+o+j)}, {fl(-1.4426950408889634)}, {v(YK+o+j)}" for j in range(8)]
            gw += [f"v_exp_f32 {v(T+o+j)}, {v(T+o+j)}" for j in range(8)]
            gw += [f"v_add_f32 {v(T+o+j)}, 1.0, {v(T+o+j)}" for j in range(8)]
            gw += [f"v_rcp_f32 {v(T+o+j)}, {v(T+o+j)}" for j in range(8)]
            gw += [f"v_mul_f32 {v(YK+o+j)}, {v(YK+o+j)}, {v(T+o+j)}" for j in range(8)]
        held = []
        if GL: gw = []
        for sig in range(59):
            acc = G.Y if sig < 43 else G.S2; first = sig in (0, 43)
            n0 = len(a.items); lg.wait(("B", sig)); vm.wait(("A", sig))
            if self.o["mw"] and len(a.items) == n0 + 2: a.items[n0:] = [a.items[n0 + 1] + " " + a.items[n0].split()[1]]
            A = v(RING[sig % D], 4)
            m = [f"v_mfma_f32_32x32x16_bf16 {v(acc+16*cb,16)}, {v(G.BF+8*(sig%3)+4*cb,4)}, {A}, {0 if first else v(acc+16*cb,16)}" for cb in range(2)]
            if self.o["snk"] & 4 and sig & 1 and sig < 56: m = m[::-1]
            self.ts(f"c_s{sig}")
            if sig >= 56 and self.o["tl"]:
                for r in breads(sig + 2): ds(r, ("B", sig + 2))
                held.append((m[0], gw[8*(sig-47): 8*(sig-46)])); a(m[1]); continue
            a(m[0])
            if sig in done_at: lsig(G.vDW, 0, done_at[sig])
            if sig in need_prog: lcheck(G.vPW, 0, need_prog[sig], "ck")
            if sig == 44:
                lcheck(G.vPW, 16, 5, "ck")
                for q in range(4): ds(f"ds_write_b128 {v(G.vXC)}, {v(G.Y+16+4*q,4)} offset:{16384*GL+1024*q}", "yw")
                if not GL: lsig(G.vMF, 8, 1)
            if sig == 45 and GL:
                for q in range(4): ds(f"ds_write_b128 {v(G.vXC)}, {v(G.Y+4*q,4)} offset:{1024*q}", "yw")
                lsig(G.vMF, 8, 1)

            if sig == 47 and not GL: lcheck(G.vPF, 8, 1, "yr", yr)
            rd = breads(sig + 2) if not (self.o["e4"] & 2 and 8 <= sig < 40) else []
            nd = self.o["nd"]
            for r in rd[:nd]: ds(r, ("B", sig + 2))
            fill = []
            if 9 <= sig <= 14: fill = work[4*(sig-9): 4*(sig-8)]
            if sig == 16: fill = ["s_nop 0", f"v_mfma_f32_32x32x16_bf16 {v(G.Y,16)}, {v(BB,4)}, {v(BB+4,4)}, {v(G.Y,16)}"]
            if 47 <= sig <= 58: fill = gw[8*(sig-47): 8*(sig-46)]
            h = len(fill) // 2
            for f in fill[:h]: a(f)
            a(m[1])
            for r in rd[nd:]: ds(r, ("B", sig + 2))
            if sig + 1 in need_prog: lread(G.vPW, 0, "ck")
            if sig == 43: lread(G.vPW, 16, "ck")
            if sig == 55 and GL: lread(G.vPW, 0, "ck")
            if sig == 45 and not GL:
                lread(G.vPF, 8, "yr")
                for r in yr: ds(r, "yr")
            if sig == self.o["pf"]:
                vm.wait("pub"); a(f"buffer_store_dword v11, {v(G.vFL)}, {s(sWS,4)}, s27 offen sc1"); vm.issue("f"); self.ts("c_pflag")
            if F4:
                lvl = lambda k: sorted(gat).index(k) + 1
                if sig + 2 in gat: gcheck(gat[sig + 2]); lsig(G.vDW, 16, lvl(sig + 2))
                if sig + 1 in gat: lread(G.vPW, 32, "sn", G.vGF)
                if sig in gat: self.ts(f"c_gp{sig}"); lcheck(G.vPW, 32, lvl(sig), "sn", ck=G.vGF); self.ts(f"c_g{sig}")
            elif sig in gat: self.ts(f"c_gp{sig}"); gcheck(gat[sig]); self.ts(f"c_g{sig}")
            if not (self.o["e4"] & 1 and 8 <= sig + D < 43): aload(sig + D)
            if sig == 0: a(f"buffer_load_ushort {v(BB)}, v8, {s(sB2,4)}, 0 offen"); vm.issue("x")
            if sig == 15: vm.wait("x")
            ke = self.o["kearly"] or self.o["kpoll"] + 2 * F4
            if self.o["kearly"] and sig + self.o["kpoll"] in gat: gload(gat[sig + self.o["kpoll"]], G.vGB, "gb")
            if sig + ke in gat and (sig > 7 or not self.o["kearly"]):
                so = gat[sig + ke]
                if so == sC0: a(f"s_add_u32 {s(sC0)}, {s(sC0)}, {FG}")
                gload(so, G.vGF, "gf")
            for f in fill[h:]: a(f)
        for m0, f in held[:2]:
            a(m0)
            for x in f: a(x)
            if GL and m0 == held[0][0]:
                lcheck(G.vPW, 0, 7, "ck")
                for q in range(4): ds(f"ds_read_b128 {v(YK+4*q,4)}, {v(G.vXC)} offset:{32768+1024*q}", "g")
        self.ts("c_loop")
        for q in range(4): ds(f"ds_write_b128 {v(G.vXC)}, {v(G.S2+16+4*q,4)} offset:{SO+1024*q}", "sw")
        lsig(G.vMF, 12, 1)
        for m0, f in held[2:]:
            a(m0)
            for x in f: a(x)
        sr = [f"ds_read_b128 {v(T+4*q,4)}, {v(G.vXP)} offset:{SO+1024*q}" for q in range(4)]
        lread(G.vPF, 12, "sr")
        for r in sr: ds(r, "sr")
        lg.wait("g")
        for j in range(0, 16, 2): a(f"v_pk_fma_f32 {v(XX+j,2)}, {v(G.S2+j,2)}, {v(YK+j,2)}, {v(XX+j,2)}")
        lcheck(G.vPF, 12, 1, "sr", sr)
        for half in range(2):
            o = 8 * half; P = BB + 8 + 4 * half
            for j in range(0, 8, 2): a(f"v_pk_fma_f32 {v(XX+o+j,2)}, {v(T+o+j,2)}, {v(YK+o+j,2)}, {v(XX+o+j,2)}")
            for j in range(4): a(f"v_cvt_pk_bf16_f32 {v(P+j)}, {v(XX+o+2*j)}, {v(XX+o+2*j+1)}")
            a(f"v_permlane32_swap_b32 {v(P)}, {v(P+2)}\nv_permlane32_swap_b32 {v(P+1)}, {v(P+3)}")
            a(f"buffer_store_dwordx4 {v(P,4)}, {v(G.vOUT)}, {s(sOUT,4)}, 0 offen offset:{32*half} {['', 'sc1', 'nt', 'sc0 sc1', 'sc1 nt'][self.o['osc']]}")
        self.ts("c_end")
        self.ts_flush()

    def build(self):
        a = self.a
        self.prologue()
        self.compute_setup()
        self.typeA()
        if self.stop == "p1": self.ts_flush(); a("s_endpgm")
        else: a("s_branch L_phase2")
        a.label("L_typeB")
        self.typeB()
        if self.stop == "p1": self.ts_flush(); a("s_endpgm")
        else: self.phase2()
        a.label("L_end")
        a("s_endpgm")
        for t in self.tail: a(t)
        a("L_last:\ns_endpgm")
        body = a.finalize(verbose=True)
        head = open("cdna_kernels/" + KN[:-7] + ".s.ref").read().split("; Override launch")[0]
        return head + f"""; @launch grid=(256,1,1) block=(512,1,1) lds={LDS_SIZE}
;
; One persistent launch, one workgroup per CU: 4 compute waves (MFMA) + 4 loader waves (LDS-DMA / register staging).
; Phase 1, tile 128 rows x 3 panels of 64 columns, raw x resident in LDS, layer norm applied after the GEMM
;   (row mean / rstd are computed once per row and handed round; mean * column-sum and bias enter through one more MFMA):
;   type A workgroups: [K V] -> phi(k), kv / z partials -> [Q] -> sum of the 16 partials, o = num / den
;   type B workgroups: [F F] [F] -> gelu -> h
; Phase 2, tile 64 x 64: y = h @ w2 + b2, s = o @ wo, out = x + s * silu(y).
; Hand-offs go through d_ws with write-through stores and flag lines that carry a per-launch nonce (published in d_debug).
; Generated by gen/gen.py.
.amdgcn_target "amdgcn-amd-amdhsa--gfx950"
.text
.globl {KN}
.p2align 8
.type {KN},@function
{KN}:
{body}
.section .rodata,"a"
.p2align 6
.amdhsa_kernel {KN}
  .amdhsa_next_free_vgpr 256
  .amdhsa_next_free_sgpr 102
  .amdhsa_accum_offset 256
  .amdhsa_group_segment_fixed_size 0
  .amdhsa_kernarg_size 88
  .amdhsa_user_sgpr_count 2
  .amdhsa_user_sgpr_kernarg_segment_ptr 1
  .amdhsa_system_sgpr_workgroup_id_x 1
.end_amdhsa_kernel
"""

if __name__ == "__main__":
    import argparse
    ap = argparse.ArgumentParser()
    ap.add_argument("out"); ap.add_argument("--diag", nargs="?", const="rt"); ap.add_argument("--stop"); ap.add_argument("--dbgout", action="store_true"); ap.add_argument("--marks"); ap.add_argument("--opts"); ap.add_argument("--probe")
    x = ap.parse_args()
    open(x.out, "w").write(Gen(diag=x.diag, stop=x.stop, dbgout=x.dbgout, marks=x.marks, opts=x.opts, probe=x.probe).build())
```

```python
import sys, struct
from asmlib import Asm, v, s

KN = "recurrent_scan__linear_attn_block__dense_activation_gelu__prompt_kernel"
def f2u(x): return struct.unpack("<I", struct.pack("<f", x))[0]
def hx(x): return f"0x{x & 0xffffffff:08x}"
def fl(x): return hx(f2u(x))

WS_HO = 0
WS_KV = 24 << 20
WS_ST = 9 << 20
FS = 7
FG = 16 << FS
WS_FH = WS_KV + 0x80000
WS_FO = WS_FH + 96 * FG
WS_FK = WS_FO + 32 * FG
WS_DUM = 11 << 20
WS_TS = 12 << 20
WS_SIZE = 268435456
OOB = 0x80000000
WR = 131072
SCR = 155648
SC_NONCE = SCR
SC_FLAG = SCR + 64
SC_PROG = SC_FLAG + 64
SC_CS = SCR + 256
SC_R = SCR + 2048
SC_KVX = SCR + 3072
LDS_SIZE = 163840
NSLOT = 38
def b_lds(sig): return (sig % NSLOT) * 4096
XCH_Y = 21 * 4096
XT = 29 * 4096
ORDER = []
for p in range(3):
    for g in range(8):
        for ch in range(2):
            f = 6 * g + 2 * p + ch
            if f < 43: ORDER.append(("w2", f))
ORDER += [("wo", f) for f in range(16)]
assert len(ORDER) == 59
SIG0 = [0, 15, 29]
def pos_of(sig):
    st = 3 if sig >= 43 else 2 if sig >= 29 else 1 if sig >= 15 else 0
    j = sig - (SIG0 + [43])[st]
    return st, j >> 1, j & 1
def hoff(sig, lay=0):
    if not lay: return sig * 1024
    if lay == 2: return (sig >> 3) * 16384 + (sig & 7) * 1024
    par = int(sig >= 29); t = sig - 29 * par
    return (t >> 3) * 16384 + par * 8192 + (t & 7) * 1024
SPIN_MAX = 1 << 18

sX, sW, sW2, sWO, sWS, sDBG, sOUT, sB1, sB2 = 28, 32, 36, 40, 44, 48, 52, 56, 60
sWAVE, sI, sG, sTYPE, sHF, sCT, sKST, sRH, sCH, sNONCE, sSTR = 64, 65, 66, 67, 68, 69, 70, 71, 72, 73, 74
sT0, sT1, sT2, sT3, sT4, sT5 = 75, 76, 77, 78, 79, 80
sC0 = 81
sSPIN = 84
sM = 86
sLM = 60
sWD = 10
sP1, sP2, sP3, sP4 = 12, 13, 14, 15
sWB = 56
sTS = 88

class Cnt:
    def __init__(self, a, name, mx): self.a, self.name, self.mx, self.q = a, name, mx, []
    def issue(self, tag): self.q.append(tag)
    def wait(self, tag):
        if tag not in self.q: return
        k = len(self.q) - 1 - max(i for i, t in enumerate(self.q) if t == tag)
        k = min(k, self.mx)
        self.a(f"s_waitcnt {self.name}({k})")
        self.q = self.q[len(self.q) - k:] if k else []
    def wait_all(self):
        self.a(f"s_waitcnt {self.name}(0)"); self.q = []

class Gen:
    def __init__(self, diag=False, stop=None, dbgout=False, marks=None, opts=None, probe=None):
        self.probe = tuple(int(x) for x in probe.split(',')) if probe else None
        self.o = dict(cpf=5, wt=3, xe=1, w2t=4, t1=14, t2=1, pk=1, kpoll=4, D=8, asc=1, xl=1, mp=1, seg=0, fsc=0,
                      bud0=24, bud2=64, budA=30, nE=33, nL=4, pe0=14, nEA=35, nLA=21, pe0A=15, burst=16, fm=12, fmA=3, ga=20, gc=26, thr=0, fl=32, pre=1, chk=2, pf=5, g2h=3, lay=0, kfs=13, kfc=13, pqh=3, w2s=0, ld=1, t3=0, grp=1223, osc=0, kearly=0, psc=0, pw=0, r2=0, r2m=2, sw=0, sw0=1, sw1=9, swn=4, slp=0, prio=0, m0n=4, mint=3, tl=1, kpos=1, ofirst=0, bk=16, latp=-1, psh=2, pwg=-1, gateA=0, gateB=0, stg=0, e1=0, fs4=0, ow=0, owk=6, e4=0, nd=3, mw=1, gl=0, r2c=1, w7=0, w7s=2, n8=0, nlate=0, f1h=3, eb=1, lateA=0, lateB=0, e2=0, e5=0, snk=7, pku=0, fu=16, s128=0)
        for kv in (opts or '').split(','):
            if kv: k, x = kv.split('='); assert k in self.o, k; self.o[k] = int(x)
        self.SS = 17 if self.o['lay'] == 2 else 16
        self.dbgout = dbgout; self.verbose = True
        self.marks = {"start": 0}
        for grp in (marks or "c_bar0,c_main,cA_q|cB_gelu,c_p0,c_loop,c_end;l_bar0,l_bar8,l_bland,l_p0,l_p3,l_end").split(";"):
            for k, nm in enumerate(grp.split(",")):
                for x in nm.split("|"): self.marks[x] = k + 1
        self.a = Asm(); self.diag = diag; self.stop = stop; self.uid = 0; self.tail = []
    def lab(self, n): self.uid += 1; return f"L{n}_{self.uid}"
    def ts(self, name):
        if not self.diag or name not in self.marks: return
        k = self.marks[name]
        if self.diag == "both":
            if k == 0: self.a(f"s_memrealtime {s(sTS, 2)}")
            elif k <= 3: self.a(f"s_memrealtime {s(sTS + 2 * k, 2)}\ns_memtime {s(sTS + 2 * k + 6, 2)}")
            return
        self.a(f"{'s_memtime' if self.diag == 'cyc' else 's_memrealtime'} {s(sTS + 2 * k, 2)}")
    def ts_flush(self):
        if not self.diag: return
        a = self.a
        if self.probe:
            pa, pb = self.probe
            L = self.lab("probe"); X = self.lab("probex")
            op = 's_memtime' if self.diag == 'cyc' else 's_memrealtime'
            a(f"s_cmp_ge_u32 {s(sWAVE)}, 4\ns_cbranch_scc1 {X}")
            if self.o["pwg"] >= 0: a(f"s_lshl_b32 {s(sT0)}, s2, 2\ns_add_u32 {s(sT0)}, {s(sT0)}, {s(sWAVE)}\ns_cmp_lg_u32 {s(sT0)}, {self.o['pwg']}\ns_cbranch_scc1 {X}")
            a(f"{op} {s(sM,2)}\ns_waitcnt lgkmcnt(0)")
            if pa < 0: a(f"s_mov_b32 {s(sT0)}, {pb}")
            else: a(f"s_sub_u32 {s(sT0)}, {s(sTS+2*pb)}, {s(sTS+2*pa)}\ns_lshl_b32 {s(sT0)}, {s(sT0)}, {self.o['psh']}")
            a(f"s_min_u32 {s(sT0)}, {s(sT0)}, 400000\ns_mov_b32 {s(sT1)}, {s(sM)}")
            a.label(L)
            a(f"{op} {s(sM,2)}\ns_waitcnt lgkmcnt(0)\ns_sub_u32 {s(sT2)}, {s(sM)}, {s(sT1)}\ns_cmp_lt_u32 {s(sT2)}, {s(sT0)}\ns_cbranch_scc1 {L}")
            a.label(X)
            return
        a("s_waitcnt lgkmcnt(0)")
        a(f"s_lshl_b32 {s(sT0)}, s2, 3\ns_add_u32 {s(sT0)}, {s(sT0)}, {s(sWAVE)}\ns_lshl_b32 {s(sT0)}, {s(sT0)}, 5\ns_add_u32 {s(sT0)}, {s(sT0)}, {WS_TS}")
        for k in range(7): a(f"v_mov_b32 v{8+k}, {s(sTS+2*k)}")
        a("v_mov_b32 v15, 0\nv_mov_b32 v7, 0")
        a("s_mov_b64 exec, 1")
        a(f"buffer_store_dwordx4 v[8:11], v7, {s(sWS,4)}, {s(sT0)} offen")
        a(f"buffer_store_dwordx4 v[12:15], v7, {s(sWS,4)}, {s(sT0)} offen offset:16")
        if self.dbgout:
            L = self.lab("dbgo")
            self.srd(sDBG, 22, 256)
            a(f"s_cmp_lg_u32 {s(sWAVE)}, 0\ns_cbranch_scc1 {L}\ns_and_b32 {s(sT0)}, s2, 0xdf\ns_cmp_lg_u32 {s(sT0)}, 0\ns_cbranch_scc1 {L}")
            for k in range(6, -1, -1): a(f"v_subrev_u32 v{8+k}, {s(sTS)}, v{8+k}")
            a(f"s_add_u32 {s(sT0)}, s2, 4")
            a(f"buffer_store_dwordx4 v[9:12], v7, {s(sDBG,4)}, {s(sT0)} offen".replace("v[9:12]", "v[8:11]"))
            a(f"buffer_store_dwordx3 v[12:14], v7, {s(sDBG,4)}, {s(sT0)} offen offset:16")
            a.label(L)
        a("s_mov_b64 exec, -1")

    def srd(self, d, ptr, size):
        self.a(f"s_mov_b32 {s(d)}, {s(ptr)}\ns_mov_b32 {s(d+1)}, {s(ptr+1)}\ns_mov_b32 {s(d+2)}, {size}\ns_mov_b32 {s(d+3)}, 0x00020000")

    def rot2(self, r7, r8, t):
        return (f"s_lshr_b32 {s(r8)}, s2, 6\ns_mul_i32 {s(r8)}, {s(r8)}, {self.o['r2m']}\ns_add_u32 {s(r8)}, {s(r8)}, {s(sCT) if self.o['r2c'] else 0}\n"
                f"s_mul_i32 {s(t)}, {s(r8)}, 37\ns_lshr_b32 {s(t)}, {s(t)}, 8\ns_mul_i32 {s(t)}, {s(t)}, 7\ns_sub_u32 {s(r7)}, {s(r8)}, {s(t)}\ns_and_b32 {s(r8)}, {s(r8)}, 7")
    def fload(self, r, va, so):
        k = self.o["psc"]
        if k == 4: return f"v_mov_b32 {v(r)}, 0\nbuffer_atomic_or {v(r)}, {v(va)}, {s(sWS,4)}, {s(so)} offen sc0 sc1"
        return f"buffer_load_dword {v(r)}, {v(va)}, {s(sWS,4)}, {s(so)} offen {['sc1', 'sc0 sc1', 'sc1 nt', 'sc0 sc1 nt'][k]}"
    def poll_text(self, vaddr, vtmp, soff, L, X):
        if self.o["mp"]:
            return (f"s_mov_b32 {s(sSPIN)}, 0\ns_mov_b64 exec, 0xffff\n{L}:\n"
                    f"{self.fload(vtmp, vaddr, soff)}\n"
                    f"s_add_u32 {s(sSPIN)}, {s(sSPIN)}, 1\ns_cmp_gt_u32 {s(sSPIN)}, {SPIN_MAX}\ns_waitcnt vmcnt(0)\ns_cbranch_scc1 {X}\n"
                    f"v_cmp_ne_u32 vcc, {s(sNONCE)}, {v(vtmp)}\ns_and_b64 exec, exec, vcc\ns_cbranch_execnz {L}\n{X}:\ns_mov_b64 exec, -1")
        return (f"s_mov_b32 {s(sSPIN)}, 0\n{L}:\n"
                f"{self.fload(vtmp, vaddr, soff)}\n"
                f"s_add_u32 {s(sSPIN)}, {s(sSPIN)}, 1\ns_cmp_gt_u32 {s(sSPIN)}, {SPIN_MAX}\ns_waitcnt vmcnt(0)\ns_cbranch_scc1 {X}\n"
                f"v_cmp_ne_u32 vcc, {s(sNONCE)}, {v(vtmp)}\ns_cbranch_vccnz {L}\n{X}:")
    def poll(self, vaddr, vtmp, soff):
        self.a(self.poll_text(vaddr, vtmp, soff, self.lab("poll"), self.lab("pollx")))

    def prologue(self):
        a = self.a
        a("s_cmp_ge_u32 s2, 256\ns_cbranch_scc1 L_end")
        a("s_load_dwordx16 s[4:19], s[0:1], 0\ns_load_dwordx4 s[20:23], s[0:1], 64\ns_load_dwordx2 s[24:25], s[0:1], 80")
        if self.diag:
            for k in range(1, 7): a(f"s_mov_b32 {s(sTS+2*k)}, 0")
        self.ts("start")
        if self.o["cpf"] >= 2:
            n = self.o["cpf"]
            a(f"s_getpc_b64 s[26:27]\nL_pc:\ns_bfe_u32 s3, s2, {0x30003 if n == 5 else 0x20003 if n == 10 else 0x10003}\ns_mul_i32 s3, s3, {8*n}\nv_lshrrev_b32 v3, 6, v0\nv_and_b32 v4, 63, v0\nv_min_u32 v4, {n-1}, v4\nv_mad_u32_u24 v3, v3, {n}, v4")
            a(f"v_add_lshl_u32 v3, v3, s3, 7\nv_min_u32 v3, L_last-L_pc, v3\nglobal_load_dword {v(self.vDUM)}, v3, s[26:27]")
        elif self.o["cpf"]:
            a(f"s_getpc_b64 s[26:27]\nL_pc:\nv_lshlrev_b32 v3, 7, v0\nv_min_u32 v3, L_last-L_pc, v3\nglobal_load_dword {v(self.vDUM)}, v3, s[26:27]")
        a("v_lshrrev_b32 v2, 6, v0\nv_and_b32 v1, 63, v0")
        a(f"s_and_b32 {s(sT0)}, s2, 3")
        a(f"v_readfirstlane_b32 {s(sWAVE)}, v2")
        a(f"s_bfe_u32 {s(sHF)}, s2, 0x10002")
        a(f"s_bfe_u32 {s(sCT)}, s2, 0x30003")
        a(f"s_lshr_b32 {s(sI)}, s2, 6\ns_lshl_b32 {s(sI)}, {s(sI)}, 2\ns_add_u32 {s(sI)}, {s(sI)}, {s(sT0)}")
        if self.o["seg"]: a(f"s_mov_b32 {s(sTYPE)}, {s(sHF)}\ns_mov_b32 {s(sG)}, {s(sCT)}")
        else:
            a(f"s_lshr_b32 {s(sTYPE)}, {s(sCT)}, 2")
            a(f"s_and_b32 {s(sG)}, {s(sCT)}, 3\ns_lshl_b32 {s(sT0)}, {s(sHF)}, 2\ns_add_u32 {s(sG)}, {s(sG)}, {s(sT0)}")
        a(f"s_lshl_b32 {s(sT0)}, {s(sG)}, 7\ns_mul_i32 {s(sT1)}, {s(sG)}, 384")
        a(f"s_add_u32 {s(sT2)}, {s(sT0)}, 1024\ns_add_u32 {s(sT3)}, {s(sT0)}, 2048\ns_add_u32 {s(sT4)}, {s(sT1)}, 128\ns_add_u32 {s(sT5)}, {s(sT1)}, 256")
        a(f"s_cmp_eq_u32 {s(sTYPE)}, 0")
        a(f"s_movk_i32 {s(sSTR)}, 2752\ns_cselect_b32 {s(sSTR)}, 3072, {s(sSTR)}")
        a(f"s_cselect_b32 {s(sC0)}, {s(sT2)}, {s(sT1)}\ns_cselect_b32 {s(sC0+1)}, {s(sT3)}, {s(sT4)}\ns_cselect_b32 {s(sC0+2)}, {s(sT0)}, {s(sT5)}")
        a(f"s_cmp_ge_u32 {s(sWAVE)}, 4\ns_cbranch_scc1 L_loader")

    def loader(self):
        a = self.a
        vX, vW, vB, vP, vT, vL, PARK = 10, 14, 20, 21, 22, 24, 32
        sWK, sKX, sKW, sXB, sF = 85, 26, 27, 3, sT5
        a.label("L_loader")
        if self.o["prio"] == 2: a("s_setprio 1")
        a(f"s_and_b32 {s(sWK)}, {s(sWAVE)}, 3")
        a("v_lshrrev_b32 v2, 3, v1\nv_and_b32 v3, 7, v1\nv_lshrrev_b32 v4, 4, v1")
        a(f"s_and_b32 {s(sT0)}, {s(sWK)}, 1\ns_lshl_b32 {s(sT0)}, {s(sT0)}, 2\ns_lshl_b32 {s(sT1)}, {s(sWK)}, 3")
        a(f"v_add_u32 v5, {s(sT0)}, v4\nv_xor_b32 v5, v3, v5\nv_lshlrev_b32 v5, 4, v5")
        a(f"v_add_u32 v6, {s(sT1)}, v2")
        a(f"v_lshl_add_u32 {v(vX)}, v6, 10, v5")
        for m in range(1, 4): a(f"v_add_u32 {v(vX+m)}, {m*32768}, {v(vX)}")
        a("v_and_b32 v7, 1, v4\nv_lshlrev_b32 v7, 2, v7\nv_xor_b32 v7, v3, v7\nv_lshlrev_b32 v7, 4, v7")
        a(f"v_mul_u32_u24 v8, {s(sSTR)}, v6")
        a(f"s_lshl_b32 {s(sT2)}, {s(sSTR)}, 5\nv_mov_b32 v2, {hx(OOB)}")
        for p in range(3):
            a(f"v_add_u32 v9, {s(sC0+p)}, v7\nv_cmp_gt_u32 vcc, {s(sSTR)}, v9\nv_add_u32 v9, v8, v9\nv_add_u32 v3, {s(sT2)}, v9")
            a(f"v_cndmask_b32 {v(vW+2*p)}, v2, v9, vcc\nv_cndmask_b32 {v(vW+2*p+1)}, v2, v3, vcc")
        a(f"s_lshl_b32 {s(sWK)}, {s(sWK)}, 10\ns_lshl_b32 {s(sXB)}, {s(sI)}, 17\ns_lshl_b32 {s(sT3)}, {s(sSTR)}, 5")
        self.ts("l_pre")
        a("s_waitcnt lgkmcnt(0)")
        self.srd(sX, 4, 2097152)
        a(f"s_lshl_b32 {s(sW+2)}, {s(sSTR)}, 9\ns_mov_b32 {s(sW+3)}, 0x00020000\ns_cmp_eq_u32 {s(sTYPE)}, 0")
        a(f"s_cselect_b32 {s(sW)}, s6, s12\ns_cselect_b32 {s(sW+1)}, s7, s13")
        self.ts("l_karg")
        vm = Cnt(a, "vmcnt", 63)
        def bsrc(sig):
            mat, f = ORDER[sig]; st, j2, ch = pos_of(sig)
            if not self.o["r2"] or sig == 14: a(f"s_mov_b32 {s(sF)}, {f*32768}")
            elif st < 3: a(f"s_add_u32 {s(sF)}, {s(4+j2)}, {(2*st+ch)*32768}")
            else: a(f"s_add_u32 {s(sF)}, {s(11+j2)}, {ch*32768}")
            return s(sW2 if mat == 'w2' else sWO, 4)
        gs = [int(c) for c in str(self.o["grp"])]; assert sum(gs) == 8
        grp_of = [(sum(gs[:n]), gs[n]) for n in range(len(gs)) for _ in range(gs[n])]
        rot = lambda pos: grp_of[pos][1] > 1
        sK0 = 56
        def ktable(lo, hi):
            for pos in range(lo, hi):
                g0, n = grp_of[pos]
                if n == 1: continue
                if pos == g0:
                    a(f"s_lshr_b32 {s(sT1)}, s2, 6\ns_mul_i32 {s(sT1)}, {s(sT1)}, {max(1, (n+1)//4)}\ns_add_u32 {s(sT1)}, {s(sT1)}, {s(sCT)}")
                    a(f"s_mul_i32 {s(sT0)}, {s(sT1)}, {-(-256//n)}\ns_lshr_b32 {s(sT0)}, {s(sT0)}, 8\ns_mul_i32 {s(sT0)}, {s(sT0)}, {n}\ns_sub_u32 {s(sT1)}, {s(sT1)}, {s(sT0)}\ns_add_u32 {s(sK0+pos)}, {s(sT1)}, {g0}")
                else:
                    a(f"s_add_u32 {s(sK0+pos)}, {s(sK0+pos-1)}, 1\ns_cmp_eq_u32 {s(sK0+pos)}, {g0+n}\ns_cselect_b32 {s(sK0+pos)}, {g0}, {s(sK0+pos)}")
        def wst(st, reg=False):
            pos = st // 2 if st < 16 else st - 16
            if rot(pos):
                a(f"s_lshl_b32 {s(sKW)}, {s(sK0+pos)}, 1" + (f"\ns_add_u32 {s(sKW)}, {s(sKW)}, 1" if st < 16 and st & 1 else "") + f"\ns_mul_i32 {s(sKW)}, {s(sKW)}, {s(sT3)}")
            else: a(f"s_mul_i32 {s(sKW)}, {s(sT3)}, {st if st < 16 else 2*(st-16)}")
            for m in range(2):
                if reg:
                    a(f"buffer_load_dwordx4 {v(224 + 8*(st % 4) + 4*m, 4)}, {v(vW + (2*m if st < 16 else 4+m))}, {s(sW,4)}, {s(sKW)} offen"); vm.issue(("R", st))
                    continue
                a(f"s_add_u32 m0, {s(sWK)}, {WR + (st % 3)*8192 + m*4096}")
                a(f"buffer_load_dwordx4 {v(vW + (2*m if st < 16 else 4+m))}, {s(sW,4)}, {s(sKW)} offen lds"); vm.issue(("S", st))
        STG = self.o["stg"]
        def feed(k):
            if self.o["e1"] == 2 and 1 < k < 14: return
            if not STG: wst(k + 2); xpair(k + 3); return
            if k == 0: wst(2); xpair(3); wst(3, True); xpair(4)
            if k + 4 <= STG: wst(k + 4, True)
            if STG < k + 2 < 24: wst(k + 2)
            xpair(k + 5)
            if 3 <= k + 2 <= STG:
                vm.wait(("R", k + 2))
                for m in range(2): a(f"ds_write_b128 {v(vL+2)}, {v(224 + 8*((k+2) % 4) + 4*m, 4)} offset:{WR - 131072 + ((k+2) % 3)*8192 + m*4096}")
        def ready(k):
            if self.o["e1"] and 2 < k < 16: return
            vm.wait(("S", k))
            if 3 <= k <= STG: a(f"s_waitcnt lgkmcnt({2 if k + 1 <= STG else 0})")
        def xpair(n):
            k = n >> 1
            if k >= 8: return
            if rot(k): a(f"s_lshl_b32 {s(sKX)}, {s(sK0+k)}, 7\ns_add_u32 {s(sKX)}, {s(sKX)}, {s(sXB)}")
            else: a(f"s_add_u32 {s(sKX)}, {s(sXB)}, {128*k}")
            for mm in (2*(n & 1), 2*(n & 1) + 1):
                a(f"s_add_u32 m0, {s(sWK)}, {k*16384 + mm*4096}")
                a(f"buffer_load_dwordx4 {v(vX+mm)}, {s(sX,4)}, {s(sKX)} offen lds"); vm.issue(("S", 2*k))
        st_ = dict(nE=0)
        preg = lambda sig: PARK + 4*sig if sig < st_["nE"] else PARK + 4*(st_["nE"] + sig - NSLOT)
        def bstep(sig):
            a(f"s_add_u32 m0, {s(sWK)}, {b_lds(sig)}")
            srd = bsrc(sig)
            a(f"buffer_load_dwordx4 {v(vB)}, {srd}, {s(sF)} offen lds"); vm.issue(("B", sig))
        def park(sig):
            srd = bsrc(sig)
            a(f"buffer_load_dwordx4 {v(preg(sig),4)}, {v(vB)}, {srd}, {s(sF)} offen"); vm.issue(("B", sig))
        def put(sig):
            base = b_lds(sig); w = base >> 16
            a(f"ds_write_b128 {v(vL+w)}, {v(preg(sig),4)} offset:{base-65536*w}")
        if self.o["ld"]: a("s_barrier")
        ktable(0, 1); wst(0); xpair(0); xpair(1); self.ts("l_s0"); wst(1); ktable(1, 8); xpair(2); self.ts("l_s2")
        vPG, vDN = 28, 29
        self.srd(sW2, 16, 1409024); self.srd(sWO, 8, 524288); self.srd(sWS, 24, WS_SIZE)
        if self.o["r2"]:
            a(self.rot2(sT0, sT1, sT2))
            for base, n, r, step in ((4, 7, sT0, 6*32768), (11, 8, sT1, 2*32768)):
                a(f"s_mul_i32 {s(base)}, {s(r)}, {step}")
                for j in range(1, n): a(f"s_add_u32 {s(base+j)}, {s(base+j-1)}, {step}\ns_cmp_eq_u32 {s(base+j)}, {n*step}\ns_cselect_b32 {s(base+j)}, 0, {s(base+j)}")
        a(f"s_lshl_b32 {s(sT0)}, {s(sCT)}, 7\nv_lshl_add_u32 {v(vB)}, v6, 10, v7\nv_add_u32 {v(vB)}, {s(sT0)}, {v(vB)}")
        a(f"v_lshl_add_u32 {v(vL)}, v1, 4, {s(sWK)}\nv_add_u32 {v(vL+1)}, 65536, {v(vL)}\nv_add_u32 {v(vL+2)}, 131072, {v(vL)}")
        a(f"s_lshr_b32 {s(sT0)}, {s(sWK)}, 8\ns_add_u32 {s(sT0)}, {s(sT0)}, {SC_PROG}\nv_mov_b32 {v(vPG)}, {s(sT0)}")
        a(f"v_and_b32 {v(vDN)}, 3, v1\nv_lshlrev_b32 {v(vDN)}, 2, {v(vDN)}\nv_add_u32 {v(vDN)}, {SC_PROG+16}, {v(vDN)}")
        def prog(lv): a(f"v_mov_b32 {v(vT)}, {lv}\nds_write_b32 {v(vPG)}, {v(vT)}")
        sw = self.o["sw"]; tq = [[], []]
        if sw:
            assert not self.o["r2"]
            a(f"s_lshr_b32 {s(sT1)}, {s(sWK)}, 10\ns_lshl_b32 {s(sT0)}, s2, 2\ns_add_u32 {s(sT0)}, {s(sT0)}, {s(sT1)}")
            a(f"s_mul_i32 {s(sT2)}, {s(sT0)}, 1376\ns_add_u32 s10, s16, {s(sT2)}\ns_addc_u32 s11, s17, 0\ns_lshl_b32 {s(sT2)}, {s(sT0)}, 9\ns_add_u32 s12, s8, {s(sT2)}\ns_addc_u32 s13, s9, 0")
            a(f"s_lshr_b32 {s(sT0)}, s2, 3\ns_mul_i32 {s(sT2)}, {s(sT1)}, 11\ns_min_u32 {s(sT2)}, {s(sT2)}, 32\ns_mul_i32 s14, {s(sT0)}, 43\ns_add_u32 {s(sT2)}, {s(sT2)}, s14\ns_lshl_b32 {s(sT2)}, {s(sT2)}, 10\ns_add_u32 s14, s16, {s(sT2)}\ns_addc_u32 s15, s17, 0")
            a(f"s_lshl_b32 {s(sT0)}, {s(sT0)}, 2\ns_add_u32 {s(sT0)}, {s(sT0)}, {s(sT1)}\ns_lshl_b32 {s(sT0)}, {s(sT0)}, 12\ns_add_u32 s18, s8, {s(sT0)}\ns_addc_u32 s19, s9, 0")
            if sw & 1: tq[0] = [f"s_load_dword s20, s[10:11], {64*u}" for u in range(22)] + [f"s_load_dword s20, s[12:13], {64*u}" for u in range(8)]
            if sw & 2: tq[1] = [f"s_load_dword s20, s[14:15], {1024*r + 384 + u}" for r in range(11) for u in (0, 64)] + [f"s_load_dword s20, s[18:19], {1024*r + 384 + u}" for r in range(4) for u in (0, 64)]
        def touch(k, tq):
            for j in range(2):
                if k >= self.o[f"sw{j}"]:
                    for x in tq[j][:self.o["swn"]]: a(x)
                    tq[j] = tq[j][self.o["swn"]:]
        N = 24; KS = 12
        for k in range(KS):
            ready(k); self.ts(f"l_land{k}"); a("s_barrier"); self.ts(f"l_bar{k}")
            feed(k); touch(k, tq)
            if self.o["ow"] and k == self.o["owk"]:
                self.srd(sOUT, 20, 2097152)
                a(f"s_lshl_b32 {s(sT0)}, {s(sI)}, 1\ns_add_u32 {s(sT0)}, {s(sT0)}, {s(sHF)}\ns_lshl_b32 {s(sT0)}, {s(sT0)}, 16\ns_lshl_b32 {s(sT1)}, {s(sCT)}, 7\ns_add_u32 {s(sT0)}, {s(sT0)}, {s(sT1)}")
                for m in range(2):
                    if self.o["ow"] == 1: a(f"buffer_store_dwordx4 v[4:7], {v(vX+m)}, {s(sOUT,4)}, {s(sT0)} offen")
                    else: a(f"buffer_load_dwordx4 v[32:35], {v(vX+m)}, {s(sOUT,4)}, {s(sT0)} offen")
                    vm.issue("ow")
        a(f"s_cmp_eq_u32 {s(sTYPE)}, 0\ns_cbranch_scc0 L_loadB")
        q0 = list(vm.q)
        for typ in "AB":
            if typ == "B": a.label("L_loadB")
            tq2 = [list(x) for x in tq]
            vm.q = list(q0); sfx = "A" if typ == "A" else ""
            nE, nL, pe0 = (self.o[x + sfx] for x in ("nE", "nL", "pe0")); burst = self.o["burst"] if typ == "A" else 0
            assert nE <= 35 and pe0 >= KS; st_["nE"] = nE
            early = list(range(nE)) + list(range(NSLOT, NSLOT + nL)); nxt = 0
            for k in range(KS, N):
                ready(k); self.ts(f"l_land{k}"); a("s_barrier"); self.ts(f"l_bar{k}")
                if k + 2 < N: feed(k)
                touch(k, tq2)
                if k >= pe0:
                    while nxt < -(-(len(early) - burst) * (k + 1 - pe0) // (N - pe0)) + (burst if k >= self.o['bk'] else 0): assert preg(early[nxt]) < 224 or k > STG or not STG; park(early[nxt]); nxt += 1
            a("s_barrier")
            self.ts("l_barN")
            assert nxt == len(early)
            def done(lv):
                L = self.lab("dw"); X = self.lab("dwx")
                a(f"s_mov_b32 {s(sSPIN)}, 0")
                a.label(L)
                if self.o["slp"]: a(f"s_sleep {self.o['slp']}")
                a(f"ds_read_b32 {v(vP)}, {v(vDN)}\ns_add_u32 {s(sSPIN)}, {s(sSPIN)}, 1\ns_cmp_gt_u32 {s(sSPIN)}, {SPIN_MAX*8}\ns_waitcnt lgkmcnt(0)\ns_cbranch_scc1 {X}")
                a(f"v_cmp_gt_u32 vcc, {lv}, {v(vP)}\ns_cbranch_vccnz {L}")
                a.label(X)
            gate = self.o['gate' + typ]
            late = self.o["late" + typ]; todo = [x for x in range(NSLOT if late else 59) if x not in early]; lvl = [(7, 1), (22, 2), (37, 3)]
            def more(n):
                for _ in range(n):
                    if todo:
                        sig = todo.pop(0)
                        bstep(sig) if sig < NSLOT else park(sig)
                        if self.o["thr"] and len(vm.q) > self.o["thr"]: vm.wait(vm.q[-1 - self.o["thr"]])
            thr_ = self.o['thr']; self.o['thr'] = 0; more(0 if gate else self.o['m0n'])
            for sig in range(nE):
                vm.wait(("B", sig)); put(sig)
                if lvl and sig == lvl[0][0]: prog(lvl.pop(0)[1])
                if not gate and self.o['mint'] and sig % self.o['mint'] == self.o['mint'] - 1: more(1)
            self.o['thr'] = thr_
            self.ts("l_put")
            if gate and self.stop != "p1": done(1)
            while todo:
                more(1)
                if lvl and todo and todo[0] >= lvl[0][0] + 7: vm.wait(("B", lvl[0][0])); prog(lvl.pop(0)[1])
            for sg, lv in lvl: vm.wait(("B", sg)); prog(lv)
            self.ts("l_bissue")
            if self.stop == "p1":
                vm.wait_all(); self.ts_flush(); a("s_endpgm"); continue
            for lv, (lo, hi) in enumerate(((38, 45), (45, 55), (55, 59))):
                vm.wait(("B", hi - 1))
                if lv == 2: self.ts("l_bland")
                done(lv + 2)
                for sig in range(lo, hi):
                    if late and sig not in early: bstep(sig)
                    else: put(sig)
                if late: vm.wait_all()
                prog(4 + lv)
                self.ts(f"l_ref{lv}")
            if self.o["gl"]:
                Y0, Y1, vY, vYP = 32, 48, 30, 31
                a(f"s_lshl_b32 {s(sT0)}, {s(sWK)}, 2\ns_add_u32 {s(sT0)}, {s(sT0)}, {XCH_Y}\nv_lshl_add_u32 {v(vY)}, v1, 4, {s(sT0)}")
                a(f"s_lshl_b32 {s(sT0)}, {s(sWK)}, 2\ns_xor_b32 {s(sT0)}, {s(sT0)}, 4096\ns_add_u32 {s(sT0)}, {s(sT0)}, {XCH_Y}\nv_lshl_add_u32 {v(vYP)}, v1, 4, {s(sT0)}")
                a(f"s_lshr_b32 {s(sT0)}, {s(sWK)}, 6\ns_and_b32 {s(sT0)}, {s(sT0)}, 32\ns_add_u32 {s(sT0)}, {s(sT0)}, {SC_FLAG+8}\nv_and_b32 {v(vDN)}, 1, v1\nv_lshl_add_u32 {v(vDN)}, {v(vDN)}, 4, {s(sT0)}")
                done(1)
                for q in range(4): a(f"ds_read_b128 {v(Y0+4*q,4)}, {v(vY)} offset:{1024*q}\nds_read_b128 {v(Y1+4*q,4)}, {v(vYP)} offset:{16384+1024*q}")
                for half in range(2):
                    o = 8 * half
                    a(f"s_waitcnt lgkmcnt({4-4*half})")
                    for j in range(8): a(f"v_add_f32 {v(Y0+o+j)}, {v(Y0+o+j)}, {v(Y1+o+j)}")
                    for j in range(8): a(f"v_mul_f32 {v(Y1+o+j)}, {fl(-1.4426950408889634)}, {v(Y0+o+j)}")
                    for j in range(8): a(f"v_exp_f32 {v(Y1+o+j)}, {v(Y1+o+j)}")
                    for j in range(8): a(f"v_add_f32 {v(Y1+o+j)}, 1.0, {v(Y1+o+j)}")
                    for j in range(8): a(f"v_rcp_f32 {v(Y1+o+j)}, {v(Y1+o+j)}")
                    for j in range(8): a(f"v_mul_f32 {v(Y0+o+j)}, {v(Y0+o+j)}, {v(Y1+o+j)}")
                for q in range(4): a(f"ds_write_b128 {v(vY)}, {v(Y0+4*q,4)} offset:{32768+1024*q}")
                prog(7)
            a("s_waitcnt lgkmcnt(0)")
            self.ts("l_end")
            self.ts_flush()
            a("s_endpgm")

    ACC = 160
    SEL = 64
    CSM = dict(A=(68, 72, 68), B=(68, 72, 90))
    vXA, vXB, vWE, vWO = 76, 80, 84, 87
    GR = 90
    vCW, vCR = 94, 95
    vT0, vT1, vT2 = 97, 98, 99
    SG = 100
    IDN = 108
    B1 = 108
    XS = 112
    GC = 120
    vSTA, vSTG, vNZ, vDUM = 124, 125, 126, 127
    vFL = 7
    TMP = 128
    FX = 152
    KVA = 16
    def acc(self, p, rb): return self.ACC + 32 * p + 16 * rb

    def it(self, text):
        cost = 0
        for ln in text.split("\n"):
            op = ln.split()[0]
            if op.endswith(":"): continue
            cost += 32 if op.startswith("v_mfma") else 8 if op in ("v_exp_f32", "v_rcp_f32", "v_rsq_f32") else 5 if (op.startswith(("ds_", "buffer_", "v_fma_", "v_cvt_pk", "v_cndmask", "v_lshl_add")) or "0x" in ln) else 4
        return (cost, lambda: self.a(text))
    def its(self, lst): return [self.it(x) for x in lst]
    def vmi(self, text, tag): return (6, lambda: (self.a(text), self.vm.issue(tag)))
    def vmw(self, tag): return (4, lambda: self.vm.wait(tag))
    def tsi(self, name): return (0, lambda: self.ts(name))
    def flush(self, q):
        while q:
            x = q.pop(0)
            if x == "NEXT": self.a("s_waitcnt lgkmcnt(0)")
            elif x == "BAR": raise RuntimeError("barrier marker left over")
            elif x[0] == "GI": continue
            else: x[1]()

    def compute_setup(self):
        a = self.a; G = self; T = G.TMP
        if self.o["prio"] == 1: a("s_setprio 1")
        self.vm = vm = Cnt(a, "vmcnt", 63)
        a(f"s_bfe_u32 {s(sRH)}, {s(sWAVE)}, 0x10001\ns_and_b32 {s(sCH)}, {s(sWAVE)}, 1")
        a("v_and_b32 v2, 31, v1\nv_lshrrev_b32 v3, 5, v1\nv_lshrrev_b32 v4, 4, v1\nv_and_b32 v5, 15, v1")
        a(f"v_mov_b32 {v(G.vNZ)}, 0")
        a(f"s_lshl_b32 {s(sT0)}, {s(sHF)}, 3\ns_add_u32 {s(sT0)}, {s(sT0)}, {s(sCT)}\ns_lshl_b32 {s(sT0)}, {s(sT0)}, 3")
        a(f"s_lshl_b32 {s(sT1)}, {s(sI)}, 7\ns_add_u32 {s(sT0)}, {s(sT0)}, {s(sT1)}\ns_lshl_b32 {s(sT2)}, {s(sWAVE)}, 1\ns_add_u32 {s(sT0)}, {s(sT0)}, {s(sT2)}")
        a(f"v_add_u32 v6, {s(sT0)}, v3\nv_lshlrev_b32 v11, 4, v2\nv_lshl_add_u32 v11, v6, 10, v11")
        a(f"s_lshl_b32 {s(sT2)}, {s(sI)}, 3\ns_add_u32 {s(sT2)}, {s(sT2)}, {s(sG)}\ns_lshl_b32 {s(sT3)}, {s(sSTR)}, 2\ns_mul_i32 {s(sT2)}, {s(sT2)}, {s(sT3)}\ns_sub_u32 {s(sT3)}, {s(sT3)}, 4")
        a(f"s_mul_i32 {s(sT4)}, {s(sWAVE)}, 24\nv_min_u32 v12, 23, v1\nv_add_lshl_u32 v12, v12, {s(sT4)}, 7\nv_min_u32 v12, {s(sT3)}, v12\nv_add_u32 {v(G.vT0)}, {s(sT2)}, v12")
        a(f"s_lshl_b32 {s(sW+2)}, {s(sSTR)}, 9\ns_mov_b32 {s(sW+3)}, 0x00020000\ns_cmp_eq_u32 {s(sTYPE)}, 0\ns_waitcnt lgkmcnt(0)")
        self.ts("c_karg")
        a(f"s_cselect_b32 {s(sW)}, s6, s12\ns_cselect_b32 {s(sW+1)}, s7, s13")
        self.srd(sX, 4, 2097152)
        if self.o["latp"] >= 0:
            self.srd(sOUT, 4 + 2*self.o["latp"], 524288)
            a(f"s_lshl_b32 {s(sT4)}, s2, 2\ns_add_u32 {s(sT4)}, {s(sT4)}, {s(sWAVE)}\ns_lshl_b32 {s(sT4)}, {s(sT4)}, 9\nv_mov_b32 v12, 0")
            a("s_waitcnt vmcnt(0)"); self.ts("c_l0"); a("s_waitcnt lgkmcnt(0)")
            a(f"buffer_load_dword v13, v12, {s(sOUT,4)}, {s(sT4)} offen\ns_waitcnt vmcnt(0)")
            self.ts("c_l1")
        def xs():
            a(f"buffer_load_dwordx4 {v(T,4)}, v11, {s(sX,4)}, 0 offen\nbuffer_load_dwordx4 {v(T+4,4)}, v11, {s(sX,4)}, 0 offen offset:512"); vm.issue("xs"); vm.issue("xs")
        if self.o["xe"]: xs()
        if self.o["wt"] == 3: a(f"buffer_load_dword {v(G.vDUM)}, {v(G.vT0)}, {s(sW,4)}, 0 offen"); vm.issue("t")
        if self.o["ld"]: a("s_barrier")
        L = self.lab("non")
        a(f"s_lshr_b32 {s(sT3)}, s2, {3 if self.o['n8'] else 0}\ns_or_b32 {s(sT3)}, {s(sT3)}, {s(sWAVE)}\ns_cmp_lg_u32 {s(sT3)}, 0\ns_cbranch_scc1 {L}")
        a(f"s_memrealtime {s(sM,2)}\ns_waitcnt lgkmcnt(0)")
        self.srd(sDBG, 22, 256)
        a(f"s_or_b32 {s(sT3)}, {s(sM)}, 1\nv_mov_b32 v8, {s(sT3)}\ns_mov_b64 exec, 1")
        if self.o["n8"]: a(f"v_mov_b32 v9, 0\nbuffer_atomic_cmpswap v[8:9], {v(G.vNZ)}, {s(sDBG,4)}, 0 offen sc1\ns_mov_b64 exec, -1")
        else: a(f"buffer_store_dword v8, {v(G.vNZ)}, {s(sDBG,4)}, 0 offen sc1\ns_mov_b64 exec, -1")
        a.label(L)
        a("s_branch L_compute")
        self.loader()
        a.label("L_compute")
        a(f"v_lshlrev_b32 v8, 4, v3\nv_lshl_add_u32 v8, v2, 5, v8\ns_lshl_b32 {s(sT0)}, {s(sT0)}, {5+self.o['s128']}\nv_add_u32 v8, {s(sT0)}, v8\nv_mov_b32 v9, {hx(OOB)}\nv_cmp_gt_u32 vcc, {2 << self.o['s128']}, v2\nv_add_u32 v8, {WS_ST}, v8\nv_cndmask_b32 {v(G.vSTA)}, v9, v8, vcc")
        a(f"v_cmp_gt_u32 vcc, {self.o['fl']}, v1\nv_lshlrev_b32 v8, 2, v1\nv_cndmask_b32 {v(G.vFL)}, v9, v8, vcc")
        a(f"s_lshl_b32 {s(sT2)}, {s(sRH)}, 6\ns_add_u32 {s(sT1)}, {s(sT1)}, {s(sT2)}\nv_add_u32 v8, {s(sT1)}, v2\nv_and_b32 v10, 1, v8\nv_lshlrev_b32 v8, {5+self.o['s128']}, v8\nv_mul_u32_u24 v10, {48 if self.o['s128'] else 16}, v10\nv_sub_u32 v8, v8, v10\nv_add_u32 {v(G.vSTG)}, {WS_ST}, v8")
        a("v_bfe_u32 v8, v1, 1, 3")
        a(f"s_lshl_b32 {s(sT2)}, {s(sRH)}, 13\nv_lshl_add_u32 v9, v2, 7, {s(sT2)}")
        for tau in range(4):
            a(f"s_xor_b32 {s(sT3)}, {s(sRH)}, {tau}\ns_lshl_b32 {s(sT3)}, {s(sT3)}, 1")
            a(f"v_add_u32 v10, {s(sT3)}, v3\nv_xor_b32 v10, v10, v8\nv_lshl_add_u32 {v(G.vXA+tau)}, v10, 4, v9\nv_add_u32 {v(G.vXB+tau)}, 65536, {v(G.vXA+tau)}")
        a("v_lshrrev_b32 v8, 2, v5\nv_lshl_add_u32 v8, v3, 3, v8\nv_lshlrev_b32 v8, 7, v8")
        a("v_and_b32 v9, 1, v4\nv_lshlrev_b32 v9, 1, v9\nv_bfe_u32 v10, v5, 1, 1\nv_add_u32 v9, v9, v10")
        a("v_lshrrev_b32 v10, 3, v5\nv_lshlrev_b32 v10, 2, v10\nv_xor_b32 v9, v9, v10")
        a("v_and_b32 v10, 1, v5\nv_lshlrev_b32 v10, 3, v10\nv_add_u32 v8, v8, v10")
        a(f"s_xor_b32 {s(sT3)}, {s(sTYPE)}, 1\ns_and_b32 {s(sT3)}, {s(sT3)}, {s(sRH)}\ns_lshl_b32 {s(sT3)}, {s(sT3)}, 1")
        a(f"s_lshl_b32 {s(sT2)}, {s(sCH)}, 2\ns_or_b32 {s(sT2)}, {s(sT2)}, {s(sT3)}\nv_xor_b32 v10, {s(sT2)}, v9\nv_lshl_add_u32 v10, v10, 4, v8")
        a(f"s_lshl_b32 {s(sT2)}, {s(sRH)}, 11")
        for sl in range(3):
            a(f"s_add_u32 {s(sT4)}, {s(sT2)}, {WR+8192*sl}\ns_sub_u32 {s(sT5)}, {WR+8192*sl}, {s(sT2)}")
            a(f"v_add_u32 {v(G.vWE+sl)}, {s(sT4)}, v10\nv_add_u32 {v(G.vWO+sl)}, {s(sT5)}, v10")
        a(f"v_lshrrev_b32 v8, 2, v5\nv_xor_b32 v8, v8, v4\nv_and_b32 v8, 1, v8\nv_cmp_eq_u32 vcc, 0, v8\nv_mov_b32 v9, 0x3f803f80")
        for q in range(4): a(f"v_cndmask_b32 {v(G.SEL+q)}, 0, v9, vcc")
        a(f"s_mul_i32 {s(sT0)}, {s(sWAVE)}, 384\ns_add_u32 {s(sT0)}, {s(sT0)}, {SC_CS}\nv_lshl_add_u32 {v(G.vCW)}, v2, 2, {s(sT0)}")
        a(f"s_xor_b32 {s(sT0)}, {s(sWAVE)}, 2\ns_mul_i32 {s(sT0)}, {s(sT0)}, 384\ns_add_u32 {s(sT0)}, {s(sT0)}, {SC_CS}\ns_xor_b32 {s(sT1)}, {s(sTYPE)}, 1\ns_lshl_b32 {s(sT1)}, {s(sT1)}, 4")
        a(f"v_xor_b32 v8, {s(sT1)}, v2\nv_lshl_add_u32 {v(G.vCR)}, v8, 2, {s(sT0)}")
        a(f"v_lshlrev_b32 v8, 2, v2\nv_add_u32 v8, {SC_FLAG}, v8\nds_write_b32 v8, {v(G.vNZ)}")
        if self.o["wt"] == 2: a(f"buffer_load_dword {v(G.vDUM)}, {v(G.vT0)}, {s(sW,4)}, 0 offen"); vm.issue("t")
        X = self.lab("vwx")
        a(f"v_mov_b32 {v(G.vT1)}, {hx(OOB)}\nv_mov_b32 {v(G.vT2)}, {hx(OOB)}\ns_cmp_lt_u32 {s(sWAVE)}, 2\ns_cbranch_scc1 {X}")
        a(f"s_cmp_eq_u32 {s(sWAVE)}, 2")
        a(f"s_cselect_b32 {s(sW)}, s16, s8\ns_cselect_b32 {s(sW+1)}, s17, s9\ns_movk_i32 {s(sT3)}, 2048\ns_cselect_b32 {s(sT3)}, 5504, {s(sT3)}")
        a(f"s_lshl_b32 {s(sW+2)}, {s(sT3)}, 8\ns_mul_i32 {s(sT2)}, s2, {s(sT3)}\ns_sub_u32 {s(sT3)}, {s(sT3)}, 4")
        a(f"v_lshlrev_b32 v12, 7, v1\nv_min_u32 v12, {s(sT3)}, v12\nv_add_u32 {v(G.vT1)}, {s(sT2)}, v12")
        a(f"s_cmp_eq_u32 {s(sWAVE)}, 2\ns_cselect_b32 {s(sT3)}, 43, 16\ns_lshr_b32 {s(sT2)}, s2, 3\ns_mul_i32 {s(sT2)}, {s(sT2)}, {s(sT3)}")
        a(f"v_add_u32 v12, {s(sT2)}, v1\nv_lshlrev_b32 v12, 10, v12\nv_add_u32 v12, 384, v12\nv_cmp_gt_u32 vcc, {s(sT3)}, v1\nv_cndmask_b32 {v(G.vT2)}, {v(G.vT2)}, v12, vcc")
        a.label(X)
        self.srd(sB1, 14, 2752); self.srd(sDBG, 22, 256); self.srd(sWS, 24, WS_SIZE)
        a(f"s_lshl_b32 {s(sT2)}, {s(sCH)}, 6\ns_lshl_b32 {s(sT3)}, {s(sTYPE)}, 31\ns_xor_b32 {s(sT3)}, {s(sT3)}, {hx(OOB)}\ns_or_b32 {s(sT2)}, {s(sT2)}, {s(sT3)}")
        a(f"v_lshl_add_u32 v8, v2, 1, {s(sT2)}")
        if not self.o["xe"]: xs()
        a("v_mov_b32 v96, v8")
        if self.o["t2"]:
            L = self.lab("t2")
            a(f"s_lshl_b32 {s(sT2)}, {s(sHF)}, 2\ns_or_b32 {s(sT2)}, {s(sT2)}, {s(sWAVE)}\ns_cmp_lg_u32 {s(sT2)}, 3\ns_cbranch_scc1 {L}")
            self.srd(sOUT, 6, 1572864)
            a(f"s_lshr_b32 {s(sT2)}, s2, 3\ns_lshl_b32 {s(sT2)}, {s(sT2)}, 4")
            a(f"v_add_u32 v12, {s(sT2)}, v5\nv_mul_u32_u24 v12, 3072, v12\nv_min_u32 v13, 2, v4\nv_lshl_add_u32 v12, v13, 10, v12\nv_add_u32 v12, 384, v12")
            a(f"buffer_load_dword {v(G.vDUM)}, v12, {s(sOUT,4)}, 0 offen")
            a.label(L)
        if self.o["w2s"]: a(f"buffer_load_dword {v(G.vDUM)}, {v(G.vT1)}, {s(sW,4)}, 0 offen"); vm.issue("t")
        self.vm0 = list(vm.q)
        self.ts("c_setup")
        a(f"s_cmp_eq_u32 {s(sTYPE)}, 0\ns_cbranch_scc0 L_typeB")

    def q_stats(self, typ, extra=()):
        G = self; T = G.TMP; U = T + 8; q = []
        g = dict(math=1, chk=self.o['chk'], w2=self.o["w2t"], ga=self.o['ga'], gc=self.o['gc'])
        nl = [self.vmi(f"buffer_load_dword {v(G.GR+3)}, {v(G.vNZ)}, {s(sDBG,4)}, 0 offen sc1", "nonce")]
        if not self.o["pre"]: q += nl
        q += [("GI", g["math"]), self.vmw("xs")]
        if self.o["pre"] and not self.o["nlate"]: q += nl
        w = []
        for k in range(8): w += [f"v_lshlrev_b32 {v(U+2*k)}, 16, {v(T+k)}", f"v_and_b32 {v(U+2*k+1)}, 0xffff0000, {v(T+k)}"]
        w += [f"v_add_f32 {v(T+k)}, {v(U+2*k)}, {v(U+2*k+1)}" for k in range(8)]
        for n in (4, 2, 1): w += [f"v_add_f32 {v(T+k)}, {v(T+k)}, {v(T+k+n)}" for k in range(n)]
        def red32(r, t):
            o = [f"v_add_f32_dpp {v(r)}, {v(r)}, {v(r)} {m} row_mask:0xf bank_mask:0xf" for m in ("quad_perm:[1,0,3,2]", "quad_perm:[2,3,0,1]", "row_half_mirror", "row_mirror")]
            return o + [f"v_mov_b32 {v(t)}, {v(r)}", f"v_permlane16_swap_b32 {v(r)}, {v(t)}", f"v_add_f32 {v(r)}, {v(r)}, {v(t)}"]
        w += red32(T, T + 1) + [f"v_mul_f32 {v(G.GR)}, {fl(1/512)}, {v(T)}"]
        w += [f"v_sub_f32 {v(U+k)}, {v(U+k)}, {v(G.GR)}" for k in range(16)]
        w += [f"v_mul_f32 {v(T+k)}, {v(U+k)}, {v(U+k)}" for k in range(4)]
        w += [f"v_fmac_f32 {v(T+k%4)}, {v(U+k)}, {v(U+k)}" for k in range(4, 16)]
        w += [f"v_add_f32 {v(T)}, {v(T)}, {v(T+1)}", f"v_add_f32 {v(T+2)}, {v(T+2)}, {v(T+3)}", f"v_add_f32 {v(T)}, {v(T)}, {v(T+2)}"]
        w += red32(T, T + 1) + [f"v_mov_b32 {v(T+1)}, {fl(1e-5)}", f"v_fmac_f32 {v(T+1)}, {fl(1/512)}, {v(T)}",
                                f"v_rsq_f32 {v(G.GR+1)}, {v(T+1)}", f"v_mul_f32 {v(G.GR+2)}, {v(T+1)}, {v(G.GR+1)}"]
        q += self.its(w)
        if self.o["pre"]: self.flush(q); q = []
        if self.o["nlate"] == 1: self.flush(nl)
        if self.o["nlate"] == 2: q += nl
        L = self.lab("nonce"); R = self.lab("nonceok"); X = self.lab("noncex")
        q += [("GI", g["chk"]), self.vmw("nonce"),
              self.it(f"v_readfirstlane_b32 {s(sNONCE)}, {v(G.GR+3)}\ns_cmp_eq_u32 {s(sNONCE)}, 0\ns_cbranch_scc1 {L}\n{R}:"),
              self.vmi(f"buffer_store_dwordx4 {v(G.GR,4)}, {v(G.vSTA)}, {s(sWS,4)}, 0 offen sc1", "st"),
              self.it(f"v_mov_b32 v8, {SC_NONCE}\nds_write_b32 v8, {v(G.GR+3)}"), self.tsi("c_stpub")]
        self.tail.append(f"""{L}:
s_mov_b32 {s(sSPIN)}, 0
{X}:
buffer_load_dword {v(G.GR+3)}, {v(G.vNZ)}, {s(sDBG,4)}, 0 offen sc1
s_add_u32 {s(sSPIN)}, {s(sSPIN)}, 1
s_waitcnt vmcnt(0)
v_readfirstlane_b32 {s(sNONCE)}, {v(G.GR+3)}
s_cmp_gt_u32 {s(sSPIN)}, {SPIN_MAX}
s_cbranch_scc1 {R}
s_cmp_eq_u32 {s(sNONCE)}, 0
s_cbranch_scc1 {X}
s_branch {R}""")
        if typ == "B": q += self.its([f"v_lshlrev_b32 {v(G.B1+p)}, 16, {v(G.B1+p)}" for p in range(3)])
        if self.o["w7"] and typ == "B":
            q = [self.it(f"s_cmp_eq_u32 {s(sWAVE)}, 3\ns_cselect_b32 s56, s8, s16\ns_cselect_b32 s57, s9, s17\ns_movk_i32 {s(sT1)}, 688\ns_cselect_b32 {s(sT1)}, 256, {s(sT1)}\ns_cselect_b32 {s(sT2)}, 0, {s(sWAVE)}"),
                 self.it(f"s_lshl_b32 s58, {s(sT1)}, 11\ns_lshl_b32 {s(sT2)}, {s(sT2)}, 8\ns_mul_i32 {s(sT3)}, {s(sI)}, {s(sT1)}\ns_sub_u32 {s(sT1)}, {s(sT1)}, 1"),
                 self.it(f"s_cmp_eq_u32 {s(sG)}, 7\ns_cselect_b32 {s(sT4)}, 0, {hx(OOB)}\nv_add_u32 v96, {s(sT2)}, v1")] + q
            k0 = next(i for i, x in enumerate(q) if not isinstance(x, str) and x[0] == "GI")
            t = []
            for k in range(4):
                t += [("GI", self.o["w7"] + self.o["w7s"] * k - 1)] if k else []
                t += [self.it(f"v_min_u32 v9, {s(sT1)}, v96"), self.it(f"v_add_lshl_u32 v9, v9, {s(sT3)}, 7"), self.it(f"v_or_b32 v9, {s(sT4)}, v9"),
                      self.vmi(f"buffer_load_dword {v(G.vDUM)}, v9, s[56:59], 0 offen", "t"), self.it("v_add_u32 v96, 64, v96")]
            self.w7q = t
            q += t
        q += list(extra)
        if self.o["t3"]:
            q += [("GI", self.o["t3"] - 1), self.it(f"s_lshl_b32 {s(sT0)}, {s(sI)}, 3\ns_add_u32 {s(sT0)}, {s(sT0)}, {s(sCT)}\ns_lshl_b32 {s(sT0)}, {s(sT0)}, 14\nv_lshl_add_u32 v8, v5, 10, {s(sT0)}"),
                  self.vmi(f"buffer_load_dword {v(G.vDUM)}, v8, {s(sX,4)}, 0 offen offset:384", "t")]
        if self.o["w2t"] and not self.o["w7"] and not self.o["w2s"] and not self.o["sw"] & 1: q += [("GI", g["w2"]), self.vmi(f"buffer_load_dword {v(G.vDUM)}, {v(G.vT1)}, {s(sW,4)}, 0 offen", "t")]
        if self.o["t1"] and not self.o["sw"] & 2: q += [("GI", self.o["t1"]), self.vmi(f"buffer_load_dword {v(G.vDUM)}, {v(G.vT2)}, {s(sW,4)}, 0 offen", "t")]
        q += [("GI", g["ga"])] + [self.vmi(f"buffer_load_dwordx4 {v(G.SG+4*rb,4)}, {v(G.vSTG)}, {s(sWS,4)}, 0 offen offset:{(1024 << self.o['s128'])*rb} sc1", "sg") for rb in range(2)]
        L = self.lab("st"); R = self.lab("stok"); X = self.lab("stx")
        chk = f"v_cmp_ne_u32 vcc, {s(sNONCE)}, {v(G.SG+3)}\nv_cmp_ne_u32 {s(sM,2)}, {s(sNONCE)}, {v(G.SG+7)}\ns_or_b64 vcc, vcc, {s(sM,2)}"
        q += [("GI", g["gc"]), self.vmw("sg"), self.it(f"{chk}\ns_cbranch_vccnz {L}\n{R}:"), self.tsi("c_stok")]
        self.tail.append(f"""{L}:
s_mov_b32 {s(sSPIN)}, 0
{X}:
buffer_load_dwordx4 {v(G.SG,4)}, {v(G.vSTG)}, {s(sWS,4)}, 0 offen sc1
buffer_load_dwordx4 {v(G.SG+4,4)}, {v(G.vSTG)}, {s(sWS,4)}, 0 offen offset:{1024 << self.o['s128']} sc1
s_add_u32 {s(sSPIN)}, {s(sSPIN)}, 1
s_cmp_gt_u32 {s(sSPIN)}, {SPIN_MAX}
s_waitcnt vmcnt(0)
s_cbranch_scc1 {R}
{chk}
s_cbranch_vccnz {X}
s_branch {R}""")
        for rb in range(2):
            mu, r, sd = G.SG + 4*rb, G.SG + 4*rb + 1, G.SG + 4*rb + 2; X = G.XS + 4*rb
            q += self.its([f"v_cvt_pk_bf16_f32 {v(T)}, -{v(mu)}, -{v(mu)}", f"v_cvt_pk_bf16_f32 {v(T+1)}, {v(sd)}, {v(sd)}",
                           f"v_and_b32 {v(T+2)}, 0xffff0000, {v(T)}", f"v_and_b32 {v(T+3)}, 0xffff0000, {v(T+1)}",
                           f"v_sub_f32 {v(T+2)}, -{v(mu)}, {v(T+2)}", f"v_sub_f32 {v(T+4)}, {v(sd)}, {v(T+3)}",
                           f"v_cvt_pk_bf16_f32 {v(T+2)}, {v(T+2)}, {v(T+3)}", f"v_cvt_pk_bf16_f32 {v(T+4)}, {v(T+4)}, 0",
                           f"v_cmp_gt_u32 vcc, 32, v1\nv_mov_b32 {v(X+3)}, 0\nv_cndmask_b32 {v(X)}, 0, {v(T)}, vcc\nv_cndmask_b32 {v(X+1)}, 0, {v(T+2)}, vcc\nv_cndmask_b32 {v(X+2)}, 0, {v(T+4)}, vcc"])
        k0 = -2.0 * 1.4426950408889634 * 0.7978845608028654
        for rb in range(2):
            r, sd = G.SG + 4*rb + 1, G.SG + 4*rb + 2
            if typ == "B":
                q += self.its([f"v_mul_f32 {v(G.GC+rb)}, {fl(k0)}, {v(r)}", f"v_mul_f32 {v(T)}, {v(r)}, {v(r)}",
                               f"v_mul_f32 {v(T)}, {fl(0.044715)}, {v(T)}", f"v_mul_f32 {v(G.GC+2+rb)}, {v(T)}, {v(G.GC+rb)}"])
            else:
                q += self.its([f"v_mul_f32 {v(G.GC+rb)}, {fl(1.4426950408889634)}, {v(r)}", f"v_mul_f32 {v(G.GC+2+rb)}, {fl(1e-6)}, {v(sd)}"])
        if typ == "A":
            q += self.its([f"s_lshl_b32 {s(sT0)}, {s(sWAVE)}, 8\ns_add_u32 {s(sT0)}, {s(sT0)}, {SC_R}\nv_lshl_add_u32 v8, v2, 2, {s(sT0)}\nv_lshl_add_u32 v6, v3, 4, {s(sT0)}",
                           f"ds_write_b32 v8, {v(G.GC)}", f"ds_write_b32 v8, {v(G.GC+1)} offset:128"])
        return q

    def reads0(self, gi):
        G = self
        k, tau = divmod(gi, 4); sl = (gi // 2) % 3; b = gi & 1
        X = lambda rb: [(f"ds_read_b128 {v(16+8*b+4*rb,4)}, {v((G.vXB if k >= 4 else G.vXA) + tau)} offset:{(k % 4)*16384 + 4096*rb}", (gi, "X", rb))]
        W = lambda p: [(f"ds_read_b64_tr_b16 {v(48+8*b+4*p+2*j,2)}, {v((G.vWO if tau & 1 else G.vWE) + sl)} offset:{p*4096+(tau&1)*2048+j*512}", (gi, "W", p)) for j in range(2)]
        return [W(0) + X(0), W(1) + X(1), [], []]
    def reads1(self, M):
        G = self
        if M >= 16: return [[], [], [], []]
        k = M // 2; sl = (16 + k) % 3; b = M & 1
        def X(ks, rb):
            tau = 2*(M & 1) + ks
            return [(f"ds_read_b128 {v(16+16*b+8*ks+4*rb,4)}, {v((G.vXB if k >= 4 else G.vXA) + tau)} offset:{(k % 4)*16384 + 4096*rb}", (32+M, "X", ks, rb))]
        def W(ks):
            tau = 2*(M & 1) + ks
            return [(f"ds_read_b64_tr_b16 {v(48+8*b+4*ks+2*j,2)}, {v((G.vWO if tau & 1 else G.vWE) + sl)} offset:{tau*2048+j*512}", (32+M, "W", ks)) for j in range(2)]
        return [W(0) + X(0, 0), W(1) + X(0, 1), X(1, 0), X(1, 1)]

    def mpass(self, typ, ps, q, budget):
        a = self.a; G = self; CS = G.CSM[typ]
        def issue(g):
            for r, t in g: a(r); self.lg.issue(t)
        if ps == 0:
            self.lg = Cnt(a, "lgkmcnt", 15)
            self.ts("c_pre0")
            a("s_waitcnt lgkmcnt(0)\ns_barrier")
            self.ts("c_bar0")
            for g in self.reads0(0): issue(g)
        elif typ == "A":
            for g in self.reads1(0): issue(g)
        lg = self.lg
        st_ = dict(hold=None, credit=0, nbar=0)
        def emit(x):
            n0 = len(a.items); x[1]()
            for ln in a.items[n0:]:
                if ln.startswith("ds_"): lg.issue("F")
        def fill(M, nr):
            st_["credit"] = min(st_["credit"] + budget - 5 * nr, budget + 6)
            while q and st_["hold"] is None:
                x = q[0]
                if x in ("NEXT", "BAR"): st_["hold"] = x; q.pop(0); break
                if x[0] == "GI":
                    if M >= x[1]: q.pop(0); continue
                    break
                if x[0] == "U":
                    q.pop(0); x[1](); st_["credit"] = 0; break
                if x[0] == "GB":
                    if st_["nbar"] >= x[1]: q.pop(0); continue
                    break
                if st_["credit"] < min(x[0], 12): break
                q.pop(0); emit(x); st_["credit"] -= x[0]
        def barrier(n):
            lg.wait("F"); a("s_barrier"); self.ts(f"c_bar{n}"); st_["nbar"] += 1
            if st_["hold"] == "BAR": st_["hold"] = None
        NS = 32 if ps == 0 else 16
        pn = (0, 1) if ps == 0 else (2,)
        for M in range(NS):
            b = M & 1; mf = []; last = M == NS - 1
            for i in range(2):
                for rb in range(2):
                    p = i if ps == 0 else 2
                    x = v(16+8*b+4*rb, 4) if ps == 0 else v(16+16*b+8*i+4*rb, 4)
                    w = v(48+8*b+4*i, 4); c = v(G.acc(p, rb), 16)
                    A, B = (x, w) if (typ == "A" and p < 2) else (w, x)
                    mf.append(f"v_mfma_f32_32x32x16_bf16 {c}, {A}, {B}, {c if M or (ps and i) else 0}")
            if self.o["snk"] & (1 << ps) and not (last and ps == 0): mf[2], mf[3] = mf[3], mf[2]
            if ps == 0:
                cs = [f"v_mfma_f32_16x16x32_bf16 {v(CS[p],4)}, {v(G.SEL,4)}, {v(48+8*b+4*p,4)}, {v(CS[p],4) if M else 0}" for p in pn] if b == 0 else []
                rd = self.reads0(M + 1) if not last else (self.reads1(0) if typ == "B" else [[], [], [], []])
                need = [(M, "X", 1), None, None, None]; nb = M // 2 + 1
            else:
                cs = [f"v_mfma_f32_16x16x32_bf16 {v(CS[2],4)}, {v(G.SEL,4)}, {v(48+8*b,4)}, {v(CS[2],4) if M else 0}"]
                rd = self.reads1(M + 1)
                need = [(32+M, "X", 0, 1), None, (32+M, "X", 1, 1), None]; nb = 17 + M // 2
            if self.o["e2"] and 0 < M < NS - 2: cs = []
            csw = [(f"ds_write_b32 {v(G.vCW)}, {v(CS[p])} offset:{128*p}", "F") for p in pn]
            csr = [(f"ds_read_b32 {v(CS[p]+1)}, {v(G.vCR)} offset:{128*p}", "F") for p in pn]
            if st_["hold"] == "NEXT" or M == 0: lg.wait("F"); st_["hold"] = None if st_["hold"] == "NEXT" else st_["hold"]
            if last and ps == 1:
                lg.wait(need[0]); a(cs[0]); a(mf[0])
                for j in range(4):
                    if j: a(f"v_xor_b32 v8, {16*j}, {v(G.vXR)}")
                    issue([(f"ds_read_b64 {v(G.XR+2*j,2)}, {v(8 if j else G.vXR)}", "F")])
                fill(M, 4); a(mf[1])
                issue(csw); fill(M, 1); lg.wait(need[2]); a(mf[2])
                barrier(nb); issue(csr); a(mf[3])
                break
            for k in range(4):
                lg.wait(need[k]); a(mf[k])
                if k == 0 and b:
                    barrier(nb)
                    if last: issue(csr)
                issue(rd[k])
                fill(M, len(rd[k]))
                if k == (0 if (ps == 0 and M == 30) else 2):
                    for c in cs: a(c)
                if k == 2 and ps == 0 and M == 30: issue(csw)
        assert st_["hold"] != "BAR"
        assert not any(x[0] in ("GI", "GB") for x in q if not isinstance(x, str)), "GI marker left"
        if self.verbose: print(typ, "pass", ps, "leftover cost", sum(50 if x[0] == "U" else x[0] for x in q if not isinstance(x, str)))
        self.ts(f"c_pass{ps}")

    def q_fixup(self, typ, p):
        G = self; c = G.CSM[typ][p]; F = 136 if typ == "B" else (152, 148, 128)[p]; q = []
        q += self.its([f"v_add_f32 {v(c)}, {v(c)}, {v(c+1)}", f"v_cvt_pk_bf16_f32 {v(c+1)}, {v(c)}, {v(c)}",
                      f"v_and_b32 {v(c+1)}, 0xffff0000, {v(c+1)}", f"v_sub_f32 {v(c+2)}, {v(c)}, {v(c+1)}", f"v_mov_b32 {v(F+3)}, 0"])
        if typ == "B":
            q += self.its([f"v_cvt_pk_bf16_f32 {v(F+1)}, {v(c+1)}, {v(G.B1+p)}", f"v_cvt_pk_bf16_f32 {v(F+2)}, {v(G.B1+p)}, 0"])
        else:
            q += self.its([f"v_cvt_pk_bf16_f32 {v(F+1)}, {v(c+1)}, 0", f"v_mov_b32 {v(F+2)}, 0"])
        q += self.its([f"v_cvt_pk_bf16_f32 {v(F)}, {v(c+1)}, {v(c+2)}"])
        for rb in range(2):
            x = v(G.XS + 4*rb, 4); w = v(F, 4); cc = v(G.acc(p, rb), 16)
            A, B = (x, w) if (typ == "A" and p < 2) else (w, x)
            q += self.its([f"v_mfma_f32_32x32x16_bf16 {cc}, {A}, {B}, {cc}"])
        return q

    def ho_base(self, dst, sig0):
        t = (f"s_lshl_b32 {s(dst)}, {s(sI)}, 1\ns_add_u32 {s(dst)}, {s(dst)}, {s(sRH)}\ns_lshl_b32 {s(dst)}, {s(dst)}, {self.SS+2}\n"
             f"s_lshl_b32 {s(sT0)}, {s(sG)}, 1\ns_add_u32 {s(sT0)}, {s(sT0)}, {s(sCH)}\n")
        if not self.o["lay"]:
            return t + f"s_add_u32 {s(sT5)}, {s(sT0)}, {sig0}\ns_lshl_b32 {s(sT5)}, {s(sT5)}, 10\ns_add_u32 {s(dst)}, {s(dst)}, {s(sT5)}"
        par = int(sig0 >= 29) if self.o['lay'] == 1 else 0
        return t + (f"s_add_u32 {s(sT5)}, {s(sT0)}, {sig0 - 29*par}\ns_and_b32 {s(sT4)}, {s(sT5)}, 7\ns_lshr_b32 {s(sT5)}, {s(sT5)}, 3\ns_lshl_b32 {s(sT5)}, {s(sT5)}, 4\n"
                    f"s_add_u32 {s(sT5)}, {s(sT5)}, {s(sT4)}\ns_add_u32 {s(sT5)}, {s(sT5)}, {8*par}\ns_lshl_b32 {s(sT5)}, {s(sT5)}, 10\ns_add_u32 {s(dst)}, {s(dst)}, {s(sT5)}")

    def q_flag(self, soff):
        return [self.it(f"v_mov_b32 v11, {s(sNONCE)}"),
                self.vmi(f"buffer_store_dword v11, {v(self.vFL)}, {s(sWS,4)}, {s(soff)} offen {'sc0 sc1' if self.o['fsc'] else 'sc1'}", "f")]

    def q_gelu_setup(self):
        sHB, sFL = 26, 27; vO = 12
        q = [self.it("\n".join(self.ho_base(4 + p, SIG0[p]) for p in range(3)) + f"\ns_lshl_b32 {s(sT1)}, {s(sI)}, 1\ns_add_u32 {s(sT1)}, {s(sT1)}, {s(sRH)}\ns_mul_i32 {s(sFL)}, {s(sT1)}, {3*FG}\ns_lshl_b32 {s(sT1)}, {s(sT0)}, {FS}\ns_add_u32 {s(sFL)}, {s(sFL)}, {s(sT1)}\ns_add_u32 {s(sFL)}, {s(sFL)}, {WS_FH}")]
        t = f"s_mul_i32 {s(sT1)}, {s(sG)}, 6\ns_add_u32 {s(sT1)}, {s(sT1)}, {s(sCH)}\nv_lshlrev_b32 v11, 4, v1"
        for p in range(3): t += f"\ns_cmp_lt_u32 {s(sT1)}, {43-2*p}\ns_cselect_b32 {s(sT2)}, 0, {hx(OOB)}\nv_or_b32 {v(vO+p)}, {s(sT2)}, v11"
        return q + [self.it(t)]
    def q_gelu(self, p, pk):
        G = self; sHB, sFL, sO = 26, 27, 3; vO = 12; t = G.TMP; q = []; n = 0
        for rb in range(2):
            A, B, sd = G.GC + rb, G.GC + 2 + rb, G.SG + 4*rb + 2
            for kh in range(2):
                c = G.acc(p, rb) + 8*kh; P = t + 8 + 4*(n & 1); n += 1
                if self.o["pk"] and pk:
                    sel = rb
                    w = [f"v_pk_mul_f32 {v(t+j,2)}, {v(c+j,2)}, {v(c+j,2)}" for j in range(0, 8, 2)]
                    w += [f"v_pk_fma_f32 {v(t+j,2)}, {v(t+j,2)}, {v(G.GC+2,2)}, {v(G.GC,2)} op_sel:[0,{sel},{sel}] op_sel_hi:[1,{sel},{sel}]" for j in range(0, 8, 2)]
                    w += [f"v_pk_mul_f32 {v(t+j,2)}, {v(c+j,2)}, {v(t+j,2)}" for j in range(0, 8, 2)]
                    w += [f"v_exp_f32 {v(t+j)}, {v(t+j)}" for j in range(8)]
                    w += [f"v_pk_fma_f32 {v(t+j,2)}, {v(t+j,2)}, {v(sd,2)}, {v(sd,2)} op_sel:[0,0,0] op_sel_hi:[1,0,0]" for j in range(0, 8, 2)]
                    w += [f"v_rcp_f32 {v(t+j)}, {v(t+j)}" for j in range(8)]
                    w += [f"v_pk_mul_f32 {v(t+j,2)}, {v(c+j,2)}, {v(t+j,2)}" for j in range(0, 8, 2)]
                else:
                    w = [f"v_mul_f32 {v(t+j)}, {v(c+j)}, {v(c+j)}" for j in range(8)]
                    w += [f"v_fma_f32 {v(t+j)}, {v(t+j)}, {v(B)}, {v(A)}" for j in range(8)]
                    w += [f"v_mul_f32 {v(t+j)}, {v(c+j)}, {v(t+j)}" for j in range(8)]
                    w += [f"v_exp_f32 {v(t+j)}, {v(t+j)}" for j in range(8)]
                    w += [f"v_fma_f32 {v(t+j)}, {v(t+j)}, {v(sd)}, {v(sd)}" for j in range(8)]
                    w += [f"v_rcp_f32 {v(t+j)}, {v(t+j)}" for j in range(8)]
                    w += [f"v_mul_f32 {v(t+j)}, {v(c+j)}, {v(t+j)}" for j in range(8)]
                if self.o["e5"] and not pk: w = [x for k, x in enumerate(w) if x.startswith(("v_exp", "v_rcp")) or k % 2 == 0]
                w += [f"v_cvt_pk_bf16_f32 {v(P+j)}, {v(t+2*j)}, {v(t+2*j+1)}" for j in range(4)]
                q += self.its(w)
                q += [self.vmi(f"s_add_u32 {s(sO)}, {s(4+p)}, {(2*rb+kh) << self.SS}\nbuffer_store_dwordx4 {v(P,4)}, {v(vO+p)}, {s(sWS,4)}, {s(sO)} offen sc1", ("h", p))]
        return q + [self.tsi(f"cB_p{p}")]

    def q_gelu_units(self):
        G = self; sO = 3; vO = 12
        grp = [(p, rb, kh) for p in range(2) for rb in range(2) for kh in range(2)]
        def ops(g):
            p, rb, kh = grp[g]; c = G.acc(p, rb) + 8*kh; t = G.TMP + 8*(g & 1); sd = G.SG + 4*rb + 2
            P1 = [f"v_pk_mul_f32 {v(t+j,2)}, {v(c+j,2)}, {v(c+j,2)}" for j in range(0, 8, 2)]
            P1 += [f"v_pk_fma_f32 {v(t+j,2)}, {v(t+j,2)}, {v(G.GC+2,2)}, {v(G.GC,2)} op_sel:[0,{rb},{rb}] op_sel_hi:[1,{rb},{rb}]" for j in range(0, 8, 2)]
            P1 += [f"v_pk_mul_f32 {v(t+j,2)}, {v(c+j,2)}, {v(t+j,2)}" for j in range(0, 8, 2)]
            return dict(P1=P1, E=[f"v_exp_f32 {v(t+j)}, {v(t+j)}" for j in range(8)],
                        P2=[f"v_pk_fma_f32 {v(t+j,2)}, {v(t+j,2)}, {v(sd,2)}, {v(sd,2)} op_sel:[0,0,0] op_sel_hi:[1,0,0]" for j in range(0, 8, 2)],
                        R=[f"v_rcp_f32 {v(t+j)}, {v(t+j)}" for j in range(8)],
                        P3=[f"v_pk_mul_f32 {v(t+j,2)}, {v(c+j,2)}, {v(t+j,2)}" for j in range(0, 8, 2)],
                        C=[f"v_cvt_pk_bf16_f32 {v(c+j)}, {v(t+2*j)}, {v(t+2*j+1)}" for j in range(4)],
                        S=(f"s_add_u32 {s(sO)}, {s(4+p)}, {(2*rb+kh) << self.SS}\nbuffer_store_dwordx4 {v(c,4)}, {v(vO+p)}, {s(sWS,4)}, {s(sO)} offen sc1", ("h", p)))
        def unit(lines, st=None):
            def f():
                self.a("\n".join(lines))
                if st: self.a(st[0]); self.vm.issue(st[1])
            return ("U", f)
        q = self.its(ops(0)["P1"])
        for g in range(9):
            o = ops(g) if g < 8 else None; pv = ops(g - 1) if g else None; nx = ops(g + 1)["P1"] if g < 7 else [None] * 12
            fin = ([pv["C"][2], pv["P3"][3], pv["C"][3]] if pv else [])
            if o is None: q.append(unit(fin, pv["S"])); break
            U = [(o["E"][0:3] + fin, pv["S"] if pv else None),
                 (o["E"][3:6] + [o["P2"][0]] + nx[0:2], None), (o["E"][6:8] + o["P2"][1:3] + nx[2:4], None),
                 (o["R"][0:2] + [o["P2"][3]] + nx[4:6], None), (o["R"][2:4] + [o["P3"][0]] + nx[6:8], None),
                 (o["R"][4:6] + [o["C"][0], o["P3"][1]] + nx[8:10], None), (o["R"][6:8] + [o["C"][1], o["P3"][2]] + nx[10:12], None)]
            q += [unit([x for x in l if x], st) for l, st in U]
        return q
    def q_hflag(self, p):
        return [self.vmw(("h", p))] + self.q_flag(27) + [self.it(f"s_add_u32 s27, s27, {FG}"), self.tsi(f"cB_flag{p}")]
    def q_h0(self):
        G = self
        return self.its([f"s_lshl_b32 {s(sT1)}, {s(sI)}, 1\ns_add_u32 {s(sT1)}, {s(sT1)}, {s(sHF)}\ns_mul_i32 {s(sC0)}, {s(sT1)}, {3*FG}\ns_add_u32 {s(sC0)}, {s(sC0)}, {WS_FH}", f"v_lshlrev_b32 {v(G.vGP)}, {FS}, v5"]) + \
               [("GI", 13), self.vmi(self.fload(G.vGF, G.vGP, sC0), "gf")]
    def aload(self, vm, sig):
        if sig >= 59: return
        G = self; sA = sKST; D = self.o["D"]
        if self.o["r2"]:
            st, j2, ch = pos_of(sig); n = 8 if st == 3 else 7; t = ""
            if sig == 14: t = f"s_add_u32 {s(sA)}, s16, {14*1024}\n"
            elif ch == 0:
                t = f"s_mov_b32 s19, {'s18' if st == 3 else 's17'}\n" if j2 == 0 else f"s_add_u32 s19, s19, 2048\ns_cmp_eq_u32 s19, {n*2048}\ns_cselect_b32 s19, 0, s19\n"
                t += f"s_add_u32 {s(sA)}, s19, s16\n" + (f"s_add_u32 {s(sA)}, {s(sA)}, {(SIG0+[43])[st]*1024}\n" if st else "")
            self.a(t + f"buffer_load_dwordx4 {v(G.RING[sig%D],4)}, {v(G.vA)}, {s(sWS,4)}, {s(sA)} offen offset:{1024*ch} sc1"); vm.issue(("A", sig))
            return
        o = hoff(sig, self.o["lay"]); d = (o & ~4095) - (hoff(sig - 1, self.o["lay"]) & ~4095) if sig else 0
        if d: self.a(f"s_add_u32 {s(sA)}, {s(sA)}, {hx(d)}")
        self.a(f"buffer_load_dwordx4 {v(G.RING[sig%D],4)}, {v(G.vA)}, {s(sWS,4)}, {s(sA)} offen offset:{o & 4095} {['', 'sc1', 'sc0 sc1', 'nt sc1'][self.o['asc']]}"); vm.issue(("A", sig))
    RING = [16 + 4*k for k in range(8)] + [72, 76, 80, 84, 88]
    def gcheck(self, vm, soff, two=False, va=None):
        a = self.a; G = self; L = self.lab("gc"); R = self.lab("gcok"); X = self.lab("gcx")
        vm.wait("gf")
        a(f"v_cmp_ne_u32 vcc, {s(sNONCE)}, {v(G.vGF)}\ns_cbranch_vccnz {L}")
        a.label(R)
        pre = ""
        if two:
            n = len(vm.q) - 1 - max(i for i, t in enumerate(vm.q) if t == "gb")
            pre = f"s_waitcnt vmcnt({n})\nv_cmp_ne_u32 vcc, {s(sNONCE)}, {v(G.vGB)}\ns_cbranch_vccz {R}\n"
        self.tail.append(f"{L}:\n" + pre + self.poll_text(G.vGP if va is None else va, G.vGF, soff, X, self.lab("gcy")) + f"\ns_branch {R}")
    def breads(self, sig):
        G = self
        if sig >= 59: return []
        base = b_lds(sig); w = base >> 16; off = base & 0xffff
        if self.o["e4"] & 4: return [f"ds_read_b128 {v(G.BF+8*(sig%3)+4*cb,4)}, {v(G.vA)} offset:{(off & 0x7fff)+1024*cb}" for cb in range(2)]
        return [f"ds_read_b64_tr_b16 {v(G.BF+8*(sig%3)+4*cb+2*q,2)}, {v(G.vBA+2*w+cb)} offset:{off+1024*q}" for cb in range(2) for q in range(2)]
    def p2_pre(self):
        if self.stop == "p1": return
        if self.o["eb"]: self.a(f"ds_read_b32 {v(self.vCK)}, {v(self.vPW)}")
        self.gcheck(self.vm, sC0); self.ts("c_p0x")
        for sig in range(8): self.aload(self.vm, sig)
        G = self
        if self.o["eb"]:
            a = self.a; L = self.lab("eb"); R = self.lab("ebok"); X = self.lab("ebx")
            a(f"s_waitcnt lgkmcnt(0)\nv_cmp_gt_u32 vcc, 1, {v(G.vCK)}\ns_cbranch_vccnz {L}\n{R}:")
            self.tail.append(f"{L}:\ns_mov_b32 {s(sSPIN)}, 0\n{X}:\nds_read_b32 {v(G.vCK)}, {v(G.vPW)}\ns_add_u32 {s(sSPIN)}, {s(sSPIN)}, 1\ns_cmp_gt_u32 {s(sSPIN)}, {SPIN_MAX*8}\n"
                             f"s_waitcnt lgkmcnt(0)\ns_cbranch_scc1 {R}\nv_cmp_gt_u32 vcc, 1, {v(G.vCK)}\ns_cbranch_vccnz {X}\ns_branch {R}")
            for sig in range(2):
                for r in self.breads(sig): a(r)
        if self.o["kearly"]: self.a(f"s_add_u32 {s(sC0)}, {s(sC0)}, {FG}\nbuffer_load_dword {v(G.vGF)}, {v(G.vGP)}, {s(sWS,4)}, {s(sC0)} offen sc1"); self.vm.issue("gf")
    def typeB(self):
        a = self.a; G = self; o = self.o
        self.vm.q = list(self.vm0)
        for p in range(3):
            a(f"v_add_u32 v9, {s(sC0+p)}, v96\nbuffer_load_ushort {v(G.B1+p)}, v9, {s(sB1,4)}, 0 offen"); self.vm.issue("b1")
        self.flush(self.q_gelu_setup())
        pw = []
        if o["pw"]:
            pw = [("GI", o["pw"])] + [self.vmi(f"s_add_u32 s3, s27, {k*FG}\nbuffer_store_dword {v(G.vNZ)}, {v(G.vFL)}, {s(sWS,4)}, s3 offen sc1", "pw") for k in range(3)]
        q = self.q_stats("B", pw + self.q_p2setup())
        self.mpass("B", 0, q, o["bud0"])
        g1 = self.q_gelu(1, False)
        h0 = self.q_h0()
        if o["pku"]:
            u = self.q_gelu_units(); k = 12 + 29 + o["fu"]
            q += self.q_fixup("B", 0) + self.q_fixup("B", 1) + h0[:2] + u[:k] + self.q_hflag(0) + u[k:]
        else:
            q += self.q_fixup("B", 0) + self.q_fixup("B", 1) + h0[:2] + self.q_gelu(0, False) + g1[:o["fm"]*10] + self.q_hflag(0) + g1[o["fm"]*10:]
        self.mpass("B", 1, q, o["bud2"])
        self.ts("c_main")
        g2 = self.q_gelu(2, True); h = len(g2) // 4 * o["g2h"]; h1 = len(g2) // 4 * min(o["f1h"], o["g2h"])
        self.flush(q + h0[3:] + ["NEXT"] + self.q_fixup("B", 2) + g2[:h1] + self.q_hflag(1) + g2[h1:h] + [(0, self.p2_pre)] + g2[h:])
        self.ts("cB_gelu")
        if self.stop == "p1": self.vm.wait(("h", 2)); self.flush(self.q_flag(27))

    def pair_recv(self, kind, reads):
        a = self.a; L = self.lab("pw"); X = self.lab("pwx")
        a(f"s_xor_b32 {s(sT0)}, {s(sWAVE)}, 2\ns_lshl_b32 {s(sT0)}, {s(sT0)}, 4\ns_add_u32 {s(sT0)}, {s(sT0)}, {SC_FLAG+4*kind}\nv_mov_b32 v12, {s(sT0)}\ns_mov_b32 {s(sSPIN)}, 0")
        a.label(L)
        a("ds_read_b32 v13, v12")
        for r in reads: a(r)
        a(f"s_add_u32 {s(sSPIN)}, {s(sSPIN)}, 1\ns_cmp_gt_u32 {s(sSPIN)}, {SPIN_MAX}\ns_waitcnt lgkmcnt(0)\ns_cbranch_scc1 {X}")
        a(f"v_cmp_eq_u32 vcc, 0, v13\ns_cbranch_vccnz {L}")
        a.label(X)
    def pair_send(self, kind):
        a = self.a
        a(f"s_lshl_b32 {s(sT0)}, {s(sWAVE)}, 4\ns_add_u32 {s(sT0)}, {s(sT0)}, {SC_FLAG+4*kind}\nv_mov_b32 v12, {s(sT0)}\nv_mov_b32 v13, 1\nds_write_b32 v12, v13")

    ON = 156
    RR = (128, 32)
    def q_kv_pre(self):
        G = self
        return ["NEXT"] + self.its([f"ds_read_b128 {v(G.RR[rb]+4*k,4)}, v6 offset:{128*rb+32*k}" for rb in range(2) for k in range(4)]
                                   + [f"v_mov_b32 {v(G.ON+k)}, 0x3f803f80" for k in range(4)] + ["v_xor_b32 v12, 32, v96"])
    def q_kv(self):
        G = self; q = []
        KV, ZZ, u, ON = 16, 48, G.TMP + 16, G.ON
        pend = []
        for n, (rb, kh) in enumerate(((0, 0), (0, 1), (1, 0), (1, 1))):
            c = G.acc(0, rb) + 8*kh; cv = G.acc(1, rb) + 8*kh; r = G.RR[rb] + 8*kh
            w = [f"v_pk_mul_f32 {v(c+j,2)}, {v(c+j,2)}, {v(r+j,2)}" for j in range(0, 8, 2)]
            e = [f"v_exp_f32 {v(u+j)}, {v(c+j)} clamp" for j in range(8)]
            w += pend[:1] + e[:4] + pend[1:] + e[4:]
            w += [f"v_max_f32 {v(c+j)}, v10, {v(c+j)}" for j in range(8)]
            w += [f"v_pk_mul_f32 {v(cv+j,2)}, {v(cv+j,2)}, {v(r+j,2)}" for j in range(0, 8, 2)]
            w += [f"v_pk_fma_f32 {v(u+j,2)}, {v(c+j,2)}, v[10:11], {v(u+j,2)} op_sel:[0,1,0] op_sel_hi:[1,1,1]" for j in range(0, 8, 2)]
            w += [f"v_cvt_pk_bf16_f32 {v(cv+j)}, {v(cv+2*j)}, {v(cv+2*j+1)}" for j in range(4)]
            w += [f"v_cvt_pk_bf16_f32 {v(c+j)}, {v(u+2*j)}, {v(u+2*j+1)}" for j in range(4)]
            pend = [f"v_mfma_f32_32x32x16_bf16 {v(ZZ,16)}, {v(c,4)}, {v(ON,4)}, {v(ZZ,16) if n else 0}",
                    f"v_mfma_f32_32x32x16_bf16 {v(KV,16)}, {v(c,4)}, {v(cv,4)}, {v(KV,16) if n else 0}"]
            q += self.its(w)
        q += self.its(pend) + [self.tsi("cA_kv"), self.it("v_mov_b32 v13, 1")]
        q += self.its([f"v_cndmask_b32 {v(u+j)}, {v(KV+8+j)}, {v(ZZ+8+j)}, {s(sLM,2)}" for j in range(8)])
        q += self.its([f"ds_write_b128 v90, {v(u,4)}", f"ds_write_b128 v90, {v(u+4,4)} offset:16", "ds_write_b32 v96, v13"])
        q += self.its([f"v_cndmask_b32 {v(ZZ+j)}, {v(ZZ+j)}, {v(KV+j)}, {s(sLM,2)}" for j in range(8)])
        q += [(40, lambda: self.pair_spin([f"ds_read_b128 {v(ZZ+8,4)}, v91", f"ds_read_b128 {v(ZZ+12,4)}, v91 offset:16"]))]
        q += self.its([f"v_pk_add_f32 {v(ZZ+j,2)}, {v(ZZ+j,2)}, {v(ZZ+8+j,2)}" for j in range(0, 8, 2)])
        q += self.its([f"v_pk_mul_f32 {v(ZZ+j,2)}, {v(ZZ+j,2)}, v[0:1] op_sel_hi:[1,0]" for j in range(0, 8, 2)])
        q += self.its([f"v_cvt_pk_bf16_f32 {v(u+j)}, {v(ZZ+2*j)}, {v(ZZ+2*j+1)}" for j in range(4)])
        q += [self.vmi(f"buffer_store_dwordx4 {v(u,4)}, v15, {s(sWS,4)}, s85 offen sc1", "kv"), self.tsi("cA_pub")]
        return q
    def pair_spin(self, reads, off=0):
        a = self.a; L = self.lab("pw"); X = self.lab("pwx")
        a(f"s_mov_b32 {s(sSPIN)}, 0")
        a.label(L)
        a(f"ds_read_b32 v13, v12 offset:{off}")
        for r in reads: a(r)
        a(f"s_add_u32 {s(sSPIN)}, {s(sSPIN)}, 1\ns_cmp_gt_u32 {s(sSPIN)}, {SPIN_MAX}\ns_waitcnt lgkmcnt(0)\ns_cbranch_scc1 {X}")
        a(f"v_cmp_eq_u32 vcc, 0, v13\ns_cbranch_vccnz {L}")
        a.label(X)
    def q_kvflag(self):
        sFL, sHD = 27, 3
        return [self.vmw("kv")] + self.q_flag(sHD) + [self.tsi("cA_flag")]
    def q_phiq(self):
        G = self; u = G.TMP; q = []
        for rb in range(2):
            rl, ep, r = G.GC + rb, G.GC + 2 + rb, G.SG + 4*rb + 1
            for hh in range(2):
                c = G.acc(2, rb) + 8*hh
                w = [f"v_mul_f32 {v(u+j)}, {v(rl)}, {v(c+j)}" for j in range(8)]
                w += [f"v_exp_f32 {v(u+j)}, {v(u+j)} clamp" for j in range(8)]
                w += [f"v_max_f32 {v(c+j)}, {v(ep)}, {v(c+j)}" for j in range(8)]
                w += [f"v_fmac_f32 {v(u+j)}, {v(c+j)}, {v(r)}" for j in range(8)]
                w += [f"v_cvt_pk_bf16_f32 {v(c+j)}, {v(u+2*j)}, {v(u+2*j+1)}" for j in range(4)]
                q += self.its(w)
        return q + [self.tsi("cA_q")]

    def typeA(self):
        a = self.a; G = self; T = G.TMP; vm = self.vm
        vm.q = list(self.vm0)
        a("v_and_b32 v8, 1, v4\nv_lshlrev_b32 v8, 2, v8\nv_sub_u32 v8, v5, v8\nv_mov_b32 v9, 0x3f80\nv_mov_b32 v10, 0x3f800000")
        for k, e in enumerate((0, 2, 8, 10)):
            a(f"v_cmp_eq_u32 vcc, {e}, v8\nv_cndmask_b32 v11, 0, v9, vcc\nv_cmp_eq_u32 vcc, {e+1}, v8\nv_cndmask_b32 {v(G.IDN+k)}, v11, v10, vcc")
        sREC, sFL, sHD = 26, 27, 3
        a(f"s_lshl_b32 {s(sHD)}, {s(sG)}, 1\ns_add_u32 {s(sHD)}, {s(sHD)}, {s(sCH)}\ns_lshl_b32 {s(sHD)}, {s(sHD)}, 1\ns_add_u32 {s(sHD)}, {s(sHD)}, {s(sRH)}")
        a(f"s_mul_i32 {s(sREC)}, {s(sHD)}, 10240\ns_add_u32 {s(sREC)}, {s(sREC)}, {WS_KV}\ns_lshl_b32 {s(sFL)}, {s(sHD)}, {FS+4}\ns_add_u32 {s(sFL)}, {s(sFL)}, {WS_FK}")
        a(f"s_lshl_b32 {s(sHD)}, {s(sI)}, {FS}\ns_add_u32 {s(sHD)}, {s(sHD)}, {s(sFL)}\ns_mul_i32 s85, {s(sI)}, 640\ns_add_u32 s85, s85, {s(sREC)}")
        a(f"v_cmp_gt_u32 {s(sLM,2)}, 16, v2\nv_lshl_add_u32 v12, v3, 4, v2\nv_lshlrev_b32 v12, 4, v12\nv_lshlrev_b32 v13, 6, v3\nv_add_u32 v13, 512, v13")
        a(f"v_cndmask_b32 v14, v13, v12, {s(sLM,2)}")
        a(f"v_lshl_add_u32 v13, v5, 4, v13\nv_cndmask_b32 v15, v13, v12, {s(sLM,2)}\nv_mov_b32 v12, {hx(OOB)}\nv_cmp_gt_u32 vcc, 20, v2\nv_cndmask_b32 v15, v12, v15, vcc")
        a(f"v_mov_b32 v9, {fl(0.6931471805599453)}\nv_cndmask_b32 v0, 1.0, v9, {s(sLM,2)}")
        a(f"v_mov_b32 v10, {fl(1e-6*1.4426950408889634)}\nv_mov_b32 v11, v9")
        o = self.o
        pw = []
        if o["pw"]:
            pw = [("GI", o["pw"]), self.vmi(f"buffer_store_dword {v(G.vNZ)}, {v(G.vFL)}, {s(sWS,4)}, s3 offen sc1", "pw"),
                  self.it(f"s_lshl_b32 {s(sT1)}, {s(sI)}, 1\ns_add_u32 {s(sT1)}, {s(sT1)}, {s(sRH)}\ns_lshl_b32 {s(sT1)}, {s(sT1)}, 4\ns_lshl_b32 {s(sT2)}, {s(sG)}, 1"),
                  self.it(f"s_add_u32 {s(sT1)}, {s(sT1)}, {s(sT2)}\ns_add_u32 {s(sT1)}, {s(sT1)}, {s(sCH)}\ns_lshl_b32 {s(sT1)}, {s(sT1)}, {FS}\ns_add_u32 {s(sT1)}, {s(sT1)}, {WS_FO}"),
                  self.vmi(f"buffer_store_dword {v(G.vNZ)}, {v(G.vFL)}, {s(sWS,4)}, {s(sT1)} offen sc1", "pw")]
        q = self.q_stats("A", pw)
        q += self.its([f"s_mul_i32 {s(sT1)}, {s(sWAVE)}, 1280\ns_add_u32 {s(sT1)}, {s(sT1)}, {SC_KVX}\nv_add_u32 v93, {s(sT1)}, v14",
                       "v_xor_b32 v8, 16, v2", "v_lshl_add_u32 v8, v3, 4, v8", "v_lshlrev_b32 v9, 0, v3", "v_add_u32 v9, 32, v9",
                       f"v_cndmask_b32 v8, v8, v9, {s(sLM,2)}", f"v_lshl_add_u32 v90, v8, 5, {s(sT1)}",
                       f"s_xor_b32 {s(sT1)}, {s(sWAVE)}, 2\ns_mul_i32 {s(sT1)}, {s(sT1)}, 1280\ns_add_u32 {s(sT1)}, {s(sT1)}, {SC_KVX}\nv_add_u32 v92, {s(sT1)}, v14",
                       "v_lshl_add_u32 v8, v3, 4, v2", f"v_cndmask_b32 v8, v9, v8, {s(sLM,2)}", f"v_lshl_add_u32 v91, v8, 5, {s(sT1)}"])
        q += self.its([f"s_lshl_b32 {s(sT1)}, {s(sWAVE)}, 4\ns_add_u32 {s(sT1)}, {s(sT1)}, {SC_FLAG}\nv_mov_b32 v96, {s(sT1)}"])
        q += self.q_kv_pre()
        self.mpass("A", 0, q, o["bud0"])
        self.flush(q + ["NEXT"] + self.q_fixup("A", 0) + self.q_fixup("A", 1) + self.q_kv()); self.lg.q = []
        sREC, sFL = 26, 27
        h0 = self.q_h0()
        GA = G.ACC; KP, ZP = G.ACC + 40, G.ACC + 44
        q = [("GI", o["fmA"])] + self.q_kvflag() + self.q_p2setup() + h0[:2]
        q += self.its(["v_mul_u32_u24 v97, 640, v3", "v_lshl_add_u32 v97, v2, 4, v97",
                       "v_and_b32 v8, 7, v5", "v_lshl_add_u32 v8, v8, 1, v3", "v_mul_u32_u24 v98, 640, v8", "v_and_b32 v9, 1, v4", "v_lshl_add_u32 v98, v9, 6, v98", "v_add_u32 v98, 512, v98",
                       f"s_xor_b32 {s(sT1)}, {s(sWAVE)}, 2\ns_mul_i32 {s(sT1)}, {s(sT1)}, 1280\ns_add_u32 {s(sT1)}, {s(sT1)}, {SC_KVX}\nv_lshl_add_u32 v8, v3, 3, {s(sT1)}",
                       "v_lshl_add_u32 v90, v2, 4, v8", "v_lshl_add_u32 v91, v9, 6, v8", "v_add_u32 v91, 512, v91"])
        hb = self.ho_base(7, 43).split("\n")
        q += [self.it("\n".join(hb[k:k+4])) for k in range(0, len(hb), 4)]
        q += self.its([f"s_lshl_b32 {s(sT1)}, {s(sI)}, 1\ns_add_u32 {s(sT1)}, {s(sT1)}, {s(sRH)}\ns_lshl_b32 s6, {s(sT1)}, {FS+4}", f"s_lshl_b32 {s(sT1)}, {s(sT0)}, {FS}\ns_add_u32 s6, s6, {s(sT1)}\ns_add_u32 s6, s6, {WS_FO}",
                       f"s_lshl_b32 s4, {s(sRH)}, {self.SS}\ns_xor_b32 s5, s4, {1 << self.SS}", "s_add_u32 s4, s4, s7\ns_add_u32 s5, s5, s7"])
        L = self.lab("kf"); R = self.lab("kfok")
        q += [("GI", o["kfs"]), self.vmi(self.fload(11, G.vGP, sFL), "kf")]
        kq = [("GI", o["kfc"]), self.vmw("kf"),
              (0, lambda: a(f"v_cmp_ne_u32 vcc, {s(sNONCE)}, v11\ns_cbranch_vccnz {L}\n{R}:")), self.tsi("cA_poll")]
        self.tail.append(f"{L}:\n" + self.poll_text(G.vGP, 11, sFL, self.lab("kfx"), self.lab("kfy")) + f"\ns_branch {R}")
        def gl(k):
            if k == 8: a(f"buffer_load_dwordx4 {v(GA+32,4)}, v98, {s(sWS,4)}, {s(sREC)} offen sc1")
            else: a((f"s_add_u32 s3, {s(sREC)}, {k*1280}\n" if k % 4 == 0 else "") + f"buffer_load_dwordx4 {v(GA+4*k,4)}, v97, {s(sWS,4)}, s3 offen offset:{1280*(k%4)} sc1")
            vm.issue(("ga", k))
        kq += [(0, lambda k=k: gl(k)) for k in (8, 0, 1, 2, 3, 4, 5, 6, 7)]
        if o["kpos"] == 0: q += kq
        self.mpass("A", 1, q, o["budA"])
        self.ts("c_main")
        pq = self.q_phiq(); h = (len(pq) - 1) // 4 * o["pqh"]
        self.flush(q + ["NEXT"] + self.q_fixup("A", 2))
        if o["kpos"] == 2: self.flush(pq); pq = []
        if o["kpos"]: self.flush(kq)
        self.flush(h0[3:])
        a(f"s_mov_b32 {s(sFL)}, s6")
        a("v_lshlrev_b32 v10, 4, v1\nv_mov_b32 v13, 1")
        self.flush(pq[:h])
        self.ts("cA_pq")
        vm.wait(("ga", 8)); self.ts("cA_g8"); a(f"v_mfma_f32_16x16x32_bf16 {v(ZP,4)}, {v(G.IDN,4)}, {v(GA+32,4)}, 0")
        dpp = [f"v_add_f32_dpp {v(ZP+j)}, {v(ZP+j)}, {v(ZP+j)} {m} row_mask:0xf bank_mask:0xf" for m in ("quad_perm:[1,0,3,2]", "quad_perm:[2,3,0,1]", "row_half_mirror") for j in range(4)]
        dpp += [f"v_cvt_pk_bf16_f32 {v(ZP+j)}, {v(ZP+2*j)}, {v(ZP+2*j+1)}" for j in range(2)]
        for k in range(8):
            vm.wait(("ga", k)); a(f"v_mfma_f32_16x16x32_bf16 {v(KP,4)}, {v(G.IDN,4)}, {v(GA+4*k,4)}, {v(KP,4) if k else 0}")
            if k >= 3:
                for x in dpp[4*(k-3): 4*(k-2)]: a(x)
        self.ts("cA_gath")
        for j in range(2): a(f"v_cvt_pk_bf16_f32 {v(KP+j)}, {v(KP+2*j)}, {v(KP+2*j+1)}")
        a(f"ds_write_b64 v90, {v(KP,2)}\nds_write_b64 v91, {v(ZP,2)}\nds_write_b32 v96, v13 offset:4")
        self.flush(pq[h:])
        F = [T + 8, T + 12]; t = T; PV = G.XS
        self.pair_spin([f"ds_read_b128 {v(F[0],4)}, v92", f"ds_read_b128 {v(F[1],4)}, v93"], off=4)
        self.ts("cA_spin")
        O = [G.ACC + 16*k for k in range(4)]
        for hh in range(2):
            for rb in range(2): a(f"v_mfma_f32_32x32x16_bf16 {v(O[2*rb+hh],16)}, {v(F[hh],4)}, {v(G.acc(2,rb)+8*hh,4)}, 0")
        if not o["ofirst"]: self.p2_pre()
        for n in range(4): a(f"v_add_f32 {v(t+2*n)}, {fl(1e-6)}, {v(O[2*(n&1)+(n>>1)]+8)}\nv_rcp_f32 {v(t+2*n)}, {v(t+2*n)}")
        n = 0
        for hh in range(2):
            for rb in range(2):
                o = O[2*rb+hh]; P = PV + 4*(n & 1)
                a(f"s_add_u32 {s(sT4)}, {s(4+hh)}, {rb << (self.SS+1)}")
                for j in range(0, 8, 2): a(f"v_pk_mul_f32 {v(o+j,2)}, {v(o+j,2)}, {v(t+2*n,2)} op_sel_hi:[1,0]")
                for j in range(4): a(f"v_cvt_pk_bf16_f32 {v(P+j)}, {v(o+2*j)}, {v(o+2*j+1)}")
                a(f"buffer_store_dwordx4 {v(P,4)}, v10, {s(sWS,4)}, {s(sT4)} offen sc1"); vm.issue("o"); n += 1
        self.ts("cA_o")
        if self.o["ofirst"] and self.stop != "p1":
            self.p2_pre(); vm.wait("o"); self.flush(self.q_flag(sFL)); self.ts("cA_oflag")
            a(f"s_lshl_b32 {s(sT0)}, s2, 2\ns_add_u32 {s(sT0)}, {s(sT0)}, {s(sWAVE)}\ns_lshl_b32 {s(sT0)}, {s(sT0)}, 7\ns_add_u32 {s(sFL)}, {s(sT0)}, {WS_DUM}")
        if self.stop == "p1": vm.wait("o"); self.flush(self.q_flag(sFL))

    Y, S2 = 160, 192
    AR = 16; D = 8
    BF = 48
    vBA = 144
    vA, vXC, vXP, vOUT = 150, 151, 152, 153
    vPW, vDW, vPF, vMF, vGP, vCK, vGF, vLV = 154, 155, 156, 157, 0, 159, 158, 9
    vXR, vGB = 124, 10
    XR = 76
    def q_p2setup(self):
        G = self; out = []
        def a(t):
            cur = []
            for ln in t.split("\n"):
                cur.append(ln)
                if ln.startswith("v_"): out.append(self.it("\n".join(cur))); cur = []
            if cur: out.append(self.it("\n".join(cur)))
        for d, ptr, size in ((sOUT, 20, 2097152), (sB2, 18, 1024)): a(f"s_mov_b32 {s(d)}, {s(ptr)}\ns_mov_b32 {s(d+1)}, {s(ptr+1)}"); a(f"s_mov_b32 {s(d+2)}, {size}\ns_mov_b32 {s(d+3)}, 0x00020000")
        sA = sKST
        a(f"s_lshl_b32 {s(sP1)}, {s(sI)}, 1\ns_add_u32 {s(sP1)}, {s(sP1)}, {s(sHF)}\ns_lshl_b32 {s(sP2)}, {s(sP1)}, 2\ns_add_u32 {s(sP2)}, {s(sP2)}, {s(sWAVE)}\ns_lshl_b32 {s(sA)}, {s(sP2)}, {self.SS}")
        if self.o["r2"]:
            a(self.rot2(17, 18, sP2)); a(f"s_lshl_b32 s17, s17, 11\ns_lshl_b32 s18, s18, 11\ns_mov_b32 s16, {s(sA)}")
        a(f"v_lshlrev_b32 {v(G.vA)}, 4, v1")
        a(f"v_lshrrev_b32 v8, 2, v5\nv_lshl_add_u32 v8, v3, 2, v8\ns_lshl_b32 {s(sP2)}, {s(sCH)}, 4\nv_add_u32 v8, {s(sP2)}, v8\nv_lshlrev_b32 v8, 7, v8")
        a("v_and_b32 v9, 1, v5\nv_lshl_add_u32 v8, v9, 3, v8")
        a("v_and_b32 v9, 1, v4\nv_lshlrev_b32 v9, 1, v9\nv_bfe_u32 v0, v5, 1, 1\nv_add_u32 v9, v9, v0\nv_lshrrev_b32 v0, 3, v5\nv_lshlrev_b32 v0, 2, v0\nv_xor_b32 v9, v9, v0")
        a(f"s_lshl_b32 {s(sP2)}, {s(sCH)}, 2\nv_xor_b32 v9, {s(sP2)}, v9")
        a(f"v_lshl_add_u32 {v(G.vBA)}, v9, 4, v8\nv_xor_b32 v9, 4, v9\nv_lshl_add_u32 {v(G.vBA+1)}, v9, 4, v8")
        for w in (1, 2):
            for cb in range(2): a(f"v_add_u32 {v(G.vBA+2*w+cb)}, {65536*w}, {v(G.vBA+cb)}")
        a(f"s_lshl_b32 {s(sP2)}, {s(sWAVE)}, 12\ns_add_u32 {s(sP2)}, {s(sP2)}, {XCH_Y}\nv_add_u32 {v(G.vXC)}, {s(sP2)}, {v(G.vA)}")
        a(f"s_xor_b32 {s(sP2)}, {s(sWAVE)}, 1\ns_lshl_b32 {s(sP2)}, {s(sP2)}, 12\ns_add_u32 {s(sP2)}, {s(sP2)}, {XCH_Y}\nv_add_u32 {v(G.vXP)}, {s(sP2)}, {v(G.vA)}")
        a(f"v_and_b32 v8, 3, v1\nv_lshlrev_b32 v8, 2, v8\nv_add_u32 {v(G.vPW)}, {SC_PROG}, v8\nv_lshlrev_b32 {v(G.vGP)}, {FS}, v5")
        a(f"s_lshl_b32 {s(sP2)}, {s(sWAVE)}, 2\ns_add_u32 {s(sP2)}, {s(sP2)}, {SC_PROG+16}\nv_mov_b32 {v(G.vDW)}, {s(sP2)}")
        a(f"s_lshl_b32 {s(sP2)}, {s(sWAVE)}, 4\ns_add_u32 {s(sP2)}, {s(sP2)}, {SC_FLAG}\nv_mov_b32 {v(G.vMF)}, {s(sP2)}\ns_xor_b32 {s(sP2)}, {s(sP2)}, 16\nv_mov_b32 {v(G.vPF)}, {s(sP2)}")
        a(f"s_lshl_b32 {s(sC0+1)}, {s(sP1)}, {FS+4}\ns_add_u32 {s(sC0+1)}, {s(sC0+1)}, {WS_FO}")
        gs = [int(c) for c in str(self.o["grp"])]; g0 = 0
        a(f"s_mov_b32 {s(sP3)}, {s(sCT)}")
        for n in gs:
            if n > 1:
                a(f"s_lshr_b32 {s(sP2)}, s2, 6\ns_mul_i32 {s(sP2)}, {s(sP2)}, {max(1, (n+1)//4)}\ns_add_u32 {s(sP2)}, {s(sP2)}, {s(sCT)}")
                a(f"s_mul_i32 {s(sP4)}, {s(sP2)}, {-(-256//n)}\ns_lshr_b32 {s(sP4)}, {s(sP4)}, 8\ns_mul_i32 {s(sP4)}, {s(sP4)}, {n}\ns_sub_u32 {s(sP2)}, {s(sP2)}, {s(sP4)}")
                a(f"s_sub_u32 {s(sP2)}, {s(sCT)}, {s(sP2)}\ns_add_u32 {s(sP4)}, {s(sP2)}, {n}\ns_cmp_lt_i32 {s(sP2)}, {g0}\ns_cselect_b32 {s(sP2)}, {s(sP4)}, {s(sP2)}")
                a(f"s_sub_u32 {s(sP4)}, {s(sCT)}, {g0}\ns_cmp_lt_u32 {s(sP4)}, {n}\ns_cselect_b32 {s(sP3)}, {s(sP2)}, {s(sP3)}")
            g0 += n
        a(f"s_lshl_b32 {s(sP3)}, {s(sP3)}, 2\ns_lshl_b32 {s(sP2)}, {s(sHF)}, 1\ns_add_u32 {s(sP3)}, {s(sP3)}, {s(sP2)}\ns_add_u32 {s(sP3)}, {s(sP3)}, {s(sRH)}\ns_lshl_b32 {s(sP3)}, {s(sP3)}, 12")
        a(f"v_bfe_u32 v8, v1, 1, 3\ns_lshl_b32 {s(sP2)}, {s(sCH)}, 2\nv_xor_b32 v8, {s(sP2)}, v8\nv_lshlrev_b32 v8, 4, v8\nv_lshl_add_u32 v8, v3, 3, v8")
        a(f"v_lshl_add_u32 v8, v2, 7, v8\nv_add_u32 {v(G.vXR)}, {s(sP3)}, v8")
        a(f"s_lshl_b32 {s(sP1)}, {s(sP1)}, 1\ns_add_u32 {s(sP1)}, {s(sP1)}, {s(sRH)}\ns_lshl_b32 {s(sP1)}, {s(sP1)}, 15")
        a(f"s_lshl_b32 {s(sP2)}, {s(sCT)}, 1\ns_add_u32 {s(sP2)}, {s(sP2)}, {s(sCH)}\ns_lshl_b32 {s(sP2)}, {s(sP2)}, 6\ns_add_u32 {s(sP1)}, {s(sP1)}, {s(sP2)}")
        a(f"v_lshl_add_u32 v8, v2, 10, {s(sP1)}\nv_lshl_add_u32 {v(G.vOUT)}, v3, 4, v8\ns_mov_b32 {s(sC0+2)}, {s(sP2)}")
        return out

    def phase2(self):
        a = self.a; G = self; D = self.o['D']; sA = sKST
        RING = G.RING
        a.label("L_phase2")
        vm = Cnt(a, "vmcnt", 63); lg = Cnt(a, "lgkmcnt", 15)
        aload = lambda sig: self.aload(vm, sig)
        breads = self.breads
        def ds(x, tag): a(x); lg.issue(tag)
        def lcheck(vaddr, off, lv, tag, extra=(), ck=G.vCK):
            L = self.lab("lc"); R = self.lab("lcok"); X = self.lab("lcx")
            lg.wait(tag)
            a(f"v_cmp_gt_u32 vcc, {lv}, {v(ck)}\ns_cbranch_vccnz {L}")
            a.label(R)
            ex = "".join(e + "\n" for e in extra)
            self.tail.append(f"""{L}:
s_mov_b32 {s(sSPIN)}, 0
{X}:
ds_read_b32 {v(ck)}, {v(vaddr)} offset:{off}
{ex}s_add_u32 {s(sSPIN)}, {s(sSPIN)}, 1
s_cmp_gt_u32 {s(sSPIN)}, {SPIN_MAX*8}
s_waitcnt lgkmcnt(0)
s_cbranch_scc1 {R}
v_cmp_gt_u32 vcc, {lv}, {v(ck)}
s_cbranch_vccnz {X}
s_branch {R}""")
        def lread(vaddr, off, tag, ck=G.vCK): ds(f"ds_read_b32 {v(ck)}, {v(vaddr)} offset:{off}", tag)
        def lsig(vaddr, off, lv): a(f"v_mov_b32 {v(G.vLV)}, {lv}"); ds(f"ds_write_b32 {v(vaddr)}, {v(G.vLV)} offset:{off}", "sig")
        F4 = self.o["fs4"]; va = G.vGB if F4 else G.vGP
        def gload(soff, r, tag): a(self.fload(r, va, soff)); vm.issue(tag)
        gcheck = lambda soff: self.gcheck(vm, soff, bool(self.o['kearly']), va)
        self.ts("c_p0"); assert self.o["g2h"] < 4
        vm.q = [("A", k) for k in range(8)] + ["gf"] * bool(self.o["kearly"]) + ["pub"] * (4 - self.o["g2h"])
        EB = self.o["eb"]
        if EB: lg.q = [("B", 0)] * 4 + [("B", 1)] * 4
        if self.o["gateA"] or self.o["gateB"]: lsig(G.vDW, 0, 1)
        if not EB: lread(G.vPW, 0, "ck")
        a(f"v_lshl_add_u32 v8, v2, 1, {s(sC0+2)}\nv_mov_b32 v11, {s(sNONCE)}")
        assert D == 8
        if F4: a(f"v_and_b32 {v(va)}, 3, v1\ns_lshl_b32 {s(sT0)}, {s(sWAVE)}, 2\nv_add_lshl_u32 {v(va)}, {v(va)}, {s(sT0)}, {FS}")
        for sig in range(8, D): aload(sig)
        if not EB: lcheck(G.vPW, 0, 1, "ck")
        need_prog = {6: 2, 21: 3, 36: 4, 43: 5, 53: 6}
        GL = self.o['gl']; SO = 49152 if GL else 16384
        done_at = {6: 2, 16: 3, 20: 4, (36 if GL else 30): 5}
        gat = {15 - D: sC0, 29 - D: sC0, 43 - D: sC0 + 1}
        yr = [f"ds_read_b128 {v(96+4*q,4)}, {v(G.vXP)} offset:{1024*q}" for q in range(4)]
        for sig in range(0 if EB else 2):
            for r in breads(sig): ds(r, ("B", sig))
        T = 96; YK = 112; BB = 128; XX = 240
        work = []
        for q in range(8):
            work += [f"v_lshlrev_b32 {v(XX+2*q)}, 16, {v(G.XR+q)}", f"v_and_b32 {v(XX+2*q+1)}, 0xffff0000, {v(G.XR+q)}"]
        work += ["v_cmp_gt_u32 vcc, 32, v1\nv_mov_b32 v12, 0x3f80", f"v_cndmask_b32 {v(BB+4)}, 0, v12, vcc"] + [f"v_mov_b32 {v(BB+k)}, 0" for k in (1, 2, 3, 5, 6, 7)]
        gw = []
        for half in range(2):
            o = 8 * half
            gw += [f"v_add_f32 {v(YK+o+j)}, {v(T+o+j)}, {v(G.Y+o+j)}" for j in range(8)]
            gw += [f"v_mul_f32 {v(T+o+j)}, {fl(-1.4426950408889634)}, {v(YK+o+j)}" for j in range(8)]
            gw += [f"v_exp_f32 {v(T+o+j)}, {v(T+o+j)}" for j in range(8)]
            gw += [f"v_add_f32 {v(T+o+j)}, 1.0, {v(T+o+j)}" for j in range(8)]
            gw += [f"v_rcp_f32 {v(T+o+j)}, {v(T+o+j)}" for j in range(8)]
            gw += [f"v_mul_f32 {v(YK+o+j)}, {v(YK+o+j)}, {v(T+o+j)}" for j in range(8)]
        held = []
        if GL: gw = []
        for sig in range(59):
            acc = G.Y if sig < 43 else G.S2; first = sig in (0, 43)
            n0 = len(a.items); lg.wait(("B", sig)); vm.wait(("A", sig))
            if self.o["mw"] and len(a.items) == n0 + 2: a.items[n0:] = [a.items[n0 + 1] + " " + a.items[n0].split()[1]]
            A = v(RING[sig % D], 4)
            m = [f"v_mfma_f32_32x32x16_bf16 {v(acc+16*cb,16)}, {v(G.BF+8*(sig%3)+4*cb,4)}, {A}, {0 if first else v(acc+16*cb,16)}" for cb in range(2)]
            if self.o["snk"] & 4 and sig & 1 and sig < 56: m = m[::-1]
            self.ts(f"c_s{sig}")
            if sig >= 56 and self.o["tl"]:
                for r in breads(sig + 2): ds(r, ("B", sig + 2))
                held.append((m[0], gw[8*(sig-47): 8*(sig-46)])); a(m[1]); continue
            a(m[0])
            if sig in done_at: lsig(G.vDW, 0, done_at[sig])
            if sig in need_prog: lcheck(G.vPW, 0, need_prog[sig], "ck")
            if sig == 44:
                lcheck(G.vPW, 16, 5, "ck")
                for q in range(4): ds(f"ds_write_b128 {v(G.vXC)}, {v(G.Y+16+4*q,4)} offset:{16384*GL+1024*q}", "yw")
                if not GL: lsig(G.vMF, 8, 1)
            if sig == 45 and GL:
                for q in range(4): ds(f"ds_write_b128 {v(G.vXC)}, {v(G.Y+4*q,4)} offset:{1024*q}", "yw")
                lsig(G.vMF, 8, 1)

            if sig == 47 and not GL: lcheck(G.vPF, 8, 1, "yr", yr)
            rd = breads(sig + 2) if not (self.o["e4"] & 2 and 8 <= sig < 40) else []
            nd = self.o["nd"]
            for r in rd[:nd]: ds(r, ("B", sig + 2))
            fill = []
            if 9 <= sig <= 14: fill = work[4*(sig-9): 4*(sig-8)]
            if sig == 16: fill = ["s_nop 0", f"v_mfma_f32_32x32x16_bf16 {v(G.Y,16)}, {v(BB,4)}, {v(BB+4,4)}, {v(G.Y,16)}"]
            if 47 <= sig <= 58: fill = gw[8*(sig-47): 8*(sig-46)]
            h = len(fill) // 2
            for f in fill[:h]: a(f)
            a(m[1])
            for r in rd[nd:]: ds(r, ("B", sig + 2))
            if sig + 1 in need_prog: lread(G.vPW, 0, "ck")
            if sig == 43: lread(G.vPW, 16, "ck")
            if sig == 55 and GL: lread(G.vPW, 0, "ck")
            if sig == 45 and not GL:
                lread(G.vPF, 8, "yr")
                for r in yr: ds(r, "yr")
            if sig == self.o["pf"]:
                vm.wait("pub"); a(f"buffer_store_dword v11, {v(G.vFL)}, {s(sWS,4)}, s27 offen sc1"); vm.issue("f"); self.ts("c_pflag")
            if F4:
                lvl = lambda k: sorted(gat).index(k) + 1
                if sig + 2 in gat: gcheck(gat[sig + 2]); lsig(G.vDW, 16, lvl(sig + 2))
                if sig + 1 in gat: lread(G.vPW, 32, "sn", G.vGF)
                if sig in gat: self.ts(f"c_gp{sig}"); lcheck(G.vPW, 32, lvl(sig), "sn", ck=G.vGF); self.ts(f"c_g{sig}")
            elif sig in gat: self.ts(f"c_gp{sig}"); gcheck(gat[sig]); self.ts(f"c_g{sig}")
            if not (self.o["e4"] & 1 and 8 <= sig + D < 43): aload(sig + D)
            if sig == 0: a(f"buffer_load_ushort {v(BB)}, v8, {s(sB2,4)}, 0 offen"); vm.issue("x")
            if sig == 15: vm.wait("x")
            ke = self.o["kearly"] or self.o["kpoll"] + 2 * F4
            if self.o["kearly"] and sig + self.o["kpoll"] in gat: gload(gat[sig + self.o["kpoll"]], G.vGB, "gb")
            if sig + ke in gat and (sig > 7 or not self.o["kearly"]):
                so = gat[sig + ke]
                if so == sC0: a(f"s_add_u32 {s(sC0)}, {s(sC0)}, {FG}")
                gload(so, G.vGF, "gf")
            for f in fill[h:]: a(f)
        for m0, f in held[:2]:
            a(m0)
            for x in f: a(x)
            if GL and m0 == held[0][0]:
                lcheck(G.vPW, 0, 7, "ck")
                for q in range(4): ds(f"ds_read_b128 {v(YK+4*q,4)}, {v(G.vXC)} offset:{32768+1024*q}", "g")
        self.ts("c_loop")
        for q in range(4): ds(f"ds_write_b128 {v(G.vXC)}, {v(G.S2+16+4*q,4)} offset:{SO+1024*q}", "sw")
        lsig(G.vMF, 12, 1)
        for m0, f in held[2:]:
            a(m0)
            for x in f: a(x)
        sr = [f"ds_read_b128 {v(T+4*q,4)}, {v(G.vXP)} offset:{SO+1024*q}" for q in range(4)]
        lread(G.vPF, 12, "sr")
        for r in sr: ds(r, "sr")
        lg.wait("g")
        for j in range(0, 16, 2): a(f"v_pk_fma_f32 {v(XX+j,2)}, {v(G.S2+j,2)}, {v(YK+j,2)}, {v(XX+j,2)}")
        lcheck(G.vPF, 12, 1, "sr", sr)
        for half in range(2):
            o = 8 * half; P = BB + 8 + 4 * half
            for j in range(0, 8, 2): a(f"v_pk_fma_f32 {v(XX+o+j,2)}, {v(T+o+j,2)}, {v(YK+o+j,2)}, {v(XX+o+j,2)}")
            for j in range(4): a(f"v_cvt_pk_bf16_f32 {v(P+j)}, {v(XX+o+2*j)}, {v(XX+o+2*j+1)}")
            a(f"v_permlane32_swap_b32 {v(P)}, {v(P+2)}\nv_permlane32_swap_b32 {v(P+1)}, {v(P+3)}")
            a(f"buffer_store_dwordx4 {v(P,4)}, {v(G.vOUT)}, {s(sOUT,4)}, 0 offen offset:{32*half} {['', 'sc1', 'nt', 'sc0 sc1', 'sc1 nt'][self.o['osc']]}")
        self.ts("c_end")
        self.ts_flush()

    def build(self):
        a = self.a
        self.prologue()
        self.compute_setup()
        self.typeA()
        if self.stop == "p1": self.ts_flush(); a("s_endpgm")
        else: a("s_branch L_phase2")
        a.label("L_typeB")
        self.typeB()
        if self.stop == "p1": self.ts_flush(); a("s_endpgm")
        else: self.phase2()
        a.label("L_end")
        a("s_endpgm")
        for t in self.tail: a(t)
        a("L_last:\ns_endpgm")
        body = a.finalize(verbose=True)
        head = open("cdna_kernels/" + KN[:-7] + ".s.ref").read().split("; Override launch")[0]
        return head + f"""; @launch grid=(256,1,1) block=(512,1,1) lds={LDS_SIZE}
;
; One persistent launch, one workgroup per CU: 4 compute waves (MFMA) + 4 loader waves (LDS-DMA / register staging).
; Phase 1, tile 128 rows x 3 panels of 64 columns, raw x resident in LDS, layer norm applied after the GEMM
;   (row mean / rstd are computed once per row and handed round; mean * column-sum and bias enter through one more MFMA):
;   type A workgroups: [K V] -> phi(k), kv / z partials -> [Q] -> sum of the 16 partials, o = num / den
;   type B workgroups: [F F] [F] -> gelu -> h
; Phase 2, tile 64 x 64: y = h @ w2 + b2, s = o @ wo, out = x + s * silu(y).
; Hand-offs go through d_ws with write-through stores and flag lines that carry a per-launch nonce (published in d_debug).
; Generated by gen/gen.py.
.amdgcn_target "amdgcn-amd-amdhsa--gfx950"
.text
.globl {KN}
.p2align 8
.type {KN},@function
{KN}:
{body}
.section .rodata,"a"
.p2align 6
.amdhsa_kernel {KN}
  .amdhsa_next_free_vgpr 256
  .amdhsa_next_free_sgpr 102
  .amdhsa_accum_offset 256
  .amdhsa_group_segment_fixed_size 0
  .amdhsa_kernarg_size 88
  .amdhsa_user_sgpr_count 2
  .amdhsa_user_sgpr_kernarg_segment_ptr 1
  .amdhsa_system_sgpr_workgroup_id_x 1
.end_amdhsa_kernel
"""

if __name__ == "__main__":
    import argparse
    ap = argparse.ArgumentParser()
    ap.add_argument("out"); ap.add_argument("--diag", nargs="?", const="rt"); ap.add_argument("--stop"); ap.add_argument("--dbgout", action="store_true"); ap.add_argument("--marks"); ap.add_argument("--opts"); ap.add_argument("--probe")
    x = ap.parse_args()
    open(x.out, "w").write(Gen(diag=x.diag, stop=x.stop, dbgout=x.dbgout, marks=x.marks, opts=x.opts, probe=x.probe).build())
```

```python
import sys, struct
from asmlib import Asm, v, s

KN = "recurrent_scan__linear_attn_block__dense_activation_gelu__prompt_kernel"
def f2u(x): return struct.unpack("<I", struct.pack("<f", x))[0]
def hx(x): return f"0x{x & 0xffffffff:08x}"
def fl(x): return hx(f2u(x))

WS_HO = 0
WS_KV = 24 << 20
WS_ST = 9 << 20
FS = 7
FG = 16 << FS
WS_FH = WS_KV + 0x80000
WS_FO = WS_FH + 96 * FG
WS_FK = WS_FO + 32 * FG
WS_DUM = 11 << 20
WS_TS = 12 << 20
WS_SIZE = 268435456
OOB = 0x80000000
WR = 131072
SCR = 155648
SC_NONCE = SCR
SC_FLAG = SCR + 64
SC_PROG = SC_FLAG + 64
SC_CS = SCR + 256
SC_R = SCR + 2048
SC_KVX = SCR + 3072
LDS_SIZE = 163840
NSLOT = 38
def b_lds(sig): return (sig % NSLOT) * 4096
XCH_Y = 21 * 4096
XT = 29 * 4096
ORDER = []
for p in range(3):
    for g in range(8):
        for ch in range(2):
            f = 6 * g + 2 * p + ch
            if f < 43: ORDER.append(("w2", f))
ORDER += [("wo", f) for f in range(16)]
assert len(ORDER) == 59
SIG0 = [0, 15, 29]
def pos_of(sig):
    st = 3 if sig >= 43 else 2 if sig >= 29 else 1 if sig >= 15 else 0
    j = sig - (SIG0 + [43])[st]
    return st, j >> 1, j & 1
def hoff(sig, lay=0):
    if not lay: return sig * 1024
    if lay == 2: return (sig >> 3) * 16384 + (sig & 7) * 1024
    par = int(sig >= 29); t = sig - 29 * par
    return (t >> 3) * 16384 + par * 8192 + (t & 7) * 1024
SPIN_MAX = 1 << 18

sX, sW, sW2, sWO, sWS, sDBG, sOUT, sB1, sB2 = 28, 32, 36, 40, 44, 48, 52, 56, 60
sWAVE, sI, sG, sTYPE, sHF, sCT, sKST, sRH, sCH, sNONCE, sSTR = 64, 65, 66, 67, 68, 69, 70, 71, 72, 73, 74
sT0, sT1, sT2, sT3, sT4, sT5 = 75, 76, 77, 78, 79, 80
sC0 = 81
sSPIN = 84
sM = 86
sLM = 60
sWD = 10
sP1, sP2, sP3, sP4 = 12, 13, 14, 15
sWB = 56
sTS = 88

class Cnt:
    def __init__(self, a, name, mx): self.a, self.name, self.mx, self.q = a, name, mx, []
    def issue(self, tag): self.q.append(tag)
    def wait(self, tag):
        if tag not in self.q: return
        k = len(self.q) - 1 - max(i for i, t in enumerate(self.q) if t == tag)
        k = min(k, self.mx)
        self.a(f"s_waitcnt {self.name}({k})")
        self.q = self.q[len(self.q) - k:] if k else []
    def wait_all(self):
        self.a(f"s_waitcnt {self.name}(0)"); self.q = []

class Gen:
    def __init__(self, diag=False, stop=None, dbgout=False, marks=None, opts=None, probe=None):
        self.probe = tuple(int(x) for x in probe.split(',')) if probe else None
        self.o = dict(cpf=5, wt=3, xe=1, w2t=4, t1=14, t2=1, pk=1, kpoll=4, D=8, asc=1, xl=1, mp=1, seg=0, fsc=0,
                      bud0=24, bud2=64, budA=30, nE=33, nL=4, pe0=14, nEA=35, nLA=21, pe0A=15, burst=16, fm=12, fmA=3, ga=20, gc=26, thr=0, fl=32, pre=1, chk=2, pf=5, g2h=3, lay=0, kfs=13, kfc=13, pqh=3, w2s=0, ld=1, t3=0, grp=1223, osc=0, kearly=0, psc=0, pw=0, r2=0, r2m=2, sw=0, sw0=1, sw1=9, swn=4, slp=0, prio=0, m0n=4, mint=3, tl=1, kpos=1, ofirst=0, bk=16, latp=-1, psh=2, pwg=-1, gateA=0, gateB=0, stg=0, e1=0, fs4=0, ow=0, owk=6, e4=0, nd=3, mw=1, gl=0, r2c=1, w7=0, w7s=2, n8=0, nlate=0, f1h=3, eb=1, lateA=0, lateB=0, e2=0, e5=0, snk=7, pku=0, fu=16, s128=0, m84=0, hsc=0)
        for kv in (opts or '').split(','):
            if kv: k, x = kv.split('='); assert k in self.o, k; self.o[k] = int(x)
        self.SS = 17 if self.o['lay'] == 2 else 16
        self.dbgout = dbgout; self.verbose = True
        self.marks = {"start": 0}
        for grp in (marks or "c_bar0,c_main,cA_q|cB_gelu,c_p0,c_loop,c_end;l_bar0,l_bar8,l_bland,l_p0,l_p3,l_end").split(";"):
            for k, nm in enumerate(grp.split(",")):
                for x in nm.split("|"): self.marks[x] = k + 1
        self.a = Asm(); self.diag = diag; self.stop = stop; self.uid = 0; self.tail = []
    def lab(self, n): self.uid += 1; return f"L{n}_{self.uid}"
    def ts(self, name):
        if not self.diag or name not in self.marks: return
        k = self.marks[name]
        if self.diag == "both":
            if k == 0: self.a(f"s_memrealtime {s(sTS, 2)}")
            elif k <= 3: self.a(f"s_memrealtime {s(sTS + 2 * k, 2)}\ns_memtime {s(sTS + 2 * k + 6, 2)}")
            return
        self.a(f"{'s_memtime' if self.diag == 'cyc' else 's_memrealtime'} {s(sTS + 2 * k, 2)}")
    def ts_flush(self):
        if not self.diag: return
        a = self.a
        if self.probe:
            pa, pb = self.probe
            L = self.lab("probe"); X = self.lab("probex")
            op = 's_memtime' if self.diag == 'cyc' else 's_memrealtime'
            a(f"s_cmp_ge_u32 {s(sWAVE)}, 4\ns_cbranch_scc1 {X}")
            if self.o["pwg"] >= 0: a(f"s_lshl_b32 {s(sT0)}, s2, 2\ns_add_u32 {s(sT0)}, {s(sT0)}, {s(sWAVE)}\ns_cmp_lg_u32 {s(sT0)}, {self.o['pwg']}\ns_cbranch_scc1 {X}")
            a(f"{op} {s(sM,2)}\ns_waitcnt lgkmcnt(0)")
            if pa < 0: a(f"s_mov_b32 {s(sT0)}, {pb}")
            else: a(f"s_sub_u32 {s(sT0)}, {s(sTS+2*pb)}, {s(sTS+2*pa)}\ns_lshl_b32 {s(sT0)}, {s(sT0)}, {self.o['psh']}")
            a(f"s_min_u32 {s(sT0)}, {s(sT0)}, 400000\ns_mov_b32 {s(sT1)}, {s(sM)}")
            a.label(L)
            a(f"{op} {s(sM,2)}\ns_waitcnt lgkmcnt(0)\ns_sub_u32 {s(sT2)}, {s(sM)}, {s(sT1)}\ns_cmp_lt_u32 {s(sT2)}, {s(sT0)}\ns_cbranch_scc1 {L}")
            a.label(X)
            return
        a("s_waitcnt lgkmcnt(0)")
        a(f"s_lshl_b32 {s(sT0)}, s2, 3\ns_add_u32 {s(sT0)}, {s(sT0)}, {s(sWAVE)}\ns_lshl_b32 {s(sT0)}, {s(sT0)}, 5\ns_add_u32 {s(sT0)}, {s(sT0)}, {WS_TS}")
        for k in range(7): a(f"v_mov_b32 v{8+k}, {s(sTS+2*k)}")
        a("v_mov_b32 v15, 0\nv_mov_b32 v7, 0")
        a("s_mov_b64 exec, 1")
        a(f"buffer_store_dwordx4 v[8:11], v7, {s(sWS,4)}, {s(sT0)} offen")
        a(f"buffer_store_dwordx4 v[12:15], v7, {s(sWS,4)}, {s(sT0)} offen offset:16")
        if self.dbgout:
            L = self.lab("dbgo")
            self.srd(sDBG, 22, 256)
            a(f"s_cmp_lg_u32 {s(sWAVE)}, 0\ns_cbranch_scc1 {L}\ns_and_b32 {s(sT0)}, s2, 0xdf\ns_cmp_lg_u32 {s(sT0)}, 0\ns_cbranch_scc1 {L}")
            for k in range(6, -1, -1): a(f"v_subrev_u32 v{8+k}, {s(sTS)}, v{8+k}")
            a(f"s_add_u32 {s(sT0)}, s2, 4")
            a(f"buffer_store_dwordx4 v[9:12], v7, {s(sDBG,4)}, {s(sT0)} offen".replace("v[9:12]", "v[8:11]"))
            a(f"buffer_store_dwordx3 v[12:14], v7, {s(sDBG,4)}, {s(sT0)} offen offset:16")
            a.label(L)
        a("s_mov_b64 exec, -1")

    def srd(self, d, ptr, size):
        self.a(f"s_mov_b32 {s(d)}, {s(ptr)}\ns_mov_b32 {s(d+1)}, {s(ptr+1)}\ns_mov_b32 {s(d+2)}, {size}\ns_mov_b32 {s(d+3)}, 0x00020000")

    def rot2(self, r7, r8, t):
        return (f"s_lshr_b32 {s(r8)}, s2, 6\ns_mul_i32 {s(r8)}, {s(r8)}, {self.o['r2m']}\ns_add_u32 {s(r8)}, {s(r8)}, {s(sCT) if self.o['r2c'] else 0}\n"
                f"s_mul_i32 {s(t)}, {s(r8)}, 37\ns_lshr_b32 {s(t)}, {s(t)}, 8\ns_mul_i32 {s(t)}, {s(t)}, 7\ns_sub_u32 {s(r7)}, {s(r8)}, {s(t)}\ns_and_b32 {s(r8)}, {s(r8)}, 7")
    def fload(self, r, va, so):
        k = self.o["psc"]
        if k == 4: return f"v_mov_b32 {v(r)}, 0\nbuffer_atomic_or {v(r)}, {v(va)}, {s(sWS,4)}, {s(so)} offen sc0 sc1"
        return f"buffer_load_dword {v(r)}, {v(va)}, {s(sWS,4)}, {s(so)} offen {['sc1', 'sc0 sc1', 'sc1 nt', 'sc0 sc1 nt'][k]}"
    def poll_text(self, vaddr, vtmp, soff, L, X):
        if self.o["mp"]:
            return (f"s_mov_b32 {s(sSPIN)}, 0\ns_mov_b64 exec, 0xffff\n{L}:\n"
                    f"{self.fload(vtmp, vaddr, soff)}\n"
                    f"s_add_u32 {s(sSPIN)}, {s(sSPIN)}, 1\ns_cmp_gt_u32 {s(sSPIN)}, {SPIN_MAX}\ns_waitcnt vmcnt(0)\ns_cbranch_scc1 {X}\n"
                    f"v_cmp_ne_u32 vcc, {s(sNONCE)}, {v(vtmp)}\ns_and_b64 exec, exec, vcc\ns_cbranch_execnz {L}\n{X}:\ns_mov_b64 exec, -1")
        return (f"s_mov_b32 {s(sSPIN)}, 0\n{L}:\n"
                f"{self.fload(vtmp, vaddr, soff)}\n"
                f"s_add_u32 {s(sSPIN)}, {s(sSPIN)}, 1\ns_cmp_gt_u32 {s(sSPIN)}, {SPIN_MAX}\ns_waitcnt vmcnt(0)\ns_cbranch_scc1 {X}\n"
                f"v_cmp_ne_u32 vcc, {s(sNONCE)}, {v(vtmp)}\ns_cbranch_vccnz {L}\n{X}:")
    def poll(self, vaddr, vtmp, soff):
        self.a(self.poll_text(vaddr, vtmp, soff, self.lab("poll"), self.lab("pollx")))

    def prologue(self):
        a = self.a
        a("s_cmp_ge_u32 s2, 256\ns_cbranch_scc1 L_end")
        a("s_load_dwordx16 s[4:19], s[0:1], 0\ns_load_dwordx4 s[20:23], s[0:1], 64\ns_load_dwordx2 s[24:25], s[0:1], 80")
        if self.diag:
            for k in range(1, 7): a(f"s_mov_b32 {s(sTS+2*k)}, 0")
        self.ts("start")
        if self.o["cpf"] >= 2:
            n = self.o["cpf"]
            a(f"s_getpc_b64 s[26:27]\nL_pc:\ns_bfe_u32 s3, s2, {0x30003 if n == 5 else 0x20003 if n == 10 else 0x10003}\ns_mul_i32 s3, s3, {8*n}\nv_lshrrev_b32 v3, 6, v0\nv_and_b32 v4, 63, v0\nv_min_u32 v4, {n-1}, v4\nv_mad_u32_u24 v3, v3, {n}, v4")
            a(f"v_add_lshl_u32 v3, v3, s3, 7\nv_min_u32 v3, L_last-L_pc, v3\nglobal_load_dword {v(self.vDUM)}, v3, s[26:27]")
        elif self.o["cpf"]:
            a(f"s_getpc_b64 s[26:27]\nL_pc:\nv_lshlrev_b32 v3, 7, v0\nv_min_u32 v3, L_last-L_pc, v3\nglobal_load_dword {v(self.vDUM)}, v3, s[26:27]")
        a("v_lshrrev_b32 v2, 6, v0\nv_and_b32 v1, 63, v0")
        a(f"s_and_b32 {s(sT0)}, s2, 3")
        a(f"v_readfirstlane_b32 {s(sWAVE)}, v2")
        a(f"s_bfe_u32 {s(sHF)}, s2, 0x10002")
        a(f"s_bfe_u32 {s(sCT)}, s2, 0x30003")
        a(f"s_lshr_b32 {s(sI)}, s2, 6\ns_lshl_b32 {s(sI)}, {s(sI)}, 2\ns_add_u32 {s(sI)}, {s(sI)}, {s(sT0)}")
        if self.o["m84"] == 2:
            a(f"s_and_b32 {s(sI)}, s2, 7\ns_lshl_b32 {s(sI)}, {s(sI)}, 1\ns_lshr_b32 {s(sT0)}, s2, 7\ns_add_u32 {s(sI)}, {s(sI)}, {s(sT0)}\ns_bfe_u32 {s(sHF)}, s2, 0x10006")
        if self.o["m84"] == 1:
            a(f"s_lshr_b32 {s(sI)}, s2, 5\ns_lshl_b32 {s(sI)}, {s(sI)}, 1\ns_and_b32 {s(sT0)}, s2, 1\ns_add_u32 {s(sI)}, {s(sI)}, {s(sT0)}")
            a(f"s_bfe_u32 {s(sTYPE)}, s2, 0x10004\ns_and_b32 {s(sG)}, s2, 6\ns_bfe_u32 {s(sT0)}, s2, 0x10003\ns_add_u32 {s(sG)}, {s(sG)}, {s(sT0)}")
            a(f"s_bfe_u32 {s(sCT)}, s2, 0x10001\ns_lshl_b32 {s(sCT)}, {s(sCT)}, 2\ns_bfe_u32 {s(sT0)}, s2, 0x20003\ns_add_u32 {s(sCT)}, {s(sCT)}, {s(sT0)}")
        elif self.o["seg"]: a(f"s_mov_b32 {s(sTYPE)}, {s(sHF)}\ns_mov_b32 {s(sG)}, {s(sCT)}")
        else:
            a(f"s_lshr_b32 {s(sTYPE)}, {s(sCT)}, 2")
            a(f"s_and_b32 {s(sG)}, {s(sCT)}, 3\ns_lshl_b32 {s(sT0)}, {s(sHF)}, 2\ns_add_u32 {s(sG)}, {s(sG)}, {s(sT0)}")
        a(f"s_lshl_b32 {s(sT0)}, {s(sG)}, 7\ns_mul_i32 {s(sT1)}, {s(sG)}, 384")
        a(f"s_add_u32 {s(sT2)}, {s(sT0)}, 1024\ns_add_u32 {s(sT3)}, {s(sT0)}, 2048\ns_add_u32 {s(sT4)}, {s(sT1)}, 128\ns_add_u32 {s(sT5)}, {s(sT1)}, 256")
        a(f"s_cmp_eq_u32 {s(sTYPE)}, 0")
        a(f"s_movk_i32 {s(sSTR)}, 2752\ns_cselect_b32 {s(sSTR)}, 3072, {s(sSTR)}")
        a(f"s_cselect_b32 {s(sC0)}, {s(sT2)}, {s(sT1)}\ns_cselect_b32 {s(sC0+1)}, {s(sT3)}, {s(sT4)}\ns_cselect_b32 {s(sC0+2)}, {s(sT0)}, {s(sT5)}")
        a(f"s_cmp_ge_u32 {s(sWAVE)}, 4\ns_cbranch_scc1 L_loader")

    def loader(self):
        a = self.a
        vX, vW, vB, vP, vT, vL, PARK = 10, 14, 20, 21, 22, 24, 32
        sWK, sKX, sKW, sXB, sF = 85, 26, 27, 3, sT5
        a.label("L_loader")
        if self.o["prio"] == 2: a("s_setprio 1")
        a(f"s_and_b32 {s(sWK)}, {s(sWAVE)}, 3")
        a("v_lshrrev_b32 v2, 3, v1\nv_and_b32 v3, 7, v1\nv_lshrrev_b32 v4, 4, v1")
        a(f"s_and_b32 {s(sT0)}, {s(sWK)}, 1\ns_lshl_b32 {s(sT0)}, {s(sT0)}, 2\ns_lshl_b32 {s(sT1)}, {s(sWK)}, 3")
        a(f"v_add_u32 v5, {s(sT0)}, v4\nv_xor_b32 v5, v3, v5\nv_lshlrev_b32 v5, 4, v5")
        a(f"v_add_u32 v6, {s(sT1)}, v2")
        a(f"v_lshl_add_u32 {v(vX)}, v6, 10, v5")
        for m in range(1, 4): a(f"v_add_u32 {v(vX+m)}, {m*32768}, {v(vX)}")
        a("v_and_b32 v7, 1, v4\nv_lshlrev_b32 v7, 2, v7\nv_xor_b32 v7, v3, v7\nv_lshlrev_b32 v7, 4, v7")
        a(f"v_mul_u32_u24 v8, {s(sSTR)}, v6")
        a(f"s_lshl_b32 {s(sT2)}, {s(sSTR)}, 5\nv_mov_b32 v2, {hx(OOB)}")
        for p in range(3):
            a(f"v_add_u32 v9, {s(sC0+p)}, v7\nv_cmp_gt_u32 vcc, {s(sSTR)}, v9\nv_add_u32 v9, v8, v9\nv_add_u32 v3, {s(sT2)}, v9")
            a(f"v_cndmask_b32 {v(vW+2*p)}, v2, v9, vcc\nv_cndmask_b32 {v(vW+2*p+1)}, v2, v3, vcc")
        a(f"s_lshl_b32 {s(sWK)}, {s(sWK)}, 10\ns_lshl_b32 {s(sXB)}, {s(sI)}, 17\ns_lshl_b32 {s(sT3)}, {s(sSTR)}, 5")
        self.ts("l_pre")
        a("s_waitcnt lgkmcnt(0)")
        self.srd(sX, 4, 2097152)
        a(f"s_lshl_b32 {s(sW+2)}, {s(sSTR)}, 9\ns_mov_b32 {s(sW+3)}, 0x00020000\ns_cmp_eq_u32 {s(sTYPE)}, 0")
        a(f"s_cselect_b32 {s(sW)}, s6, s12\ns_cselect_b32 {s(sW+1)}, s7, s13")
        self.ts("l_karg")
        vm = Cnt(a, "vmcnt", 63)
        def bsrc(sig):
            mat, f = ORDER[sig]; st, j2, ch = pos_of(sig)
            if not self.o["r2"] or sig == 14: a(f"s_mov_b32 {s(sF)}, {f*32768}")
            elif st < 3: a(f"s_add_u32 {s(sF)}, {s(4+j2)}, {(2*st+ch)*32768}")
            else: a(f"s_add_u32 {s(sF)}, {s(11+j2)}, {ch*32768}")
            return s(sW2 if mat == 'w2' else sWO, 4)
        gs = [int(c) for c in str(self.o["grp"])]; assert sum(gs) == 8
        grp_of = [(sum(gs[:n]), gs[n]) for n in range(len(gs)) for _ in range(gs[n])]
        rot = lambda pos: grp_of[pos][1] > 1
        sK0 = 56
        def ktable(lo, hi):
            for pos in range(lo, hi):
                g0, n = grp_of[pos]
                if n == 1: continue
                if pos == g0:
                    a(f"s_lshr_b32 {s(sT1)}, s2, {(6, 5, 7)[self.o['m84']]}\ns_mul_i32 {s(sT1)}, {s(sT1)}, {max(1, (n+1)//4)}\ns_add_u32 {s(sT1)}, {s(sT1)}, {s(sCT)}")
                    a(f"s_mul_i32 {s(sT0)}, {s(sT1)}, {-(-256//n)}\ns_lshr_b32 {s(sT0)}, {s(sT0)}, 8\ns_mul_i32 {s(sT0)}, {s(sT0)}, {n}\ns_sub_u32 {s(sT1)}, {s(sT1)}, {s(sT0)}\ns_add_u32 {s(sK0+pos)}, {s(sT1)}, {g0}")
                else:
                    a(f"s_add_u32 {s(sK0+pos)}, {s(sK0+pos-1)}, 1\ns_cmp_eq_u32 {s(sK0+pos)}, {g0+n}\ns_cselect_b32 {s(sK0+pos)}, {g0}, {s(sK0+pos)}")
        def wst(st, reg=False):
            pos = st // 2 if st < 16 else st - 16
            if rot(pos):
                a(f"s_lshl_b32 {s(sKW)}, {s(sK0+pos)}, 1" + (f"\ns_add_u32 {s(sKW)}, {s(sKW)}, 1" if st < 16 and st & 1 else "") + f"\ns_mul_i32 {s(sKW)}, {s(sKW)}, {s(sT3)}")
            else: a(f"s_mul_i32 {s(sKW)}, {s(sT3)}, {st if st < 16 else 2*(st-16)}")
            for m in range(2):
                if reg:
                    a(f"buffer_load_dwordx4 {v(224 + 8*(st % 4) + 4*m, 4)}, {v(vW + (2*m if st < 16 else 4+m))}, {s(sW,4)}, {s(sKW)} offen"); vm.issue(("R", st))
                    continue
                a(f"s_add_u32 m0, {s(sWK)}, {WR + (st % 3)*8192 + m*4096}")
                a(f"buffer_load_dwordx4 {v(vW + (2*m if st < 16 else 4+m))}, {s(sW,4)}, {s(sKW)} offen lds"); vm.issue(("S", st))
        STG = self.o["stg"]
        def feed(k):
            if self.o["e1"] == 2 and 1 < k < 14: return
            if not STG: wst(k + 2); xpair(k + 3); return
            if k == 0: wst(2); xpair(3); wst(3, True); xpair(4)
            if k + 4 <= STG: wst(k + 4, True)
            if STG < k + 2 < 24: wst(k + 2)
            xpair(k + 5)
            if 3 <= k + 2 <= STG:
                vm.wait(("R", k + 2))
                for m in range(2): a(f"ds_write_b128 {v(vL+2)}, {v(224 + 8*((k+2) % 4) + 4*m, 4)} offset:{WR - 131072 + ((k+2) % 3)*8192 + m*4096}")
        def ready(k):
            if self.o["e1"] and 2 < k < 16: return
            vm.wait(("S", k))
            if 3 <= k <= STG: a(f"s_waitcnt lgkmcnt({2 if k + 1 <= STG else 0})")
        def xpair(n):
            k = n >> 1
            if k >= 8: return
            if rot(k): a(f"s_lshl_b32 {s(sKX)}, {s(sK0+k)}, 7\ns_add_u32 {s(sKX)}, {s(sKX)}, {s(sXB)}")
            else: a(f"s_add_u32 {s(sKX)}, {s(sXB)}, {128*k}")
            for mm in (2*(n & 1), 2*(n & 1) + 1):
                a(f"s_add_u32 m0, {s(sWK)}, {k*16384 + mm*4096}")
                a(f"buffer_load_dwordx4 {v(vX+mm)}, {s(sX,4)}, {s(sKX)} offen lds"); vm.issue(("S", 2*k))
        st_ = dict(nE=0)
        preg = lambda sig: PARK + 4*sig if sig < st_["nE"] else PARK + 4*(st_["nE"] + sig - NSLOT)
        def bstep(sig):
            a(f"s_add_u32 m0, {s(sWK)}, {b_lds(sig)}")
            srd = bsrc(sig)
            a(f"buffer_load_dwordx4 {v(vB)}, {srd}, {s(sF)} offen lds"); vm.issue(("B", sig))
        def park(sig):
            srd = bsrc(sig)
            a(f"buffer_load_dwordx4 {v(preg(sig),4)}, {v(vB)}, {srd}, {s(sF)} offen"); vm.issue(("B", sig))
        def put(sig):
            base = b_lds(sig); w = base >> 16
            a(f"ds_write_b128 {v(vL+w)}, {v(preg(sig),4)} offset:{base-65536*w}")
        if self.o["ld"]: a("s_barrier")
        ktable(0, 1); wst(0); xpair(0); xpair(1); self.ts("l_s0"); wst(1); ktable(1, 8); xpair(2); self.ts("l_s2")
        vPG, vDN = 28, 29
        self.srd(sW2, 16, 1409024); self.srd(sWO, 8, 524288); self.srd(sWS, 24, WS_SIZE)
        if self.o["r2"]:
            a(self.rot2(sT0, sT1, sT2))
            for base, n, r, step in ((4, 7, sT0, 6*32768), (11, 8, sT1, 2*32768)):
                a(f"s_mul_i32 {s(base)}, {s(r)}, {step}")
                for j in range(1, n): a(f"s_add_u32 {s(base+j)}, {s(base+j-1)}, {step}\ns_cmp_eq_u32 {s(base+j)}, {n*step}\ns_cselect_b32 {s(base+j)}, 0, {s(base+j)}")
        a(f"s_lshl_b32 {s(sT0)}, {s(sCT)}, 7\nv_lshl_add_u32 {v(vB)}, v6, 10, v7\nv_add_u32 {v(vB)}, {s(sT0)}, {v(vB)}")
        a(f"v_lshl_add_u32 {v(vL)}, v1, 4, {s(sWK)}\nv_add_u32 {v(vL+1)}, 65536, {v(vL)}\nv_add_u32 {v(vL+2)}, 131072, {v(vL)}")
        a(f"s_lshr_b32 {s(sT0)}, {s(sWK)}, 8\ns_add_u32 {s(sT0)}, {s(sT0)}, {SC_PROG}\nv_mov_b32 {v(vPG)}, {s(sT0)}")
        a(f"v_and_b32 {v(vDN)}, 3, v1\nv_lshlrev_b32 {v(vDN)}, 2, {v(vDN)}\nv_add_u32 {v(vDN)}, {SC_PROG+16}, {v(vDN)}")
        def prog(lv): a(f"v_mov_b32 {v(vT)}, {lv}\nds_write_b32 {v(vPG)}, {v(vT)}")
        sw = self.o["sw"]; tq = [[], []]
        if sw:
            assert not self.o["r2"]
            a(f"s_lshr_b32 {s(sT1)}, {s(sWK)}, 10\ns_lshl_b32 {s(sT0)}, s2, 2\ns_add_u32 {s(sT0)}, {s(sT0)}, {s(sT1)}")
            a(f"s_mul_i32 {s(sT2)}, {s(sT0)}, 1376\ns_add_u32 s10, s16, {s(sT2)}\ns_addc_u32 s11, s17, 0\ns_lshl_b32 {s(sT2)}, {s(sT0)}, 9\ns_add_u32 s12, s8, {s(sT2)}\ns_addc_u32 s13, s9, 0")
            a(f"s_lshr_b32 {s(sT0)}, s2, 3\ns_mul_i32 {s(sT2)}, {s(sT1)}, 11\ns_min_u32 {s(sT2)}, {s(sT2)}, 32\ns_mul_i32 s14, {s(sT0)}, 43\ns_add_u32 {s(sT2)}, {s(sT2)}, s14\ns_lshl_b32 {s(sT2)}, {s(sT2)}, 10\ns_add_u32 s14, s16, {s(sT2)}\ns_addc_u32 s15, s17, 0")
            a(f"s_lshl_b32 {s(sT0)}, {s(sT0)}, 2\ns_add_u32 {s(sT0)}, {s(sT0)}, {s(sT1)}\ns_lshl_b32 {s(sT0)}, {s(sT0)}, 12\ns_add_u32 s18, s8, {s(sT0)}\ns_addc_u32 s19, s9, 0")
            if sw & 1: tq[0] = [f"s_load_dword s20, s[10:11], {64*u}" for u in range(22)] + [f"s_load_dword s20, s[12:13], {64*u}" for u in range(8)]
            if sw & 2: tq[1] = [f"s_load_dword s20, s[14:15], {1024*r + 384 + u}" for r in range(11) for u in (0, 64)] + [f"s_load_dword s20, s[18:19], {1024*r + 384 + u}" for r in range(4) for u in (0, 64)]
        def touch(k, tq):
            for j in range(2):
                if k >= self.o[f"sw{j}"]:
                    for x in tq[j][:self.o["swn"]]: a(x)
                    tq[j] = tq[j][self.o["swn"]:]
        N = 24; KS = 12
        for k in range(KS):
            ready(k); self.ts(f"l_land{k}"); a("s_barrier"); self.ts(f"l_bar{k}")
            feed(k); touch(k, tq)
            if self.o["ow"] and k == self.o["owk"]:
                self.srd(sOUT, 20, 2097152)
                a(f"s_lshl_b32 {s(sT0)}, {s(sI)}, 1\ns_add_u32 {s(sT0)}, {s(sT0)}, {s(sHF)}\ns_lshl_b32 {s(sT0)}, {s(sT0)}, 16\ns_lshl_b32 {s(sT1)}, {s(sCT)}, 7\ns_add_u32 {s(sT0)}, {s(sT0)}, {s(sT1)}")
                for m in range(2):
                    if self.o["ow"] == 1: a(f"buffer_store_dwordx4 v[4:7], {v(vX+m)}, {s(sOUT,4)}, {s(sT0)} offen")
                    else: a(f"buffer_load_dwordx4 v[32:35], {v(vX+m)}, {s(sOUT,4)}, {s(sT0)} offen")
                    vm.issue("ow")
        a(f"s_cmp_eq_u32 {s(sTYPE)}, 0\ns_cbranch_scc0 L_loadB")
        q0 = list(vm.q)
        for typ in "AB":
            if typ == "B": a.label("L_loadB")
            tq2 = [list(x) for x in tq]
            vm.q = list(q0); sfx = "A" if typ == "A" else ""
            nE, nL, pe0 = (self.o[x + sfx] for x in ("nE", "nL", "pe0")); burst = self.o["burst"] if typ == "A" else 0
            assert nE <= 35 and pe0 >= KS; st_["nE"] = nE
            early = list(range(nE)) + list(range(NSLOT, NSLOT + nL)); nxt = 0
            for k in range(KS, N):
                ready(k); self.ts(f"l_land{k}"); a("s_barrier"); self.ts(f"l_bar{k}")
                if k + 2 < N: feed(k)
                touch(k, tq2)
                if k >= pe0:
                    while nxt < -(-(len(early) - burst) * (k + 1 - pe0) // (N - pe0)) + (burst if k >= self.o['bk'] else 0): assert preg(early[nxt]) < 224 or k > STG or not STG; park(early[nxt]); nxt += 1
            a("s_barrier")
            self.ts("l_barN")
            assert nxt == len(early)
            def done(lv):
                L = self.lab("dw"); X = self.lab("dwx")
                a(f"s_mov_b32 {s(sSPIN)}, 0")
                a.label(L)
                if self.o["slp"]: a(f"s_sleep {self.o['slp']}")
                a(f"ds_read_b32 {v(vP)}, {v(vDN)}\ns_add_u32 {s(sSPIN)}, {s(sSPIN)}, 1\ns_cmp_gt_u32 {s(sSPIN)}, {SPIN_MAX*8}\ns_waitcnt lgkmcnt(0)\ns_cbranch_scc1 {X}")
                a(f"v_cmp_gt_u32 vcc, {lv}, {v(vP)}\ns_cbranch_vccnz {L}")
                a.label(X)
            gate = self.o['gate' + typ]
            late = self.o["late" + typ]; todo = [x for x in range(NSLOT if late else 59) if x not in early]; lvl = [(7, 1), (22, 2), (37, 3)]
            def more(n):
                for _ in range(n):
                    if todo:
                        sig = todo.pop(0)
                        bstep(sig) if sig < NSLOT else park(sig)
                        if self.o["thr"] and len(vm.q) > self.o["thr"]: vm.wait(vm.q[-1 - self.o["thr"]])
            thr_ = self.o['thr']; self.o['thr'] = 0; more(0 if gate else self.o['m0n'])
            for sig in range(nE):
                vm.wait(("B", sig)); put(sig)
                if lvl and sig == lvl[0][0]: prog(lvl.pop(0)[1])
                if not gate and self.o['mint'] and sig % self.o['mint'] == self.o['mint'] - 1: more(1)
            self.o['thr'] = thr_
            self.ts("l_put")
            if gate and self.stop != "p1": done(1)
            while todo:
                more(1)
                if lvl and todo and todo[0] >= lvl[0][0] + 7: vm.wait(("B", lvl[0][0])); prog(lvl.pop(0)[1])
            for sg, lv in lvl: vm.wait(("B", sg)); prog(lv)
            self.ts("l_bissue")
            if self.stop == "p1":
                vm.wait_all(); self.ts_flush(); a("s_endpgm"); continue
            for lv, (lo, hi) in enumerate(((38, 45), (45, 55), (55, 59))):
                vm.wait(("B", hi - 1))
                if lv == 2: self.ts("l_bland")
                done(lv + 2)
                for sig in range(lo, hi):
                    if late and sig not in early: bstep(sig)
                    else: put(sig)
                if late: vm.wait_all()
                prog(4 + lv)
                self.ts(f"l_ref{lv}")
            if self.o["gl"]:
                Y0, Y1, vY, vYP = 32, 48, 30, 31
                a(f"s_lshl_b32 {s(sT0)}, {s(sWK)}, 2\ns_add_u32 {s(sT0)}, {s(sT0)}, {XCH_Y}\nv_lshl_add_u32 {v(vY)}, v1, 4, {s(sT0)}")
                a(f"s_lshl_b32 {s(sT0)}, {s(sWK)}, 2\ns_xor_b32 {s(sT0)}, {s(sT0)}, 4096\ns_add_u32 {s(sT0)}, {s(sT0)}, {XCH_Y}\nv_lshl_add_u32 {v(vYP)}, v1, 4, {s(sT0)}")
                a(f"s_lshr_b32 {s(sT0)}, {s(sWK)}, 6\ns_and_b32 {s(sT0)}, {s(sT0)}, 32\ns_add_u32 {s(sT0)}, {s(sT0)}, {SC_FLAG+8}\nv_and_b32 {v(vDN)}, 1, v1\nv_lshl_add_u32 {v(vDN)}, {v(vDN)}, 4, {s(sT0)}")
                done(1)
                for q in range(4): a(f"ds_read_b128 {v(Y0+4*q,4)}, {v(vY)} offset:{1024*q}\nds_read_b128 {v(Y1+4*q,4)}, {v(vYP)} offset:{16384+1024*q}")
                for half in range(2):
                    o = 8 * half
                    a(f"s_waitcnt lgkmcnt({4-4*half})")
                    for j in range(8): a(f"v_add_f32 {v(Y0+o+j)}, {v(Y0+o+j)}, {v(Y1+o+j)}")
                    for j in range(8): a(f"v_mul_f32 {v(Y1+o+j)}, {fl(-1.4426950408889634)}, {v(Y0+o+j)}")
                    for j in range(8): a(f"v_exp_f32 {v(Y1+o+j)}, {v(Y1+o+j)}")
                    for j in range(8): a(f"v_add_f32 {v(Y1+o+j)}, 1.0, {v(Y1+o+j)}")
                    for j in range(8): a(f"v_rcp_f32 {v(Y1+o+j)}, {v(Y1+o+j)}")
                    for j in range(8): a(f"v_mul_f32 {v(Y0+o+j)}, {v(Y0+o+j)}, {v(Y1+o+j)}")
                for q in range(4): a(f"ds_write_b128 {v(vY)}, {v(Y0+4*q,4)} offset:{32768+1024*q}")
                prog(7)
            a("s_waitcnt lgkmcnt(0)")
            self.ts("l_end")
            self.ts_flush()
            a("s_endpgm")

    ACC = 160
    SEL = 64
    CSM = dict(A=(68, 72, 68), B=(68, 72, 90))
    vXA, vXB, vWE, vWO = 76, 80, 84, 87
    GR = 90
    vCW, vCR = 94, 95
    vT0, vT1, vT2 = 97, 98, 99
    SG = 100
    IDN = 108
    B1 = 108
    XS = 112
    GC = 120
    vSTA, vSTG, vNZ, vDUM = 124, 125, 126, 127
    vFL = 7
    TMP = 128
    FX = 152
    KVA = 16
    def acc(self, p, rb): return self.ACC + 32 * p + 16 * rb

    def it(self, text):
        cost = 0
        for ln in text.split("\n"):
            op = ln.split()[0]
            if op.endswith(":"): continue
            cost += 32 if op.startswith("v_mfma") else 8 if op in ("v_exp_f32", "v_rcp_f32", "v_rsq_f32") else 5 if (op.startswith(("ds_", "buffer_", "v_fma_", "v_cvt_pk", "v_cndmask", "v_lshl_add")) or "0x" in ln) else 4
        return (cost, lambda: self.a(text))
    def its(self, lst): return [self.it(x) for x in lst]
    def vmi(self, text, tag): return (6, lambda: (self.a(text), self.vm.issue(tag)))
    def vmw(self, tag): return (4, lambda: self.vm.wait(tag))
    def tsi(self, name): return (0, lambda: self.ts(name))
    def flush(self, q):
        while q:
            x = q.pop(0)
            if x == "NEXT": self.a("s_waitcnt lgkmcnt(0)")
            elif x == "BAR": raise RuntimeError("barrier marker left over")
            elif x[0] == "GI": continue
            else: x[1]()

    def compute_setup(self):
        a = self.a; G = self; T = G.TMP
        if self.o["prio"] == 1: a("s_setprio 1")
        self.vm = vm = Cnt(a, "vmcnt", 63)
        a(f"s_bfe_u32 {s(sRH)}, {s(sWAVE)}, 0x10001\ns_and_b32 {s(sCH)}, {s(sWAVE)}, 1")
        a("v_and_b32 v2, 31, v1\nv_lshrrev_b32 v3, 5, v1\nv_lshrrev_b32 v4, 4, v1\nv_and_b32 v5, 15, v1")
        a(f"v_mov_b32 {v(G.vNZ)}, 0")
        a(f"s_lshl_b32 {s(sT0)}, {s(sHF)}, 3\ns_add_u32 {s(sT0)}, {s(sT0)}, {s(sCT)}\ns_lshl_b32 {s(sT0)}, {s(sT0)}, 3")
        a(f"s_lshl_b32 {s(sT1)}, {s(sI)}, 7\ns_add_u32 {s(sT0)}, {s(sT0)}, {s(sT1)}\ns_lshl_b32 {s(sT2)}, {s(sWAVE)}, 1\ns_add_u32 {s(sT0)}, {s(sT0)}, {s(sT2)}")
        a(f"v_add_u32 v6, {s(sT0)}, v3\nv_lshlrev_b32 v11, 4, v2\nv_lshl_add_u32 v11, v6, 10, v11")
        a(f"s_lshl_b32 {s(sT2)}, {s(sI)}, 3\ns_add_u32 {s(sT2)}, {s(sT2)}, {s(sG)}\ns_lshl_b32 {s(sT3)}, {s(sSTR)}, 2\ns_mul_i32 {s(sT2)}, {s(sT2)}, {s(sT3)}\ns_sub_u32 {s(sT3)}, {s(sT3)}, 4")
        a(f"s_mul_i32 {s(sT4)}, {s(sWAVE)}, 24\nv_min_u32 v12, 23, v1\nv_add_lshl_u32 v12, v12, {s(sT4)}, 7\nv_min_u32 v12, {s(sT3)}, v12\nv_add_u32 {v(G.vT0)}, {s(sT2)}, v12")
        a(f"s_lshl_b32 {s(sW+2)}, {s(sSTR)}, 9\ns_mov_b32 {s(sW+3)}, 0x00020000\ns_cmp_eq_u32 {s(sTYPE)}, 0\ns_waitcnt lgkmcnt(0)")
        self.ts("c_karg")
        a(f"s_cselect_b32 {s(sW)}, s6, s12\ns_cselect_b32 {s(sW+1)}, s7, s13")
        self.srd(sX, 4, 2097152)
        if self.o["latp"] >= 0:
            self.srd(sOUT, 4 + 2*self.o["latp"], 524288)
            a(f"s_lshl_b32 {s(sT4)}, s2, 2\ns_add_u32 {s(sT4)}, {s(sT4)}, {s(sWAVE)}\ns_lshl_b32 {s(sT4)}, {s(sT4)}, 9\nv_mov_b32 v12, 0")
            a("s_waitcnt vmcnt(0)"); self.ts("c_l0"); a("s_waitcnt lgkmcnt(0)")
            a(f"buffer_load_dword v13, v12, {s(sOUT,4)}, {s(sT4)} offen\ns_waitcnt vmcnt(0)")
            self.ts("c_l1")
        def xs():
            a(f"buffer_load_dwordx4 {v(T,4)}, v11, {s(sX,4)}, 0 offen\nbuffer_load_dwordx4 {v(T+4,4)}, v11, {s(sX,4)}, 0 offen offset:512"); vm.issue("xs"); vm.issue("xs")
        if self.o["xe"]: xs()
        if self.o["wt"] == 3: a(f"buffer_load_dword {v(G.vDUM)}, {v(G.vT0)}, {s(sW,4)}, 0 offen"); vm.issue("t")
        if self.o["ld"]: a("s_barrier")
        L = self.lab("non")
        a(f"s_lshr_b32 {s(sT3)}, s2, {3 if self.o['n8'] else 0}\ns_or_b32 {s(sT3)}, {s(sT3)}, {s(sWAVE)}\ns_cmp_lg_u32 {s(sT3)}, 0\ns_cbranch_scc1 {L}")
        a(f"s_memrealtime {s(sM,2)}\ns_waitcnt lgkmcnt(0)")
        self.srd(sDBG, 22, 256)
        a(f"s_or_b32 {s(sT3)}, {s(sM)}, 1\nv_mov_b32 v8, {s(sT3)}\ns_mov_b64 exec, 1")
        if self.o["n8"]: a(f"v_mov_b32 v9, 0\nbuffer_atomic_cmpswap v[8:9], {v(G.vNZ)}, {s(sDBG,4)}, 0 offen sc1\ns_mov_b64 exec, -1")
        else: a(f"buffer_store_dword v8, {v(G.vNZ)}, {s(sDBG,4)}, 0 offen sc1\ns_mov_b64 exec, -1")
        a.label(L)
        a("s_branch L_compute")
        self.loader()
        a.label("L_compute")
        a(f"v_lshlrev_b32 v8, 4, v3\nv_lshl_add_u32 v8, v2, 5, v8\ns_lshl_b32 {s(sT0)}, {s(sT0)}, {5+self.o['s128']}\nv_add_u32 v8, {s(sT0)}, v8\nv_mov_b32 v9, {hx(OOB)}\nv_cmp_gt_u32 vcc, {2 << self.o['s128']}, v2\nv_add_u32 v8, {WS_ST}, v8\nv_cndmask_b32 {v(G.vSTA)}, v9, v8, vcc")
        a(f"v_cmp_gt_u32 vcc, {self.o['fl']}, v1\nv_lshlrev_b32 v8, 2, v1\nv_cndmask_b32 {v(G.vFL)}, v9, v8, vcc")
        a(f"s_lshl_b32 {s(sT2)}, {s(sRH)}, 6\ns_add_u32 {s(sT1)}, {s(sT1)}, {s(sT2)}\nv_add_u32 v8, {s(sT1)}, v2\nv_and_b32 v10, 1, v8\nv_lshlrev_b32 v8, {5+self.o['s128']}, v8\nv_mul_u32_u24 v10, {48 if self.o['s128'] else 16}, v10\nv_sub_u32 v8, v8, v10\nv_add_u32 {v(G.vSTG)}, {WS_ST}, v8")
        a("v_bfe_u32 v8, v1, 1, 3")
        a(f"s_lshl_b32 {s(sT2)}, {s(sRH)}, 13\nv_lshl_add_u32 v9, v2, 7, {s(sT2)}")
        for tau in range(4):
            a(f"s_xor_b32 {s(sT3)}, {s(sRH)}, {tau}\ns_lshl_b32 {s(sT3)}, {s(sT3)}, 1")
            a(f"v_add_u32 v10, {s(sT3)}, v3\nv_xor_b32 v10, v10, v8\nv_lshl_add_u32 {v(G.vXA+tau)}, v10, 4, v9\nv_add_u32 {v(G.vXB+tau)}, 65536, {v(G.vXA+tau)}")
        a("v_lshrrev_b32 v8, 2, v5\nv_lshl_add_u32 v8, v3, 3, v8\nv_lshlrev_b32 v8, 7, v8")
        a("v_and_b32 v9, 1, v4\nv_lshlrev_b32 v9, 1, v9\nv_bfe_u32 v10, v5, 1, 1\nv_add_u32 v9, v9, v10")
        a("v_lshrrev_b32 v10, 3, v5\nv_lshlrev_b32 v10, 2, v10\nv_xor_b32 v9, v9, v10")
        a("v_and_b32 v10, 1, v5\nv_lshlrev_b32 v10, 3, v10\nv_add_u32 v8, v8, v10")
        a(f"s_xor_b32 {s(sT3)}, {s(sTYPE)}, 1\ns_and_b32 {s(sT3)}, {s(sT3)}, {s(sRH)}\ns_lshl_b32 {s(sT3)}, {s(sT3)}, 1")
        a(f"s_lshl_b32 {s(sT2)}, {s(sCH)}, 2\ns_or_b32 {s(sT2)}, {s(sT2)}, {s(sT3)}\nv_xor_b32 v10, {s(sT2)}, v9\nv_lshl_add_u32 v10, v10, 4, v8")
        a(f"s_lshl_b32 {s(sT2)}, {s(sRH)}, 11")
        for sl in range(3):
            a(f"s_add_u32 {s(sT4)}, {s(sT2)}, {WR+8192*sl}\ns_sub_u32 {s(sT5)}, {WR+8192*sl}, {s(sT2)}")
            a(f"v_add_u32 {v(G.vWE+sl)}, {s(sT4)}, v10\nv_add_u32 {v(G.vWO+sl)}, {s(sT5)}, v10")
        a(f"v_lshrrev_b32 v8, 2, v5\nv_xor_b32 v8, v8, v4\nv_and_b32 v8, 1, v8\nv_cmp_eq_u32 vcc, 0, v8\nv_mov_b32 v9, 0x3f803f80")
        for q in range(4): a(f"v_cndmask_b32 {v(G.SEL+q)}, 0, v9, vcc")
        a(f"s_mul_i32 {s(sT0)}, {s(sWAVE)}, 384\ns_add_u32 {s(sT0)}, {s(sT0)}, {SC_CS}\nv_lshl_add_u32 {v(G.vCW)}, v2, 2, {s(sT0)}")
        a(f"s_xor_b32 {s(sT0)}, {s(sWAVE)}, 2\ns_mul_i32 {s(sT0)}, {s(sT0)}, 384\ns_add_u32 {s(sT0)}, {s(sT0)}, {SC_CS}\ns_xor_b32 {s(sT1)}, {s(sTYPE)}, 1\ns_lshl_b32 {s(sT1)}, {s(sT1)}, 4")
        a(f"v_xor_b32 v8, {s(sT1)}, v2\nv_lshl_add_u32 {v(G.vCR)}, v8, 2, {s(sT0)}")
        a(f"v_lshlrev_b32 v8, 2, v2\nv_add_u32 v8, {SC_FLAG}, v8\nds_write_b32 v8, {v(G.vNZ)}")
        if self.o["wt"] == 2: a(f"buffer_load_dword {v(G.vDUM)}, {v(G.vT0)}, {s(sW,4)}, 0 offen"); vm.issue("t")
        X = self.lab("vwx")
        a(f"v_mov_b32 {v(G.vT1)}, {hx(OOB)}\nv_mov_b32 {v(G.vT2)}, {hx(OOB)}\ns_cmp_lt_u32 {s(sWAVE)}, 2\ns_cbranch_scc1 {X}")
        a(f"s_cmp_eq_u32 {s(sWAVE)}, 2")
        a(f"s_cselect_b32 {s(sW)}, s16, s8\ns_cselect_b32 {s(sW+1)}, s17, s9\ns_movk_i32 {s(sT3)}, 2048\ns_cselect_b32 {s(sT3)}, 5504, {s(sT3)}")
        a(f"s_lshl_b32 {s(sW+2)}, {s(sT3)}, 8\ns_mul_i32 {s(sT2)}, s2, {s(sT3)}\ns_sub_u32 {s(sT3)}, {s(sT3)}, 4")
        a(f"v_lshlrev_b32 v12, 7, v1\nv_min_u32 v12, {s(sT3)}, v12\nv_add_u32 {v(G.vT1)}, {s(sT2)}, v12")
        a(f"s_cmp_eq_u32 {s(sWAVE)}, 2\ns_cselect_b32 {s(sT3)}, 43, 16\ns_lshr_b32 {s(sT2)}, s2, 3\ns_mul_i32 {s(sT2)}, {s(sT2)}, {s(sT3)}")
        if self.o["m84"] == 1: a(f"s_bitcmp1_b32 s2, 1\ns_cselect_b32 {s(sT3)}, 0, {s(sT3)}")
        a(f"v_add_u32 v12, {s(sT2)}, v1\nv_lshlrev_b32 v12, 10, v12\nv_add_u32 v12, 384, v12\nv_cmp_gt_u32 vcc, {s(sT3)}, v1\nv_cndmask_b32 {v(G.vT2)}, {v(G.vT2)}, v12, vcc")
        a.label(X)
        self.srd(sB1, 14, 2752); self.srd(sDBG, 22, 256); self.srd(sWS, 24, WS_SIZE)
        a(f"s_lshl_b32 {s(sT2)}, {s(sCH)}, 6\ns_lshl_b32 {s(sT3)}, {s(sTYPE)}, 31\ns_xor_b32 {s(sT3)}, {s(sT3)}, {hx(OOB)}\ns_or_b32 {s(sT2)}, {s(sT2)}, {s(sT3)}")
        a(f"v_lshl_add_u32 v8, v2, 1, {s(sT2)}")
        if not self.o["xe"]: xs()
        a("v_mov_b32 v96, v8")
        if self.o["t2"]:
            L = self.lab("t2")
            if self.o["m84"] == 2: a(f"s_cmp_lg_u32 {s(sWAVE)}, 3\ns_cbranch_scc1 {L}")
            elif self.o["m84"]: a(f"s_and_b32 {s(sT2)}, s2, 6\ns_xor_b32 {s(sT2)}, {s(sT2)}, 2\ns_lshl_b32 {s(sT2)}, {s(sT2)}, 2\ns_or_b32 {s(sT2)}, {s(sT2)}, {s(sWAVE)}\ns_cmp_lg_u32 {s(sT2)}, 3\ns_cbranch_scc1 {L}")
            else: a(f"s_lshl_b32 {s(sT2)}, {s(sHF)}, 2\ns_or_b32 {s(sT2)}, {s(sT2)}, {s(sWAVE)}\ns_cmp_lg_u32 {s(sT2)}, 3\ns_cbranch_scc1 {L}")
            self.srd(sOUT, 6, 1572864)
            a(f"s_lshr_b32 {s(sT2)}, s2, 3\ns_lshl_b32 {s(sT2)}, {s(sT2)}, 4")
            a(f"v_add_u32 v12, {s(sT2)}, v5\nv_mul_u32_u24 v12, 3072, v12\nv_min_u32 v13, 2, v4\nv_lshl_add_u32 v12, v13, 10, v12\nv_add_u32 v12, 384, v12")
            a(f"buffer_load_dword {v(G.vDUM)}, v12, {s(sOUT,4)}, 0 offen")
            a.label(L)
        if self.o["w2s"]: a(f"buffer_load_dword {v(G.vDUM)}, {v(G.vT1)}, {s(sW,4)}, 0 offen"); vm.issue("t")
        self.vm0 = list(vm.q)
        self.ts("c_setup")
        a(f"s_cmp_eq_u32 {s(sTYPE)}, 0\ns_cbranch_scc0 L_typeB")

    def q_stats(self, typ, extra=()):
        G = self; T = G.TMP; U = T + 8; q = []
        g = dict(math=1, chk=self.o['chk'], w2=self.o["w2t"], ga=self.o['ga'], gc=self.o['gc'])
        nl = [self.vmi(f"buffer_load_dword {v(G.GR+3)}, {v(G.vNZ)}, {s(sDBG,4)}, 0 offen sc1", "nonce")]
        if not self.o["pre"]: q += nl
        q += [("GI", g["math"]), self.vmw("xs")]
        if self.o["pre"] and not self.o["nlate"]: q += nl
        w = []
        for k in range(8): w += [f"v_lshlrev_b32 {v(U+2*k)}, 16, {v(T+k)}", f"v_and_b32 {v(U+2*k+1)}, 0xffff0000, {v(T+k)}"]
        w += [f"v_add_f32 {v(T+k)}, {v(U+2*k)}, {v(U+2*k+1)}" for k in range(8)]
        for n in (4, 2, 1): w += [f"v_add_f32 {v(T+k)}, {v(T+k)}, {v(T+k+n)}" for k in range(n)]
        def red32(r, t):
            o = [f"v_add_f32_dpp {v(r)}, {v(r)}, {v(r)} {m} row_mask:0xf bank_mask:0xf" for m in ("quad_perm:[1,0,3,2]", "quad_perm:[2,3,0,1]", "row_half_mirror", "row_mirror")]
            return o + [f"v_mov_b32 {v(t)}, {v(r)}", f"v_permlane16_swap_b32 {v(r)}, {v(t)}", f"v_add_f32 {v(r)}, {v(r)}, {v(t)}"]
        w += red32(T, T + 1) + [f"v_mul_f32 {v(G.GR)}, {fl(1/512)}, {v(T)}"]
        w += [f"v_sub_f32 {v(U+k)}, {v(U+k)}, {v(G.GR)}" for k in range(16)]
        w += [f"v_mul_f32 {v(T+k)}, {v(U+k)}, {v(U+k)}" for k in range(4)]
        w += [f"v_fmac_f32 {v(T+k%4)}, {v(U+k)}, {v(U+k)}" for k in range(4, 16)]
        w += [f"v_add_f32 {v(T)}, {v(T)}, {v(T+1)}", f"v_add_f32 {v(T+2)}, {v(T+2)}, {v(T+3)}", f"v_add_f32 {v(T)}, {v(T)}, {v(T+2)}"]
        w += red32(T, T + 1) + [f"v_mov_b32 {v(T+1)}, {fl(1e-5)}", f"v_fmac_f32 {v(T+1)}, {fl(1/512)}, {v(T)}",
                                f"v_rsq_f32 {v(G.GR+1)}, {v(T+1)}", f"v_mul_f32 {v(G.GR+2)}, {v(T+1)}, {v(G.GR+1)}"]
        q += self.its(w)
        if self.o["pre"]: self.flush(q); q = []
        if self.o["nlate"] == 1: self.flush(nl)
        if self.o["nlate"] == 2: q += nl
        L = self.lab("nonce"); R = self.lab("nonceok"); X = self.lab("noncex")
        q += [("GI", g["chk"]), self.vmw("nonce"),
              self.it(f"v_readfirstlane_b32 {s(sNONCE)}, {v(G.GR+3)}\ns_cmp_eq_u32 {s(sNONCE)}, 0\ns_cbranch_scc1 {L}\n{R}:"),
              self.vmi(f"buffer_store_dwordx4 {v(G.GR,4)}, {v(G.vSTA)}, {s(sWS,4)}, 0 offen sc1", "st"),
              self.it(f"v_mov_b32 v8, {SC_NONCE}\nds_write_b32 v8, {v(G.GR+3)}"), self.tsi("c_stpub")]
        self.tail.append(f"""{L}:
s_mov_b32 {s(sSPIN)}, 0
{X}:
buffer_load_dword {v(G.GR+3)}, {v(G.vNZ)}, {s(sDBG,4)}, 0 offen sc1
s_add_u32 {s(sSPIN)}, {s(sSPIN)}, 1
s_waitcnt vmcnt(0)
v_readfirstlane_b32 {s(sNONCE)}, {v(G.GR+3)}
s_cmp_gt_u32 {s(sSPIN)}, {SPIN_MAX}
s_cbranch_scc1 {R}
s_cmp_eq_u32 {s(sNONCE)}, 0
s_cbranch_scc1 {X}
s_branch {R}""")
        if typ == "B": q += self.its([f"v_lshlrev_b32 {v(G.B1+p)}, 16, {v(G.B1+p)}" for p in range(3)])
        if self.o["w7"] and typ == "B":
            q = [self.it(f"s_cmp_eq_u32 {s(sWAVE)}, 3\ns_cselect_b32 s56, s8, s16\ns_cselect_b32 s57, s9, s17\ns_movk_i32 {s(sT1)}, 688\ns_cselect_b32 {s(sT1)}, 256, {s(sT1)}\ns_cselect_b32 {s(sT2)}, 0, {s(sWAVE)}"),
                 self.it(f"s_lshl_b32 s58, {s(sT1)}, 11\ns_lshl_b32 {s(sT2)}, {s(sT2)}, 8\ns_mul_i32 {s(sT3)}, {s(sI)}, {s(sT1)}\ns_sub_u32 {s(sT1)}, {s(sT1)}, 1"),
                 self.it(f"s_cmp_eq_u32 {s(sG)}, 7\ns_cselect_b32 {s(sT4)}, 0, {hx(OOB)}\nv_add_u32 v96, {s(sT2)}, v1")] + q
            k0 = next(i for i, x in enumerate(q) if not isinstance(x, str) and x[0] == "GI")
            t = []
            for k in range(4):
                t += [("GI", self.o["w7"] + self.o["w7s"] * k - 1)] if k else []
                t += [self.it(f"v_min_u32 v9, {s(sT1)}, v96"), self.it(f"v_add_lshl_u32 v9, v9, {s(sT3)}, 7"), self.it(f"v_or_b32 v9, {s(sT4)}, v9"),
                      self.vmi(f"buffer_load_dword {v(G.vDUM)}, v9, s[56:59], 0 offen", "t"), self.it("v_add_u32 v96, 64, v96")]
            self.w7q = t
            q += t
        q += list(extra)
        if self.o["t3"]:
            q += [("GI", self.o["t3"] - 1), self.it(f"s_lshl_b32 {s(sT0)}, {s(sI)}, 3\ns_add_u32 {s(sT0)}, {s(sT0)}, {s(sCT)}\ns_lshl_b32 {s(sT0)}, {s(sT0)}, 14\nv_lshl_add_u32 v8, v5, 10, {s(sT0)}"),
                  self.vmi(f"buffer_load_dword {v(G.vDUM)}, v8, {s(sX,4)}, 0 offen offset:384", "t")]
        if self.o["w2t"] and not self.o["w7"] and not self.o["w2s"] and not self.o["sw"] & 1: q += [("GI", g["w2"]), self.vmi(f"buffer_load_dword {v(G.vDUM)}, {v(G.vT1)}, {s(sW,4)}, 0 offen", "t")]
        if self.o["t1"] and not self.o["sw"] & 2: q += [("GI", self.o["t1"]), self.vmi(f"buffer_load_dword {v(G.vDUM)}, {v(G.vT2)}, {s(sW,4)}, 0 offen", "t")]
        q += [("GI", g["ga"])] + [self.vmi(f"buffer_load_dwordx4 {v(G.SG+4*rb,4)}, {v(G.vSTG)}, {s(sWS,4)}, 0 offen offset:{(1024 << self.o['s128'])*rb} sc1", "sg") for rb in range(2)]
        L = self.lab("st"); R = self.lab("stok"); X = self.lab("stx")
        chk = f"v_cmp_ne_u32 vcc, {s(sNONCE)}, {v(G.SG+3)}\nv_cmp_ne_u32 {s(sM,2)}, {s(sNONCE)}, {v(G.SG+7)}\ns_or_b64 vcc, vcc, {s(sM,2)}"
        q += [("GI", g["gc"]), self.vmw("sg"), self.it(f"{chk}\ns_cbranch_vccnz {L}\n{R}:"), self.tsi("c_stok")]
        self.tail.append(f"""{L}:
s_mov_b32 {s(sSPIN)}, 0
{X}:
buffer_load_dwordx4 {v(G.SG,4)}, {v(G.vSTG)}, {s(sWS,4)}, 0 offen sc1
buffer_load_dwordx4 {v(G.SG+4,4)}, {v(G.vSTG)}, {s(sWS,4)}, 0 offen offset:{1024 << self.o['s128']} sc1
s_add_u32 {s(sSPIN)}, {s(sSPIN)}, 1
s_cmp_gt_u32 {s(sSPIN)}, {SPIN_MAX}
s_waitcnt vmcnt(0)
s_cbranch_scc1 {R}
{chk}
s_cbranch_vccnz {X}
s_branch {R}""")
        for rb in range(2):
            mu, r, sd = G.SG + 4*rb, G.SG + 4*rb + 1, G.SG + 4*rb + 2; X = G.XS + 4*rb
            q += self.its([f"v_cvt_pk_bf16_f32 {v(T)}, -{v(mu)}, -{v(mu)}", f"v_cvt_pk_bf16_f32 {v(T+1)}, {v(sd)}, {v(sd)}",
                           f"v_and_b32 {v(T+2)}, 0xffff0000, {v(T)}", f"v_and_b32 {v(T+3)}, 0xffff0000, {v(T+1)}",
                           f"v_sub_f32 {v(T+2)}, -{v(mu)}, {v(T+2)}", f"v_sub_f32 {v(T+4)}, {v(sd)}, {v(T+3)}",
                           f"v_cvt_pk_bf16_f32 {v(T+2)}, {v(T+2)}, {v(T+3)}", f"v_cvt_pk_bf16_f32 {v(T+4)}, {v(T+4)}, 0",
                           f"v_cmp_gt_u32 vcc, 32, v1\nv_mov_b32 {v(X+3)}, 0\nv_cndmask_b32 {v(X)}, 0, {v(T)}, vcc\nv_cndmask_b32 {v(X+1)}, 0, {v(T+2)}, vcc\nv_cndmask_b32 {v(X+2)}, 0, {v(T+4)}, vcc"])
        k0 = -2.0 * 1.4426950408889634 * 0.7978845608028654
        for rb in range(2):
            r, sd = G.SG + 4*rb + 1, G.SG + 4*rb + 2
            if typ == "B":
                q += self.its([f"v_mul_f32 {v(G.GC+rb)}, {fl(k0)}, {v(r)}", f"v_mul_f32 {v(T)}, {v(r)}, {v(r)}",
                               f"v_mul_f32 {v(T)}, {fl(0.044715)}, {v(T)}", f"v_mul_f32 {v(G.GC+2+rb)}, {v(T)}, {v(G.GC+rb)}"])
            else:
                q += self.its([f"v_mul_f32 {v(G.GC+rb)}, {fl(1.4426950408889634)}, {v(r)}", f"v_mul_f32 {v(G.GC+2+rb)}, {fl(1e-6)}, {v(sd)}"])
        if typ == "A":
            q += self.its([f"s_lshl_b32 {s(sT0)}, {s(sWAVE)}, 8\ns_add_u32 {s(sT0)}, {s(sT0)}, {SC_R}\nv_lshl_add_u32 v8, v2, 2, {s(sT0)}\nv_lshl_add_u32 v6, v3, 4, {s(sT0)}",
                           f"ds_write_b32 v8, {v(G.GC)}", f"ds_write_b32 v8, {v(G.GC+1)} offset:128"])
        return q

    def reads0(self, gi):
        G = self
        k, tau = divmod(gi, 4); sl = (gi // 2) % 3; b = gi & 1
        X = lambda rb: [(f"ds_read_b128 {v(16+8*b+4*rb,4)}, {v((G.vXB if k >= 4 else G.vXA) + tau)} offset:{(k % 4)*16384 + 4096*rb}", (gi, "X", rb))]
        W = lambda p: [(f"ds_read_b64_tr_b16 {v(48+8*b+4*p+2*j,2)}, {v((G.vWO if tau & 1 else G.vWE) + sl)} offset:{p*4096+(tau&1)*2048+j*512}", (gi, "W", p)) for j in range(2)]
        return [W(0) + X(0), W(1) + X(1), [], []]
    def reads1(self, M):
        G = self
        if M >= 16: return [[], [], [], []]
        k = M // 2; sl = (16 + k) % 3; b = M & 1
        def X(ks, rb):
            tau = 2*(M & 1) + ks
            return [(f"ds_read_b128 {v(16+16*b+8*ks+4*rb,4)}, {v((G.vXB if k >= 4 else G.vXA) + tau)} offset:{(k % 4)*16384 + 4096*rb}", (32+M, "X", ks, rb))]
        def W(ks):
            tau = 2*(M & 1) + ks
            return [(f"ds_read_b64_tr_b16 {v(48+8*b+4*ks+2*j,2)}, {v((G.vWO if tau & 1 else G.vWE) + sl)} offset:{tau*2048+j*512}", (32+M, "W", ks)) for j in range(2)]
        return [W(0) + X(0, 0), W(1) + X(0, 1), X(1, 0), X(1, 1)]

    def mpass(self, typ, ps, q, budget):
        a = self.a; G = self; CS = G.CSM[typ]
        def issue(g):
            for r, t in g: a(r); self.lg.issue(t)
        if ps == 0:
            self.lg = Cnt(a, "lgkmcnt", 15)
            self.ts("c_pre0")
            a("s_waitcnt lgkmcnt(0)\ns_barrier")
            self.ts("c_bar0")
            for g in self.reads0(0): issue(g)
        elif typ == "A":
            for g in self.reads1(0): issue(g)
        lg = self.lg
        st_ = dict(hold=None, credit=0, nbar=0)
        def emit(x):
            n0 = len(a.items); x[1]()
            for ln in a.items[n0:]:
                if ln.startswith("ds_"): lg.issue("F")
        def fill(M, nr):
            st_["credit"] = min(st_["credit"] + budget - 5 * nr, budget + 6)
            while q and st_["hold"] is None:
                x = q[0]
                if x in ("NEXT", "BAR"): st_["hold"] = x; q.pop(0); break
                if x[0] == "GI":
                    if M >= x[1]: q.pop(0); continue
                    break
                if x[0] == "U":
                    q.pop(0); x[1](); st_["credit"] = 0; break
                if x[0] == "GB":
                    if st_["nbar"] >= x[1]: q.pop(0); continue
                    break
                if st_["credit"] < min(x[0], 12): break
                q.pop(0); emit(x); st_["credit"] -= x[0]
        def barrier(n):
            lg.wait("F"); a("s_barrier"); self.ts(f"c_bar{n}"); st_["nbar"] += 1
            if st_["hold"] == "BAR": st_["hold"] = None
        NS = 32 if ps == 0 else 16
        pn = (0, 1) if ps == 0 else (2,)
        for M in range(NS):
            b = M & 1; mf = []; last = M == NS - 1
            for i in range(2):
                for rb in range(2):
                    p = i if ps == 0 else 2
                    x = v(16+8*b+4*rb, 4) if ps == 0 else v(16+16*b+8*i+4*rb, 4)
                    w = v(48+8*b+4*i, 4); c = v(G.acc(p, rb), 16)
                    A, B = (x, w) if (typ == "A" and p < 2) else (w, x)
                    mf.append(f"v_mfma_f32_32x32x16_bf16 {c}, {A}, {B}, {c if M or (ps and i) else 0}")
            if self.o["snk"] & (1 << ps) and not (last and ps == 0): mf[2], mf[3] = mf[3], mf[2]
            if ps == 0:
                cs = [f"v_mfma_f32_16x16x32_bf16 {v(CS[p],4)}, {v(G.SEL,4)}, {v(48+8*b+4*p,4)}, {v(CS[p],4) if M else 0}" for p in pn] if b == 0 else []
                rd = self.reads0(M + 1) if not last else (self.reads1(0) if typ == "B" else [[], [], [], []])
                need = [(M, "X", 1), None, None, None]; nb = M // 2 + 1
            else:
                cs = [f"v_mfma_f32_16x16x32_bf16 {v(CS[2],4)}, {v(G.SEL,4)}, {v(48+8*b,4)}, {v(CS[2],4) if M else 0}"]
                rd = self.reads1(M + 1)
                need = [(32+M, "X", 0, 1), None, (32+M, "X", 1, 1), None]; nb = 17 + M // 2
            if self.o["e2"] and 0 < M < NS - 2: cs = []
            csw = [(f"ds_write_b32 {v(G.vCW)}, {v(CS[p])} offset:{128*p}", "F") for p in pn]
            csr = [(f"ds_read_b32 {v(CS[p]+1)}, {v(G.vCR)} offset:{128*p}", "F") for p in pn]
            if st_["hold"] == "NEXT" or M == 0: lg.wait("F"); st_["hold"] = None if st_["hold"] == "NEXT" else st_["hold"]
            if last and ps == 1:
                lg.wait(need[0]); a(cs[0]); a(mf[0])
                for j in range(4):
                    if j: a(f"v_xor_b32 v8, {16*j}, {v(G.vXR)}")
                    issue([(f"ds_read_b64 {v(G.XR+2*j,2)}, {v(8 if j else G.vXR)}", "F")])
                fill(M, 4); a(mf[1])
                issue(csw); fill(M, 1); lg.wait(need[2]); a(mf[2])
                barrier(nb); issue(csr); a(mf[3])
                break
            for k in range(4):
                lg.wait(need[k]); a(mf[k])
                if k == 0 and b:
                    barrier(nb)
                    if last: issue(csr)
                issue(rd[k])
                fill(M, len(rd[k]))
                if k == (0 if (ps == 0 and M == 30) else 2):
                    for c in cs: a(c)
                if k == 2 and ps == 0 and M == 30: issue(csw)
        assert st_["hold"] != "BAR"
        assert not any(x[0] in ("GI", "GB") for x in q if not isinstance(x, str)), "GI marker left"
        if self.verbose: print(typ, "pass", ps, "leftover cost", sum(50 if x[0] == "U" else x[0] for x in q if not isinstance(x, str)))
        self.ts(f"c_pass{ps}")

    def q_fixup(self, typ, p):
        G = self; c = G.CSM[typ][p]; F = 136 if typ == "B" else (152, 148, 128)[p]; q = []
        q += self.its([f"v_add_f32 {v(c)}, {v(c)}, {v(c+1)}", f"v_cvt_pk_bf16_f32 {v(c+1)}, {v(c)}, {v(c)}",
                      f"v_and_b32 {v(c+1)}, 0xffff0000, {v(c+1)}", f"v_sub_f32 {v(c+2)}, {v(c)}, {v(c+1)}", f"v_mov_b32 {v(F+3)}, 0"])
        if typ == "B":
            q += self.its([f"v_cvt_pk_bf16_f32 {v(F+1)}, {v(c+1)}, {v(G.B1+p)}", f"v_cvt_pk_bf16_f32 {v(F+2)}, {v(G.B1+p)}, 0"])
        else:
            q += self.its([f"v_cvt_pk_bf16_f32 {v(F+1)}, {v(c+1)}, 0", f"v_mov_b32 {v(F+2)}, 0"])
        q += self.its([f"v_cvt_pk_bf16_f32 {v(F)}, {v(c+1)}, {v(c+2)}"])
        for rb in range(2):
            x = v(G.XS + 4*rb, 4); w = v(F, 4); cc = v(G.acc(p, rb), 16)
            A, B = (x, w) if (typ == "A" and p < 2) else (w, x)
            q += self.its([f"v_mfma_f32_32x32x16_bf16 {cc}, {A}, {B}, {cc}"])
        return q

    def ho_base(self, dst, sig0):
        t = (f"s_lshl_b32 {s(dst)}, {s(sI)}, 1\ns_add_u32 {s(dst)}, {s(dst)}, {s(sRH)}\ns_lshl_b32 {s(dst)}, {s(dst)}, {self.SS+2}\n"
             f"s_lshl_b32 {s(sT0)}, {s(sG)}, 1\ns_add_u32 {s(sT0)}, {s(sT0)}, {s(sCH)}\n")
        if not self.o["lay"]:
            return t + f"s_add_u32 {s(sT5)}, {s(sT0)}, {sig0}\ns_lshl_b32 {s(sT5)}, {s(sT5)}, 10\ns_add_u32 {s(dst)}, {s(dst)}, {s(sT5)}"
        par = int(sig0 >= 29) if self.o['lay'] == 1 else 0
        return t + (f"s_add_u32 {s(sT5)}, {s(sT0)}, {sig0 - 29*par}\ns_and_b32 {s(sT4)}, {s(sT5)}, 7\ns_lshr_b32 {s(sT5)}, {s(sT5)}, 3\ns_lshl_b32 {s(sT5)}, {s(sT5)}, 4\n"
                    f"s_add_u32 {s(sT5)}, {s(sT5)}, {s(sT4)}\ns_add_u32 {s(sT5)}, {s(sT5)}, {8*par}\ns_lshl_b32 {s(sT5)}, {s(sT5)}, 10\ns_add_u32 {s(dst)}, {s(dst)}, {s(sT5)}")

    def q_flag(self, soff):
        return [self.it(f"v_mov_b32 v11, {s(sNONCE)}"),
                self.vmi(f"buffer_store_dword v11, {v(self.vFL)}, {s(sWS,4)}, {s(soff)} offen {'sc0 sc1' if self.o['fsc'] else 'sc1'}", "f")]

    def q_gelu_setup(self):
        sHB, sFL = 26, 27; vO = 12
        q = [self.it("\n".join(self.ho_base(4 + p, SIG0[p]) for p in range(3)) + f"\ns_lshl_b32 {s(sT1)}, {s(sI)}, 1\ns_add_u32 {s(sT1)}, {s(sT1)}, {s(sRH)}\ns_mul_i32 {s(sFL)}, {s(sT1)}, {3*FG}\ns_lshl_b32 {s(sT1)}, {s(sT0)}, {FS}\ns_add_u32 {s(sFL)}, {s(sFL)}, {s(sT1)}\ns_add_u32 {s(sFL)}, {s(sFL)}, {WS_FH}")]
        t = f"s_mul_i32 {s(sT1)}, {s(sG)}, 6\ns_add_u32 {s(sT1)}, {s(sT1)}, {s(sCH)}\nv_lshlrev_b32 v11, 4, v1"
        for p in range(3): t += f"\ns_cmp_lt_u32 {s(sT1)}, {43-2*p}\ns_cselect_b32 {s(sT2)}, 0, {hx(OOB)}\nv_or_b32 {v(vO+p)}, {s(sT2)}, v11"
        return q + [self.it(t)]
    def q_gelu(self, p, pk):
        G = self; sHB, sFL, sO = 26, 27, 3; vO = 12; t = G.TMP; q = []; n = 0
        for rb in range(2):
            A, B, sd = G.GC + rb, G.GC + 2 + rb, G.SG + 4*rb + 2
            for kh in range(2):
                c = G.acc(p, rb) + 8*kh; P = t + 8 + 4*(n & 1); n += 1
                if self.o["pk"] and pk:
                    sel = rb
                    w = [f"v_pk_mul_f32 {v(t+j,2)}, {v(c+j,2)}, {v(c+j,2)}" for j in range(0, 8, 2)]
                    w += [f"v_pk_fma_f32 {v(t+j,2)}, {v(t+j,2)}, {v(G.GC+2,2)}, {v(G.GC,2)} op_sel:[0,{sel},{sel}] op_sel_hi:[1,{sel},{sel}]" for j in range(0, 8, 2)]
                    w += [f"v_pk_mul_f32 {v(t+j,2)}, {v(c+j,2)}, {v(t+j,2)}" for j in range(0, 8, 2)]
                    w += [f"v_exp_f32 {v(t+j)}, {v(t+j)}" for j in range(8)]
                    w += [f"v_pk_fma_f32 {v(t+j,2)}, {v(t+j,2)}, {v(sd,2)}, {v(sd,2)} op_sel:[0,0,0] op_sel_hi:[1,0,0]" for j in range(0, 8, 2)]
                    w += [f"v_rcp_f32 {v(t+j)}, {v(t+j)}" for j in range(8)]
                    w += [f"v_pk_mul_f32 {v(t+j,2)}, {v(c+j,2)}, {v(t+j,2)}" for j in range(0, 8, 2)]
                else:
                    w = [f"v_mul_f32 {v(t+j)}, {v(c+j)}, {v(c+j)}" for j in range(8)]
                    w += [f"v_fma_f32 {v(t+j)}, {v(t+j)}, {v(B)}, {v(A)}" for j in range(8)]
                    w += [f"v_mul_f32 {v(t+j)}, {v(c+j)}, {v(t+j)}" for j in range(8)]
                    w += [f"v_exp_f32 {v(t+j)}, {v(t+j)}" for j in range(8)]
                    w += [f"v_fma_f32 {v(t+j)}, {v(t+j)}, {v(sd)}, {v(sd)}" for j in range(8)]
                    w += [f"v_rcp_f32 {v(t+j)}, {v(t+j)}" for j in range(8)]
                    w += [f"v_mul_f32 {v(t+j)}, {v(c+j)}, {v(t+j)}" for j in range(8)]
                if self.o["e5"] and not pk: w = [x for k, x in enumerate(w) if x.startswith(("v_exp", "v_rcp")) or k % 2 == 0]
                w += [f"v_cvt_pk_bf16_f32 {v(P+j)}, {v(t+2*j)}, {v(t+2*j+1)}" for j in range(4)]
                q += self.its(w)
                q += [self.vmi(f"s_add_u32 {s(sO)}, {s(4+p)}, {(2*rb+kh) << self.SS}\nbuffer_store_dwordx4 {v(P,4)}, {v(vO+p)}, {s(sWS,4)}, {s(sO)} offen {['sc1', 'sc0 sc1', 'sc1 nt'][self.o['hsc']]}", ("h", p))]
        return q + [self.tsi(f"cB_p{p}")]

    def q_gelu_units(self):
        G = self; sO = 3; vO = 12
        grp = [(p, rb, kh) for p in range(2) for rb in range(2) for kh in range(2)]
        def ops(g):
            p, rb, kh = grp[g]; c = G.acc(p, rb) + 8*kh; t = G.TMP + 8*(g & 1); sd = G.SG + 4*rb + 2
            P1 = [f"v_pk_mul_f32 {v(t+j,2)}, {v(c+j,2)}, {v(c+j,2)}" for j in range(0, 8, 2)]
            P1 += [f"v_pk_fma_f32 {v(t+j,2)}, {v(t+j,2)}, {v(G.GC+2,2)}, {v(G.GC,2)} op_sel:[0,{rb},{rb}] op_sel_hi:[1,{rb},{rb}]" for j in range(0, 8, 2)]
            P1 += [f"v_pk_mul_f32 {v(t+j,2)}, {v(c+j,2)}, {v(t+j,2)}" for j in range(0, 8, 2)]
            return dict(P1=P1, E=[f"v_exp_f32 {v(t+j)}, {v(t+j)}" for j in range(8)],
                        P2=[f"v_pk_fma_f32 {v(t+j,2)}, {v(t+j,2)}, {v(sd,2)}, {v(sd,2)} op_sel:[0,0,0] op_sel_hi:[1,0,0]" for j in range(0, 8, 2)],
                        R=[f"v_rcp_f32 {v(t+j)}, {v(t+j)}" for j in range(8)],
                        P3=[f"v_pk_mul_f32 {v(t+j,2)}, {v(c+j,2)}, {v(t+j,2)}" for j in range(0, 8, 2)],
                        C=[f"v_cvt_pk_bf16_f32 {v(c+j)}, {v(t+2*j)}, {v(t+2*j+1)}" for j in range(4)],
                        S=(f"s_add_u32 {s(sO)}, {s(4+p)}, {(2*rb+kh) << self.SS}\nbuffer_store_dwordx4 {v(c,4)}, {v(vO+p)}, {s(sWS,4)}, {s(sO)} offen {['sc1', 'sc0 sc1', 'sc1 nt'][self.o['hsc']]}", ("h", p)))
        def unit(lines, st=None):
            def f():
                self.a("\n".join(lines))
                if st: self.a(st[0]); self.vm.issue(st[1])
            return ("U", f)
        q = self.its(ops(0)["P1"])
        for g in range(9):
            o = ops(g) if g < 8 else None; pv = ops(g - 1) if g else None; nx = ops(g + 1)["P1"] if g < 7 else [None] * 12
            fin = ([pv["C"][2], pv["P3"][3], pv["C"][3]] if pv else [])
            if o is None: q.append(unit(fin, pv["S"])); break
            U = [(o["E"][0:3] + fin, pv["S"] if pv else None),
                 (o["E"][3:6] + [o["P2"][0]] + nx[0:2], None), (o["E"][6:8] + o["P2"][1:3] + nx[2:4], None),
                 (o["R"][0:2] + [o["P2"][3]] + nx[4:6], None), (o["R"][2:4] + [o["P3"][0]] + nx[6:8], None),
                 (o["R"][4:6] + [o["C"][0], o["P3"][1]] + nx[8:10], None), (o["R"][6:8] + [o["C"][1], o["P3"][2]] + nx[10:12], None)]
            q += [unit([x for x in l if x], st) for l, st in U]
        return q
    def q_hflag(self, p):
        return [self.vmw(("h", p))] + self.q_flag(27) + [self.it(f"s_add_u32 s27, s27, {FG}"), self.tsi(f"cB_flag{p}")]
    def q_h0(self):
        G = self
        return self.its([f"s_lshl_b32 {s(sT1)}, {s(sI)}, 1\ns_add_u32 {s(sT1)}, {s(sT1)}, {s(sHF)}\ns_mul_i32 {s(sC0)}, {s(sT1)}, {3*FG}\ns_add_u32 {s(sC0)}, {s(sC0)}, {WS_FH}", f"v_lshlrev_b32 {v(G.vGP)}, {FS}, v5"]) + \
               [("GI", 13), self.vmi(self.fload(G.vGF, G.vGP, sC0), "gf")]
    def aload(self, vm, sig):
        if sig >= 59: return
        G = self; sA = sKST; D = self.o["D"]
        if self.o["r2"]:
            st, j2, ch = pos_of(sig); n = 8 if st == 3 else 7; t = ""
            if sig == 14: t = f"s_add_u32 {s(sA)}, s16, {14*1024}\n"
            elif ch == 0:
                t = f"s_mov_b32 s19, {'s18' if st == 3 else 's17'}\n" if j2 == 0 else f"s_add_u32 s19, s19, 2048\ns_cmp_eq_u32 s19, {n*2048}\ns_cselect_b32 s19, 0, s19\n"
                t += f"s_add_u32 {s(sA)}, s19, s16\n" + (f"s_add_u32 {s(sA)}, {s(sA)}, {(SIG0+[43])[st]*1024}\n" if st else "")
            self.a(t + f"buffer_load_dwordx4 {v(G.RING[sig%D],4)}, {v(G.vA)}, {s(sWS,4)}, {s(sA)} offen offset:{1024*ch} sc1"); vm.issue(("A", sig))
            return
        o = hoff(sig, self.o["lay"]); d = (o & ~4095) - (hoff(sig - 1, self.o["lay"]) & ~4095) if sig else 0
        if d: self.a(f"s_add_u32 {s(sA)}, {s(sA)}, {hx(d)}")
        self.a(f"buffer_load_dwordx4 {v(G.RING[sig%D],4)}, {v(G.vA)}, {s(sWS,4)}, {s(sA)} offen offset:{o & 4095} {['', 'sc1', 'sc0 sc1', 'nt sc1'][self.o['asc']]}"); vm.issue(("A", sig))
    RING = [16 + 4*k for k in range(8)] + [72, 76, 80, 84, 88]
    def gcheck(self, vm, soff, two=False, va=None):
        a = self.a; G = self; L = self.lab("gc"); R = self.lab("gcok"); X = self.lab("gcx")
        vm.wait("gf")
        a(f"v_cmp_ne_u32 vcc, {s(sNONCE)}, {v(G.vGF)}\ns_cbranch_vccnz {L}")
        a.label(R)
        pre = ""
        if two:
            n = len(vm.q) - 1 - max(i for i, t in enumerate(vm.q) if t == "gb")
            pre = f"s_waitcnt vmcnt({n})\nv_cmp_ne_u32 vcc, {s(sNONCE)}, {v(G.vGB)}\ns_cbranch_vccz {R}\n"
        self.tail.append(f"{L}:\n" + pre + self.poll_text(G.vGP if va is None else va, G.vGF, soff, X, self.lab("gcy")) + f"\ns_branch {R}")
    def breads(self, sig):
        G = self
        if sig >= 59: return []
        base = b_lds(sig); w = base >> 16; off = base & 0xffff
        if self.o["e4"] & 4: return [f"ds_read_b128 {v(G.BF+8*(sig%3)+4*cb,4)}, {v(G.vA)} offset:{(off & 0x7fff)+1024*cb}" for cb in range(2)]
        return [f"ds_read_b64_tr_b16 {v(G.BF+8*(sig%3)+4*cb+2*q,2)}, {v(G.vBA+2*w+cb)} offset:{off+1024*q}" for cb in range(2) for q in range(2)]
    def p2_pre(self):
        if self.stop == "p1": return
        if self.o["eb"]: self.a(f"ds_read_b32 {v(self.vCK)}, {v(self.vPW)}")
        self.gcheck(self.vm, sC0); self.ts("c_p0x")
        for sig in range(8): self.aload(self.vm, sig)
        G = self
        if self.o["eb"]:
            a = self.a; L = self.lab("eb"); R = self.lab("ebok"); X = self.lab("ebx")
            a(f"s_waitcnt lgkmcnt(0)\nv_cmp_gt_u32 vcc, 1, {v(G.vCK)}\ns_cbranch_vccnz {L}\n{R}:")
            self.tail.append(f"{L}:\ns_mov_b32 {s(sSPIN)}, 0\n{X}:\nds_read_b32 {v(G.vCK)}, {v(G.vPW)}\ns_add_u32 {s(sSPIN)}, {s(sSPIN)}, 1\ns_cmp_gt_u32 {s(sSPIN)}, {SPIN_MAX*8}\n"
                             f"s_waitcnt lgkmcnt(0)\ns_cbranch_scc1 {R}\nv_cmp_gt_u32 vcc, 1, {v(G.vCK)}\ns_cbranch_vccnz {X}\ns_branch {R}")
            for sig in range(2):
                for r in self.breads(sig): a(r)
        if self.o["kearly"]: self.a(f"s_add_u32 {s(sC0)}, {s(sC0)}, {FG}\nbuffer_load_dword {v(G.vGF)}, {v(G.vGP)}, {s(sWS,4)}, {s(sC0)} offen sc1"); self.vm.issue("gf")
    def typeB(self):
        a = self.a; G = self; o = self.o
        self.vm.q = list(self.vm0)
        for p in range(3):
            a(f"v_add_u32 v9, {s(sC0+p)}, v96\nbuffer_load_ushort {v(G.B1+p)}, v9, {s(sB1,4)}, 0 offen"); self.vm.issue("b1")
        self.flush(self.q_gelu_setup())
        pw = []
        if o["pw"]:
            pw = [("GI", o["pw"])] + [self.vmi(f"s_add_u32 s3, s27, {k*FG}\nbuffer_store_dword {v(G.vNZ)}, {v(G.vFL)}, {s(sWS,4)}, s3 offen sc1", "pw") for k in range(3)]
        q = self.q_stats("B", pw + self.q_p2setup())
        self.mpass("B", 0, q, o["bud0"])
        g1 = self.q_gelu(1, False)
        h0 = self.q_h0()
        if o["pku"]:
            u = self.q_gelu_units(); k = 12 + 29 + o["fu"]
            q += self.q_fixup("B", 0) + self.q_fixup("B", 1) + h0[:2] + u[:k] + self.q_hflag(0) + u[k:]
        else:
            q += self.q_fixup("B", 0) + self.q_fixup("B", 1) + h0[:2] + self.q_gelu(0, False) + g1[:o["fm"]*10] + self.q_hflag(0) + g1[o["fm"]*10:]
        self.mpass("B", 1, q, o["bud2"])
        self.ts("c_main")
        g2 = self.q_gelu(2, True); h = len(g2) // 4 * o["g2h"]; h1 = len(g2) // 4 * min(o["f1h"], o["g2h"])
        self.flush(q + h0[3:] + ["NEXT"] + self.q_fixup("B", 2) + g2[:h1] + self.q_hflag(1) + g2[h1:h] + [(0, self.p2_pre)] + g2[h:])
        self.ts("cB_gelu")
        if self.stop == "p1": self.vm.wait(("h", 2)); self.flush(self.q_flag(27))

    def pair_recv(self, kind, reads):
        a = self.a; L = self.lab("pw"); X = self.lab("pwx")
        a(f"s_xor_b32 {s(sT0)}, {s(sWAVE)}, 2\ns_lshl_b32 {s(sT0)}, {s(sT0)}, 4\ns_add_u32 {s(sT0)}, {s(sT0)}, {SC_FLAG+4*kind}\nv_mov_b32 v12, {s(sT0)}\ns_mov_b32 {s(sSPIN)}, 0")
        a.label(L)
        a("ds_read_b32 v13, v12")
        for r in reads: a(r)
        a(f"s_add_u32 {s(sSPIN)}, {s(sSPIN)}, 1\ns_cmp_gt_u32 {s(sSPIN)}, {SPIN_MAX}\ns_waitcnt lgkmcnt(0)\ns_cbranch_scc1 {X}")
        a(f"v_cmp_eq_u32 vcc, 0, v13\ns_cbranch_vccnz {L}")
        a.label(X)
    def pair_send(self, kind):
        a = self.a
        a(f"s_lshl_b32 {s(sT0)}, {s(sWAVE)}, 4\ns_add_u32 {s(sT0)}, {s(sT0)}, {SC_FLAG+4*kind}\nv_mov_b32 v12, {s(sT0)}\nv_mov_b32 v13, 1\nds_write_b32 v12, v13")

    ON = 156
    RR = (128, 32)
    def q_kv_pre(self):
        G = self
        return ["NEXT"] + self.its([f"ds_read_b128 {v(G.RR[rb]+4*k,4)}, v6 offset:{128*rb+32*k}" for rb in range(2) for k in range(4)]
                                   + [f"v_mov_b32 {v(G.ON+k)}, 0x3f803f80" for k in range(4)] + ["v_xor_b32 v12, 32, v96"])
    def q_kv(self):
        G = self; q = []
        KV, ZZ, u, ON = 16, 48, G.TMP + 16, G.ON
        pend = []
        for n, (rb, kh) in enumerate(((0, 0), (0, 1), (1, 0), (1, 1))):
            c = G.acc(0, rb) + 8*kh; cv = G.acc(1, rb) + 8*kh; r = G.RR[rb] + 8*kh
            w = [f"v_pk_mul_f32 {v(c+j,2)}, {v(c+j,2)}, {v(r+j,2)}" for j in range(0, 8, 2)]
            e = [f"v_exp_f32 {v(u+j)}, {v(c+j)} clamp" for j in range(8)]
            w += pend[:1] + e[:4] + pend[1:] + e[4:]
            w += [f"v_max_f32 {v(c+j)}, v10, {v(c+j)}" for j in range(8)]
            w += [f"v_pk_mul_f32 {v(cv+j,2)}, {v(cv+j,2)}, {v(r+j,2)}" for j in range(0, 8, 2)]
            w += [f"v_pk_fma_f32 {v(u+j,2)}, {v(c+j,2)}, v[10:11], {v(u+j,2)} op_sel:[0,1,0] op_sel_hi:[1,1,1]" for j in range(0, 8, 2)]
            w += [f"v_cvt_pk_bf16_f32 {v(cv+j)}, {v(cv+2*j)}, {v(cv+2*j+1)}" for j in range(4)]
            w += [f"v_cvt_pk_bf16_f32 {v(c+j)}, {v(u+2*j)}, {v(u+2*j+1)}" for j in range(4)]
            pend = [f"v_mfma_f32_32x32x16_bf16 {v(ZZ,16)}, {v(c,4)}, {v(ON,4)}, {v(ZZ,16) if n else 0}",
                    f"v_mfma_f32_32x32x16_bf16 {v(KV,16)}, {v(c,4)}, {v(cv,4)}, {v(KV,16) if n else 0}"]
            q += self.its(w)
        q += self.its(pend) + [self.tsi("cA_kv"), self.it("v_mov_b32 v13, 1")]
        q += self.its([f"v_cndmask_b32 {v(u+j)}, {v(KV+8+j)}, {v(ZZ+8+j)}, {s(sLM,2)}" for j in range(8)])
        q += self.its([f"ds_write_b128 v90, {v(u,4)}", f"ds_write_b128 v90, {v(u+4,4)} offset:16", "ds_write_b32 v96, v13"])
        q += self.its([f"v_cndmask_b32 {v(ZZ+j)}, {v(ZZ+j)}, {v(KV+j)}, {s(sLM,2)}" for j in range(8)])
        q += [(40, lambda: self.pair_spin([f"ds_read_b128 {v(ZZ+8,4)}, v91", f"ds_read_b128 {v(ZZ+12,4)}, v91 offset:16"]))]
        q += self.its([f"v_pk_add_f32 {v(ZZ+j,2)}, {v(ZZ+j,2)}, {v(ZZ+8+j,2)}" for j in range(0, 8, 2)])
        q += self.its([f"v_pk_mul_f32 {v(ZZ+j,2)}, {v(ZZ+j,2)}, v[0:1] op_sel_hi:[1,0]" for j in range(0, 8, 2)])
        q += self.its([f"v_cvt_pk_bf16_f32 {v(u+j)}, {v(ZZ+2*j)}, {v(ZZ+2*j+1)}" for j in range(4)])
        q += [self.vmi(f"buffer_store_dwordx4 {v(u,4)}, v15, {s(sWS,4)}, s85 offen sc1", "kv"), self.tsi("cA_pub")]
        return q
    def pair_spin(self, reads, off=0):
        a = self.a; L = self.lab("pw"); X = self.lab("pwx")
        a(f"s_mov_b32 {s(sSPIN)}, 0")
        a.label(L)
        a(f"ds_read_b32 v13, v12 offset:{off}")
        for r in reads: a(r)
        a(f"s_add_u32 {s(sSPIN)}, {s(sSPIN)}, 1\ns_cmp_gt_u32 {s(sSPIN)}, {SPIN_MAX}\ns_waitcnt lgkmcnt(0)\ns_cbranch_scc1 {X}")
        a(f"v_cmp_eq_u32 vcc, 0, v13\ns_cbranch_vccnz {L}")
        a.label(X)
    def q_kvflag(self):
        sFL, sHD = 27, 3
        return [self.vmw("kv")] + self.q_flag(sHD) + [self.tsi("cA_flag")]
    def q_phiq(self):
        G = self; u = G.TMP; q = []
        for rb in range(2):
            rl, ep, r = G.GC + rb, G.GC + 2 + rb, G.SG + 4*rb + 1
            for hh in range(2):
                c = G.acc(2, rb) + 8*hh
                w = [f"v_mul_f32 {v(u+j)}, {v(rl)}, {v(c+j)}" for j in range(8)]
                w += [f"v_exp_f32 {v(u+j)}, {v(u+j)} clamp" for j in range(8)]
                w += [f"v_max_f32 {v(c+j)}, {v(ep)}, {v(c+j)}" for j in range(8)]
                w += [f"v_fmac_f32 {v(u+j)}, {v(c+j)}, {v(r)}" for j in range(8)]
                w += [f"v_cvt_pk_bf16_f32 {v(c+j)}, {v(u+2*j)}, {v(u+2*j+1)}" for j in range(4)]
                q += self.its(w)
        return q + [self.tsi("cA_q")]

    def typeA(self):
        a = self.a; G = self; T = G.TMP; vm = self.vm
        vm.q = list(self.vm0)
        a("v_and_b32 v8, 1, v4\nv_lshlrev_b32 v8, 2, v8\nv_sub_u32 v8, v5, v8\nv_mov_b32 v9, 0x3f80\nv_mov_b32 v10, 0x3f800000")
        for k, e in enumerate((0, 2, 8, 10)):
            a(f"v_cmp_eq_u32 vcc, {e}, v8\nv_cndmask_b32 v11, 0, v9, vcc\nv_cmp_eq_u32 vcc, {e+1}, v8\nv_cndmask_b32 {v(G.IDN+k)}, v11, v10, vcc")
        sREC, sFL, sHD = 26, 27, 3
        a(f"s_lshl_b32 {s(sHD)}, {s(sG)}, 1\ns_add_u32 {s(sHD)}, {s(sHD)}, {s(sCH)}\ns_lshl_b32 {s(sHD)}, {s(sHD)}, 1\ns_add_u32 {s(sHD)}, {s(sHD)}, {s(sRH)}")
        a(f"s_mul_i32 {s(sREC)}, {s(sHD)}, 10240\ns_add_u32 {s(sREC)}, {s(sREC)}, {WS_KV}\ns_lshl_b32 {s(sFL)}, {s(sHD)}, {FS+4}\ns_add_u32 {s(sFL)}, {s(sFL)}, {WS_FK}")
        a(f"s_lshl_b32 {s(sHD)}, {s(sI)}, {FS}\ns_add_u32 {s(sHD)}, {s(sHD)}, {s(sFL)}\ns_mul_i32 s85, {s(sI)}, 640\ns_add_u32 s85, s85, {s(sREC)}")
        a(f"v_cmp_gt_u32 {s(sLM,2)}, 16, v2\nv_lshl_add_u32 v12, v3, 4, v2\nv_lshlrev_b32 v12, 4, v12\nv_lshlrev_b32 v13, 6, v3\nv_add_u32 v13, 512, v13")
        a(f"v_cndmask_b32 v14, v13, v12, {s(sLM,2)}")
        a(f"v_lshl_add_u32 v13, v5, 4, v13\nv_cndmask_b32 v15, v13, v12, {s(sLM,2)}\nv_mov_b32 v12, {hx(OOB)}\nv_cmp_gt_u32 vcc, 20, v2\nv_cndmask_b32 v15, v12, v15, vcc")
        a(f"v_mov_b32 v9, {fl(0.6931471805599453)}\nv_cndmask_b32 v0, 1.0, v9, {s(sLM,2)}")
        a(f"v_mov_b32 v10, {fl(1e-6*1.4426950408889634)}\nv_mov_b32 v11, v9")
        o = self.o
        pw = []
        if o["pw"]:
            pw = [("GI", o["pw"]), self.vmi(f"buffer_store_dword {v(G.vNZ)}, {v(G.vFL)}, {s(sWS,4)}, s3 offen sc1", "pw"),
                  self.it(f"s_lshl_b32 {s(sT1)}, {s(sI)}, 1\ns_add_u32 {s(sT1)}, {s(sT1)}, {s(sRH)}\ns_lshl_b32 {s(sT1)}, {s(sT1)}, 4\ns_lshl_b32 {s(sT2)}, {s(sG)}, 1"),
                  self.it(f"s_add_u32 {s(sT1)}, {s(sT1)}, {s(sT2)}\ns_add_u32 {s(sT1)}, {s(sT1)}, {s(sCH)}\ns_lshl_b32 {s(sT1)}, {s(sT1)}, {FS}\ns_add_u32 {s(sT1)}, {s(sT1)}, {WS_FO}"),
                  self.vmi(f"buffer_store_dword {v(G.vNZ)}, {v(G.vFL)}, {s(sWS,4)}, {s(sT1)} offen sc1", "pw")]
        q = self.q_stats("A", pw)
        q += self.its([f"s_mul_i32 {s(sT1)}, {s(sWAVE)}, 1280\ns_add_u32 {s(sT1)}, {s(sT1)}, {SC_KVX}\nv_add_u32 v93, {s(sT1)}, v14",
                       "v_xor_b32 v8, 16, v2", "v_lshl_add_u32 v8, v3, 4, v8", "v_lshlrev_b32 v9, 0, v3", "v_add_u32 v9, 32, v9",
                       f"v_cndmask_b32 v8, v8, v9, {s(sLM,2)}", f"v_lshl_add_u32 v90, v8, 5, {s(sT1)}",
                       f"s_xor_b32 {s(sT1)}, {s(sWAVE)}, 2\ns_mul_i32 {s(sT1)}, {s(sT1)}, 1280\ns_add_u32 {s(sT1)}, {s(sT1)}, {SC_KVX}\nv_add_u32 v92, {s(sT1)}, v14",
                       "v_lshl_add_u32 v8, v3, 4, v2", f"v_cndmask_b32 v8, v9, v8, {s(sLM,2)}", f"v_lshl_add_u32 v91, v8, 5, {s(sT1)}"])
        q += self.its([f"s_lshl_b32 {s(sT1)}, {s(sWAVE)}, 4\ns_add_u32 {s(sT1)}, {s(sT1)}, {SC_FLAG}\nv_mov_b32 v96, {s(sT1)}"])
        q += self.q_kv_pre()
        self.mpass("A", 0, q, o["bud0"])
        self.flush(q + ["NEXT"] + self.q_fixup("A", 0) + self.q_fixup("A", 1) + self.q_kv()); self.lg.q = []
        sREC, sFL = 26, 27
        h0 = self.q_h0()
        GA = G.ACC; KP, ZP = G.ACC + 40, G.ACC + 44
        q = [("GI", o["fmA"])] + self.q_kvflag() + self.q_p2setup() + h0[:2]
        q += self.its(["v_mul_u32_u24 v97, 640, v3", "v_lshl_add_u32 v97, v2, 4, v97",
                       "v_and_b32 v8, 7, v5", "v_lshl_add_u32 v8, v8, 1, v3", "v_mul_u32_u24 v98, 640, v8", "v_and_b32 v9, 1, v4", "v_lshl_add_u32 v98, v9, 6, v98", "v_add_u32 v98, 512, v98",
                       f"s_xor_b32 {s(sT1)}, {s(sWAVE)}, 2\ns_mul_i32 {s(sT1)}, {s(sT1)}, 1280\ns_add_u32 {s(sT1)}, {s(sT1)}, {SC_KVX}\nv_lshl_add_u32 v8, v3, 3, {s(sT1)}",
                       "v_lshl_add_u32 v90, v2, 4, v8", "v_lshl_add_u32 v91, v9, 6, v8", "v_add_u32 v91, 512, v91"])
        hb = self.ho_base(7, 43).split("\n")
        q += [self.it("\n".join(hb[k:k+4])) for k in range(0, len(hb), 4)]
        q += self.its([f"s_lshl_b32 {s(sT1)}, {s(sI)}, 1\ns_add_u32 {s(sT1)}, {s(sT1)}, {s(sRH)}\ns_lshl_b32 s6, {s(sT1)}, {FS+4}", f"s_lshl_b32 {s(sT1)}, {s(sT0)}, {FS}\ns_add_u32 s6, s6, {s(sT1)}\ns_add_u32 s6, s6, {WS_FO}",
                       f"s_lshl_b32 s4, {s(sRH)}, {self.SS}\ns_xor_b32 s5, s4, {1 << self.SS}", "s_add_u32 s4, s4, s7\ns_add_u32 s5, s5, s7"])
        L = self.lab("kf"); R = self.lab("kfok")
        q += [("GI", o["kfs"]), self.vmi(self.fload(11, G.vGP, sFL), "kf")]
        kq = [("GI", o["kfc"]), self.vmw("kf"),
              (0, lambda: a(f"v_cmp_ne_u32 vcc, {s(sNONCE)}, v11\ns_cbranch_vccnz {L}\n{R}:")), self.tsi("cA_poll")]
        self.tail.append(f"{L}:\n" + self.poll_text(G.vGP, 11, sFL, self.lab("kfx"), self.lab("kfy")) + f"\ns_branch {R}")
        def gl(k):
            if k == 8: a(f"buffer_load_dwordx4 {v(GA+32,4)}, v98, {s(sWS,4)}, {s(sREC)} offen sc1")
            else: a((f"s_add_u32 s3, {s(sREC)}, {k*1280}\n" if k % 4 == 0 else "") + f"buffer_load_dwordx4 {v(GA+4*k,4)}, v97, {s(sWS,4)}, s3 offen offset:{1280*(k%4)} sc1")
            vm.issue(("ga", k))
        kq += [(0, lambda k=k: gl(k)) for k in (8, 0, 1, 2, 3, 4, 5, 6, 7)]
        if o["kpos"] == 0: q += kq
        self.mpass("A", 1, q, o["budA"])
        self.ts("c_main")
        pq = self.q_phiq(); h = (len(pq) - 1) // 4 * o["pqh"]
        self.flush(q + ["NEXT"] + self.q_fixup("A", 2))
        if o["kpos"] == 2: self.flush(pq); pq = []
        if o["kpos"]: self.flush(kq)
        self.flush(h0[3:])
        a(f"s_mov_b32 {s(sFL)}, s6")
        a("v_lshlrev_b32 v10, 4, v1\nv_mov_b32 v13, 1")
        self.flush(pq[:h])
        self.ts("cA_pq")
        vm.wait(("ga", 8)); self.ts("cA_g8"); a(f"v_mfma_f32_16x16x32_bf16 {v(ZP,4)}, {v(G.IDN,4)}, {v(GA+32,4)}, 0")
        dpp = [f"v_add_f32_dpp {v(ZP+j)}, {v(ZP+j)}, {v(ZP+j)} {m} row_mask:0xf bank_mask:0xf" for m in ("quad_perm:[1,0,3,2]", "quad_perm:[2,3,0,1]", "row_half_mirror") for j in range(4)]
        dpp += [f"v_cvt_pk_bf16_f32 {v(ZP+j)}, {v(ZP+2*j)}, {v(ZP+2*j+1)}" for j in range(2)]
        for k in range(8):
            vm.wait(("ga", k)); a(f"v_mfma_f32_16x16x32_bf16 {v(KP,4)}, {v(G.IDN,4)}, {v(GA+4*k,4)}, {v(KP,4) if k else 0}")
            if k >= 3:
                for x in dpp[4*(k-3): 4*(k-2)]: a(x)
        self.ts("cA_gath")
        for j in range(2): a(f"v_cvt_pk_bf16_f32 {v(KP+j)}, {v(KP+2*j)}, {v(KP+2*j+1)}")
        a(f"ds_write_b64 v90, {v(KP,2)}\nds_write_b64 v91, {v(ZP,2)}\nds_write_b32 v96, v13 offset:4")
        self.flush(pq[h:])
        F = [T + 8, T + 12]; t = T; PV = G.XS
        self.pair_spin([f"ds_read_b128 {v(F[0],4)}, v92", f"ds_read_b128 {v(F[1],4)}, v93"], off=4)
        self.ts("cA_spin")
        O = [G.ACC + 16*k for k in range(4)]
        for hh in range(2):
            for rb in range(2): a(f"v_mfma_f32_32x32x16_bf16 {v(O[2*rb+hh],16)}, {v(F[hh],4)}, {v(G.acc(2,rb)+8*hh,4)}, 0")
        if not o["ofirst"]: self.p2_pre()
        for n in range(4): a(f"v_add_f32 {v(t+2*n)}, {fl(1e-6)}, {v(O[2*(n&1)+(n>>1)]+8)}\nv_rcp_f32 {v(t+2*n)}, {v(t+2*n)}")
        n = 0
        for hh in range(2):
            for rb in range(2):
                o = O[2*rb+hh]; P = PV + 4*(n & 1)
                a(f"s_add_u32 {s(sT4)}, {s(4+hh)}, {rb << (self.SS+1)}")
                for j in range(0, 8, 2): a(f"v_pk_mul_f32 {v(o+j,2)}, {v(o+j,2)}, {v(t+2*n,2)} op_sel_hi:[1,0]")
                for j in range(4): a(f"v_cvt_pk_bf16_f32 {v(P+j)}, {v(o+2*j)}, {v(o+2*j+1)}")
                a(f"buffer_store_dwordx4 {v(P,4)}, v10, {s(sWS,4)}, {s(sT4)} offen {['sc1', 'sc0 sc1', 'sc1 nt'][self.o['hsc']]}"); vm.issue("o"); n += 1
        self.ts("cA_o")
        if self.o["ofirst"] and self.stop != "p1":
            self.p2_pre(); vm.wait("o"); self.flush(self.q_flag(sFL)); self.ts("cA_oflag")
            a(f"s_lshl_b32 {s(sT0)}, s2, 2\ns_add_u32 {s(sT0)}, {s(sT0)}, {s(sWAVE)}\ns_lshl_b32 {s(sT0)}, {s(sT0)}, 7\ns_add_u32 {s(sFL)}, {s(sT0)}, {WS_DUM}")
        if self.stop == "p1": vm.wait("o"); self.flush(self.q_flag(sFL))

    Y, S2 = 160, 192
    AR = 16; D = 8
    BF = 48
    vBA = 144
    vA, vXC, vXP, vOUT = 150, 151, 152, 153
    vPW, vDW, vPF, vMF, vGP, vCK, vGF, vLV = 154, 155, 156, 157, 0, 159, 158, 9
    vXR, vGB = 124, 10
    XR = 76
    def q_p2setup(self):
        G = self; out = []
        def a(t):
            cur = []
            for ln in t.split("\n"):
                cur.append(ln)
                if ln.startswith("v_"): out.append(self.it("\n".join(cur))); cur = []
            if cur: out.append(self.it("\n".join(cur)))
        for d, ptr, size in ((sOUT, 20, 2097152), (sB2, 18, 1024)): a(f"s_mov_b32 {s(d)}, {s(ptr)}\ns_mov_b32 {s(d+1)}, {s(ptr+1)}"); a(f"s_mov_b32 {s(d+2)}, {size}\ns_mov_b32 {s(d+3)}, 0x00020000")
        sA = sKST
        a(f"s_lshl_b32 {s(sP1)}, {s(sI)}, 1\ns_add_u32 {s(sP1)}, {s(sP1)}, {s(sHF)}\ns_lshl_b32 {s(sP2)}, {s(sP1)}, 2\ns_add_u32 {s(sP2)}, {s(sP2)}, {s(sWAVE)}\ns_lshl_b32 {s(sA)}, {s(sP2)}, {self.SS}")
        if self.o["r2"]:
            a(self.rot2(17, 18, sP2)); a(f"s_lshl_b32 s17, s17, 11\ns_lshl_b32 s18, s18, 11\ns_mov_b32 s16, {s(sA)}")
        a(f"v_lshlrev_b32 {v(G.vA)}, 4, v1")
        a(f"v_lshrrev_b32 v8, 2, v5\nv_lshl_add_u32 v8, v3, 2, v8\ns_lshl_b32 {s(sP2)}, {s(sCH)}, 4\nv_add_u32 v8, {s(sP2)}, v8\nv_lshlrev_b32 v8, 7, v8")
        a("v_and_b32 v9, 1, v5\nv_lshl_add_u32 v8, v9, 3, v8")
        a("v_and_b32 v9, 1, v4\nv_lshlrev_b32 v9, 1, v9\nv_bfe_u32 v0, v5, 1, 1\nv_add_u32 v9, v9, v0\nv_lshrrev_b32 v0, 3, v5\nv_lshlrev_b32 v0, 2, v0\nv_xor_b32 v9, v9, v0")
        a(f"s_lshl_b32 {s(sP2)}, {s(sCH)}, 2\nv_xor_b32 v9, {s(sP2)}, v9")
        a(f"v_lshl_add_u32 {v(G.vBA)}, v9, 4, v8\nv_xor_b32 v9, 4, v9\nv_lshl_add_u32 {v(G.vBA+1)}, v9, 4, v8")
        for w in (1, 2):
            for cb in range(2): a(f"v_add_u32 {v(G.vBA+2*w+cb)}, {65536*w}, {v(G.vBA+cb)}")
        a(f"s_lshl_b32 {s(sP2)}, {s(sWAVE)}, 12\ns_add_u32 {s(sP2)}, {s(sP2)}, {XCH_Y}\nv_add_u32 {v(G.vXC)}, {s(sP2)}, {v(G.vA)}")
        a(f"s_xor_b32 {s(sP2)}, {s(sWAVE)}, 1\ns_lshl_b32 {s(sP2)}, {s(sP2)}, 12\ns_add_u32 {s(sP2)}, {s(sP2)}, {XCH_Y}\nv_add_u32 {v(G.vXP)}, {s(sP2)}, {v(G.vA)}")
        a(f"v_and_b32 v8, 3, v1\nv_lshlrev_b32 v8, 2, v8\nv_add_u32 {v(G.vPW)}, {SC_PROG}, v8\nv_lshlrev_b32 {v(G.vGP)}, {FS}, v5")
        a(f"s_lshl_b32 {s(sP2)}, {s(sWAVE)}, 2\ns_add_u32 {s(sP2)}, {s(sP2)}, {SC_PROG+16}\nv_mov_b32 {v(G.vDW)}, {s(sP2)}")
        a(f"s_lshl_b32 {s(sP2)}, {s(sWAVE)}, 4\ns_add_u32 {s(sP2)}, {s(sP2)}, {SC_FLAG}\nv_mov_b32 {v(G.vMF)}, {s(sP2)}\ns_xor_b32 {s(sP2)}, {s(sP2)}, 16\nv_mov_b32 {v(G.vPF)}, {s(sP2)}")
        a(f"s_lshl_b32 {s(sC0+1)}, {s(sP1)}, {FS+4}\ns_add_u32 {s(sC0+1)}, {s(sC0+1)}, {WS_FO}")
        gs = [int(c) for c in str(self.o["grp"])]; g0 = 0
        a(f"s_mov_b32 {s(sP3)}, {s(sCT)}")
        for n in gs:
            if n > 1:
                a(f"s_lshr_b32 {s(sP2)}, s2, {(6, 5, 7)[self.o['m84']]}\ns_mul_i32 {s(sP2)}, {s(sP2)}, {max(1, (n+1)//4)}\ns_add_u32 {s(sP2)}, {s(sP2)}, {s(sCT)}")
                a(f"s_mul_i32 {s(sP4)}, {s(sP2)}, {-(-256//n)}\ns_lshr_b32 {s(sP4)}, {s(sP4)}, 8\ns_mul_i32 {s(sP4)}, {s(sP4)}, {n}\ns_sub_u32 {s(sP2)}, {s(sP2)}, {s(sP4)}")
                a(f"s_sub_u32 {s(sP2)}, {s(sCT)}, {s(sP2)}\ns_add_u32 {s(sP4)}, {s(sP2)}, {n}\ns_cmp_lt_i32 {s(sP2)}, {g0}\ns_cselect_b32 {s(sP2)}, {s(sP4)}, {s(sP2)}")
                a(f"s_sub_u32 {s(sP4)}, {s(sCT)}, {g0}\ns_cmp_lt_u32 {s(sP4)}, {n}\ns_cselect_b32 {s(sP3)}, {s(sP2)}, {s(sP3)}")
            g0 += n
        a(f"s_lshl_b32 {s(sP3)}, {s(sP3)}, 2\ns_lshl_b32 {s(sP2)}, {s(sHF)}, 1\ns_add_u32 {s(sP3)}, {s(sP3)}, {s(sP2)}\ns_add_u32 {s(sP3)}, {s(sP3)}, {s(sRH)}\ns_lshl_b32 {s(sP3)}, {s(sP3)}, 12")
        a(f"v_bfe_u32 v8, v1, 1, 3\ns_lshl_b32 {s(sP2)}, {s(sCH)}, 2\nv_xor_b32 v8, {s(sP2)}, v8\nv_lshlrev_b32 v8, 4, v8\nv_lshl_add_u32 v8, v3, 3, v8")
        a(f"v_lshl_add_u32 v8, v2, 7, v8\nv_add_u32 {v(G.vXR)}, {s(sP3)}, v8")
        a(f"s_lshl_b32 {s(sP1)}, {s(sP1)}, 1\ns_add_u32 {s(sP1)}, {s(sP1)}, {s(sRH)}\ns_lshl_b32 {s(sP1)}, {s(sP1)}, 15")
        a(f"s_lshl_b32 {s(sP2)}, {s(sCT)}, 1\ns_add_u32 {s(sP2)}, {s(sP2)}, {s(sCH)}\ns_lshl_b32 {s(sP2)}, {s(sP2)}, 6\ns_add_u32 {s(sP1)}, {s(sP1)}, {s(sP2)}")
        a(f"v_lshl_add_u32 v8, v2, 10, {s(sP1)}\nv_lshl_add_u32 {v(G.vOUT)}, v3, 4, v8\ns_mov_b32 {s(sC0+2)}, {s(sP2)}")
        return out

    def phase2(self):
        a = self.a; G = self; D = self.o['D']; sA = sKST
        RING = G.RING
        a.label("L_phase2")
        vm = Cnt(a, "vmcnt", 63); lg = Cnt(a, "lgkmcnt", 15)
        aload = lambda sig: self.aload(vm, sig)
        breads = self.breads
        def ds(x, tag): a(x); lg.issue(tag)
        def lcheck(vaddr, off, lv, tag, extra=(), ck=G.vCK):
            L = self.lab("lc"); R = self.lab("lcok"); X = self.lab("lcx")
            lg.wait(tag)
            a(f"v_cmp_gt_u32 vcc, {lv}, {v(ck)}\ns_cbranch_vccnz {L}")
            a.label(R)
            ex = "".join(e + "\n" for e in extra)
            self.tail.append(f"""{L}:
s_mov_b32 {s(sSPIN)}, 0
{X}:
ds_read_b32 {v(ck)}, {v(vaddr)} offset:{off}
{ex}s_add_u32 {s(sSPIN)}, {s(sSPIN)}, 1
s_cmp_gt_u32 {s(sSPIN)}, {SPIN_MAX*8}
s_waitcnt lgkmcnt(0)
s_cbranch_scc1 {R}
v_cmp_gt_u32 vcc, {lv}, {v(ck)}
s_cbranch_vccnz {X}
s_branch {R}""")
        def lread(vaddr, off, tag, ck=G.vCK): ds(f"ds_read_b32 {v(ck)}, {v(vaddr)} offset:{off}", tag)
        def lsig(vaddr, off, lv): a(f"v_mov_b32 {v(G.vLV)}, {lv}"); ds(f"ds_write_b32 {v(vaddr)}, {v(G.vLV)} offset:{off}", "sig")
        F4 = self.o["fs4"]; va = G.vGB if F4 else G.vGP
        def gload(soff, r, tag): a(self.fload(r, va, soff)); vm.issue(tag)
        gcheck = lambda soff: self.gcheck(vm, soff, bool(self.o['kearly']), va)
        self.ts("c_p0"); assert self.o["g2h"] < 4
        vm.q = [("A", k) for k in range(8)] + ["gf"] * bool(self.o["kearly"]) + ["pub"] * (4 - self.o["g2h"])
        EB = self.o["eb"]
        if EB: lg.q = [("B", 0)] * 4 + [("B", 1)] * 4
        if self.o["gateA"] or self.o["gateB"]: lsig(G.vDW, 0, 1)
        if not EB: lread(G.vPW, 0, "ck")
        a(f"v_lshl_add_u32 v8, v2, 1, {s(sC0+2)}\nv_mov_b32 v11, {s(sNONCE)}")
        assert D == 8
        if F4: a(f"v_and_b32 {v(va)}, 3, v1\ns_lshl_b32 {s(sT0)}, {s(sWAVE)}, 2\nv_add_lshl_u32 {v(va)}, {v(va)}, {s(sT0)}, {FS}")
        for sig in range(8, D): aload(sig)
        if not EB: lcheck(G.vPW, 0, 1, "ck")
        need_prog = {6: 2, 21: 3, 36: 4, 43: 5, 53: 6}
        GL = self.o['gl']; SO = 49152 if GL else 16384
        done_at = {6: 2, 16: 3, 20: 4, (36 if GL else 30): 5}
        gat = {15 - D: sC0, 29 - D: sC0, 43 - D: sC0 + 1}
        yr = [f"ds_read_b128 {v(96+4*q,4)}, {v(G.vXP)} offset:{1024*q}" for q in range(4)]
        for sig in range(0 if EB else 2):
            for r in breads(sig): ds(r, ("B", sig))
        T = 96; YK = 112; BB = 128; XX = 240
        work = []
        for q in range(8):
            work += [f"v_lshlrev_b32 {v(XX+2*q)}, 16, {v(G.XR+q)}", f"v_and_b32 {v(XX+2*q+1)}, 0xffff0000, {v(G.XR+q)}"]
        work += ["v_cmp_gt_u32 vcc, 32, v1\nv_mov_b32 v12, 0x3f80", f"v_cndmask_b32 {v(BB+4)}, 0, v12, vcc"] + [f"v_mov_b32 {v(BB+k)}, 0" for k in (1, 2, 3, 5, 6, 7)]
        gw = []
        for half in range(2):
            o = 8 * half
            gw += [f"v_add_f32 {v(YK+o+j)}, {v(T+o+j)}, {v(G.Y+o+j)}" for j in range(8)]
            gw += [f"v_mul_f32 {v(T+o+j)}, {fl(-1.4426950408889634)}, {v(YK+o+j)}" for j in range(8)]
            gw += [f"v_exp_f32 {v(T+o+j)}, {v(T+o+j)}" for j in range(8)]
            gw += [f"v_add_f32 {v(T+o+j)}, 1.0, {v(T+o+j)}" for j in range(8)]
            gw += [f"v_rcp_f32 {v(T+o+j)}, {v(T+o+j)}" for j in range(8)]
            gw += [f"v_mul_f32 {v(YK+o+j)}, {v(YK+o+j)}, {v(T+o+j)}" for j in range(8)]
        held = []
        if GL: gw = []
        for sig in range(59):
            acc = G.Y if sig < 43 else G.S2; first = sig in (0, 43)
            n0 = len(a.items); lg.wait(("B", sig)); vm.wait(("A", sig))
            if self.o["mw"] and len(a.items) == n0 + 2: a.items[n0:] = [a.items[n0 + 1] + " " + a.items[n0].split()[1]]
            A = v(RING[sig % D], 4)
            m = [f"v_mfma_f32_32x32x16_bf16 {v(acc+16*cb,16)}, {v(G.BF+8*(sig%3)+4*cb,4)}, {A}, {0 if first else v(acc+16*cb,16)}" for cb in range(2)]
            if self.o["snk"] & 4 and sig & 1 and sig < 56: m = m[::-1]
            self.ts(f"c_s{sig}")
            if sig >= 56 and self.o["tl"]:
                for r in breads(sig + 2): ds(r, ("B", sig + 2))
                held.append((m[0], gw[8*(sig-47): 8*(sig-46)])); a(m[1]); continue
            a(m[0])
            if sig in done_at: lsig(G.vDW, 0, done_at[sig])
            if sig in need_prog: lcheck(G.vPW, 0, need_prog[sig], "ck")
            if sig == 44:
                lcheck(G.vPW, 16, 5, "ck")
                for q in range(4): ds(f"ds_write_b128 {v(G.vXC)}, {v(G.Y+16+4*q,4)} offset:{16384*GL+1024*q}", "yw")
                if not GL: lsig(G.vMF, 8, 1)
            if sig == 45 and GL:
                for q in range(4): ds(f"ds_write_b128 {v(G.vXC)}, {v(G.Y+4*q,4)} offset:{1024*q}", "yw")
                lsig(G.vMF, 8, 1)

            if sig == 47 and not GL: lcheck(G.vPF, 8, 1, "yr", yr)
            rd = breads(sig + 2) if not (self.o["e4"] & 2 and 8 <= sig < 40) else []
            nd = self.o["nd"]
            for r in rd[:nd]: ds(r, ("B", sig + 2))
            fill = []
            if 9 <= sig <= 14: fill = work[4*(sig-9): 4*(sig-8)]
            if sig == 16: fill = ["s_nop 0", f"v_mfma_f32_32x32x16_bf16 {v(G.Y,16)}, {v(BB,4)}, {v(BB+4,4)}, {v(G.Y,16)}"]
            if 47 <= sig <= 58: fill = gw[8*(sig-47): 8*(sig-46)]
            h = len(fill) // 2
            for f in fill[:h]: a(f)
            a(m[1])
            for r in rd[nd:]: ds(r, ("B", sig + 2))
            if sig + 1 in need_prog: lread(G.vPW, 0, "ck")
            if sig == 43: lread(G.vPW, 16, "ck")
            if sig == 55 and GL: lread(G.vPW, 0, "ck")
            if sig == 45 and not GL:
                lread(G.vPF, 8, "yr")
                for r in yr: ds(r, "yr")
            if sig == self.o["pf"]:
                vm.wait("pub"); a(f"buffer_store_dword v11, {v(G.vFL)}, {s(sWS,4)}, s27 offen sc1"); vm.issue("f"); self.ts("c_pflag")
            if F4:
                lvl = lambda k: sorted(gat).index(k) + 1
                if sig + 2 in gat: gcheck(gat[sig + 2]); lsig(G.vDW, 16, lvl(sig + 2))
                if sig + 1 in gat: lread(G.vPW, 32, "sn", G.vGF)
                if sig in gat: self.ts(f"c_gp{sig}"); lcheck(G.vPW, 32, lvl(sig), "sn", ck=G.vGF); self.ts(f"c_g{sig}")
            elif sig in gat: self.ts(f"c_gp{sig}"); gcheck(gat[sig]); self.ts(f"c_g{sig}")
            if not (self.o["e4"] & 1 and 8 <= sig + D < 43): aload(sig + D)
            if sig == 0: a(f"buffer_load_ushort {v(BB)}, v8, {s(sB2,4)}, 0 offen"); vm.issue("x")
            if sig == 15: vm.wait("x")
            ke = self.o["kearly"] or self.o["kpoll"] + 2 * F4
            if self.o["kearly"] and sig + self.o["kpoll"] in gat: gload(gat[sig + self.o["kpoll"]], G.vGB, "gb")
            if sig + ke in gat and (sig > 7 or not self.o["kearly"]):
                so = gat[sig + ke]
                if so == sC0: a(f"s_add_u32 {s(sC0)}, {s(sC0)}, {FG}")
                gload(so, G.vGF, "gf")
            for f in fill[h:]: a(f)
        for m0, f in held[:2]:
            a(m0)
            for x in f: a(x)
            if GL and m0 == held[0][0]:
                lcheck(G.vPW, 0, 7, "ck")
                for q in range(4): ds(f"ds_read_b128 {v(YK+4*q,4)}, {v(G.vXC)} offset:{32768+1024*q}", "g")
        self.ts("c_loop")
        for q in range(4): ds(f"ds_write_b128 {v(G.vXC)}, {v(G.S2+16+4*q,4)} offset:{SO+1024*q}", "sw")
        lsig(G.vMF, 12, 1)
        for m0, f in held[2:]:
            a(m0)
            for x in f: a(x)
        sr = [f"ds_read_b128 {v(T+4*q,4)}, {v(G.vXP)} offset:{SO+1024*q}" for q in range(4)]
        lread(G.vPF, 12, "sr")
        for r in sr: ds(r, "sr")
        lg.wait("g")
        for j in range(0, 16, 2): a(f"v_pk_fma_f32 {v(XX+j,2)}, {v(G.S2+j,2)}, {v(YK+j,2)}, {v(XX+j,2)}")
        lcheck(G.vPF, 12, 1, "sr", sr)
        for half in range(2):
            o = 8 * half; P = BB + 8 + 4 * half
            for j in range(0, 8, 2): a(f"v_pk_fma_f32 {v(XX+o+j,2)}, {v(T+o+j,2)}, {v(YK+o+j,2)}, {v(XX+o+j,2)}")
            for j in range(4): a(f"v_cvt_pk_bf16_f32 {v(P+j)}, {v(XX+o+2*j)}, {v(XX+o+2*j+1)}")
            a(f"v_permlane32_swap_b32 {v(P)}, {v(P+2)}\nv_permlane32_swap_b32 {v(P+1)}, {v(P+3)}")
            a(f"buffer_store_dwordx4 {v(P,4)}, {v(G.vOUT)}, {s(sOUT,4)}, 0 offen offset:{32*half} {['', 'sc1', 'nt', 'sc0 sc1', 'sc1 nt'][self.o['osc']]}")
        self.ts("c_end")
        self.ts_flush()

    def build(self):
        a = self.a
        self.prologue()
        self.compute_setup()
        self.typeA()
        if self.stop == "p1": self.ts_flush(); a("s_endpgm")
        else: a("s_branch L_phase2")
        a.label("L_typeB")
        self.typeB()
        if self.stop == "p1": self.ts_flush(); a("s_endpgm")
        else: self.phase2()
        a.label("L_end")
        a("s_endpgm")
        for t in self.tail: a(t)
        a("L_last:\ns_endpgm")
        body = a.finalize(verbose=True)
        head = open("cdna_kernels/" + KN[:-7] + ".s.ref").read().split("; Override launch")[0]
        return head + f"""; @launch grid=(256,1,1) block=(512,1,1) lds={LDS_SIZE}
;
; One persistent launch, one workgroup per CU: 4 compute waves (MFMA) + 4 loader waves (LDS-DMA / register staging).
; Phase 1, tile 128 rows x 3 panels of 64 columns, raw x resident in LDS, layer norm applied after the GEMM
;   (row mean / rstd are computed once per row and handed round; mean * column-sum and bias enter through one more MFMA):
;   type A workgroups: [K V] -> phi(k), kv / z partials -> [Q] -> sum of the 16 partials, o = num / den
;   type B workgroups: [F F] [F] -> gelu -> h
; Phase 2, tile 64 x 64: y = h @ w2 + b2, s = o @ wo, out = x + s * silu(y).
; Hand-offs go through d_ws with write-through stores and flag lines that carry a per-launch nonce (published in d_debug).
; Generated by gen/gen.py.
.amdgcn_target "amdgcn-amd-amdhsa--gfx950"
.text
.globl {KN}
.p2align 8
.type {KN},@function
{KN}:
{body}
.section .rodata,"a"
.p2align 6
.amdhsa_kernel {KN}
  .amdhsa_next_free_vgpr 256
  .amdhsa_next_free_sgpr 102
  .amdhsa_accum_offset 256
  .amdhsa_group_segment_fixed_size 0
  .amdhsa_kernarg_size 88
  .amdhsa_user_sgpr_count 2
  .amdhsa_user_sgpr_kernarg_segment_ptr 1
  .amdhsa_system_sgpr_workgroup_id_x 1
.end_amdhsa_kernel
"""

if __name__ == "__main__":
    import argparse
    ap = argparse.ArgumentParser()
    ap.add_argument("out"); ap.add_argument("--diag", nargs="?", const="rt"); ap.add_argument("--stop"); ap.add_argument("--dbgout", action="store_true"); ap.add_argument("--marks"); ap.add_argument("--opts"); ap.add_argument("--probe")
    x = ap.parse_args()
    open(x.out, "w").write(Gen(diag=x.diag, stop=x.stop, dbgout=x.dbgout, marks=x.marks, opts=x.opts, probe=x.probe).build())
```
